```python
import torch

def _softmax(x, axis=-1):
    return torch.softmax(x, dim=axis)
def _gelu(x):
    return torch.nn.functional.gelu(x, approximate="tanh")
def _silu(x):
    return torch.nn.functional.silu(x)
def _sigmoid(x):
    return torch.sigmoid(x)
def _layernorm(x, axis=-1, eps=1e-5):
    m = x.mean(dim=axis, keepdim=True)
    v = x.var(dim=axis, keepdim=True, unbiased=False)
    return (x - m) / torch.sqrt(v + eps)
def _scatter_add(tgt, idx, src, axis=0):
    return tgt.clone().index_add_(axis, idx, src)
def _segment_sum(src, seg, n):
    out = torch.zeros((n,) + src.shape[1:], dtype=src.dtype)
    return out.index_add_(0, seg, src)
def _pad(x, pw):
    flat = tuple(v for pair in reversed(pw) for v in pair)
    return torch.nn.functional.pad(x, flat)

kernel_name = 'interleave_layers__spectral_fnet__dense_activation_relu__prompt'

def setup_inputs():

    _w = (lambda a: (lambda t: t.to(torch.bfloat16) if t.is_floating_point() else t)(torch.as_tensor(a)))
    def _A_setup():
        B, S, D = 1, 2048, 640
        ns = torch.arange(S)[:, None] * torch.arange(S)[None, :]
        nd = torch.arange(D)[:, None] * torch.arange(D)[None, :]
        Ws_re = torch.cos(-2.0 * torch.pi * ns / S).to(float)
        Ws_im = torch.sin(-2.0 * torch.pi * ns / S).to(float)
        Wd_re = torch.cos(-2.0 * torch.pi * nd / D).to(float)
        Wd_im = torch.sin(-2.0 * torch.pi * nd / D).to(float)
        return {
            "x": _w((lambda *s: torch.randn(*s, dtype=torch.bfloat16) * 0.05)(B, S, D)),
            "dft_seq_re": _w(Ws_re),
            "dft_seq_im": _w(Ws_im),
            "dft_hid_re": _w(Wd_re),
            "dft_hid_im": _w(Wd_im),
        }
    _A_in = _A_setup()

    def _B_setup():
        B, S, D, Dff = 1, 2048, 640, 1728
        return {
            "x": _w((lambda *s: torch.randn(*s, dtype=torch.bfloat16) * 0.05)(B, S, D)),
            "w1": _w((lambda *s: torch.randn(*s, dtype=torch.bfloat16) * 1.6)(D, Dff)),
            "w2": _w((lambda *s: torch.randn(*s, dtype=torch.bfloat16) * 1.6)(Dff, D)),
        }
    _B_in = _B_setup()

    return {
        "A_x": _A_in["x"],
        "A_dft_seq_re": _A_in["dft_seq_re"],
        "A_dft_seq_im": _A_in["dft_seq_im"],
        "A_dft_hid_re": _A_in["dft_hid_re"],
        "A_dft_hid_im": _A_in["dft_hid_im"],
        "B_x": _B_in["x"],
        "B_w1": _B_in["w1"],
        "B_w2": _B_in["w2"],
    }

def reference(A_x, A_dft_seq_re, A_dft_seq_im, A_dft_hid_re, A_dft_hid_im, B_x, B_w1, B_w2):
    def _A_ref(x, dft_seq_re, dft_seq_im, dft_hid_re, dft_hid_im):
        a = torch.einsum("bsd,ed->bse", x, dft_hid_re)
        b = torch.einsum("bsd,ed->bse", x, dft_hid_im)
        y = torch.einsum("ts,bse->bte", dft_seq_re, a) - torch.einsum("ts,bse->bte", dft_seq_im, b)
        return y

    def _B_ref(x, w1, w2):
        h = torch.einsum("bsd,df->bsf", x, w1)
        zero = torch.zeros_like(h)
        h = torch.maximum(h, zero)
        return torch.einsum("bsf,fd->bsd", h, w2)

    x = A_x
    x = x + _A_ref(_layernorm(x, axis=-1), A_dft_seq_re, A_dft_seq_im, A_dft_hid_re, A_dft_hid_im)
    x = x + _B_ref(_layernorm(x, axis=-1), B_w1, B_w2)
    x = x + _A_ref(_layernorm(x, axis=-1), A_dft_seq_re, A_dft_seq_im, A_dft_hid_re, A_dft_hid_im)
    x = x + _B_ref(_layernorm(x, axis=-1), B_w1, B_w2)
    return x
```

```python
import re

TRANS = ('v_exp_', 'v_log_', 'v_rcp_', 'v_rsq_', 'v_sqrt_', 'v_sin_', 'v_cos_')


def vr(base, n=1):
    return f'v{base}' if n == 1 else f'v[{base}:{base + n - 1}]'


def sr(base, n=1):
    return f's{base}' if n == 1 else f's[{base}:{base + n - 1}]'


_reg_re = re.compile(r'^(-|abs\()?([vsa])(?:(\d+)|\[(\d+):(\d+)\])\)?$')


def regs_of(tok):
    tok = tok.strip()
    if tok in ('vcc',):
        return {('s', 'vcc')}
    if tok in ('vcc_lo', 'vcc_hi'):
        return {('s', 'vcc')}
    if tok == 'm0':
        return {('s', 'm0')}
    if tok == 'exec':
        return {('s', 'exec')}
    m = _reg_re.match(tok)
    if not m:
        return set()
    k = m.group(2)
    if m.group(3) is not None:
        lo = hi = int(m.group(3))
    else:
        lo, hi = int(m.group(4)), int(m.group(5))
    return {(k, i) for i in range(lo, hi + 1)}


class Ins:
    __slots__ = ('text', 'mn', 'ops', 'mods', 'w', 'r', 'kind', 'passes', 'srcc', 'ab', 'data', 'states')

    def __init__(self, text):
        self.text = text
        t = text.split(';')[0].strip()
        parts = t.split(None, 1)
        self.mn = mn = parts[0]
        rest = parts[1] if len(parts) > 1 else ''
        toks = [x.strip() for x in rest.split(',')] if rest else []
        self.mods = ''
        if toks:
            last = toks[-1].split(None, 1)
            toks[-1] = last[0]
            self.mods = last[1] if len(last) > 1 else ''
        self.ops = toks
        self.w, self.r = set(), set()
        self.passes = 0
        self.srcc = set()
        self.ab = set()
        self.data = set()
        self.states = 1
        R = [regs_of(x) for x in toks]
        if mn == 's_nop':
            self.kind = 'nop'
            self.states = int(toks[0], 0) + 1
        elif mn.startswith('v_mfma'):
            self.kind = 'mfma'
            self.passes = 8 if '32x32' in mn else 4
            self.w = R[0]
            self.ab = R[1] | R[2]
            self.srcc = R[3]
            self.r = self.ab | self.srcc
        elif mn.startswith('v_'):
            self.kind = 'valu'
            if mn.startswith('v_cmp'):
                self.w = R[0]
                for x in R[1:]:
                    self.r |= x
            elif mn.startswith('v_permlane') and 'swap' in mn:
                self.w = R[0] | R[1]
                self.r = R[0] | R[1]
            elif mn.startswith(('v_add_co', 'v_sub_co', 'v_addc_co', 'v_subb_co')):
                self.w = R[0] | R[1]
                for x in R[2:]:
                    self.r |= x
            else:
                self.w = R[0]
                for x in R[1:]:
                    self.r |= x
                if mn.startswith(('v_fmac', 'v_dot2c', 'v_writelane')) or 'dpp' in mn or 'sdwa' in mn:
                    self.r |= R[0]
        elif mn.startswith('ds_'):
            self.kind = 'ds'
            if 'read' in mn or 'bpermute' in mn or 'swizzle' in mn or 'rtn' in mn:
                self.w = R[0]
                for x in R[1:]:
                    self.r |= x
            else:
                for x in R:
                    self.r |= x
            if 'addtid' in mn:
                self.r |= {('s', 'm0')}
        elif mn.startswith(('buffer_', 'global_', 'flat_')):
            self.kind = 'vmem'
            islds = ' lds' in (' ' + self.mods) or '_lds_' in mn
            if mn in ('buffer_wbl2', 'buffer_inv'):
                pass
            elif islds:
                for x in R:
                    self.r |= x
                self.r |= {('s', 'm0')}
            elif 'load' in mn:
                self.w = R[0]
                for x in R[1:]:
                    self.r |= x
                if 'd16' in mn:
                    self.r |= R[0]
            else:
                for x in R:
                    self.r |= x
                if 'x4' in mn or 'x3' in mn:
                    self.data = R[0] if mn.startswith('buffer_') else R[1]
                if 'atomic' in mn and 'sc0' in self.mods:
                    self.w = R[0]
        elif mn.startswith('s_'):
            self.kind = 'salu'
            if mn.startswith(('s_cmp', 's_cbranch', 's_branch', 's_waitcnt', 's_barrier', 's_endpgm', 's_sleep', 's_setprio')):
                for x in R:
                    self.r |= x
            else:
                if R:
                    self.w = R[0]
                for x in R[1:]:
                    self.r |= x
                if 'saveexec' in mn:
                    self.w = self.w | {('s', 'exec')}
        else:
            raise ValueError('unknown instruction: ' + text)


def need_states(p, c):
    n = 0
    vw = {x for x in p.w if x[0] in 'va'}
    sw = {x for x in p.w if x[0] == 's'}
    if p.kind == 'valu':
        if c.kind == 'mfma' and vw & c.r:
            n = max(n, 2)
        if c.kind == 'valu':
            if vw & c.r:
                if 'dpp' in c.mn or c.mn.startswith('v_permlane'):
                    n = max(n, 2)
                if c.mn.startswith(('v_readfirstlane', 'v_readlane')):
                    n = max(n, 1)
                if p.mn.startswith(TRANS):
                    n = max(n, 1)
                if 'sdwa' in p.mn or 'op_sel' in p.mods:
                    n = max(n, 1)
            if sw & c.r:
                n = max(n, 4 if c.mn.startswith(('v_readlane', 'v_writelane')) else 2)
        if c.kind == 'vmem' and sw & c.r:
            n = max(n, 5)
        if c.kind in ('salu', 'ds') and sw & c.r:
            n = max(n, 2)
    if p.kind == 'mfma':
        big = p.passes == 8
        if c.kind == 'mfma':
            if p.w & c.ab:
                n = max(n, 12 if big else 8)
            if p.w & c.srcc and not (p.w == c.srcc and p.passes == c.passes):
                n = max(n, 10 if big else 6)
            if p.w & c.w and not (p.w == c.srcc and p.passes == c.passes):
                n = max(n, 10 if big else 6)
        elif c.kind in ('valu', 'ds', 'vmem'):
            if p.w & (c.r | c.w):
                n = max(n, 12 if big else 8)
            if c.kind == 'valu' and p.srcc & c.w:
                n = max(n, 7 if big else 3)
            if c.kind in ('ds', 'vmem') and p.srcc & c.w:
                n = max(n, 7 if big else 3)
    if p.kind == 'salu' and ('s', 'm0') in p.w and ('s', 'm0') in c.r and c.kind in ('vmem', 'ds'):
        n = max(n, 1)
    if p.kind == 'vmem' and p.data and p.data & c.w:
        n = max(n, 2)
    return n


def pad_hazards(lines):
    out = []
    hist = []
    for ln in lines:
        s = ln.split(';')[0].strip()
        if not s or s.startswith('.'):
            out.append(ln)
            continue
        if s.endswith(':'):
            out.append(ln)
            continue
        c = Ins(s)
        dist = 0
        need = 0
        for p in reversed(hist):
            k = need_states(p, c) - dist
            need = max(need, k)
            dist += p.states
            if dist > 20:
                break
        while need > 0:
            k = min(need, 16)
            nop = f's_nop {k - 1}'
            out.append('    ' + nop)
            hist.append(Ins(nop))
            need -= k
        out.append(ln)
        hist.append(c)
        if c.mn in ('s_endpgm', 's_branch'):
            hist = []
        hist = hist[-24:]
    return out


class Asm:
    def __init__(self):
        self.lines = []
        self.vm = []
        self.lg = []
        self._lab = 0

    def e(self, s):
        self.lines.append('    ' + s)

    def c(self, s):
        self.lines.append('    ; ' + s)

    def label(self, name):
        self.lines.append(name + ':')

    def raw(self, s):
        self.lines.append(s)

    def newlab(self, p='L'):
        self._lab += 1
        return f'{p}_{self._lab}'

    def vmem(self, s, tag=None):
        self.e(s)
        self.vm.append(tag)

    def lds(self, s, tag=None):
        self.e(s)
        self.lg.append(tag)

    def _cnt(self, lst, tags, cap):
        if not isinstance(tags, (list, set)):
            tags = [tags]
        idx = -1
        for i, t in enumerate(lst):
            if t in tags:
                idx = i
        if idx < 0:
            return None
        n = len(lst) - 1 - idx
        n = min(n, cap)
        del lst[:len(lst) - n]
        return n

    def wait(self, vm=None, lg=None):
        parts = []
        if vm is not None:
            if vm == 'all':
                self.vm.clear()
                parts.append('vmcnt(0)')
            else:
                n = self._cnt(self.vm, vm, 63)
                if n is not None:
                    parts.append(f'vmcnt({n})')
        if lg is not None:
            if lg == 'all':
                self.lg.clear()
                parts.append('lgkmcnt(0)')
            else:
                n = self._cnt(self.lg, lg, 15)
                if n is not None:
                    parts.append(f'lgkmcnt({n})')
        if parts:
            self.e('s_waitcnt ' + ' '.join(parts))

    def save(self):
        return (list(self.vm), list(self.lg))

    def restore(self, st):
        self.vm, self.lg = list(st[0]), list(st[1])

    def srd(self, d, base, nbytes):
        self.e(f's_mov_b32 s{d}, s{base}')
        self.e(f's_and_b32 s{d + 1}, s{base + 1}, 0xffff')
        self.e(f's_mov_b32 s{d + 2}, 0x{nbytes:x}')
        self.e(f's_mov_b32 s{d + 3}, 0x20000')

    def text(self):
        return '\n'.join(pad_hazards(self.lines)) + '\n'


def descriptor(name, vgpr, sgpr=96):
    acc = (vgpr + 3) // 4 * 4
    return f'''.section .rodata,"a"
.p2align 6
.amdhsa_kernel {name}
  .amdhsa_next_free_vgpr {vgpr}
  .amdhsa_next_free_sgpr {sgpr}
  .amdhsa_accum_offset {acc}
  .amdhsa_group_segment_fixed_size 0
  .amdhsa_kernarg_size 88
  .amdhsa_user_sgpr_count 2
  .amdhsa_user_sgpr_kernarg_segment_ptr 1
  .amdhsa_system_sgpr_workgroup_id_x 1
.end_amdhsa_kernel
'''
```

```python
import sys
from asmlib import *

NAME = 'interleave_layers__spectral_fnet__dense_activation_relu__prompt'
S, D, F = 2048, 640, 1728

MB = 1 << 20
W1F = 0
W2F = 3 * MB
TW2 = 6 * MB
CSP = 6 * MB + 512 * 1024
X2 = 7 * MB
LAYER = [12 * MB, 28 * MB]
V_O, XP_O, X1P_O, H_O = 0, 3 * MB, 6 * MB, 9 * MB
WS_BYTES = 268435456

sWAVE, sG, sC = 3, 4, 5
P_X, P_CR, P_CI, P_DR, P_DI, P_W1, P_W2, P_OUT, P_WS = 8, 10, 12, 14, 16, 20, 22, 24, 26


def prologue(a, name, end):
    a.raw('.text')
    a.raw(f'.globl {name}')
    a.raw('.p2align 8')
    a.raw(f'.type {name},@function')
    a.label(name)
    a.e('s_cmp_ge_u32 s2, 256')
    a.e(f's_cbranch_scc1 {end}')
    a.e('s_load_dwordx16 s[8:23], s[0:1], 0')
    a.e('s_load_dwordx2 s[24:25], s[0:1], 64')
    a.e('s_load_dwordx2 s[26:27], s[0:1], 80')
    a.e('v_lshrrev_b32 v1, 6, v0')
    a.e(f'v_readfirstlane_b32 s{sWAVE}, v1')
    a.e('v_and_b32 v1, 63, v0')
    a.e('s_and_b32 s6, s2, 7')
    a.e('s_lshl_b32 s6, s6, 2')
    a.e('s_lshr_b32 s7, s2, 6')
    a.e(f's_add_u32 s{sG}, s6, s7')
    a.e('s_lshr_b32 s7, s2, 3')
    a.e(f's_and_b32 s{sC}, s7, 7')


def gen_A1(a, name, layer):
    prep = (layer == 0)
    end = name + '_end'
    LB = LAYER[layer]
    prologue(a, name, end)
    sX, sD, sD2, sCr, sCi, sWS, sW = 28, 32, 36, 40, 44, 48, 52
    sWK = 56
    SLOT0, SLOTB, NSLOT = 16384, 18432, 7
    ST = SLOT0 + NSLOT * SLOTB
    RS, MR, CS = ST, ST + 256, ST + 512
    a.e('v_lshrrev_b32 v2, 3, v1')
    a.e('v_and_b32 v3, 7, v1')
    a.e('v_xor_b32 v3, v3, v2')
    a.e('v_lshlrev_b32 v3, 4, v3')
    a.e(f's_and_b32 s6, s{sWAVE}, 1')
    a.e('s_lshl_b32 s6, s6, 4')
    a.e(f's_lshr_b32 s7, s{sWAVE}, 2')
    a.e('s_lshl_b32 s7, s7, 5')
    a.e('s_add_u32 s6, s6, s7')
    a.e(f's_and_b32 s7, s{sWAVE}, 2')
    a.e('s_lshl_b32 s7, s7, 1')
    a.e('s_add_u32 s6, s6, s7')
    a.e('v_lshrrev_b32 v4, 2, v2')
    a.e('v_lshlrev_b32 v4, 3, v4')
    a.e('v_and_b32 v5, 3, v2')
    a.e('v_add3_u32 v4, v4, v5, s6')
    a.e(f'v_lshl_add_u32 v4, v4, 5, s{sG}')
    a.e('s_movk_i32 s7, 1280')
    a.e('v_mad_u32_u24 v4, v4, s7, v3')
    a.e(f's_mul_i32 s6, s{sC}, 40')
    a.e(f's_lshr_b32 s57, s{sWAVE}, 1')
    a.e('s_lshl_b32 s57, s57, 3')
    a.e('s_add_u32 s57, s57, s6')
    a.e('v_add_u32 v5, s57, v2')
    a.e('v_mov_b32 v6, 320')
    a.e('v_cmp_eq_u32 vcc, 0, v5')
    a.e('v_cndmask_b32 v5, v5, v6, vcc')
    a.e('v_mad_u32_u24 v5, v5, s7, v3')
    a.e('s_add_u32 s6, s6, 32')
    a.e('v_add_u32 v6, s6, v2')
    a.e('v_mad_u32_u24 v6, v6, s7, v3')
    a.e(f's_lshl_b32 s6, s{sWAVE}, 3')
    a.e('v_add_u32 v7, s6, v2')
    a.e('v_lshl_add_u32 v7, v7, 17, v3')
    a.e(f's_lshl_b32 s{sWK}, s{sWAVE}, 10')
    a.e('v_and_b32 v8, 15, v1')
    a.e('v_lshrrev_b32 v9, 4, v1')
    a.e('v_and_b32 v10, 7, v1')
    a.e('v_xor_b32 v10, v10, v9')
    a.e('v_lshlrev_b32 v10, 4, v10')
    a.e('v_lshl_add_u32 v10, v8, 7, v10')
    a.e('v_xor_b32 v11, 64, v10')
    a.e('s_waitcnt lgkmcnt(0)')
    if layer == 0:
        a.srd(sX, P_X, S * D * 2)
    else:
        a.e(f's_add_u32 s6, s{P_WS}, 0x{X2:x}')
        a.e(f's_addc_u32 s7, s{P_WS + 1}, 0')
        a.srd(sX, 6, S * D * 2)
    a.e(f's_bitcmp1_b32 s{sWAVE}, 0')
    a.e(f's_cselect_b32 s6, s{P_DI}, s{P_DR}')
    a.e(f's_cselect_b32 s7, s{P_DI + 1}, s{P_DR + 1}')
    a.srd(sD, 6, D * D * 2)
    a.e(f's_bitcmp1_b32 s{sWAVE}, 0')
    a.e(f's_cselect_b32 s6, s{P_DR}, s{P_DI}')
    a.e(f's_cselect_b32 s7, s{P_DR + 1}, s{P_DI + 1}')
    a.srd(sD2, 6, D * D * 2)
    a.srd(sCr, P_CR, S * S * 2)
    a.srd(sCi, P_CI, S * S * 2)
    a.srd(sWS, P_WS, WS_BYTES)

    def dma_chunk(kc, extra):
        sb = SLOT0 + (kc % NSLOT) * SLOTB - kc * 128
        a.e(f's_add_u32 m0, s{sWK}, {sb}')
        a.vmem(f'buffer_load_dwordx4 v4, {sr(sX, 4)}, 0 offen offset:{kc * 128} lds', ('c', kc))
        a.e(f's_add_u32 m0, s{sWK}, {sb + 8192}')
        a.vmem(f'buffer_load_dwordx4 v5, {sr(sD, 4)}, 0 offen offset:{kc * 128} lds', ('c', kc))
        if extra:
            a.e(f's_add_u32 m0, s{sWK}, {sb + 11 * 1024}')
            a.vmem(f'buffer_load_dwordx4 v6, {sr(sD2, 4)}, 0 offen offset:{kc * 128} lds', ('c', kc))

    def dma_w1():
        a.e(f's_mov_b32 m0, s{sWK}')
        a.vmem(f'buffer_load_dwordx4 v7, {sr(sCr, 4)}, 0 offen lds', 'w1')
        a.e(f's_add_u32 m0, s{sWK}, 8192')
        a.vmem(f'buffer_load_dwordx4 v7, {sr(sCi, 4)}, 0 offen lds', 'w1')

    def first_issue(extra):
        for kc in range(3):
            dma_chunk(kc, extra)
        dma_w1()
        for kc in range(3, NSLOT):
            dma_chunk(kc, extra)

    def mainloop(extra, body, mid=None):
        for kc in range(10):
            a.wait(vm=('c', kc))
            a.e('s_barrier')
            if kc >= 1 and kc - 1 + NSLOT <= 9:
                dma_chunk(kc - 1 + NSLOT, extra)
            sb = SLOT0 + (kc % NSLOT) * SLOTB
            a.e(f'v_add_u32 v12, {sb}, v10')
            a.e(f'v_add_u32 v13, {sb}, v11')
            body(kc)
            if mid is not None and kc == 6:
                mid()

    Lstat, Lcol = name + '_stat', name + '_col'
    a.e(f's_cmp_eq_u32 s{sWAVE}, 7')
    a.e(f's_cbranch_scc1 {Lcol}')
    a.e(f's_cmp_ge_u32 s{sWAVE}, 5')
    a.e(f's_cbranch_scc1 {Lstat}')
    st0 = a.save()

    ACC = 16
    FR = 32
    PL, PO = 72, 88
    vPA, vPA0, vPD, vPC = 104, 105, 106, 107
    first_issue(False)
    Lnoprep1 = name + '_np1'
    Lnoprep2 = name + '_np2'
    sT, sKB, sCB, sOFS, sISW1 = 58, 59, 60, 64, 61
    if prep:
        a.e(f's_lshl_b32 s{sT}, s{sWAVE}, 8')
        a.e(f's_add_u32 s{sT}, s{sT}, s2')
        a.e(f's_cmp_ge_u32 s{sT}, 1080')
        a.e(f's_cselect_b32 s62, 1, 0')
        a.e(f's_min_u32 s{sT}, s{sT}, 1079')
        Lw2, Lj = name + '_pw2', name + '_pj'
        a.e(f's_cmp_ge_u32 s{sT}, 540')
        a.e(f's_cbranch_scc1 {Lw2}')
        a.e(f's_mov_b32 s{sISW1}, 1')
        a.e(f's_mul_i32 s{sKB}, s{sT}, 2428')
        a.e(f's_lshr_b32 s{sKB}, s{sKB}, 16')
        a.e(f's_mul_i32 s6, s{sKB}, 27')
        a.e(f's_sub_u32 s{sCB}, s{sT}, s6')
        a.srd(sW, P_W1, D * F * 2)
        a.e(f's_lshl_b32 s6, s{sKB}, 5')
        a.e(f'v_lshl_add_u32 v{vPA}, v9, 3, s6')
        a.e(f'v_sub_u32 v{vPA0}, 953, v{vPA}')
        a.e(f's_cmp_ge_u32 s{sKB}, 10')
        a.e('s_cselect_b64 vcc, -1, 0')
        a.e(f'v_cndmask_b32 v{vPD}, v{vPA}, v{vPA0}, vcc')
        for e in range(8):
            a.e(f's_cselect_b32 s{sOFS + e}, {7 - e}, {e}')
            a.e(f's_mulk_i32 s{sOFS + e}, 3456')
        a.e(f'v_sub_u32 v{vPA0}, 960, v{vPA}')
        a.e(f'v_cndmask_b32 v{vPA0}, v{vPA}, v{vPA0}, vcc')
        a.e(f'v_mov_b32 v{vPC}, 320')
        a.e(f'v_cmp_eq_u32 vcc, 0, v{vPA0}')
        a.e(f'v_cndmask_b32 v{vPA0}, v{vPA0}, v{vPC}, vcc')
        a.e(f'v_cmp_eq_u32 vcc, 640, v{vPA0}')
        a.e(f'v_cndmask_b32 v{vPA0}, v{vPA0}, 0, vcc')
        a.e(f's_movk_i32 s7, 3456')
        a.e(f's_lshl_b32 s6, s{sCB}, 7')
        a.e(f'v_lshl_add_u32 v{vPC}, v8, 3, s6')
        a.e(f'v_mad_u32_u24 v{vPA}, v{vPD}, s7, v{vPC}')
        a.e(f'v_mad_u32_u24 v{vPA0}, v{vPA0}, s7, v{vPC}')
        a.e(f'v_and_b32 v{vPD}, 4, v8')
        a.e(f'v_and_b32 v{vPC}, 1, v8')
        a.e(f'v_lshl_or_b32 v{vPD}, v{vPC}, 1, v{vPD}')
        a.e(f'v_bfe_u32 v{vPC}, v8, 1, 1')
        a.e(f'v_or_b32 v{vPD}, v{vPD}, v{vPC}')
        a.e(f'v_lshlrev_b32 v{vPD}, 6, v{vPD}')
        a.e(f'v_lshl_add_u32 v{vPD}, v9, 9, v{vPD}')
        a.e(f'v_lshrrev_b32 v{vPC}, 3, v8')
        a.e(f's_mov_b32 s7, 40960')
        a.e(f'v_mad_u32_u24 v{vPD}, v{vPC}, s7, v{vPD}')
        a.e(f's_mul_i32 s6, s{sCB}, 81920')
        a.e(f's_lshl_b32 s7, s{sKB}, 11')
        a.e(f's_add_u32 s6, s6, s7')
        a.e(f's_add_u32 s6, s6, {W1F}')
        a.e(f'v_add_u32 v{vPD}, s6, v{vPD}')
        a.e(f's_mul_i32 s6, s{sKB}, 6912')
        a.e(f's_lshl_b32 s7, s{sCB}, 8')
        a.e(f's_add_u32 s6, s6, s7')
        a.e(f's_add_u32 s6, s6, 0x{CSP:x}')
        a.e(f'v_lshl_add_u32 v{vPC}, v8, 4, s6')
        a.e(f's_branch {Lj}')
        a.label(Lw2)
        a.e(f's_mov_b32 s{sISW1}, 0')
        a.e(f's_sub_u32 s{sT}, s{sT}, 540')
        a.e(f's_mul_i32 s{sKB}, s{sT}, 6554')
        a.e(f's_lshr_b32 s{sKB}, s{sKB}, 16')
        a.e(f's_mul_i32 s6, s{sKB}, 10')
        a.e(f's_sub_u32 s{sCB}, s{sT}, s6')
        a.srd(sW, P_W2, D * F * 2)
        for e in range(8):
            a.e(f's_movk_i32 s{sOFS + e}, {e * 1280}')
        a.e(f's_lshl_b32 s6, s{sKB}, 5')
        a.e(f'v_lshl_add_u32 v{vPD}, v9, 3, s6')
        a.e(f's_movk_i32 s7, 1280')
        a.e(f's_lshl_b32 s6, s{sCB}, 7')
        a.e(f'v_lshl_add_u32 v{vPC}, v8, 3, s6')
        a.e(f'v_mad_u32_u24 v{vPA}, v{vPD}, s7, v{vPC}')
        a.e(f'v_mov_b32 v{vPA0}, v{vPA}')
        a.e(f's_lshl_b32 s6, s{sCB}, 2')
        a.e(f'v_lshrrev_b32 v{vPD}, 2, v8')
        a.e(f'v_add_u32 v{vPD}, s6, v{vPD}')
        a.e(f'v_mul_u32_u24 v{vPC}, 52, v{vPD}')
        a.e(f'v_lshrrev_b32 v{vPC}, 8, v{vPC}')
        a.e(f's_movk_i32 s7, 265')
        a.e(f'v_mad_u32_u24 v{vPD}, v{vPC}, s7, v{vPD}')
        a.e(f'v_lshlrev_b32 v{vPD}, 10, v{vPD}')
        a.e(f'v_lshl_add_u32 v{vPD}, v9, 8, v{vPD}')
        a.e(f'v_and_b32 v{vPC}, 3, v8')
        a.e(f'v_lshl_add_u32 v{vPD}, v{vPC}, 6, v{vPD}')
        a.e(f's_mul_i32 s6, s{sKB}, 5120')
        a.e(f's_add_u32 s6, s6, 0x{W2F:x}')
        a.e(f'v_add_u32 v{vPD}, s6, v{vPD}')
        a.label(Lj)
        a.e('s_nop 4')
        a.vmem(f'buffer_load_dwordx2 {vr(PL, 2)}, v{vPA0}, {sr(sW, 4)}, 0 offen', 'prep')
        for e in range(1, 8):
            a.vmem(f'buffer_load_dwordx2 {vr(PL + 2 * e, 2)}, v{vPA}, {sr(sW, 4)}, s{sOFS + e} offen', 'prep')

    a.e(f's_lshl_b32 s63, s{sWAVE}, 11')
    a.e(f's_add_u32 s63, s63, 8192')
    for r in range(16):
        a.e(f'v_mov_b32 v{ACC + r}, 0')

    def body_c(kc):
        a.e('v_add_u32 v14, s63, v12')
        a.e('v_add_u32 v15, s63, v13')
        for hk in range(2):
            f = FR + 20 * hk
            a.lds(f'ds_read_b128 {vr(f + 16, 4)}, v{14 + hk}', ('f', hk, 4))
            for rt in range(4):
                a.lds(f'ds_read_b128 {vr(f + 4 * rt, 4)}, v{12 + hk} offset:{rt * 2048}', ('f', hk, rt))
        for hk in range(2):
            f = FR + 20 * hk
            for rt in range(4):
                a.wait(lg=('f', hk, rt))
                a.e(f'v_mfma_f32_16x16x32_bf16 {vr(ACC + 4 * rt, 4)}, {vr(f + 4 * rt, 4)}, {vr(f + 16, 4)}, {vr(ACC + 4 * rt, 4)}')

    def mid_c():
        if not prep:
            return
        a.wait(vm='prep')
        a.e('s_mov_b32 s6, 0x05040100')
        a.e('s_mov_b32 s7, 0x07060302')
        for cidx in range(4):
            for d in range(4):
                a.e(f'v_perm_b32 v{PO + 4 * cidx + d}, v{PL + 2 * (2 * d + 1) + cidx // 2}, v{PL + 2 * (2 * d) + cidx // 2}, s{6 + cidx % 2}')
        a.e('s_cmp_eq_u32 s62, 0')
        a.e('s_cselect_b32 s6, 0, 0x7ffffff0')
        a.e(f'v_or_b32 v{vPD}, s6, v{vPD}')
        for cidx in range(4):
            a.vmem(f'buffer_store_dwordx4 {vr(PO + 4 * cidx, 4)}, v{vPD}, {sr(sWS, 4)}, 0 offen offset:{16 * cidx}', 'pst')
        a.e('s_mov_b32 s7, 0x3f803f80')
        for cidx in range(4):
            a.e(f'v_mov_b32 v{PL + cidx}, 0')
        for d in range(4):
            for cidx in range(4):
                a.e(f'v_dot2_f32_bf16 v{PL + cidx}, v{PO + 4 * cidx + d}, s7, v{PL + cidx}')
        a.e('s_nop 3')
        for sw in ('v_permlane32_swap_b32', 'v_permlane16_swap_b32'):
            for cidx in range(4):
                a.e(f'v_mov_b32 v{PL + 4 + cidx}, v{PL + cidx}')
            for cidx in range(4):
                a.e(f'{sw} v{PL + cidx}, v{PL + 4 + cidx}')
            for cidx in range(4):
                a.e(f'v_add_f32 v{PL + cidx}, v{PL + cidx}, v{PL + 4 + cidx}')
        a.e(f's_cmp_eq_u32 s{sISW1}, 1')
        a.e('s_cselect_b32 s7, s6, 0x7ffffff0')
        a.e(f'v_or_b32 v{vPC}, s7, v{vPC}')
        a.vmem(f'buffer_store_dwordx4 {vr(PL, 4)}, v{vPC}, {sr(sWS, 4)}, 0 offen', 'pst')

    mainloop(False, body_c, mid_c)
    WF = 112
    for mat in range(2):
        for tt in range(4):
            for ks in range(2):
                a.lds(f'ds_read_b128 {vr(WF + ((mat * 4 + tt) * 2 + ks) * 4, 4)}, v{10 + ks} offset:{mat * 8192 + tt * 2048}', 'wf')
    a.e(f's_mul_i32 s6, s{sC}, 5')
    a.e(f's_add_u32 s6, s6, s{sWAVE}')
    a.e('s_lshr_b32 s7, s6, 2')
    a.e('s_lshl_b32 s7, s7, 8')
    a.e('s_and_b32 s6, s6, 3')
    a.e('s_lshl_b32 s6, s6, 4')
    a.e('s_add_u32 s6, s6, s7')
    a.e(f's_lshr_b32 s7, s{sG}, 2')
    a.e('s_mul_i32 s7, s7, 5120')
    a.e('s_add_u32 s6, s6, s7')
    a.e(f's_and_b32 s7, s{sG}, 3')
    a.e('s_lshl_b32 s7, s7, 6')
    a.e('s_add_u32 s6, s6, s7')
    a.e(f's_add_u32 s6, s6, 0x{LB + V_O:x}')
    a.e('s_mov_b32 s7, 40960')
    a.e('v_mov_b32 v14, s6')
    a.e('v_mad_u32_u24 v14, v8, s7, v14')
    a.e('v_lshrrev_b32 v15, 1, v9')
    a.e('s_movk_i32 s7, 2560')
    a.e('v_mad_u32_u24 v14, v15, s7, v14')
    a.e('v_and_b32 v15, 1, v9')
    a.e('v_lshl_add_u32 v14, v15, 3, v14')
    a.e('v_cmp_gt_u32 vcc, 8, v8')
    a.e('v_mov_b32 v15, 0x80008000')
    a.e('v_cndmask_b32 v15, 0, v15, vcc')
    a.e('v_lshlrev_b32 v12, 4, v9')
    a.e(f's_lshl_b32 s6, s{sWAVE}, 6')
    a.e(f'v_lshl_add_u32 v13, v8, 2, s6')
    a.wait(lg='wf')
    a.e('s_barrier')
    RSr, MRr, CSr = 32, 48, 64
    big = 131072
    a.e(f'v_add_u32 v12, {big}, v12')
    a.e(f'v_add_u32 v13, {big}, v13')
    a.lds(f'ds_read_b32 v{CSr}, v13 offset:{CS - big}', 'st')
    for rt in range(4):
        a.lds(f'ds_read_b128 {vr(RSr + 4 * rt, 4)}, v12 offset:{RS - big + rt * 64}', 'st')
        a.lds(f'ds_read_b128 {vr(MRr + 4 * rt, 4)}, v12 offset:{MR - big + rt * 64}', 'st')
    a.wait(lg='st')
    for r in range(16):
        a.e(f'v_mul_f32 v{MRr + r}, v{MRr + r}, v{CSr}')
    for r in range(16):
        a.e(f'v_fma_f32 v{ACC + r}, v{ACC + r}, v{RSr + r}, -v{MRr + r}')
    UP, US = 72, 80
    for r in range(8):
        a.e(f'v_cvt_pk_bf16_f32 v{UP + r}, v{ACC + 2 * r}, v{ACC + 2 * r + 1}')
    for r in range(8):
        a.e(f'v_xor_b32_dpp v{US + r}, v{UP + r}, v15 row_ror:8 row_mask:0xf bank_mask:0xf')
    VA = 88
    for tt in range(4):
        for ks in range(2):
            for mat in range(2):
                src = (UP, US)[mat] + 4 * ks
                c = '0' if (ks == 0 and mat == 0) else vr(VA + 4 * tt, 4)
                a.e(f'v_mfma_f32_16x16x32_bf16 {vr(VA + 4 * tt, 4)}, {vr(src, 4)}, {vr(WF + ((mat * 4 + tt) * 2 + ks) * 4, 4)}, {c}')
    for tt in range(4):
        a.e(f's_mov_b32 s{64 + tt}, {tt * 16 * 40960}')
    for tt in range(4):
        a.e(f'v_cvt_pk_bf16_f32 v{32 + 2 * tt}, v{VA + 4 * tt}, v{VA + 4 * tt + 1}')
        a.e(f'v_cvt_pk_bf16_f32 v{33 + 2 * tt}, v{VA + 4 * tt + 2}, v{VA + 4 * tt + 3}')
        a.vmem(f'buffer_store_dwordx2 {vr(32 + 2 * tt, 2)}, v14, {sr(sWS, 4)}, s{64 + tt} offen', 'vst')
    a.e('s_endpgm')

    a.label(Lstat)
    a.restore(st0)
    first_issue(True)
    XL, XE, XO = 72, 92, 100
    a.e('v_and_b32 v14, 31, v1')
    a.e('v_lshrrev_b32 v15, 5, v1')
    a.e('v_lshlrev_b32 v16, 6, v14')
    a.e('v_lshl_add_u32 v16, v15, 5, v16')
    a.e(f'v_add_u32 v16, s{sG}, v16')
    a.e('s_movk_i32 s7, 1280')
    a.e('v_mul_lo_u32 v16, v16, s7')
    a.e(f's_mul_i32 s58, s{sC}, 10')
    a.e(f's_sub_u32 s6, s{sWAVE}, 5')
    a.e('s_mul_i32 s6, s6, 5')
    a.e('s_add_u32 s58, s58, s6')
    for n in range(5):
        a.e(f's_add_u32 s6, s58, {n}')
        a.e(f's_sub_u32 s7, 119, s6')
        a.e(f's_sub_u32 s59, 120, s6')
        a.e(f's_cmp_eq_u32 s59, 80')
        a.e(f's_cselect_b32 s59, 0, s59')
        a.e(f's_cmp_eq_u32 s6, 0')
        a.e(f's_cselect_b32 s60, 40, s6')
        a.e(f's_cmp_lt_u32 s{sC}, 4')
        a.e(f's_cselect_b32 s7, s6, s7')
        a.e(f's_cselect_b32 s59, s60, s59')
        a.e(f's_lshl_b32 s7, s7, 4')
        a.e(f's_lshl_b32 s59, s59, 4')
        a.vmem(f'buffer_load_dwordx4 {vr(XL + 4 * n, 4)}, v16, {sr(sX, 4)}, s7 offen', 'xp')
        a.vmem(f'buffer_load_ushort v{XE + n}, v16, {sr(sX, 4)}, s59 offen', 'xp')
    a.e(f's_sub_u32 s6, 32, s{sG}')
    a.e('s_and_b32 s6, s6, 31')
    a.e(f'v_mov_b32 v17, s{sG}')
    a.e('v_mov_b32 v18, s6')
    a.e('v_cmp_eq_u32 vcc, 1, v15')
    a.e('v_cndmask_b32 v17, v17, v18, vcc')
    a.e('s_mov_b32 s7, 81920')
    a.e('v_mul_lo_u32 v17, v17, s7')
    a.e('v_lshl_add_u32 v17, v1, 4, v17')
    a.e('s_lshl_b32 s6, s58, 10')
    a.e(f's_add_u32 s6, s6, 0x{LB + XP_O:x}')
    a.e('v_add_u32 v17, s6, v17')
    AS, AM, ONE, FS = 20, 28, 36, 40
    for r in range(16):
        a.e(f'v_mov_b32 v{AS + r}, 0')
    for r in range(4):
        a.e(f'v_mov_b32 v{ONE + r}, 0x3f803f80')
    a.e(f's_sub_u32 s63, s{sWAVE}, 5')
    a.e('s_lshl_b32 s63, s63, 12')

    def body_s(kc):
        a.e('v_add_u32 v12, s63, v12')
        a.e('v_add_u32 v13, s63, v13')
        for hk in range(2):
            for rt in range(2):
                a.lds(f'ds_read_b128 {vr(FS + 8 * hk + 4 * rt, 4)}, v{12 + hk} offset:{rt * 2048}', ('f', hk, rt))
        for hk in range(2):
            for rt in range(2):
                f = vr(FS + 8 * hk + 4 * rt, 4)
                a.wait(lg=('f', hk, rt))
                a.e(f'v_mfma_f32_16x16x32_bf16 {vr(AS + 4 * rt, 4)}, {f}, {f}, {vr(AS + 4 * rt, 4)}')
                a.e(f'v_mfma_f32_16x16x32_bf16 {vr(AM + 4 * rt, 4)}, {f}, {vr(ONE, 4)}, {vr(AM + 4 * rt, 4)}')

    def mid_s():
        a.wait(vm='xp')
        Lrev, Lst = name + '_xrev', name + '_xst'
        a.e('v_mov_b32 v18, 0xffff')
        a.e(f's_cmp_ge_u32 s{sC}, 4')
        a.e(f's_cbranch_scc1 {Lrev}')
        for n in range(5):
            m, o = XL + 4 * n, XO + 4 * n
            a.e(f'v_bfi_b32 v{o}, v18, v{XE + n}, v{m}')
            for d in range(1, 4):
                a.e(f'v_mov_b32 v{o + d}, v{m + d}')
        a.e(f's_branch {Lst}')
        a.label(Lrev)
        for n in range(5):
            m, o = XL + 4 * n, XO + 4 * n
            a.e(f'v_bfi_b32 v{o}, v18, v{XE + n}, v{m + 3}')
            a.e(f'v_bfi_b32 v{o + 1}, v18, v{m + 3}, v{m + 2}')
            a.e(f'v_bfi_b32 v{o + 2}, v18, v{m + 2}, v{m + 1}')
            a.e(f'v_bfi_b32 v{o + 3}, v18, v{m + 1}, v{m}')
        a.label(Lst)
        a.e('s_movk_i32 s6, 4096')
        for n in range(5):
            if n < 4:
                a.vmem(f'buffer_store_dwordx4 {vr(XO + 4 * n, 4)}, v17, {sr(sWS, 4)}, 0 offen offset:{n * 1024}', 'xst')
            else:
                a.vmem(f'buffer_store_dwordx4 {vr(XO + 4 * n, 4)}, v17, {sr(sWS, 4)}, s6 offen', 'xst')

    mainloop(True, body_s, mid_s)
    stats_finalize(a, AS, AM, 2, 8, 9, tmp=56, addr_extra=f's63', shift_extra=5, base0=RS, base1=MR, mode='rs_mr')
    a.e('s_waitcnt lgkmcnt(0)')
    a.e('s_barrier')
    a.e('s_endpgm')

    a.label(Lcol)
    a.restore(st0)
    first_issue(False)
    if prep:
        a.e('s_lshr_b32 s6, s2, 2')
        a.e('v_and_b32 v14, 31, v1')
        a.e('v_lshl_add_u32 v14, v14, 6, s6')
        a.e('v_lshlrev_b32 v14, 12, v14')
        a.e('v_lshrrev_b32 v15, 5, v1')
        a.e('v_lshl_add_u32 v14, v15, 4, v14')
        a.e('s_and_b32 s6, s2, 1')
        a.e('s_lshl_b32 s58, s6, 5')
        a.e('s_bitcmp1_b32 s2, 1')
        a.e(f's_cselect_b32 s6, s{P_CI}, s{P_CR}')
        a.e(f's_cselect_b32 s7, s{P_CI + 1}, s{P_CR + 1}')
        a.e('s_cselect_b32 s59, 0x80008000, 0')
        a.srd(sW, 6, S * S * 2)
        a.vmem(f'buffer_load_dwordx4 v[72:75], v14, {sr(sW, 4)}, s58 offen', 'tw')
        a.e('s_lshl_b32 s6, s2, 10')
        a.e(f's_add_u32 s6, s6, 0x{TW2:x}')
        a.e('v_lshl_add_u32 v15, v1, 4, s6')
    AC, ONE, FC = 16, 36, 76
    for r in range(20):
        a.e(f'v_mov_b32 v{AC + r}, 0')
    for r in range(4):
        a.e(f'v_mov_b32 v{ONE + r}, 0x3f803f80')

    def body_k(kc):
        for hk in range(2):
            for ct in range(5):
                a.lds(f'ds_read_b128 {vr(FC + 20 * hk + 4 * ct, 4)}, v{12 + hk} offset:{8192 + ct * 2048}', ('f', hk, ct))
        for hk in range(2):
            for ct in range(5):
                a.wait(lg=('f', hk, ct))
                a.e(f'v_mfma_f32_16x16x32_bf16 {vr(AC + 4 * ct, 4)}, {vr(ONE, 4)}, {vr(FC + 20 * hk + 4 * ct, 4)}, {vr(AC + 4 * ct, 4)}')

    def mid_k():
        if not prep:
            return
        a.wait(vm='tw')
        for r in range(4):
            a.e(f'v_xor_b32 v{72 + r}, s59, v{72 + r}')
        a.vmem(f'buffer_store_dwordx4 v[72:75], v15, {sr(sWS, 4)}, 0 offen', 'twst')

    mainloop(False, body_k, mid_k)
    a.e(f'v_lshlrev_b32 v12, 2, v8')
    a.e(f'v_add_u32 v12, {CS}, v12')
    for ct in range(5):
        a.lds(f'ds_write_b32 v12, v{AC + 4 * ct} offset:{ct * 64}')
    a.e('s_waitcnt lgkmcnt(0)')
    a.e('s_barrier')
    a.label(end)
    a.e('s_endpgm')
    a.raw(descriptor(name, 176))
    return ST + 1024


def stats_finalize(a, AS, AM, ntiles, vj, vq, tmp, addr_extra, shift_extra, base0, base1, mode):
    t = tmp
    a.e(f'v_lshlrev_b32 v{t}, 2, v{vq}')
    a.e(f'v_sub_u32 v{t}, v{vj}, v{t}')
    a.e(f'v_lshlrev_b32 v{t + 1}, 2, v{vj}')
    if addr_extra is not None:
        a.e(f's_lshr_b32 s6, {addr_extra}, {shift_extra}')
        a.e(f's_add_u32 s6, s6, {base0}')
    else:
        a.e(f's_mov_b32 s6, {base0}')
    a.e(f'v_add_u32 v{t + 1}, s6, v{t + 1}')
    a.e(f'v_cmp_eq_u32 s[70:71], 1, v{t}')
    a.e(f'v_cmp_eq_u32 s[72:73], 2, v{t}')
    a.e(f'v_cmp_eq_u32 s[74:75], 3, v{t}')
    a.e(f'v_cmp_gt_u32 s[76:77], 4, v{t}')
    a.e('s_mov_b32 s7, 0x3acccccd')
    for rt in range(ntiles):
        for acc in (AS, AM):
            b = acc + 4 * rt
            a.e(f'v_cndmask_b32 v{b}, v{b}, v{b + 1}, s[70:71]')
            a.e(f'v_cndmask_b32 v{b}, v{b}, v{b + 2}, s[72:73]')
            a.e(f'v_cndmask_b32 v{b}, v{b}, v{b + 3}, s[74:75]')
        ss, sm = AS + 4 * rt, AM + 4 * rt
        a.e(f'v_mul_f32 v{sm}, s7, v{sm}')
        a.e(f'v_mul_f32 v{ss}, s7, v{ss}')
        a.e(f'v_fma_f32 v{ss}, -v{sm}, v{sm}, v{ss}')
        a.e(f'v_max_f32 v{ss}, 0, v{ss}')
        a.e(f'v_add_f32 v{ss}, 0x3727c5ac, v{ss}')
        a.e(f'v_rsq_f32 v{ss}, v{ss}')
        if mode == 'rs_mr':
            a.e(f'v_mul_f32 v{sm}, v{sm}, v{ss}')
    a.e('s_mov_b64 exec, s[76:77]')
    for rt in range(ntiles):
        ss, sm = AS + 4 * rt, AM + 4 * rt
        first, second = (ss, sm) if mode == 'rs_mr' else (sm, ss)
        a.lds(f'ds_write_b32 v{t + 1}, v{first} offset:{rt * 64}')
        a.lds(f'ds_write_b32 v{t + 1}, v{second} offset:{rt * 64 + base1 - base0}')
    a.e('s_mov_b64 exec, -1')


def gen_X(a, name, layer):
    end = name + '_end'
    LB = LAYER[layer]
    prologue(a, name, end)
    sWS = 28
    sRHO, sTAU, sKT0, sNT, sTILE, sNTILE = 32, 33, 34, 35, 36, 37
    XL = 81920
    a.e(f's_lshr_b32 s{sRHO}, s{sWAVE}, 2')
    a.e(f's_sub_u32 s6, 64, s{sG}')
    a.e(f's_cmp_eq_u32 s{sG}, 0')
    a.e('s_cselect_b32 s6, 32, s6')
    a.e(f's_cmp_eq_u32 s{sRHO}, 0')
    a.e(f's_cselect_b32 s{sTAU}, s{sG}, s6')
    a.e(f's_lshl_b32 s6, s{sWAVE}, 2')
    a.e('s_lshr_b32 s7, 0x74208630, s6')
    a.e(f's_and_b32 s{sKT0}, s7, 15')
    a.e('s_lshr_b32 s7, 0x33222233, s6')
    a.e(f's_and_b32 s{sNT}, s7, 15')
    a.e(f's_mul_i32 s6, s{sC}, 7')
    a.e('s_min_u32 s6, s6, 48')
    a.e(f's_add_u32 s{sTILE}, s6, s{sWAVE}')
    a.e(f's_cmp_lt_u32 s{sC}, 6')
    a.e(f's_cselect_b32 s{sNTILE}, 7, 6')
    a.e(f's_min_u32 s{sTILE}, s{sTILE}, 53')
    a.e('v_lshlrev_b32 v2, 4, v1')
    a.e('v_and_b32 v3, 31, v1')
    a.e('v_lshrrev_b32 v4, 5, v1')
    a.e('s_waitcnt lgkmcnt(0)')
    a.srd(sWS, P_WS, WS_BYTES)
    a.e(f's_mul_i32 s6, s{sTAU}, 40960')
    a.e(f's_and_b32 s7, s{sWAVE}, 3')
    a.e('s_mul_i32 s7, s7, 10240')
    a.e('s_add_u32 s6, s6, s7')
    a.e(f's_add_u32 s6, s6, 0x{LB + V_O:x}')
    a.e(f's_mul_i32 s7, s{sWAVE}, 10240')
    for n in range(10):
        if n % 4 == 0:
            a.e(f's_add_u32 m0, s7, {n * 1024}')
            a.e(f's_add_u32 s38, s6, {n * 1024}')
        a.vmem(f'buffer_load_dwordx4 v2, {sr(sWS, 4)}, s38 offen offset:{(n % 4) * 1024} lds', 'v')
    TW = 8
    a.e(f's_lshl_b32 s6, s{sTAU}, 12')
    a.e(f's_add_u32 s6, s6, 0x{TW2:x}')
    for ks in range(4):
        a.vmem(f'buffer_load_dwordx4 {vr(TW + 4 * ks, 4)}, v2, {sr(sWS, 4)}, s6 offen offset:{ks * 1024}', 'tw')
    a.e(f's_lshl_b32 s6, s{sRHO}, 5')
    a.e('v_add_u32 v5, s6, v3')
    a.e('v_sub_u32 v6, 63, v5')
    a.e('v_sub_u32 v7, 32, v3')
    a.e('v_and_b32 v7, 31, v7')
    a.e('v_sub_u32 v24, 63, v3')
    a.e(f's_cmp_eq_u32 s{sRHO}, 0')
    a.e('s_cselect_b64 vcc, -1, 0')
    a.e('v_cndmask_b32 v7, v24, v7, vcc')
    a.e(f's_cmp_eq_u32 s{sG}, 0')
    a.e('s_cselect_b64 vcc, -1, 0')
    a.e('v_cndmask_b32 v6, v6, v7, vcc')
    a.e('v_lshlrev_b32 v5, 4, v5')
    a.e('v_lshl_add_u32 v5, v4, 10, v5')
    a.e(f's_lshl_b32 s6, s{sKT0}, 12')
    a.e('v_add_u32 v5, s6, v5')
    a.e('v_lshlrev_b32 v6, 4, v6')
    a.e('v_lshl_add_u32 v6, v4, 10, v6')
    a.e('s_add_u32 s6, s6, 40960')
    a.e('v_add_u32 v6, s6, v6')
    a.e(f's_mul_i32 s39, s{sG}, 81920')
    a.e(f's_add_u32 s6, s39, 0x{LB + XP_O:x}')
    XR = 24
    for t in range(3):
        a.e(f's_add_u32 s7, s6, {t * 4096}')
        if t == 2:
            a.e(f's_cmp_eq_u32 s{sNT}, 3')
            a.e('s_cselect_b32 s7, s7, s6')
        for m in range(2):
            for h in range(2):
                a.vmem(f'buffer_load_dwordx4 {vr(XR + 16 * t + 8 * m + 4 * h, 4)}, v{5 + m}, {sr(sWS, 4)}, s7 offen offset:{h * 2048}', ('x', t))
    CP = 72
    a.e('s_movk_i32 s7, 6912')
    a.e('v_lshlrev_b32 v7, 2, v3')
    a.e('v_mad_u32_u24 v7, v4, s7, v7')
    a.e(f's_lshl_b32 s6, s{sTILE}, 7')
    a.e(f's_add_u32 s6, s6, 0x{CSP:x}')
    for n in range(10):
        a.e(f's_add_u32 s7, s6, {n * 2 * 6912}')
        a.vmem(f'buffer_load_dword v{CP + n}, v7, {sr(sWS, 4)}, s7 offen', 'cs')
    NE = 24
    def wreg(ks):
        return 160 + 4 * ks if ks < NE else 8 + 4 * (ks - NE)
    a.e(f's_mul_i32 s40, s{sTILE}, 40960')
    a.e(f's_add_u32 s40, s40, {W1F}')
    a.e(f's_cmp_ge_u32 s{sWAVE}, s{sNTILE}')
    a.e('s_cselect_b32 s40, 0x7f000000, s40')

    def wload(ks):
        if ks % 4 == 0:
            a.e(f's_add_u32 s41, s40, {ks * 1024}')
        a.vmem(f'buffer_load_dwordx4 {vr(wreg(ks), 4)}, v2, {sr(sWS, 4)}, s41 offen offset:{(ks % 4) * 1024}', ('w', ks))
    for ks in range(NE):
        wload(ks)
    ID = 84
    a.e('v_bfe_u32 v92, v1, 2, 1')
    a.e('v_bfe_u32 v93, v1, 3, 1')
    a.e('v_bfe_u32 v94, v1, 4, 1')
    a.e('v_and_b32 v95, 1, v1')
    a.e('v_lshlrev_b32 v95, 4, v95')
    a.e('v_mov_b32 v96, 0x3f80')
    a.e('v_lshlrev_b32 v95, v95, v96')
    a.e('v_cmp_eq_u32 vcc, v92, v4')
    a.e('v_cndmask_b32 v95, 0, v95, vcc')
    a.e('v_bfe_u32 v96, v1, 1, 1')
    a.e('v_lshl_add_u32 v96, v93, 1, v96')
    a.e('v_lshl_add_u32 v96, v94, 2, v96')
    for r in range(8):
        a.e(f'v_cmp_eq_u32 vcc, {r}, v96')
        a.e(f'v_cndmask_b32 v{ID + r}, 0, v95, vcc')
    a.e(f's_cmp_eq_u32 s{sKT0}, 0')
    a.e('s_cselect_b32 s6, 0xffff, 0')
    a.e('v_mov_b32 v92, s6')
    a.e('v_cmp_eq_u32 vcc, 0, v4')
    a.e('v_cndmask_b32 v92, 0, v92, vcc')
    a.e('v_bfe_u32 v93, v1, 2, 2')
    a.e('v_lshlrev_b32 v93, 6, v93')
    a.e('v_bfe_u32 v94, v1, 4, 1')
    a.e('v_lshl_add_u32 v93, v94, 5, v93')
    a.e('v_and_b32 v94, 1, v1')
    a.e('v_lshl_add_u32 v93, v94, 4, v93')
    a.e('v_bfe_u32 v94, v1, 1, 1')
    a.e('v_lshl_add_u32 v93, v94, 3, v93')
    a.e('s_movk_i32 s7, 10240')
    a.e('v_mad_u32_u24 v93, v4, s7, v93')
    a.e(f's_mul_i32 s6, s{sRHO}, 40960')
    a.e(f's_lshl_b32 s7, s{sKT0}, 8')
    a.e('s_add_u32 s6, s6, s7')
    a.e('v_add_u32 v93, s6, v93')
    a.e(f'v_add_u32 v5, {XL}, v5')
    a.e(f'v_add_u32 v6, {XL}, v6')
    VF, Y, XA, PK = 96, 112, 128, 144
    a.wait(vm='v')
    a.e('s_barrier')

    def stage2(t):
        for ks in range(4):
            for rd in range(2):
                a.lds(f'ds_read_b64_tr_b16 {vr(VF + 4 * ks + 2 * rd, 2)}, v93 offset:{(4 * (ks % 2) + rd) * 5120 + (ks // 2) * 2560 + t * 256}', ('vf', ks))
        if t == 0:
            a.wait(vm='tw')
        for ks in range(4):
            a.wait(lg=('vf', ks))
            c = '0' if ks == 0 else vr(Y, 16)
            a.e(f'v_mfma_f32_32x32x16_bf16 {vr(Y, 16)}, {vr(VF + 4 * ks, 4)}, {vr(TW + 4 * ks, 4)}, {c}')
        a.wait(vm=('x', t))
        xr = XR + 16 * t
        a.e(f'v_mfma_f32_32x32x16_bf16 {vr(XA, 16)}, {vr(ID, 4)}, {vr(xr, 4)}, {vr(Y, 16)}')
        a.e(f'v_mfma_f32_32x32x16_bf16 {vr(Y, 16)}, {vr(ID, 4)}, {vr(xr + 8, 4)}, {vr(Y, 16)}')
        a.e(f'v_mfma_f32_32x32x16_bf16 {vr(XA, 16)}, {vr(ID + 4, 4)}, {vr(xr + 4, 4)}, {vr(XA, 16)}')
        a.e(f'v_mfma_f32_32x32x16_bf16 {vr(Y, 16)}, {vr(ID + 4, 4)}, {vr(xr + 12, 4)}, {vr(Y, 16)}')
        a.wait(lg='xw')
        for r in range(8):
            a.e(f'v_cvt_pk_bf16_f32 v{PK + r}, v{XA + 2 * r}, v{XA + 2 * r + 1}')
        for h in range(2):
            a.lds(f'ds_write_b128 v5, {vr(PK + 4 * h, 4)} offset:{t * 4096 + h * 2048}', 'xw')
        for r in range(8):
            a.e(f'v_cvt_pk_bf16_f32 v{PK + 8 + r}, v{Y + 2 * r}, v{Y + 2 * r + 1}')
        if t == 0:
            a.e(f'v_bfi_b32 v{PK + 8}, v92, v{xr + 8}, v{PK + 8}')
        for h in range(2):
            a.lds(f'ds_write_b128 v6, {vr(PK + 8 + 4 * h, 4)} offset:{t * 4096 + h * 2048}', 'xw')

    stage2(0)
    stage2(1)
    L2 = name + '_t2'
    a.wait(vm=('x', 2))
    a.e(f's_cmp_lg_u32 s{sNT}, 3')
    a.e(f's_cbranch_scc1 {L2}')
    stage2(2)
    a.label(L2)
    a.e('s_nop 7')
    a.e('s_nop 3')
    a.wait(lg='all')
    Lstat, Lidle = name + '_stat', name + '_idle'
    a.e(f's_cmp_eq_u32 s{sWAVE}, 7')
    a.e(f's_cbranch_scc1 {Lstat}')
    a.e(f's_cmp_ge_u32 s{sWAVE}, s{sNTILE}')
    a.e(f's_cbranch_scc1 {Lidle}')
    st0 = a.save()
    for ks in range(NE, 40):
        wload(ks)
    a.e('s_barrier')
    a.wait(vm='cs')
    for n in range(1, 10):
        a.e(f'v_add_f32 v{CP}, v{CP}, v{CP + n}')
    a.e(f'v_mov_b32 v{CP + 1}, v{CP}')
    a.e(f'v_permlane32_swap_b32 v{CP}, v{CP + 1}')
    a.e(f'v_add_f32 v{CP}, v{CP}, v{CP + 1}')
    a.e(f's_lshl_b32 s6, s{sWAVE}, 7')
    a.e('s_add_u32 s6, s6, 1024')
    a.e('v_lshl_add_u32 v7, v3, 2, s6')
    a.lds(f'ds_write_b32 v7, v{CP}', 'csw')
    a.e('v_lshl_add_u32 v7, v4, 5, s6')
    CSR = 72
    a.wait(lg='csw')
    for q in range(4):
        a.lds(f'ds_read_b128 {vr(CSR + 4 * q, 4)}, v7 offset:{(q // 2) * 64 + (q % 2) * 16}', 'csr')
    ACC = 96
    XF = 128
    a.e('v_lshlrev_b32 v5, 4, v3')
    a.e('v_lshl_add_u32 v5, v4, 10, v5')
    a.e(f'v_add_u32 v5, {XL}, v5')
    a.e(f'v_add_u32 v6, {20 * 2048}, v5')

    def xread(ks):
        for rho in range(2):
            base, off = (5, ks * 2048) if ks < 20 else (6, (ks - 20) * 2048)
            a.lds(f'ds_read_b128 {vr(XF + 8 * (ks % 4) + 4 * rho, 4)}, v{base} offset:{off + rho * 512}', ('xf', ks))
    for ks in range(3):
        xread(ks)
    for ks in range(40):
        if ks + 3 < 40:
            xread(ks + 3)
        a.wait(vm=('w', ks), lg=('xf', ks))
        for rho in range(2):
            c = '0' if ks == 0 else vr(ACC + 16 * rho, 16)
            a.e(f'v_mfma_f32_32x32x16_bf16 {vr(ACC + 16 * rho, 16)}, {vr(wreg(ks), 4)}, {vr(XF + 8 * (ks % 4) + 4 * rho, 4)}, {c}')
    a.e(f's_mul_i32 s6, s{sG}, {216 * 1024}')
    a.e(f's_lshl_b32 s7, s{sTILE}, 12')
    a.e('s_add_u32 s6, s6, s7')
    a.e(f's_add_u32 s6, s6, 0x{LB + H_O:x}')
    a.e(f'v_subrev_u32 v5, {XL}, v5')
    a.e('v_lshlrev_b32 v7, 2, v3')
    a.e('s_barrier')
    a.lds('ds_read_b32 v8, v7', 'st')
    a.lds('ds_read_b32 v9, v7 offset:128', 'st')
    a.lds('ds_read_b32 v10, v7 offset:256', 'st')
    a.lds('ds_read_b32 v11, v7 offset:384', 'st')
    a.wait(lg='st')
    for rho in range(2):
        ac = ACC + 16 * rho
        for r in range(16):
            a.e(f'v_fma_f32 v{ac + r}, -v{8 + rho}, v{CSR + r}, v{ac + r}')
        for r in range(16):
            a.e(f'v_mul_f32 v{ac + r}, v{ac + r}, v{10 + rho}')
        pk = 16 + 8 * rho
        for r in range(8):
            a.e(f'v_cvt_pk_bf16_f32 v{pk + r}, v{ac + 2 * r}, v{ac + 2 * r + 1}')
        for r in range(8):
            a.e(f'v_pk_max_i16 v{pk + r}, v{pk + r}, 0')
        for h in range(2):
            a.vmem(f'buffer_store_dwordx4 {vr(pk + 4 * h, 4)}, v5, {sr(sWS, 4)}, s6 offen offset:{h * 2048 + rho * 512}', 'hst')
    a.e('s_endpgm')

    a.label(Lidle)
    a.e('s_barrier')
    a.e('s_barrier')
    a.e('s_endpgm')

    a.label(Lstat)
    a.restore(st0)
    a.e('v_and_b32 v8, 15, v1')
    a.e('v_lshrrev_b32 v9, 4, v1')
    a.e('v_lshlrev_b32 v5, 4, v8')
    a.e('v_lshl_add_u32 v5, v9, 10, v5')
    a.e(f'v_add_u32 v5, {XL}, v5')
    a.e(f'v_add_u32 v6, {10 * 4096}, v5')
    AS, AM, ONE, FS = 16, 32, 48, 96
    for r in range(4):
        a.e(f'v_mov_b32 v{ONE + r}, 0x3f803f80')
    a.e(f's_mul_i32 s6, s{sC}, 10240')
    a.e(f's_add_u32 s7, s6, {XL}')
    a.e('v_add_u32 v7, s7, v2')
    a.e(f's_add_u32 s6, s6, s39')
    a.e(f's_add_u32 s6, s6, 0x{LB + X1P_O:x}')
    a.wait(vm='cs')
    a.e('s_barrier')
    XC = 52
    for n in range(10):
        a.lds(f'ds_read_b128 {vr(XC + 4 * n, 4)}, v7 offset:{n * 1024}', ('xc', n))

    def sread(ks):
        for rt in range(4):
            base, off = (5, ks * 4096) if ks < 10 else (6, (ks - 10) * 4096)
            a.lds(f'ds_read_b128 {vr(FS + 16 * (ks % 3) + 4 * rt, 4)}, v{base} offset:{off + rt * 256}', ('sf', ks))
    for n in range(10):
        a.wait(lg=('xc', n))
        if n % 4 == 0:
            a.e(f's_add_u32 s7, s6, {n * 1024}')
        a.vmem(f'buffer_store_dwordx4 {vr(XC + 4 * n, 4)}, v2, {sr(sWS, 4)}, s7 offen offset:{(n % 4) * 1024}', 'xst')
    sread(0)
    sread(1)
    for ks in range(20):
        if ks + 2 < 20:
            sread(ks + 2)
        a.wait(lg=('sf', ks))
        for rt in range(4):
            f = vr(FS + 16 * (ks % 3) + 4 * rt, 4)
            c1 = '0' if ks == 0 else vr(AS + 4 * rt, 4)
            c2 = '0' if ks == 0 else vr(AM + 4 * rt, 4)
            a.e(f'v_mfma_f32_16x16x32_bf16 {vr(AS + 4 * rt, 4)}, {f}, {f}, {c1}')
            a.e(f'v_mfma_f32_16x16x32_bf16 {vr(AM + 4 * rt, 4)}, {f}, {vr(ONE, 4)}, {c2}')
    stats_finalize(a, AS, AM, 4, 8, 9, tmp=10, addr_extra=None, shift_extra=0, base0=0, base1=256, mode='m_rs')
    a.e('s_waitcnt lgkmcnt(0)')
    a.e('s_barrier')
    a.label(end)
    a.e('s_endpgm')
    a.raw(descriptor(name, 256))
    return 163840


def gen_B2(a, name, layer):
    end = name + '_end'
    LB = LAYER[layer]
    prologue(a, name, end)
    sWS, sO = 28, 32
    a.e('v_lshlrev_b32 v2, 4, v1')
    a.e('v_and_b32 v8, 15, v1')
    a.e('v_lshrrev_b32 v9, 4, v1')
    a.e('v_lshlrev_b32 v3, 4, v8')
    a.e('v_lshl_add_u32 v3, v9, 10, v3')
    a.e(f's_mul_i32 s36, s{sWAVE}, 7')
    a.e('s_min_u32 s36, s36, 48')
    a.e(f's_mul_i32 s37, s{sC}, 54')
    a.e('s_add_u32 s37, s37, s36')
    a.e('s_mul_i32 s37, s37, 5120')
    a.e(f's_add_u32 s37, s37, 0x{W2F:x}')
    a.e(f's_mul_i32 s38, s{sG}, {216 * 1024}')
    a.e('s_lshl_b32 s6, s36, 12')
    a.e('s_add_u32 s38, s38, s6')
    a.e(f's_add_u32 s38, s38, 0x{LB + H_O:x}')
    a.e('s_waitcnt lgkmcnt(0)')
    a.srd(sWS, P_WS, WS_BYTES)
    if layer == 1:
        a.srd(sO, P_OUT, S * D * 2)
    else:
        a.e(f's_add_u32 s6, s{P_WS}, 0x{X2:x}')
        a.e(f's_addc_u32 s7, s{P_WS + 1}, 0')
        a.srd(sO, 6, S * D * 2)
    ACC = 16
    BUF = 96
    RES = 240

    def issue(s):
        b = BUF + 36 * (s % 4)
        a.e(f's_add_u32 s6, s37, {s * 5120}')
        a.e(f's_add_u32 s7, s6, 4096')
        a.e(f's_add_u32 s39, s38, {s * 4096}')
        for rt in range(4):
            a.vmem(f'buffer_load_dwordx4 {vr(b + 20 + 4 * rt, 4)}, v3, {sr(sWS, 4)}, s39 offen offset:{rt * 256}', ('k', s))
        for ft in range(4):
            a.vmem(f'buffer_load_dwordx4 {vr(b + 4 * ft, 4)}, v2, {sr(sWS, 4)}, s6 offen offset:{ft * 1024}', ('k', s))
        a.vmem(f'buffer_load_dwordx4 {vr(b + 16, 4)}, v2, {sr(sWS, 4)}, s7 offen', ('k', s))

    def compute(s):
        b = BUF + 36 * (s % 4)
        a.wait(vm=('k', s))
        for rt in range(4):
            for ft in range(5):
                ac = vr(ACC + 4 * (rt * 5 + ft), 4)
                c = '0' if s == 0 else ac
                a.e(f'v_mfma_f32_16x16x32_bf16 {ac}, {vr(b + 4 * ft, 4)}, {vr(b + 20 + 4 * rt, 4)}, {c}')

    for s in range(4):
        issue(s)
    a.e(f's_mul_i32 s40, s{sG}, 81920')
    a.e(f's_add_u32 s40, s40, 0x{LB + X1P_O:x}')
    a.e(f's_sub_u32 s41, 64, s{sG}')
    a.e(f's_cmp_eq_u32 s{sG}, 0')
    a.e('s_cselect_b32 s41, 32, s41')
    a.e(f's_mul_i32 s42, s{sC}, 80')
    a.e(f's_cmp_ge_u32 s{sC}, 4')
    a.e('s_cselect_b64 s[44:45], -1, 0')
    OA = 252
    LA = 4
    for n in range(3):
        a.e(f's_add_u32 s6, s{sWAVE}, {8 * n}')
        a.e('s_min_u32 s6, s6, 19')
        a.e(f's_lshl_b32 s7, s6, 10')
        a.e(f'v_add_u32 v{LA + n}, s7, v2')
        a.e('s_mul_i32 s7, s6, 52')
        a.e('s_lshr_b32 s7, s7, 8')
        a.e('s_mul_i32 s43, s7, 5')
        a.e('s_sub_u32 s6, s6, s43')
        a.e('s_lshl_b32 s6, s6, 4')
        a.e('s_add_u32 s6, s6, s42')
        a.e('v_lshl_add_u32 v10, v9, 2, s6')
        a.e('v_sub_u32 v11, 956, v10')
        a.e('v_cndmask_b32 v11, v10, v11, s[44:45]')
        a.e('v_sub_u32 v12, 960, v10')
        a.e('v_cndmask_b32 v12, v10, v12, s[44:45]')
        a.e('v_mov_b32 v13, 320')
        a.e('v_cmp_eq_u32 vcc, 0, v12')
        a.e('v_cndmask_b32 v12, v12, v13, vcc')
        a.e('v_cmp_eq_u32 vcc, 640, v12')
        a.e('v_cndmask_b32 v12, v12, 0, vcc')
        a.e('s_lshl_b32 s43, s7, 8')
        a.e('v_lshl_add_u32 v13, v8, 4, s43')
        for reg in (11, 12):
            a.e(f'v_lshrrev_b32 v14, 3, v{reg}')
            a.e(f'v_and_b32 v{reg}, 7, v{reg}')
            a.e(f'v_lshl_add_u32 v{reg}, v{reg}, 1, v13')
            a.e(f'v_lshl_add_u32 v{reg}, v14, 10, v{reg}')
        a.vmem(f'buffer_load_dwordx2 {vr(RES + 4 * n, 2)}, v11, {sr(sWS, 4)}, s40 offen', 'res')
        a.vmem(f'buffer_load_ushort v{RES + 4 * n + 2}, v12, {sr(sWS, 4)}, s40 offen', 'res')
        a.e('s_cmp_ge_u32 s7, 2')
        a.e(f's_cselect_b32 s43, s41, s{sG}')
        a.e('s_and_b32 s7, s7, 1')
        a.e('s_lshl_b32 s7, s7, 10')
        a.e('s_add_u32 s43, s43, s7')
        a.e('v_lshl_add_u32 v13, v8, 6, s43')
        a.e('s_movk_i32 s7, 1280')
        a.e('v_lshlrev_b32 v10, 1, v10')
        a.e(f'v_mad_u32_u24 v{OA + n}, v13, s7, v10')
    L6, Lj = name + '_six', name + '_join'
    compute(0)
    issue(4)
    compute(1)
    issue(5)
    a.e(f's_cmp_ge_u32 s{sWAVE}, 6')
    a.e(f's_cbranch_scc1 {L6}')
    st = a.save()
    compute(2)
    issue(6)
    for s in range(3, 7):
        compute(s)
    a.e(f's_branch {Lj}')
    a.label(L6)
    a.restore(st)
    for s in range(2, 6):
        compute(s)
    a.label(Lj)
    a.e('s_nop 7')
    a.e(f's_mul_i32 s6, s{sWAVE}, 20480')
    a.e('v_add_u32 v10, s6, v2')
    for t in range(20):
        a.lds(f'ds_write_b128 v10, {vr(ACC + 4 * t, 4)} offset:{t * 1024}')
    a.e('s_waitcnt vmcnt(0) lgkmcnt(0)')
    a.vm.clear(); a.lg.clear()
    a.e('s_barrier')
    RB = 96
    a.e('v_mov_b32 v15, 0xffff0000')

    def item(n):
        la = LA + n
        a.e(f'v_add_u32 v10, {3 * 20480}, v{la}')
        a.e(f'v_add_u32 v11, {6 * 20480}, v{la}')
        for p in range(8):
            base = (la, 10, 11)[p // 3]
            a.lds(f'ds_read_b128 {vr(RB + 4 * p, 4)}, v{base} offset:{(p % 3) * 20480}', ('p', p))
        r0, r1, ex = RES + 4 * n, RES + 4 * n + 1, RES + 4 * n + 2
        a.e(f'v_lshlrev_b32 v16, 16, v{ex}')
        a.e(f'v_cndmask_b32 v17, v{r0}, v{r1}, s[44:45]')
        a.e(f'v_and_b32 v17, v15, v17')
        a.e(f'v_lshlrev_b32 v18, 16, v{r1}')
        a.e(f'v_cndmask_b32 v19, v{r1}, v{r0}, s[44:45]')
        a.e(f'v_and_b32 v19, v15, v19')
        for p in range(8):
            a.wait(lg=('p', p))
            for r in range(4):
                a.e(f'v_add_f32 v{16 + r}, v{16 + r}, v{RB + 4 * p + r}')
        a.e(f'v_cvt_pk_bf16_f32 v{20 + 2 * n}, v16, v17')
        a.e(f'v_cvt_pk_bf16_f32 v{21 + 2 * n}, v18, v19')
        a.vmem(f'buffer_store_dwordx2 {vr(20 + 2 * n, 2)}, v{OA + n}, {sr(sO, 4)}, 0 offen')
    item(0)
    item(1)
    a.e(f's_cmp_ge_u32 s{sWAVE}, 4')
    a.e(f's_cbranch_scc1 {end}')
    item(2)
    a.label(end)
    a.e('s_endpgm')
    a.raw(descriptor(name, 256))
    return 163840


def main():
    hdr = open('cdna_kernels/' + NAME + '.s.ref').read().split('\n')
    hdr = [l for l in hdr if l.startswith(';') and '@launch' not in l and 'Override launch' not in l and 'grid=ceil' not in l]
    kernels = []
    body = []
    for layer in range(2):
        for nm, g in (('a1', gen_A1), ('x', gen_X), ('b2', gen_B2)):
            a = Asm()
            name = f'{nm}_l{layer}_kernel'
            lds = g(a, name, layer)
            kernels.append((name, lds))
            body.append(a.text())
    out = '\n'.join(hdr) + '\n'
    for name, lds in kernels:
        out += f'; @launch kernel={name} grid=(256,1,1) block=(512,1,1) lds={lds}\n'
    out += '.amdgcn_target "amdgcn-amd-amdhsa--gfx950"\n'
    out += ''.join(body)
    path = sys.argv[1] if len(sys.argv) > 1 else 'cdna_kernels/' + NAME + '.s'
    open(path, 'w').write(out)
    print('wrote', path, len(out))


main()
```

```python
import re

TRANS = ('v_exp_', 'v_log_', 'v_rcp_', 'v_rsq_', 'v_sqrt_', 'v_sin_', 'v_cos_')


def vr(base, n=1):
    return f'v{base}' if n == 1 else f'v[{base}:{base + n - 1}]'


def sr(base, n=1):
    return f's{base}' if n == 1 else f's[{base}:{base + n - 1}]'


_reg_re = re.compile(r'^(-|abs\()?([vsa])(?:(\d+)|\[(\d+):(\d+)\])\)?$')


def regs_of(tok):
    tok = tok.strip()
    if tok in ('vcc',):
        return {('s', 'vcc')}
    if tok in ('vcc_lo', 'vcc_hi'):
        return {('s', 'vcc')}
    if tok == 'm0':
        return {('s', 'm0')}
    if tok == 'exec':
        return {('s', 'exec')}
    m = _reg_re.match(tok)
    if not m:
        return set()
    k = m.group(2)
    if m.group(3) is not None:
        lo = hi = int(m.group(3))
    else:
        lo, hi = int(m.group(4)), int(m.group(5))
    return {(k, i) for i in range(lo, hi + 1)}


class Ins:
    __slots__ = ('text', 'mn', 'ops', 'mods', 'w', 'r', 'kind', 'passes', 'srcc', 'ab', 'data', 'states')

    def __init__(self, text):
        self.text = text
        t = text.split(';')[0].strip()
        parts = t.split(None, 1)
        self.mn = mn = parts[0]
        rest = parts[1] if len(parts) > 1 else ''
        toks = [x.strip() for x in rest.split(',')] if rest else []
        self.mods = ''
        if toks:
            last = toks[-1].split(None, 1)
            toks[-1] = last[0]
            self.mods = last[1] if len(last) > 1 else ''
        self.ops = toks
        self.w, self.r = set(), set()
        self.passes = 0
        self.srcc = set()
        self.ab = set()
        self.data = set()
        self.states = 1
        R = [regs_of(x) for x in toks]
        if mn == 's_nop':
            self.kind = 'nop'
            self.states = int(toks[0], 0) + 1
        elif mn.startswith('v_mfma'):
            self.kind = 'mfma'
            self.passes = 8 if '32x32' in mn else 4
            self.w = R[0]
            self.ab = R[1] | R[2]
            self.srcc = R[3]
            self.r = self.ab | self.srcc
        elif mn.startswith('v_'):
            self.kind = 'valu'
            if mn.startswith('v_cmp'):
                self.w = R[0]
                for x in R[1:]:
                    self.r |= x
            elif mn.startswith('v_permlane') and 'swap' in mn:
                self.w = R[0] | R[1]
                self.r = R[0] | R[1]
            elif mn.startswith(('v_add_co', 'v_sub_co', 'v_addc_co', 'v_subb_co')):
                self.w = R[0] | R[1]
                for x in R[2:]:
                    self.r |= x
            else:
                self.w = R[0]
                for x in R[1:]:
                    self.r |= x
                if mn.startswith(('v_fmac', 'v_dot2c', 'v_writelane')) or 'dpp' in mn or 'sdwa' in mn:
                    self.r |= R[0]
        elif mn.startswith('ds_'):
            self.kind = 'ds'
            if 'read' in mn or 'bpermute' in mn or 'swizzle' in mn or 'rtn' in mn:
                self.w = R[0]
                for x in R[1:]:
                    self.r |= x
            else:
                for x in R:
                    self.r |= x
            if 'addtid' in mn:
                self.r |= {('s', 'm0')}
        elif mn.startswith(('buffer_', 'global_', 'flat_')):
            self.kind = 'vmem'
            islds = ' lds' in (' ' + self.mods) or '_lds_' in mn
            if mn in ('buffer_wbl2', 'buffer_inv'):
                pass
            elif islds:
                for x in R:
                    self.r |= x
                self.r |= {('s', 'm0')}
            elif 'load' in mn:
                self.w = R[0]
                for x in R[1:]:
                    self.r |= x
                if 'd16' in mn:
                    self.r |= R[0]
            else:
                for x in R:
                    self.r |= x
                if 'x4' in mn or 'x3' in mn:
                    self.data = R[0] if mn.startswith('buffer_') else R[1]
                if 'atomic' in mn and 'sc0' in self.mods:
                    self.w = R[0]
        elif mn.startswith('s_'):
            self.kind = 'salu'
            if mn.startswith(('s_cmp', 's_cbranch', 's_branch', 's_waitcnt', 's_barrier', 's_endpgm', 's_sleep', 's_setprio')):
                for x in R:
                    self.r |= x
            else:
                if R:
                    self.w = R[0]
                for x in R[1:]:
                    self.r |= x
                if 'saveexec' in mn:
                    self.w = self.w | {('s', 'exec')}
        else:
            raise ValueError('unknown instruction: ' + text)


def need_states(p, c):
    n = 0
    vw = {x for x in p.w if x[0] in 'va'}
    sw = {x for x in p.w if x[0] == 's'}
    if p.kind == 'valu':
        if c.kind == 'mfma' and vw & c.r:
            n = max(n, 2)
        if c.kind == 'valu':
            if vw & c.r:
                if 'dpp' in c.mn or c.mn.startswith('v_permlane'):
                    n = max(n, 2)
                if c.mn.startswith(('v_readfirstlane', 'v_readlane')):
                    n = max(n, 1)
                if p.mn.startswith(TRANS):
                    n = max(n, 1)
                if 'sdwa' in p.mn or 'op_sel' in p.mods:
                    n = max(n, 1)
            if sw & c.r:
                n = max(n, 4 if c.mn.startswith(('v_readlane', 'v_writelane')) else 2)
        if c.kind == 'vmem' and sw & c.r:
            n = max(n, 5)
        if c.kind in ('salu', 'ds') and sw & c.r:
            n = max(n, 2)
    if p.kind == 'mfma':
        big = p.passes == 8
        if c.kind == 'mfma':
            if p.w & c.ab:
                n = max(n, 12 if big else 8)
            if p.w & c.srcc and not (p.w == c.srcc and p.passes == c.passes):
                n = max(n, 10 if big else 6)
            if p.w & c.w and not (p.w == c.srcc and p.passes == c.passes):
                n = max(n, 10 if big else 6)
        elif c.kind in ('valu', 'ds', 'vmem'):
            if p.w & (c.r | c.w):
                n = max(n, 12 if big else 8)
            if c.kind == 'valu' and p.srcc & c.w:
                n = max(n, 7 if big else 3)
            if c.kind in ('ds', 'vmem') and p.srcc & c.w:
                n = max(n, 7 if big else 3)
    if p.kind == 'salu' and ('s', 'm0') in p.w and ('s', 'm0') in c.r and c.kind in ('vmem', 'ds'):
        n = max(n, 1)
    if p.kind == 'vmem' and p.data and p.data & c.w:
        n = max(n, 2)
    return n


def pad_hazards(lines):
    out = []
    hist = []
    for ln in lines:
        s = ln.split(';')[0].strip()
        if not s or s.startswith('.'):
            out.append(ln)
            continue
        if s.endswith(':'):
            out.append(ln)
            continue
        c = Ins(s)
        dist = 0
        need = 0
        for p in reversed(hist):
            k = need_states(p, c) - dist
            need = max(need, k)
            dist += p.states
            if dist > 20:
                break
        while need > 0:
            k = min(need, 16)
            nop = f's_nop {k - 1}'
            out.append('    ' + nop)
            hist.append(Ins(nop))
            need -= k
        out.append(ln)
        hist.append(c)
        if c.mn in ('s_endpgm', 's_branch'):
            hist = []
        hist = hist[-24:]
    return out


class Asm:
    def __init__(self):
        self.lines = []
        self.vm = []
        self.lg = []
        self._lab = 0
        self.seen = set()

    def e(self, s):
        self.lines.append('    ' + s)

    def c(self, s):
        self.lines.append('    ; ' + s)

    def label(self, name):
        self.lines.append(name + ':')

    def raw(self, s):
        self.lines.append(s)

    def newlab(self, p='L'):
        self._lab += 1
        return f'{p}_{self._lab}'

    def vmem(self, s, tag=None):
        self.e(s)
        self.vm.append(tag)
        self.seen.add(tag)

    def lds(self, s, tag=None):
        self.e(s)
        self.lg.append(tag)
        self.seen.add(tag)

    def forget(self, *names):
        self.seen = {t for t in self.seen if (t[0] if isinstance(t, tuple) else t) not in names}

    def _cnt(self, lst, tags, cap):
        if not isinstance(tags, (list, set)):
            tags = [tags]
        for t in tags:
            assert t in self.seen, f'wait on never-issued tag {t}'
        idx = -1
        for i, t in enumerate(lst):
            if t in tags:
                idx = i
        if idx < 0:
            return None
        n = len(lst) - 1 - idx
        n = min(n, cap)
        del lst[:len(lst) - n]
        return n

    def wait(self, vm=None, lg=None):
        parts = []
        if vm is not None:
            if vm == 'all':
                self.vm.clear()
                parts.append('vmcnt(0)')
            else:
                n = self._cnt(self.vm, vm, 63)
                if n is not None:
                    parts.append(f'vmcnt({n})')
        if lg is not None:
            if lg == 'all':
                self.lg.clear()
                parts.append('lgkmcnt(0)')
            else:
                n = self._cnt(self.lg, lg, 15)
                if n is not None:
                    parts.append(f'lgkmcnt({n})')
        if parts:
            self.e('s_waitcnt ' + ' '.join(parts))

    STAMPS = False
    CYC = False
    DBG = 60 << 20

    ACTIVE = []

    def stamp(self, i):
        if not Asm.STAMPS:
            return
        if isinstance(i, str):
            if i not in Asm.ACTIVE:
                return
            i = Asm.ACTIVE.index(i) + 1
        self.e('s_memtime s[78:79]' if Asm.CYC else 's_memrealtime s[78:79]')
        self.e('s_waitcnt lgkmcnt(0)')
        self.lg.clear()
        self.e(f's_mov_b32 s{80 + i}, s78')

    def stamp_init(self):
        if not Asm.STAMPS:
            return
        for i in range(16):
            self.e(f's_mov_b32 s{80 + i}, 0')

    def stamp_dump(self, kidx, srd, swave, last):
        if not Asm.STAMPS:
            return
        self.e('s_waitcnt vmcnt(0)')
        self.stamp(last)
        self.e('v_mov_b32 v0, 0')
        for i in range(16):
            self.e(f'v_writelane_b32 v0, s{80 + i}, {i}')
        self.e(f's_lshl_b32 s78, s2, 3')
        self.e(f's_add_u32 s78, s78, s{swave}')
        self.e(f's_lshl_b32 s78, s78, 6')
        self.e(f's_add_u32 s78, s78, {Asm.DBG + kidx * 256 * 8 * 64}')
        self.e('v_mbcnt_lo_u32_b32 v1, -1, 0')
        self.e('v_mbcnt_hi_u32_b32 v1, -1, v1')
        self.e('v_lshlrev_b32 v1, 2, v1')
        self.e('s_mov_b64 exec, 0xffff')
        self.e(f'buffer_store_dword v0, v1, s[{srd}:{srd + 3}], s78 offen')

    def save(self):
        return (list(self.vm), list(self.lg), set(self.seen))

    def restore(self, st):
        self.vm, self.lg, self.seen = list(st[0]), list(st[1]), set(st[2])

    def srd(self, d, base, nbytes):
        self.e(f's_mov_b32 s{d}, s{base}')
        self.e(f's_and_b32 s{d + 1}, s{base + 1}, 0xffff')
        self.e(f's_mov_b32 s{d + 2}, 0x{nbytes:x}')
        self.e(f's_mov_b32 s{d + 3}, 0x20000')

    def text(self):
        return '\n'.join(pad_hazards(self.lines)) + '\n'


def descriptor(name, vgpr, sgpr=96):
    acc = (vgpr + 3) // 4 * 4
    return f'''.section .rodata,"a"
.p2align 6
.amdhsa_kernel {name}
  .amdhsa_next_free_vgpr {vgpr}
  .amdhsa_next_free_sgpr {sgpr}
  .amdhsa_accum_offset {acc}
  .amdhsa_group_segment_fixed_size 0
  .amdhsa_kernarg_size 88
  .amdhsa_user_sgpr_count 2
  .amdhsa_user_sgpr_kernarg_segment_ptr 1
  .amdhsa_system_sgpr_workgroup_id_x 1
.end_amdhsa_kernel
'''
```

```python
import sys
from asmlib import *

NAME = 'interleave_layers__spectral_fnet__dense_activation_relu__prompt'
S, D, F = 2048, 640, 1728
W1F = 0
W2F = 0x220000
DPF = 0x440000
CSP = 0x510000
W1S = 0x540000
TWP = 0x560000
FLG = 0x760000
VB = [0x960000, 0xC60000]
X1B = [0xF60000, 0x11E0000]
X2B = 0x1460000
HB = [0x16E0000, 0x1DA0000]
WS_BYTES = 268435456
OOB = 0x7f000000
SPIN = 200000
OPT = {}

R1 = 81920
VS, STATS, CSS = 57344, 69632, 70656
W1SL, ST1 = 57344, 73728

sWAVE, sG, sC = 3, 4, 5
P_X, P_CR, P_CI, P_DR, P_DI, P_W1, P_W2, P_OUT, P_WS = 8, 10, 12, 14, 16, 20, 22, 24, 26
sWS, sOUT, sFL = 28, 32, 36
sRHO, sKT, sMIR, sNON, sTILE, sNTILE = 38, 39, 40, 41, 42, 43
sGCM, sFOWN, sW1B, sHK, sW2O, sHG, sFSRC, sTAU1, sPG, sFPAR = 44, 45, 46, 47, 48, 49, 50, 51, 52, 53


class BG:
    def __init__(self):
        self.q = []

    def add(self, f):
        self.q.append(f)

    def run(self, n=None):
        n = len(self.q) if n is None else min(n, len(self.q))
        for _ in range(n):
            self.q.pop(0)()


PH_W, PH_V, PH_X1, PH_HA, PH_HB, PH_XA, PH_XB = 1, (2, 8), (3, 9), (4, 10), (5, 11), 6, 7


def poll_issue(a, vres, soff, phase, n, shift=7, tag='poll'):
    a.e(f'v_min_u32 v{vres}, {n - 1}, v1')
    a.e(f'v_lshlrev_b32 v{vres}, {shift}, v{vres}')
    a.e(f's_add_u32 s60, s{soff}, 0x{FLG:x}')
    a.vmem(f'buffer_load_dword v{vres}, v{vres}, {sr(sWS, 4)}, s60 offen sc1', tag)


def poll_check(a, vres, soff, phase, n, shift=7, tag='poll'):
    L, Ld = a.newlab('Lpoll'), a.newlab('Lpd')
    a.e(f's_add_u32 s59, s{sNON}, {phase}')
    a.wait(vm=tag)
    a.e('s_mov_b32 s61, 0')
    a.label(L)
    a.e(f'v_subrev_u32 v{vres}, s59, v{vres}')
    a.e(f'v_cmp_le_u32 vcc, 16, v{vres}')
    a.e(f's_cbranch_vccz {Ld}')
    if OPT.get('psleep', 2):
        a.e(f's_sleep {OPT.get("psleep", 2)}')
    st = a.save()
    poll_issue(a, vres, soff, phase, n, shift, tag)
    a.restore(st)
    a.e('s_waitcnt vmcnt(0)')
    a.e('s_add_u32 s61, s61, 1')
    a.e(f's_cmp_lt_u32 s61, {SPIN}')
    a.e(f's_cbranch_scc1 {L}')
    a.label(Ld)


def poll(a, vres, *args, **kw):
    poll_issue(a, vres, *args, **kw)
    poll_check(a, vres, *args, **kw)


def prio(a, p):
    if OPT.get('prio', 1):
        a.e(f's_setprio {p}')


def setflag(a, phase, vt):
    if phase is None:
        a.e('v_mov_b32 v0, 0')
    else:
        a.e(f's_add_u32 s62, s{sNON}, {phase}')
        a.e('v_mov_b32 v0, s62')
    a.e(f'v_lshlrev_b32 v{vt}, 2, v1')
    a.e('s_mov_b32 exec_hi, 0')
    a.vmem(f'buffer_store_dword v0, v{vt}, {sr(sWS, 4)}, s{sFOWN} offen sc1', 'flag')
    a.e('s_mov_b32 exec_hi, -1')


def setflag_w0(a, phase, vt):
    L = a.newlab('Lnf')
    a.e(f's_cmp_lg_u32 s{sWAVE}, 0')
    a.e(f's_cbranch_scc1 {L}')
    st = a.save()
    setflag(a, phase, vt)
    a.restore(st)
    a.label(L)


EXTRA = ('hst', 'flag', 'xst', 'vst', 'pst')


def merge(a, *states):
    ls = [[t for t in s[0] if t not in EXTRA] for s in states]
    ls.sort(key=len)
    longer = ls[-1]
    for s in ls[:-1]:
        assert longer[len(longer) - len(s):] == s, (longer, s)
    a.vm = list(longer)
    a.lg = []


def stats_finalize(a, AS, AM, ntiles, tmp, tile_stride, delta1, mode):
    t = tmp
    a.e(f'v_lshlrev_b32 v{t}, 2, v9')
    a.e(f'v_sub_u32 v{t}, v8, v{t}')
    a.e(f'v_lshl_add_u32 v{t + 1}, v8, 2, s6')
    a.e(f'v_cmp_eq_u32 s[70:71], 1, v{t}')
    a.e(f'v_cmp_eq_u32 s[72:73], 2, v{t}')
    a.e(f'v_cmp_eq_u32 s[74:75], 3, v{t}')
    a.e(f'v_cmp_gt_u32 s[76:77], 4, v{t}')
    a.e('s_mov_b32 s7, 0x3acccccd')
    for rt in range(ntiles):
        for acc in (AS, AM):
            b = acc + 4 * rt
            a.e(f'v_cndmask_b32 v{b}, v{b}, v{b + 1}, s[70:71]')
            a.e(f'v_cndmask_b32 v{b}, v{b}, v{b + 2}, s[72:73]')
            a.e(f'v_cndmask_b32 v{b}, v{b}, v{b + 3}, s[74:75]')
        ss, sm = AS + 4 * rt, AM + 4 * rt
        a.e(f'v_mul_f32 v{sm}, s7, v{sm}')
        a.e(f'v_mul_f32 v{ss}, s7, v{ss}')
        a.e(f'v_fma_f32 v{ss}, -v{sm}, v{sm}, v{ss}')
        a.e(f'v_max_f32 v{ss}, 0, v{ss}')
        a.e(f'v_add_f32 v{ss}, 0x3727c5ac, v{ss}')
        a.e(f'v_rsq_f32 v{ss}, v{ss}')
        if mode == 'rs_mr':
            a.e(f'v_mul_f32 v{sm}, v{sm}, v{ss}')
    a.e('s_mov_b64 exec, s[76:77]')
    for rt in range(ntiles):
        ss, sm = AS + 4 * rt, AM + 4 * rt
        first, second = (ss, sm) if mode == 'rs_mr' else (sm, ss)
        a.lds(f'ds_write_b32 v{t + 1}, v{first} offset:{rt * tile_stride}')
        a.lds(f'ds_write_b32 v{t + 1}, v{second} offset:{rt * tile_stride + delta1}')
    a.e('s_mov_b64 exec, -1')


def stage1(a, ACC, RSr, MRr, UP, US, VA, PKV, wf, VT):
    a.e('v_cmp_gt_u32 vcc, 8, v8')
    a.e('v_mov_b32 v13, 0x80008000')
    a.e('v_cndmask_b32 v13, 0, v13, vcc')
    a.e('v_and_b32 v12, 1, v9')
    a.e('v_lshl_add_u32 v12, v12, 4, v8')
    a.e('v_mul_u32_u24 v12, 192, v12')
    a.e('v_lshrrev_b32 v11, 1, v9')
    a.e('v_mul_u32_u24 v11, 80, v11')
    a.e(f's_lshl_b32 s6, s{sWAVE}, 4')
    a.e(f's_add_u32 s6, s6, {VT}')
    a.e('v_add3_u32 v12, v12, v11, s6')
    a.wait(lg='st')
    for r in range(16):
        a.e(f'v_mul_f32 v{MRr + r}, v{MRr + r}, v14')
    for r in range(16):
        a.e(f'v_fma_f32 v{ACC + r}, v{ACC + r}, v{RSr + r}, -v{MRr + r}')
    for r in range(8):
        a.e(f'v_cvt_pk_bf16_f32 v{UP + r}, v{ACC + 2 * r}, v{ACC + 2 * r + 1}')
    for r in range(8):
        a.e(f'v_xor_b32_dpp v{US + r}, v{UP + r}, v13 row_ror:8 row_mask:0xf bank_mask:0xf')
    a.wait(lg='wf')
    for tt in range(4):
        for ks in range(2):
            for mat in range(2):
                src = (UP, US)[mat] + 4 * ks
                c = '0' if (ks == 0 and mat == 0) else vr(VA + 4 * tt, 4)
                a.e(f'v_mfma_f32_16x16x32_bf16 {vr(VA + 4 * tt, 4)}, {vr(src, 4)}, {vr(wf(mat, tt, ks), 4)}, {c}')
    for pr in range(2):
        for h in range(2):
            tt = 2 * pr + h
            a.e(f'v_cvt_pk_bf16_f32 v{PKV + 4 * pr + 2 * h}, v{VA + 4 * tt}, v{VA + 4 * tt + 1}')
            a.e(f'v_cvt_pk_bf16_f32 v{PKV + 4 * pr + 2 * h + 1}, v{VA + 4 * tt + 2}, v{VA + 4 * tt + 3}')
        a.e(f'v_permlane16_swap_b32 v{PKV + 4 * pr}, v{PKV + 4 * pr + 2}')
        a.e(f'v_permlane16_swap_b32 v{PKV + 4 * pr + 1}, v{PKV + 4 * pr + 3}')
        a.lds(f'ds_write_b128 v12, {vr(PKV + 4 * pr, 4)} offset:{pr * 32 * 192}', 'vt')


def v_out_addr(a):
    for n, dst in ((0, 5), (8, 6)):
        a.e(f's_lshl_b32 s6, s{sWAVE}, 6')
        a.e(f's_add_u32 s6, s6, {n * 64}')
        a.e('v_add_u32 v0, s6, v1')
        a.e('v_mul_u32_u24 v7, 5462, v0')
        a.e('v_lshrrev_b32 v7, 16, v7')
        a.e('v_lshlrev_b32 v0, 4, v0')
        a.e(f's_mov_b32 s7, {8 * 32 * 192 - 192}')
        a.e(f'v_mad_u32_u24 v{dst}, v7, s7, v0')


def v_out(a, l, VT, R):
    a.e(f's_lshl_b32 s6, s{sWAVE}, 10')
    a.e(f's_add_u32 s6, s6, {VT}')
    a.e('v_add_u32 v0, s6, v2')
    a.lds(f'ds_read_b128 {vr(R, 4)}, v0', 'vo0')
    a.lds(f'ds_read_b128 {vr(R + 4, 4)}, v0 offset:8192', 'vo1')
    a.e(f's_lshl_b32 s6, s{sC}, 5')
    a.e(f's_add_u32 s6, s6, s{sG}')
    a.e('s_mulk_i32 s6, 192')
    a.e(f's_add_u32 s6, s6, 0x{VB[l]:x}')
    a.e(f's_cmp_lt_u32 s{sWAVE}, 4')
    a.e(f's_cselect_b32 s7, s6, 0x{OOB:x}')
    a.wait(lg='vo0')
    a.vmem(f'buffer_store_dwordx4 {vr(R, 4)}, v5, {sr(sWS, 4)}, s6 offen sc1', 'vo')
    a.wait(lg='vo1')
    a.vmem(f'buffer_store_dwordx4 {vr(R + 4, 4)}, v6, {sr(sWS, 4)}, s7 offen sc1', 'vo')


TW, ID, XR, XM, XE, Y, VF, PK = 16, 32, 40, 48, 56, 58, 74, 48
ACCX, XF, CS8 = 16, 32, 48
ACCB, RES = 16, 216
ACCA, XFA = 16, 32
HRING = [96 + 4 * k for k in range(12)]
NE2, NST = 10, 7


def dreg(ks):
    return 56 + 4 * ks if ks < 10 else (228 + 4 * (ks - 10) if ks < 17 else 144 + 4 * (ks - 17))


def w1reg(f):
    return 96 + 4 * f


def w2reg(f):
    if f < NE2:
        return 56 + 4 * f
    if f < NE2 + NST:
        return 228 + 4 * (f - NE2)
    return 144 + 4 * (f - NE2 - NST)


def gen(a, name):
    end = name + '_end'
    a.raw('.text')
    a.raw(f'.globl {name}')
    a.raw('.p2align 8')
    a.raw(f'.type {name},@function')
    a.label(name)
    a.e('s_cmp_ge_u32 s2, 256')
    a.e(f's_cbranch_scc1 {end}')
    a.stamp_init()
    a.stamp(0)
    a.e('s_load_dwordx16 s[8:23], s[0:1], 0')
    a.e('s_load_dwordx2 s[24:25], s[0:1], 64')
    a.e('s_load_dwordx2 s[26:27], s[0:1], 80')
    a.e('s_load_dwordx2 s[96:97], s[0:1], 72')
    a.e('v_lshrrev_b32 v1, 6, v0')
    a.e(f'v_readfirstlane_b32 s{sWAVE}, v1')
    a.e('v_and_b32 v1, 63, v0')
    if OPT.get('cpf', 1):
        a.e('s_getpc_b64 s[98:99]')
        a.label('Lpc')
        a.e('s_lshr_b32 s6, s2, 3')
        a.e('s_lshl_b32 s6, s6, 5')
        a.e('v_and_b32 v253, 31, v0')
        a.e('v_add_u32 v253, s6, v253')
        a.e('v_lshlrev_b32 v253, 7, v253')
        a.e(f'v_min_u32 v253, {end} - Lpc, v253')
        a.e('v_cmp_gt_u32 vcc, 32, v0')
        a.e('s_and_saveexec_b64 s[6:7], vcc')
        a.e('s_cbranch_execz Lpcd')
        a.e('global_load_dword v253, v253, s[98:99]')
        a.label('Lpcd')
        a.e('s_mov_b64 exec, -1')
    a.e('s_and_b32 s6, s2, 7')
    a.e('s_lshl_b32 s6, s6, 1')
    a.e('s_lshr_b32 s7, s2, 7')
    a.e('s_add_u32 s6, s6, s7')
    a.e('s_sub_u32 s7, 32, s6')
    a.e('s_cmp_eq_u32 s6, 0')
    a.e('s_cselect_b32 s7, 16, s7')
    a.e('s_bitcmp1_b32 s2, 6')
    a.e(f's_cselect_b32 s{sG}, s7, s6')
    a.e(f's_bfe_u32 s{sC}, s2, 0x30003')
    a.e('v_lshlrev_b32 v2, 4, v1')
    a.e('v_and_b32 v8, 15, v1')
    a.e('v_lshrrev_b32 v9, 4, v1')
    a.e('v_and_b32 v10, 31, v1')
    a.e('v_lshrrev_b32 v4, 5, v1')

    sX, sD, sD2, sCr, sCi = 56, 60, 64, 68, 72
    sWK = 54
    SLOT0, SLOTB, NSLOT = 1024, 18432, 6
    RS, MR, CS = 0, 256, 512
    W1L = SLOT0 + NSLOT * SLOTB
    WP1 = W1L + 16384
    W2S = WP1 + 14336
    VT0 = SLOT0 + 5 * SLOTB
    DEPTH = OPT.get('p0depth', 4)
    vXA, vDA, vD2A, vWA, vF0, vF1, vO8, vSW = 240, 241, 242, 243, 244, 245, 246, 247
    a.e(f'v_lshrrev_b32 v{vO8}, 3, v1')
    a.e(f'v_and_b32 v{vSW}, 7, v1')
    if not OPT.get('noswz'):
        a.e(f'v_xor_b32 v{vSW}, v{vSW}, v{vO8}')
    a.e(f'v_lshlrev_b32 v{vSW}, 4, v{vSW}')
    a.e(f's_and_b32 s6, s{sWAVE}, 1')
    a.e('s_lshl_b32 s6, s6, 4')
    a.e(f's_lshr_b32 s7, s{sWAVE}, 2')
    a.e('s_lshl_b32 s7, s7, 5')
    a.e('s_add_u32 s6, s6, s7')
    a.e(f's_and_b32 s7, s{sWAVE}, 2')
    a.e('s_lshl_b32 s7, s7, 1')
    a.e('s_add_u32 s6, s6, s7')
    a.e(f'v_lshrrev_b32 v{vXA}, 2, v{vO8}')
    a.e(f'v_lshlrev_b32 v{vXA}, 3, v{vXA}')
    a.e(f'v_and_b32 v0, 3, v{vO8}')
    a.e(f'v_add3_u32 v{vXA}, v{vXA}, v0, s6')
    a.e(f'v_lshl_add_u32 v{vXA}, v{vXA}, 5, s{sG}')
    a.e('s_movk_i32 s55, 1280')
    a.e(f'v_mad_u32_u24 v{vXA}, v{vXA}, s55, v{vSW}')
    a.e(f's_mul_i32 s6, s{sC}, 40')
    a.e(f's_lshr_b32 s7, s{sWAVE}, 1')
    a.e('s_lshl_b32 s7, s7, 3')
    a.e('s_add_u32 s7, s7, s6')
    a.e(f'v_add_u32 v{vDA}, s7, v{vO8}')
    a.e('v_mov_b32 v0, 320')
    a.e(f'v_cmp_eq_u32 vcc, 0, v{vDA}')
    a.e(f'v_cndmask_b32 v{vDA}, v{vDA}, v0, vcc')
    a.e(f'v_mad_u32_u24 v{vDA}, v{vDA}, s55, v{vSW}')
    a.e(f's_lshl_b32 s{sWK}, s{sWAVE}, 10')
    a.e('s_waitcnt lgkmcnt(0)')
    a.srd(sX, P_X, S * D * 2)
    a.e(f's_bitcmp1_b32 s{sWAVE}, 0')
    a.e(f's_cselect_b32 s98, s{P_DI}, s{P_DR}')
    a.e(f's_cselect_b32 s99, s{P_DI + 1}, s{P_DR + 1}')
    a.srd(sD, 98, D * D * 2)

    if OPT.get('rot', 1):
        a.e('s_lshr_b32 s98, s2, 6')
        a.e('s_mul_i32 s98, s98, 3')
        a.e(f's_add_u32 s98, s98, s{sC}')
        a.e('s_and_b32 s99, s2, 7')
        a.e('s_add_u32 s98, s98, s99')
        a.e('s_mul_i32 s99, s98, 26')
        a.e('s_lshr_b32 s99, s99, 8')
        a.e('s_mul_i32 s99, s99, 10')
        a.e('s_sub_u32 s98, s98, s99')
        a.e('s_lshl_b32 s19, s98, 7')
    else:
        a.e('s_mov_b32 s19, 0')

    def chunk_off(kc, dst):
        a.e(f's_add_u32 s{dst}, s19, {kc * 128}')
        a.e(f's_cmp_ge_u32 s{dst}, 1280')
        a.e(f's_cselect_b32 s18, 1280, 0')
        a.e(f's_sub_u32 s{dst}, s{dst}, s18')

    def dma_chunk(kc, extra, main=True):
        sb = SLOT0 + (kc % NSLOT) * SLOTB
        chunk_off(kc, 99)
        if main:
            a.e(f's_add_u32 m0, s{sWK}, {sb}')
            a.vmem(f'buffer_load_dwordx4 v{vXA}, {sr(sX, 4)}, s99 offen lds', ('c', kc))
            a.e(f's_add_u32 m0, s{sWK}, {sb + 8192}')
            a.vmem(f'buffer_load_dwordx4 v{vDA}, {sr(sD, 4)}, s99 offen lds', ('c', kc))
        if extra:
            a.e(f's_add_u32 m0, s{sWK}, {sb + 11 * 1024}')
            a.vmem(f'buffer_load_dwordx4 v{vD2A}, {sr(sD2, 4)}, s99 offen lds', ('c', kc))

    dma_chunk(0, False)
    dma_chunk(1, False)
    a.e('s_add_u32 s6, s6, 32')
    a.e(f'v_add_u32 v{vD2A}, s6, v{vO8}')
    a.e(f'v_mad_u32_u24 v{vD2A}, v{vD2A}, s55, v{vSW}')
    a.e(f's_bitcmp1_b32 s{sWAVE}, 0')
    a.e(f's_cselect_b32 s98, s{P_DR}, s{P_DI}')
    a.e(f's_cselect_b32 s99, s{P_DR + 1}, s{P_DI + 1}')
    a.srd(sD2, 98, D * D * 2)
    a.srd(sCr, P_CR, S * S * 2)
    a.srd(sCi, P_CI, S * S * 2)
    a.srd(sWS, P_WS, WS_BYTES)
    a.srd(sOUT, P_OUT, S * D * 2)
    a.e(f's_add_u32 s{sFL}, s{P_WS}, 0x{FLG:x}')
    a.e(f's_addc_u32 s{sFL + 1}, s{P_WS + 1}, 0')
    Lnn = a.newlab('Lnn')
    a.e(f's_lshl_b32 s6, s2, 3')
    a.e(f's_add_u32 s6, s6, s{sWAVE}')
    a.e('s_cmp_lg_u32 s6, 7')
    a.e(f's_cbranch_scc1 {Lnn}')
    a.e(f's_load_dword s6, s[{sFL}:{sFL + 1}], 0x40000 glc')
    a.e('s_waitcnt lgkmcnt(0)')
    a.e('s_add_u32 s6, s6, 16')
    a.e('s_and_b32 s6, s6, -16')
    a.e('s_bitset1_b32 s6, 31')
    a.e('v_mov_b32 v0, s6')
    a.e('v_mov_b32 v5, 0')
    a.e('s_mov_b64 exec, 1')
    a.e(f's_mov_b32 s7, 0x{FLG + 0x40000:x}')
    a.e(f'buffer_store_dword v0, off, {sr(sWS, 4)}, s7 sc1')
    a.e('global_store_dword v5, v0, s[96:97] sc1')
    a.e('s_mov_b64 exec, -1')
    a.label(Lnn)
    a.e(f's_bfe_u32 s{sRHO}, s{sWAVE}, 0x10001')
    a.e(f's_and_b32 s{sKT}, s{sWAVE}, 1')
    a.e(f's_lshr_b32 s{sMIR}, s{sWAVE}, 2')
    a.e(f's_sub_u32 s6, 64, s{sG}')
    a.e(f's_cmp_eq_u32 s{sG}, 0')
    a.e(f's_cselect_b32 s{sTAU1}, 32, s6')
    a.e(f's_mul_i32 s6, s{sC}, 7')
    a.e('s_min_u32 s100, s6, 48')
    a.e(f's_add_u32 s{sTILE}, s100, s{sWAVE}')
    a.e(f's_min_u32 s{sTILE}, s{sTILE}, 53')
    a.e(f's_cmp_lt_u32 s{sC}, 6')
    a.e(f's_cselect_b32 s{sNTILE}, 7, 6')
    a.e(f's_mul_i32 s{sGCM}, s{sG}, 81920')
    a.e(f's_lshl_b32 s6, s{sG}, 3')
    a.e(f's_add_u32 s7, s6, s{sC}')
    a.e('s_lshl_b32 s101, s7, 13')
    a.e('s_lshl_b32 s7, s7, 3')
    a.e(f's_add_u32 s7, s7, s{sWAVE}')
    a.e('s_lshl_b32 s7, s7, 7')
    a.e(f's_add_u32 s{sFOWN}, s7, 0x{FLG:x}')
    a.e(f's_add_u32 s7, s6, s{sWAVE}')
    a.e(f's_lshl_b32 s{sFSRC}, s7, 10')
    a.e(f's_sub_u32 s{sPG}, 32, s{sG}')
    a.e(f's_and_b32 s{sPG}, s{sPG}, 31')
    a.e(f's_lshl_b32 s7, s{sPG}, 3')
    a.e(f's_add_u32 s7, s7, s{sWAVE}')
    a.e(f's_lshl_b32 s{sFPAR}, s7, 10')
    a.e(f's_mul_i32 s{sW1B}, s{sTILE}, 40960')
    a.e(f's_cmp_ge_u32 s{sWAVE}, s{sNTILE}')
    a.e(f's_cselect_b32 s{sW1B}, 0x{OOB:x}, s{sW1B}')
    a.e(f's_mul_i32 s6, s{sWAVE}, 7')
    a.e('s_min_u32 s6, s6, 48')
    a.e(f's_mul_i32 s7, s{sC}, 54')
    a.e('s_add_u32 s7, s7, s6')
    a.e(f's_mul_i32 s{sW2O}, s7, 5120')
    a.e(f's_add_u32 s{sW2O}, s{sW2O}, 0x{W2F:x}')
    a.e(f's_mul_i32 s{sHG}, s{sG}, {216 * 1024}')
    a.e('s_lshl_b32 s6, s6, 12')
    a.e(f's_add_u32 s{sHK}, s{sHG}, s6')
    a.e('v_lshlrev_b32 v3, 4, v8')
    a.e('v_lshl_add_u32 v3, v9, 10, v3')
    a.e(f's_lshl_b32 s6, s{sWAVE}, 3')
    a.e(f'v_add_u32 v{vWA}, s6, v{vO8}')
    a.e(f'v_lshl_add_u32 v{vWA}, v{vWA}, 17, v{vSW}')
    a.e(f'v_and_b32 v{vF0}, 7, v1')
    a.e(f'v_xor_b32 v{vF0}, v{vF0}, v9')
    a.e(f'v_lshlrev_b32 v{vF0}, 4, v{vF0}')
    a.e(f'v_lshl_add_u32 v{vF0}, v8, 7, v{vF0}')
    a.e(f'v_xor_b32 v{vF1}, 64, v{vF0}')

    def dest_row(vd):
        a.e(f's_lshl_b32 s6, s{sRHO}, 5')
        a.e(f'v_add_u32 v{vd}, s6, v10')
        a.e(f'v_sub_u32 v11, 63, v{vd}')
        a.e('v_sub_u32 v12, 32, v10')
        a.e('v_and_b32 v12, 31, v12')
        a.e('v_sub_u32 v13, 63, v10')
        a.e(f's_cmp_eq_u32 s{sRHO}, 0')
        a.e('s_cselect_b64 vcc, -1, 0')
        a.e('v_cndmask_b32 v12, v13, v12, vcc')
        a.e(f's_cmp_eq_u32 s{sG}, 0')
        a.e('s_cselect_b64 vcc, -1, 0')
        a.e('v_cndmask_b32 v11, v11, v12, vcc')
        a.e(f's_cmp_eq_u32 s{sMIR}, 1')
        a.e('s_cselect_b64 vcc, -1, 0')
        a.e(f'v_cndmask_b32 v{vd}, v{vd}, v11, vcc')

    def xr_loads(l, xm, xe, srd):
        dest_row(7)
        if l == 0:
            a.e('v_and_b32 v11, 31, v7')
            a.e('v_lshlrev_b32 v11, 6, v11')
            a.e(f'v_mov_b32 v12, s{sG}')
            a.e(f'v_mov_b32 v13, s{sTAU1}')
            a.e('v_cmp_le_u32 vcc, 32, v7')
            a.e('v_cndmask_b32 v12, v12, v13, vcc')
            a.e('v_add_u32 v11, v11, v12')
            a.e('v_mul_u32_u24 v7, 1280, v11')
            sh, so, sc = 4, '0', ''
        else:
            a.e('v_lshrrev_b32 v11, 5, v7')
            a.e('v_mul_u32_u24 v11, 40960, v11')
            a.e('v_and_b32 v7, 31, v7')
            a.e('v_lshl_add_u32 v7, v7, 4, v11')
            a.e(f's_add_u32 s63, s{sGCM}, 0x{X2B:x}')
            sh, so, sc = 9, 's63', ' sc1'
        a.e(f's_mul_i32 s6, s{sC}, 5')
        a.e(f's_lshl_b32 s7, s{sKT}, 2')
        a.e('s_add_u32 s6, s6, s7')
        a.e(f's_cmp_eq_u32 s{sMIR}, 1')
        a.e('s_cselect_b64 s[76:77], -1, 0')
        for h in range(2):
            a.e(f'v_add3_u32 v11, v4, s6, {2 * h}')
            a.e('v_min_u32 v11, 39, v11')
            a.e('v_sub_u32 v12, 79, v11')
            a.e('v_cndmask_b32 v12, v11, v12, s[76:77]')
            a.e(f'v_lshl_add_u32 v12, v12, {sh}, v7')
            a.vmem(f'buffer_load_dwordx4 {vr(xm + 4 * h, 4)}, v12, {sr(srd, 4)}, {so} offen{sc}', 'xr')
            a.e('v_sub_u32 v12, 80, v11')
            a.e('v_cndmask_b32 v12, v11, v12, s[76:77]')
            a.e('v_cndmask_b32 v13, 40, 0, s[76:77]')
            a.e('v_cmp_eq_u32 vcc, 0, v11')
            a.e('v_cndmask_b32 v12, v12, v13, vcc')
            a.e(f'v_lshl_add_u32 v12, v12, {sh}, v7')
            a.vmem(f'buffer_load_ushort v{xe + h}, v12, {sr(srd, 4)}, {so} offen{sc}', 'xr')

    XM0, XE0, TWR, PF, PF2 = 224, 232, 236, 208, 200

    def side(kc):
        if kc == 'wp1':
            a.e(f's_mov_b32 s98, s{P_W1}')
            a.e(f's_and_b32 s99, s{P_W1 + 1}, 0xffff')
            a.srd(8, 98, D * F * 2)
            a.e(f's_cmp_lt_u32 s{sG}, 20')
            a.e(f's_cselect_b32 s6, s{sWAVE}, 7')
            a.e('s_lshl_b32 s7, s100, 6')
            a.e('s_cmp_lt_u32 s6, 7')
            a.e(f's_cselect_b32 s7, s7, 0x{OOB:x}')
            for n in range(2):
                a.e(f's_lshl_b32 s6, s{sWAVE}, 7')
                a.e(f's_add_u32 s6, s6, {64 * n}')
                a.e('v_add_u32 v0, s6, v1')
                a.e('v_mul_u32_u24 v5, 2341, v0')
                a.e('v_lshrrev_b32 v5, 16, v5')
                a.e('v_mul_u32_u24 v6, 28, v5')
                a.e('v_sub_u32 v0, v0, v6')
                a.e(f's_lshl_b32 s6, s{sG}, 2')
                a.e('v_lshrrev_b32 v6, 3, v5')
                a.e('v_add_u32 v6, s6, v6')
                a.e('v_mul_u32_u24 v7, 13108, v6')
                a.e('v_lshrrev_b32 v7, 16, v7')
                a.e('v_mul_u32_u24 v11, 5, v7')
                a.e('v_sub_u32 v6, v6, v11')
                a.e('v_lshrrev_b32 v11, 1, v7')
                a.e('v_mad_u32_u24 v6, v11, 5, v6')
                a.e('v_and_b32 v5, 7, v5')
                a.e('v_lshl_add_u32 v5, v6, 3, v5')
                a.e('v_sub_u32 v6, 640, v5')
                a.e('v_and_b32 v7, 1, v7')
                a.e('v_cmp_eq_u32 vcc, 1, v7')
                a.e('v_cndmask_b32 v5, v5, v6, vcc')
                a.e('v_mov_b32 v6, 320')
                a.e('v_cmp_eq_u32 vcc, 0, v5')
                a.e('v_cndmask_b32 v5, v5, v6, vcc')
                a.e('v_cmp_eq_u32 vcc, 640, v5')
                a.e('v_cndmask_b32 v5, v5, 0, vcc')
                a.e('v_and_b32 v5, 0x3ff, v5')
                a.e('v_mul_u32_u24 v5, 3456, v5')
                a.e('v_lshl_add_u32 v5, v0, 4, v5')
                a.e(f's_lshl_b32 s6, s{sWAVE}, 11')
                a.e(f's_cmp_lt_u32 s{sWAVE}, 7')
                a.e('s_cselect_b32 s6, s6, 0x8000')
                a.e(f's_add_u32 m0, s6, {WP1 + 1024 * n}')
                a.vmem(f'buffer_load_dwordx4 v5, s[8:11], s7 offen lds', 'wp1')
        if kc == 'w1':
            a.e(f's_add_u32 m0, s{sWK}, {W1L}')
            a.vmem(f'buffer_load_dwordx4 v{vWA}, {sr(sCr, 4)}, 0 offen lds', 'w1')
            a.e(f's_add_u32 m0, s{sWK}, {W1L + 8192}')
            a.vmem(f'buffer_load_dwordx4 v{vWA}, {sr(sCi, 4)}, 0 offen lds', 'w1')
        if kc == 'tw':
            a.e(f's_cmp_lt_u32 s{sWAVE}, 4')
            a.e(f's_cselect_b32 s6, s{sG}, s{sTAU1}')
            a.e('v_lshl_add_u32 v5, v10, 6, s6')
            a.e('v_lshlrev_b32 v5, 12, v5')
            a.e('v_lshl_add_u32 v5, v4, 4, v5')
            a.e(f's_lshl_b32 s6, s{sKT}, 5')
            a.e(f's_bitcmp1_b32 s{sWAVE}, 1')
            a.e(f's_cselect_b32 s98, s{sCi}, s{sCr}')
            a.e(f's_cselect_b32 s99, s{sCi + 1}, s{sCr + 1}')
            a.srd(12, 98, S * S * 2)
            a.vmem(f'buffer_load_dwordx4 {vr(TWR, 4)}, v5, s[12:15], s6 offen', 'tw')
        if kc == 'xr':
            xr_loads(0, XM0, XE0, sX)
        if kc == 'wp2':
            a.e(f's_mov_b32 s98, s{P_W2}')
            a.e(f's_and_b32 s99, s{P_W2 + 1}, 0xffff')
            a.srd(20, 98, D * F * 2)
            a.e(f's_lshl_b32 s6, s{sWAVE}, 6')
            a.e('v_add_u32 v0, s6, v1')
            a.e('v_mul_u32_u24 v5, 6554, v0')
            a.e('v_lshrrev_b32 v5, 16, v5')
            a.e('v_lshlrev_b32 v0, 4, v0')
            a.e('s_movk_i32 s7, 1120')
            a.e('v_mad_u32_u24 v5, v5, s7, v0')
            a.e(f's_mul_i32 s6, s{sG}, 40960')
            a.e(f's_mul_i32 s7, s{sC}, 160')
            a.e('s_add_u32 s6, s6, s7')
            a.e(f's_cmp_lt_u32 s{sWAVE}, 5')
            a.e(f's_cselect_b32 s6, s6, 0x{OOB:x}')
            a.e(f's_add_u32 s7, s6, {32 * 40960}')
            a.e(f's_min_u32 s98, s{sWK}, 4096')
            a.e(f's_cmp_lt_u32 s{sWAVE}, 5')
            a.e('s_cselect_b32 s98, s98, 0x8000')
            a.e(f's_add_u32 m0, s98, {W2S}')
            a.vmem('buffer_load_dwordx4 v5, s[20:23], s6 offen lds', 'wp2')
            a.e(f's_add_u32 m0, s98, {W2S + 5120}')
            a.vmem('buffer_load_dwordx4 v5, s[20:23], s7 offen lds', 'wp2')
        if kc == 'tws':
            a.wait(vm='tw')
            a.e(f's_bitcmp1_b32 s{sWAVE}, 1')
            a.e('s_cselect_b32 s6, 0x80008000, 0')
            for r in range(4):
                a.e(f'v_xor_b32 v{TWR + r}, s6, v{TWR + r}')
            a.e(f's_add_u32 s6, s101, s{sWK}')
            a.e(f's_add_u32 s6, s6, 0x{TWP:x}')
            a.vmem(f'buffer_store_dwordx4 {vr(TWR, 4)}, v2, {sr(sWS, 4)}, s6 offen', 'tws')
        if kc == 'wp1r':
            a.e('v_bfe_u32 v5, v1, 2, 2')
            a.e('v_lshl_add_u32 v5, v9, 3, v5')
            a.e('v_mul_u32_u24 v5, 448, v5')
            a.e('v_and_b32 v0, 3, v1')
            a.e('v_lshl_add_u32 v5, v0, 4, v5')
            a.e(f's_min_u32 s6, s{sWAVE}, 6')
            a.e('s_lshl_b32 s6, s6, 6')
            a.e(f's_add_u32 s6, s6, {WP1}')
            a.e('v_add_u32 v5, s6, v5')
            for ab in range(2):
                for rd in range(2):
                    a.lds(f'ds_read_b64_tr_b16 {vr(PF + 4 * ab + 2 * rd, 2)}, v5 offset:{rd * 4 * 448 + ab * 8}', 'pf')
        if kc == 'wp1s':
            a.e(f's_lshl_b32 s6, s{sG}, 11')
            a.e(f's_add_u32 s6, s6, s{sW1B}')
            a.e(f's_cmp_lt_u32 s{sG}, 20')
            a.e(f's_cselect_b32 s6, s6, 0x{OOB:x}')
            for ab in range(2):
                a.vmem(f'buffer_store_dwordx4 {vr(PF + 4 * ab, 4)}, v2, {sr(sWS, 4)}, s6 offen offset:{ab * 1024} sc1', 'pst2')
            a.e('s_mov_b32 s7, 0x3f803f80')
            for ab in range(2):
                a.e(f'v_mov_b32 v{PF + 8 + ab}, 0')
            for d in range(4):
                for ab in range(2):
                    a.e(f'v_dot2_f32_bf16 v{PF + 8 + ab}, v{PF + 4 * ab + d}, s7, v{PF + 8 + ab}')
            a.e('s_nop 3')
            for sw in ('v_permlane32_swap_b32', 'v_permlane16_swap_b32'):
                for ab in range(2):
                    a.e(f'v_mov_b32 v{PF + 10 + ab}, v{PF + 8 + ab}')
                for ab in range(2):
                    a.e(f'{sw} v{PF + 8 + ab}, v{PF + 10 + ab}')
                for ab in range(2):
                    a.e(f'v_add_f32 v{PF + 8 + ab}, v{PF + 8 + ab}, v{PF + 10 + ab}')
            a.e('v_cmp_eq_u32 vcc, 1, v9')
            a.e(f'v_cndmask_b32 v{PF + 8}, v{PF + 8}, v{PF + 9}, vcc')
            a.e('v_lshrrev_b32 v5, 2, v8')
            a.e('v_lshlrev_b32 v5, 5, v5')
            a.e('v_lshl_add_u32 v5, v9, 4, v5')
            a.e('v_and_b32 v0, 3, v8')
            a.e('v_lshl_add_u32 v5, v0, 2, v5')
            a.e(f's_cmp_ge_u32 s6, 0x{OOB:x}')
            a.e(f's_cselect_b32 s98, 0x{OOB:x}, 0')
            a.e(f's_mul_i32 s6, s{sG}, 6912')
            a.e(f's_lshl_b32 s7, s{sTILE}, 7')
            a.e('s_add_u32 s6, s6, s7')
            a.e(f's_add_u32 s6, s6, 0x{CSP:x}')
            a.e('s_or_b32 s6, s6, s98')
            a.e('s_mov_b32 exec_hi, 0')
            a.vmem(f'buffer_store_dword v{PF + 8}, v5, {sr(sWS, 4)}, s6 offen sc1', 'pst2')
            a.e('s_mov_b64 exec, -1')

        if kc == 'wp2r':
            a.e('v_bfe_u32 v5, v1, 2, 2')
            a.e('v_lshl_add_u32 v5, v9, 3, v5')
            a.e('v_mul_u32_u24 v5, 160, v5')
            a.e('v_and_b32 v0, 3, v1')
            a.e('v_lshl_add_u32 v5, v0, 3, v5')
            a.e(f's_min_u32 s6, s{sWAVE}, 4')
            a.e('s_lshl_b32 s6, s6, 5')
            a.e(f's_add_u32 s6, s6, {W2S}')
            a.e('v_add_u32 v5, s6, v5')
            for t in range(2):
                for rd in range(2):
                    a.lds(f'ds_read_b64_tr_b16 {vr(PF2 + 4 * t + 2 * rd, 2)}, v5 offset:{t * 5120 + rd * 640}', 'pf')
        if kc == 'wp2s':
            a.e(f's_mul_i32 s6, s{sC}, 54')
            a.e(f's_add_u32 s6, s6, s{sG}')
            a.e('s_mul_i32 s6, s6, 5120')
            a.e(f's_add_u32 s6, s6, s{sWK}')
            a.e(f's_add_u32 s6, s6, 0x{W2F:x}')
            a.e(f's_cmp_lt_u32 s{sWAVE}, 5')
            a.e(f's_cselect_b32 s6, s6, 0x{OOB:x}')
            a.e(f's_add_u32 s7, s6, {32 * 5120}')
            a.e(f's_cmp_lt_u32 s{sG}, 22')
            a.e(f's_cselect_b32 s7, s7, 0x{OOB:x}')
            a.vmem(f'buffer_store_dwordx4 {vr(PF2, 4)}, v2, {sr(sWS, 4)}, s6 offen sc1', 'pst2')
            a.vmem(f'buffer_store_dwordx4 {vr(PF2 + 4, 4)}, v2, {sr(sWS, 4)}, s7 offen sc1', 'pst2')
        if kc == 'non':
            a.e('v_mov_b32 v252, 0')
            a.vmem('global_load_dword v252, v252, s[96:97] sc1', 'non')
        if kc == 'nonc':
            L, Ld = a.newlab('Lno'), a.newlab('Lnd')
            a.wait(vm='non')
            a.e('s_mov_b32 s98, 0')
            a.label(L)
            a.e(f'v_readfirstlane_b32 s{sNON}, v252')
            a.e('s_nop 1')
            a.e(f's_cmp_lg_u32 s{sNON}, 0')
            a.e(f's_cbranch_scc1 {Ld}')
            a.e('v_mov_b32 v252, 0')
            a.e('global_load_dword v252, v252, s[96:97] sc1')
            a.e('s_waitcnt vmcnt(0)')
            a.e('s_add_u32 s98, s98, 1')
            a.e(f's_cmp_lt_u32 s98, {SPIN}')
            a.e(f's_cbranch_scc1 {L}')
            a.label(Ld)

    def mainloop(extra, reads, mfmas):
        if extra:
            dma_chunk(0, True, False)
            dma_chunk(1, True, False)
        side('wp1')
        dma_chunk(2, extra)
        side('wp2')
        dma_chunk(3, extra)
        side('w1')
        setflag(a, None, 5)
        jobs = {2: ['non', 'wp1r'], 3: ['wp2r', 'wp1s'], 4: ['wp2s'], 5: ['tw', 'nonc'], 6: ['xr']}
        a.stamp('p0iss')
        for kc in range(10):
            a.wait(vm=[('c', kc)] + (['pst2'] if kc == WFL else []), lg='all')
            a.e('s_barrier')
            a.stamp(f'p0c{kc}')
            sb = SLOT0 + (kc % NSLOT) * SLOTB
            reads(kc, sb)
            if kc == 0:
                dma_chunk(4, extra)
            if kc <= 4:
                dma_chunk(kc + 5, extra)
            if kc == WFL:
                setflag_w0(a, PH_W, 5)
            for jb in jobs.get(kc, ()):
                side(jb)
            if kc >= 1:
                mfmas(kc - 1, False)
        mfmas(9, True)

    WFL = OPT.get('wfl', 7)
    Lstat, Lcol, Lj0 = a.newlab('Lp0s'), a.newlab('Lp0c'), a.newlab('Lp0j')
    a.e(f's_cmp_eq_u32 s{sWAVE}, 7')
    a.e(f's_cbranch_scc1 {Lcol}')
    a.e(f's_cmp_ge_u32 s{sWAVE}, 5')
    a.e(f's_cbranch_scc1 {Lstat}')
    st0 = a.save()
    ACC, FR = 16, 32
    a.e(f's_lshl_b32 s55, s{sWAVE}, 11')
    a.e('s_add_u32 s55, s55, 8192')
    a.e(f's_mul_i32 s6, s{sC}, 5')
    a.e(f's_add_u32 s6, s6, s{sWAVE}')
    a.e('s_mul_i32 s6, s6, 20')
    a.e(f's_add_u32 s6, s6, s{sG}')
    a.e('s_lshl_b32 s6, s6, 10')
    a.e(f's_add_u32 s24, s6, 0x{DPF:x}')

    def reads_c(kc, sb):
        a.e(f'v_add_u32 v248, {sb}, v{vF0}')
        a.e(f'v_add_u32 v249, {sb}, v{vF1}')
        a.e('v_add_u32 v250, s55, v248')
        a.e('v_add_u32 v251, s55, v249')
        for hk in range(2):
            f = FR + 40 * (kc % 2) + 20 * hk
            a.lds(f'ds_read_b128 {vr(f + 16, 4)}, v{250 + hk}', ('f', hk, 0))
            for rt in range(4):
                a.lds(f'ds_read_b128 {vr(f + 4 * rt, 4)}, v{248 + hk} offset:{rt * 2048}', ('f', hk, rt))

    def mfmas_c(kc, last):
        for hk in range(2):
            f = FR + 40 * (kc % 2) + 20 * hk
            for rt in range(4):
                if last:
                    a.wait(lg=('f', hk, rt))
                c = '0' if (kc == 0 and hk == 0) else vr(ACC + 4 * rt, 4)
                a.e(f'v_mfma_f32_16x16x32_bf16 {vr(ACC + 4 * rt, 4)}, {vr(f + 4 * rt, 4)}, {vr(f + 16, 4)}, {c}')
            L = a.newlab('Ldd')
            if hk == 0:
                chunk_off(kc, 98)
                a.e('s_lshr_b32 s98, s98, 6')
            else:
                a.e('s_add_u32 s98, s98, 1')
            a.e(f's_cmp_lg_u32 s{sG}, s98')
            a.e(f's_cbranch_scc1 {L}')
            a.e(f'buffer_store_dwordx4 {vr(f + 16, 4)}, v2, {sr(sWS, 4)}, s24 offen sc1')
            a.e('s_nop 1')
            a.label(L)

    mainloop(False, reads_c, mfmas_c)
    WF, RSr, MRr = 112, 176, 72
    wf0 = lambda mat, tt, ks: WF + ((mat * 4 + tt) * 2 + ks) * 4
    a.e(f'v_add_u32 v248, {W1L}, v{vF0}')
    a.e(f'v_add_u32 v249, {W1L}, v{vF1}')
    for tt in range(4):
        for ks in range(2):
            for mat in range(2):
                a.lds(f'ds_read_b128 {vr(wf0(mat, tt, ks), 4)}, v{248 + ks} offset:{mat * 8192 + tt * 2048}', 'wf')
    a.e('v_lshlrev_b32 v12, 4, v9')
    a.e(f's_lshl_b32 s6, s{sWAVE}, 6')
    a.e('v_lshl_add_u32 v13, v8, 2, s6')
    a.stamp('p0end')
    a.e('s_barrier')
    a.lds(f'ds_read_b32 v14, v13 offset:{CS}', 'st')
    for rt in range(4):
        a.lds(f'ds_read_b128 {vr(RSr + 4 * rt, 4)}, v12 offset:{RS + rt * 64}', 'st')
        a.lds(f'ds_read_b128 {vr(MRr + 4 * rt, 4)}, v12 offset:{MR + rt * 64}', 'st')
    stage1(a, ACC, RSr, MRr, 32, 40, 48, 64, wf0, VT0)
    stC = a.save()
    a.e(f's_branch {Lj0}')

    a.label(Lstat)
    a.restore(st0)
    AS, AM, ONE, FS = 24, 32, 40, 44
    for r in range(4):
        a.e(f'v_mov_b32 v{ONE + r}, 0x3f803f80')
    a.e(f's_sub_u32 s55, s{sWAVE}, 5')
    a.e('s_lshl_b32 s55, s55, 12')
    a.e(f'v_add_u32 v250, s55, v{vF0}')
    a.e(f'v_add_u32 v251, s55, v{vF1}')

    def reads_s(kc, sb):
        a.e(f'v_add_u32 v248, {sb}, v250')
        a.e(f'v_add_u32 v249, {sb}, v251')
        for hk in range(2):
            for rt in range(2):
                a.lds(f'ds_read_b128 {vr(FS + 16 * (kc % 2) + 8 * hk + 4 * rt, 4)}, v{248 + hk} offset:{rt * 2048}', ('f', hk, rt))

    def mfmas_s(kc, last):
        for hk in range(2):
            for rt in range(2):
                f = vr(FS + 16 * (kc % 2) + 8 * hk + 4 * rt, 4)
                if last:
                    a.wait(lg=('f', hk, rt))
                z = (kc == 0 and hk == 0)
                a.e(f'v_mfma_f32_16x16x32_bf16 {vr(AS + 4 * rt, 4)}, {f}, {f}, {"0" if z else vr(AS + 4 * rt, 4)}')
                a.e(f'v_mfma_f32_16x16x32_bf16 {vr(AM + 4 * rt, 4)}, {f}, {vr(ONE, 4)}, {"0" if z else vr(AM + 4 * rt, 4)}')

    mainloop(True, reads_s, mfmas_s)
    a.e('s_lshr_b32 s6, s55, 5')
    stats_finalize(a, AS, AM, 2, 12, 64, MR - RS, 'rs_mr')
    a.wait(lg='all')
    a.stamp('p0end')
    a.e('s_barrier')
    a.e(f's_branch {Lj0}')

    a.label(Lcol)
    a.restore(st0)
    AC, ONE, FC = 24, 44, 48
    for r in range(4):
        a.e(f'v_mov_b32 v{ONE + r}, 0x3f803f80')

    def reads_k(kc, sb):
        a.e(f'v_add_u32 v248, {sb + 8192}, v{vF0}')
        a.e(f'v_add_u32 v249, {sb + 8192}, v{vF1}')
        for hk in range(2):
            for ct in range(5):
                a.lds(f'ds_read_b128 {vr(FC + 40 * (kc % 2) + 20 * hk + 4 * ct, 4)}, v{248 + hk} offset:{ct * 2048}', ('f', hk, ct))

    def mfmas_k(kc, last):
        for hk in range(2):
            for ct in range(5):
                if last:
                    a.wait(lg=('f', hk, ct))
                c = '0' if (kc == 0 and hk == 0) else vr(AC + 4 * ct, 4)
                a.e(f'v_mfma_f32_16x16x32_bf16 {vr(AC + 4 * ct, 4)}, {vr(ONE, 4)}, {vr(FC + 40 * (kc % 2) + 20 * hk + 4 * ct, 4)}, {c}')

    mainloop(False, reads_k, mfmas_k)
    a.e('v_lshlrev_b32 v12, 2, v8')
    for ct in range(5):
        a.lds(f'ds_write_b32 v12, v{AC + 4 * ct} offset:{CS + ct * 64}')
    a.wait(lg='all')
    a.stamp('p0end')
    a.e('s_barrier')
    a.e(f's_and_b32 s6, s{sG}, 7')
    a.e('s_lshl_b32 s6, s6, 11')
    a.e(f's_add_u32 s7, s6, {W1L}')
    a.e(f'v_add_u32 v248, s7, v{vF0}')
    a.e(f'v_add_u32 v249, s7, v{vF1}')
    a.lds('ds_read_b128 v[16:19], v248', 'ws')
    a.lds('ds_read_b128 v[20:23], v249', 'ws')
    a.e(f's_lshl_b32 s7, s{sC}, 14')
    a.e('s_add_u32 s6, s6, s7')
    a.e(f's_add_u32 s6, s6, 0x{W1S:x}')
    a.e(f's_cmp_lt_u32 s{sG}, 8')
    a.e(f's_cselect_b32 s6, s6, 0x{OOB:x}')
    a.e('s_mov_b32 s98, 0x05040100')
    a.e('s_mov_b32 s99, 0x07060302')
    a.wait(lg='ws')
    for half in range(2):
        for d in range(4):
            a.e(f'v_perm_b32 v{24 + 4 * half + d}, v{16 + 2 * d + 1}, v{16 + 2 * d}, s{98 + half}')
        a.e(f'buffer_store_dwordx4 {vr(24 + 4 * half, 4)}, v2, {sr(sWS, 4)}, s6 offen offset:{half * 1024} sc1')
    a.label(Lj0)
    a.e('s_nop 1')
    a.restore(stC)
    v_out_addr(a)
    a.e(f's_lshl_b32 s67, s{sC}, 10')
    pW = (253, 67, PH_W, 32, 13)
    side('tws')
    poll_issue(a, *pW)
    a.wait(lg='all')
    a.e('s_barrier')
    a.stamp('p0vt')
    v_out(a, 0, VT0, 88)
    def w1load(f):
        a.e(f's_add_u32 s64, s{sW1B}, {(f // 4) * 4096}')
        a.vmem(f'buffer_load_dwordx4 {vr(w1reg(f), 4)}, v2, {sr(sWS, 4)}, s64 offen offset:{(f % 4) * 1024}{WSC}', ('w1', f))

    def w2load(f):
        a.e(f's_add_u32 s64, s{sW2O}, {(f // 4) * 4096}')
        if f >= 30:
            a.e(f's_cmp_ge_u32 s{sWAVE}, 6')
            a.e(f's_cselect_b32 s64, 0x{OOB:x}, s64')
        a.vmem(f'buffer_load_dwordx4 {vr(w2reg(f), 4)}, v2, {sr(sWS, 4)}, s64 offen offset:{(f % 4) * 1024}{WSC}', ('w2', f))

    def stash(n):
        a.e(f's_mul_i32 s64, s{sWAVE}, 7168')
        a.e(f's_add_u32 m0, s64, {n * 1024}')
        a.e(f's_add_u32 s64, s{sW2O}, {(NE2 + n) * 1024}')
        a.vmem(f'buffer_load_dwordx4 v2, {sr(sWS, 4)}, s64 offen{WSC} lds', 'stash')

    def unstash():
        a.wait(vm='stash')
        a.e(f's_mul_i32 s64, s{sWAVE}, 7168')
        a.e('v_add_u32 v0, s64, v2')
        for n in range(7):
            a.lds(f'ds_read_b128 {vr(w2reg(NE2 + n), 4)}, v0 offset:{n * 1024}', 'unst')

    def hreg(hf, s, rt):
        return HRING[(hf * 14 + s * 2 + rt) % 12]

    def hload(l, hf, s):
        a.e(f's_add_u32 s64, s{sHK}, 0x{HB[l] + s * 4096:x}')
        if s == 6:
            a.e(f's_cmp_ge_u32 s{sWAVE}, 6')
            a.e(f's_cselect_b32 s64, 0x{OOB:x}, s64')
        for rt in range(2):
            a.vmem(f'buffer_load_dwordx4 {vr(hreg(hf, s, rt), 4)}, v3, {sr(sWS, 4)}, s64 offen offset:{hf * 512 + rt * 256} sc1', ('h', hf, s))

    WSC = ' sc1'

    def a2_pre(l, xm, xe):
        a.e('v_bfe_u32 v11, v1, 2, 1')
        a.e('v_and_b32 v12, 1, v1')
        a.e('v_lshlrev_b32 v12, 4, v12')
        a.e('v_mov_b32 v13, 0x3f80')
        a.e('v_lshlrev_b32 v12, v12, v13')
        a.e('v_cmp_eq_u32 vcc, v11, v4')
        a.e('v_cndmask_b32 v12, 0, v12, vcc')
        a.e('v_bfe_u32 v13, v1, 1, 1')
        a.e('v_bfe_u32 v11, v1, 3, 2')
        a.e('v_lshl_add_u32 v13, v11, 1, v13')
        for r in range(8):
            a.e(f'v_cmp_eq_u32 vcc, {r}, v13')
            a.e(f'v_cndmask_b32 v{ID + r}, 0, v12, vcc')
        dest_row(5)
        a.e(f's_mul_i32 s6, s{sC}, 10')
        a.e(f's_lshl_b32 s7, s{sKT}, 2')
        a.e('s_add_u32 s6, s6, s7')
        a.e(f's_mul_i32 s7, s{sMIR}, 5')
        a.e('s_add_u32 s6, s6, s7')
        a.e('s_lshl_b32 s6, s6, 9')
        a.e('v_lshrrev_b32 v11, 5, v5')
        a.e('v_mul_u32_u24 v11, 40960, v11')
        a.e('v_and_b32 v5, 31, v5')
        a.e('v_lshl_add_u32 v5, v5, 4, v11')
        a.e('v_lshl_add_u32 v5, v4, 9, v5')
        a.e('v_add_u32 v5, s6, v5')
        a.e(f'v_add_u32 v6, {R1}, v5')
        a.e('s_cmp_eq_u32 s6, 2560')
        a.e('s_cselect_b32 s6, 0xffff, 0')
        a.e('v_mov_b32 v12, s6')
        a.e('v_cmp_eq_u32 vcc, 0, v4')
        a.e('v_cndmask_b32 v12, 0, v12, vcc')
        a.e('v_bfe_u32 v13, v1, 2, 2')
        a.e('v_lshl_add_u32 v13, v4, 3, v13')
        a.e('v_mul_u32_u24 v13, 192, v13')
        a.e('v_bfe_u32 v11, v1, 4, 1')
        a.e('v_lshlrev_b32 v11, 1, v11')
        a.e('v_and_b32 v7, 1, v1')
        a.e(f's_lshl_b32 s7, s{sKT}, 2')
        a.e('v_add3_u32 v11, v11, v7, s7')
        a.e('v_min_u32 v11, 4, v11')
        a.e('v_lshl_add_u32 v13, v11, 4, v13')
        a.e('v_bfe_u32 v11, v1, 1, 1')
        a.e('v_lshl_add_u32 v13, v11, 3, v13')
        a.e(f's_mul_i32 s6, s{sRHO}, 6144')
        a.e(f's_add_u32 s6, s6, {VS}')
        a.e('v_add_u32 v13, s6, v13')
        a.wait(vm='xr')
        Lr, Lj = a.newlab('Lxr'), a.newlab('Lxj')
        a.e('v_mov_b32 v11, 0xffff')
        a.e(f's_cmp_eq_u32 s{sMIR}, 1')
        a.e(f's_cbranch_scc1 {Lr}')
        for k in range(2):
            m, o = xm + 4 * k, XR + 4 * k
            a.e(f'v_bfi_b32 v{o}, v11, v{xe + k}, v{m}')
            for d in range(1, 4):
                a.e(f'v_mov_b32 v{o + d}, v{m + d}')
        a.e(f's_branch {Lj}')
        a.label(Lr)
        for k in range(2):
            m, o = xm + 4 * k, XR + 4 * k
            a.e(f'v_bfi_b32 v{o}, v11, v{xe + k}, v{m + 3}')
            a.e(f'v_bfi_b32 v{o + 1}, v11, v{m + 3}, v{m + 2}')
            a.e(f'v_bfi_b32 v{o + 2}, v11, v{m + 2}, v{m + 1}')
            a.e(f'v_bfi_b32 v{o + 3}, v11, v{m + 1}, v{m}')
        a.label(Lj)
        a.e('s_nop 1')
        a.e(f'v_mfma_f32_32x32x16_bf16 {vr(Y, 16)}, {vr(ID, 4)}, {vr(XR, 4)}, 0')
        a.e(f'v_mfma_f32_32x32x16_bf16 {vr(Y, 16)}, {vr(ID + 4, 4)}, {vr(XR + 4, 4)}, {vr(Y, 16)}')

    def tw_loads():
        a.e(f's_lshl_b32 s6, s{sRHO}, 12')
        a.e('s_add_u32 s6, s6, s101')
        a.e(f's_add_u32 s6, s6, 0x{TWP:x}')
        for ks in range(4):
            a.vmem(f'buffer_load_dwordx4 {vr(TW + 4 * ks, 4)}, v2, {sr(sWS, 4)}, s6 offen offset:{ks * 1024}', 'tw')

    def reduce_item(l, hf, base):
        SUM, RB = ACCB, ACCB + 8
        a.e(f'v_add_u32 v12, {base}, v11')
        a.e(f'v_add_u32 v13, {base + 4 * 10240}, v11')
        rs = RES + 6 * hf
        for p in range(4):
            for h in range(2):
                a.lds(f'ds_read_b128 {vr(RB + 8 * p + 4 * h, 4)}, v12 offset:{p * 10240 + h * 256}', ('p', p))
        a.e('v_mov_b32 v0, 0xffff0000')
        Lr, Lj = a.newlab('Lrr'), a.newlab('Lrj')
        a.e(f'v_lshlrev_b32 v{SUM}, 16, v{rs + 4}')
        a.e(f's_cmp_ge_u32 s{sC}, 4')
        a.e(f's_cbranch_scc1 {Lr}')
        for rev in range(2):
            for e in range(1, 8):
                s = 8 - e if rev else e
                if s % 2 == 0:
                    a.e(f'v_lshlrev_b32 v{SUM + e}, 16, v{rs + s // 2}')
                else:
                    a.e(f'v_and_b32 v{SUM + e}, v0, v{rs + s // 2}')
            if rev == 0:
                a.e(f's_branch {Lj}')
                a.label(Lr)
        a.label(Lj)
        for p in range(8):
            a.wait(lg=('p', p))
            for r in range(8):
                a.e(f'v_add_f32 v{SUM + r}, v{SUM + r}, v{RB + 8 * (p % 4) + r}')
            if p < 4:
                for h in range(2):
                    a.lds(f'ds_read_b128 {vr(RB + 8 * p + 4 * h, 4)}, v13 offset:{p * 10240 + h * 256}', ('p', p + 4))
        for r in range(4):
            a.e(f'v_cvt_pk_bf16_f32 v{rs + r}, v{SUM + 2 * r}, v{SUM + 2 * r + 1}')
        if l == 0:
            a.e(f's_add_u32 s64, s{sGCM}, 0x{X2B + hf * 40960:x}')
            a.vmem(f'buffer_store_dwordx4 {vr(rs, 4)}, v7, {sr(sWS, 4)}, s64 offen sc1', 'xst')
        else:
            a.e(f's_mul_i32 s64, s{sG if hf == 0 else sTAU1}, 1280')
            a.vmem(f'buffer_store_dwordx4 {vr(rs, 4)}, v7, {sr(sOUT, 4)}, s64 offen', 'xst')

    bg = BG()
    a2_pre(0, XM0, XE0)
    poll_check(a, *pW)
    a.stamp('pollW')
    for f in range(40):
        bg.add(lambda f=f: w1load(f))
    n0 = len(a.vm)
    bg.run(OPT.get('bgw', 4))
    a.e(f's_waitcnt vmcnt({len(a.vm) - n0})')
    del a.vm[:n0]
    a.e('s_barrier')
    a.stamp('PV0')
    setflag_w0(a, PH_V[0], 7)
    tw_loads()
    CP = 76
    a.e('s_movk_i32 s7, 6912')
    a.e('v_lshlrev_b32 v7, 2, v10')
    a.e('v_mad_u32_u24 v7, v4, s7, v7')
    a.e(f's_lshl_b32 s6, s{sTILE}, 7')
    a.e(f's_add_u32 s6, s6, 0x{CSP:x}')
    for n in range(10):
        a.e(f's_add_u32 s7, s6, {n * 2 * 6912}')
        a.vmem(f'buffer_load_dword v{CP + n}, v7, {sr(sWS, 4)}, s7 offen sc1', 'cs')
    bg.run(OPT.get('bgpv', 8))
    a.wait(vm='cs')
    for n in range(1, 10):
        a.e(f'v_add_f32 v{CP}, v{CP}, v{CP + n}')
    a.e(f'v_mov_b32 v15, v{CP}')
    a.e(f'v_permlane32_swap_b32 v{CP}, v15')
    a.e(f'v_add_f32 v15, v{CP}, v15')

    def lin5(sbase_lds, lds_add, ssrc, src_add, tag, track=True):
        em = (lambda t: a.vmem(t, tag)) if track else a.e
        a.e(f's_add_u32 m0, s{sbase_lds}, {lds_add}')
        a.e(f's_add_u32 s64, s{ssrc}, 0x{src_add:x}')
        for n in range(4):
            em(f'buffer_load_dwordx4 v2, {sr(sWS, 4)}, s64 offen offset:{n * 1024} sc1 lds')
        a.e(f's_add_u32 m0, s{sbase_lds}, {lds_add + 4096}')
        a.e(f's_add_u32 s64, s{ssrc}, 0x{src_add + 4096:x}')
        em(f'buffer_load_dwordx4 v2, {sr(sWS, 4)}, s64 offen sc1 lds')

    def img_addr():
        a.e('v_lshlrev_b32 v5, 4, v8')
        a.e('v_lshl_add_u32 v5, v9, 9, v5')
        a.e(f'v_add_u32 v5, {R1}, v5')
        a.e('v_add_u32 v6, 40960, v5')

    a.e(f's_mul_i32 s68, s{sWAVE}, 5120')
    for l in range(2):
        a.e(f's_lshl_b32 s67, s{sWAVE}, 15')
        a.e(f's_lshl_b32 s6, s{sC}, 10')
        a.e('s_add_u32 s67, s67, s6')
        poll(a, 7, 67, PH_V[l], 4, 13)
        a.stamp(f'pollV{l}')
        a.e(f's_mul_i32 s63, s{sWAVE}, 768')
        a.e('s_mov_b32 exec_hi, 0xffff')
        for rho in range(2):
            a.e(f's_lshl_b32 s6, s{sG if rho == 0 else sTAU1}, 3')
            a.e(f's_add_u32 s6, s6, s{sC}')
            a.e('s_mulk_i32 s6, 6144')
            a.e('s_add_u32 s6, s6, s63')
            a.e(f's_add_u32 s6, s6, 0x{VB[l]:x}')
            a.e(f's_add_u32 m0, s63, {VS + rho * 6144}')
            a.vmem(f'buffer_load_dwordx4 v2, {sr(sWS, 4)}, s6 offen sc1 lds', 'v')
        a.e('s_mov_b64 exec, -1')
        bg.run(OPT.get('bgv', 2))
        a.wait(vm='v')
        a.e('s_barrier')
        a.stamp(f'V{l}')
        for ks in range(4):
            for rd in range(2):
                a.lds(f'ds_read_b64_tr_b16 {vr(VF + 4 * ks + 2 * rd, 2)}, v13 offset:{(16 * (ks % 2) + 4 * rd) * 192 + (ks // 2) * 80}', ('vf', ks))
        for ks in range(4):
            a.wait(lg=('vf', ks))
            a.e(f'v_mfma_f32_32x32x16_bf16 {vr(Y, 16)}, {vr(VF + 4 * ks, 4)}, {vr(TW + 4 * ks, 4)}, {vr(Y, 16)}')
        a.e(f's_add_u32 s63, s{sGCM}, 0x{X1B[l]:x}')
        a.e(f's_cmp_eq_u32 s{sKT}, 0')
        a.e('s_cselect_b32 s70, -1, 0')
        a.e(f's_cselect_b32 s71, s63, 0x{OOB:x}')
        for r in range(8):
            a.e(f'v_cvt_pk_bf16_f32 v{PK + r}, v{Y + 2 * r}, v{Y + 2 * r + 1}')
        a.e(f'v_bfi_b32 v{PK}, v12, v{XR}, v{PK}')
        a.vmem(f'buffer_store_dwordx4 {vr(PK + 4, 4)}, v5, {sr(sWS, 4)}, s71 offen offset:1024 sc1', 'x1s')
        a.e('s_mov_b32 exec_hi, s70')
        a.vmem(f'buffer_store_dwordx4 {vr(PK, 4)}, v5, {sr(sWS, 4)}, s63 offen sc1', 'x1s')
        a.lds(f'ds_write_b128 v6, {vr(PK, 4)}', 'x1w')
        a.e('s_mov_b32 exec_lo, s70')
        a.lds(f'ds_write_b128 v6, {vr(PK + 4, 4)} offset:1024', 'x1w')
        a.e('s_mov_b64 exec, -1')
        early = [lambda f=f: w2load(f) for f in range(NE2)]
        early += [lambda n=n: stash(n) for n in range(NST)]
        for f in early:
            bg.add(f)
        bg.run(OPT.get('bgx0', 3))
        a.wait(vm='x1s')
        a.e('s_barrier')
        a.stamp(f'X1s{l}')
        setflag_w0(a, PH_X1[l], 7)
        bg.run(OPT.get('bgx1', 3))
        poll(a, 7, sFSRC, PH_X1[l], 1)
        a.stamp(f'pollX1{l}')
        a.e('s_add_u32 s66, s63, s68')
        a.e(f's_cmp_eq_u32 s{sWAVE}, s{sC}')
        a.e(f's_cselect_b32 s66, 0x{OOB:x}, s66')
        a.e(f's_cselect_b32 s67, 0x18000, s68')
        lin5(67, R1, 66, 0, ('x1', 0))
        lin5(67, R1 + 40960, 66, 40960, ('x1', 1))
        a.e(f's_lshl_b32 s6, s{sWAVE}, 7')
        a.e(f's_add_u32 s6, s6, {CSS}')
        a.e('v_lshl_add_u32 v7, v10, 2, s6')
        a.lds('ds_write_b32 v7, v15', 'csw')
        img_addr()
        a.e(f's_lshl_b32 s65, s{sTILE}, 12')
        a.e(f's_add_u32 s65, s65, s{sHG}')
        a.e(f's_add_u32 s65, s65, 0x{HB[l]:x}')
        bg.run(OPT.get('bgx2', 2))
        a.wait(vm=('x1', 0), lg='all')
        a.e('s_barrier')
        a.stamp(f'B1{l}')
        Lstat, Lidle, Ljoin = a.newlab('Lstat'), a.newlab('Lidle'), a.newlab('Ljoin')
        a.e(f's_cmp_eq_u32 s{sWAVE}, 7')
        a.e(f's_cbranch_scc1 {Lstat}')
        a.e(f's_cmp_ge_u32 s{sWAVE}, s{sNTILE}')
        a.e(f's_cbranch_scc1 {Lidle}')
        st0 = a.save()
        q0 = list(bg.q)
        q0e = [f for f in q0 if f in early]
        late2 = list(range(NE2 + NST, 35))
        NB = OPT.get('nb', 12)

        def xread(hf, order, n):
            ks = order[n]
            for rt in range(2):
                a.lds(f'ds_read_b128 {vr(XF + 8 * (n % 3) + 4 * rt, 4)}, v{5 + hf} offset:{ks * 2048 + rt * 256}', ('xf', n))

        def gemm(hf, order, hook):
            for n in range(20):
                ks = order[n]
                if n % 5 == 0:
                    prio(a, 3 - n // 5)
                if n + 2 < 20:
                    xread(hf, order, n + 2)
                a.wait(vm=[('w1', 2 * ks), ('w1', 2 * ks + 1)], lg=('xf', n))
                for rt in range(2):
                    for ab in range(2):
                        ac = vr(ACCX + 8 * rt + 4 * ab, 4)
                        c = '0' if n == 0 else ac
                        a.e(f'v_mfma_f32_16x16x32_bf16 {ac}, {vr(w1reg(2 * ks + ab), 4)}, {vr(XF + 8 * (n % 3) + 4 * rt, 4)}, {c}')
                hook(n)

        def epi_pre():
            a.e(f's_lshl_b32 s6, s{sWAVE}, 7')
            a.e(f's_add_u32 s6, s6, {CSS}')
            a.e('v_lshl_add_u32 v7, v9, 5, s6')
            for h in range(2):
                a.lds(f'ds_read_b128 {vr(CS8 + 4 * h, 4)}, v7 offset:{h * 16}', 'csr')
            a.e('v_lshlrev_b32 v7, 2, v8')
            a.e(f'v_add_u32 v7, {STATS}, v7')

        def epilogue(hf, after_reads=None):
            STR = (0, 11, 12, 7)
            prio(a, 3)
            a.lds(f'ds_read_b32 v0, v7 offset:{hf * 128}', 'st')
            a.lds(f'ds_read_b32 v11, v7 offset:{hf * 128 + 64}', 'st')
            a.lds(f'ds_read_b32 v12, v7 offset:{256 + hf * 128}', 'st')
            a.lds(f'ds_read_b32 v7, v7 offset:{256 + hf * 128 + 64}', 'st')
            if after_reads:
                after_reads()
            a.wait(lg='st')
            for rt in range(2):
                ac = ACCX + 8 * rt
                for r in range(8):
                    a.e(f'v_fma_f32 v{ac + r}, -v{STR[rt]}, v{CS8 + r}, v{ac + r}')
                for r in range(8):
                    a.e(f'v_mul_f32 v{ac + r}, v{ac + r}, v{STR[2 + rt]}')
                for r in range(4):
                    a.e(f'v_cvt_pk_bf16_f32 v{ac + r}, v{ac + 2 * r}, v{ac + 2 * r + 1}')
                for r in range(4):
                    a.e(f'v_pk_max_i16 v{ac + r}, v{ac + r}, 0')
                a.vmem(f'buffer_store_dwordx4 {vr(ac, 4)}, v3, {sr(sWS, 4)}, s65 offen offset:{hf * 512 + rt * 256} sc1', 'hst')

        total = len(bg.q)
        NA_END = OPT.get('naend', 15)

        def hookA(n):
            done = total - len(bg.q)
            want = -(-total * (n + 1) // NA_END)
            bg.run(max(0, want - done))
        if l == 0:
            orderA = list(range(20))
        else:
            orderA = [8, 9, 10, 11, 12, 13, 14, 15, 5, 6, 7, 16, 17, 18, 19, 0, 1, 2, 3, 4]
        orderB = list(range(20))
        xread(0, orderA, 0)
        xread(0, orderA, 1)
        gemm(0, orderA, hookA)
        epi_pre()
        bg.run()
        a.wait(vm=('x1', 1))
        a.stamp(f'gAend{l}')
        a.e('s_barrier')
        a.stamp(f'GA{l}')
        epilogue(0, lambda: (xread(1, orderB, 0), xread(1, orderB, 1)))
        a.stamp(f'epA{l}')

        def to_storage(r, t):
            a.e(f'v_mul_u32_u24 v{t}, 13108, v{r}')
            a.e(f'v_lshrrev_b32 v{t}, 16, v{t}')
            a.e(f'v_mad_u32_u24 v{r}, v{t}, 5, v{r}')
            a.e(f'v_subrev_u32 v{t}, 75, v{r}')
            a.e(f'v_cmp_le_u32 vcc, 80, v{r}')
            a.e(f'v_cndmask_b32 v{r}, v{r}, v{t}, vcc')
            a.e(f'v_lshlrev_b32 v{r}, 9, v{r}')
            a.e(f'v_lshl_add_u32 v{r}, v10, 4, v{r}')
            a.e(f'v_add_u32 v{r}, {R1}, v{r}')

        def res_reads():
            a.e(f's_min_u32 s6, s{sWAVE}, 4')
            a.e('s_lshl_b32 s6, s6, 1')
            a.e(f's_mul_i32 s7, s{sC}, 10')
            a.e('s_add_u32 s6, s6, s7')
            a.e('v_add_u32 v11, s6, v4')
            a.e(f's_cmp_ge_u32 s{sC}, 4')
            a.e('s_cselect_b64 s[70:71], -1, 0')
            a.e('v_sub_u32 v12, 120, v11')
            a.e('v_cmp_eq_u32 vcc, 80, v12')
            a.e('v_cndmask_b32 v12, v12, 0, vcc')
            a.e('v_mov_b32 v7, 40')
            a.e('v_cmp_eq_u32 vcc, 0, v11')
            a.e('v_cndmask_b32 v7, v11, v7, vcc')
            a.e('v_cndmask_b32 v12, v7, v12, s[70:71]')
            a.e('v_sub_u32 v7, 119, v11')
            a.e('v_cndmask_b32 v11, v11, v7, s[70:71]')
            to_storage(11, 7)
            to_storage(12, 7)
            for hf in range(2):
                a.lds(f'ds_read_b128 {vr(RES + 6 * hf, 4)}, v11 offset:{hf * 40960}', 'res')
                a.lds(f'ds_read_u16 v{RES + 6 * hf + 4}, v12 offset:{hf * 40960}', 'res')

        pA = (13, sFSRC, PH_HA[l], 7)
        pB = (13, sFSRC, PH_HB[l], 7)
        NFL, NPI, NPC = OPT.get('nfl', 4), OPT.get('npi', 12), OPT.get('npc', 15)
        NHA = OPT.get('nha', 5)

        def commonB(n):
            if 6 <= n < 6 + NB:
                w2load(late2[n - 6])
            if n == NPI:
                a.stamp(f'piA{l}')
                poll_issue(a, *pA)
            if n == NPC:
                a.stamp(f'pcA{l}')
                poll_check(a, *pA)
                a.stamp(f'pollA{l}')
            if NPC <= n < NPC + NHA:
                hload(l, 0, n - NPC)

        def hookB(n):
            if n == NFL:
                a.stamp(f'preackA{l}')
                a.wait(vm='hst')
                a.stamp(f'ackA{l}')
                setflag(a, PH_HA[l], 12)
            if n == 17:
                res_reads()
            commonB(n)

        gemm(1, orderB, hookB)
        epi_pre()
        unstash()
        a.stamp(f'gBend{l}')
        a.wait(lg='all')
        a.e('s_barrier')
        a.stamp(f'GB{l}')
        epilogue(1)
        stG = a.save()
        a.e(f's_branch {Ljoin}')

        a.label(Lidle)
        a.restore(st0)
        setflag(a, PH_HA[l], 12)
        for f in q0e:
            f()
        a.wait(vm=('x1', 1))
        a.e('s_barrier')
        for n in range(20):
            if n == NPI:
                a.e('s_sleep 30')
            commonB(n)
        unstash()
        a.wait(lg='all')
        a.e('s_barrier')
        stI = a.save()
        a.e(f's_branch {Ljoin}')

        a.label(Lstat)
        a.restore(st0)
        AS, AM, ONE, FS = 16, 24, 216, 32
        assert ('w1', 30) not in a.vm
        for r in range(4):
            a.e(f'v_mov_b32 v{ONE + r}, 0x3f803f80')
        for hf in range(2):
            q = list(q0e) if hf == 0 else []

            def sread(ks):
                for rt in range(2):
                    a.lds(f'ds_read_b128 {vr(FS + 8 * (ks % 3) + 4 * rt, 4)}, v{5 + hf} offset:{ks * 2048 + rt * 256}', ('sf', ks))
            sread(0)
            sread(1)
            for ks in range(20):
                if ks % 5 == 0:
                    prio(a, 3 - ks // 5)
                if ks + 2 < 20:
                    sread(ks + 2)
                a.wait(lg=('sf', ks))
                for rt in range(2):
                    f = vr(FS + 8 * (ks % 3) + 4 * rt, 4)
                    a.e(f'v_mfma_f32_16x16x32_bf16 {vr(AS + 4 * rt, 4)}, {f}, {f}, {"0" if ks == 0 else vr(AS + 4 * rt, 4)}')
                    a.e(f'v_mfma_f32_16x16x32_bf16 {vr(AM + 4 * rt, 4)}, {f}, {vr(ONE, 4)}, {"0" if ks == 0 else vr(AM + 4 * rt, 4)}')
                if q:
                    q.pop(0)()
                if hf == 1:
                    commonB(ks)
            prio(a, 3)
            a.e(f's_mov_b32 s6, {STATS + hf * 128}')
            stats_finalize(a, AS, AM, 2, 11, 64, 256, 'm_rs')
            assert not q
            if hf == 0:
                a.wait(vm=('x1', 1))
            else:
                unstash()
            a.wait(lg='all')
            a.e('s_barrier')
        stS = a.save()
        a.label(Ljoin)
        a.e('s_nop 1')
        merge(a, stS, stG, stI)
        a.stamp(f'join{l}')
        a.forget('w1', 'stash', 'xr', 'tw', 'v', 'x1')

        young = {'n': 0}
        orig_vmem = a.vmem

        def vmem_cnt(s, tag=None):
            young['n'] += 1
            orig_vmem(s, tag)

        def ack_and_flag(slot):
            a.stamp(f'preack{slot}')
            a.e(f's_waitcnt vmcnt({young["n"]})')
            a.stamp(f'ack{slot}')
            del a.vm[:max(0, len(a.vm) - young['n'])]
            a.vmem = orig_vmem
            setflag(a, slot, 12)

        def b2mfma(hf, hook):
            for s in range(7):
                if s % 2 == 0:
                    prio(a, 3 - s // 2)
                a.wait(vm=[('h', hf, s)] + [('w2', 5 * s + k) for k in range(5) if not NE2 <= 5 * s + k < NE2 + NST])
                for rt in range(2):
                    for ft in range(5):
                        ac = vr(ACCB + 4 * (rt * 5 + ft), 4)
                        c = '0' if s == 0 else ac
                        a.e(f'v_mfma_f32_16x16x32_bf16 {ac}, {vr(w2reg(5 * s + ft), 4)}, {vr(hreg(hf, s, rt), 4)}, {c}')
                hook(s)
            prio(a, 3)

        def write_partials(base):
            a.e(f's_lshl_b32 s6, s68, 1')
            a.e(f's_add_u32 s6, s6, {base}')
            a.e('v_add_u32 v12, s6, v2')
            for t in range(10):
                a.lds(f'ds_write_b128 v12, {vr(ACCB + 4 * t, 4)} offset:{t * 1024}', 'pw')

        young['n'] = 0
        a.vmem = vmem_cnt
        rem = BG()
        for s in range(7):
            if s >= NHA:
                rem.add(lambda s=s: hload(l, 0, s))
            for f in late2[NB:]:
                if f // 5 == s:
                    rem.add(lambda f=f: w2load(f))
        rem.run(OPT.get('nr0', 1))

        def hookB2A(s):
            if s == OPT.get('sfl', 1):
                ack_and_flag(PH_HB[l])
                rem.run()
            if s == OPT.get('spb', 5):
                poll_issue(a, *pB)
        b2mfma(0, hookB2A)
        a.stamp(f'b2A{l}')
        a.e('v_lshrrev_b32 v11, 4, v10')
        a.e('v_mul_u32_u24 v11, 5120, v11')
        a.e('v_lshl_add_u32 v11, v4, 9, v11')
        a.e('v_lshl_add_u32 v11, v8, 4, v11')
        a.e(f's_lshl_b32 s6, s{sWAVE}, 10')
        a.e('v_add_u32 v11, s6, v11')
        a.e(f's_lshl_b32 s6, s{sWAVE}, 1')
        a.e(f's_mul_i32 s7, s{sC}, 10')
        a.e('s_add_u32 s6, s6, s7')
        a.e('v_add_u32 v7, s6, v4')
        if l == 0:
            a.e('v_lshlrev_b32 v7, 9, v7')
            a.e('v_lshl_add_u32 v7, v10, 4, v7')
        else:
            a.e('v_lshlrev_b32 v7, 4, v7')
            a.e(f's_mov_b32 s7, {64 * 1280}')
            a.e('v_mad_u32_u24 v7, v10, s7, v7')
        write_partials(R1)
        poll_check(a, *pB)
        a.stamp(f'pollB{l}')
        for s in range(6):
            hload(l, 1, s)
        a.wait(lg='all')
        a.e('s_barrier')
        a.stamp(f'PA{l}')
        Lnr = a.newlab('Lnr')
        a.e(f's_cmp_ge_u32 s{sWAVE}, 5')
        a.e(f's_cbranch_scc1 {Lnr}')
        st = a.save()
        reduce_item(l, 0, R1)
        a.restore(st)
        a.label(Lnr)
        a.e('s_nop 1')
        pXA = (6, sFSRC, PH_XA, 5)
        if l == 0:
            young['n'] = 0
            a.vmem = vmem_cnt
            a.e(f's_mul_i32 s66, s{sC}, 5')
            a.e(f's_add_u32 s66, s66, s{sWAVE}')
            a.e('s_mul_i32 s66, s66, 20480')
            a.e(f's_add_u32 s66, s66, 0x{DPF:x}')
            a.e(f's_cmp_ge_u32 s{sWAVE}, 5')
            a.e(f's_cselect_b32 s66, 0x{OOB:x}, s66')

        def hookB2(s):
            if s == 0:
                hload(l, 1, 6)
            if l == 0:
                if s == 1:
                    ack_and_flag(PH_XA)
                rel = {1: range(0, 5), 2: range(5, 10), 3: range(10, 15), 4: range(15, 20)}
                for ks in rel.get(s, ()):
                    a.e(f's_add_u32 s64, s66, {(ks // 4) * 4096}')
                    a.vmem(f'buffer_load_dwordx4 {vr(dreg(ks), 4)}, v2, {sr(sWS, 4)}, s64 offen offset:{(ks % 4) * 1024} sc1', ('d', ks))
                if s == 6:
                    poll_issue(a, *pXA)
        a.stamp(f'redA{l}')
        b2mfma(1, hookB2)
        a.stamp(f'b2B{l}')
        a.forget('w2', 'h')
        write_partials(0)
        a.wait(lg='all')
        a.e('s_barrier')
        a.stamp(f'PB{l}')
        if l == 1:
            a.e(f's_cmp_ge_u32 s{sWAVE}, 5')
            a.e(f's_cbranch_scc1 {end}_a')
            reduce_item(l, 1, 0)
            a.label(end + '_a')
            a.stamp_dump(2, sWS, sWAVE, 15)
            break

        poll_check(a, *pXA)
        a.e(f's_add_u32 s66, s{sGCM}, s68')
        lin5(68, R1, 66, X2B, ('x2', 0))
        Lnr = a.newlab('Lnr')
        a.e(f's_cmp_ge_u32 s{sWAVE}, 5')
        a.e(f's_cbranch_scc1 {Lnr}')
        st = a.save()
        reduce_item(l, 1, 0)
        a.restore(st)
        a.label(Lnr)
        a.e('s_nop 1')
        img_addr()
        a.e('s_waitcnt vmcnt(1)')
        a.e(f's_cmp_ge_u32 s{sWAVE}, 5')
        Lq = a.newlab('Lq')
        a.e(f's_cbranch_scc0 {Lq}')
        a.e('s_waitcnt vmcnt(0)')
        a.label(Lq)
        a.vm.clear()
        a.e('s_barrier')
        a.stamp('XA')
        young['n'] = 0
        a.vmem = vmem_cnt
        a.e(f's_lshl_b32 s6, s{sWAVE}, 11')
        a.e(f's_add_u32 m0, s6, {W1SL}')
        a.e(f's_lshl_b32 s7, s{sC}, 14')
        a.e('s_add_u32 s6, s6, s7')
        a.e(f's_add_u32 s6, s6, 0x{W1S:x}')
        for n in range(2):
            a.vmem(f'buffer_load_dwordx4 v2, {sr(sWS, 4)}, s6 offen offset:{n * 1024} sc1 lds', 'w1s')
        ack_and_flag(PH_XB)
        a.vm.pop()
        a.e(f's_mul_i32 s66, s{sPG}, 81920')
        a.e('s_add_u32 s66, s66, s68')
        Lst, Lid, Lj = a.newlab('Lst'), a.newlab('Lid'), a.newlab('Lj')
        a.e(f's_cmp_eq_u32 s{sWAVE}, 7')
        a.e(f's_cbranch_scc1 {Lid}')
        a.e(f's_cmp_ge_u32 s{sWAVE}, 5')
        a.e(f's_cbranch_scc1 {Lst}')
        st0 = a.save()
        pXB = (7, sFPAR, PH_XB, 5)
        pXO = (11, sFSRC, PH_XB, 5)
        NA = OPT.get('na', 7)
        NM = OPT.get('nm', 5)
        wq = list(range(16, 33)) + [15, 10, 11]
        qA = [lambda f=f: w1load(f) for f in wq[:NA]]
        qM = wq[NA:NA + NM]
        qB = [lambda f=f: w1load(f) for f in wq[NA + NM:NA + NM + 7]]
        rest = wq[NA + NM + 7:]

        def midB():
            a.stamp('a1A')
            poll(a, *pXB)
            a.stamp('pollXB')
            lin5(68, R1 + 40960, 66, X2B + 40960, ('x2', 1))
            poll_issue(a, *pXO, tag='poll2')
            for f in qM:
                w1load(f)
            poll_check(a, *pXO, tag='poll2')
            a.wait(lg='all')
            a.e('s_barrier')
            a.stamp('XB')

        WFA, RSr, MRr = 56, 32, 120
        wf = lambda mat, tt, ks: WFA + ((mat * 4 + tt) * 2 + ks) * 4
        for hf in range(2):
            q = list((qA, qB)[hf])

            def xread1(ks):
                for rt in range(2):
                    a.lds(f'ds_read_b128 {vr(XFA + 8 * (ks % 3) + 4 * rt, 4)}, v{5 + hf} offset:{ks * 2048 + rt * 256}', ('xf', ks))
            xread1(0)
            xread1(1)
            for ks in range(20):
                if ks % 5 == 0:
                    prio(a, 3 - ks // 5)
                if ks + 2 < 20:
                    xread1(ks + 2)
                a.wait(lg=('xf', ks))
                for rt in range(2):
                    ac = vr(ACCA + 8 * hf + 4 * rt, 4)
                    a.e(f'v_mfma_f32_16x16x32_bf16 {ac}, {vr(XFA + 8 * (ks % 3) + 4 * rt, 4)}, {vr(dreg(ks), 4)}, {"0" if ks == 0 else ac}')
                if ks % 3 == 0 and q:
                    q.pop(0)()
            assert not q
            prio(a, 3)
            if hf == 0:
                midB()
        a.e(f'v_add_u32 v0, {W1SL}, v2')
        for tt in range(4):
            for ks in range(2):
                for mat in range(2):
                    a.lds(f'ds_read_b128 {vr(wf(mat, tt, ks), 4)}, v0 offset:{((mat * 4 + tt) * 2 + ks) * 1024}', 'wf')
        a.e('v_lshlrev_b32 v12, 4, v9')
        a.e(f'v_add_u32 v12, {ST1}, v12')
        a.stamp('a1B')
        a.e('s_barrier')
        a.stamp('ST')
        for rt in range(4):
            a.lds(f'ds_read_b128 {vr(RSr + 4 * rt, 4)}, v12 offset:{rt * 64}', 'st')
            a.lds(f'ds_read_b128 {vr(MRr + 4 * rt, 4)}, v12 offset:{256 + rt * 64}', 'st')
        stage1(a, ACCA, RSr, MRr, 32, 40, 120, 16, wf, R1)
        stC = a.save()
        a.e(f's_branch {Lj}')

        a.label(Lid)
        a.restore(st0)
        for f in qA:
            f()
        a.e('s_sleep 16')
        midB()
        for f in qB:
            f()
        a.e('s_barrier')
        stI = a.save()
        a.e(f's_branch {Lj}')

        a.label(Lst)
        a.restore(st0)
        AS, AM, ONE, FS = 16, 24, 32, 36
        for r in range(4):
            a.e(f'v_mov_b32 v{ONE + r}, 0x3f803f80')
        a.e(f's_sub_u32 s67, s{sWAVE}, 5')
        a.e('s_lshl_b32 s6, s67, 8')
        a.e('v_add_u32 v5, s6, v5')
        a.e('v_add_u32 v6, s6, v6')
        for hf in range(2):
            q = list((qA, qB)[hf])

            def sread(ks):
                a.lds(f'ds_read_b128 {vr(FS + 4 * (ks % 4), 4)}, v{5 + hf} offset:{ks * 2048}', ('sf', ks))
            for ks in range(3):
                sread(ks)
            for ks in range(20):
                if ks % 5 == 0:
                    prio(a, 3 - ks // 5)
                if ks + 3 < 20:
                    sread(ks + 3)
                a.wait(lg=('sf', ks))
                f = vr(FS + 4 * (ks % 4), 4)
                a.e(f'v_mfma_f32_16x16x32_bf16 {vr(AS + 4 * hf, 4)}, {f}, {f}, {"0" if ks == 0 else vr(AS + 4 * hf, 4)}')
                a.e(f'v_mfma_f32_16x16x32_bf16 {vr(AM + 4 * hf, 4)}, {f}, {vr(ONE, 4)}, {"0" if ks == 0 else vr(AM + 4 * hf, 4)}')
                if ks % 3 == 0 and q:
                    q.pop(0)()
            prio(a, 3)
            if hf == 0:
                midB()
        a.e('s_lshl_b32 s6, s67, 6')
        a.e(f's_add_u32 s6, s6, {ST1}')
        stats_finalize(a, AS, AM, 2, 11, 128, 256, 'rs_mr')
        a.wait(lg='all')
        a.e('s_barrier')
        stS = a.save()
        a.label(Lj)
        a.e('s_nop 1')
        merge(a, stS, stC, stI)
        v_out_addr(a)
        a.wait(lg='all')
        a.e('s_barrier')
        a.stamp('VT')
        v_out(a, 1, R1, 88)
        xr_loads(1, XM, XE, sWS)
        a.wait(vm='vo')
        a.e('s_barrier')
        a.stamp('PV1')
        setflag_w0(a, PH_V[1], 7)
        tw_loads()
        for f in rest + [12, 13, 14] + list(range(33, 40)) + list(range(10)):
            bg.add(lambda f=f: w1load(f))
        bg.run(OPT.get('bgpv', 8))
        a2_pre(1, XM, XE)

    a.label(end)
    a.e('s_endpgm')
    a.raw(descriptor(name, 256, 102))
    return 163840


def main():
    if len(sys.argv) > 2 and 'stamps' in sys.argv[2:]:
        Asm.STAMPS = True
    for o in sys.argv[2:]:
        if o.startswith('names='):
            Asm.ACTIVE = o[6:].split(',')
        elif '=' in o:
            k, v = o.split('=')
            OPT[k] = int(v)
    hdr = open('cdna_kernels/' + NAME + '.s.ref').read().split('\n')
    hdr = [l for l in hdr if l.startswith(';') and '@launch' not in l and 'Override launch' not in l and 'grid=ceil' not in l]
    out = '\n'.join(hdr) + '\n'
    a = Asm()
    lds = gen(a, NAME + '_kernel')
    out += f'; @launch grid=(256,1,1) block=(512,1,1) lds={lds}\n'
    if Asm.STAMPS:
        out += '; stampnames start,' + ','.join(Asm.ACTIVE) + '\n'
    out += '.amdgcn_target "amdgcn-amd-amdhsa--gfx950"\n'
    out += a.text()
    path = sys.argv[1] if len(sys.argv) > 1 else 'cdna_kernels/' + NAME + '.s'
    open(path, 'w').write(out)
    print('wrote', path, len(out))


main()
```

```python
import sys
from asmlib import *

NAME = 'interleave_layers__spectral_fnet__dense_activation_relu__prompt'
S, D, F = 2048, 640, 1728
W1F = 0
W2F = 0x220000
DPF = 0x440000
CSP = 0x510000
W1S = 0x540000
TWP = 0x560000
FLG = 0x760000
VB = [0x960000, 0xC60000]
X1B = [0xF60000, 0x11E0000]
X2B = 0x1460000
HB = [0x16E0000, 0x1DA0000]
WS_BYTES = 268435456
OOB = 0x7f000000
SPIN = 200000
OPT = {}

R1 = 81920
PRV = 10240
STATS, CSS = 9216, PRV + 9216
CNT1, CNT2 = STATS + 512, STATS + 516
XRL1, TWL1, W1SL, ST1 = 0, 12288, 20480, 36864

sWAVE, sG, sC = 3, 4, 5
P_X, P_CR, P_CI, P_DR, P_DI, P_W1, P_W2, P_OUT, P_WS = 8, 10, 12, 14, 16, 20, 22, 24, 26
sWS, sOUT, sFL = 28, 32, 36
sRHO, sKT, sMIR, sNON, sU1, sU2 = 38, 39, 40, 41, 42, 43
sGCM, sFOWN, sW1B, sHK, sW2O, sHG, sFSRC, sTAU1, sPG, sFPAR = 44, 45, 46, 47, 48, 49, 50, 51, 52, 53


class BG:
    def __init__(self):
        self.q = []

    def add(self, f):
        self.q.append(f)

    def run(self, n=None):
        n = len(self.q) if n is None else min(n, len(self.q))
        for _ in range(n):
            self.q.pop(0)()


PH_V, PH_X1, PH_H, PH_XA, PH_XB = (1, 6), (2, 7), (3, 8), 4, 5
LOC = 0x80000
sXCC = 27


def poll_issue(a, vres, soff, phase, n, shift=7, first=0, tag='poll'):
    a.e(f'v_min_u32 v{vres}, {n - 1}, v1')
    a.e(f'v_lshlrev_b32 v{vres}, {shift}, v{vres}')
    a.e(f's_add_u32 s60, s{soff}, 0x{FLG + (first << shift):x}')
    a.vmem(f'buffer_load_dword v{vres}, v{vres}, {sr(sWS, 4)}, s60 offen sc1', tag)


def poll_check(a, vres, soff, phase, n, shift=7, first=0, tag='poll'):
    L, Ld = a.newlab('Lpoll'), a.newlab('Lpd')
    a.e(f's_add_u32 s59, s{sNON}, {phase}')
    a.wait(vm=tag)
    a.e('s_mov_b32 s61, 0')
    a.label(L)
    a.e(f'v_subrev_u32 v{vres}, s59, v{vres}')
    a.e(f'v_cmp_le_u32 vcc, 16, v{vres}')
    a.e(f's_cbranch_vccz {Ld}')
    if OPT.get('abl_poll', 0) >> phase & 1:
        a.e(f's_branch {Ld}')
    if OPT.get('psleep', 2):
        a.e(f's_sleep {OPT.get("psleep", 2)}')
    st = a.save()
    poll_issue(a, vres, soff, phase, n, shift, first, tag)
    a.restore(st)
    a.e('s_waitcnt vmcnt(0)')
    a.e('s_add_u32 s61, s61, 1')
    a.e(f's_cmp_lt_u32 s61, {SPIN}')
    a.e(f's_cbranch_scc1 {L}')
    a.label(Ld)


def poll(a, vres, *args, **kw):
    poll_issue(a, vres, *args, **kw)
    poll_check(a, vres, *args, **kw)


def prio(a, p):
    if OPT.get('prio', 1):
        a.e(f's_setprio {p}')


def setflag(a, phase, vt):
    if phase is None:
        a.e('v_mov_b32 v0, 0')
    else:
        a.e(f's_add_u32 s62, s{sNON}, {phase}')
        a.e('v_mov_b32 v0, s62')
        a.e(f'v_writelane_b32 v0, s{sXCC}, 1')
    a.e(f'v_lshlrev_b32 v{vt}, 2, v1')
    a.e('s_mov_b32 exec_hi, 0')
    if phase is not None and phase not in PH_V:
        a.e(f's_add_u32 s62, s{sFOWN}, 0x{LOC:x}')
        a.vmem(f'buffer_store_dword v0, v{vt}, {sr(sWS, 4)}, s62 offen', 'flag')
    if phase is not None and phase not in PH_V and phase != PH_X1[0]:
        L = a.newlab('Lng')
        a.e('s_cmp_eq_u32 s26, 0')
        a.e(f's_cbranch_scc1 {L}')
        a.e(f'buffer_store_dword v0, v{vt}, {sr(sWS, 4)}, s{sFOWN} offen sc1')
        a.label(L)
    else:
        a.vmem(f'buffer_store_dword v0, v{vt}, {sr(sWS, 4)}, s{sFOWN} offen sc1', 'flag')
    if phase is None:
        a.e(f's_add_u32 s62, s{sFOWN}, 0x{LOC:x}')
        a.vmem(f'buffer_load_dword v254, v{vt}, {sr(sWS, 4)}, s62 offen sc1', 'flag')
    a.e('s_mov_b32 exec_hi, -1')


def setflag_w0(a, phase, vt):
    L = a.newlab('Lnf')
    a.e(f's_cmp_lg_u32 s{sWAVE}, 0')
    a.e(f's_cbranch_scc1 {L}')
    st = a.save()
    setflag(a, phase, vt)
    a.restore(st)
    a.label(L)


EXTRA = ['hst', 'flag', 'xst', 'vst', 'pst']


def merge(a, *states):
    ls = [[t for t in s[0] if t not in EXTRA and not (isinstance(t, tuple) and t[0] in EXTRA)] for s in states]
    ls.sort(key=len)
    longer = ls[-1]
    for s in ls[:-1]:
        assert longer[len(longer) - len(s):] == s, (longer, s)
    a.vm = list(longer)
    a.lg = []


def stats_finalize(a, AS, AM, ntiles, tmp, tile_stride, delta1, mode):
    t = tmp
    a.e(f'v_lshlrev_b32 v{t}, 2, v9')
    a.e(f'v_sub_u32 v{t}, v8, v{t}')
    a.e(f'v_lshl_add_u32 v{t + 1}, v8, 2, s6')
    a.e(f'v_cmp_eq_u32 s[70:71], 1, v{t}')
    a.e(f'v_cmp_eq_u32 s[72:73], 2, v{t}')
    a.e(f'v_cmp_eq_u32 s[74:75], 3, v{t}')
    a.e(f'v_cmp_gt_u32 s[76:77], 4, v{t}')
    a.e('s_mov_b32 s7, 0x3acccccd')
    for rt in range(ntiles):
        for acc in (AS, AM):
            b = acc + 4 * rt
            a.e(f'v_cndmask_b32 v{b}, v{b}, v{b + 1}, s[70:71]')
            a.e(f'v_cndmask_b32 v{b}, v{b}, v{b + 2}, s[72:73]')
            a.e(f'v_cndmask_b32 v{b}, v{b}, v{b + 3}, s[74:75]')
        ss, sm = AS + 4 * rt, AM + 4 * rt
        a.e(f'v_mul_f32 v{sm}, s7, v{sm}')
        a.e(f'v_mul_f32 v{ss}, s7, v{ss}')
        a.e(f'v_fma_f32 v{ss}, -v{sm}, v{sm}, v{ss}')
        a.e(f'v_max_f32 v{ss}, 0, v{ss}')
        a.e(f'v_add_f32 v{ss}, 0x3727c5ac, v{ss}')
        a.e(f'v_rsq_f32 v{ss}, v{ss}')
        if mode == 'rs_mr':
            a.e(f'v_mul_f32 v{sm}, v{sm}, v{ss}')
    a.e('s_mov_b64 exec, s[76:77]')
    for rt in range(ntiles):
        ss, sm = AS + 4 * rt, AM + 4 * rt
        first, second = (ss, sm) if mode == 'rs_mr' else (sm, ss)
        a.lds(f'ds_write_b32 v{t + 1}, v{first} offset:{rt * tile_stride}')
        a.lds(f'ds_write_b32 v{t + 1}, v{second} offset:{rt * tile_stride + delta1}')
    a.e('s_mov_b64 exec, -1')


def stage1(a, ACC, RSr, MRr, VA, wf, VT):
    a.e('v_cmp_gt_u32 vcc, 8, v8')
    a.e('v_mov_b32 v13, 0x80008000')
    a.e('v_cndmask_b32 v13, 0, v13, vcc')
    a.e('v_and_b32 v12, 1, v9')
    a.e('v_lshl_add_u32 v12, v12, 4, v8')
    a.e('v_mul_u32_u24 v12, 192, v12')
    a.e('v_lshrrev_b32 v11, 1, v9')
    a.e('v_mul_u32_u24 v11, 80, v11')
    a.e(f's_lshl_b32 s6, s{sWAVE}, 4')
    a.e(f's_add_u32 s6, s6, {VT}')
    a.e('v_add3_u32 v12, v12, v11, s6')
    a.wait(lg='st')
    for r in range(16):
        m = MRr[r // 4] + r % 4
        a.e(f'v_mul_f32 v{m}, v{m}, v14')
    for r in range(16):
        a.e(f'v_fma_f32 v{ACC + r}, v{ACC + r}, v{RSr[r // 4] + r % 4}, -v{MRr[r // 4] + r % 4}')
    for r in range(8):
        a.e(f'v_cvt_pk_bf16_f32 v{ACC + r}, v{ACC + 2 * r}, v{ACC + 2 * r + 1}')
    for r in range(8):
        a.e(f'v_xor_b32_dpp v{ACC + 8 + r}, v{ACC + r}, v13 row_ror:8 row_mask:0xf bank_mask:0xf')
    a.wait(lg='wf')
    for tt in range(4):
        for ks in range(2):
            for mat in range(2):
                src = ACC + 8 * mat + 4 * ks
                c = '0' if (ks == 0 and mat == 0) else vr(VA + 4 * tt, 4)
                a.e(f'v_mfma_f32_16x16x32_bf16 {vr(VA + 4 * tt, 4)}, {vr(src, 4)}, {vr(wf(mat, tt, ks), 4)}, {c}')
    for pr in range(2):
        b = VA + 8 * pr
        for r in range(4):
            a.e(f'v_cvt_pk_bf16_f32 v{b + r}, v{b + 2 * r}, v{b + 2 * r + 1}')
        a.e(f'v_permlane16_swap_b32 v{b}, v{b + 2}')
        a.e(f'v_permlane16_swap_b32 v{b + 1}, v{b + 3}')
        a.lds(f'ds_write_b128 v12, {vr(b, 4)} offset:{pr * 32 * 192}', 'vt')


def v_out_addr(a):
    for n, dst in ((0, 5), (8, 6)):
        a.e(f's_lshl_b32 s6, s{sWAVE}, 6')
        a.e(f's_add_u32 s6, s6, {n * 64}')
        a.e('v_add_u32 v0, s6, v1')
        a.e('v_mul_u32_u24 v7, 5462, v0')
        a.e('v_lshrrev_b32 v7, 16, v7')
        a.e('v_lshlrev_b32 v0, 4, v0')
        a.e(f's_mov_b32 s7, {8 * 32 * 192 - 192}')
        a.e(f'v_mad_u32_u24 v{dst}, v7, s7, v0')


def v_out(a, l, VT, R):
    a.e(f's_lshl_b32 s6, s{sWAVE}, 10')
    a.e(f's_add_u32 s6, s6, {VT}')
    a.e('v_add_u32 v0, s6, v2')
    a.lds(f'ds_read_b128 {vr(R, 4)}, v0', 'vo0')
    a.lds(f'ds_read_b128 {vr(R + 4, 4)}, v0 offset:8192', 'vo1')
    a.e(f's_lshl_b32 s6, s{sC}, 5')
    a.e(f's_add_u32 s6, s6, s{sG}')
    a.e('s_mulk_i32 s6, 192')
    a.e(f's_add_u32 s6, s6, 0x{VB[l]:x}')
    a.e(f's_cmp_lt_u32 s{sWAVE}, 4')
    a.e(f's_cselect_b32 s7, s6, 0x{OOB:x}')
    a.wait(lg='vo0')
    a.vmem(f'buffer_store_dwordx4 {vr(R, 4)}, v5, {sr(sWS, 4)}, s6 offen sc1', 'vo')
    a.wait(lg='vo1')
    a.vmem(f'buffer_store_dwordx4 {vr(R + 4, 4)}, v6, {sr(sWS, 4)}, s7 offen sc1', 'vo')


TW, Y, VF, PK, ID, XR, XM, XE = 16, 32, 48, 48, 48, 56, 16, 24
ACCX, XF = 16, 48
NR, NST = 8, 9
RING = [236 + 4 * k for k in range(5)] + [96, 100, 104]
JIT = [108, 112]
ACCB = 16
HBUF = [96 + 4 * k for k in range(5)]
ACCA, XFA = 16, 32


def dreg(ks):
    return 196 + 4 * ks if ks < 15 else 96 + 4 * (ks - 15)


def w2reg(f):
    return 116 + 4 * f


def gen(a, name):
    end = name + '_end'
    a.raw('.text')
    a.raw(f'.globl {name}')
    a.raw('.p2align 8')
    a.raw(f'.type {name},@function')
    a.label(name)
    a.e('s_cmp_ge_u32 s2, 256')
    a.e(f's_cbranch_scc1 {end}')
    a.stamp_init()
    a.stamp(0)
    a.e('s_load_dwordx16 s[8:23], s[0:1], 0')
    a.e('s_load_dwordx2 s[24:25], s[0:1], 64')
    a.e('s_load_dwordx2 s[26:27], s[0:1], 80')
    a.e('s_load_dwordx2 s[96:97], s[0:1], 72')
    a.e('v_lshrrev_b32 v1, 6, v0')
    a.e(f'v_readfirstlane_b32 s{sWAVE}, v1')
    a.e('v_and_b32 v1, 63, v0')
    if OPT.get('cpf', 1):
        a.e('s_getpc_b64 s[98:99]')
        a.label('Lpc')
        a.e('s_lshr_b32 s6, s2, 3')
        a.e('s_lshl_b32 s6, s6, 5')
        a.e('v_and_b32 v253, 31, v0')
        a.e('v_add_u32 v253, s6, v253')
        a.e('v_lshlrev_b32 v253, 7, v253')
        a.e(f'v_min_u32 v253, {end} - Lpc, v253')
        a.e('v_cmp_gt_u32 vcc, 32, v0')
        a.e('s_and_saveexec_b64 s[6:7], vcc')
        a.e('s_cbranch_execz Lpcd')
        a.e('global_load_dword v253, v253, s[98:99]')
        a.label('Lpcd')
        a.e('s_mov_b64 exec, -1')
    XM_ = OPT.get('xm', 0)
    a.e('s_and_b32 s6, s2, 7')
    a.e('s_lshr_b32 s7, s2, 3')
    a.e(f's_and_b32 s98, s6, {(1 << XM_) - 1}')
    a.e(f's_lshl_b32 s98, s98, {3 - XM_}')
    a.e(f's_and_b32 s99, s7, {(8 >> XM_) - 1}')
    a.e(f's_add_u32 s{sC}, s98, s99')
    a.e(f's_lshr_b32 s6, s6, {XM_}')
    a.e(f's_lshl_b32 s6, s6, {2 + XM_}')
    a.e(f's_lshr_b32 s7, s7, {3 - XM_}')
    a.e('s_add_u32 s101, s6, s7')
    a.e('s_lshr_b32 s6, s101, 1')
    a.e('s_sub_u32 s7, 32, s6')
    a.e('s_cmp_eq_u32 s6, 0')
    a.e('s_cselect_b32 s7, 16, s7')
    a.e('s_bitcmp1_b32 s101, 0')
    a.e(f's_cselect_b32 s{sG}, s7, s6')
    a.e('v_lshlrev_b32 v2, 4, v1')
    a.e('v_and_b32 v8, 15, v1')
    a.e('v_lshrrev_b32 v9, 4, v1')
    a.e('v_and_b32 v10, 31, v1')
    a.e('v_lshrrev_b32 v4, 5, v1')

    sX, sD, sW1, sW2, sCS = 56, 64, 68, 72, 12
    sWK, sROT = 54, 55
    SLOT0, SLOTB = 1024, 18432
    RS, MR, CS = 0, 256, 512
    W1L = SLOT0 + 6 * SLOTB
    WP1 = W1L + 16384
    W2S = WP1 + 14336
    TWL0 = W2S + 10240
    XRL0 = SLOT0 + 4 * SLOTB
    VT0 = SLOT0 + 5 * SLOTB
    vXA, vDA, vD2A, vF0, vF1, vO8, vSW = 240, 241, 242, 244, 245, 246, 247
    a.e(f'v_lshrrev_b32 v{vO8}, 3, v1')
    a.e(f'v_and_b32 v{vSW}, 7, v1')
    a.e(f'v_xor_b32 v{vSW}, v{vSW}, v{vO8}')
    a.e(f'v_lshlrev_b32 v{vSW}, 4, v{vSW}')
    a.e(f's_and_b32 s{sKT}, s{sWAVE}, 1')
    a.e(f's_lshr_b32 s{sMIR}, s{sWAVE}, 2')
    a.e(f's_bfe_u32 s{sRHO}, s{sWAVE}, 0x10001')
    a.e(f's_lshl_b32 s6, s{sKT}, 4')
    a.e(f's_lshl_b32 s7, s{sMIR}, 5')
    a.e('s_add_u32 s6, s6, s7')
    a.e(f's_lshl_b32 s7, s{sRHO}, 2')
    a.e('s_add_u32 s6, s6, s7')
    a.e(f'v_lshrrev_b32 v{vXA}, 2, v{vO8}')
    a.e(f'v_lshlrev_b32 v{vXA}, 3, v{vXA}')
    a.e(f'v_and_b32 v0, 3, v{vO8}')
    a.e(f'v_add3_u32 v{vXA}, v{vXA}, v0, s6')
    a.e(f'v_lshl_add_u32 v{vXA}, v{vXA}, 5, s{sG}')
    a.e('s_movk_i32 s62, 1280')
    a.e(f'v_mad_u32_u24 v{vXA}, v{vXA}, s62, v{vSW}')
    a.e(f's_mul_i32 s6, s{sC}, 40')
    a.e(f's_lshr_b32 s7, s{sWAVE}, 1')
    a.e('s_lshl_b32 s7, s7, 3')
    a.e('s_add_u32 s7, s7, s6')
    a.e(f'v_add_u32 v{vDA}, s7, v{vO8}')
    a.e('v_mov_b32 v0, 320')
    a.e(f'v_cmp_eq_u32 vcc, 0, v{vDA}')
    a.e(f'v_cndmask_b32 v{vDA}, v{vDA}, v0, vcc')
    a.e(f'v_mad_u32_u24 v{vDA}, v{vDA}, s62, v{vSW}')
    a.e('s_add_u32 s6, s6, 32')
    a.e(f'v_add_u32 v{vD2A}, s6, v{vO8}')
    a.e(f'v_mad_u32_u24 v{vD2A}, v{vD2A}, s62, v{vSW}')
    a.e(f's_lshl_b32 s6, s{sRHO}, 7')
    a.e(f'v_add_u32 v{vD2A}, s6, v{vD2A}')
    a.e(f's_lshl_b32 s{sWK}, s{sWAVE}, 10')
    a.e(f's_mul_i32 s63, s{sRHO}, {SLOTB}')
    a.e(f's_lshl_b32 s6, s{sKT}, 10')
    a.e('s_add_u32 s63, s63, s6')
    a.e(f's_add_u32 s98, s101, s{sC}')
    a.e('s_mul_i32 s99, s98, 52')
    a.e('s_lshr_b32 s99, s99, 8')
    a.e('s_mul_i32 s99, s99, 5')
    a.e('s_sub_u32 s98, s98, s99')
    a.e(f's_lshl_b32 s{sROT}, s98, 8')
    if not OPT.get('rot', 1):
        a.e(f's_mov_b32 s{sROT}, 0')
    a.e('s_waitcnt lgkmcnt(0)')
    a.srd(sX, P_X, S * D * 2)
    a.e(f's_cmp_eq_u32 s{sKT}, 1')
    a.e(f's_cselect_b32 s98, s{P_DI}, s{P_DR}')
    a.e(f's_cselect_b32 s99, s{P_DI + 1}, s{P_DR + 1}')
    a.srd(sD, 98, D * D * 2)

    def pair_off(p, dst):
        a.e(f's_add_u32 s{dst}, s{sROT}, {p * 256}')
        a.e(f's_cmp_ge_u32 s{dst}, 1280')
        a.e('s_cselect_b32 s18, 1280, 0')
        a.e(f's_sub_u32 s{dst}, s{dst}, s18')

    def dma_pair(p):
        sb = SLOT0 + (p % 3) * 2 * SLOTB
        pair_off(p, 99)
        L = a.newlab('Lex')
        a.e(f's_cmp_lg_u32 s{sMIR}, {p % 2}')
        a.e(f's_cbranch_scc1 {L}')
        a.e(f's_add_u32 m0, s63, {sb + 16384}')
        a.e(f'buffer_load_dwordx4 v{vD2A}, {sr(sD, 4)}, s99 offen lds')
        a.label(L)
        for h in range(2):
            a.e(f's_add_u32 m0, s{sWK}, {sb + h * (SLOTB - 128)}')
            a.vmem(f'buffer_load_dwordx4 v{vXA}, {sr(sX, 4)}, s99 offen offset:{h * 128} lds', ('c', p))
            a.e(f's_add_u32 m0, s{sWK}, {sb + h * (SLOTB - 128) + 8192}')
            a.vmem(f'buffer_load_dwordx4 v{vDA}, {sr(sD, 4)}, s99 offen offset:{h * 128} lds', ('c', p))

    a.stamp('karg')
    dma_pair(0)
    a.stamp('d0')
    a.srd(sW1, P_W1, D * F * 2)
    a.srd(sW2, P_W2, D * F * 2)
    a.srd(sWS, P_WS, WS_BYTES)
    a.srd(sOUT, P_OUT, S * D * 2)
    a.e(f's_cmp_eq_u32 s{sKT}, 1')
    a.e(f's_cselect_b32 s98, s{P_CI}, s{P_CR}')
    a.e(f's_cselect_b32 s99, s{P_CI + 1}, s{P_CR + 1}')
    a.srd(sCS, 98, S * S * 2)
    a.e(f's_add_u32 s{sFL}, s{P_WS}, 0x{FLG:x}')
    a.e(f's_addc_u32 s{sFL + 1}, s{P_WS + 1}, 0')
    a.e(f's_sub_u32 s6, 64, s{sG}')
    a.e(f's_cmp_eq_u32 s{sG}, 0')
    a.e(f's_cselect_b32 s{sTAU1}, 32, s6')
    a.e(f's_mul_i32 s6, s{sC}, 7')
    a.e('s_min_u32 s100, s6, 48')
    a.e('s_lshl_b32 s6, s100, 1')
    a.e(f's_lshl_b32 s7, s{sWAVE}, 1')
    a.e(f's_add_u32 s{sU1}, s6, s7')
    a.e(f's_min_u32 s{sU1}, s{sU1}, 106')
    a.e(f's_cmp_lt_u32 s{sC}, 6')
    a.e(f's_cselect_b32 s{sU2}, 7, 6')
    a.e(f's_mul_i32 s{sGCM}, s{sG}, 81920')
    a.e(f's_lshl_b32 s6, s{sG}, 3')
    a.e(f's_add_u32 s7, s6, s{sC}')
    a.e('s_lshl_b32 s7, s7, 3')
    a.e(f's_add_u32 s7, s7, s{sWAVE}')
    a.e('s_lshl_b32 s7, s7, 7')
    a.e(f's_add_u32 s{sFOWN}, s7, 0x{FLG:x}')
    a.e(f's_add_u32 s7, s6, s{sWAVE}')
    a.e(f's_lshl_b32 s{sFSRC}, s7, 10')
    a.e(f's_sub_u32 s{sPG}, 32, s{sG}')
    a.e(f's_and_b32 s{sPG}, s{sPG}, 31')
    a.e(f's_lshl_b32 s7, s{sPG}, 3')
    a.e(f's_add_u32 s7, s7, s{sWAVE}')
    a.e(f's_lshl_b32 s{sFPAR}, s7, 10')
    a.e(f's_mul_i32 s{sW1B}, s{sU1}, 20480')
    a.e(f's_cmp_ge_u32 s{sWAVE}, s{sU2}')
    a.e(f's_cselect_b32 s{sW1B}, 0x{OOB:x}, s{sW1B}')
    a.e(f's_getreg_b32 s{sXCC}, hwreg(HW_REG_XCC_ID)')
    a.e(f's_and_b32 s{sXCC}, s{sXCC}, 15')
    a.e(f's_mul_i32 s6, s{sWAVE}, 7')
    a.e('s_min_u32 s6, s6, 48')
    a.e(f's_mul_i32 s7, s{sC}, 54')
    a.e('s_add_u32 s7, s7, s6')
    a.e(f's_mul_i32 s{sW2O}, s7, 5120')
    a.e(f's_add_u32 s{sW2O}, s{sW2O}, 0x{W2F:x}')
    a.e(f's_mul_i32 s{sHG}, s{sG}, {216 * 1024}')
    a.e('s_lshl_b32 s6, s6, 12')
    a.e(f's_add_u32 s{sHK}, s{sHG}, s6')
    a.e('v_lshlrev_b32 v3, 4, v8')
    a.e('v_lshl_add_u32 v3, v9, 10, v3')
    dma_pair(1)
    Lnn = a.newlab('Lnn')
    a.e('s_lshl_b32 s6, s2, 3')
    a.e(f's_add_u32 s6, s6, s{sWAVE}')
    a.e('s_cmp_lg_u32 s6, 7')
    a.e(f's_cbranch_scc1 {Lnn}')
    a.e(f's_load_dword s6, s[{sFL}:{sFL + 1}], 0x40000 glc')
    a.e('s_waitcnt lgkmcnt(0)')
    a.e('s_add_u32 s6, s6, 16')
    a.e('s_and_b32 s6, s6, -16')
    a.e('s_bitset1_b32 s6, 31')
    a.e('v_mov_b32 v0, s6')
    a.e('v_mov_b32 v5, 0')
    a.e('s_mov_b64 exec, 1')
    a.e(f's_mov_b32 s7, 0x{FLG + 0x40000:x}')
    a.e(f'buffer_store_dword v0, off, {sr(sWS, 4)}, s7 sc1')
    a.e('global_store_dword v5, v0, s[96:97] sc1')
    a.e('s_mov_b64 exec, -1')
    a.label(Lnn)

    def grow(vd, vloc):
        a.e(f'v_and_b32 v11, 31, v{vloc}')
        a.e(f'v_mov_b32 v12, s{sG}')
        a.e(f'v_mov_b32 v13, s{sTAU1}')
        a.e(f'v_cmp_le_u32 vcc, 32, v{vloc}')
        a.e('v_cndmask_b32 v12, v12, v13, vcc')
        a.e(f'v_lshl_add_u32 v{vd}, v11, 6, v12')

    def tw_dma(base):
        a.e(f's_lshr_b32 s6, s{sWAVE}, 1')
        a.e('s_lshl_b32 s6, s6, 4')
        a.e('v_lshrrev_b32 v0, 2, v1')
        a.e('v_add_u32 v0, s6, v0')
        grow(0, 0)
        a.e('v_and_b32 v11, 3, v1')
        a.e('v_lshlrev_b32 v11, 4, v11')
        a.e('v_lshl_add_u32 v0, v0, 12, v11')
        a.e(f's_lshl_b32 s6, s{sWAVE}, 10')
        a.e(f's_add_u32 m0, s6, {base}')
        a.vmem(f'buffer_load_dwordx4 v0, {sr(sCS, 4)}, 0 offen lds', 'twd')

    vXR0, vXR1, vT1, vT2, vCSA = 234, 235, 236, 237, 238
    for n, dst in ((0, vXR0), (8, vXR1)):
        a.e(f's_lshl_b32 s6, s{sWAVE}, 6')
        a.e(f's_add_u32 s6, s6, {n * 64}')
        a.e('v_add_u32 v0, s6, v1')
        a.e('v_mul_u32_u24 v7, 5462, v0')
        a.e('v_lshrrev_b32 v7, 16, v7')
        a.e('v_mul_u32_u24 v5, 12, v7')
        a.e('v_sub_u32 v0, v0, v5')
        grow(7, 7)
        a.e(f's_mul_i32 s6, s{sC}, 5')
        a.e('s_sub_u32 s7, 70, s6')
        a.e('v_add_u32 v5, s6, v0')
        a.e('v_add_u32 v6, s7, v0')
        a.e('v_cmp_le_u32 vcc, 5, v0')
        a.e('v_cndmask_b32 v5, v5, v6, vcc')
        a.e('v_cmp_eq_u32 vcc, 80, v5')
        a.e('v_cndmask_b32 v5, v5, 0, vcc')
        a.e('v_cmp_eq_u32 vcc, 11, v0')
        a.e('v_cndmask_b32 v5, v5, 40, vcc')
        a.e('v_mul_u32_u24 v7, 1280, v7')
        a.e(f'v_lshl_add_u32 v{dst}, v5, 4, v7')
    a.e(f'v_and_b32 v{vF0}, 7, v1')
    a.e(f'v_xor_b32 v{vF0}, v{vF0}, v9')
    a.e(f'v_lshlrev_b32 v{vF0}, 4, v{vF0}')
    a.e(f'v_lshl_add_u32 v{vF0}, v8, 7, v{vF0}')
    a.e(f'v_xor_b32 v{vF1}, 64, v{vF0}')
    PF, PF2 = 208, 224

    def side(job):
        if job == 'late':
            a.e(f's_lshr_b32 s6, s{sWAVE}, 1')
            a.e('s_lshl_b32 s7, s6, 4')
            a.e(f'v_add_u32 v5, s7, v{vO8}')
            a.e(f'v_lshl_add_u32 v5, v5, 17, v{vSW}')
            a.e('s_lshl_b32 s6, s6, 11')
            a.e(f's_lshl_b32 s7, s{sKT}, 13')
            a.e('s_add_u32 s6, s6, s7')
            a.e(f's_add_u32 m0, s6, {W1L}')
            a.vmem(f'buffer_load_dwordx4 v5, {sr(sCS, 4)}, 0 offen lds', 'w1')
            a.e(f's_add_u32 m0, s6, {W1L + 1024}')
            a.e('s_mov_b32 s7, 0x100000')
            a.vmem(f'buffer_load_dwordx4 v5, {sr(sCS, 4)}, s7 offen lds', 'w1')
            tw_dma(TWL0)
        if job == 'non':
            a.e('v_mov_b32 v252, 0')
            a.vmem('global_load_dword v252, v252, s[96:97] sc1', 'non')
            setflag(a, None, 5)
        if job == 'xr':
            L = a.newlab('Lx4')
            a.e(f's_cmp_ge_u32 s{sWAVE}, 4')
            a.e(f's_cbranch_scc1 {L}')
            a.e(f's_add_u32 m0, s{sWK}, {XRL0 + 8192}')
            a.e(f'buffer_load_dwordx4 v{vXR1}, {sr(sX, 4)}, 0 offen lds')
            a.label(L)
            a.e(f's_add_u32 m0, s{sWK}, {XRL0}')
            a.vmem(f'buffer_load_dwordx4 v{vXR0}, {sr(sX, 4)}, 0 offen lds', 'xrd')
        if job == 'nonc':
            L, Ld = a.newlab('Lno'), a.newlab('Lnd')
            a.wait(vm='non')
            a.e('s_mov_b32 s98, 0')
            a.label(L)
            a.e(f'v_readfirstlane_b32 s{sNON}, v252')
            a.e('s_nop 1')
            a.e(f's_cmp_lg_u32 s{sNON}, 0')
            a.e(f's_cbranch_scc1 {Ld}')
            a.e('v_mov_b32 v252, 0')
            a.e('global_load_dword v252, v252, s[96:97] sc1')
            a.e('s_waitcnt vmcnt(0)')
            a.e('s_add_u32 s98, s98, 1')
            a.e(f's_cmp_lt_u32 s98, {SPIN}')
            a.e(f's_cbranch_scc1 {L}')
            a.label(Ld)

    def mainloop(setaddr, read, mfma, wsh=None):
        a.stamp('p0iss')
        PW = OPT.get('pw', 3)
        for p in range(5):
            a.wait(vm=('c', p), lg='all')
            if p == 0:
                dma_pair(2)
                side('late')
            a.e('s_barrier')
            a.stamp(f'p0c{p}')
            setaddr(SLOT0 + (p % 3) * 2 * SLOTB)
            read(4 * p)
            read(4 * p + 1)
            if 1 <= p <= 2:
                dma_pair(p + 2)
            if p >= 1:
                mfma(4 * p - 1)
            if p == 2:
                side('non')
            if p == 3:
                side('xr')
            if p == PW and wsh:
                wsh()
            for i in range(3):
                if i < 2:
                    read(4 * p + i + 2)
                mfma(4 * p + i)
        mfma(19)
        side('nonc')
        a.wait(vm='xrd')

    Lstat, Lcol, Lj0 = a.newlab('Lp0s'), a.newlab('Lp0c'), a.newlab('Lp0j')
    a.e(f's_cmp_eq_u32 s{sWAVE}, 7')
    a.e(f's_cbranch_scc1 {Lcol}')
    a.e(f's_cmp_ge_u32 s{sWAVE}, 5')
    a.e(f's_cbranch_scc1 {Lstat}')
    st0 = a.save()
    ACC, FR = 16, 32
    a.e(f's_lshl_b32 s60, s{sWAVE}, 11')
    a.e('s_add_u32 s60, s60, 8192')
    a.e(f's_mul_i32 s6, s{sC}, 5')
    a.e(f's_add_u32 s6, s6, s{sWAVE}')
    a.e('s_mul_i32 s6, s6, 20')
    a.e(f's_add_u32 s6, s6, s{sG}')
    a.e('s_lshl_b32 s6, s6, 10')
    a.e(f's_add_u32 s24, s6, 0x{DPF:x}')
    a.e(f's_lshr_b32 s6, s{sROT}, 6')
    a.e(f's_sub_u32 s25, s{sG}, s6')
    a.e('s_add_u32 s7, s25, 20')
    a.e(f's_cmp_lt_u32 s{sG}, s6')
    a.e('s_cselect_b32 s25, s7, s25')
    a.e(f's_cmp_ge_u32 s{sG}, 20')
    a.e('s_cselect_b32 s25, 63, s25')

    def set_c(sb):
        a.e(f'v_add_u32 v248, {sb}, v{vF0}')
        a.e(f'v_add_u32 v249, {sb}, v{vF1}')
        a.e('v_add_u32 v250, s60, v248')
        a.e('v_add_u32 v251, s60, v249')

    def read_c(j):
        f, hk, o = FR + 20 * (j % 4), j % 2, ((j % 4) // 2) * SLOTB
        a.lds(f'ds_read_b128 {vr(f + 16, 4)}, v{250 + hk} offset:{o}', ('f', j))
        for rt in range(4):
            a.lds(f'ds_read_b128 {vr(f + 4 * rt, 4)}, v{248 + hk} offset:{o + rt * 2048}', ('f', j))

    def mfma_c(j):
        f = FR + 20 * (j % 4)
        a.wait(lg=('f', j))
        for rt in range(4):
            c = '0' if j == 0 else vr(ACC + 4 * rt, 4)
            a.e(f'v_mfma_f32_16x16x32_bf16 {vr(ACC + 4 * rt, 4)}, {vr(f + 4 * rt, 4)}, {vr(f + 16, 4)}, {c}')
        L = a.newlab('Ldd')
        a.e(f's_cmp_lg_u32 s25, {j}')
        a.e(f's_cbranch_scc1 {L}')
        for r in range(4):
            a.e(f'v_mov_b32 v{220 + r}, v{f + 16 + r}')
        a.label(L)

    mainloop(set_c, read_c, mfma_c)
    WF, RSr, MRr = 112, [176, 180, 184, 188], [192, 196, 200, 204]
    wf0 = lambda mat, tt, ks: WF + ((mat * 4 + tt) * 2 + ks) * 4
    a.e(f'v_add_u32 v248, {W1L}, v{vF0}')
    a.e(f'v_add_u32 v249, {W1L}, v{vF1}')
    for tt in range(4):
        for ks in range(2):
            for mat in range(2):
                a.lds(f'ds_read_b128 {vr(wf0(mat, tt, ks), 4)}, v{248 + ks} offset:{mat * 8192 + tt * 2048}', 'wf')
    a.e('v_lshlrev_b32 v12, 4, v9')
    a.e(f's_lshl_b32 s6, s{sWAVE}, 6')
    a.e('v_lshl_add_u32 v13, v8, 2, s6')
    a.stamp('p0end')
    a.e('s_barrier')
    a.lds(f'ds_read_b32 v14, v13 offset:{CS}', 'st')
    for rt in range(4):
        a.lds(f'ds_read_b128 {vr(RSr[rt], 4)}, v12 offset:{RS + rt * 64}', 'st')
        a.lds(f'ds_read_b128 {vr(MRr[rt], 4)}, v12 offset:{MR + rt * 64}', 'st')
    a.e(f's_cmp_lt_u32 s{sG}, 20')
    a.e(f's_cselect_b32 s24, s24, 0x{OOB:x}')
    a.e(f'buffer_store_dwordx4 v[220:223], v2, {sr(sWS, 4)}, s24 offen sc1')
    stage1(a, ACC, RSr, MRr, 32, wf0, VT0)
    stC = a.save()
    a.e(f's_branch {Lj0}')

    a.label(Lstat)
    a.restore(st0)
    AS, AM, ONE, FS = 24, 32, 40, 44
    for r in range(4):
        a.e(f'v_mov_b32 v{ONE + r}, 0x3f803f80')
    a.e(f's_sub_u32 s60, s{sWAVE}, 5')
    a.e('s_lshl_b32 s60, s60, 12')
    a.e(f'v_add_u32 v250, s60, v{vF0}')
    a.e(f'v_add_u32 v251, s60, v{vF1}')

    WA = 128
    a.e(f's_and_b32 s6, s{sG}, 7')
    a.e('s_mul_i32 s98, s6, 5')
    a.e('s_mul_i32 s99, s6, 10')
    a.e('s_add_u32 s99, s99, 4')
    a.e(f's_bfe_u32 s7, s{sG}, 0x10003')
    a.e(f's_cmp_ge_u32 s{sG}, 16')
    a.e('s_cselect_b64 s[76:77], -1, 0')
    for n in range(7):
        a.e(f'v_add_u32 v0, {64 * n}, v1')
        a.e('v_mul_u32_u24 v5, 4682, v0')
        a.e('v_lshrrev_b32 v5, 16, v5')
        a.e('v_mul_u32_u24 v6, 14, v5')
        a.e('v_sub_u32 v0, v0, v6')
        a.e('v_lshrrev_b32 v6, 3, v5')
        a.e('v_add_u32 v7, s98, v6')
        a.e('v_lshrrev_b32 v11, 1, v6')
        a.e('v_mad_u32_u24 v11, v11, 5, s99')
        a.e('v_mov_b32 v12, s7')
        a.e('v_and_b32 v6, 1, v6')
        a.e('v_cndmask_b32 v7, v7, v11, s[76:77]')
        a.e('v_cndmask_b32 v6, v12, v6, s[76:77]')
        a.e('v_and_b32 v5, 7, v5')
        a.e('v_lshl_add_u32 v5, v7, 3, v5')
        a.e('v_sub_u32 v7, 640, v5')
        a.e('v_cmp_eq_u32 vcc, 1, v6')
        a.e('v_cndmask_b32 v5, v5, v7, vcc')
        if n == 0:
            a.e('v_mov_b32 v6, 320')
            a.e('v_cmp_eq_u32 vcc, 0, v5')
            a.e('v_cndmask_b32 v5, v5, v6, vcc')
            a.e('v_cmp_eq_u32 vcc, 640, v5')
            a.e('v_cndmask_b32 v5, v5, 0, vcc')
        a.e('v_and_b32 v5, 0x3ff, v5')
        a.e('v_mul_u32_u24 v5, 3456, v5')
        a.e(f'v_lshl_add_u32 v{WA + n}, v0, 4, v5')

    def wsh_s():
        a.e(f's_sub_u32 s6, s{sWAVE}, 5')
        a.e('s_mul_i32 s7, s6, 224')
        a.e('s_lshl_b32 s98, s100, 6')
        a.e('s_add_u32 s7, s7, s98')
        a.e(f's_cmp_lt_u32 s{sG}, 20')
        a.e(f's_cselect_b32 s7, s7, 0x{OOB:x}')
        a.e('s_mul_i32 s6, s6, 7168')
        for n in range(7):
            a.e(f's_add_u32 m0, s6, {WP1 + 1024 * n}')
            a.vmem(f'buffer_load_dwordx4 v{WA + n}, {sr(sW1, 4)}, s7 offen lds', 'wsh')

    def set_s(sb):
        a.e(f'v_add_u32 v248, {sb}, v250')
        a.e(f'v_add_u32 v249, {sb}, v251')

    def read_s(j):
        for rt in range(2):
            a.lds(f'ds_read_b128 {vr(FS + 8 * (j % 4) + 4 * rt, 4)}, v{248 + j % 2} offset:{((j % 4) // 2) * SLOTB + rt * 2048}', ('f', j))

    def mfma_s(j):
        a.wait(lg=('f', j))
        for rt in range(2):
            f = vr(FS + 8 * (j % 4) + 4 * rt, 4)
            a.e(f'v_mfma_f32_16x16x32_bf16 {vr(AS + 4 * rt, 4)}, {f}, {f}, {"0" if j == 0 else vr(AS + 4 * rt, 4)}')
            a.e(f'v_mfma_f32_16x16x32_bf16 {vr(AM + 4 * rt, 4)}, {f}, {vr(ONE, 4)}, {"0" if j == 0 else vr(AM + 4 * rt, 4)}')

    mainloop(set_s, read_s, mfma_s, wsh_s)
    a.e('s_lshr_b32 s6, s60, 5')
    stats_finalize(a, AS, AM, 2, 12, 64, MR - RS, 'rs_mr')
    a.wait(lg='all')
    a.stamp('p0end')
    a.e('s_barrier')
    a.e(f's_cmp_ge_u32 s{sG}, 20')
    a.e(f's_cbranch_scc1 {Lj0}')
    a.e('v_bfe_u32 v5, v1, 2, 2')
    a.e('v_lshl_add_u32 v5, v9, 3, v5')
    a.e('v_mul_u32_u24 v5, 224, v5')
    a.e('v_and_b32 v0, 3, v1')
    a.e('v_lshl_add_u32 v5, v0, 3, v5')
    a.e(f's_sub_u32 s60, s{sWAVE}, 5')
    a.e('s_mul_i32 s60, s60, 7')
    a.e('s_lshl_b32 s6, s60, 10')
    a.e(f's_add_u32 s6, s6, {WP1}')
    a.e('v_add_u32 v5, s6, v5')
    a.wait(vm='wsh')
    for u in range(7):
        for rd in range(2):
            a.lds(f'ds_read_b64_tr_b16 {vr(16 + 4 * u + 2 * rd, 2)}, v5 offset:{rd * 4 * 224 + u * 32}', ('pf', u))
    a.e('s_lshl_b32 s6, s100, 1')
    a.e('s_add_u32 s60, s60, s6')
    a.e('s_mul_i32 s6, s60, 20')
    a.e(f's_add_u32 s6, s6, s{sG}')
    a.e('s_lshl_b32 s6, s6, 10')
    a.e(f's_min_u32 s98, s{sWAVE}, s{sC}')
    a.e('s_mov_b32 s99, 0x3f803f80')
    for u in range(7):
        a.wait(lg=('pf', u))
        a.e(f's_add_u32 s7, s6, {W1F + u * 20480}')
        if u >= 5:
            a.e('s_cmp_ge_u32 s98, 6')
            a.e(f's_cselect_b32 s7, 0x{OOB:x}, s7')
        a.e(f'buffer_store_dwordx4 {vr(16 + 4 * u, 4)}, v2, {sr(sWS, 4)}, s7 offen sc1')
        a.e(f'v_mov_b32 v{48 + u}, 0')
    a.e('v_mov_b32 v55, 0')
    for d in range(4):
        for u in range(7):
            a.e(f'v_dot2_f32_bf16 v{48 + u}, v{16 + 4 * u + d}, s99, v{48 + u}')
    a.e('s_nop 3')
    for u in range(0, 8, 2):
        a.e(f'v_permlane16_swap_b32 v{48 + u}, v{49 + u}')
    for u in range(0, 8, 2):
        a.e(f'v_add_f32 v{48 + u}, v{48 + u}, v{49 + u}')
    for u in (0, 4):
        a.e(f'v_permlane32_swap_b32 v{48 + u}, v{50 + u}')
    for u in (0, 4):
        a.e(f'v_add_f32 v{48 + u}, v{48 + u}, v{50 + u}')
    a.e(f's_mul_i32 s6, s{sG}, 6912')
    a.e('s_lshl_b32 s7, s60, 6')
    a.e('s_add_u32 s6, s6, s7')
    a.e(f's_add_u32 s6, s6, 0x{CSP:x}')
    a.e('v_lshlrev_b32 v5, 2, v1')
    a.e(f'buffer_store_dword v48, v5, {sr(sWS, 4)}, s6 offen sc1')
    a.e('s_cmp_ge_u32 s98, 6')
    a.e('s_cselect_b32 exec_lo, 0xffff, -1')
    a.e('s_cselect_b32 exec_hi, 0, 0xffff')
    a.e(f'buffer_store_dword v52, v5, {sr(sWS, 4)}, s6 offen offset:256 sc1')
    a.e('s_mov_b64 exec, -1')
    a.e(f's_branch {Lj0}')

    a.label(Lcol)
    a.restore(st0)
    AC, ONE, FC = 24, 44, 48
    for r in range(4):
        a.e(f'v_mov_b32 v{ONE + r}, 0x3f803f80')

    a.e('s_movk_i32 s7, 1120')
    for n in range(5):
        a.e(f'v_add_u32 v0, {64 * n}, v1')
        a.e('v_mul_u32_u24 v5, 6554, v0')
        a.e('v_lshrrev_b32 v5, 16, v5')
        a.e('v_lshlrev_b32 v0, 4, v0')
        a.e(f'v_mad_u32_u24 v{WA + n}, v5, s7, v0')

    def wsh_k():
        a.e(f's_mul_i32 s6, s{sG}, 40960')
        a.e(f's_mul_i32 s7, s{sC}, 160')
        a.e('s_add_u32 s6, s6, s7')
        a.e(f's_add_u32 s7, s6, {32 * 40960}')
        for t in range(2):
            for n in range(5):
                a.e(f's_mov_b32 m0, {W2S + t * 5120 + n * 1024}')
                a.vmem(f'buffer_load_dwordx4 v{WA + n}, {sr(sW2, 4)}, s{6 + t} offen lds', 'wsh')

    def set_k(sb):
        a.e(f'v_add_u32 v248, {sb + 8192}, v{vF0}')
        a.e(f'v_add_u32 v249, {sb + 8192}, v{vF1}')

    def read_k(j):
        for ct in range(5):
            a.lds(f'ds_read_b128 {vr(FC + 20 * (j % 4) + 4 * ct, 4)}, v{248 + j % 2} offset:{((j % 4) // 2) * SLOTB + ct * 2048}', ('f', j))

    def mfma_k(j):
        a.wait(lg=('f', j))
        for ct in range(5):
            c = '0' if j == 0 else vr(AC + 4 * ct, 4)
            a.e(f'v_mfma_f32_16x16x32_bf16 {vr(AC + 4 * ct, 4)}, {vr(ONE, 4)}, {vr(FC + 20 * (j % 4) + 4 * ct, 4)}, {c}')

    mainloop(set_k, read_k, mfma_k, wsh_k)
    a.e('v_lshlrev_b32 v12, 2, v8')
    for ct in range(5):
        a.lds(f'ds_write_b32 v12, v{AC + 4 * ct} offset:{CS + ct * 64}')
    a.wait(lg='all')
    a.stamp('p0end')
    a.e('s_barrier')
    a.e('v_bfe_u32 v5, v1, 2, 2')
    a.e('v_lshl_add_u32 v5, v9, 3, v5')
    a.e('v_mul_u32_u24 v5, 160, v5')
    a.e('v_and_b32 v0, 3, v1')
    a.e('v_lshl_add_u32 v5, v0, 3, v5')
    a.e(f'v_add_u32 v5, {W2S}, v5')
    a.wait(vm='wsh')
    for u in range(10):
        for rd in range(2):
            a.lds(f'ds_read_b64_tr_b16 {vr(32 + 4 * u + 2 * rd, 2)}, v5 offset:{(u // 5) * 5120 + (u % 5) * 32 + rd * 640}', ('pf', u))
    a.e(f's_mul_i32 s6, s{sC}, 54')
    a.e(f's_add_u32 s6, s6, s{sG}')
    a.e('s_mul_i32 s6, s6, 5120')
    a.e(f's_add_u32 s6, s6, 0x{W2F:x}')
    Lw2 = a.newlab('Lw2')
    for u in range(10):
        if u == 5:
            a.e(f's_cmp_ge_u32 s{sG}, 22')
            a.e(f's_cbranch_scc1 {Lw2}')
        a.wait(lg=('pf', u))
        a.e(f's_add_u32 s7, s6, {(u // 5) * 32 * 5120 + (u % 5) * 1024}')
        a.e(f'buffer_store_dwordx4 {vr(32 + 4 * u, 4)}, v2, {sr(sWS, 4)}, s7 offen sc1')
    a.label(Lw2)
    a.e(f's_cmp_ge_u32 s{sG}, 8')
    a.e(f's_cbranch_scc1 {Lj0}')
    a.e(f's_lshl_b32 s6, s{sG}, 11')
    a.e(f's_add_u32 s7, s6, {W1L}')
    a.e(f'v_add_u32 v248, s7, v{vF0}')
    a.e(f'v_add_u32 v249, s7, v{vF1}')
    a.lds('ds_read_b128 v[16:19], v248', 'ws')
    a.lds('ds_read_b128 v[20:23], v249', 'ws')
    a.e(f's_lshl_b32 s7, s{sC}, 14')
    a.e('s_add_u32 s6, s6, s7')
    a.e(f's_add_u32 s6, s6, 0x{W1S:x}')
    a.e('s_mov_b32 s98, 0x05040100')
    a.e('s_mov_b32 s99, 0x07060302')
    a.wait(lg='ws')
    for half in range(2):
        for d in range(4):
            a.e(f'v_perm_b32 v{24 + 4 * half + d}, v{16 + 2 * d + 1}, v{16 + 2 * d}, s{98 + half}')
        a.e(f'buffer_store_dwordx4 {vr(24 + 4 * half, 4)}, v2, {sr(sWS, 4)}, s6 offen offset:{half * 1024} sc1')
    a.label(Lj0)
    a.e('s_nop 1')
    a.restore(stC)
    v_out_addr(a)
    a.wait(lg='all')
    a.e('s_barrier')
    a.stamp('p0vt')
    v_out(a, 0, VT0, 64)


    LSC = ' sc1'

    def w1load(n):
        a.e(f's_add_u32 s64, s{sW1B}, {n * 1024}')
        a.vmem(f'buffer_load_dwordx4 {vr(RING[n % NR], 4)}, v2, {sr(sWS, 4)}, s64 offen sc1', ('w1', n))

    def stash(n):
        a.e(f's_add_u32 m0, s69, {(n % NST) * 1024}')
        a.e(f's_add_u32 s64, s{sW1B}, {20480 + n * 1024}')
        a.vmem(f'buffer_load_dwordx4 v2, {sr(sWS, 4)}, s64 offen sc1 lds', ('ws', n))

    def w2load(f):
        a.e(f's_add_u32 s64, s{sW2O}, {(f // 4) * 4096}')
        if f >= 30:
            a.e(f's_cmp_ge_u32 s{sWAVE}, 6')
            a.e(f's_cselect_b32 s64, 0x{OOB:x}, s64')
        a.vmem(f'buffer_load_dwordx4 {vr(w2reg(f), 4)}, v2, {sr(sWS, 4)}, s64 offen offset:{(f % 4) * 1024} sc1', ('w2', f))

    def dest_row(vd):
        a.e(f's_lshl_b32 s6, s{sRHO}, 5')
        a.e(f'v_add_u32 v{vd}, s6, v10')
        a.e(f'v_sub_u32 v11, 63, v{vd}')
        a.e('v_sub_u32 v12, 32, v10')
        a.e('v_and_b32 v12, 31, v12')
        a.e('v_sub_u32 v13, 63, v10')
        a.e(f's_cmp_eq_u32 s{sRHO}, 0')
        a.e('s_cselect_b64 vcc, -1, 0')
        a.e('v_cndmask_b32 v12, v13, v12, vcc')
        a.e(f's_cmp_eq_u32 s{sG}, 0')
        a.e('s_cselect_b64 vcc, -1, 0')
        a.e('v_cndmask_b32 v11, v11, v12, vcc')
        a.e(f's_cmp_eq_u32 s{sMIR}, 1')
        a.e('s_cselect_b64 vcc, -1, 0')
        a.e(f'v_cndmask_b32 v{vd}, v{vd}, v11, vcc')

    def xr_dma1():
        a.e('v_mul_u32_u24 v0, 40960, v4')
        a.e('v_lshl_add_u32 v0, v10, 4, v0')
        a.e(f's_mul_i32 s6, s{sC}, 5')
        L = a.newlab('Lx4')
        for n in (8, 0):
            if n == 8:
                a.e(f's_cmp_ge_u32 s{sWAVE}, 4')
                a.e(f's_cbranch_scc1 {L}')
            a.e(f's_add_u32 s7, s{sWAVE}, {n}')
            a.e('s_add_u32 s64, s6, s7')
            a.e('s_sub_u32 s62, s7, s6')
            a.e('s_add_u32 s62, s62, 70')
            a.e('s_cmp_ge_u32 s7, 5')
            a.e('s_cselect_b32 s64, s62, s64')
            a.e('s_cmp_eq_u32 s64, 80')
            a.e('s_cselect_b32 s64, 0, s64')
            a.e('s_cmp_eq_u32 s7, 11')
            a.e('s_cselect_b32 s64, 40, s64')
            a.e('s_lshl_b32 s64, s64, 9')
            a.e(f's_add_u32 s64, s64, s{sGCM}')
            a.e(f's_add_u32 s64, s64, 0x{X2B:x}')
            a.e('s_lshl_b32 s7, s7, 10')
            a.e(f's_add_u32 m0, s7, {XRL1}')
            t = f'buffer_load_dwordx4 v0, {sr(sWS, 4)}, s64 offen sc1 lds'
            if n == 8:
                a.e(t)
                a.label(L)
            else:
                a.vmem(t, 'xrd')

    def a2_pre(l):
        xb, A, shB, twb = ((XRL0, 192, 4, TWL0), (XRL1, 16, 10, TWL1))[l]
        dest_row(5)
        a.e(f'v_mul_u32_u24 v7, {A}, v5')
        a.e(f'v_add_u32 v7, {xb}, v7')
        a.e(f's_lshl_b32 s6, s{sKT}, 2')
        a.e(f's_cmp_eq_u32 s{sMIR}, 1')
        a.e('s_cselect_b64 s[76:77], -1, 0')
        a.e(f's_cmp_eq_u32 s{sC}, 0')
        a.e('s_cselect_b32 s7, 11, 0')
        for h in range(2):
            a.e(f'v_add3_u32 v11, v4, s6, {2 * h}')
            a.e('v_min_u32 v11, 4, v11')
            a.e('v_sub_u32 v12, 9, v11')
            a.e('v_cndmask_b32 v12, v11, v12, s[76:77]')
            a.e(f'v_lshl_add_u32 v12, v12, {shB}, v7')
            a.lds(f'ds_read_b128 {vr(XM + 4 * h, 4)}, v12', 'xr')
            a.e('v_mov_b32 v13, s7')
            a.e('v_cmp_eq_u32 vcc, 0, v11')
            a.e('v_cndmask_b32 v13, v11, v13, vcc')
            a.e('v_sub_u32 v12, 10, v11')
            a.e('v_cndmask_b32 v12, v13, v12, s[76:77]')
            a.e(f'v_lshl_add_u32 v12, v12, {shB}, v7')
            a.lds(f'ds_read_u16 v{XE + h}, v12', 'xr')
        a.e('v_bfe_u32 v11, v1, 2, 1')
        a.e('v_and_b32 v12, 1, v1')
        a.e('v_lshlrev_b32 v12, 4, v12')
        a.e('v_mov_b32 v13, 0x3f80')
        a.e('v_lshlrev_b32 v12, v12, v13')
        a.e('v_cmp_eq_u32 vcc, v11, v4')
        a.e('v_cndmask_b32 v12, 0, v12, vcc')
        a.e('v_bfe_u32 v13, v1, 1, 1')
        a.e('v_bfe_u32 v11, v1, 3, 2')
        a.e('v_lshl_add_u32 v13, v11, 1, v13')
        for r in range(8):
            a.e(f'v_cmp_eq_u32 vcc, {r}, v13')
            a.e(f'v_cndmask_b32 v{ID + r}, 0, v12, vcc')
        a.wait(lg='xr')
        Lr, Lj = a.newlab('Lxr'), a.newlab('Lxj')
        a.e('v_mov_b32 v11, 0xffff')
        a.e(f's_cmp_eq_u32 s{sMIR}, 1')
        a.e(f's_cbranch_scc1 {Lr}')
        for k in range(2):
            m, o = XM + 4 * k, XR + 4 * k
            a.e(f'v_bfi_b32 v{o}, v11, v{XE + k}, v{m}')
            for d in range(1, 4):
                a.e(f'v_mov_b32 v{o + d}, v{m + d}')
        a.e(f's_branch {Lj}')
        a.label(Lr)
        for k in range(2):
            m, o = XM + 4 * k, XR + 4 * k
            a.e(f'v_bfi_b32 v{o}, v11, v{XE + k}, v{m + 3}')
            a.e(f'v_bfi_b32 v{o + 1}, v11, v{m + 3}, v{m + 2}')
            a.e(f'v_bfi_b32 v{o + 2}, v11, v{m + 2}, v{m + 1}')
            a.e(f'v_bfi_b32 v{o + 3}, v11, v{m + 1}, v{m}')
        a.label(Lj)
        a.e('v_lshrrev_b32 v11, 4, v10')
        a.e('v_lshlrev_b32 v11, 11, v11')
        a.e('v_lshl_add_u32 v11, v8, 6, v11')
        a.e('v_lshl_add_u32 v11, v4, 4, v11')
        a.e(f's_lshl_b32 s6, s{sRHO}, 12')
        a.e(f's_add_u32 s6, s6, {twb}')
        a.e('v_add_u32 v11, s6, v11')
        for ks in range(4):
            a.lds(f'ds_read_b128 {vr(TW + 4 * ks, 4)}, v11 offset:{(ks // 2) * 1024 + (ks % 2) * 32}', 'tw')
        a.e(f'v_mfma_f32_32x32x16_bf16 {vr(Y, 16)}, {vr(ID, 4)}, {vr(XR, 4)}, 0')
        a.e(f'v_mfma_f32_32x32x16_bf16 {vr(Y, 16)}, {vr(ID + 4, 4)}, {vr(XR + 4, 4)}, {vr(Y, 16)}')
        a.e(f's_lshl_b32 s6, s{sC}, 2')
        a.e(f's_lshl_b32 s7, s{sMIR}, 5')
        a.e('s_add_u32 s6, s6, s7')
        a.e(f's_lshl_b32 s7, s{sC}, 1')
        a.e(f's_add_u32 s7, s7, s{sMIR}')
        a.e('s_add_u32 s7, s7, 64')
        a.e(f's_cmp_eq_u32 s{sKT}, 0')
        a.e('s_cselect_b32 s6, s6, s7')
        a.e('s_lshl_b32 s6, s6, 10')
        a.e('v_lshlrev_b32 v5, 4, v5')
        a.e('v_lshl_add_u32 v5, v4, 10, v5')
        a.e('v_add_u32 v5, s6, v5')
        a.e(f'v_add_u32 v6, {R1}, v5')
        a.e('s_cmp_eq_u32 s6, 32768')
        a.e('s_cselect_b32 s6, 0xffff, 0')
        a.e('v_mov_b32 v12, s6')
        a.e('v_cmp_eq_u32 vcc, 0, v4')
        a.e('v_cndmask_b32 v12, 0, v12, vcc')
        a.e('v_bfe_u32 v13, v1, 2, 2')
        a.e('v_lshl_add_u32 v13, v4, 3, v13')
        a.e('v_mul_u32_u24 v13, 192, v13')
        a.e('v_bfe_u32 v11, v1, 4, 1')
        a.e('v_lshlrev_b32 v11, 1, v11')
        a.e('v_and_b32 v7, 1, v1')
        a.e(f's_lshl_b32 s7, s{sKT}, 2')
        a.e('v_add3_u32 v11, v11, v7, s7')
        a.e('v_min_u32 v11, 4, v11')
        a.e('v_lshl_add_u32 v13, v11, 4, v13')
        a.e('v_bfe_u32 v11, v1, 1, 1')
        a.e('v_lshl_add_u32 v13, v11, 3, v13')
        a.e(f's_mul_i32 s6, s{sRHO}, 6144')
        a.e('s_add_u32 s6, s6, s58')
        a.e('v_add_u32 v13, s6, v13')
        a.e(f'v_mov_b32 v11, v{XR}')
        a.wait(lg='tw')
        for r in range(8, 16):
            a.e(f'v_xor_b32 v{TW + r}, 0x80008000, v{TW + r}')

    def reduce_item(l, hf, base):
        SUM, RB = 16, 24
        a.e(f'v_add_u32 v12, {base}, v11')
        a.e(f'v_add_u32 v13, {base + 5 * PRV}, v11')
        for h in range(2):
            a.lds(f'ds_read_b128 {vr(SUM + 4 * h, 4)}, v12 offset:{h * 256}', ('p', 0))
        for p in range(1, 5):
            for h in range(2):
                a.lds(f'ds_read_b128 {vr(RB + 8 * (p - 1) + 4 * h, 4)}, v12 offset:{p * PRV + h * 256}', ('p', p))
        for p in range(1, 8):
            a.wait(lg=('p', p))
            for r in range(8):
                a.e(f'v_add_f32 v{SUM + r}, v{SUM + r}, v{RB + 8 * ((p - 1) % 4) + r}')
            if p + 4 < 8:
                for h in range(2):
                    a.lds(f'ds_read_b128 {vr(RB + 8 * (p - 1) + 4 * h, 4)}, v13 offset:{(p - 1) * PRV + h * 256}', ('p', p + 4))
        for r in range(4):
            a.e(f'v_cvt_pk_bf16_f32 v{SUM + r}, v{SUM + 2 * r}, v{SUM + 2 * r + 1}')
        if l == 0:
            a.e(f's_add_u32 s64, s{sGCM}, 0x{X2B + hf * 40960:x}')
            a.vmem(f'buffer_store_dwordx4 {vr(SUM, 4)}, v7, {sr(sWS, 4)}, s64 offen{LSC}', 'xst')
        else:
            a.e(f's_mul_i32 s64, s{sG if hf == 0 else sTAU1}, 1280')
            a.vmem(f'buffer_store_dwordx4 {vr(SUM, 4)}, v7, {sr(sOUT, 4)}, s64 offen', 'xst')

    def lin(n, sl, lds_add, ssrc, src_add, tag):
        for k in range(n):
            if k % 4 == 0:
                a.e(f's_add_u32 m0, s{sl}, {lds_add + k * 1024}')
                a.e(f's_add_u32 s64, s{ssrc}, 0x{src_add + k * 1024:x}')
            a.vmem(f'buffer_load_dwordx4 v2, {sr(sWS, 4)}, s64 offen offset:{(k % 4) * 1024} sc1 lds', tag)

    def cnt_add(addr, vt):
        a.e(f'v_mov_b32 v{vt}, {addr}')
        a.e('v_mov_b32 v0, 1')
        a.e('s_mov_b64 exec, 1')
        a.lds(f'ds_add_u32 v{vt}, v0', 'cnt')
        a.e('s_mov_b64 exec, -1')

    def cnt_wait(addr, vt):
        L, Ld = a.newlab('Lcw'), a.newlab('Lcd')
        a.e('s_mov_b32 s61, 0')
        a.label(L)
        a.e(f'v_mov_b32 v{vt}, {addr}')
        a.e(f'ds_read_b32 v{vt}, v{vt}')
        a.e('s_waitcnt lgkmcnt(0)')
        a.lg.clear()
        a.e(f'v_cmp_ne_u32 vcc, 8, v{vt}')
        a.e(f's_cbranch_vccz {Ld}')
        a.e('s_sleep 1')
        a.e('s_add_u32 s61, s61, 1')
        a.e(f's_cmp_lt_u32 s61, {SPIN}')
        a.e(f's_cbranch_scc1 {L}')
        a.label(Ld)

    GO, DONE = STATS + 528, STATS + 544

    def sig_set(base, vt):
        a.e(f'v_mov_b32 v{vt}, s56')
        a.lds(f'ds_write_b32 v{vt}, v{vt} offset:{base - 4}', 'sig')

    def sig_wait(base, vt, slp):
        L, Ld = a.newlab('Lgw'), a.newlab('Lgd')
        a.e('s_mov_b32 s61, 0')
        a.label(L)
        a.e(f'v_mov_b32 v{vt}, s56')
        a.e(f'ds_read_b32 v{vt}, v{vt} offset:{base - 4}')
        a.e('s_waitcnt lgkmcnt(0)')
        a.lg.clear()
        a.e(f'v_cmp_eq_u32 vcc, 0, v{vt}')
        a.e(f's_cbranch_vccz {Ld}')
        a.e(f's_sleep {slp}')
        a.e('s_add_u32 s61, s61, 1')
        a.e(f's_cmp_lt_u32 s61, {SPIN}')
        a.e(f's_cbranch_scc1 {L}')
        a.label(Ld)

    bg = BG()
    a.e(f's_mul_i32 s68, s{sWAVE}, 5120')
    a.e(f's_mul_i32 s69, s{sWAVE}, {PRV}')
    a.e(f's_cmp_lt_u32 s{sC}, 4')
    a.e('s_cselect_b32 s58, 16384, 0')
    a.e(f's_add_u32 s58, s58, {R1}')
    a2_pre(0)
    a.wait(vm='vo')
    a.e('s_barrier')
    a.stamp('PV0')
    setflag_w0(a, PH_V[0], 7)

    for l in range(2):
        a.e(f's_lshl_b32 s67, s{sWAVE}, 15')
        a.e(f's_lshl_b32 s6, s{sC}, 10')
        a.e('s_add_u32 s67, s67, s6')
        pV = (7, 67, PH_V[l], 4, 13)
        bg.run(OPT.get('bgpv', 3))
        poll_issue(a, *pV)
        bg.run(OPT.get('bgpv2', 2))
        poll_check(a, *pV)
        if l == 0:
            def id_issue():
                a.e(f'v_mov_b32 v72, s{sFSRC}')
                a.e(f'v_mov_b32 v73, s{sFPAR}')
                a.e('v_cmp_eq_u32 vcc, 0, v1')
                a.e('v_cndmask_b32 v72, v73, v72, vcc')
                a.e(f's_mov_b32 s60, 0x{FLG:x}')
                a.vmem(f'buffer_load_dwordx2 v[72:73], v72, {sr(sWS, 4)}, s60 offen sc1', 'ids')
        a.stamp(f'pollV{l}')
        a.e(f's_mul_i32 s63, s{sWAVE}, 768')
        a.e('s_add_u32 s62, s63, s58')
        a.e('s_mov_b32 exec_hi, 0xffff')
        for rho in range(2):
            a.e(f's_lshl_b32 s6, s{sG if rho == 0 else sTAU1}, 3')
            a.e(f's_add_u32 s6, s6, s{sC}')
            a.e('s_mulk_i32 s6, 6144')
            a.e('s_add_u32 s6, s6, s63')
            a.e(f's_add_u32 s6, s6, 0x{VB[l]:x}')
            a.e(f's_add_u32 m0, s62, {rho * 6144}')
            a.vmem(f'buffer_load_dwordx4 v2, {sr(sWS, 4)}, s6 offen sc1 lds', 'v')
        a.e('s_mov_b64 exec, -1')
        if l == 0:
            id_issue()
        bg.run(OPT.get('bgv', 3))
        a.e('v_lshlrev_b32 v7, 3, v1')
        a.e(f'v_mov_b32 v{VF}, 0')
        a.e(f'v_mov_b32 v{VF + 1}, 0')
        a.lds(f'ds_write_b64 v7, {vr(VF, 2)} offset:{STATS + 256}', 'clr')
        a.wait(vm='v', lg='clr')
        a.e('s_barrier')
        a.stamp(f'V{l}')
        for ks in range(4):
            for rd in range(2):
                a.lds(f'ds_read_b64_tr_b16 {vr(VF + 4 * ks + 2 * rd, 2)}, v13 offset:{(16 * (ks % 2) + 4 * rd) * 192 + (ks // 2) * 80}', ('vf', ks))
        if l == 0:
            for n in range(NST):
                if n < NR:
                    bg.add(lambda n=n: w1load(n))
                bg.add(lambda n=n: stash(n))
            bg.run(OPT.get('bg0', 2))
        a.e(f's_add_u32 s63, s{sGCM}, 0x{X1B[l]:x}')
        a.e(f's_cmp_eq_u32 s{sKT}, 0')
        a.e('s_cselect_b32 s70, -1, 0')
        a.e(f's_cselect_b32 s71, s63, 0x{OOB:x}')
        for ks in range(4):
            a.wait(lg=('vf', ks))
            a.e(f'v_mfma_f32_32x32x16_bf16 {vr(Y, 16)}, {vr(VF + 4 * ks, 4)}, {vr(TW + 4 * ks, 4)}, {vr(Y, 16)}')
        for r in range(8):
            a.e(f'v_cvt_pk_bf16_f32 v{PK + r}, v{Y + 2 * r}, v{Y + 2 * r + 1}')
        a.e(f'v_bfi_b32 v{PK}, v12, v11, v{PK}')
        a.vmem(f'buffer_store_dwordx4 {vr(PK + 4, 4)}, v5, {sr(sWS, 4)}, s71 offen offset:2048{LSC}', 'x1s')
        a.e('s_mov_b32 exec_hi, s70')
        a.vmem(f'buffer_store_dwordx4 {vr(PK, 4)}, v5, {sr(sWS, 4)}, s63 offen{LSC}', 'x1s')
        a.lds(f'ds_write_b128 v6, {vr(PK, 4)}', 'x1w')
        a.e('s_mov_b32 exec_lo, s70')
        a.lds(f'ds_write_b128 v6, {vr(PK + 4, 4)} offset:2048', 'x1w')
        a.e('s_mov_b64 exec, -1')
        bg.run(OPT.get('bgx0', 4 if l == 0 else 3))
        a.wait(vm='x1s')
        a.e('s_barrier')
        a.stamp(f'X1s{l}')
        setflag_w0(a, PH_X1[l], 7)
        if l == 0:
            L, Ld = a.newlab('Lidp'), a.newlab('Lidd')
            a.e(f's_add_u32 s59, s{sNON}, {PH_V[0]}')
            a.wait(vm='ids')
            a.e('s_mov_b32 s61, 0')
            a.label(L)
            a.e('v_subrev_u32 v72, s59, v72')
            a.e('v_cmp_le_u32 vcc, 16, v72')
            a.e(f's_cbranch_vccz {Ld}')
            st = a.save()
            id_issue()
            a.restore(st)
            a.e('s_waitcnt vmcnt(0)')
            a.e('s_add_u32 s61, s61, 1')
            a.e(f's_cmp_lt_u32 s61, {SPIN}')
            a.e(f's_cbranch_scc1 {L}')
            a.e('v_mov_b32 v73, -1')
            a.label(Ld)
            a.e('s_nop 0')
            a.e('v_readlane_b32 s6, v73, 0')
            a.e('v_readlane_b32 s7, v73, 1')
            for r, sf in ((6, sFSRC), (7, sFPAR)):
                a.e(f's_cmp_eq_u32 s{r}, s{sXCC}')
                a.e(f's_cselect_b32 s{r}, 0x{LOC if OPT.get("loc", 1) else 0:x}, 0')
                a.e(f's_add_u32 s{sf}, s{sf}, s{r}')
            a.e('s_and_b32 s6, s6, s7')
            a.e('s_cselect_b32 s6, 0, 1')
            a.e(f'v_mov_b32 v72, {STATS + 520}')
            a.e('v_mov_b32 v73, s6')
            a.lds('ds_or_b32 v72, v73', 'idw')
        CP = 16
        if l == 0:
            a.e(f's_lshl_b32 s6, s{sU1}, 6')
            a.e('v_lshl_add_u32 v7, v10, 2, s6')
            a.e('s_movk_i32 s7, 6912')
            a.e('v_mad_u32_u24 v7, v4, s7, v7')
            for n in range(10):
                a.e(f's_mov_b32 s7, 0x{CSP + n * 2 * 6912:x}')
                a.vmem(f'buffer_load_dword v{CP + n}, v7, {sr(sWS, 4)}, s7 offen sc1', 'cs')
        bg.run(OPT.get('bgx1', 3))
        poll(a, 7, sFSRC, PH_X1[l], 1)
        a.stamp(f'pollX1{l}')
        a.e(f's_lshl_b32 s6, s{sWAVE}, 12')
        a.e('s_lshr_b32 s7, s6, 1')
        a.e('s_add_u32 s66, s63, s6')
        a.e('s_add_u32 s57, s63, s7')
        a.e(f's_cmp_eq_u32 s{sWAVE}, s{sC}')
        a.e(f's_cselect_b32 s66, 0x{OOB:x}, s66')
        a.e(f's_cselect_b32 s57, 0x{OOB:x}, s57')
        a.e('s_cselect_b32 s67, 0x14000, s6')
        a.e('s_cselect_b32 s56, 0x14000, s7')
        lin(4, 67, R1, 66, 0, ('x1', 0))
        if l == 0:
            for n in range(1, 10):
                a.e(f'v_add_f32 v{CP}, v{CP}, v{CP + n}')
            a.e(f'v_mov_b32 v15, v{CP}')
            a.e(f'v_permlane32_swap_b32 v{CP}, v15')
            a.e(f'v_add_f32 v15, v{CP}, v15')
        a.e(f's_lshl_b32 s6, s{sWAVE}, 7')
        a.e('v_lshl_add_u32 v7, v10, 2, s6')
        a.lds(f'ds_write_b32 v7, v15 offset:{CSS}', 'csw')
        a.e(f'v_add_u32 v5, {R1}, v3')
        a.e(f'v_add_u32 v6, {R1 + 40960}, v3')
        lin(4, 67, R1 + 32768, 66, 32768, ('x1', 1))
        lin(2, 56, R1 + 65536, 57, 65536, ('x1', 1))
        bg.run(OPT.get('bgx2', 2))
        a.wait(vm=('x1', 0), lg='all')
        a.e('s_barrier')
        a.stamp(f'B1{l}')
        if l == 0:
            a.e('ds_read_b32 v73, v72')
            a.e('s_waitcnt lgkmcnt(0)')
            a.e('v_readfirstlane_b32 s26, v73')
        LS, Lid, Lg2, Ljoin = (a.newlab(x) for x in ('LS', 'Lid', 'Lg2', 'Ljoin'))
        a.e(f's_cmp_eq_u32 s{sWAVE}, 7')
        a.e(f's_cbranch_scc1 {LS}')
        a.e(f's_cmp_ge_u32 s{sWAVE}, s{sU2}')
        a.e(f's_cbranch_scc1 {Lid}')
        st0 = a.save()
        q = list(bg.q)
        bg.q = []
        NW2 = OPT.get('nw2', 20)
        need2 = list(range(30)) if l == 0 else []

        def xaddr(ks, rt):
            return (5, ks * 4096 + rt * 256) if ks < 10 else (6, (ks - 10) * 4096 + rt * 256)

        def xread(n):
            for rt in range(4):
                b, o = xaddr(n, rt)
                a.lds(f'ds_read_b128 {vr(XF + 16 * (n % 3) + 4 * rt, 4)}, v{b} offset:{o}', ('xf', n))

        EP = XF + 32

        def epi_reads():
            a.e('v_lshlrev_b32 v7, 2, v8')
            for rt in range(4):
                a.lds(f'ds_read_b32 v{EP + 12 + rt}, v7 offset:{STATS + 256 + rt * 64}', 'st')
            for rt in range(4):
                a.lds(f'ds_read_b32 v{EP + 8 + rt}, v7 offset:{STATS + rt * 64}', 'st')

        p1 = (11, sFSRC, PH_H[l], 3, 7, 0)
        p2 = (13, sFSRC, PH_H[l], 4, 7, 3)

        young = {'n': 0}
        orig_vmem = a.vmem

        def vmem_cnt(s, tag=None):
            young['n'] += 1
            orig_vmem(s, tag)

        def ack_and_flag(slot):
            a.e(f's_waitcnt vmcnt({young["n"]})')
            a.stamp(f'ack{slot}')
            del a.vm[:max(0, len(a.vm) - young['n'])]
            a.vmem = orig_vmem
            setflag(a, slot, 12)

        acc = lambda rt, ft: vr(ACCB + 4 * (rt * 5 + ft), 4)
        seq = [(s, rt) for s in range(3) for rt in range(4)] + [(s, rt) for hf in range(2) for s in range(3, 7) for rt in (2 * hf, 2 * hf + 1)]
        hb = lambda z: vr(HBUF[(z + 1) % 5], 4)

        def hread(z):
            if z < 4 or z >= len(seq):
                return
            s, rt = seq[z]
            if z < 12:
                a.wait(vm=('h', s))
                a.lds(f'ds_read_b128 {hb(z)}, v5 offset:{(s - 1) * 4096 + rt * 256}', ('hz', z))
            else:
                hf = rt // 2
                a.wait(vm=('h2', hf, s))
                a.lds(f'ds_read_b128 {hb(z)}, v6 offset:{(0 if hf else 0) + (s - 3) * 2048 + (rt % 2) * 256}', ('hz', z))

        def zmf(z, first=False):
            s, rt = seq[z]
            if z < 4:
                a.wait(vm=[('h', 0)] + [('w2', k) for k in range(5)])
            else:
                a.wait(vm=[('w2', 5 * s + k) for k in range(5)], lg=('hz', z))
            for ft in range(5):
                a.e(f'v_mfma_f32_16x16x32_bf16 {acc(rt, ft)}, {vr(w2reg(5 * s + ft), 4)}, {hb(z)}, {"0" if first else acc(rt, ft)}')


        def guarded(nwaves, frs):
            Lf = a.newlab('Lf')
            a.e(f's_cmp_ge_u32 s{sWAVE}, {nwaves}')
            a.e(f's_cbranch_scc1 {Lf}')
            st = a.save()
            for f in frs:
                w2load(f)
            seen = set(a.seen)
            a.restore(st)
            a.seen = seen
            a.label(Lf)

        def usread(n):
            a.wait(vm=('ws', n))
            a.lds(f'ds_read_b128 {vr(JIT[n % 2], 4)}, v13 offset:{(n % NST) * 1024}', ('us', n))

        prio(a, 2)
        a.e('v_add_u32 v13, s69, v2')
        xread(0)
        usread(0)
        xread(1)
        usread(1)
        r2 = need2[:NW2]
        for n in range(20):
            if n == 6:
                cnt_wait(CNT1, 7)
            if n + 2 < 20:
                xread(n + 2)
            a.wait(vm=('w1', n), lg=[('xf', n), ('us', n)])
            for h in range(2):
                for rt in range(4):
                    ac = vr(ACCX + 16 * h + 4 * rt, 4)
                    w = RING[n % NR] if h == 0 else JIT[n % 2]
                    a.e(f'v_mfma_f32_16x16x32_bf16 {ac}, {vr(w, 4)}, {vr(XF + 16 * (n % 3) + 4 * rt, 4)}, {"0" if n == 0 else ac}')
                if h == 0:
                    while q:
                        q.pop(0)()
                    if n + NR < 20:
                        w1load(n + NR)
                    if n + NST < 20:
                        stash(n + NST)
            if n + 2 < 20:
                usread(n + 2)
            if n == 1:
                a.wait(vm=('x1', 1))
                cnt_add(CNT1, 7)
            for _ in range(1 if n < 12 else 2):
                if r2 and n < 17:
                    w2load(r2.pop(0))
            if l == 1 and n == 14:
                a.wait(vm=[('w1', 19), ('ws', 19)])
                guarded(5, range(20, 30))
            if n == 18:
                a.e(f's_lshl_b32 s6, s{sWAVE}, 7')
                a.e('v_lshl_add_u32 v7, v9, 4, s6')
                for h in range(2):
                    a.lds(f'ds_read_b128 {vr(EP + 4 * h, 4)}, v7 offset:{CSS + h * 64}', 'csr')
                epi_reads()
        assert not r2
        a.stamp(f'gend{l}')
        prio(a, 3)
        a.e(f's_lshl_b32 s65, s{sU1}, 11')
        a.e(f's_add_u32 s65, s65, s{sHG}')
        a.e(f's_add_u32 s65, s65, 0x{HB[l]:x}')
        L, Ld = a.newlab('Lsw'), a.newlab('Lsd')
        a.e('s_mov_b32 s61, 0')
        a.label(L)
        a.e('s_waitcnt lgkmcnt(0)')
        a.lg.clear()
        a.e(f'v_min_u32 v7, v{EP + 12}, v{EP + 13}')
        a.e(f'v_min3_u32 v7, v7, v{EP + 14}, v{EP + 15}')
        a.e('v_cmp_eq_u32 vcc, 0, v7')
        a.e(f's_cbranch_vccz {Ld}')
        a.e('s_sleep 1')
        epi_reads()
        a.lg.clear()
        a.e('s_add_u32 s61, s61, 1')
        a.e(f's_cmp_lt_u32 s61, {SPIN}')
        a.e(f's_cbranch_scc1 {L}')
        a.e('s_waitcnt lgkmcnt(0)')
        a.label(Ld)
        a.e('v_lshlrev_b32 v7, 10, v4')
        a.e('v_lshl_add_u32 v7, v10, 4, v7')
        for h in range(2):
            for pr in range(2):
                b = ACCX + 16 * h + 8 * pr
                for r in range(8):
                    a.e(f'v_fma_f32 v{b + r}, -v{EP + 8 + 2 * pr + r // 4}, v{EP + 4 * h + r % 4}, v{b + r}')
                for r in range(8):
                    a.e(f'v_mul_f32 v{b + r}, v{b + r}, v{EP + 12 + 2 * pr + r // 4}')
                for r in range(4):
                    a.e(f'v_cvt_pk_bf16_f32 v{b + r}, v{b + 2 * r}, v{b + 2 * r + 1}')
                for r in range(4):
                    a.e(f'v_pk_max_i16 v{b + r}, v{b + r}, 0')
                a.e(f'v_permlane16_swap_b32 v{b}, v{b + 2}')
                a.e(f'v_permlane16_swap_b32 v{b + 1}, v{b + 3}')
                a.vmem(f'buffer_store_dwordx4 {vr(b, 4)}, v7, {sr(sWS, 4)}, s65 offen offset:{h * 2048 + pr * 512} sc1', 'hst')
        a.label(Lg2)
        seenG = set(a.seen)

        def start_b2(first):
            cnt_add(CNT2, 7)
            poll_issue(a, *p1)
            a.wait(vm='poll')
            a.stamp(f'ackH{l}')
            setflag(a, PH_H[l], 12)
            poll_check(a, *p1)
            a.stamp(f'pollA{l}')
            a.e(f's_add_u32 s64, s{sHK}, 0x{HB[l]:x}')
            for rt in range(4):
                a.vmem(f'buffer_load_dwordx4 {vr(HBUF[rt + 1], 4)}, v3, {sr(sWS, 4)}, s64 offen offset:{rt * 256} sc1', ('h', 0))
            lin(4, 69, 0, sHK, HB[l] + 4096, ('h', 1))
            lin(4, 69, 4096, sHK, HB[l] + 8192, ('h', 2))
            poll_issue(a, *p2)
            prio(a, 1)
            for z in range(4):
                zmf(z, first)
        start_b2(True)
        stE = a.save()
        a.e(f's_branch {Ljoin}')

        a.label(Lid)
        a.restore(st0)
        a.wait(vm=('x1', 1))
        cnt_add(CNT1, 7)
        for f in need2[:NW2]:
            w2load(f)
        a.e('s_sleep 32')
        a.e(f's_branch {Lg2}')

        a.label(LS)
        a.restore(st0)
        r2 = need2[:NW2]
        AS, AM, ONE, FS = 16, 32, 108, 48
        prio(a, 3)
        for r in range(4):
            a.e(f'v_mov_b32 v{ONE + r}, 0x3f803f80')
        xread(0)
        xread(1)
        for ks in range(20):
            if ks == 1:
                a.wait(vm=('x1', 1))
                cnt_add(CNT1, 7)
            if ks == 6:
                cnt_wait(CNT1, 7)
            if ks + 2 < 20:
                xread(ks + 2)
            a.wait(lg=('xf', ks))
            for rt in range(4):
                f = vr(FS + 16 * (ks % 3) + 4 * rt, 4)
                a.e(f'v_mfma_f32_16x16x32_bf16 {vr(AS + 4 * rt, 4)}, {f}, {f}, {"0" if ks == 0 else vr(AS + 4 * rt, 4)}')
                a.e(f'v_mfma_f32_16x16x32_bf16 {vr(AM + 4 * rt, 4)}, {f}, {vr(ONE, 4)}, {"0" if ks == 0 else vr(AM + 4 * rt, 4)}')
            if ks >= 2 and r2:
                w2load(r2.pop(0))
        a.e(f's_mov_b32 s6, {STATS}')
        stats_finalize(a, AS, AM, 4, 11, 64, 256, 'm_rs')
        a.stamp(f'stat{l}')
        prio(a, 0)
        PM, TB = w2reg(30), w2reg(31)
        a.e(f's_cmp_ge_u32 s{sC}, 4')
        a.e('s_cselect_b64 s[70:71], -1, 0')
        a.e('v_and_b32 v11, 7, v8')
        a.e('v_sub_u32 v12, 8, v11')
        a.e('v_cndmask_b32 v12, v11, v12, s[70:71]')
        a.e('v_lshrrev_b32 v13, 3, v8')
        a.e('v_add_u32 v0, 2, v13')
        a.e('v_cmp_eq_u32 vcc, 0, v11')
        a.e('v_cndmask_b32 v12, v12, 0, vcc')
        a.e('v_cndmask_b32 v13, v13, v0, vcc')
        a.e('v_and_b32 v0, 1, v12')
        a.e('v_lshlrev_b32 v0, 4, v0')
        a.e('v_mov_b32 v7, 0x3f80')
        a.e('v_lshlrev_b32 v0, v0, v7')
        a.e('v_cmp_eq_u32 vcc, v13, v9')
        a.e('v_cndmask_b32 v0, 0, v0, vcc')
        a.e('v_lshrrev_b32 v12, 1, v12')
        for r in range(4):
            a.e(f'v_cmp_eq_u32 vcc, {r}, v12')
            a.e(f'v_cndmask_b32 v{PM + r}, 0, v0, vcc')
        a.e(f's_mul_i32 s6, s{sC}, 10')
        a.e('v_cmp_le_u32 s[72:73], 2, v9')
        for ft in range(5):
            a.e('v_and_b32 v11, 1, v9')
            a.e(f'v_add3_u32 v11, v11, s6, {2 * ft}')
            a.e('v_sub_u32 v12, 119, v11')
            a.e('v_cndmask_b32 v12, v11, v12, s[70:71]')
            a.e('v_sub_u32 v13, 120, v11')
            a.e('v_cndmask_b32 v13, v11, v13, s[70:71]')
            if ft == 0:
                a.e('v_cmp_eq_u32 vcc, 0, v13')
                a.e('v_cndmask_b32 v13, v13, 40, vcc')
                a.e('v_cmp_eq_u32 vcc, 80, v13')
                a.e('v_cndmask_b32 v13, v13, 0, vcc')
            a.e('v_cndmask_b32 v12, v12, v13, s[72:73]')
            a.e('v_mul_u32_u24 v13, 13108, v12')
            a.e('v_lshrrev_b32 v13, 16, v13')
            a.e('v_sub_u32 v11, v12, v13')
            a.e('v_mul_u32_u24 v0, 5, v13')
            a.e('v_sub_u32 v12, v12, v0')
            a.e('v_and_b32 v0, 7, v13')
            a.e('v_lshrrev_b32 v13, 3, v13')
            a.e('v_lshl_add_u32 v13, v0, 1, v13')
            a.e('v_add_u32 v13, 64, v13')
            a.e('v_cmp_eq_u32 vcc, 4, v12')
            a.e('v_cndmask_b32 v11, v11, v13, vcc')
            a.e('v_lshlrev_b32 v11, 10, v11')
            a.e('v_lshl_add_u32 v11, v8, 4, v11')
            a.e(f'v_add_u32 v11, {R1}, v11')
            for rt in range(4):
                a.lds(f'ds_read_b128 {vr(TB + 4 * rt, 4)}, v11 offset:{rt * 256}', ('rs', rt))
            for rt in range(4):
                a.wait(lg=('rs', rt))
                a.e(f'v_mfma_f32_16x16x32_bf16 {acc(rt, ft)}, {vr(PM, 4)}, {vr(TB + 4 * rt, 4)}, 0')
        for f in r2:
            w2load(f)
        a.seen |= seenG
        start_b2(False)
        a.label(Ljoin)
        a.e('s_nop 1')
        a.restore(stE)
        a.lg.clear()
        a.stamp(f'join{l}')
        a.forget('w1', 'ws', 'v', 'x1', 'us')
        a.e('v_add_u32 v5, s69, v3')
        for z in range(4, 9):
            hread(z)
        a.e('v_lshrrev_b32 v11, 4, v10')
        a.e('v_mul_u32_u24 v11, 5120, v11')
        a.e('v_lshl_add_u32 v11, v4, 9, v11')
        a.e('v_lshl_add_u32 v11, v8, 4, v11')
        a.e(f's_lshl_b32 s6, s{sWAVE}, 10')
        a.e('v_add_u32 v11, s6, v11')

        def h2dma(hf, s):
            for k in range(2):
                a.e(f's_add_u32 m0, s69, {(R1 if hf == 0 else 0) + (s - 3) * 2048 + k * 1024}')
                a.e(f's_add_u32 s64, s{sHK}, 0x{HB[l] + s * 4096 + k * 2048 + hf * 512:x}')
                if s == 6:
                    a.e(f's_cmp_ge_u32 s{sWAVE}, 6')
                    a.e(f's_cselect_b32 s64, 0x{OOB:x}, s64')
                a.vmem(f'buffer_load_dwordx4 v12, {sr(sWS, 4)}, s64 offen sc1 lds', ('h2', hf, s))
        ZP = OPT.get('zp', 6)
        for z in range(4, 12):
            zmf(z)
            if z + 5 < 12:
                hread(z + 5)
            if z == ZP:
                poll_check(a, *p2)
                a.stamp(f'pollB{l}')
                cnt_wait(CNT2, 12)
                guarded(6, range(30, 35))
                for f in need2[NW2:]:
                    w2load(f)
                a.e('v_lshlrev_b32 v12, 10, v4')
                a.e('v_lshl_add_u32 v12, v10, 4, v12')
                for s in range(3, 7):
                    h2dma(0, s)
        a.stamp(f'b2h1_{l}')
        a.e('v_lshlrev_b32 v6, 4, v8')
        a.e('v_lshl_add_u32 v6, v9, 9, v6')
        a.e(f's_add_u32 s6, s69, {R1}')
        a.e('v_add_u32 v6, s6, v6')
        a.e(f's_lshl_b32 s6, s{sWAVE}, 1')
        a.e(f's_mul_i32 s7, s{sC}, 10')
        a.e('s_add_u32 s6, s6, s7')
        a.e('v_add_u32 v7, s6, v4')
        if l == 0:
            a.e('v_lshlrev_b32 v7, 9, v7')
            a.e('v_lshl_add_u32 v7, v10, 4, v7')
        else:
            a.e('v_lshlrev_b32 v7, 4, v7')
            a.e(f's_mov_b32 s7, {64 * 1280}')
            a.e('v_mad_u32_u24 v7, v10, s7, v7')

        def write_partials(hf):
            a.e(f's_add_u32 s6, s69, {R1 if hf == 0 else 0}')
            a.e('v_add_u32 v12, s6, v2')
            for t in range(10):
                a.lds(f'ds_write_b128 v12, {vr(ACCB + 40 * hf + 4 * t, 4)} offset:{t * 1024}', 'pw')

        def half(hf, mid=None):
            z0 = 12 + 8 * hf
            LA = OPT.get('la', 3)
            for z in range(z0, z0 + LA):
                hread(z)
            Ls = a.newlab('Lsk')
            for z in range(z0, z0 + 8):
                if z + LA < z0 + 8:
                    hread(z + LA)
                if z == z0 + 6:
                    a.e(f's_cmp_ge_u32 s{sWAVE}, 6')
                    a.e(f's_cbranch_scc1 {Ls}')
                zmf(z)
                if mid:
                    mid(z - z0)
            a.label(Ls)
            a.e('s_nop 7')
            a.wait(lg='all')

        prio(a, 2)
        half(0, lambda k: h2dma(1, 3 + k) if k < 4 else None)
        a.stamp(f'b2A{l}')
        write_partials(0)
        a.e(f'v_subrev_u32 v6, {R1}, v6')
        prio(a, 1)
        pXA = (5, sFSRC, PH_XA, 5)

        def midB(k):
            if k == OPT.get('kpa', 1):
                a.wait(lg='pw')
                a.e('s_barrier')
                a.stamp(f'PA{l}')
                Lnr = a.newlab('Lnr')
                a.e(f's_cmp_ge_u32 s{sWAVE}, 5')
                a.e(f's_cbranch_scc1 {Lnr}')
                st = a.save()
                prio(a, 3)
                reduce_item(l, 0, R1)
                prio(a, 2)
                a.restore(st)
                a.label(Lnr)
                a.e('s_nop 1')
                a.stamp(f'redA{l}')
            if k == 5 and l == 0:
                a.wait(vm='all')
                setflag(a, PH_XA, 13)
        half(1, midB)
        a.stamp(f'b2B{l}')
        prio(a, 3)
        write_partials(1)
        a.forget('h', 'h2')
        a.seen -= {('w2', f) for f in range(20, 35)}
        if l == 0:
            a.e(f's_mul_i32 s66, s{sC}, 5')
            a.e(f's_add_u32 s66, s66, s{sWAVE}')
            a.e('s_mul_i32 s66, s66, 20480')
            a.e(f's_add_u32 s66, s66, 0x{DPF:x}')
        a.wait(lg='all')
        a.e('s_barrier')
        a.stamp(f'PB{l}')
        if l == 1:
            a.e(f's_cmp_ge_u32 s{sWAVE}, 5')
            a.e(f's_cbranch_scc1 {end}_a')
            reduce_item(l, 1, 0)
            a.label(end + '_a')
            a.stamp_dump(2, sWS, sWAVE, 15)
            break

        def dloads(rng):
            for ks in rng:
                a.e(f's_add_u32 s64, s66, {(ks // 4) * 4096}')
                a.e(f'buffer_load_dwordx4 {vr(dreg(ks), 4)}, v2, {sr(sWS, 4)}, s64 offen offset:{(ks % 4) * 1024} sc1')

        Lnr = a.newlab('Lnr')
        ND0 = OPT.get('nd0', 6)
        a.e(f's_cmp_ge_u32 s{sWAVE}, 5')
        a.e(f's_cbranch_scc1 {Lnr}')
        st = a.save()
        dloads(range(ND0))
        reduce_item(l, 1, 0)
        a.restore(st)
        a.label(Lnr)
        a.e('s_nop 1')
        a.vm.clear()
        poll_issue(a, *pXA)
        a.wait(vm='poll')
        setflag(a, PH_XB, 12)
        poll_check(a, *pXA)
        a.e(f's_add_u32 s67, s{sGCM}, s68')
        lin(5, 68, R1, 67, X2B, ('x2', 0))
        a.e('v_lshlrev_b32 v5, 4, v8')
        a.e('v_lshl_add_u32 v5, v9, 9, v5')
        a.e(f'v_add_u32 v5, {R1}, v5')
        a.e('v_add_u32 v6, 40960, v5')
        a.e(f's_mul_i32 s67, s{sPG}, 81920')
        a.e('s_add_u32 s67, s67, s68')
        Lst, Lid, Lj = a.newlab('Lst'), a.newlab('Lid'), a.newlab('Lj')
        a.e(f's_cmp_eq_u32 s{sWAVE}, 7')
        a.e(f's_cbranch_scc1 {Lid}')
        a.e(f's_cmp_ge_u32 s{sWAVE}, 5')
        a.e(f's_cbranch_scc1 {Lst}')
        st0 = a.save()
        pXB = (7, sFPAR, PH_XB, 5)
        pXO = (11, sFSRC, PH_XB, 5)
        KPI, KPC = OPT.get('kpi', 0), OPT.get('kpc', 6)

        def startA1():
            a.wait(vm=('x2', 0))
            a.e('s_barrier')
            a.stamp('XA')

        def hookA1(hf, ks):
            if hf == 0:
                if ks == KPI:
                    poll_issue(a, *pXB)
                if ks == KPC:
                    poll_check(a, *pXB)
                    a.stamp('pollXB')
                    lin(5, 68, R1 + 40960, 67, X2B + 40960, ('x2', 1))
                    a.e(f's_lshl_b32 s6, s{sWAVE}, 11')
                    a.e(f's_add_u32 m0, s6, {W1SL}')
                    a.e(f's_lshl_b32 s7, s{sC}, 14')
                    a.e('s_add_u32 s6, s6, s7')
                    a.e(f's_add_u32 s6, s6, 0x{W1S:x}')
                    for n in range(2):
                        a.vmem(f'buffer_load_dwordx4 v2, {sr(sWS, 4)}, s6 offen offset:{n * 1024} sc1 lds', 'w1s')
                    poll_issue(a, *pXO, tag='poll2')
                if ks == 19:
                    a.stamp('a1A')
                    poll_check(a, *pXO, tag='poll2')
                    a.wait(lg='all')
                    a.e('s_barrier')
                    a.stamp('XB')
            else:
                if ks == 0:
                    xr_dma1()
                if ks == 2:
                    tw_dma(TWL1)

        WFA = 32
        RSr, MRr = [196, 200, 204, 208], [212, 216, 220, 224]
        NSG = 8
        wf = lambda mat, tt, ks: WFA + ((mat * 4 + tt) * 2 + ks) * 4
        for ks in range(ND0, 20):
            a.e(f's_add_u32 s64, s66, {(ks // 4) * 4096}')
            a.vmem(f'buffer_load_dwordx4 {vr(dreg(ks), 4)}, v2, {sr(sWS, 4)}, s64 offen offset:{(ks % 4) * 1024} sc1', ('d', ks))
        startA1()
        for hf in range(2):
            def xread1(ks):
                for rt in range(2):
                    a.lds(f'ds_read_b128 {vr(XFA + 8 * (ks % NSG) + 4 * rt, 4)}, v{5 + hf} offset:{ks * 2048 + rt * 256}', ('xf', ks))
            for ks in range(NSG - 1):
                xread1(ks)
            for ks in range(20):
                if ks % 5 == 0:
                    prio(a, 3 - ks // 5)
                if ks + NSG - 1 < 20:
                    xread1(ks + NSG - 1)
                a.wait(vm=('d', ks) if ks >= ND0 else None, lg=('xf', ks))
                for rt in range(2):
                    ac = vr(ACCA + 8 * hf + 4 * rt, 4)
                    a.e(f'v_mfma_f32_16x16x32_bf16 {ac}, {vr(XFA + 8 * (ks % NSG) + 4 * rt, 4)}, {vr(dreg(ks), 4)}, {"0" if ks == 0 else ac}')
                hookA1(hf, ks)
        prio(a, 3)
        for tt in range(4):
            for ks in range(2):
                for mat in range(2):
                    a.lds(f'ds_read_b128 {vr(wf(mat, tt, ks), 4)}, v2 offset:{W1SL + ((mat * 4 + tt) * 2 + ks) * 1024}', 'wf')
        a.e('v_lshlrev_b32 v12, 4, v9')
        a.stamp('a1B')
        a.e('s_barrier')
        a.stamp('ST')
        for rt in range(4):
            a.lds(f'ds_read_b128 {vr(RSr[rt], 4)}, v12 offset:{ST1 + rt * 64}', 'st')
            a.lds(f'ds_read_b128 {vr(MRr[rt], 4)}, v12 offset:{ST1 + 256 + rt * 64}', 'st')
        stage1(a, ACCA, RSr, MRr, 96, wf, R1)
        a.wait(vm='twd')
        stC = a.save()
        a.e(f's_branch {Lj}')

        a.label(Lid)
        a.restore(st0)
        startA1()
        for hf in range(2):
            for ks in range(20):
                hookA1(hf, ks)
        if OPT.get('t1', 0):
            a.e('v_lshlrev_b32 v0, 7, v10')
            a.e('v_mul_u32_u24 v7, 20480, v4')
            a.e('v_add_u32 v0, v0, v7')
            a.e('s_and_b32 s6, s101, 3')
            a.e('s_mul_i32 s6, s6, 3072')
            a.e('s_mul_i32 s7, s100, 40960')
            a.e('s_add_u32 s6, s6, s7')
            for t in range(7):
                a.e(f's_add_u32 s7, s6, {W1F + 8192 + t * 40960}')
                a.vmem(f'buffer_load_dword v7, v0, {sr(sWS, 4)}, s7 offen sc1', 'touch')
                a.e(f's_sleep {OPT.get("t1s", 3)}')
        a.wait(vm='twd')
        a.e('s_barrier')
        a.e(f's_branch {Lj}')

        a.label(Lst)
        a.restore(st0)
        AS, AM, ONE, FS = 16, 24, 32, 36
        for r in range(4):
            a.e(f'v_mov_b32 v{ONE + r}, 0x3f803f80')
        a.e(f's_sub_u32 s66, s{sWAVE}, 5')
        a.e('s_lshl_b32 s6, s66, 8')
        a.e('v_add_u32 v5, s6, v5')
        a.e('v_add_u32 v6, s6, v6')
        startA1()
        for hf in range(2):
            def sread(ks):
                a.lds(f'ds_read_b128 {vr(FS + 4 * (ks % 10), 4)}, v{5 + hf} offset:{ks * 2048}', ('sf', ks))
            for ks in range(9):
                sread(ks)
            for ks in range(20):
                if ks % 5 == 0:
                    prio(a, 3 - ks // 5)
                if ks + 9 < 20:
                    sread(ks + 9)
                a.wait(lg=('sf', ks))
                f = vr(FS + 4 * (ks % 10), 4)
                a.e(f'v_mfma_f32_16x16x32_bf16 {vr(AS + 4 * hf, 4)}, {f}, {f}, {"0" if ks == 0 else vr(AS + 4 * hf, 4)}')
                a.e(f'v_mfma_f32_16x16x32_bf16 {vr(AM + 4 * hf, 4)}, {f}, {vr(ONE, 4)}, {"0" if ks == 0 else vr(AM + 4 * hf, 4)}')
                hookA1(hf, ks)
        prio(a, 3)
        a.e('s_lshl_b32 s6, s66, 6')
        a.e(f's_add_u32 s6, s6, {ST1}')
        stats_finalize(a, AS, AM, 2, 11, 128, 256, 'rs_mr')
        a.wait(lg='all')
        a.e('s_barrier')
        a.wait(vm='twd')
        a.label(Lj)
        a.e('s_nop 1')
        a.restore(stC)
        v_out_addr(a)
        a.wait(lg='all')
        a.e('s_barrier')
        a.stamp('VT')
        v_out(a, 1, R1, 64)
        for i in range(3):
            bg.add(lambda i=i: w1load(i))
        for n in range(NST):
            bg.add(lambda n=n: stash(n))
            if n + 3 < NR:
                bg.add(lambda n=n: w1load(n + 3))
        bg.run(3)
        a2_pre(1)
        a.wait(vm='vo')
        a.e('s_barrier')
        a.stamp('PV1')
        setflag_w0(a, PH_V[1], 7)

    a.label(end)
    a.e('s_endpgm')
    a.raw(descriptor(name, 256, 102))
    return 163840


def main():
    if len(sys.argv) > 2 and 'stamps' in sys.argv[2:]:
        Asm.STAMPS = True
    Asm.CYC = 'cyc' in sys.argv[2:]
    for o in sys.argv[2:]:
        if o.startswith('names='):
            Asm.ACTIVE = o[6:].split(',')
        elif '=' in o:
            k, v = o.split('=')
            OPT[k] = int(v)
    hdr = open('cdna_kernels/' + NAME + '.s.ref').read().split('\n')
    hdr = [l for l in hdr if l.startswith(';') and '@launch' not in l and 'Override launch' not in l and 'grid=ceil' not in l]
    out = '\n'.join(hdr) + '\n'
    a = Asm()
    lds = gen(a, NAME + '_kernel')
    out += f'; @launch grid=(256,1,1) block=(512,1,1) lds={lds}\n'
    if Asm.STAMPS:
        out += '; stampnames start,' + ','.join(Asm.ACTIVE) + '\n'
    out += '.amdgcn_target "amdgcn-amd-amdhsa--gfx950"\n'
    out += a.text()
    path = sys.argv[1] if len(sys.argv) > 1 else 'cdna_kernels/' + NAME + '.s'
    open(path, 'w').write(out)
    print('wrote', path, len(out))


main()
```

```python
import sys
from asmlib import *

NAME = 'interleave_layers__spectral_fnet__dense_activation_relu__prompt'
S, D, F = 2048, 640, 1728
W1F = 0
W2F = 0x220000
DPF = 0x440000
CSP = 0x510000
W1S = 0x540000
TWP = 0x560000
FLG = 0x760000
VB = [0x960000, 0xC60000]
X1B = [0xF60000, 0x11E0000]
X2B = 0x1460000
HB = [0x16E0000, 0x1DA0000]
WS_BYTES = 268435456
OOB = 0x7f000000
SPIN = 200000
OPT = {}

R1 = 81920
PRV = 10240
STATS, CSS = 9216, PRV + 9216
CNT1, CNT2 = STATS + 512, STATS + 516
XRL1, TWL1, W1SL, ST1 = R1 + 12288, R1 + 24576, 20480, 36864

sWAVE, sG, sC = 3, 4, 5
P_X, P_CR, P_CI, P_DR, P_DI, P_W1, P_W2, P_OUT, P_WS = 8, 10, 12, 14, 16, 20, 22, 24, 26
sWS, sOUT, sFL = 28, 32, 36
sRHO, sKT, sMIR, sNON, sU1, sU2 = 38, 39, 40, 41, 42, 43
sGCM, sFOWN, sW1B, sHK, sW2O, sHG, sFSRC, sTAU1, sPG, sFPAR = 44, 45, 46, 47, 48, 49, 50, 51, 52, 53


def weave(a, mfs, fill):
    fill = list(fill)
    for i, m in enumerate(mfs):
        a.e(m)
        left = len(mfs) - i
        for _ in range(-(-len(fill) // left)):
            fill.pop(0)()


class BG:
    def __init__(self):
        self.q = []

    def add(self, f):
        self.q.append(f)

    def run(self, n=None):
        n = len(self.q) if n is None else min(n, len(self.q))
        for _ in range(n):
            self.q.pop(0)()


PH_V, PH_X1, PH_H, PH_X2 = (1, 6), (2, 7), (3, 8), 4
LOC = 0x80000
sXCC = 27


def poll_issue(a, vres, soff, phase, n, shift=7, first=0, tag='poll'):
    a.e(f'v_min_u32 v{vres}, {n - 1}, v1')
    a.e(f'v_lshlrev_b32 v{vres}, {shift}, v{vres}')
    a.e(f's_add_u32 s60, s{soff}, 0x{FLG + (first << shift):x}')
    a.vmem(f'buffer_load_dword v{vres}, v{vres}, {sr(sWS, 4)}, s60 offen sc1', tag)


def poll_check(a, vres, soff, phase, n, shift=7, first=0, tag='poll'):
    L, Ld = a.newlab('Lpoll'), a.newlab('Lpd')
    a.e(f's_add_u32 s59, s{sNON}, {phase}')
    a.wait(vm=tag)
    a.e('s_mov_b32 s61, 0')
    a.label(L)
    a.e(f'v_subrev_u32 v{vres}, s59, v{vres}')
    a.e(f'v_cmp_le_u32 vcc, 16, v{vres}')
    a.e(f's_cbranch_vccz {Ld}')
    if OPT.get('abl_poll', 0) >> phase & 1:
        a.e(f's_branch {Ld}')
    if OPT.get('psleep', 2):
        a.e(f's_sleep {OPT.get("psleep", 2)}')
    st = a.save()
    poll_issue(a, vres, soff, phase, n, shift, first, tag)
    a.restore(st)
    a.e('s_waitcnt vmcnt(0)')
    a.e('s_add_u32 s61, s61, 1')
    a.e(f's_cmp_lt_u32 s61, {SPIN}')
    a.e(f's_cbranch_scc1 {L}')
    a.label(Ld)


def poll(a, vres, *args, **kw):
    poll_issue(a, vres, *args, **kw)
    poll_check(a, vres, *args, **kw)


def prio(a, p):
    if OPT.get('prio', 1):
        a.e(f's_setprio {p}')


def setflag(a, phase, vt):
    if phase is None:
        a.e('v_mov_b32 v0, 0')
    else:
        a.e(f's_add_u32 s62, s{sNON}, {phase}')
        a.e('v_mov_b32 v0, s62')
        a.e(f'v_writelane_b32 v0, s{sXCC}, 1')
    a.e(f'v_lshlrev_b32 v{vt}, 2, v1')
    a.e('s_mov_b32 exec_hi, 0')
    if phase is not None and phase not in PH_V:
        a.e(f's_add_u32 s62, s{sFOWN}, 0x{LOC:x}')
        a.vmem(f'buffer_store_dword v0, v{vt}, {sr(sWS, 4)}, s62 offen', 'flag')
    if phase is not None and phase not in PH_V and phase != PH_X1[0]:
        L = a.newlab('Lng')
        a.e('s_cmp_eq_u32 s26, 0')
        a.e(f's_cbranch_scc1 {L}')
        a.e(f'buffer_store_dword v0, v{vt}, {sr(sWS, 4)}, s{sFOWN} offen sc1')
        a.label(L)
    else:
        a.vmem(f'buffer_store_dword v0, v{vt}, {sr(sWS, 4)}, s{sFOWN} offen sc1', 'flag')
    if phase is None:
        a.e(f's_add_u32 s62, s{sFOWN}, 0x{LOC:x}')
        a.vmem(f'buffer_load_dword v254, v{vt}, {sr(sWS, 4)}, s62 offen sc1', 'flag')
    a.e('s_mov_b32 exec_hi, -1')


def setflag_w0(a, phase, vt):
    L = a.newlab('Lnf')
    a.e(f's_cmp_lg_u32 s{sWAVE}, 0')
    a.e(f's_cbranch_scc1 {L}')
    st = a.save()
    setflag(a, phase, vt)
    a.restore(st)
    a.label(L)


EXTRA = ['hst', 'flag', 'xst', 'vst', 'pst']


def merge(a, *states):
    ls = [[t for t in s[0] if t not in EXTRA and not (isinstance(t, tuple) and t[0] in EXTRA)] for s in states]
    ls.sort(key=len)
    longer = ls[-1]
    for s in ls[:-1]:
        assert longer[len(longer) - len(s):] == s, (longer, s)
    a.vm = list(longer)
    a.lg = []


def stats_finalize(a, AS, AM, ntiles, tmp, tile_stride, delta1, mode):
    t = tmp
    a.e(f'v_lshlrev_b32 v{t}, 2, v9')
    a.e(f'v_sub_u32 v{t}, v8, v{t}')
    a.e(f'v_lshl_add_u32 v{t + 1}, v8, 2, s6')
    a.e(f'v_cmp_eq_u32 s[70:71], 1, v{t}')
    a.e(f'v_cmp_eq_u32 s[72:73], 2, v{t}')
    a.e(f'v_cmp_eq_u32 s[74:75], 3, v{t}')
    a.e(f'v_cmp_gt_u32 s[76:77], 4, v{t}')
    a.e('s_mov_b32 s7, 0x3acccccd')
    for rt in range(ntiles):
        for acc in (AS, AM):
            b = acc + 4 * rt
            a.e(f'v_cndmask_b32 v{b}, v{b}, v{b + 1}, s[70:71]')
            a.e(f'v_cndmask_b32 v{b}, v{b}, v{b + 2}, s[72:73]')
            a.e(f'v_cndmask_b32 v{b}, v{b}, v{b + 3}, s[74:75]')
        ss, sm = AS + 4 * rt, AM + 4 * rt
        a.e(f'v_mul_f32 v{sm}, s7, v{sm}')
        a.e(f'v_mul_f32 v{ss}, s7, v{ss}')
        a.e(f'v_fma_f32 v{ss}, -v{sm}, v{sm}, v{ss}')
        a.e(f'v_max_f32 v{ss}, 0, v{ss}')
        a.e(f'v_add_f32 v{ss}, 0x3727c5ac, v{ss}')
        a.e(f'v_rsq_f32 v{ss}, v{ss}')
        if mode == 'rs_mr':
            a.e(f'v_mul_f32 v{sm}, v{sm}, v{ss}')
    a.e('s_mov_b64 exec, s[76:77]')
    for rt in range(ntiles):
        ss, sm = AS + 4 * rt, AM + 4 * rt
        first, second = (ss, sm) if mode == 'rs_mr' else (sm, ss)
        a.lds(f'ds_write_b32 v{t + 1}, v{first} offset:{rt * tile_stride}')
        a.lds(f'ds_write_b32 v{t + 1}, v{second} offset:{rt * tile_stride + delta1}')
    a.e('s_mov_b64 exec, -1')


def stage1(a, ACC, RSr, MRr, VA, wf, VT):
    a.e('v_cmp_gt_u32 vcc, 8, v8')
    a.e('v_mov_b32 v13, 0x80008000')
    a.e('v_cndmask_b32 v13, 0, v13, vcc')
    a.e('v_and_b32 v12, 1, v9')
    a.e('v_lshl_add_u32 v12, v12, 4, v8')
    a.e('v_mul_u32_u24 v12, 192, v12')
    a.e('v_lshrrev_b32 v11, 1, v9')
    a.e('v_mul_u32_u24 v11, 80, v11')
    a.e(f's_lshl_b32 s6, s{sWAVE}, 4')
    a.e(f's_add_u32 s6, s6, {VT}')
    a.e('v_add3_u32 v12, v12, v11, s6')
    a.wait(lg='st')
    for r in range(16):
        m = MRr[r // 4] + r % 4
        a.e(f'v_mul_f32 v{m}, v{m}, v14')
    for r in range(16):
        a.e(f'v_fma_f32 v{ACC + r}, v{ACC + r}, v{RSr[r // 4] + r % 4}, -v{MRr[r // 4] + r % 4}')
    for r in range(8):
        a.e(f'v_cvt_pk_bf16_f32 v{ACC + r}, v{ACC + 2 * r}, v{ACC + 2 * r + 1}')
    for r in range(8):
        a.e(f'v_xor_b32_dpp v{ACC + 8 + r}, v{ACC + r}, v13 row_ror:8 row_mask:0xf bank_mask:0xf')
    a.wait(lg='wf')
    for tt in range(4):
        for ks in range(2):
            for mat in range(2):
                src = ACC + 8 * mat + 4 * ks
                c = '0' if (ks == 0 and mat == 0) else vr(VA + 4 * tt, 4)
                a.e(f'v_mfma_f32_16x16x32_bf16 {vr(VA + 4 * tt, 4)}, {vr(src, 4)}, {vr(wf(mat, tt, ks), 4)}, {c}')
    for pr in range(2):
        b = VA + 8 * pr
        for r in range(4):
            a.e(f'v_cvt_pk_bf16_f32 v{b + r}, v{b + 2 * r}, v{b + 2 * r + 1}')
        a.e(f'v_permlane16_swap_b32 v{b}, v{b + 2}')
        a.e(f'v_permlane16_swap_b32 v{b + 1}, v{b + 3}')
        a.lds(f'ds_write_b128 v12, {vr(b, 4)} offset:{pr * 32 * 192}', 'vt')


def v_out_addr(a):
    for n, dst in ((0, 5), (8, 6)):
        a.e(f's_lshl_b32 s6, s{sWAVE}, 6')
        a.e(f's_add_u32 s6, s6, {n * 64}')
        a.e('v_add_u32 v0, s6, v1')
        a.e('v_mul_u32_u24 v7, 5462, v0')
        a.e('v_lshrrev_b32 v7, 16, v7')
        a.e('v_lshlrev_b32 v0, 4, v0')
        a.e(f's_mov_b32 s7, {8 * 32 * 192 - 192}')
        a.e(f'v_mad_u32_u24 v{dst}, v7, s7, v0')


def v_out(a, l, VT, R):
    a.e(f's_lshl_b32 s6, s{sWAVE}, 10')
    a.e(f's_add_u32 s6, s6, {VT}')
    a.e('v_add_u32 v0, s6, v2')
    a.lds(f'ds_read_b128 {vr(R, 4)}, v0', 'vo0')
    a.lds(f'ds_read_b128 {vr(R + 4, 4)}, v0 offset:8192', 'vo1')
    a.e(f's_lshl_b32 s6, s{sC}, 5')
    a.e(f's_add_u32 s6, s6, s{sG}')
    a.e('s_mulk_i32 s6, 192')
    a.e(f's_add_u32 s6, s6, 0x{VB[l]:x}')
    a.e(f's_cmp_lt_u32 s{sWAVE}, 4')
    a.e(f's_cselect_b32 s7, s6, 0x{OOB:x}')
    a.wait(lg='vo0')
    a.vmem(f'buffer_store_dwordx4 {vr(R, 4)}, v5, {sr(sWS, 4)}, s6 offen sc1', 'vo')
    a.wait(lg='vo1')
    a.vmem(f'buffer_store_dwordx4 {vr(R + 4, 4)}, v6, {sr(sWS, 4)}, s7 offen sc1', 'vo')


TW, Y, VF, PK, ID, XR, XM, XE = 16, 32, 48, 48, 48, 56, 16, 24
ACCX, XF = 16, 48
NR, NST = 12, 9
RING = [236 + 4 * k for k in range(5)] + [80, 84, 88] + [100, 104, 108, 112]
JIT = [92, 96]
ACCB = 16
HBUF = [96 + 4 * k for k in range(5)]
ACCA = 96
XFS = [56, 64, 72, 80, 88, 236, 244]


def dreg(ks):
    return 196 + 4 * ks if ks < 10 else 16 + 4 * (ks - 10)


def w2reg(f):
    return 116 + 4 * f


def gen(a, name):
    end = name + '_end'
    a.raw('.text')
    a.raw(f'.globl {name}')
    a.raw('.p2align 8')
    a.raw(f'.type {name},@function')
    a.label(name)
    a.e('s_cmp_ge_u32 s2, 256')
    a.e(f's_cbranch_scc1 {end}')
    a.stamp_init()
    a.stamp(0)
    a.e('s_load_dwordx16 s[8:23], s[0:1], 0')
    a.e('s_load_dwordx2 s[24:25], s[0:1], 64')
    a.e('s_load_dwordx2 s[26:27], s[0:1], 80')
    a.e('s_load_dwordx2 s[96:97], s[0:1], 72')
    a.e('v_lshrrev_b32 v1, 6, v0')
    a.e(f'v_readfirstlane_b32 s{sWAVE}, v1')
    a.e('v_and_b32 v1, 63, v0')
    if OPT.get('cpf', 1):
        a.e('s_getpc_b64 s[98:99]')
        a.label('Lpc')
        a.e('s_lshr_b32 s6, s2, 3')
        a.e('s_lshl_b32 s6, s6, 5')
        a.e('v_and_b32 v253, 31, v0')
        a.e('v_add_u32 v253, s6, v253')
        a.e('v_lshlrev_b32 v253, 7, v253')
        a.e(f'v_min_u32 v253, {end} - Lpc, v253')
        a.e('v_cmp_gt_u32 vcc, 32, v0')
        a.e('s_and_saveexec_b64 s[6:7], vcc')
        a.e('s_cbranch_execz Lpcd')
        a.e('global_load_dword v253, v253, s[98:99]')
        a.label('Lpcd')
        a.e('s_mov_b64 exec, -1')
    XM_ = OPT.get('xm', 0)
    a.e('s_and_b32 s6, s2, 7')
    a.e('s_lshr_b32 s7, s2, 3')
    a.e(f's_and_b32 s98, s6, {(1 << XM_) - 1}')
    a.e(f's_lshl_b32 s98, s98, {3 - XM_}')
    a.e(f's_and_b32 s99, s7, {(8 >> XM_) - 1}')
    a.e(f's_add_u32 s{sC}, s98, s99')
    a.e(f's_lshr_b32 s6, s6, {XM_}')
    a.e(f's_lshl_b32 s6, s6, {2 + XM_}')
    a.e(f's_lshr_b32 s7, s7, {3 - XM_}')
    a.e('s_add_u32 s101, s6, s7')
    a.e('s_lshr_b32 s6, s101, 1')
    a.e('s_sub_u32 s7, 32, s6')
    a.e('s_cmp_eq_u32 s6, 0')
    a.e('s_cselect_b32 s7, 16, s7')
    a.e('s_bitcmp1_b32 s101, 0')
    a.e(f's_cselect_b32 s{sG}, s7, s6')
    a.e('v_lshlrev_b32 v2, 4, v1')
    a.e('v_and_b32 v8, 15, v1')
    a.e('v_lshrrev_b32 v9, 4, v1')
    a.e('v_and_b32 v10, 31, v1')
    a.e('v_lshrrev_b32 v4, 5, v1')

    sX, sD, sW1, sW2, sCS = 56, 64, 68, 72, 12
    sWK, sROT = 54, 55
    SLOT0, SLOTB = 1024, 18432
    RS, MR, CS = 0, 256, 512
    W1L = SLOT0 + 6 * SLOTB
    WP1 = W1L + 16384
    W2S = WP1 + 14336
    TWL0 = W2S + 10240
    XRL0 = SLOT0 + 4 * SLOTB
    VT0 = SLOT0 + 5 * SLOTB
    vXA, vDA, vD2A, vF0, vF1, vO8, vSW = 240, 241, 242, 244, 245, 246, 247
    a.e(f'v_lshrrev_b32 v{vO8}, 3, v1')
    a.e(f'v_and_b32 v{vSW}, 7, v1')
    a.e(f'v_xor_b32 v{vSW}, v{vSW}, v{vO8}')
    a.e(f'v_lshlrev_b32 v{vSW}, 4, v{vSW}')
    a.e(f's_and_b32 s{sKT}, s{sWAVE}, 1')
    a.e(f's_lshr_b32 s{sMIR}, s{sWAVE}, 2')
    a.e(f's_bfe_u32 s{sRHO}, s{sWAVE}, 0x10001')
    a.e(f's_lshl_b32 s6, s{sKT}, 4')
    a.e(f's_lshl_b32 s7, s{sMIR}, 5')
    a.e('s_add_u32 s6, s6, s7')
    a.e(f's_lshl_b32 s7, s{sRHO}, 2')
    a.e('s_add_u32 s6, s6, s7')
    a.e(f'v_lshrrev_b32 v{vXA}, 2, v{vO8}')
    a.e(f'v_lshlrev_b32 v{vXA}, 3, v{vXA}')
    a.e(f'v_and_b32 v0, 3, v{vO8}')
    a.e(f'v_add3_u32 v{vXA}, v{vXA}, v0, s6')
    a.e(f'v_lshl_add_u32 v{vXA}, v{vXA}, 5, s{sG}')
    a.e('s_movk_i32 s62, 1280')
    a.e(f'v_mad_u32_u24 v{vXA}, v{vXA}, s62, v{vSW}')
    a.e(f's_mul_i32 s6, s{sC}, 40')
    a.e(f's_lshr_b32 s7, s{sWAVE}, 1')
    a.e('s_lshl_b32 s7, s7, 3')
    a.e('s_add_u32 s7, s7, s6')
    a.e(f'v_add_u32 v{vDA}, s7, v{vO8}')
    a.e('v_mov_b32 v0, 320')
    a.e(f'v_cmp_eq_u32 vcc, 0, v{vDA}')
    a.e(f'v_cndmask_b32 v{vDA}, v{vDA}, v0, vcc')
    a.e(f'v_mad_u32_u24 v{vDA}, v{vDA}, s62, v{vSW}')
    a.e('s_add_u32 s6, s6, 32')
    a.e(f'v_add_u32 v{vD2A}, s6, v{vO8}')
    a.e(f'v_mad_u32_u24 v{vD2A}, v{vD2A}, s62, v{vSW}')
    a.e(f's_lshl_b32 s6, s{sRHO}, 7')
    a.e(f'v_add_u32 v{vD2A}, s6, v{vD2A}')
    a.e(f's_lshl_b32 s{sWK}, s{sWAVE}, 10')
    a.e(f's_mul_i32 s63, s{sRHO}, {SLOTB}')
    a.e(f's_lshl_b32 s6, s{sKT}, 10')
    a.e('s_add_u32 s63, s63, s6')
    a.e(f's_add_u32 s98, s101, s{sC}')
    a.e('s_mul_i32 s99, s98, 52')
    a.e('s_lshr_b32 s99, s99, 8')
    a.e('s_mul_i32 s99, s99, 5')
    a.e('s_sub_u32 s98, s98, s99')
    a.e(f's_lshl_b32 s{sROT}, s98, 8')
    if not OPT.get('rot', 1):
        a.e(f's_mov_b32 s{sROT}, 0')
    a.e('s_waitcnt lgkmcnt(0)')
    a.srd(sX, P_X, S * D * 2)
    a.e(f's_cmp_eq_u32 s{sKT}, 1')
    a.e(f's_cselect_b32 s98, s{P_DI}, s{P_DR}')
    a.e(f's_cselect_b32 s99, s{P_DI + 1}, s{P_DR + 1}')
    a.srd(sD, 98, D * D * 2)

    def pair_off(p, dst):
        a.e(f's_add_u32 s{dst}, s{sROT}, {p * 256}')
        a.e(f's_cmp_ge_u32 s{dst}, 1280')
        a.e('s_cselect_b32 s18, 1280, 0')
        a.e(f's_sub_u32 s{dst}, s{dst}, s18')

    def dma_pair(p):
        sb = SLOT0 + (p % 3) * 2 * SLOTB
        pair_off(p, 99)
        L = a.newlab('Lex')
        a.e(f's_cmp_lg_u32 s{sMIR}, {p % 2}')
        a.e(f's_cbranch_scc1 {L}')
        a.e(f's_add_u32 m0, s63, {sb + 16384}')
        a.e(f'buffer_load_dwordx4 v{vD2A}, {sr(sD, 4)}, s99 offen lds')
        a.label(L)
        for h in range(2):
            a.e(f's_add_u32 m0, s{sWK}, {sb + h * (SLOTB - 128)}')
            a.vmem(f'buffer_load_dwordx4 v{vXA}, {sr(sX, 4)}, s99 offen offset:{h * 128} lds', ('c', p))
            a.e(f's_add_u32 m0, s{sWK}, {sb + h * (SLOTB - 128) + 8192}')
            a.vmem(f'buffer_load_dwordx4 v{vDA}, {sr(sD, 4)}, s99 offen offset:{h * 128} lds', ('c', p))

    a.stamp('karg')
    dma_pair(0)
    a.stamp('d0')
    a.srd(sW1, P_W1, D * F * 2)
    a.srd(sW2, P_W2, D * F * 2)
    a.srd(sWS, P_WS, WS_BYTES)
    a.srd(sOUT, P_OUT, S * D * 2)
    a.e(f's_cmp_eq_u32 s{sKT}, 1')
    a.e(f's_cselect_b32 s98, s{P_CI}, s{P_CR}')
    a.e(f's_cselect_b32 s99, s{P_CI + 1}, s{P_CR + 1}')
    a.e(f's_mov_b32 s8, s{P_CR}')
    a.e(f's_and_b32 s9, s{P_CR + 1}, 0xffff')
    a.e(f's_mov_b32 s10, 0x{S * S * 2:x}')
    a.e('s_mov_b32 s11, 0x20000')
    a.srd(sCS, 98, S * S * 2)
    a.e(f's_add_u32 s{sFL}, s{P_WS}, 0x{FLG:x}')
    a.e(f's_addc_u32 s{sFL + 1}, s{P_WS + 1}, 0')
    a.e(f's_sub_u32 s6, 64, s{sG}')
    a.e(f's_cmp_eq_u32 s{sG}, 0')
    a.e(f's_cselect_b32 s{sTAU1}, 32, s6')
    a.e(f's_mul_i32 s6, s{sC}, 7')
    a.e('s_min_u32 s100, s6, 48')
    a.e('s_lshl_b32 s6, s100, 1')
    a.e(f's_lshl_b32 s7, s{sWAVE}, 1')
    a.e(f's_add_u32 s{sU1}, s6, s7')
    a.e(f's_min_u32 s{sU1}, s{sU1}, 106')
    a.e(f's_cmp_lt_u32 s{sC}, 6')
    a.e(f's_cselect_b32 s{sU2}, 7, 6')
    a.e(f's_mul_i32 s{sGCM}, s{sG}, 81920')
    a.e(f's_lshl_b32 s6, s{sG}, 3')
    a.e(f's_add_u32 s7, s6, s{sC}')
    a.e('s_lshl_b32 s7, s7, 3')
    a.e(f's_add_u32 s7, s7, s{sWAVE}')
    a.e('s_lshl_b32 s7, s7, 7')
    a.e(f's_add_u32 s{sFOWN}, s7, 0x{FLG:x}')
    a.e(f's_add_u32 s7, s6, s{sWAVE}')
    a.e(f's_lshl_b32 s{sFSRC}, s7, 10')
    a.e(f's_sub_u32 s{sPG}, 32, s{sG}')
    a.e(f's_and_b32 s{sPG}, s{sPG}, 31')
    a.e(f's_lshl_b32 s7, s{sPG}, 3')
    a.e(f's_add_u32 s7, s7, s{sWAVE}')
    a.e(f's_lshl_b32 s{sFPAR}, s7, 10')
    a.e(f's_mul_i32 s{sW1B}, s{sU1}, 20480')
    a.e(f's_cmp_ge_u32 s{sWAVE}, s{sU2}')
    a.e(f's_cselect_b32 s{sW1B}, 0x{OOB:x}, s{sW1B}')
    a.e(f's_getreg_b32 s{sXCC}, hwreg(HW_REG_XCC_ID)')
    a.e(f's_and_b32 s{sXCC}, s{sXCC}, 15')
    a.e(f's_mul_i32 s6, s{sWAVE}, 7')
    a.e('s_min_u32 s6, s6, 48')
    a.e(f's_mul_i32 s7, s{sC}, 54')
    a.e('s_add_u32 s7, s7, s6')
    a.e(f's_mul_i32 s{sW2O}, s7, 5120')
    a.e(f's_add_u32 s{sW2O}, s{sW2O}, 0x{W2F:x}')
    a.e(f's_mul_i32 s{sHG}, s{sG}, {216 * 1024}')
    a.e('s_lshl_b32 s6, s6, 12')
    a.e(f's_add_u32 s{sHK}, s{sHG}, s6')
    a.e('v_lshlrev_b32 v3, 4, v8')
    a.e('v_lshl_add_u32 v3, v9, 10, v3')
    dma_pair(1)
    Lnn = a.newlab('Lnn')
    a.e('s_lshl_b32 s6, s2, 3')
    a.e(f's_add_u32 s6, s6, s{sWAVE}')
    a.e('s_cmp_lg_u32 s6, 7')
    a.e(f's_cbranch_scc1 {Lnn}')
    a.e(f's_load_dword s6, s[{sFL}:{sFL + 1}], 0x40000 glc')
    a.e('s_waitcnt lgkmcnt(0)')
    a.e('s_add_u32 s6, s6, 16')
    a.e('s_and_b32 s6, s6, -16')
    a.e('s_bitset1_b32 s6, 31')
    a.e('v_mov_b32 v0, s6')
    a.e('v_mov_b32 v5, 0')
    a.e('s_mov_b64 exec, 1')
    a.e(f's_mov_b32 s7, 0x{FLG + 0x40000:x}')
    a.e(f'buffer_store_dword v0, off, {sr(sWS, 4)}, s7 sc1')
    a.e('global_store_dword v5, v0, s[96:97] sc1')
    a.e('s_mov_b64 exec, -1')
    a.label(Lnn)

    def grow(vd, vloc):
        a.e(f'v_and_b32 v11, 31, v{vloc}')
        a.e(f'v_mov_b32 v12, s{sG}')
        a.e(f'v_mov_b32 v13, s{sTAU1}')
        a.e(f'v_cmp_le_u32 vcc, 32, v{vloc}')
        a.e('v_cndmask_b32 v12, v12, v13, vcc')
        a.e(f'v_lshl_add_u32 v{vd}, v11, 6, v12')

    def tw_dma(base):
        a.e(f's_lshr_b32 s6, s{sWAVE}, 1')
        a.e('s_lshl_b32 s6, s6, 4')
        a.e('v_lshrrev_b32 v0, 2, v1')
        a.e('v_add_u32 v0, s6, v0')
        grow(0, 0)
        a.e('v_and_b32 v11, 3, v1')
        a.e('v_lshlrev_b32 v11, 4, v11')
        a.e('v_lshl_add_u32 v0, v0, 12, v11')
        a.e(f's_lshl_b32 s6, s{sWAVE}, 10')
        a.e(f's_add_u32 m0, s6, {base}')
        a.vmem(f'buffer_load_dwordx4 v0, {sr(sCS, 4)}, 0 offen lds', 'twd')

    vXR0, vXR1, vT1, vT2, vCSA = 234, 235, 236, 237, 238
    for n, dst in ((0, vXR0), (8, vXR1)):
        a.e(f's_lshl_b32 s6, s{sWAVE}, 6')
        a.e(f's_add_u32 s6, s6, {n * 64}')
        a.e('v_add_u32 v0, s6, v1')
        a.e('v_mul_u32_u24 v7, 5462, v0')
        a.e('v_lshrrev_b32 v7, 16, v7')
        a.e('v_mul_u32_u24 v5, 12, v7')
        a.e('v_sub_u32 v0, v0, v5')
        grow(7, 7)
        a.e(f's_mul_i32 s6, s{sC}, 5')
        a.e('s_sub_u32 s7, 70, s6')
        a.e('v_add_u32 v5, s6, v0')
        a.e('v_add_u32 v6, s7, v0')
        a.e('v_cmp_le_u32 vcc, 5, v0')
        a.e('v_cndmask_b32 v5, v5, v6, vcc')
        a.e('v_cmp_eq_u32 vcc, 80, v5')
        a.e('v_cndmask_b32 v5, v5, 0, vcc')
        a.e('v_cmp_eq_u32 vcc, 11, v0')
        a.e('v_cndmask_b32 v5, v5, 40, vcc')
        a.e('v_mul_u32_u24 v7, 1280, v7')
        a.e(f'v_lshl_add_u32 v{dst}, v5, 4, v7')
    a.e(f'v_and_b32 v{vF0}, 7, v1')
    a.e(f'v_xor_b32 v{vF0}, v{vF0}, v9')
    a.e(f'v_lshlrev_b32 v{vF0}, 4, v{vF0}')
    a.e(f'v_lshl_add_u32 v{vF0}, v8, 7, v{vF0}')
    a.e(f'v_xor_b32 v{vF1}, 64, v{vF0}')
    PF, PF2 = 208, 224

    def side(job):
        if job == 'late':
            a.e(f's_lshr_b32 s6, s{sWAVE}, 1')
            a.e('s_lshl_b32 s7, s6, 4')
            a.e(f'v_add_u32 v5, s7, v{vO8}')
            a.e(f'v_lshl_add_u32 v5, v5, 17, v{vSW}')
            a.e('s_lshl_b32 s6, s6, 11')
            a.e(f's_lshl_b32 s7, s{sKT}, 13')
            a.e('s_add_u32 s6, s6, s7')
            a.e(f's_add_u32 m0, s6, {W1L}')
            a.vmem(f'buffer_load_dwordx4 v5, {sr(sCS, 4)}, 0 offen lds', 'w1')
            a.e(f's_add_u32 m0, s6, {W1L + 1024}')
            a.e('s_mov_b32 s7, 0x100000')
            a.vmem(f'buffer_load_dwordx4 v5, {sr(sCS, 4)}, s7 offen lds', 'w1')
            tw_dma(TWL0)
        if job == 'non':
            a.e('v_mov_b32 v252, 0')
            a.vmem('global_load_dword v252, v252, s[96:97] sc1', 'non')
            setflag(a, None, 5)
        if job == 'xr':
            L = a.newlab('Lx4')
            a.e(f's_cmp_ge_u32 s{sWAVE}, 4')
            a.e(f's_cbranch_scc1 {L}')
            a.e(f's_add_u32 m0, s{sWK}, {XRL0 + 8192}')
            a.e(f'buffer_load_dwordx4 v{vXR1}, {sr(sX, 4)}, 0 offen lds')
            a.label(L)
            a.e(f's_add_u32 m0, s{sWK}, {XRL0}')
            a.vmem(f'buffer_load_dwordx4 v{vXR0}, {sr(sX, 4)}, 0 offen lds', 'xrd')
        if job == 'nonc':
            L, Ld = a.newlab('Lno'), a.newlab('Lnd')
            a.wait(vm='non')
            a.e('s_mov_b32 s98, 0')
            a.label(L)
            a.e(f'v_readfirstlane_b32 s{sNON}, v252')
            a.e('s_nop 1')
            a.e(f's_cmp_lg_u32 s{sNON}, 0')
            a.e(f's_cbranch_scc1 {Ld}')
            a.e('v_mov_b32 v252, 0')
            a.e('global_load_dword v252, v252, s[96:97] sc1')
            a.e('s_waitcnt vmcnt(0)')
            a.e('s_add_u32 s98, s98, 1')
            a.e(f's_cmp_lt_u32 s98, {SPIN}')
            a.e(f's_cbranch_scc1 {L}')
            a.label(Ld)

    def mainloop(setaddr, read, mfma, wsh=None, hooks={}):
        a.stamp('p0iss')
        PW = OPT.get('pw', 2)
        for p in range(5):
            a.wait(vm=('c', p), lg='all')
            if p == 0:
                dma_pair(2)
                side('late')
            a.e('s_barrier')
            a.stamp(f'p0c{p}')
            setaddr(SLOT0 + (p % 3) * 2 * SLOTB, p)
            j = 4 * p
            if p == 0:
                for f in read(0) + read(1):
                    f()
            else:
                weave(a, mfma(j - 2), read(j))
                weave(a, mfma(j - 1), read(j + 1))
            if 1 <= p <= 2:
                dma_pair(p + 2)
            if p == 2:
                side('non')
            if p == 3:
                side('xr')
            if p == PW and wsh:
                wsh()
            if p in hooks:
                hooks[p]()
            a.wait(lg=('f', j))
            weave(a, mfma(j), read(j + 2))
            a.wait(lg=('f', j + 1))
            weave(a, mfma(j + 1), read(j + 3))
        for j in (18, 19):
            a.wait(lg=('f', j))
            weave(a, mfma(j), [])
        side('nonc')
        a.wait(vm='xrd')

    Lstat, Lcol, Lj0 = a.newlab('Lp0s'), a.newlab('Lp0c'), a.newlab('Lp0j')
    a.e(f's_cmp_eq_u32 s{sWAVE}, 7')
    a.e(f's_cbranch_scc1 {Lcol}')
    a.e(f's_cmp_ge_u32 s{sWAVE}, 5')
    a.e(f's_cbranch_scc1 {Lstat}')
    st0 = a.save()
    ACC, FR = 16, 32
    a.e(f's_lshl_b32 s60, s{sWAVE}, 11')
    a.e('s_add_u32 s60, s60, 8192')
    a.e(f's_mul_i32 s6, s{sC}, 5')
    a.e(f's_add_u32 s6, s6, s{sWAVE}')
    a.e('s_mul_i32 s6, s6, 20')
    a.e(f's_add_u32 s6, s6, s{sG}')
    a.e('s_lshl_b32 s6, s6, 10')
    a.e(f's_add_u32 s24, s6, 0x{DPF:x}')
    a.e(f's_lshr_b32 s6, s{sROT}, 6')
    a.e(f's_sub_u32 s25, s{sG}, s6')
    a.e('s_add_u32 s7, s25, 20')
    a.e(f's_cmp_lt_u32 s{sG}, s6')
    a.e('s_cselect_b32 s25, s7, s25')
    a.e(f's_cmp_ge_u32 s{sG}, 20')
    a.e('s_cselect_b32 s25, 63, s25')

    a.e('s_and_b32 s6, s25, 1')
    a.e('s_lshl_b32 s6, s6, 6')
    a.e(f'v_xor_b32 v243, s6, v{vF0}')
    a.e('s_bfe_u32 s6, s25, 0x10001')
    a.e(f's_mulk_i32 s6, {SLOTB}')
    a.e('s_add_u32 s6, s6, s60')
    a.e('v_add_u32 v243, s6, v243')
    a.e('s_lshr_b32 s25, s25, 2')

    def set_c(sb, p):
        a.e(f'v_add_u32 v248, {sb}, v{vF0}')
        a.e(f'v_add_u32 v249, {sb}, v{vF1}')
        a.e('v_add_u32 v250, s60, v248')
        a.e('v_add_u32 v251, s60, v249')
        L = a.newlab('Ldd')
        a.e(f's_cmp_lg_u32 s25, {p}')
        a.e(f's_cbranch_scc1 {L}')
        a.e(f'v_add_u32 v243, {sb}, v243')
        a.e('ds_read_b128 v[220:223], v243')
        a.label(L)

    def read_c(j):
        f, hk, o = FR + 20 * (j % 4), j % 2, ((j % 4) // 2) * SLOTB
        return [lambda: a.lds(f'ds_read_b128 {vr(f + 16, 4)}, v{250 + hk} offset:{o}', ('f', j))] + \
               [lambda rt=rt: a.lds(f'ds_read_b128 {vr(f + 4 * rt, 4)}, v{248 + hk} offset:{o + rt * 2048}', ('f', j)) for rt in range(4)]

    def mfma_c(j):
        f = FR + 20 * (j % 4)
        return [f'v_mfma_f32_16x16x32_bf16 {vr(ACC + 4 * rt, 4)}, {vr(f + 4 * rt, 4)}, {vr(f + 16, 4)}, {"0" if j == 0 else vr(ACC + 4 * rt, 4)}' for rt in range(4)]

    mainloop(set_c, read_c, mfma_c)
    WF, RSr, MRr = 112, [176, 180, 184, 188], [192, 196, 200, 204]
    wf0 = lambda mat, tt, ks: WF + ((mat * 4 + tt) * 2 + ks) * 4
    a.e(f'v_add_u32 v248, {W1L}, v{vF0}')
    a.e(f'v_add_u32 v249, {W1L}, v{vF1}')
    for tt in range(4):
        for ks in range(2):
            for mat in range(2):
                a.lds(f'ds_read_b128 {vr(wf0(mat, tt, ks), 4)}, v{248 + ks} offset:{mat * 8192 + tt * 2048}', 'wf')
    a.e('v_lshlrev_b32 v12, 4, v9')
    a.e(f's_lshl_b32 s6, s{sWAVE}, 6')
    a.e('v_lshl_add_u32 v13, v8, 2, s6')
    a.stamp('p0end')
    a.e('s_barrier')
    a.lds(f'ds_read_b32 v14, v13 offset:{CS}', 'st')
    for rt in range(4):
        a.lds(f'ds_read_b128 {vr(RSr[rt], 4)}, v12 offset:{RS + rt * 64}', 'st')
        a.lds(f'ds_read_b128 {vr(MRr[rt], 4)}, v12 offset:{MR + rt * 64}', 'st')
    a.e(f's_cmp_lt_u32 s{sG}, 20')
    a.e(f's_cselect_b32 s24, s24, 0x{OOB:x}')
    a.e(f'buffer_store_dwordx4 v[220:223], v2, {sr(sWS, 4)}, s24 offen sc1')
    stage1(a, ACC, RSr, MRr, 32, wf0, VT0)
    stC = a.save()
    a.e(f's_branch {Lj0}')

    a.label(Lstat)
    a.restore(st0)
    AS, AM, ONE, FS = 24, 32, 40, 44
    for r in range(4):
        a.e(f'v_mov_b32 v{ONE + r}, 0x3f803f80')
    a.e(f's_sub_u32 s60, s{sWAVE}, 5')
    a.e('s_lshl_b32 s60, s60, 12')
    a.e(f'v_add_u32 v250, s60, v{vF0}')
    a.e(f'v_add_u32 v251, s60, v{vF1}')

    WA = 128
    a.e(f's_and_b32 s6, s{sG}, 7')
    a.e('s_mul_i32 s98, s6, 5')
    a.e('s_mul_i32 s99, s6, 10')
    a.e('s_add_u32 s99, s99, 4')
    a.e(f's_bfe_u32 s7, s{sG}, 0x10003')
    a.e(f's_cmp_ge_u32 s{sG}, 16')
    a.e('s_cselect_b64 s[76:77], -1, 0')
    for n in range(7):
        a.e(f'v_add_u32 v0, {64 * n}, v1')
        a.e('v_mul_u32_u24 v5, 4682, v0')
        a.e('v_lshrrev_b32 v5, 16, v5')
        a.e('v_mul_u32_u24 v6, 14, v5')
        a.e('v_sub_u32 v0, v0, v6')
        a.e('v_lshrrev_b32 v6, 3, v5')
        a.e('v_add_u32 v7, s98, v6')
        a.e('v_lshrrev_b32 v11, 1, v6')
        a.e('v_mad_u32_u24 v11, v11, 5, s99')
        a.e('v_mov_b32 v12, s7')
        a.e('v_and_b32 v6, 1, v6')
        a.e('v_cndmask_b32 v7, v7, v11, s[76:77]')
        a.e('v_cndmask_b32 v6, v12, v6, s[76:77]')
        a.e('v_and_b32 v5, 7, v5')
        a.e('v_lshl_add_u32 v5, v7, 3, v5')
        a.e('v_sub_u32 v7, 640, v5')
        a.e('v_cmp_eq_u32 vcc, 1, v6')
        a.e('v_cndmask_b32 v5, v5, v7, vcc')
        if n == 0:
            a.e('v_mov_b32 v6, 320')
            a.e('v_cmp_eq_u32 vcc, 0, v5')
            a.e('v_cndmask_b32 v5, v5, v6, vcc')
            a.e('v_cmp_eq_u32 vcc, 640, v5')
            a.e('v_cndmask_b32 v5, v5, 0, vcc')
        a.e('v_and_b32 v5, 0x3ff, v5')
        a.e('v_mul_u32_u24 v5, 3456, v5')
        a.e(f'v_lshl_add_u32 v{WA + n}, v0, 4, v5')

    def wsh_s():
        a.e(f's_sub_u32 s6, s{sWAVE}, 5')
        a.e('s_mul_i32 s7, s6, 224')
        a.e('s_lshl_b32 s98, s100, 6')
        a.e('s_add_u32 s7, s7, s98')
        a.e(f's_cmp_lt_u32 s{sG}, 20')
        a.e(f's_cselect_b32 s7, s7, 0x{OOB:x}')
        a.e('s_mul_i32 s6, s6, 7168')
        for n in range(7):
            a.e(f's_add_u32 m0, s6, {WP1 + 1024 * n}')
            a.vmem(f'buffer_load_dwordx4 v{WA + n}, {sr(sW1, 4)}, s7 offen lds', 'wsh')

    def set_s(sb, p):
        a.e(f'v_add_u32 v248, {sb}, v250')
        a.e(f'v_add_u32 v249, {sb}, v251')

    def read_s(j):
        return [lambda rt=rt: a.lds(f'ds_read_b128 {vr(FS + 8 * (j % 4) + 4 * rt, 4)}, v{248 + j % 2} offset:{((j % 4) // 2) * SLOTB + rt * 2048}', ('f', j)) for rt in range(2)]

    def mfma_s(j):
        out = []
        for rt in range(2):
            f = vr(FS + 8 * (j % 4) + 4 * rt, 4)
            out.append(f'v_mfma_f32_16x16x32_bf16 {vr(AS + 4 * rt, 4)}, {f}, {f}, {"0" if j == 0 else vr(AS + 4 * rt, 4)}')
            out.append(f'v_mfma_f32_16x16x32_bf16 {vr(AM + 4 * rt, 4)}, {f}, {vr(ONE, 4)}, {"0" if j == 0 else vr(AM + 4 * rt, 4)}')
        return out

    mainloop(set_s, read_s, mfma_s, wsh_s)
    a.e('s_lshr_b32 s6, s60, 5')
    stats_finalize(a, AS, AM, 2, 12, 64, MR - RS, 'rs_mr')
    a.wait(lg='all')
    a.stamp('p0end')
    a.e('s_barrier')
    a.e(f's_cmp_ge_u32 s{sG}, 20')
    a.e(f's_cbranch_scc1 {Lj0}')
    a.e('v_bfe_u32 v5, v1, 2, 2')
    a.e('v_lshl_add_u32 v5, v9, 3, v5')
    a.e('v_mul_u32_u24 v5, 224, v5')
    a.e('v_and_b32 v0, 3, v1')
    a.e('v_lshl_add_u32 v5, v0, 3, v5')
    a.e(f's_sub_u32 s60, s{sWAVE}, 5')
    a.e('s_mul_i32 s60, s60, 7')
    a.e('s_lshl_b32 s6, s60, 10')
    a.e(f's_add_u32 s6, s6, {WP1}')
    a.e('v_add_u32 v5, s6, v5')
    a.wait(vm='wsh')
    for u in range(7):
        for rd in range(2):
            a.lds(f'ds_read_b64_tr_b16 {vr(16 + 4 * u + 2 * rd, 2)}, v5 offset:{rd * 4 * 224 + u * 32}', ('pf', u))
    a.e('s_lshl_b32 s6, s100, 1')
    a.e('s_add_u32 s60, s60, s6')
    a.e('s_mul_i32 s6, s60, 20')
    a.e(f's_add_u32 s6, s6, s{sG}')
    a.e('s_lshl_b32 s6, s6, 10')
    a.e(f's_min_u32 s98, s{sWAVE}, s{sC}')
    a.e('s_mov_b32 s99, 0x3f803f80')
    for u in range(7):
        a.wait(lg=('pf', u))
        a.e(f's_add_u32 s7, s6, {W1F + u * 20480}')
        if u >= 5:
            a.e('s_cmp_ge_u32 s98, 6')
            a.e(f's_cselect_b32 s7, 0x{OOB:x}, s7')
        a.e(f'buffer_store_dwordx4 {vr(16 + 4 * u, 4)}, v2, {sr(sWS, 4)}, s7 offen sc1')
        a.e(f'v_mov_b32 v{48 + u}, 0')
    a.e('v_mov_b32 v55, 0')
    for d in range(4):
        for u in range(7):
            a.e(f'v_dot2_f32_bf16 v{48 + u}, v{16 + 4 * u + d}, s99, v{48 + u}')
    a.e('s_nop 3')
    for u in range(0, 8, 2):
        a.e(f'v_permlane16_swap_b32 v{48 + u}, v{49 + u}')
    for u in range(0, 8, 2):
        a.e(f'v_add_f32 v{48 + u}, v{48 + u}, v{49 + u}')
    for u in (0, 4):
        a.e(f'v_permlane32_swap_b32 v{48 + u}, v{50 + u}')
    for u in (0, 4):
        a.e(f'v_add_f32 v{48 + u}, v{48 + u}, v{50 + u}')
    a.e(f's_mul_i32 s6, s{sG}, 6912')
    a.e('s_lshl_b32 s7, s60, 6')
    a.e('s_add_u32 s6, s6, s7')
    a.e(f's_add_u32 s6, s6, 0x{CSP:x}')
    a.e('v_lshlrev_b32 v5, 2, v1')
    a.e(f'buffer_store_dword v48, v5, {sr(sWS, 4)}, s6 offen sc1')
    a.e('s_cmp_ge_u32 s98, 6')
    a.e('s_cselect_b32 exec_lo, 0xffff, -1')
    a.e('s_cselect_b32 exec_hi, 0, 0xffff')
    a.e(f'buffer_store_dword v52, v5, {sr(sWS, 4)}, s6 offen offset:256 sc1')
    a.e('s_mov_b64 exec, -1')
    a.e(f's_branch {Lj0}')

    a.label(Lcol)
    a.restore(st0)
    AC, ONE, FC = 24, 44, 48
    for r in range(4):
        a.e(f'v_mov_b32 v{ONE + r}, 0x3f803f80')

    a.e('s_movk_i32 s7, 1120')
    for n in range(5):
        a.e(f'v_add_u32 v0, {64 * n}, v1')
        a.e('v_mul_u32_u24 v5, 6554, v0')
        a.e('v_lshrrev_b32 v5, 16, v5')
        a.e('v_lshlrev_b32 v0, 4, v0')
        a.e(f'v_mad_u32_u24 v{WA + n}, v5, s7, v0')

    def wsh_k():
        a.e(f's_mul_i32 s6, s{sG}, 40960')
        a.e(f's_mul_i32 s7, s{sC}, 160')
        a.e('s_add_u32 s6, s6, s7')
        a.e(f's_add_u32 s7, s6, {32 * 40960}')
        for t in range(2):
            for n in range(5):
                a.e(f's_mov_b32 m0, {W2S + t * 5120 + n * 1024}')
                a.vmem(f'buffer_load_dwordx4 v{WA + n}, {sr(sW2, 4)}, s{6 + t} offen lds', 'wsh')

    def set_k(sb, p):
        a.e(f'v_add_u32 v248, {sb + 8192}, v{vF0}')
        a.e(f'v_add_u32 v249, {sb + 8192}, v{vF1}')

    def read_k(j):
        return [lambda ct=ct: a.lds(f'ds_read_b128 {vr(FC + 20 * (j % 4) + 4 * ct, 4)}, v{248 + j % 2} offset:{((j % 4) // 2) * SLOTB + ct * 2048}', ('f', j)) for ct in range(5)]

    def mfma_k(j):
        return [f'v_mfma_f32_16x16x32_bf16 {vr(AC + 4 * ct, 4)}, {vr(ONE, 4)}, {vr(FC + 20 * (j % 4) + 4 * ct, 4)}, {"0" if j == 0 else vr(AC + 4 * ct, 4)}' for ct in range(5)]

    def w2_out():
        a.e('v_bfe_u32 v5, v1, 2, 2')
        a.e('v_lshl_add_u32 v5, v9, 3, v5')
        a.e('v_mul_u32_u24 v5, 160, v5')
        a.e('v_and_b32 v0, 3, v1')
        a.e('v_lshl_add_u32 v5, v0, 3, v5')
        a.e(f'v_add_u32 v5, {W2S}, v5')
        a.wait(vm='wsh')
        for u in range(10):
            for rd in range(2):
                a.lds(f'ds_read_b64_tr_b16 {vr(136 + 4 * u + 2 * rd, 2)}, v5 offset:{(u // 5) * 5120 + (u % 5) * 32 + rd * 640}', ('pf', u))
        a.e(f's_mul_i32 s6, s{sC}, 54')
        a.e(f's_add_u32 s6, s6, s{sG}')
        a.e('s_mul_i32 s6, s6, 5120')
        a.e(f's_add_u32 s6, s6, 0x{W2F:x}')
        for u in range(10):
            if u == 5:
                a.e(f's_cmp_ge_u32 s{sG}, 22')
                a.e(f's_cselect_b32 s6, 0x{OOB:x}, s6')
            a.wait(lg=('pf', u))
            a.e(f's_add_u32 s7, s6, {(u // 5) * 32 * 5120 + (u % 5) * 1024}')
            a.vmem(f'buffer_store_dwordx4 {vr(136 + 4 * u, 4)}, v2, {sr(sWS, 4)}, s7 offen sc1', 'w2o')

    EW = OPT.get('ew', 1)
    if EW:
        wsh_k()
        def w2_flag():
            side('nonc')
            a.wait(vm='w2o')
            setflag(a, PH_V[0], 5)
        if OPT.get('wf4', 1):
            mainloop(set_k, read_k, mfma_k, None, {2: w2_out, 4: w2_flag})
        else:
            mainloop(set_k, read_k, mfma_k, None, {2: w2_out})
            setflag(a, PH_V[0], 5)
    else:
        mainloop(set_k, read_k, mfma_k, wsh_k)
    a.e('v_lshlrev_b32 v12, 2, v8')
    for ct in range(5):
        a.lds(f'ds_write_b32 v12, v{AC + 4 * ct} offset:{CS + ct * 64}')
    a.wait(lg='all')
    a.stamp('p0end')
    a.e('s_barrier')
    if not EW:
        w2_out()
    a.e(f's_cmp_ge_u32 s{sG}, 8')
    a.e(f's_cbranch_scc1 {Lj0}')
    a.e(f's_lshl_b32 s6, s{sG}, 11')
    a.e(f's_add_u32 s7, s6, {W1L}')
    a.e(f'v_add_u32 v248, s7, v{vF0}')
    a.e(f'v_add_u32 v249, s7, v{vF1}')
    a.lds('ds_read_b128 v[16:19], v248', 'ws')
    a.lds('ds_read_b128 v[20:23], v249', 'ws')
    a.e(f's_lshl_b32 s7, s{sC}, 14')
    a.e('s_add_u32 s6, s6, s7')
    a.e(f's_add_u32 s6, s6, 0x{W1S:x}')
    a.e('s_mov_b32 s98, 0x05040100')
    a.e('s_mov_b32 s99, 0x07060302')
    a.wait(lg='ws')
    for half in range(2):
        for d in range(4):
            a.e(f'v_perm_b32 v{24 + 4 * half + d}, v{16 + 2 * d + 1}, v{16 + 2 * d}, s{98 + half}')
        a.e(f'buffer_store_dwordx4 {vr(24 + 4 * half, 4)}, v2, {sr(sWS, 4)}, s6 offen offset:{half * 1024} sc1')
    a.label(Lj0)
    a.e('s_nop 1')
    a.restore(stC)
    v_out_addr(a)
    if EW:
        a.e(f's_lshl_b32 s67, s{sC}, 10')
        a.e('s_add_u32 s67, s67, 896')
        pW = (253, 67, PH_V[0], 32, 13)
        poll_issue(a, *pW)
    a.wait(lg='all')
    a.e('s_barrier')
    a.stamp('p0vt')
    v_out(a, 0, VT0, 64)


    LSC = ' sc1'

    def xstore(text, tag, local):
        if not local:
            a.vmem(text + ' sc1', tag)
            return
        L, Lj = a.newlab('Lst'), a.newlab('Lsj')
        a.e('s_cmp_eq_u32 s26, 0')
        a.e(f's_cbranch_scc1 {L}')
        a.e(text + ' sc1')
        a.e(f's_branch {Lj}')
        a.label(L)
        a.vmem(text, tag)
        a.label(Lj)
        a.e('s_nop 1')

    def warm(vd, sbase, add, n, step=8192, lanes=None):
        a.e('v_lshlrev_b32 v0, 7, v1')
        for k in range(n):
            a.e(f's_add_u32 s64, s{sbase}, 0x{add + k * step:x}')
            a.vmem(f'buffer_load_dword v{vd}, v0, {sr(sWS, 4)}, s64 offen sc1', 'warm')

    LP = OPT.get('lp', 0)
    if LP:
        X1B[1] = X1B[0]
        HB[1] = HB[0]

    def w1load(n):
        a.e(f's_add_u32 s64, s{sW1B}, {n * 1024}')
        a.vmem(f'buffer_load_dwordx4 {vr(RING[n % NR], 4)}, v2, {sr(sWS, 4)}, s64 offen sc1', ('w1', n))

    def stash(n):
        a.e(f's_add_u32 m0, s69, {(n % NST) * 1024}')
        a.e(f's_add_u32 s64, s{sW1B}, {20480 + n * 1024}')
        a.vmem(f'buffer_load_dwordx4 v2, {sr(sWS, 4)}, s64 offen sc1 lds', ('ws', n))

    def w2load(f):
        a.e(f's_add_u32 s64, s{sW2O}, {(f // 4) * 4096}')
        if f >= 30:
            a.e(f's_cmp_ge_u32 s{sWAVE}, 6')
            a.e(f's_cselect_b32 s64, 0x{OOB:x}, s64')
        a.vmem(f'buffer_load_dwordx4 {vr(w2reg(f), 4)}, v2, {sr(sWS, 4)}, s64 offen offset:{(f % 4) * 1024} sc1', ('w2', f))

    def dest_row(vd):
        a.e(f's_lshl_b32 s6, s{sRHO}, 5')
        a.e(f'v_add_u32 v{vd}, s6, v10')
        a.e(f'v_sub_u32 v11, 63, v{vd}')
        a.e('v_sub_u32 v12, 32, v10')
        a.e('v_and_b32 v12, 31, v12')
        a.e('v_sub_u32 v13, 63, v10')
        a.e(f's_cmp_eq_u32 s{sRHO}, 0')
        a.e('s_cselect_b64 vcc, -1, 0')
        a.e('v_cndmask_b32 v12, v13, v12, vcc')
        a.e(f's_cmp_eq_u32 s{sG}, 0')
        a.e('s_cselect_b64 vcc, -1, 0')
        a.e('v_cndmask_b32 v11, v11, v12, vcc')
        a.e(f's_cmp_eq_u32 s{sMIR}, 1')
        a.e('s_cselect_b64 vcc, -1, 0')
        a.e(f'v_cndmask_b32 v{vd}, v{vd}, v11, vcc')

    def stage_all():
        a.e('v_mul_u32_u24 v0, 40960, v4')
        a.e('v_lshl_add_u32 v0, v10, 4, v0')
        a.e(f's_mul_i32 s6, s{sC}, 2560')
        a.e(f's_add_u32 s62, s{sGCM}, 0x{X2B:x}')
        for p in range(12):
            if p < 5:
                a.e(f's_add_u32 s64, s6, {p * 512}')
            elif p < 11:
                a.e(f's_sub_u32 s64, {(70 + p) * 512}, s6')
                if p == 10:
                    a.e(f's_cmp_eq_u32 s{sC}, 0')
                    a.e('s_cselect_b32 s64, 0, s64')
            else:
                a.e(f's_movk_i32 s64, {40 * 512}')
            a.e('s_add_u32 s64, s64, s62')
            a.e(f's_mov_b32 m0, {XRL1 + p * 1024}')
            a.vmem(f'buffer_load_dwordx4 v0, {sr(sWS, 4)}, s64 offen sc1 lds', 'xrd')
        a.e('v_lshrrev_b32 v0, 2, v1')
        a.e('v_lshlrev_b32 v0, 18, v0')
        a.e('v_and_b32 v11, 3, v1')
        a.e('v_lshl_add_u32 v0, v11, 4, v0')
        for w in range(8):
            rb = w >> 1
            a.e(f's_lshl_b32 s64, s{sG if rb < 2 else sTAU1}, 12')
            a.e(f's_add_u32 s64, s64, {(rb % 2) * 16 * 64 * 4096}')
            a.e(f's_mov_b32 m0, {TWL1 + w * 1024}')
            a.vmem(f'buffer_load_dwordx4 v0, {sr(sCS if w % 2 else 8, 4)}, s64 offen lds', 'twd')

    def a2_pre(l, hook=lambda: None):
        xb, A, shB, twb = ((XRL0, 192, 4, TWL0), (XRL1, 16, 10, TWL1))[l]
        hook()
        dest_row(5)
        a.e(f'v_mul_u32_u24 v7, {A}, v5')
        a.e(f'v_add_u32 v7, {xb}, v7')
        a.e(f's_lshl_b32 s6, s{sKT}, 2')
        a.e(f's_cmp_eq_u32 s{sMIR}, 1')
        a.e('s_cselect_b64 s[76:77], -1, 0')
        a.e(f's_cmp_eq_u32 s{sC}, 0')
        a.e('s_cselect_b32 s7, 11, 0')
        for h in range(2):
            a.e(f'v_add3_u32 v11, v4, s6, {2 * h}')
            a.e('v_min_u32 v11, 4, v11')
            a.e('v_sub_u32 v12, 9, v11')
            a.e('v_cndmask_b32 v12, v11, v12, s[76:77]')
            a.e(f'v_lshl_add_u32 v12, v12, {shB}, v7')
            a.lds(f'ds_read_b128 {vr(XM + 4 * h, 4)}, v12', 'xr')
            a.e('v_mov_b32 v13, s7')
            a.e('v_cmp_eq_u32 vcc, 0, v11')
            a.e('v_cndmask_b32 v13, v11, v13, vcc')
            a.e('v_sub_u32 v12, 10, v11')
            a.e('v_cndmask_b32 v12, v13, v12, s[76:77]')
            a.e(f'v_lshl_add_u32 v12, v12, {shB}, v7')
            a.lds(f'ds_read_u16 v{XE + h}, v12', 'xr')
        a.e('v_bfe_u32 v11, v1, 2, 1')
        a.e('v_and_b32 v12, 1, v1')
        a.e('v_lshlrev_b32 v12, 4, v12')
        a.e('v_mov_b32 v13, 0x3f80')
        a.e('v_lshlrev_b32 v12, v12, v13')
        a.e('v_cmp_eq_u32 vcc, v11, v4')
        a.e('v_cndmask_b32 v12, 0, v12, vcc')
        a.e('v_bfe_u32 v13, v1, 1, 1')
        a.e('v_bfe_u32 v11, v1, 3, 2')
        a.e('v_lshl_add_u32 v13, v11, 1, v13')
        for r in range(8):
            a.e(f'v_cmp_eq_u32 vcc, {r}, v13')
            a.e(f'v_cndmask_b32 v{ID + r}, 0, v12, vcc')
        hook()
        a.wait(lg='xr')
        Lr, Lj = a.newlab('Lxr'), a.newlab('Lxj')
        a.e('v_mov_b32 v11, 0xffff')
        a.e(f's_cmp_eq_u32 s{sMIR}, 1')
        a.e(f's_cbranch_scc1 {Lr}')
        for k in range(2):
            m, o = XM + 4 * k, XR + 4 * k
            a.e(f'v_bfi_b32 v{o}, v11, v{XE + k}, v{m}')
            for d in range(1, 4):
                a.e(f'v_mov_b32 v{o + d}, v{m + d}')
        a.e(f's_branch {Lj}')
        a.label(Lr)
        for k in range(2):
            m, o = XM + 4 * k, XR + 4 * k
            a.e(f'v_bfi_b32 v{o}, v11, v{XE + k}, v{m + 3}')
            a.e(f'v_bfi_b32 v{o + 1}, v11, v{m + 3}, v{m + 2}')
            a.e(f'v_bfi_b32 v{o + 2}, v11, v{m + 2}, v{m + 1}')
            a.e(f'v_bfi_b32 v{o + 3}, v11, v{m + 1}, v{m}')
        a.label(Lj)
        a.e('v_lshrrev_b32 v11, 4, v10')
        a.e('v_lshlrev_b32 v11, 11, v11')
        a.e('v_lshl_add_u32 v11, v8, 6, v11')
        a.e('v_lshl_add_u32 v11, v4, 4, v11')
        a.e(f's_lshl_b32 s6, s{sRHO}, 12')
        a.e(f's_add_u32 s6, s6, {twb}')
        a.e('v_add_u32 v11, s6, v11')
        for ks in range(4):
            a.lds(f'ds_read_b128 {vr(TW + 4 * ks, 4)}, v11 offset:{(ks // 2) * 1024 + (ks % 2) * 32}', 'tw')
        a.e(f'v_mfma_f32_32x32x16_bf16 {vr(Y, 16)}, {vr(ID, 4)}, {vr(XR, 4)}, 0')
        a.e(f'v_mfma_f32_32x32x16_bf16 {vr(Y, 16)}, {vr(ID + 4, 4)}, {vr(XR + 4, 4)}, {vr(Y, 16)}')
        hook()
        a.e(f's_lshl_b32 s6, s{sC}, 2')
        a.e(f's_lshl_b32 s7, s{sMIR}, 5')
        a.e('s_add_u32 s6, s6, s7')
        a.e(f's_lshl_b32 s7, s{sC}, 1')
        a.e(f's_add_u32 s7, s7, s{sMIR}')
        a.e('s_add_u32 s7, s7, 64')
        a.e(f's_cmp_eq_u32 s{sKT}, 0')
        a.e('s_cselect_b32 s6, s6, s7')
        a.e('s_lshl_b32 s6, s6, 10')
        a.e('v_lshlrev_b32 v5, 4, v5')
        a.e('v_lshl_add_u32 v5, v4, 10, v5')
        a.e('v_add_u32 v5, s6, v5')
        a.e(f'v_add_u32 v6, {R1}, v5')
        a.e('s_cmp_eq_u32 s6, 32768')
        a.e('s_cselect_b32 s6, 0xffff, 0')
        a.e('v_mov_b32 v12, s6')
        a.e('v_cmp_eq_u32 vcc, 0, v4')
        a.e('v_cndmask_b32 v12, 0, v12, vcc')
        a.e('v_bfe_u32 v13, v1, 2, 2')
        a.e('v_lshl_add_u32 v13, v4, 3, v13')
        a.e('v_mul_u32_u24 v13, 192, v13')
        a.e('v_bfe_u32 v11, v1, 4, 1')
        a.e('v_lshlrev_b32 v11, 1, v11')
        a.e('v_and_b32 v7, 1, v1')
        a.e(f's_lshl_b32 s7, s{sKT}, 2')
        a.e('v_add3_u32 v11, v11, v7, s7')
        a.e('v_min_u32 v11, 4, v11')
        a.e('v_lshl_add_u32 v13, v11, 4, v13')
        a.e('v_bfe_u32 v11, v1, 1, 1')
        a.e('v_lshl_add_u32 v13, v11, 3, v13')
        a.e(f's_mul_i32 s6, s{sRHO}, 6144')
        a.e('s_add_u32 s6, s6, s58')
        a.e('v_add_u32 v13, s6, v13')
        a.e(f'v_mov_b32 v11, v{XR}')
        a.wait(lg='tw')
        for r in range(8, 16):
            a.e(f'v_xor_b32 v{TW + r}, 0x80008000, v{TW + r}')

    def reduce_addr(l, second):
        a.e(f's_add_u32 s6, s{sWAVE}, {8 if second else 0}')
        a.e('s_cmp_ge_u32 s6, 5')
        a.e('s_cselect_b32 s7, 5, 0')
        a.e(f's_cselect_b32 s62, 0, {R1}')
        if l == 0:
            a.e('s_cselect_b32 s65, 40960, 0')
        else:
            a.e(f's_cselect_b32 s65, s{sTAU1}, s{sG}')
        a.e('s_sub_u32 s6, s6, s7')
        a.e('s_lshl_b32 s7, s6, 10')
        a.e('s_add_u32 s62, s62, s7')
        a.e('v_lshrrev_b32 v11, 4, v10')
        a.e('v_mul_u32_u24 v11, 5120, v11')
        a.e('v_lshl_add_u32 v11, v4, 9, v11')
        a.e('v_lshl_add_u32 v11, v8, 4, v11')
        a.e('v_add_u32 v11, s62, v11')
        a.e(f'v_add_u32 v13, {5 * PRV}, v11')
        a.e('s_lshl_b32 s6, s6, 1')
        a.e(f's_mul_i32 s7, s{sC}, 10')
        a.e('s_add_u32 s6, s6, s7')
        a.e('v_add_u32 v7, s6, v4')
        if l == 0:
            a.e('v_lshlrev_b32 v7, 9, v7')
            a.e('v_lshl_add_u32 v7, v10, 4, v7')
            a.e(f's_add_u32 s65, s65, s{sGCM}')
            a.e(f's_add_u32 s65, s65, 0x{X2B:x}')
        else:
            a.e('v_lshlrev_b32 v7, 4, v7')
            a.e(f's_mov_b32 s7, {64 * 1280}')
            a.e('v_mad_u32_u24 v7, v10, s7, v7')
            a.e('s_mulk_i32 s65, 1280')

    def reduce_item(l):
        SUM, RB = 56, 64
        for h in range(2):
            a.lds(f'ds_read_b128 {vr(SUM + 4 * h, 4)}, v11 offset:{h * 256}', ('p', 0))
        for p in range(1, 7):
            for h in range(2):
                b, o = (11, p * PRV) if p < 5 else (13, (p - 5) * PRV)
                a.lds(f'ds_read_b128 {vr(RB + 8 * (p - 1) + 4 * h, 4)}, v{b} offset:{o + h * 256}', ('p', p))
        for p in range(1, 8):
            a.wait(lg=('p', p))
            for r in range(0, 8, 2):
                a.e(f'v_pk_add_f32 {vr(SUM + r, 2)}, {vr(SUM + r, 2)}, {vr(RB + 8 * ((p - 1) % 6) + r, 2)}')
            if p == 1:
                for h in range(2):
                    a.lds(f'ds_read_b128 {vr(RB + 4 * h, 4)}, v13 offset:{2 * PRV + h * 256}', ('p', 7))
        for r in range(4):
            a.e(f'v_cvt_pk_bf16_f32 v{SUM + r}, v{SUM + 2 * r}, v{SUM + 2 * r + 1}')
        if l == 0:
            a.vmem(f'buffer_store_dwordx4 {vr(SUM, 4)}, v7, {sr(sWS, 4)}, s65 offen sc1', 'xst')
        else:
            a.vmem(f'buffer_store_dwordx4 {vr(SUM, 4)}, v7, {sr(sOUT, 4)}, s65 offen', 'xst')

    def lin(n, sl, lds_add, ssrc, src_add, tag):
        for k in range(n):
            if k % 4 == 0:
                a.e(f's_add_u32 m0, s{sl}, {lds_add + k * 1024}')
                a.e(f's_add_u32 s64, s{ssrc}, 0x{src_add + k * 1024:x}')
            a.vmem(f'buffer_load_dwordx4 v2, {sr(sWS, 4)}, s64 offen offset:{(k % 4) * 1024} sc1 lds', tag)

    def cnt_add(addr, vt):
        a.e(f'v_mov_b32 v{vt}, {addr}')
        a.e('v_mov_b32 v0, 1')
        a.e('s_mov_b64 exec, 1')
        a.lds(f'ds_add_u32 v{vt}, v0', 'cnt')
        a.e('s_mov_b64 exec, -1')

    def cnt_wait(addr, vt):
        L, Ld = a.newlab('Lcw'), a.newlab('Lcd')
        a.e('s_mov_b32 s61, 0')
        a.label(L)
        a.e(f'v_mov_b32 v{vt}, {addr}')
        a.e(f'ds_read_b32 v{vt}, v{vt}')
        a.e('s_waitcnt lgkmcnt(0)')
        a.lg.clear()
        a.e(f'v_cmp_gt_u32 vcc, 8, v{vt}')
        a.e(f's_cbranch_vccz {Ld}')
        a.e('s_sleep 1')
        a.e('s_add_u32 s61, s61, 1')
        a.e(f's_cmp_lt_u32 s61, {SPIN}')
        a.e(f's_cbranch_scc1 {L}')
        a.label(Ld)

    GO, DONE = STATS + 528, STATS + 544

    def sig_set(base, vt):
        a.e(f'v_mov_b32 v{vt}, s56')
        a.lds(f'ds_write_b32 v{vt}, v{vt} offset:{base - 4}', 'sig')

    def sig_wait(base, vt, slp):
        L, Ld = a.newlab('Lgw'), a.newlab('Lgd')
        a.e('s_mov_b32 s61, 0')
        a.label(L)
        a.e(f'v_mov_b32 v{vt}, s56')
        a.e(f'ds_read_b32 v{vt}, v{vt} offset:{base - 4}')
        a.e('s_waitcnt lgkmcnt(0)')
        a.lg.clear()
        a.e(f'v_cmp_eq_u32 vcc, 0, v{vt}')
        a.e(f's_cbranch_vccz {Ld}')
        a.e(f's_sleep {slp}')
        a.e('s_add_u32 s61, s61, 1')
        a.e(f's_cmp_lt_u32 s61, {SPIN}')
        a.e(f's_cbranch_scc1 {L}')
        a.label(Ld)

    if OPT.get('abl_h'):
        a.e(f's_mov_b32 s{sHK}, 0x70000000')
    if OPT.get('abl_w1'):
        a.e(f's_mov_b32 s{sW1B}, 0x70000000')
    if OPT.get('abl_w2'):
        a.e(f's_mov_b32 s{sW2O}, 0x70000000')
    if OPT.get('abl_hs'):
        a.e(f's_mov_b32 s{sHG}, 0x70000000')
    bg = BG()
    a.e(f's_mul_i32 s68, s{sWAVE}, 5120')
    a.e(f's_mul_i32 s69, s{sWAVE}, {PRV}')
    a.e(f's_cmp_lt_u32 s{sC}, 4')
    a.e('s_cselect_b32 s58, 16384, 0')
    a.e(f's_add_u32 s58, s58, {R1 + 32768}')
    NBW = OPT.get('bgw', 10)
    if EW:
        Ln, Lj = a.newlab('Lwn'), a.newlab('Lwj')
        a.wait(vm='poll')
        a.e(f's_add_u32 s59, s{sNON}, {PH_V[0]}')
        a.e('v_subrev_u32 v253, s59, v253')
        a.e('v_cmp_le_u32 vcc, 16, v253')
        a.e('s_mov_b32 s57, 0')
        a.e(f's_cbranch_vccnz {Ln}')
        a.e('s_mov_b32 s57, 1')
        st = a.save()
        for f in range(NBW):
            w2load(f)
        a.wait(vm='vo')
        a.e(f's_branch {Lj}')
        a.label(Ln)
        a.restore(st)
        a.wait(vm='vo')
        a.label(Lj)
    else:
        a.wait(vm='vo')
    a.e('s_barrier')
    a.stamp('PV0')
    setflag_w0(a, PH_V[0], 7)
    if EW:
        Lj = a.newlab('Lwj')
        a.e('s_cmp_eq_u32 s57, 1')
        a.e(f's_cbranch_scc1 {Lj}')
        poll(a, *pW)
        for f in range(NBW):
            w2load(f)
        a.label(Lj)
        a.stamp('pollW')
        for f in range(NBW, 30):
            bg.add(lambda f=f: w2load(f))
    a2_pre(0, lambda: bg.run(OPT.get('bgw2', 4)))

    for l in range(2):
        a.e(f's_lshl_b32 s67, s{sWAVE}, 15')
        a.e(f's_lshl_b32 s6, s{sC}, 10')
        a.e('s_add_u32 s67, s67, s6')
        pV = (7, 67, PH_V[l], 4, 13)
        bg.run(OPT.get('bgpv', 0))
        poll_issue(a, *pV)
        bg.run(OPT.get('bgpv2', 0))
        poll_check(a, *pV)
        if l == 0:
            def id_issue():
                a.e(f'v_mov_b32 v72, s{sFSRC}')
                a.e(f'v_mov_b32 v73, s{sFPAR}')
                a.e('v_cmp_eq_u32 vcc, 0, v1')
                a.e('v_cndmask_b32 v72, v73, v72, vcc')
                a.e(f's_mov_b32 s60, 0x{FLG:x}')
                a.vmem(f'buffer_load_dwordx2 v[72:73], v72, {sr(sWS, 4)}, s60 offen sc1', 'ids')
        a.stamp(f'pollV{l}')
        a.e(f's_mul_i32 s63, s{sWAVE}, 768')
        a.e('s_add_u32 s62, s63, s58')
        a.e('s_mov_b32 exec_hi, 0xffff')
        for rho in range(2):
            a.e(f's_lshl_b32 s6, s{sG if rho == 0 else sTAU1}, 3')
            a.e(f's_add_u32 s6, s6, s{sC}')
            a.e('s_mulk_i32 s6, 6144')
            a.e('s_add_u32 s6, s6, s63')
            a.e(f's_add_u32 s6, s6, 0x{VB[l]:x}')
            a.e(f's_add_u32 m0, s62, {rho * 6144}')
            a.vmem(f'buffer_load_dwordx4 v2, {sr(sWS, 4)}, s6 offen sc1 lds', 'v')
        a.e('s_mov_b64 exec, -1')
        if l == 0:
            id_issue()
        bg.run(OPT.get('bgv', 4))
        a.e('v_lshlrev_b32 v7, 3, v1')
        a.e(f'v_mov_b32 v{VF}, 0')
        a.e(f'v_mov_b32 v{VF + 1}, 0')
        a.lds(f'ds_write_b64 v7, {vr(VF, 2)} offset:{STATS + 256}', 'clr')
        a.wait(vm='v', lg='clr')
        a.e('s_barrier')
        a.stamp(f'V{l}')
        for ks in range(4):
            for rd in range(2):
                a.lds(f'ds_read_b64_tr_b16 {vr(VF + 4 * ks + 2 * rd, 2)}, v13 offset:{(16 * (ks % 2) + 4 * rd) * 192 + (ks // 2) * 80}', ('vf', ks))
        if l == 0:
            for n in range(NR):
                bg.add(lambda n=n: w1load(n))
                if n < NST:
                    bg.add(lambda n=n: stash(n))
            bg.run(OPT.get('bg0', 2))

        a.e(f's_add_u32 s63, s{sGCM}, 0x{X1B[l]:x}')
        a.e(f's_cmp_eq_u32 s{sKT}, 0')
        a.e('s_cselect_b32 s70, -1, 0')
        a.e(f's_cselect_b32 s71, s63, 0x{OOB:x}')
        for ks in range(4):
            a.wait(lg=('vf', ks))
            a.e(f'v_mfma_f32_32x32x16_bf16 {vr(Y, 16)}, {vr(VF + 4 * ks, 4)}, {vr(TW + 4 * ks, 4)}, {vr(Y, 16)}')
        for r in range(8):
            a.e(f'v_cvt_pk_bf16_f32 v{PK + r}, v{Y + 2 * r}, v{Y + 2 * r + 1}')
        a.e(f'v_bfi_b32 v{PK}, v12, v11, v{PK}')
        xstore(f'buffer_store_dwordx4 {vr(PK + 4, 4)}, v5, {sr(sWS, 4)}, s71 offen offset:2048', 'x1s', l == 1 and LP & 1)
        a.e('s_mov_b32 exec_hi, s70')
        xstore(f'buffer_store_dwordx4 {vr(PK, 4)}, v5, {sr(sWS, 4)}, s63 offen', 'x1s', l == 1 and LP & 1)
        a.lds(f'ds_write_b128 v6, {vr(PK, 4)}', 'x1w')
        a.e('s_mov_b32 exec_lo, s70')
        a.lds(f'ds_write_b128 v6, {vr(PK + 4, 4)} offset:2048', 'x1w')
        a.e('s_mov_b64 exec, -1')
        a.stamp(f'x1st{l}')
        bg.run(OPT.get('bgx0', 4 if l == 0 else 3))
        a.wait(vm='x1s')
        a.e('s_barrier')
        a.stamp(f'X1s{l}')
        setflag_w0(a, PH_X1[l], 7)
        if l == 0:
            L, Ld = a.newlab('Lidp'), a.newlab('Lidd')
            a.e(f's_add_u32 s59, s{sNON}, {PH_V[0]}')
            a.wait(vm='ids')
            a.e('s_mov_b32 s61, 0')
            a.label(L)
            a.e('v_subrev_u32 v72, s59, v72')
            a.e('v_cmp_le_u32 vcc, 16, v72')
            a.e(f's_cbranch_vccz {Ld}')
            st = a.save()
            id_issue()
            a.restore(st)
            a.e('s_waitcnt vmcnt(0)')
            a.e('s_add_u32 s61, s61, 1')
            a.e(f's_cmp_lt_u32 s61, {SPIN}')
            a.e(f's_cbranch_scc1 {L}')
            a.e('v_mov_b32 v73, -1')
            a.label(Ld)
            a.e('s_nop 0')
            a.e('v_readlane_b32 s6, v73, 0')
            a.e('v_readlane_b32 s7, v73, 1')
            for r, sf in ((6, sFSRC), (7, sFPAR)):
                a.e(f's_cmp_eq_u32 s{r}, s{sXCC}')
                a.e(f's_cselect_b32 s{r}, 0x{LOC if OPT.get("loc", 1) else 0:x}, 0')
                a.e(f's_add_u32 s{sf}, s{sf}, s{r}')
            a.e('s_and_b32 s6, s6, s7')
            a.e('s_cselect_b32 s6, 0, 1')
            a.e(f'v_mov_b32 v72, {STATS + 520}')
            a.e('v_mov_b32 v73, s6')
            a.lds('ds_or_b32 v72, v73', 'idw')
        CP = 16
        if l == 0:
            a.e(f's_lshl_b32 s6, s{sU1}, 6')
            a.e('v_lshl_add_u32 v7, v10, 2, s6')
            a.e('s_movk_i32 s7, 6912')
            a.e('v_mad_u32_u24 v7, v4, s7, v7')
            for n in range(10):
                a.e(f's_mov_b32 s7, 0x{CSP + n * 2 * 6912:x}')
                a.vmem(f'buffer_load_dword v{CP + n}, v7, {sr(sWS, 4)}, s7 offen sc1', 'cs')
        bg.run(OPT.get('bgx1', 3))
        pX = (7, sFSRC, PH_X1[l], 1)
        poll_issue(a, *pX)
        RSC, RA = 2 * PRV + 9216, 37
        Lw7 = a.newlab('Lw7')
        a.e(f's_cmp_lg_u32 s{sWAVE}, 7')
        a.e(f's_cbranch_scc1 {Lw7}')
        if True:
            a.e(f's_cmp_ge_u32 s{sC}, 4')
            a.e('s_cselect_b64 s[70:71], -1, 0')
            a.e('v_and_b32 v11, 7, v8')
            a.e('v_sub_u32 v12, 8, v11')
            a.e('v_cndmask_b32 v12, v11, v12, s[70:71]')
            a.e('v_lshrrev_b32 v13, 3, v8')
            a.e('v_add_u32 v0, 2, v13')
            a.e('v_cmp_eq_u32 vcc, 0, v11')
            a.e('v_cndmask_b32 v12, v12, 0, vcc')
            a.e('v_cndmask_b32 v13, v13, v0, vcc')
            a.e('v_and_b32 v0, 1, v12')
            a.e('v_lshlrev_b32 v0, 4, v0')
            a.e('v_mov_b32 v36, 0x3f80')
            a.e('v_lshlrev_b32 v0, v0, v36')
            a.e('v_cmp_eq_u32 vcc, v13, v9')
            a.e('v_cndmask_b32 v0, 0, v0, vcc')
            a.e('v_lshrrev_b32 v12, 1, v12')
            for r in range(4):
                a.e(f'v_cmp_eq_u32 vcc, {r}, v12')
                a.e(f'v_cndmask_b32 v{32 + r}, 0, v0, vcc')
            a.lds(f'ds_write_b128 v2, v[32:35] offset:{RSC}', 'rw')
            a.e(f'v_lshlrev_b32 v{RA}, 2, v1')
            a.e(f's_mul_i32 s6, s{sC}, 10')
            a.e('v_cmp_le_u32 s[72:73], 2, v9')
            for ft in range(5):
                a.e('v_and_b32 v11, 1, v9')
                a.e(f'v_add3_u32 v11, v11, s6, {2 * ft}')
                a.e('v_sub_u32 v12, 119, v11')
                a.e('v_cndmask_b32 v12, v11, v12, s[70:71]')
                a.e('v_sub_u32 v13, 120, v11')
                a.e('v_cndmask_b32 v13, v11, v13, s[70:71]')
                if ft == 0:
                    a.e('v_cmp_eq_u32 vcc, 0, v13')
                    a.e('v_cndmask_b32 v13, v13, 40, vcc')
                    a.e('v_cmp_eq_u32 vcc, 80, v13')
                    a.e('v_cndmask_b32 v13, v13, 0, vcc')
                a.e('v_cndmask_b32 v12, v12, v13, s[72:73]')
                a.e('v_mul_u32_u24 v13, 13108, v12')
                a.e('v_lshrrev_b32 v13, 16, v13')
                a.e('v_sub_u32 v11, v12, v13')
                a.e('v_mul_u32_u24 v0, 5, v13')
                a.e('v_sub_u32 v12, v12, v0')
                a.e('v_and_b32 v0, 7, v13')
                a.e('v_lshrrev_b32 v13, 3, v13')
                a.e('v_lshl_add_u32 v13, v0, 1, v13')
                a.e('v_add_u32 v13, 64, v13')
                a.e('v_cmp_eq_u32 vcc, 4, v12')
                a.e('v_cndmask_b32 v11, v11, v13, vcc')
                a.e('v_lshlrev_b32 v11, 10, v11')
                a.e('v_lshl_add_u32 v11, v8, 4, v11')
                a.e(f'v_add_u32 v11, {R1}, v11')
                a.lds(f'ds_write_b32 v{RA}, v11 offset:{RSC + PRV + (ft // 4) * PRV + (ft % 4) * 256}', 'rw')
        a.label(Lw7)
        poll_check(a, *pX)
        a.stamp(f'pollX1{l}')
        a.e(f's_lshl_b32 s6, s{sWAVE}, 12')
        a.e('s_lshr_b32 s7, s6, 1')
        a.e('s_add_u32 s66, s63, s6')
        a.e('s_add_u32 s57, s63, s7')
        a.e(f's_cmp_eq_u32 s{sWAVE}, s{sC}')
        a.e(f's_cselect_b32 s66, 0x{OOB:x}, s66')
        a.e(f's_cselect_b32 s57, 0x{OOB:x}, s57')
        a.e('s_cselect_b32 s67, 0x14000, s6')
        a.e('s_cselect_b32 s56, 0x14000, s7')
        lin(4, 67, R1, 66, 0, ('x1', 0))
        if l == 0:
            for n in range(1, 10):
                a.e(f'v_add_f32 v{CP}, v{CP}, v{CP + n}')
            a.e(f'v_mov_b32 v15, v{CP}')
            a.e(f'v_permlane32_swap_b32 v{CP}, v15')
            a.e(f'v_add_f32 v15, v{CP}, v15')
        a.e(f's_lshl_b32 s6, s{sWAVE}, 7')
        a.e('v_lshl_add_u32 v7, v10, 2, s6')
        a.lds(f'ds_write_b32 v7, v15 offset:{CSS}', 'csw')
        a.e(f'v_add_u32 v5, {R1}, v3')
        a.e(f'v_add_u32 v6, {R1 + 40960}, v3')
        if OPT.get('x1o', 1):
            a.e('s_waitcnt vmcnt(3)')
        lin(4, 67, R1 + 32768, 66, 32768, ('x1', 1))
        lin(2, 56, R1 + 65536, 57, 65536, ('x1', 1))
        a.wait(vm=('x1', 0), lg='all')
        a.e('s_barrier')
        a.stamp(f'B1{l}')
        if l == 0:
            a.e('ds_read_b32 v73, v72')
            a.e('s_waitcnt lgkmcnt(0)')
            a.e('v_readfirstlane_b32 s26, v73')
        LS, Lid, Lg2, Ljoin = (a.newlab(x) for x in ('LS', 'Lid', 'Lg2', 'Ljoin'))
        a.e(f's_cmp_eq_u32 s{sWAVE}, 7')
        a.e(f's_cbranch_scc1 {LS}')
        a.e(f's_cmp_ge_u32 s{sWAVE}, s{sU2}')
        a.e(f's_cbranch_scc1 {Lid}')
        st0 = a.save()
        q = list(bg.q)
        bg.q = []
        assert l == 1 or not EW or ('w2', 29) in a.seen
        NW2 = OPT.get('nw2', 20)
        need2 = list(range(30)) if l == 0 and not EW else []

        def xaddr(ks, rt):
            return (5, ks * 4096 + rt * 256) if ks < 10 else (6, (ks - 10) * 4096 + rt * 256)

        def xreads(n, nst=2):
            out = []
            for rt in range(4):
                b, o = xaddr(n, rt)
                out.append(lambda rt=rt, b=b, o=o: a.lds(f'ds_read_b128 {vr(XF + 16 * (n % nst) + 4 * rt, 4)}, v{b} offset:{o}', ('xf', n)))
            return out

        EP = XF

        def epi_reads():
            a.e('v_lshlrev_b32 v7, 2, v8')
            for rt in range(4):
                a.lds(f'ds_read_b32 v{EP + 12 + rt}, v7 offset:{STATS + 256 + rt * 64}', 'st')
            for rt in range(4):
                a.lds(f'ds_read_b32 v{EP + 8 + rt}, v7 offset:{STATS + rt * 64}', 'st')

        p1 = (11, sFSRC, PH_H[l], 3, 7, 0)
        p2 = (13, sFSRC, PH_H[l], 4, 7, 3)

        young = {'n': 0}
        orig_vmem = a.vmem

        def vmem_cnt(s, tag=None):
            young['n'] += 1
            orig_vmem(s, tag)

        def ack_and_flag(slot):
            a.e(f's_waitcnt vmcnt({young["n"]})')
            a.stamp(f'ack{slot}')
            del a.vm[:max(0, len(a.vm) - young['n'])]
            a.vmem = orig_vmem
            setflag(a, slot, 12)

        acc = lambda rt, ft: vr(ACCB + 4 * (rt * 5 + ft), 4)
        seq = [(s, rt) for s in range(3) for rt in range(4)] + [(s, rt) for s in range(3, 7) for rt in (0, 1)] + [(s, rt) for rt in (2, 3) for s in range(3, 7)]
        hb = lambda z: vr(HBUF[(z + 1) % 5], 4)

        def hread(z):
            if z < 4 or z >= len(seq):
                return
            s, rt = seq[z]
            if z < 12:
                a.wait(vm=('h', s))
                a.lds(f'ds_read_b128 {hb(z)}, v5 offset:{(s - 1) * 4096 + rt * 256}', ('hz', z))
            else:
                hf = rt // 2
                a.wait(vm=('h2', hf, s))
                a.lds(f'ds_read_b128 {hb(z)}, v{5 if hf else 6} offset:{(s - 3) * 2048 + (rt % 2) * 256}', ('hz', z))

        def zmf(z, first=False, fill=()):
            s, rt = seq[z]
            if z < 4:
                a.wait(vm=[('h', 0)] + [('w2', k) for k in range(5)])
            else:
                a.wait(vm=[('w2', 5 * s + k) for k in range(5)], lg=('hz', z))
            weave(a, [f'v_mfma_f32_16x16x32_bf16 {acc(rt, ft)}, {vr(w2reg(5 * s + ft), 4)}, {hb(z)}, {"0" if first else acc(rt, ft)}' for ft in range(5)], fill)

        PR = {0: (1, 2, 1), 1: (2, 1, 0), 2: (1, 1, 0), 3: (1, 0, 0)}[OPT.get('pr', 1)]

        def guarded(nwaves, frs):
            Lf = a.newlab('Lf')
            a.e(f's_cmp_ge_u32 s{sWAVE}, {nwaves}')
            a.e(f's_cbranch_scc1 {Lf}')
            st = a.save()
            for f in frs:
                w2load(f)
            seen = set(a.seen)
            a.restore(st)
            a.seen = seen
            a.label(Lf)

        def usread(n):
            a.wait(vm=('ws', n))
            a.lds(f'ds_read_b128 {vr(JIT[n % 2], 4)}, v13 offset:{(n % NST) * 1024}', ('us', n))

        def h1_all():
            a.e(f's_add_u32 s64, s{sHK}, 0x{HB[l]:x}')
            for rt in range(4):
                a.vmem(f'buffer_load_dwordx4 {vr(HBUF[rt + 1], 4)}, v3, {sr(sWS, 4)}, s64 offen offset:{rt * 256} sc1', ('h', 0))
            lin(4, 69, 0, sHK, HB[l] + 4096, ('h', 1))
            lin(4, 69, 4096, sHK, HB[l] + 8192, ('h', 2))

        def gemm(late, q, qlow=False):
            pw1, pws = [NR], [NST]
            a.e('v_add_u32 v13, s69, v2')
            for f in xreads(0):
                f()
            usread(0)
            for n in range(20):
                if n == 7:
                    cnt_wait(CNT1, 7)
                a.wait(vm=('w1', n), lg=[('xf', n), ('us', n)])
                mf = []
                for h in range(2):
                    for rt in range(4):
                        ac = vr(ACCX + 16 * h + 4 * rt, 4)
                        w = RING[n % NR] if h == 0 else JIT[n % 2]
                        mf.append(f'v_mfma_f32_16x16x32_bf16 {ac}, {vr(w, 4)}, {vr(XF + 16 * (n % 2) + 4 * rt, 4)}, {"0" if n == 0 else ac}')
                fl = []
                if n + 1 < 20:
                    fl += [lambda: usread(n + 1)] + xreads(n + 1)
                nq = 0
                while q and nq < 3 and not qlow:
                    fl.append(q.pop(0))
                    nq += 1
                if not q or qlow:
                    while pws[0] < 20 and pws[0] - NST <= n and nq < 2:
                        fl.append(lambda k=pws[0]: stash(k))
                        pws[0] += 1
                        nq += 1
                    while pw1[0] < 20 and pw1[0] - NR <= n and nq < 3:
                        fl.append(lambda k=pw1[0]: w1load(k))
                        pw1[0] += 1
                        nq += 1
                while q and nq < 3 and qlow:
                    fl.append(q.pop(0))
                    nq += 1
                if late and n == OPT.get('npi', 15):
                    fl.append(lambda: poll_issue(a, *p1))
                if n == 19:
                    def ep():
                        a.e(f's_lshl_b32 s6, s{sWAVE}, 7')
                        a.e('v_lshl_add_u32 v7, v9, 4, s6')
                        for h in range(2):
                            a.lds(f'ds_read_b128 {vr(EP + 4 * h, 4)}, v7 offset:{CSS + h * 64}', 'csr')
                        epi_reads()
                    fl = [ep]
                weave(a, mf, fl)
                if n == 4 and not late:
                    a.wait(vm=('x1', 1))
                    cnt_add(CNT1, 7)
            a.stamp(f'gend{l}')
            prio(a, 3)
            a.e(f's_lshl_b32 s65, s{sU1}, 11')
            a.e(f's_add_u32 s65, s65, s{sHG}')
            a.e(f's_add_u32 s65, s65, 0x{HB[l]:x}')
            L, Ld = a.newlab('Lsw'), a.newlab('Lsd')
            a.e('s_mov_b32 s61, 0')
            a.label(L)
            a.e('s_waitcnt lgkmcnt(0)')
            a.lg.clear()
            a.e(f'v_min_u32 v7, v{EP + 12}, v{EP + 13}')
            a.e(f'v_min3_u32 v7, v7, v{EP + 14}, v{EP + 15}')
            a.e('v_cmp_eq_u32 vcc, 0, v7')
            a.e(f's_cbranch_vccz {Ld}')
            a.e('s_sleep 1')
            epi_reads()
            a.lg.clear()
            a.e('s_add_u32 s61, s61, 1')
            a.e(f's_cmp_lt_u32 s61, {SPIN}')
            a.e(f's_cbranch_scc1 {L}')
            a.e('s_waitcnt lgkmcnt(0)')
            a.label(Ld)
            a.e('v_lshlrev_b32 v7, 10, v4')
            a.e('v_lshl_add_u32 v7, v10, 4, v7')
            for h in range(2):
                for pr in range(2):
                    b = ACCX + 16 * h + 8 * pr
                    if OPT.get('pk', 0):
                        for r in range(0, 8, 2):
                            sel = 'op_sel:[0,0,0] op_sel_hi:[0,1,1]' if r < 4 else 'op_sel:[1,0,0] op_sel_hi:[1,1,1]'
                            a.e(f'v_pk_fma_f32 {vr(b + r, 2)}, {vr(EP + 8 + 2 * pr, 2)}, {vr(EP + 4 * h + r % 4, 2)}, {vr(b + r, 2)} {sel} neg_lo:[1,0,0] neg_hi:[1,0,0]')
                        for r in range(0, 8, 2):
                            sel = 'op_sel:[0,0] op_sel_hi:[1,0]' if r < 4 else 'op_sel:[0,1] op_sel_hi:[1,1]'
                            a.e(f'v_pk_mul_f32 {vr(b + r, 2)}, {vr(b + r, 2)}, {vr(EP + 12 + 2 * pr, 2)} {sel}')
                    else:
                        for r in range(8):
                            a.e(f'v_fma_f32 v{b + r}, -v{EP + 8 + 2 * pr + r // 4}, v{EP + 4 * h + r % 4}, v{b + r}')
                        for r in range(8):
                            a.e(f'v_mul_f32 v{b + r}, v{b + r}, v{EP + 12 + 2 * pr + r // 4}')
                    for r in range(4):
                        a.e(f'v_cvt_pk_bf16_f32 v{b + r}, v{b + 2 * r}, v{b + 2 * r + 1}')
                    for r in range(4):
                        a.e(f'v_pk_max_i16 v{b + r}, v{b + r}, 0')
                    a.e(f'v_permlane16_swap_b32 v{b}, v{b + 2}')
                    a.e(f'v_permlane16_swap_b32 v{b + 1}, v{b + 3}')
                    xstore(f'buffer_store_dwordx4 {vr(b, 4)}, v7, {sr(sWS, 4)}, s65 offen offset:{h * 2048 + pr * 512}', 'hst', LP & 4)
            a.stamp(f'epi{l}')
            cnt_add(CNT2, 7)

        def first_step(first):
            poll_issue(a, *p2)
            prio(a, PR[0])
            for z in range(4):
                zmf(z, first)

        def early_tail(first):
            if l == 1 and OPT.get('bearly', 1):
                guarded(5, range(20, 30))
            for f in need2:
                w2load(f)
            poll(a, *p1)
            h1_all()
            a.stamp(f'pollA{l}')
            first_step(first)

        Llate = a.newlab('Llate')
        a.e(f's_cmp_ge_u32 s{sWAVE}, 3')
        a.e(f's_cbranch_scc1 {Llate}')
        prio(a, 3)
        gemm(False, list(q))
        a.wait(vm='hst')
        a.stamp(f'ackH{l}')
        a.label(Lg2)
        setflag(a, PH_H[l], 12)
        early_tail(True)
        stE = a.save()
        a.e(f's_branch {Ljoin}')

        a.label(Llate)
        a.restore(st0)
        prio(a, 2)
        a.wait(vm=('x1', 1))
        cnt_add(CNT1, 7)
        a.e(f's_sleep {OPT.get("lsl", 2)}')
        for f in q:
            f()
        for f in need2[:OPT.get('nl0', 10)]:
            w2load(f)
        if l == 1 and OPT.get('bearly', 1):
            guarded(5, range(20, 30))
        gemm(True, [lambda f=f: w2load(f) for f in need2[OPT.get('nl0', 10):]], True)
        poll_check(a, *p1) if False else None
        Lr, Lr2 = a.newlab('Lr'), a.newlab('Lr2')
        a.e(f's_add_u32 s59, s{sNON}, {PH_H[l]}')
        a.wait(vm='poll')
        a.e('v_subrev_u32 v11, s59, v11')
        a.e('v_cmp_le_u32 vcc, 16, v11')
        a.e(f's_cbranch_vccnz {Lr}')
        st = a.save()
        h1_all()
        a.wait(vm='hst')
        a.stamp(f'ackH{l}')
        setflag(a, PH_H[l], 12)
        a.e(f's_branch {Lr2}')
        a.label(Lr)
        a.restore(st)
        a.wait(vm='hst')
        a.stamp(f'ackH{l}')
        setflag(a, PH_H[l], 12)
        poll(a, *p1)
        h1_all()
        a.label(Lr2)
        a.stamp(f'pollA{l}')
        first_step(True)
        a.e(f's_branch {Ljoin}')

        a.label(Lid)
        a.restore(st0)
        a.wait(vm=('x1', 1))
        cnt_add(CNT1, 7)
        cnt_add(CNT2, 7)
        a.e(f's_branch {Lg2}')

        a.label(LS)
        a.restore(st0)
        AS, AM, ONE, FS = 16, 32, 96, 48
        prio(a, 3)
        for r in range(4):
            a.e(f'v_mov_b32 v{ONE + r}, 0x3f803f80')
        for f in xreads(0):
            f()
        for ks in range(20):
            if ks == 4:
                a.wait(vm=('x1', 1))
                cnt_add(CNT1, 7)
            if ks == 7:
                cnt_wait(CNT1, 7)
            a.wait(lg=('xf', ks))
            mf = []
            for rt in range(4):
                f = vr(FS + 16 * (ks % 2) + 4 * rt, 4)
                mf.append(f'v_mfma_f32_16x16x32_bf16 {vr(AS + 4 * rt, 4)}, {f}, {f}, {"0" if ks == 0 else vr(AS + 4 * rt, 4)}')
                mf.append(f'v_mfma_f32_16x16x32_bf16 {vr(AM + 4 * rt, 4)}, {f}, {vr(ONE, 4)}, {"0" if ks == 0 else vr(AM + 4 * rt, 4)}')
            weave(a, mf, xreads(ks + 1) if ks + 1 < 20 else [])
        a.e(f's_mov_b32 s6, {STATS}')
        stats_finalize(a, AS, AM, 4, 11, 64, 256, 'm_rs')
        a.stamp(f'stat{l}')
        prio(a, 0)
        PM, TB = w2reg(30), (w2reg(31), 100)
        prio(a, 3)
        a.e('v_lshlrev_b32 v7, 2, v1')
        a.lds(f'ds_read_b128 {vr(PM, 4)}, v2 offset:{RSC}', 'ra')
        AR = (0, 11, 12, 13, 7)
        for ft in range(5):
            a.lds(f'ds_read_b32 v{AR[ft]}, v7 offset:{RSC + PRV + (ft // 4) * PRV + (ft % 4) * 256}', 'ra')
        a.wait(lg='ra')

        def rread(ft):
            return [lambda rt=rt: a.lds(f'ds_read_b128 {vr(TB[ft % 2] + 4 * rt, 4)}, v{AR[ft]} offset:{rt * 256}', ('rs', ft)) for rt in range(4)]
        for f in rread(0):
            f()
        for ft in range(5):
            if ft + 1 < 5:
                for f in rread(ft + 1):
                    f()
            a.wait(lg=('rs', ft))
            weave(a, [f'v_mfma_f32_16x16x32_bf16 {acc(rt, ft)}, {vr(PM, 4)}, {vr(TB[ft % 2] + 4 * rt, 4)}, 0' for rt in range(4)], [])
        prio(a, 0)
        cnt_add(CNT2, 7)
        early_tail(False)
        a.label(Ljoin)
        a.e('s_nop 1')
        a.restore(stE)
        a.lg.clear()
        a.stamp(f'join{l}')
        a.forget('w1', 'ws', 'v', 'x1', 'us')
        a.e('v_add_u32 v5, s69, v3')
        for z in range(4, 8):
            hread(z)

        def h2one(hf, s, k):
            a.e(f's_add_u32 m0, s69, {(R1 if hf == 0 else 0) + (s - 3) * 2048 + k * 1024}')
            a.e(f's_add_u32 s64, s{sHK if s < 6 else 57}, 0x{HB[l] + s * 4096 + k * 2048 + hf * 512:x}')
            a.vmem(f'buffer_load_dwordx4 v12, {sr(sWS, 4)}, s64 offen sc1 lds', ('h2', hf, s))

        def pwrite(t):
            a.lds(f'ds_write_b128 v{11 if t < 10 else 13}, {vr(ACCB + 4 * t, 4)} offset:{(t % 10) * 1024}', 'pw')

        def dload(ks):
            a.e(f's_add_u32 s64, s66, {ks * 1024}')
            a.vmem(f'buffer_load_dwordx4 {vr(dreg(ks), 4)}, v2, {sr(sWS, 4)}, s64 offen sc1', 'd')

        ZP = OPT.get('zp', 4)
        a.e(f's_cmp_ge_u32 s{sWAVE}, 6')
        a.e(f's_cselect_b32 s57, 0x70000000, s{sHK}')
        if l == 0:
            a.e(f's_mul_i32 s66, s{sC}, 5')
            a.e(f's_add_u32 s66, s66, s{sWAVE}')
            a.e('s_mul_i32 s66, s66, 20480')
            a.e(f's_add_u32 s66, s66, 0x{DPF:x}')
        fq = []
        nr = [8]
        for z in range(4, 28):
            if z == ZP:
                poll_check(a, *p2)
                a.stamp(f'pollB{l}')
                cnt_wait(CNT2, 12)
                a.e('v_lshlrev_b32 v12, 10, v4')
                a.e('v_lshl_add_u32 v12, v10, 4, v12')
                for s in range(3, 5):
                    for k in range(2):
                        h2one(0, s, k)
                fq = [lambda s=s, k=k: h2one(0, s, k) for s in (5, 6) for k in range(2)]
                fq[2:2] = [lambda f=f: w2load(f) for f in range(30, 35)]
                a.e('v_lshlrev_b32 v6, 4, v8')
                a.e('v_lshl_add_u32 v6, v9, 9, v6')
                a.e(f's_add_u32 s6, s69, {R1}')
                a.e('v_add_u32 v6, s6, v6')
                a.e('v_add_u32 v11, s6, v2')
                a.e('v_add_u32 v13, s69, v2')
            fill = []
            lim = min(z + 4, 27, 11 + 2 * max(0, z - OPT.get('zl', 10)))
            while nr[0] <= lim:
                fill.append(lambda t=nr[0]: hread(t))
                nr[0] += 1
            if z == 9:
                a.wait(lg=('hz', 11))
                a.e(f'v_subrev_u32 v5, {R1}, v6')
                fq += [lambda s=s, k=k: h2one(1, s, k) for s in range(3, 7) for k in range(2)]
            if z == 12:
                a.stamp(f'b2h1_{l}')
                prio(a, PR[1])
            if z == 20:
                a.stamp(f'b2A{l}')
                prio(a, PR[2])
                assert not fq
            if z == 21:
                fq = [lambda t=t: pwrite(t) for t in range(10)]
            if z == 25:
                a.wait(lg=('hz', 27))
                fq += [lambda t=t: pwrite(t) for t in range(10, 15)]
            for _ in range(2 if z < 21 else 4):
                if fq:
                    fill.append(fq.pop(0))
            zmf(z, fill=fill)
        assert not fq
        a.stamp(f'b2B{l}')
        prio(a, 3)
        for t in range(15, 20):
            pwrite(t)
        a.forget('h', 'h2')
        a.seen -= {('w2', f) for f in range(20, 35)}
        if l == 0:
            Ld2 = a.newlab('Ld2')
            a.e(f's_cmp_ge_u32 s{sWAVE}, 5')
            a.e(f's_cbranch_scc1 {Ld2}')
            for ks in range(OPT.get('nd0', 8)):
                dload(ks)
            a.label(Ld2)
        reduce_addr(l, False)
        a.wait(lg='all')
        a.e('s_barrier')
        a.stamp(f'PB{l}')
        reduce_item(l)
        Lnr = a.newlab('Lnr')
        a.e(f's_cmp_ge_u32 s{sWAVE}, 2')
        a.e(f's_cbranch_scc1 {Lnr}')
        reduce_addr(l, True)
        reduce_item(l)
        a.label(Lnr)
        if l == 1:
            a.stamp_dump(2, sWS, sWAVE, 15)
            break

        a.stamp('redB')
        a.e('v_lshlrev_b32 v5, 4, v8')
        a.e('v_lshl_add_u32 v5, v9, 9, v5')
        a.e(f'v_add_u32 v5, {R1}, v5')
        a.e('v_add_u32 v6, 40960, v5')
        a.wait(vm='all')
        a.e('s_barrier')
        a.stamp('ackXB')
        setflag_w0(a, PH_X2, 12)
        pXA = (7, sFSRC, PH_X2, 1)
        pXB = (11, sFPAR, PH_X2, 1)
        Ld2 = a.newlab('Ld2')
        a.e(f's_cmp_ge_u32 s{sWAVE}, 5')
        a.e(f's_cbranch_scc1 {Ld2}')
        for ks in range(OPT.get('nd0', 8), OPT.get('nd1', 13)):
            dload(ks)
        a.label(Ld2)
        a.vm.clear()
        poll_issue(a, *pXA)
        poll_issue(a, *pXB, tag='poll2')
        poll_check(a, *pXA)
        a.e(f's_add_u32 s67, s{sGCM}, s68')
        lin(5, 68, R1, 67, X2B, ('x2', 0))
        poll_check(a, *pXB, tag='poll2')
        a.stamp('pollXB')
        a.e(f's_mul_i32 s67, s{sPG}, 81920')
        a.e('s_add_u32 s67, s67, s68')
        Lst, Lid, Lj = a.newlab('Lst'), a.newlab('Lid'), a.newlab('Lj')
        a.e(f's_cmp_eq_u32 s{sWAVE}, 7')
        a.e(f's_cbranch_scc1 {Lid}')
        a.e(f's_cmp_ge_u32 s{sWAVE}, 5')
        a.e(f's_cbranch_scc1 {Lst}')
        st0 = a.save()

        def startA1(extra=None):
            a.e('s_waitcnt vmcnt(4)')
            if extra:
                extra()
            lin(5, 68, R1 + 40960, 67, X2B + 40960, ('x2', 1))
            a.wait(vm=('x2', 0))
            a.e('s_barrier')
            a.stamp('XA')

        def hookA1(hf, ks):
            if hf == 0:
                if ks == 3:
                    a.e(f's_lshl_b32 s6, s{sWAVE}, 11')
                    a.e(f's_add_u32 m0, s6, {W1SL}')
                    a.e(f's_lshl_b32 s7, s{sC}, 14')
                    a.e('s_add_u32 s6, s6, s7')
                    a.e(f's_add_u32 s6, s6, 0x{W1S:x}')
                    for n in range(2):
                        a.vmem(f'buffer_load_dwordx4 v2, {sr(sWS, 4)}, s6 offen offset:{n * 1024} sc1 lds', 'w1s')
                if ks == 19:
                    a.stamp('a1A')
                    a.wait(vm='w1s', lg='all')
                    a.e('s_barrier')
                    a.stamp('XB')

        WFA = 16
        RSr, MRr = [196, 200, 204, 208], [212, 216, 220, 224]
        NSG = len(XFS)
        wf = lambda mat, tt, ks: WFA + ((mat * 4 + tt) * 2 + ks) * 4
        startA1(lambda: [dload(ks) for ks in range(OPT.get('nd1', 13), 20)])
        for hf in range(2):
            def xread1(ks):
                return [lambda rt=rt: a.lds(f'ds_read_b128 {vr(XFS[ks % NSG] + 4 * rt, 4)}, v{5 + hf} offset:{ks * 2048 + rt * 256}', ('xf', ks)) for rt in range(2)]
            for ks in range(NSG - 1):
                for f in xread1(ks):
                    f()
            for ks in range(20):
                if ks % 2 == 0:
                    a.wait(vm='d' if ks == (OPT.get('nd1', 13) & ~1) else None, lg=('xf', ks + 1))
                mf = [f'v_mfma_f32_16x16x32_bf16 {vr(ACCA + 8 * hf + 4 * rt, 4)}, {vr(XFS[ks % NSG] + 4 * rt, 4)}, {vr(dreg(ks), 4)}, {"0" if ks == 0 else vr(ACCA + 8 * hf + 4 * rt, 4)}' for rt in range(2)]
                weave(a, mf, xread1(ks + NSG - 1) if ks + NSG - 1 < 20 else [])
                hookA1(hf, ks)
        prio(a, 3)
        for tt in range(4):
            for ks in range(2):
                for mat in range(2):
                    a.lds(f'ds_read_b128 {vr(wf(mat, tt, ks), 4)}, v2 offset:{W1SL + ((mat * 4 + tt) * 2 + ks) * 1024}', 'wf')
        a.e('v_lshlrev_b32 v12, 4, v9')
        a.stamp('a1B')
        a.e('s_barrier')
        a.stamp('ST')
        for rt in range(4):
            a.lds(f'ds_read_b128 {vr(RSr[rt], 4)}, v12 offset:{ST1 + rt * 64}', 'st')
            a.lds(f'ds_read_b128 {vr(MRr[rt], 4)}, v12 offset:{ST1 + 256 + rt * 64}', 'st')
        stage1(a, ACCA, RSr, MRr, 80, wf, R1)
        stC = a.save()
        a.seen |= {('w2', f) for f in range(20, 30)}
        a.e(f's_branch {Lj}')

        a.label(Lid)
        a.restore(st0)
        startA1()
        for hf in range(2):
            for ks in range(20):
                hookA1(hf, ks)
        stage_all()
        a.e('s_barrier')
        a.wait(vm='all')
        a.e(f's_branch {Lj}')

        a.label(Lst)
        a.restore(st0)
        AS, AM, ONE, FS = 16, 24, 32, 36
        for r in range(4):
            a.e(f'v_mov_b32 v{ONE + r}, 0x3f803f80')
        a.e(f's_sub_u32 s66, s{sWAVE}, 5')
        a.e('s_lshl_b32 s6, s66, 8')
        a.e('v_add_u32 v5, s6, v5')
        a.e('v_add_u32 v6, s6, v6')
        startA1()
        for hf in range(2):
            def sread(ks):
                a.lds(f'ds_read_b128 {vr(FS + 4 * (ks % 10), 4)}, v{5 + hf} offset:{ks * 2048}', ('sf', ks))
            for ks in range(9):
                sread(ks)
            for ks in range(20):
                a.wait(lg=('sf', ks))
                f = vr(FS + 4 * (ks % 10), 4)
                a.e(f'v_mfma_f32_16x16x32_bf16 {vr(AS + 4 * hf, 4)}, {f}, {f}, {"0" if ks == 0 else vr(AS + 4 * hf, 4)}')
                if ks + 9 < 20:
                    sread(ks + 9)
                a.e(f'v_mfma_f32_16x16x32_bf16 {vr(AM + 4 * hf, 4)}, {f}, {vr(ONE, 4)}, {"0" if ks == 0 else vr(AM + 4 * hf, 4)}')
                hookA1(hf, ks)
        prio(a, 3)
        a.e('s_lshl_b32 s6, s66, 6')
        a.e(f's_add_u32 s6, s6, {ST1}')
        stats_finalize(a, AS, AM, 2, 11, 128, 256, 'rs_mr')
        a.wait(lg='all')
        a.e('s_barrier')
        a.label(Lj)
        a.e('s_nop 1')
        a.restore(stC)
        v_out_addr(a)
        a.wait(lg='all')
        a.e('s_barrier')
        a.stamp('VT')
        v_out(a, 1, R1, 64)
        a.wait(vm='vo')
        a.e('s_barrier')
        a.stamp('PV1')
        setflag_w0(a, PH_V[1], 7)
        for n in range(NR):
            bg.add(lambda n=n: w1load(n))
            if n < NST:
                bg.add(lambda n=n: stash(n))
        a2_pre(1, lambda: bg.run(OPT.get('bga2', 3)))
        a.stamp('a2pre')

    a.label(end)
    a.e('s_endpgm')
    a.raw(descriptor(name, 256, 102))
    return 163840


def main():
    if len(sys.argv) > 2 and 'stamps' in sys.argv[2:]:
        Asm.STAMPS = True
    Asm.CYC = 'cyc' in sys.argv[2:]
    for o in sys.argv[2:]:
        if o.startswith('names='):
            Asm.ACTIVE = o[6:].split(',')
        elif '=' in o:
            k, v = o.split('=')
            OPT[k] = int(v)
    hdr = open('cdna_kernels/' + NAME + '.s.ref').read().split('\n')
    hdr = [l for l in hdr if l.startswith(';') and '@launch' not in l and 'Override launch' not in l and 'grid=ceil' not in l]
    out = '\n'.join(hdr) + '\n'
    a = Asm()
    lds = gen(a, NAME + '_kernel')
    out += f'; @launch grid=(256,1,1) block=(512,1,1) lds={lds}\n'
    if Asm.STAMPS:
        out += '; stampnames start,' + ','.join(Asm.ACTIVE) + '\n'
    out += '.amdgcn_target "amdgcn-amd-amdhsa--gfx950"\n'
    out += a.text()
    path = sys.argv[1] if len(sys.argv) > 1 else 'cdna_kernels/' + NAME + '.s'
    open(path, 'w').write(out)
    print('wrote', path, len(out))


main()
```

```python
import sys
from asmlib import *

NAME = 'interleave_layers__spectral_fnet__dense_activation_relu__prompt'
S, D, F = 2048, 640, 1728
W1F = 0
W2F = 0x220000
DPF = 0x440000
CSP = 0x510000
W1S = 0x540000
TWP = 0x560000
FLG = 0x760000
VB = [0x960000, 0xC60000]
X1B = [0xF60000, 0x11E0000]
X2B = 0x1460000
HB = [0x16E0000, 0x1DA0000]
WS_BYTES = 268435456
OOB = 0x7f000000
SPIN = 200000
OPT = {}

R1 = 81920
PRV = 10240
STATS, CSS = 9216, PRV + 9216
CNT1, CNT2 = STATS + 512, STATS + 516
XRL1, TWL1, W1SL, ST1 = R1 + 12288, R1 + 24576, 20480, 36864

sWAVE, sG, sC = 3, 4, 5
P_X, P_CR, P_CI, P_DR, P_DI, P_W1, P_W2, P_OUT, P_WS = 8, 10, 12, 14, 16, 20, 22, 24, 26
sWS, sOUT, sFL = 28, 32, 36
sRHO, sKT, sMIR, sNON, sU1, sU2 = 38, 39, 40, 41, 42, 43
sGCM, sFOWN, sW1B, sHK, sW2O, sHG, sFSRC, sTAU1, sPG, sFPAR = 44, 45, 46, 47, 48, 49, 50, 51, 52, 53


def weave(a, mfs, fill):
    fill = list(fill)
    for i, m in enumerate(mfs):
        a.e(m)
        left = len(mfs) - i
        for _ in range(-(-len(fill) // left)):
            fill.pop(0)()


class BG:
    def __init__(self):
        self.q = []

    def add(self, f):
        self.q.append(f)

    def run(self, n=None):
        n = len(self.q) if n is None else min(n, len(self.q))
        for _ in range(n):
            self.q.pop(0)()


PH_V, PH_X1, PH_H, PH_X2 = (1, 6), (2, 7), (3, 8), 4
LOC = 0x80000
sXCC = 27


def poll_issue(a, vres, soff, phase, n, shift=7, first=0, tag='poll'):
    a.e(f'v_min_u32 v{vres}, {n - 1}, v1')
    a.e(f'v_lshlrev_b32 v{vres}, {shift}, v{vres}')
    a.e(f's_add_u32 s60, s{soff}, 0x{FLG + (first << shift):x}')
    a.vmem(f'buffer_load_dword v{vres}, v{vres}, {sr(sWS, 4)}, s60 offen sc1', tag)


def poll_check(a, vres, soff, phase, n, shift=7, first=0, tag='poll'):
    L, Ld = a.newlab('Lpoll'), a.newlab('Lpd')
    a.e(f's_add_u32 s59, s{sNON}, {phase}')
    a.wait(vm=tag)
    a.e('s_mov_b32 s61, 0')
    a.label(L)
    a.e(f'v_subrev_u32 v{vres}, s59, v{vres}')
    a.e(f'v_cmp_le_u32 vcc, 16, v{vres}')
    a.e(f's_cbranch_vccz {Ld}')
    if OPT.get('abl_poll', 0) >> phase & 1:
        a.e(f's_branch {Ld}')
    if OPT.get('psleep', 2):
        a.e(f's_sleep {OPT.get("psleep", 2)}')
    st = a.save()
    poll_issue(a, vres, soff, phase, n, shift, first, tag)
    a.restore(st)
    a.e('s_waitcnt vmcnt(0)')
    a.e('s_add_u32 s61, s61, 1')
    a.e(f's_cmp_lt_u32 s61, {SPIN}')
    a.e(f's_cbranch_scc1 {L}')
    a.label(Ld)


def poll(a, vres, *args, **kw):
    poll_issue(a, vres, *args, **kw)
    poll_check(a, vres, *args, **kw)


def prio(a, p):
    if OPT.get('prio', 1):
        a.e(f's_setprio {p}')


def setflag(a, phase, vt):
    if phase is None:
        a.e('v_mov_b32 v0, 0')
    else:
        a.e(f's_add_u32 s62, s{sNON}, {phase}')
        a.e('v_mov_b32 v0, s62')
        a.e(f'v_writelane_b32 v0, s{sXCC}, 1')
    a.e(f'v_lshlrev_b32 v{vt}, 2, v1')
    a.e('s_mov_b32 exec_hi, 0')
    if phase is not None and phase not in PH_V:
        a.e(f's_add_u32 s62, s{sFOWN}, 0x{LOC:x}')
        a.vmem(f'buffer_store_dword v0, v{vt}, {sr(sWS, 4)}, s62 offen', 'flag')
    if phase is not None and phase not in PH_V and phase != PH_X1[0]:
        L = a.newlab('Lng')
        a.e('s_cmp_eq_u32 s26, 0')
        a.e(f's_cbranch_scc1 {L}')
        a.e(f'buffer_store_dword v0, v{vt}, {sr(sWS, 4)}, s{sFOWN} offen sc1')
        a.label(L)
    else:
        a.vmem(f'buffer_store_dword v0, v{vt}, {sr(sWS, 4)}, s{sFOWN} offen sc1', 'flag')
    if phase is None:
        a.e(f's_add_u32 s62, s{sFOWN}, 0x{LOC:x}')
        a.vmem(f'buffer_load_dword v254, v{vt}, {sr(sWS, 4)}, s62 offen sc1', 'flag')
    a.e('s_mov_b32 exec_hi, -1')


def setflag_w0(a, phase, vt):
    L = a.newlab('Lnf')
    a.e(f's_cmp_lg_u32 s{sWAVE}, 0')
    a.e(f's_cbranch_scc1 {L}')
    st = a.save()
    setflag(a, phase, vt)
    a.restore(st)
    a.label(L)


EXTRA = ['hst', 'flag', 'xst', 'vst', 'pst']


def merge(a, *states):
    ls = [[t for t in s[0] if t not in EXTRA and not (isinstance(t, tuple) and t[0] in EXTRA)] for s in states]
    ls.sort(key=len)
    longer = ls[-1]
    for s in ls[:-1]:
        assert longer[len(longer) - len(s):] == s, (longer, s)
    a.vm = list(longer)
    a.lg = []


def stats_finalize(a, AS, AM, ntiles, tmp, tile_stride, delta1, mode):
    t = tmp
    a.e(f'v_lshlrev_b32 v{t}, 2, v9')
    a.e(f'v_sub_u32 v{t}, v8, v{t}')
    a.e(f'v_lshl_add_u32 v{t + 1}, v8, 2, s6')
    a.e(f'v_cmp_eq_u32 s[70:71], 1, v{t}')
    a.e(f'v_cmp_eq_u32 s[72:73], 2, v{t}')
    a.e(f'v_cmp_eq_u32 s[74:75], 3, v{t}')
    a.e(f'v_cmp_gt_u32 s[76:77], 4, v{t}')
    a.e('s_mov_b32 s7, 0x3acccccd')
    for rt in range(ntiles):
        for acc in (AS, AM):
            b = acc + 4 * rt
            a.e(f'v_cndmask_b32 v{b}, v{b}, v{b + 1}, s[70:71]')
            a.e(f'v_cndmask_b32 v{b}, v{b}, v{b + 2}, s[72:73]')
            a.e(f'v_cndmask_b32 v{b}, v{b}, v{b + 3}, s[74:75]')
        ss, sm = AS + 4 * rt, AM + 4 * rt
        a.e(f'v_mul_f32 v{sm}, s7, v{sm}')
        a.e(f'v_mul_f32 v{ss}, s7, v{ss}')
        a.e(f'v_fma_f32 v{ss}, -v{sm}, v{sm}, v{ss}')
        a.e(f'v_max_f32 v{ss}, 0, v{ss}')
        a.e(f'v_add_f32 v{ss}, 0x3727c5ac, v{ss}')
        a.e(f'v_rsq_f32 v{ss}, v{ss}')
        if mode == 'rs_mr':
            a.e(f'v_mul_f32 v{sm}, v{sm}, v{ss}')
    a.e('s_mov_b64 exec, s[76:77]')
    for rt in range(ntiles):
        ss, sm = AS + 4 * rt, AM + 4 * rt
        first, second = (ss, sm) if mode == 'rs_mr' else (sm, ss)
        a.lds(f'ds_write_b32 v{t + 1}, v{first} offset:{rt * tile_stride}')
        a.lds(f'ds_write_b32 v{t + 1}, v{second} offset:{rt * tile_stride + delta1}')
    a.e('s_mov_b64 exec, -1')


def stage1(a, ACC, RSr, MRr, VA, wf, VT):
    a.e('v_cmp_gt_u32 vcc, 8, v8')
    a.e('v_mov_b32 v13, 0x80008000')
    a.e('v_cndmask_b32 v13, 0, v13, vcc')
    a.e('v_and_b32 v12, 1, v9')
    a.e('v_lshl_add_u32 v12, v12, 4, v8')
    a.e('v_mul_u32_u24 v12, 192, v12')
    a.e('v_lshrrev_b32 v11, 1, v9')
    a.e('v_mul_u32_u24 v11, 80, v11')
    a.e(f's_lshl_b32 s6, s{sWAVE}, 4')
    a.e(f's_add_u32 s6, s6, {VT}')
    a.e('v_add3_u32 v12, v12, v11, s6')
    a.wait(lg='st')
    for r in range(16):
        m = MRr[r // 4] + r % 4
        a.e(f'v_mul_f32 v{m}, v{m}, v14')
    for r in range(16):
        a.e(f'v_fma_f32 v{ACC + r}, v{ACC + r}, v{RSr[r // 4] + r % 4}, -v{MRr[r // 4] + r % 4}')
    for r in range(8):
        a.e(f'v_cvt_pk_bf16_f32 v{ACC + r}, v{ACC + 2 * r}, v{ACC + 2 * r + 1}')
    for r in range(8):
        a.e(f'v_xor_b32_dpp v{ACC + 8 + r}, v{ACC + r}, v13 row_ror:8 row_mask:0xf bank_mask:0xf')
    a.wait(lg='wf')
    for tt in range(4):
        for ks in range(2):
            for mat in range(2):
                src = ACC + 8 * mat + 4 * ks
                c = '0' if (ks == 0 and mat == 0) else vr(VA + 4 * tt, 4)
                a.e(f'v_mfma_f32_16x16x32_bf16 {vr(VA + 4 * tt, 4)}, {vr(src, 4)}, {vr(wf(mat, tt, ks), 4)}, {c}')
    for pr in range(2):
        b = VA + 8 * pr
        for r in range(4):
            a.e(f'v_cvt_pk_bf16_f32 v{b + r}, v{b + 2 * r}, v{b + 2 * r + 1}')
        a.e(f'v_permlane16_swap_b32 v{b}, v{b + 2}')
        a.e(f'v_permlane16_swap_b32 v{b + 1}, v{b + 3}')
        a.lds(f'ds_write_b128 v12, {vr(b, 4)} offset:{pr * 32 * 192}', 'vt')


def v_out_addr(a):
    for n, dst in ((0, 5), (8, 6)):
        a.e(f's_lshl_b32 s6, s{sWAVE}, 6')
        a.e(f's_add_u32 s6, s6, {n * 64}')
        a.e('v_add_u32 v0, s6, v1')
        a.e('v_mul_u32_u24 v7, 5462, v0')
        a.e('v_lshrrev_b32 v7, 16, v7')
        a.e('v_lshlrev_b32 v0, 4, v0')
        a.e(f's_mov_b32 s7, {8 * 32 * 192 - 192}')
        a.e(f'v_mad_u32_u24 v{dst}, v7, s7, v0')


def v_out(a, l, VT, R):
    a.e(f's_lshl_b32 s6, s{sWAVE}, 10')
    a.e(f's_add_u32 s6, s6, {VT}')
    a.e('v_add_u32 v0, s6, v2')
    a.lds(f'ds_read_b128 {vr(R, 4)}, v0', 'vo0')
    a.lds(f'ds_read_b128 {vr(R + 4, 4)}, v0 offset:8192', 'vo1')
    a.e(f's_lshl_b32 s6, s{sC}, 5')
    a.e(f's_add_u32 s6, s6, s{sG}')
    a.e('s_mulk_i32 s6, 192')
    a.e(f's_add_u32 s6, s6, 0x{VB[l]:x}')
    a.e(f's_cmp_lt_u32 s{sWAVE}, 4')
    a.e(f's_cselect_b32 s7, s6, 0x{OOB:x}')
    a.wait(lg='vo0')
    a.vmem(f'buffer_store_dwordx4 {vr(R, 4)}, v5, {sr(sWS, 4)}, s6 offen sc1', 'vo')
    a.wait(lg='vo1')
    a.vmem(f'buffer_store_dwordx4 {vr(R + 4, 4)}, v6, {sr(sWS, 4)}, s7 offen sc1', 'vo')


TW, Y, VF, PK, ID, XR, XM, XE = 16, 32, 48, 48, 48, 56, 16, 24
ACCX, XF = 16, 48
NR, NST = 12, 9
RING = [236 + 4 * k for k in range(5)] + [80, 84, 88] + [100, 104, 108, 112]
JIT = [92, 96]
ACCB = 16
HBUF = [96 + 4 * k for k in range(5)]
ACCA = 96
XFS = [56, 64, 72, 80, 88, 236, 244]


def dreg(ks):
    return 16 + 4 * ks if ks < 10 else 196 + 4 * (ks - 10)


def w2reg(f):
    return 116 + 4 * f


def gen(a, name):
    end = name + '_end'
    a.raw('.text')
    a.raw(f'.globl {name}')
    a.raw('.p2align 8')
    a.raw(f'.type {name},@function')
    a.label(name)
    a.e('s_cmp_ge_u32 s2, 256')
    a.e(f's_cbranch_scc1 {end}')
    a.stamp_init()
    a.stamp(0)
    a.e('s_load_dwordx16 s[8:23], s[0:1], 0')
    a.e('s_load_dwordx2 s[24:25], s[0:1], 64')
    a.e('s_load_dwordx2 s[26:27], s[0:1], 80')
    a.e('s_load_dwordx2 s[96:97], s[0:1], 72')
    a.e('v_lshrrev_b32 v1, 6, v0')
    a.e(f'v_readfirstlane_b32 s{sWAVE}, v1')
    a.e('v_and_b32 v1, 63, v0')
    if OPT.get('cpf', 1):
        a.e('s_getpc_b64 s[98:99]')
        a.label('Lpc')
        a.e('s_lshr_b32 s6, s2, 3')
        a.e('s_lshl_b32 s6, s6, 5')
        a.e('v_and_b32 v253, 31, v0')
        a.e('v_add_u32 v253, s6, v253')
        a.e('v_lshlrev_b32 v253, 7, v253')
        a.e(f'v_min_u32 v253, {end} - Lpc, v253')
        a.e('v_cmp_gt_u32 vcc, 32, v0')
        a.e('s_and_saveexec_b64 s[6:7], vcc')
        a.e('s_cbranch_execz Lpcd')
        a.e('global_load_dword v253, v253, s[98:99]')
        a.label('Lpcd')
        a.e('s_mov_b64 exec, -1')
    XM_ = OPT.get('xm', 0)
    a.e('s_and_b32 s6, s2, 7')
    a.e('s_lshr_b32 s7, s2, 3')
    a.e(f's_and_b32 s98, s6, {(1 << XM_) - 1}')
    a.e(f's_lshl_b32 s98, s98, {3 - XM_}')
    a.e(f's_and_b32 s99, s7, {(8 >> XM_) - 1}')
    a.e(f's_add_u32 s{sC}, s98, s99')
    a.e(f's_lshr_b32 s6, s6, {XM_}')
    a.e(f's_lshl_b32 s6, s6, {2 + XM_}')
    a.e(f's_lshr_b32 s7, s7, {3 - XM_}')
    a.e('s_add_u32 s101, s6, s7')
    a.e('s_lshr_b32 s6, s101, 1')
    a.e('s_sub_u32 s7, 32, s6')
    a.e('s_cmp_eq_u32 s6, 0')
    a.e('s_cselect_b32 s7, 16, s7')
    a.e('s_bitcmp1_b32 s101, 0')
    a.e(f's_cselect_b32 s{sG}, s7, s6')
    a.e('v_lshlrev_b32 v2, 4, v1')
    a.e('v_and_b32 v8, 15, v1')
    a.e('v_lshrrev_b32 v9, 4, v1')
    a.e('v_and_b32 v10, 31, v1')
    a.e('v_lshrrev_b32 v4, 5, v1')

    sX, sD, sW1, sW2, sCS = 56, 64, 68, 72, 12
    sWK, sROT = 54, 55
    SLOT0, SLOTB = 1024, 18432
    RS, MR, CS = 0, 256, 512
    W1L = SLOT0 + 6 * SLOTB
    WP1 = W1L + 16384
    W2S = WP1 + 14336
    TWL0 = W2S + 10240
    XRL0 = SLOT0 + 4 * SLOTB
    VT0 = SLOT0 + 5 * SLOTB
    vXA, vDA, vD2A, vF0, vF1, vO8, vSW = 240, 241, 242, 244, 245, 246, 247
    a.e(f'v_lshrrev_b32 v{vO8}, 3, v1')
    a.e(f'v_and_b32 v{vSW}, 7, v1')
    a.e(f'v_xor_b32 v{vSW}, v{vSW}, v{vO8}')
    a.e(f'v_lshlrev_b32 v{vSW}, 4, v{vSW}')
    a.e(f's_and_b32 s{sKT}, s{sWAVE}, 1')
    a.e(f's_lshr_b32 s{sMIR}, s{sWAVE}, 2')
    a.e(f's_bfe_u32 s{sRHO}, s{sWAVE}, 0x10001')
    a.e(f's_lshl_b32 s6, s{sKT}, 4')
    a.e(f's_lshl_b32 s7, s{sMIR}, 5')
    a.e('s_add_u32 s6, s6, s7')
    a.e(f's_lshl_b32 s7, s{sRHO}, 2')
    a.e('s_add_u32 s6, s6, s7')
    a.e(f'v_lshrrev_b32 v{vXA}, 2, v{vO8}')
    a.e(f'v_lshlrev_b32 v{vXA}, 3, v{vXA}')
    a.e(f'v_and_b32 v0, 3, v{vO8}')
    a.e(f'v_add3_u32 v{vXA}, v{vXA}, v0, s6')
    a.e(f'v_lshl_add_u32 v{vXA}, v{vXA}, 5, s{sG}')
    a.e('s_movk_i32 s62, 1280')
    a.e(f'v_mad_u32_u24 v{vXA}, v{vXA}, s62, v{vSW}')
    a.e(f's_mul_i32 s6, s{sC}, 40')
    a.e(f's_lshr_b32 s7, s{sWAVE}, 1')
    a.e('s_lshl_b32 s7, s7, 3')
    a.e('s_add_u32 s7, s7, s6')
    a.e(f'v_add_u32 v{vDA}, s7, v{vO8}')
    a.e('v_mov_b32 v0, 320')
    a.e(f'v_cmp_eq_u32 vcc, 0, v{vDA}')
    a.e(f'v_cndmask_b32 v{vDA}, v{vDA}, v0, vcc')
    a.e(f'v_mad_u32_u24 v{vDA}, v{vDA}, s62, v{vSW}')
    a.e('s_add_u32 s6, s6, 32')
    a.e(f'v_add_u32 v{vD2A}, s6, v{vO8}')
    a.e(f'v_mad_u32_u24 v{vD2A}, v{vD2A}, s62, v{vSW}')
    a.e(f's_lshl_b32 s6, s{sRHO}, 7')
    a.e(f'v_add_u32 v{vD2A}, s6, v{vD2A}')
    a.e(f's_lshl_b32 s{sWK}, s{sWAVE}, 10')
    a.e(f's_mul_i32 s63, s{sRHO}, {SLOTB}')
    a.e(f's_lshl_b32 s6, s{sKT}, 10')
    a.e('s_add_u32 s63, s63, s6')
    a.e(f's_add_u32 s98, s101, s{sC}')
    a.e('s_mul_i32 s99, s98, 52')
    a.e('s_lshr_b32 s99, s99, 8')
    a.e('s_mul_i32 s99, s99, 5')
    a.e('s_sub_u32 s98, s98, s99')
    a.e(f's_lshl_b32 s{sROT}, s98, 8')
    if not OPT.get('rot', 1):
        a.e(f's_mov_b32 s{sROT}, 0')
    a.e('s_waitcnt lgkmcnt(0)')
    a.srd(sX, P_X, S * D * 2)
    a.e(f's_cmp_eq_u32 s{sKT}, 1')
    a.e(f's_cselect_b32 s98, s{P_DI}, s{P_DR}')
    a.e(f's_cselect_b32 s99, s{P_DI + 1}, s{P_DR + 1}')
    a.srd(sD, 98, D * D * 2)

    def pair_off(p, dst):
        a.e(f's_add_u32 s{dst}, s{sROT}, {p * 256}')
        a.e(f's_cmp_ge_u32 s{dst}, 1280')
        a.e('s_cselect_b32 s18, 1280, 0')
        a.e(f's_sub_u32 s{dst}, s{dst}, s18')

    def dma_pair(p):
        sb = SLOT0 + (p % 3) * 2 * SLOTB
        pair_off(p, 99)
        L = a.newlab('Lex')
        a.e(f's_cmp_lg_u32 s{sMIR}, {p % 2}')
        a.e(f's_cbranch_scc1 {L}')
        a.e(f's_add_u32 m0, s63, {sb + 16384}')
        a.e(f'buffer_load_dwordx4 v{vD2A}, {sr(sD, 4)}, s99 offen lds')
        a.label(L)
        for h in range(2):
            a.e(f's_add_u32 m0, s{sWK}, {sb + h * (SLOTB - 128)}')
            a.vmem(f'buffer_load_dwordx4 v{vXA}, {sr(sX, 4)}, s99 offen offset:{h * 128} lds', ('c', p))
            a.e(f's_add_u32 m0, s{sWK}, {sb + h * (SLOTB - 128) + 8192}')
            a.vmem(f'buffer_load_dwordx4 v{vDA}, {sr(sD, 4)}, s99 offen offset:{h * 128} lds', ('c', p))

    a.stamp('karg')
    dma_pair(0)
    a.stamp('d0')
    a.srd(sW1, P_W1, D * F * 2)
    a.srd(sW2, P_W2, D * F * 2)
    a.srd(sWS, P_WS, WS_BYTES)
    a.srd(sOUT, P_OUT, S * D * 2)
    a.e(f's_cmp_eq_u32 s{sKT}, 1')
    a.e(f's_cselect_b32 s98, s{P_CI}, s{P_CR}')
    a.e(f's_cselect_b32 s99, s{P_CI + 1}, s{P_CR + 1}')
    a.e(f's_mov_b32 s8, s{P_CR}')
    a.e(f's_and_b32 s9, s{P_CR + 1}, 0xffff')
    a.e(f's_mov_b32 s10, 0x{S * S * 2:x}')
    a.e('s_mov_b32 s11, 0x20000')
    a.srd(sCS, 98, S * S * 2)
    a.e(f's_add_u32 s{sFL}, s{P_WS}, 0x{FLG:x}')
    a.e(f's_addc_u32 s{sFL + 1}, s{P_WS + 1}, 0')
    a.e(f's_sub_u32 s6, 64, s{sG}')
    a.e(f's_cmp_eq_u32 s{sG}, 0')
    a.e(f's_cselect_b32 s{sTAU1}, 32, s6')
    a.e(f's_mul_i32 s6, s{sC}, 7')
    a.e('s_min_u32 s100, s6, 48')
    a.e('s_lshl_b32 s6, s100, 1')
    a.e(f's_lshl_b32 s7, s{sWAVE}, 1')
    a.e(f's_add_u32 s{sU1}, s6, s7')
    a.e(f's_min_u32 s{sU1}, s{sU1}, 106')
    a.e(f's_cmp_lt_u32 s{sC}, 6')
    a.e(f's_cselect_b32 s{sU2}, 7, 6')
    a.e(f's_mul_i32 s{sGCM}, s{sG}, 81920')
    a.e(f's_lshl_b32 s6, s{sG}, 3')
    a.e(f's_add_u32 s7, s6, s{sC}')
    a.e('s_lshl_b32 s7, s7, 3')
    a.e(f's_add_u32 s7, s7, s{sWAVE}')
    a.e('s_lshl_b32 s7, s7, 7')
    a.e(f's_add_u32 s{sFOWN}, s7, 0x{FLG:x}')
    a.e(f's_add_u32 s7, s6, s{sWAVE}')
    a.e(f's_lshl_b32 s{sFSRC}, s7, 10')
    a.e(f's_sub_u32 s{sPG}, 32, s{sG}')
    a.e(f's_and_b32 s{sPG}, s{sPG}, 31')
    a.e(f's_lshl_b32 s7, s{sPG}, 3')
    a.e(f's_add_u32 s7, s7, s{sWAVE}')
    a.e(f's_lshl_b32 s{sFPAR}, s7, 10')
    a.e(f's_mul_i32 s{sW1B}, s{sU1}, 20480')
    a.e(f's_cmp_ge_u32 s{sWAVE}, s{sU2}')
    a.e(f's_cselect_b32 s{sW1B}, 0x{OOB:x}, s{sW1B}')
    a.e(f's_getreg_b32 s{sXCC}, hwreg(HW_REG_XCC_ID)')
    a.e(f's_and_b32 s{sXCC}, s{sXCC}, 15')
    a.e(f's_mul_i32 s6, s{sWAVE}, 7')
    a.e('s_min_u32 s6, s6, 48')
    a.e(f's_mul_i32 s7, s{sC}, 54')
    a.e('s_add_u32 s7, s7, s6')
    a.e(f's_mul_i32 s{sW2O}, s7, 5120')
    a.e(f's_add_u32 s{sW2O}, s{sW2O}, 0x{W2F:x}')
    a.e(f's_mul_i32 s{sHG}, s{sG}, {216 * 1024}')
    a.e('s_lshl_b32 s6, s6, 12')
    a.e(f's_add_u32 s{sHK}, s{sHG}, s6')
    a.e('v_lshlrev_b32 v3, 4, v8')
    a.e('v_lshl_add_u32 v3, v9, 10, v3')
    dma_pair(1)
    Lnn = a.newlab('Lnn')
    a.e('s_lshl_b32 s6, s2, 3')
    a.e(f's_add_u32 s6, s6, s{sWAVE}')
    a.e('s_cmp_lg_u32 s6, 7')
    a.e(f's_cbranch_scc1 {Lnn}')
    a.e(f's_load_dword s6, s[{sFL}:{sFL + 1}], 0x40000 glc')
    a.e('s_waitcnt lgkmcnt(0)')
    a.e('s_add_u32 s6, s6, 16')
    a.e('s_and_b32 s6, s6, -16')
    a.e('s_bitset1_b32 s6, 31')
    a.e('v_mov_b32 v0, s6')
    a.e('v_mov_b32 v5, 0')
    a.e('s_mov_b64 exec, 1')
    a.e(f's_mov_b32 s7, 0x{FLG + 0x40000:x}')
    a.e(f'buffer_store_dword v0, off, {sr(sWS, 4)}, s7 sc1')
    a.e('global_store_dword v5, v0, s[96:97] sc1')
    a.e('s_mov_b64 exec, -1')
    a.label(Lnn)

    def grow(vd, vloc):
        a.e(f'v_and_b32 v11, 31, v{vloc}')
        a.e(f'v_mov_b32 v12, s{sG}')
        a.e(f'v_mov_b32 v13, s{sTAU1}')
        a.e(f'v_cmp_le_u32 vcc, 32, v{vloc}')
        a.e('v_cndmask_b32 v12, v12, v13, vcc')
        a.e(f'v_lshl_add_u32 v{vd}, v11, 6, v12')

    def tw_dma(base):
        a.e(f's_lshr_b32 s6, s{sWAVE}, 1')
        a.e('s_lshl_b32 s6, s6, 4')
        a.e('v_lshrrev_b32 v0, 2, v1')
        a.e('v_add_u32 v0, s6, v0')
        grow(0, 0)
        a.e('v_and_b32 v11, 3, v1')
        a.e('v_lshlrev_b32 v11, 4, v11')
        a.e('v_lshl_add_u32 v0, v0, 12, v11')
        a.e(f's_lshl_b32 s6, s{sWAVE}, 10')
        a.e(f's_add_u32 m0, s6, {base}')
        a.vmem(f'buffer_load_dwordx4 v0, {sr(sCS, 4)}, 0 offen lds', 'twd')

    vXR0, vXR1, vT1, vT2, vCSA = 234, 235, 236, 237, 238
    for n, dst in ((0, vXR0), (8, vXR1)):
        a.e(f's_lshl_b32 s6, s{sWAVE}, 6')
        a.e(f's_add_u32 s6, s6, {n * 64}')
        a.e('v_add_u32 v0, s6, v1')
        a.e('v_mul_u32_u24 v7, 5462, v0')
        a.e('v_lshrrev_b32 v7, 16, v7')
        a.e('v_mul_u32_u24 v5, 12, v7')
        a.e('v_sub_u32 v0, v0, v5')
        grow(7, 7)
        a.e(f's_mul_i32 s6, s{sC}, 5')
        a.e('s_sub_u32 s7, 70, s6')
        a.e('v_add_u32 v5, s6, v0')
        a.e('v_add_u32 v6, s7, v0')
        a.e('v_cmp_le_u32 vcc, 5, v0')
        a.e('v_cndmask_b32 v5, v5, v6, vcc')
        a.e('v_cmp_eq_u32 vcc, 80, v5')
        a.e('v_cndmask_b32 v5, v5, 0, vcc')
        a.e('v_cmp_eq_u32 vcc, 11, v0')
        a.e('v_cndmask_b32 v5, v5, 40, vcc')
        a.e('v_mul_u32_u24 v7, 1280, v7')
        a.e(f'v_lshl_add_u32 v{dst}, v5, 4, v7')
    a.e(f'v_and_b32 v{vF0}, 7, v1')
    a.e(f'v_xor_b32 v{vF0}, v{vF0}, v9')
    a.e(f'v_lshlrev_b32 v{vF0}, 4, v{vF0}')
    a.e(f'v_lshl_add_u32 v{vF0}, v8, 7, v{vF0}')
    a.e(f'v_xor_b32 v{vF1}, 64, v{vF0}')
    PF, PF2 = 208, 224

    def side(job):
        if job == 'late':
            a.e(f's_lshr_b32 s6, s{sWAVE}, 1')
            a.e('s_lshl_b32 s7, s6, 4')
            a.e(f'v_add_u32 v5, s7, v{vO8}')
            a.e(f'v_lshl_add_u32 v5, v5, 17, v{vSW}')
            a.e('s_lshl_b32 s6, s6, 11')
            a.e(f's_lshl_b32 s7, s{sKT}, 13')
            a.e('s_add_u32 s6, s6, s7')
            a.e(f's_add_u32 m0, s6, {W1L}')
            a.vmem(f'buffer_load_dwordx4 v5, {sr(sCS, 4)}, 0 offen lds', 'w1')
            a.e(f's_add_u32 m0, s6, {W1L + 1024}')
            a.e('s_mov_b32 s7, 0x100000')
            a.vmem(f'buffer_load_dwordx4 v5, {sr(sCS, 4)}, s7 offen lds', 'w1')
            tw_dma(TWL0)
        if job == 'non':
            a.e('v_mov_b32 v252, 0')
            a.vmem('global_load_dword v252, v252, s[96:97] sc1', 'non')
            setflag(a, None, 5)
        if job == 'xr':
            L = a.newlab('Lx4')
            a.e(f's_cmp_ge_u32 s{sWAVE}, 4')
            a.e(f's_cbranch_scc1 {L}')
            a.e(f's_add_u32 m0, s{sWK}, {XRL0 + 8192}')
            a.e(f'buffer_load_dwordx4 v{vXR1}, {sr(sX, 4)}, 0 offen lds')
            a.label(L)
            a.e(f's_add_u32 m0, s{sWK}, {XRL0}')
            a.vmem(f'buffer_load_dwordx4 v{vXR0}, {sr(sX, 4)}, 0 offen lds', 'xrd')
        if job == 'nonc':
            L, Ld = a.newlab('Lno'), a.newlab('Lnd')
            a.wait(vm='non')
            a.e('s_mov_b32 s98, 0')
            a.label(L)
            a.e(f'v_readfirstlane_b32 s{sNON}, v252')
            a.e('s_nop 1')
            a.e(f's_cmp_lg_u32 s{sNON}, 0')
            a.e(f's_cbranch_scc1 {Ld}')
            a.e('v_mov_b32 v252, 0')
            a.e('global_load_dword v252, v252, s[96:97] sc1')
            a.e('s_waitcnt vmcnt(0)')
            a.e('s_add_u32 s98, s98, 1')
            a.e(f's_cmp_lt_u32 s98, {SPIN}')
            a.e(f's_cbranch_scc1 {L}')
            a.label(Ld)

    def mainloop(setaddr, read, mfma, wsh=None, hooks={}):
        a.stamp('p0iss')
        PW = OPT.get('pw', 2)
        for p in range(5):
            a.wait(vm=('c', p), lg='all')
            if p == 0:
                dma_pair(2)
                side('late')
            a.e('s_barrier')
            a.stamp(f'p0c{p}')
            setaddr(SLOT0 + (p % 3) * 2 * SLOTB, p)
            j = 4 * p
            if p == 0:
                for f in read(0) + read(1):
                    f()
            else:
                weave(a, mfma(j - 2), read(j))
                weave(a, mfma(j - 1), read(j + 1))
            if 1 <= p <= 2:
                dma_pair(p + 2)
            if p == 2:
                side('non')
            if p == 3:
                side('xr')
            if p == PW and wsh:
                wsh()
            if p in hooks:
                hooks[p]()
            a.wait(lg=('f', j))
            weave(a, mfma(j), read(j + 2))
            a.wait(lg=('f', j + 1))
            weave(a, mfma(j + 1), read(j + 3))
        for j in (18, 19):
            a.wait(lg=('f', j))
            weave(a, mfma(j), [])
        side('nonc')
        a.wait(vm='xrd')

    Lstat, Lcol, Lj0 = a.newlab('Lp0s'), a.newlab('Lp0c'), a.newlab('Lp0j')
    a.e(f's_cmp_eq_u32 s{sWAVE}, 7')
    a.e(f's_cbranch_scc1 {Lcol}')
    a.e(f's_cmp_ge_u32 s{sWAVE}, 5')
    a.e(f's_cbranch_scc1 {Lstat}')
    st0 = a.save()
    ACC, FR = 16, 32
    a.e(f's_lshl_b32 s60, s{sWAVE}, 11')
    a.e('s_add_u32 s60, s60, 8192')
    a.e(f's_mul_i32 s6, s{sC}, 5')
    a.e(f's_add_u32 s6, s6, s{sWAVE}')
    a.e('s_mul_i32 s6, s6, 20')
    a.e(f's_add_u32 s6, s6, s{sG}')
    a.e('s_lshl_b32 s6, s6, 10')
    a.e(f's_add_u32 s24, s6, 0x{DPF:x}')
    a.e(f's_lshr_b32 s6, s{sROT}, 6')
    a.e(f's_sub_u32 s25, s{sG}, s6')
    a.e('s_add_u32 s7, s25, 20')
    a.e(f's_cmp_lt_u32 s{sG}, s6')
    a.e('s_cselect_b32 s25, s7, s25')
    a.e(f's_cmp_ge_u32 s{sG}, 20')
    a.e('s_cselect_b32 s25, 63, s25')

    a.e('s_and_b32 s6, s25, 1')
    a.e('s_lshl_b32 s6, s6, 6')
    a.e(f'v_xor_b32 v243, s6, v{vF0}')
    a.e('s_bfe_u32 s6, s25, 0x10001')
    a.e(f's_mulk_i32 s6, {SLOTB}')
    a.e('s_add_u32 s6, s6, s60')
    a.e('v_add_u32 v243, s6, v243')
    a.e('s_lshr_b32 s25, s25, 2')

    def set_c(sb, p):
        a.e(f'v_add_u32 v248, {sb}, v{vF0}')
        a.e(f'v_add_u32 v249, {sb}, v{vF1}')
        a.e('v_add_u32 v250, s60, v248')
        a.e('v_add_u32 v251, s60, v249')
        L = a.newlab('Ldd')
        a.e(f's_cmp_lg_u32 s25, {p}')
        a.e(f's_cbranch_scc1 {L}')
        a.e(f'v_add_u32 v243, {sb}, v243')
        a.e('ds_read_b128 v[220:223], v243')
        a.label(L)

    def read_c(j):
        f, hk, o = FR + 20 * (j % 4), j % 2, ((j % 4) // 2) * SLOTB
        return [lambda: a.lds(f'ds_read_b128 {vr(f + 16, 4)}, v{250 + hk} offset:{o}', ('f', j))] + \
               [lambda rt=rt: a.lds(f'ds_read_b128 {vr(f + 4 * rt, 4)}, v{248 + hk} offset:{o + rt * 2048}', ('f', j)) for rt in range(4)]

    def mfma_c(j):
        f = FR + 20 * (j % 4)
        return [f'v_mfma_f32_16x16x32_bf16 {vr(ACC + 4 * rt, 4)}, {vr(f + 4 * rt, 4)}, {vr(f + 16, 4)}, {"0" if j == 0 else vr(ACC + 4 * rt, 4)}' for rt in range(4)]

    mainloop(set_c, read_c, mfma_c)
    WF, RSr, MRr = 112, [176, 180, 184, 188], [192, 196, 200, 204]
    wf0 = lambda mat, tt, ks: WF + ((mat * 4 + tt) * 2 + ks) * 4
    a.e(f'v_add_u32 v248, {W1L}, v{vF0}')
    a.e(f'v_add_u32 v249, {W1L}, v{vF1}')
    for tt in range(4):
        for ks in range(2):
            for mat in range(2):
                a.lds(f'ds_read_b128 {vr(wf0(mat, tt, ks), 4)}, v{248 + ks} offset:{mat * 8192 + tt * 2048}', 'wf')
    a.e('v_lshlrev_b32 v12, 4, v9')
    a.e(f's_lshl_b32 s6, s{sWAVE}, 6')
    a.e('v_lshl_add_u32 v13, v8, 2, s6')
    a.stamp('p0end')
    a.e('s_barrier')
    a.lds(f'ds_read_b32 v14, v13 offset:{CS}', 'st')
    for rt in range(4):
        a.lds(f'ds_read_b128 {vr(RSr[rt], 4)}, v12 offset:{RS + rt * 64}', 'st')
        a.lds(f'ds_read_b128 {vr(MRr[rt], 4)}, v12 offset:{MR + rt * 64}', 'st')
    a.e(f's_cmp_lt_u32 s{sG}, 20')
    a.e(f's_cselect_b32 s24, s24, 0x{OOB:x}')
    a.e(f'buffer_store_dwordx4 v[220:223], v2, {sr(sWS, 4)}, s24 offen sc1')
    stage1(a, ACC, RSr, MRr, 32, wf0, VT0)
    stC = a.save()
    a.e(f's_branch {Lj0}')

    a.label(Lstat)
    a.restore(st0)
    AS, AM, ONE, FS = 24, 32, 40, 44
    for r in range(4):
        a.e(f'v_mov_b32 v{ONE + r}, 0x3f803f80')
    a.e(f's_sub_u32 s60, s{sWAVE}, 5')
    a.e('s_lshl_b32 s60, s60, 12')
    a.e(f'v_add_u32 v250, s60, v{vF0}')
    a.e(f'v_add_u32 v251, s60, v{vF1}')

    WA = 128
    a.e(f's_and_b32 s6, s{sG}, 7')
    a.e('s_mul_i32 s98, s6, 5')
    a.e('s_mul_i32 s99, s6, 10')
    a.e('s_add_u32 s99, s99, 4')
    a.e(f's_bfe_u32 s7, s{sG}, 0x10003')
    a.e(f's_cmp_ge_u32 s{sG}, 16')
    a.e('s_cselect_b64 s[76:77], -1, 0')
    for n in range(7):
        a.e(f'v_add_u32 v0, {64 * n}, v1')
        a.e('v_mul_u32_u24 v5, 4682, v0')
        a.e('v_lshrrev_b32 v5, 16, v5')
        a.e('v_mul_u32_u24 v6, 14, v5')
        a.e('v_sub_u32 v0, v0, v6')
        a.e('v_lshrrev_b32 v6, 3, v5')
        a.e('v_add_u32 v7, s98, v6')
        a.e('v_lshrrev_b32 v11, 1, v6')
        a.e('v_mad_u32_u24 v11, v11, 5, s99')
        a.e('v_mov_b32 v12, s7')
        a.e('v_and_b32 v6, 1, v6')
        a.e('v_cndmask_b32 v7, v7, v11, s[76:77]')
        a.e('v_cndmask_b32 v6, v12, v6, s[76:77]')
        a.e('v_and_b32 v5, 7, v5')
        a.e('v_lshl_add_u32 v5, v7, 3, v5')
        a.e('v_sub_u32 v7, 640, v5')
        a.e('v_cmp_eq_u32 vcc, 1, v6')
        a.e('v_cndmask_b32 v5, v5, v7, vcc')
        if n == 0:
            a.e('v_mov_b32 v6, 320')
            a.e('v_cmp_eq_u32 vcc, 0, v5')
            a.e('v_cndmask_b32 v5, v5, v6, vcc')
            a.e('v_cmp_eq_u32 vcc, 640, v5')
            a.e('v_cndmask_b32 v5, v5, 0, vcc')
        a.e('v_and_b32 v5, 0x3ff, v5')
        a.e('v_mul_u32_u24 v5, 3456, v5')
        a.e(f'v_lshl_add_u32 v{WA + n}, v0, 4, v5')

    def wsh_s():
        a.e(f's_sub_u32 s6, s{sWAVE}, 5')
        a.e('s_mul_i32 s7, s6, 224')
        a.e('s_lshl_b32 s98, s100, 6')
        a.e('s_add_u32 s7, s7, s98')
        a.e(f's_cmp_lt_u32 s{sG}, 20')
        a.e(f's_cselect_b32 s7, s7, 0x{OOB:x}')
        a.e('s_mul_i32 s6, s6, 7168')
        for n in range(7):
            a.e(f's_add_u32 m0, s6, {WP1 + 1024 * n}')
            a.vmem(f'buffer_load_dwordx4 v{WA + n}, {sr(sW1, 4)}, s7 offen lds', 'wsh')

    def set_s(sb, p):
        a.e(f'v_add_u32 v248, {sb}, v250')
        a.e(f'v_add_u32 v249, {sb}, v251')

    def read_s(j):
        return [lambda rt=rt: a.lds(f'ds_read_b128 {vr(FS + 8 * (j % 4) + 4 * rt, 4)}, v{248 + j % 2} offset:{((j % 4) // 2) * SLOTB + rt * 2048}', ('f', j)) for rt in range(2)]

    def mfma_s(j):
        out = []
        for rt in range(2):
            f = vr(FS + 8 * (j % 4) + 4 * rt, 4)
            out.append(f'v_mfma_f32_16x16x32_bf16 {vr(AS + 4 * rt, 4)}, {f}, {f}, {"0" if j == 0 else vr(AS + 4 * rt, 4)}')
            out.append(f'v_mfma_f32_16x16x32_bf16 {vr(AM + 4 * rt, 4)}, {f}, {vr(ONE, 4)}, {"0" if j == 0 else vr(AM + 4 * rt, 4)}')
        return out

    mainloop(set_s, read_s, mfma_s, wsh_s)
    a.e('s_lshr_b32 s6, s60, 5')
    stats_finalize(a, AS, AM, 2, 12, 64, MR - RS, 'rs_mr')
    a.wait(lg='all')
    a.stamp('p0end')
    a.e('s_barrier')
    a.e(f's_cmp_ge_u32 s{sG}, 20')
    a.e(f's_cbranch_scc1 {Lj0}')
    a.e('v_bfe_u32 v5, v1, 2, 2')
    a.e('v_lshl_add_u32 v5, v9, 3, v5')
    a.e('v_mul_u32_u24 v5, 224, v5')
    a.e('v_and_b32 v0, 3, v1')
    a.e('v_lshl_add_u32 v5, v0, 3, v5')
    a.e(f's_sub_u32 s60, s{sWAVE}, 5')
    a.e('s_mul_i32 s60, s60, 7')
    a.e('s_lshl_b32 s6, s60, 10')
    a.e(f's_add_u32 s6, s6, {WP1}')
    a.e('v_add_u32 v5, s6, v5')
    a.wait(vm='wsh')
    for u in range(7):
        for rd in range(2):
            a.lds(f'ds_read_b64_tr_b16 {vr(16 + 4 * u + 2 * rd, 2)}, v5 offset:{rd * 4 * 224 + u * 32}', ('pf', u))
    a.e('s_lshl_b32 s6, s100, 1')
    a.e('s_add_u32 s60, s60, s6')
    a.e('s_mul_i32 s6, s60, 20')
    a.e(f's_add_u32 s6, s6, s{sG}')
    a.e('s_lshl_b32 s6, s6, 10')
    a.e(f's_min_u32 s98, s{sWAVE}, s{sC}')
    a.e('s_mov_b32 s99, 0x3f803f80')
    for u in range(7):
        a.wait(lg=('pf', u))
        a.e(f's_add_u32 s7, s6, {W1F + u * 20480}')
        if u >= 5:
            a.e('s_cmp_ge_u32 s98, 6')
            a.e(f's_cselect_b32 s7, 0x{OOB:x}, s7')
        a.e(f'buffer_store_dwordx4 {vr(16 + 4 * u, 4)}, v2, {sr(sWS, 4)}, s7 offen sc1')
        a.e(f'v_mov_b32 v{48 + u}, 0')
    a.e('v_mov_b32 v55, 0')
    for d in range(4):
        for u in range(7):
            a.e(f'v_dot2_f32_bf16 v{48 + u}, v{16 + 4 * u + d}, s99, v{48 + u}')
    a.e('s_nop 3')
    for u in range(0, 8, 2):
        a.e(f'v_permlane16_swap_b32 v{48 + u}, v{49 + u}')
    for u in range(0, 8, 2):
        a.e(f'v_add_f32 v{48 + u}, v{48 + u}, v{49 + u}')
    for u in (0, 4):
        a.e(f'v_permlane32_swap_b32 v{48 + u}, v{50 + u}')
    for u in (0, 4):
        a.e(f'v_add_f32 v{48 + u}, v{48 + u}, v{50 + u}')
    a.e(f's_mul_i32 s6, s{sG}, 6912')
    a.e('s_lshl_b32 s7, s60, 6')
    a.e('s_add_u32 s6, s6, s7')
    a.e(f's_add_u32 s6, s6, 0x{CSP:x}')
    a.e('v_lshlrev_b32 v5, 2, v1')
    a.e(f'buffer_store_dword v48, v5, {sr(sWS, 4)}, s6 offen sc1')
    a.e('s_cmp_ge_u32 s98, 6')
    a.e('s_cselect_b32 exec_lo, 0xffff, -1')
    a.e('s_cselect_b32 exec_hi, 0, 0xffff')
    a.e(f'buffer_store_dword v52, v5, {sr(sWS, 4)}, s6 offen offset:256 sc1')
    a.e('s_mov_b64 exec, -1')
    a.e(f's_branch {Lj0}')

    a.label(Lcol)
    a.restore(st0)
    AC, ONE, FC = 24, 44, 48
    for r in range(4):
        a.e(f'v_mov_b32 v{ONE + r}, 0x3f803f80')

    a.e('s_movk_i32 s7, 1120')
    for n in range(5):
        a.e(f'v_add_u32 v0, {64 * n}, v1')
        a.e('v_mul_u32_u24 v5, 6554, v0')
        a.e('v_lshrrev_b32 v5, 16, v5')
        a.e('v_lshlrev_b32 v0, 4, v0')
        a.e(f'v_mad_u32_u24 v{WA + n}, v5, s7, v0')

    def wsh_k():
        a.e(f's_mul_i32 s6, s{sG}, 40960')
        a.e(f's_mul_i32 s7, s{sC}, 160')
        a.e('s_add_u32 s6, s6, s7')
        a.e(f's_add_u32 s7, s6, {32 * 40960}')
        for t in range(2):
            for n in range(5):
                a.e(f's_mov_b32 m0, {W2S + t * 5120 + n * 1024}')
                a.vmem(f'buffer_load_dwordx4 v{WA + n}, {sr(sW2, 4)}, s{6 + t} offen lds', 'wsh')

    def set_k(sb, p):
        a.e(f'v_add_u32 v248, {sb + 8192}, v{vF0}')
        a.e(f'v_add_u32 v249, {sb + 8192}, v{vF1}')

    def read_k(j):
        return [lambda ct=ct: a.lds(f'ds_read_b128 {vr(FC + 20 * (j % 4) + 4 * ct, 4)}, v{248 + j % 2} offset:{((j % 4) // 2) * SLOTB + ct * 2048}', ('f', j)) for ct in range(5)]

    def mfma_k(j):
        return [f'v_mfma_f32_16x16x32_bf16 {vr(AC + 4 * ct, 4)}, {vr(ONE, 4)}, {vr(FC + 20 * (j % 4) + 4 * ct, 4)}, {"0" if j == 0 else vr(AC + 4 * ct, 4)}' for ct in range(5)]

    def w2_out():
        a.e('v_bfe_u32 v5, v1, 2, 2')
        a.e('v_lshl_add_u32 v5, v9, 3, v5')
        a.e('v_mul_u32_u24 v5, 160, v5')
        a.e('v_and_b32 v0, 3, v1')
        a.e('v_lshl_add_u32 v5, v0, 3, v5')
        a.e(f'v_add_u32 v5, {W2S}, v5')
        a.wait(vm='wsh')
        for u in range(10):
            for rd in range(2):
                a.lds(f'ds_read_b64_tr_b16 {vr(136 + 4 * u + 2 * rd, 2)}, v5 offset:{(u // 5) * 5120 + (u % 5) * 32 + rd * 640}', ('pf', u))
        a.e(f's_mul_i32 s6, s{sC}, 54')
        a.e(f's_add_u32 s6, s6, s{sG}')
        a.e('s_mul_i32 s6, s6, 5120')
        a.e(f's_add_u32 s6, s6, 0x{W2F:x}')
        for u in range(10):
            if u == 5:
                a.e(f's_cmp_ge_u32 s{sG}, 22')
                a.e(f's_cselect_b32 s6, 0x{OOB:x}, s6')
            a.wait(lg=('pf', u))
            a.e(f's_add_u32 s7, s6, {(u // 5) * 32 * 5120 + (u % 5) * 1024}')
            a.vmem(f'buffer_store_dwordx4 {vr(136 + 4 * u, 4)}, v2, {sr(sWS, 4)}, s7 offen sc1', 'w2o')

    EW = OPT.get('ew', 1)
    if EW:
        wsh_k()
        def w2_flag():
            side('nonc')
            a.wait(vm='w2o')
            setflag(a, PH_V[0], 5)
        if OPT.get('wf4', 1):
            mainloop(set_k, read_k, mfma_k, None, {2: w2_out, 4: w2_flag})
        else:
            mainloop(set_k, read_k, mfma_k, None, {2: w2_out})
            setflag(a, PH_V[0], 5)
    else:
        mainloop(set_k, read_k, mfma_k, wsh_k)
    a.e('v_lshlrev_b32 v12, 2, v8')
    for ct in range(5):
        a.lds(f'ds_write_b32 v12, v{AC + 4 * ct} offset:{CS + ct * 64}')
    a.wait(lg='all')
    a.stamp('p0end')
    a.e('s_barrier')
    if not EW:
        w2_out()
    a.e(f's_cmp_ge_u32 s{sG}, 8')
    a.e(f's_cbranch_scc1 {Lj0}')
    a.e(f's_lshl_b32 s6, s{sG}, 11')
    a.e(f's_add_u32 s7, s6, {W1L}')
    a.e(f'v_add_u32 v248, s7, v{vF0}')
    a.e(f'v_add_u32 v249, s7, v{vF1}')
    a.lds('ds_read_b128 v[16:19], v248', 'ws')
    a.lds('ds_read_b128 v[20:23], v249', 'ws')
    a.e(f's_lshl_b32 s7, s{sC}, 14')
    a.e('s_add_u32 s6, s6, s7')
    a.e(f's_add_u32 s6, s6, 0x{W1S:x}')
    a.e('s_mov_b32 s98, 0x05040100')
    a.e('s_mov_b32 s99, 0x07060302')
    a.wait(lg='ws')
    for half in range(2):
        for d in range(4):
            a.e(f'v_perm_b32 v{24 + 4 * half + d}, v{16 + 2 * d + 1}, v{16 + 2 * d}, s{98 + half}')
        a.e(f'buffer_store_dwordx4 {vr(24 + 4 * half, 4)}, v2, {sr(sWS, 4)}, s6 offen offset:{half * 1024} sc1')
    a.label(Lj0)
    a.e('s_nop 1')
    a.restore(stC)
    v_out_addr(a)
    if EW:
        a.e(f's_lshl_b32 s67, s{sC}, 10')
        a.e('s_add_u32 s67, s67, 896')
        pW = (253, 67, PH_V[0], 32, 13)
        poll_issue(a, *pW)
    a.wait(lg='all')
    a.e('s_barrier')
    a.stamp('p0vt')
    v_out(a, 0, VT0, 64)


    LSC = ' sc1'

    def xstore(text, tag, local):
        if not local:
            a.vmem(text + ' sc1', tag)
            return
        L, Lj = a.newlab('Lst'), a.newlab('Lsj')
        a.e('s_cmp_eq_u32 s26, 0')
        a.e(f's_cbranch_scc1 {L}')
        a.e(text + ' sc1')
        a.e(f's_branch {Lj}')
        a.label(L)
        a.vmem(text, tag)
        a.label(Lj)
        a.e('s_nop 1')

    def warm(vd, sbase, add, n, step=8192, lanes=None):
        a.e('v_lshlrev_b32 v0, 7, v1')
        for k in range(n):
            a.e(f's_add_u32 s64, s{sbase}, 0x{add + k * step:x}')
            a.vmem(f'buffer_load_dword v{vd}, v0, {sr(sWS, 4)}, s64 offen sc1', 'warm')

    LP = OPT.get('lp', 0)
    if LP:
        X1B[1] = X1B[0]
        HB[1] = HB[0]

    def w1load(n):
        a.e(f's_add_u32 s64, s{sW1B}, {n * 1024}')
        a.vmem(f'buffer_load_dwordx4 {vr(RING[n % NR], 4)}, v2, {sr(sWS, 4)}, s64 offen sc1', ('w1', n))

    def stash(n):
        a.e(f's_add_u32 m0, s69, {(n % NST) * 1024}')
        a.e(f's_add_u32 s64, s{sW1B}, {20480 + n * 1024}')
        a.vmem(f'buffer_load_dwordx4 v2, {sr(sWS, 4)}, s64 offen sc1 lds', ('ws', n))

    def w2load(f):
        a.e(f's_add_u32 s64, s{sW2O}, {(f // 4) * 4096}')
        if f >= 30:
            a.e(f's_cmp_ge_u32 s{sWAVE}, 6')
            a.e(f's_cselect_b32 s64, 0x{OOB:x}, s64')
        a.vmem(f'buffer_load_dwordx4 {vr(w2reg(f), 4)}, v2, {sr(sWS, 4)}, s64 offen offset:{(f % 4) * 1024} sc1', ('w2', f))

    def dest_row(vd):
        a.e(f's_lshl_b32 s6, s{sRHO}, 5')
        a.e(f'v_add_u32 v{vd}, s6, v10')
        a.e(f'v_sub_u32 v11, 63, v{vd}')
        a.e('v_sub_u32 v12, 32, v10')
        a.e('v_and_b32 v12, 31, v12')
        a.e('v_sub_u32 v13, 63, v10')
        a.e(f's_cmp_eq_u32 s{sRHO}, 0')
        a.e('s_cselect_b64 vcc, -1, 0')
        a.e('v_cndmask_b32 v12, v13, v12, vcc')
        a.e(f's_cmp_eq_u32 s{sG}, 0')
        a.e('s_cselect_b64 vcc, -1, 0')
        a.e('v_cndmask_b32 v11, v11, v12, vcc')
        a.e(f's_cmp_eq_u32 s{sMIR}, 1')
        a.e('s_cselect_b64 vcc, -1, 0')
        a.e(f'v_cndmask_b32 v{vd}, v{vd}, v11, vcc')

    def stage_all():
        a.e('v_mul_u32_u24 v0, 40960, v4')
        a.e('v_lshl_add_u32 v0, v10, 4, v0')
        a.e(f's_mul_i32 s6, s{sC}, 2560')
        a.e(f's_add_u32 s62, s{sGCM}, 0x{X2B:x}')
        for p in range(12):
            if p < 5:
                a.e(f's_add_u32 s64, s6, {p * 512}')
            elif p < 11:
                a.e(f's_sub_u32 s64, {(70 + p) * 512}, s6')
                if p == 10:
                    a.e(f's_cmp_eq_u32 s{sC}, 0')
                    a.e('s_cselect_b32 s64, 0, s64')
            else:
                a.e(f's_movk_i32 s64, {40 * 512}')
            a.e('s_add_u32 s64, s64, s62')
            a.e(f's_mov_b32 m0, {XRL1 + p * 1024}')
            a.vmem(f'buffer_load_dwordx4 v0, {sr(sWS, 4)}, s64 offen sc1 lds', 'xrd')
        a.e('v_lshrrev_b32 v0, 2, v1')
        a.e('v_lshlrev_b32 v0, 18, v0')
        a.e('v_and_b32 v11, 3, v1')
        a.e('v_lshl_add_u32 v0, v11, 4, v0')
        for w in range(8):
            rb = w >> 1
            a.e(f's_lshl_b32 s64, s{sG if rb < 2 else sTAU1}, 12')
            a.e(f's_add_u32 s64, s64, {(rb % 2) * 16 * 64 * 4096}')
            a.e(f's_mov_b32 m0, {TWL1 + w * 1024}')
            a.vmem(f'buffer_load_dwordx4 v0, {sr(sCS if w % 2 else 8, 4)}, s64 offen lds', 'twd')

    def a2_pre(l, hook=lambda: None, mid=lambda: None):
        xb, A, shB, twb = ((XRL0, 192, 4, TWL0), (XRL1, 16, 10, TWL1))[l]
        dest_row(5)
        a.e(f'v_mul_u32_u24 v7, {A}, v5')
        a.e(f'v_add_u32 v7, {xb}, v7')
        a.e(f's_lshl_b32 s6, s{sKT}, 2')
        a.e(f's_cmp_eq_u32 s{sMIR}, 1')
        a.e('s_cselect_b64 s[76:77], -1, 0')
        a.e(f's_cmp_eq_u32 s{sC}, 0')
        a.e('s_cselect_b32 s7, 11, 0')
        for h in range(2):
            a.e(f'v_add3_u32 v11, v4, s6, {2 * h}')
            a.e('v_min_u32 v11, 4, v11')
            a.e('v_sub_u32 v12, 9, v11')
            a.e('v_cndmask_b32 v12, v11, v12, s[76:77]')
            a.e(f'v_lshl_add_u32 v12, v12, {shB}, v7')
            a.lds(f'ds_read_b128 {vr(XM + 4 * h, 4)}, v12', 'xr')
            a.e('v_mov_b32 v13, s7')
            a.e('v_cmp_eq_u32 vcc, 0, v11')
            a.e('v_cndmask_b32 v13, v11, v13, vcc')
            a.e('v_sub_u32 v12, 10, v11')
            a.e('v_cndmask_b32 v12, v13, v12, s[76:77]')
            a.e(f'v_lshl_add_u32 v12, v12, {shB}, v7')
            a.lds(f'ds_read_u16 v{XE + h}, v12', 'xr')
        a.e('v_bfe_u32 v11, v1, 2, 1')
        a.e('v_and_b32 v12, 1, v1')
        a.e('v_lshlrev_b32 v12, 4, v12')
        a.e('v_mov_b32 v13, 0x3f80')
        a.e('v_lshlrev_b32 v12, v12, v13')
        a.e('v_cmp_eq_u32 vcc, v11, v4')
        a.e('v_cndmask_b32 v12, 0, v12, vcc')
        a.e('v_bfe_u32 v13, v1, 1, 1')
        a.e('v_bfe_u32 v11, v1, 3, 2')
        a.e('v_lshl_add_u32 v13, v11, 1, v13')
        for r in range(8):
            a.e(f'v_cmp_eq_u32 vcc, {r}, v13')
            a.e(f'v_cndmask_b32 v{ID + r}, 0, v12, vcc')
        mid()
        hook()
        a.wait(lg='xr')
        Lr, Lj = a.newlab('Lxr'), a.newlab('Lxj')
        a.e('v_mov_b32 v11, 0xffff')
        a.e(f's_cmp_eq_u32 s{sMIR}, 1')
        a.e(f's_cbranch_scc1 {Lr}')
        for k in range(2):
            m, o = XM + 4 * k, XR + 4 * k
            a.e(f'v_bfi_b32 v{o}, v11, v{XE + k}, v{m}')
            for d in range(1, 4):
                a.e(f'v_mov_b32 v{o + d}, v{m + d}')
        a.e(f's_branch {Lj}')
        a.label(Lr)
        for k in range(2):
            m, o = XM + 4 * k, XR + 4 * k
            a.e(f'v_bfi_b32 v{o}, v11, v{XE + k}, v{m + 3}')
            a.e(f'v_bfi_b32 v{o + 1}, v11, v{m + 3}, v{m + 2}')
            a.e(f'v_bfi_b32 v{o + 2}, v11, v{m + 2}, v{m + 1}')
            a.e(f'v_bfi_b32 v{o + 3}, v11, v{m + 1}, v{m}')
        a.label(Lj)
        a.e('v_lshrrev_b32 v11, 4, v10')
        a.e('v_lshlrev_b32 v11, 11, v11')
        a.e('v_lshl_add_u32 v11, v8, 6, v11')
        a.e('v_lshl_add_u32 v11, v4, 4, v11')
        a.e(f's_lshl_b32 s6, s{sRHO}, 12')
        a.e(f's_add_u32 s6, s6, {twb}')
        a.e('v_add_u32 v11, s6, v11')
        for ks in range(4):
            a.lds(f'ds_read_b128 {vr(TW + 4 * ks, 4)}, v11 offset:{(ks // 2) * 1024 + (ks % 2) * 32}', 'tw')
        a.e(f'v_mfma_f32_32x32x16_bf16 {vr(Y, 16)}, {vr(ID, 4)}, {vr(XR, 4)}, 0')
        a.e(f'v_mfma_f32_32x32x16_bf16 {vr(Y, 16)}, {vr(ID + 4, 4)}, {vr(XR + 4, 4)}, {vr(Y, 16)}')
        hook()
        a.e(f's_lshl_b32 s6, s{sC}, 2')
        a.e(f's_lshl_b32 s7, s{sMIR}, 5')
        a.e('s_add_u32 s6, s6, s7')
        a.e(f's_lshl_b32 s7, s{sC}, 1')
        a.e(f's_add_u32 s7, s7, s{sMIR}')
        a.e('s_add_u32 s7, s7, 64')
        a.e(f's_cmp_eq_u32 s{sKT}, 0')
        a.e('s_cselect_b32 s6, s6, s7')
        a.e('s_lshl_b32 s6, s6, 10')
        a.e('v_lshlrev_b32 v5, 4, v5')
        a.e('v_lshl_add_u32 v5, v4, 10, v5')
        a.e('v_add_u32 v5, s6, v5')
        a.e(f'v_add_u32 v6, {R1}, v5')
        a.e('s_cmp_eq_u32 s6, 32768')
        a.e('s_cselect_b32 s6, 0xffff, 0')
        a.e('v_mov_b32 v12, s6')
        a.e('v_cmp_eq_u32 vcc, 0, v4')
        a.e('v_cndmask_b32 v12, 0, v12, vcc')
        a.e('v_bfe_u32 v13, v1, 2, 2')
        a.e('v_lshl_add_u32 v13, v4, 3, v13')
        a.e('v_mul_u32_u24 v13, 192, v13')
        a.e('v_bfe_u32 v11, v1, 4, 1')
        a.e('v_lshlrev_b32 v11, 1, v11')
        a.e('v_and_b32 v0, 1, v1')
        a.e(f's_lshl_b32 s7, s{sKT}, 2')
        a.e('v_add3_u32 v11, v11, v0, s7')
        a.e('v_min_u32 v11, 4, v11')
        a.e('v_lshl_add_u32 v13, v11, 4, v13')
        a.e('v_bfe_u32 v11, v1, 1, 1')
        a.e('v_lshl_add_u32 v13, v11, 3, v13')
        a.e(f's_mul_i32 s6, s{sRHO}, 6144')
        a.e('s_add_u32 s6, s6, s58')
        a.e('v_add_u32 v13, s6, v13')
        a.e(f'v_mov_b32 v11, v{XR}')
        hook()
        a.wait(lg='tw')
        for r in range(8, 16):
            a.e(f'v_xor_b32 v{TW + r}, 0x80008000, v{TW + r}')

    def reduce_addr(l, second):
        a.e(f's_add_u32 s6, s{sWAVE}, {8 if second else 0}')
        a.e('s_cmp_ge_u32 s6, 5')
        a.e('s_cselect_b32 s7, 5, 0')
        a.e(f's_cselect_b32 s62, 0, {R1}')
        if l == 0:
            a.e('s_cselect_b32 s65, 40960, 0')
        else:
            a.e(f's_cselect_b32 s65, s{sTAU1}, s{sG}')
        a.e('s_sub_u32 s6, s6, s7')
        a.e('s_lshl_b32 s7, s6, 10')
        a.e('s_add_u32 s62, s62, s7')
        a.e('v_lshrrev_b32 v11, 4, v10')
        a.e('v_mul_u32_u24 v11, 5120, v11')
        a.e('v_lshl_add_u32 v11, v4, 9, v11')
        a.e('v_lshl_add_u32 v11, v8, 4, v11')
        a.e('v_add_u32 v11, s62, v11')
        a.e(f'v_add_u32 v13, {5 * PRV}, v11')
        a.e('s_lshl_b32 s6, s6, 1')
        a.e(f's_mul_i32 s7, s{sC}, 10')
        a.e('s_add_u32 s6, s6, s7')
        a.e('v_add_u32 v7, s6, v4')
        if l == 0:
            a.e('v_lshlrev_b32 v7, 9, v7')
            a.e('v_lshl_add_u32 v7, v10, 4, v7')
            a.e(f's_add_u32 s65, s65, s{sGCM}')
            a.e(f's_add_u32 s65, s65, 0x{X2B:x}')
        else:
            a.e('v_lshlrev_b32 v7, 4, v7')
            a.e(f's_mov_b32 s7, {64 * 1280}')
            a.e('v_mad_u32_u24 v7, v10, s7, v7')
            a.e('s_mulk_i32 s65, 1280')

    def reduce_item(l):
        SUM, RB = 56, 64
        for h in range(2):
            a.lds(f'ds_read_b128 {vr(SUM + 4 * h, 4)}, v11 offset:{h * 256}', ('p', 0))
        for p in range(1, 7):
            for h in range(2):
                b, o = (11, p * PRV) if p < 5 else (13, (p - 5) * PRV)
                a.lds(f'ds_read_b128 {vr(RB + 8 * (p - 1) + 4 * h, 4)}, v{b} offset:{o + h * 256}', ('p', p))
        for p in range(1, 8):
            a.wait(lg=('p', p))
            for r in range(0, 8, 2):
                a.e(f'v_pk_add_f32 {vr(SUM + r, 2)}, {vr(SUM + r, 2)}, {vr(RB + 8 * ((p - 1) % 6) + r, 2)}')
            if p == 1:
                for h in range(2):
                    a.lds(f'ds_read_b128 {vr(RB + 4 * h, 4)}, v13 offset:{2 * PRV + h * 256}', ('p', 7))
        for r in range(4):
            a.e(f'v_cvt_pk_bf16_f32 v{SUM + r}, v{SUM + 2 * r}, v{SUM + 2 * r + 1}')
        if l == 0:
            a.vmem(f'buffer_store_dwordx4 {vr(SUM, 4)}, v7, {sr(sWS, 4)}, s65 offen sc1', 'xst')
        else:
            a.vmem(f'buffer_store_dwordx4 {vr(SUM, 4)}, v7, {sr(sOUT, 4)}, s65 offen', 'xst')

    def lin(n, sl, lds_add, ssrc, src_add, tag):
        for k in range(n):
            if k % 4 == 0:
                a.e(f's_add_u32 m0, s{sl}, {lds_add + k * 1024}')
                a.e(f's_add_u32 s64, s{ssrc}, 0x{src_add + k * 1024:x}')
            a.vmem(f'buffer_load_dwordx4 v2, {sr(sWS, 4)}, s64 offen offset:{(k % 4) * 1024} sc1 lds', tag)

    def cnt_add(addr, vt):
        a.e(f'v_mov_b32 v{vt}, {addr}')
        a.e('v_mov_b32 v0, 1')
        a.e('s_mov_b64 exec, 1')
        a.lds(f'ds_add_u32 v{vt}, v0', 'cnt')
        a.e('s_mov_b64 exec, -1')

    def cnt_peek(addr, vt):
        a.e(f'v_mov_b32 v{vt}, {addr}')
        a.lds(f'ds_read_b32 v{vt}, v{vt}', 'peek')

    def cnt_wait(addr, vt, peeked=False):
        L, Ld = a.newlab('Lcw'), a.newlab('Lcd')
        if peeked:
            a.wait(lg='peek')
            a.e(f'v_cmp_gt_u32 vcc, 8, v{vt}')
            a.e(f's_cbranch_vccz {Ld}')
            st = a.save()
        a.e('s_mov_b32 s61, 0')
        a.label(L)
        a.e(f'v_mov_b32 v{vt}, {addr}')
        a.e(f'ds_read_b32 v{vt}, v{vt}')
        a.e('s_waitcnt lgkmcnt(0)')
        a.lg.clear()
        a.e(f'v_cmp_gt_u32 vcc, 8, v{vt}')
        a.e(f's_cbranch_vccz {Ld}')
        a.e('s_sleep 1')
        a.e('s_add_u32 s61, s61, 1')
        a.e(f's_cmp_lt_u32 s61, {SPIN}')
        a.e(f's_cbranch_scc1 {L}')
        a.label(Ld)
        if peeked:
            a.restore(st)

    GO, DONE = STATS + 528, STATS + 544

    def sig_set(base, vt):
        a.e(f'v_mov_b32 v{vt}, s56')
        a.lds(f'ds_write_b32 v{vt}, v{vt} offset:{base - 4}', 'sig')

    def sig_wait(base, vt, slp):
        L, Ld = a.newlab('Lgw'), a.newlab('Lgd')
        a.e('s_mov_b32 s61, 0')
        a.label(L)
        a.e(f'v_mov_b32 v{vt}, s56')
        a.e(f'ds_read_b32 v{vt}, v{vt} offset:{base - 4}')
        a.e('s_waitcnt lgkmcnt(0)')
        a.lg.clear()
        a.e(f'v_cmp_eq_u32 vcc, 0, v{vt}')
        a.e(f's_cbranch_vccz {Ld}')
        a.e(f's_sleep {slp}')
        a.e('s_add_u32 s61, s61, 1')
        a.e(f's_cmp_lt_u32 s61, {SPIN}')
        a.e(f's_cbranch_scc1 {L}')
        a.label(Ld)

    if OPT.get('abl_h'):
        a.e(f's_mov_b32 s{sHK}, 0x70000000')
    if OPT.get('abl_w1'):
        a.e(f's_mov_b32 s{sW1B}, 0x70000000')
    if OPT.get('abl_w2'):
        a.e(f's_mov_b32 s{sW2O}, 0x70000000')
    if OPT.get('abl_hs'):
        a.e(f's_mov_b32 s{sHG}, 0x70000000')
    bg = BG()
    a.e(f's_mul_i32 s68, s{sWAVE}, 5120')
    a.e(f's_mul_i32 s69, s{sWAVE}, {PRV}')
    a.e(f's_cmp_lt_u32 s{sC}, 4')
    a.e('s_cselect_b32 s58, 16384, 0')
    a.e(f's_add_u32 s58, s58, {R1 + 32768}')
    def pv0():
        NBW = OPT.get('bgw', 10)
        if EW:
            Ln, Lj = a.newlab('Lwn'), a.newlab('Lwj')
            a.wait(vm='poll')
            a.e(f's_add_u32 s59, s{sNON}, {PH_V[0]}')
            a.e('v_subrev_u32 v253, s59, v253')
            a.e('v_cmp_le_u32 vcc, 16, v253')
            a.e('s_mov_b32 s57, 0')
            a.e(f's_cbranch_vccnz {Ln}')
            a.e('s_mov_b32 s57, 1')
            st = a.save()
            for f in range(NBW):
                w2load(f)
            a.wait(vm='vo')
            a.e(f's_branch {Lj}')
            a.label(Ln)
            a.restore(st)
            a.wait(vm='vo')
            a.label(Lj)
        else:
            a.wait(vm='vo')
        a.e('s_barrier')
        a.stamp('PV0')
        setflag_w0(a, PH_V[0], 7)
        if EW:
            Lj = a.newlab('Lwj')
            a.e('s_cmp_eq_u32 s57, 1')
            a.e(f's_cbranch_scc1 {Lj}')
            poll(a, *pW)
            for f in range(NBW):
                w2load(f)
            a.label(Lj)
            a.stamp('pollW')
            for f in range(NBW, 30):
                bg.add(lambda f=f: w2load(f))
    a2_pre(0, lambda: bg.run(OPT.get('bgw2', 4)), pv0)

    for l in range(2):
        a.e(f's_lshl_b32 s67, s{sWAVE}, 15')
        a.e(f's_lshl_b32 s6, s{sC}, 10')
        a.e('s_add_u32 s67, s67, s6')
        pV = (7, 67, PH_V[l], 4, 13)
        bg.run(OPT.get('bgpv', 0))
        poll_issue(a, *pV)
        bg.run(OPT.get('bgpv2', 0))
        poll_check(a, *pV)
        if l == 0:
            def id_issue():
                a.e(f'v_mov_b32 v72, s{sFSRC}')
                a.e(f'v_mov_b32 v73, s{sFPAR}')
                a.e('v_cmp_eq_u32 vcc, 0, v1')
                a.e('v_cndmask_b32 v72, v73, v72, vcc')
                a.e(f's_mov_b32 s60, 0x{FLG:x}')
                a.vmem(f'buffer_load_dwordx2 v[72:73], v72, {sr(sWS, 4)}, s60 offen sc1', 'ids')
        a.stamp(f'pollV{l}')
        a.e(f's_mul_i32 s63, s{sWAVE}, 768')
        a.e('s_add_u32 s62, s63, s58')
        a.e('s_mov_b32 exec_hi, 0xffff')
        for rho in range(2):
            a.e(f's_lshl_b32 s6, s{sG if rho == 0 else sTAU1}, 3')
            a.e(f's_add_u32 s6, s6, s{sC}')
            a.e('s_mulk_i32 s6, 6144')
            a.e('s_add_u32 s6, s6, s63')
            a.e(f's_add_u32 s6, s6, 0x{VB[l]:x}')
            a.e(f's_add_u32 m0, s62, {rho * 6144}')
            a.vmem(f'buffer_load_dwordx4 v2, {sr(sWS, 4)}, s6 offen sc1 lds', 'v')
        a.e('s_mov_b64 exec, -1')
        if l == 0:
            id_issue()
        bg.run(OPT.get('bgv', 4))
        a.e('v_lshlrev_b32 v7, 3, v1')
        a.e(f'v_mov_b32 v{VF}, 0')
        a.e(f'v_mov_b32 v{VF + 1}, 0')
        a.lds(f'ds_write_b64 v7, {vr(VF, 2)} offset:{STATS + 256}', 'clr')
        a.wait(vm='v', lg='clr')
        a.e('s_barrier')
        a.stamp(f'V{l}')
        for ks in range(4):
            for rd in range(2):
                a.lds(f'ds_read_b64_tr_b16 {vr(VF + 4 * ks + 2 * rd, 2)}, v13 offset:{(16 * (ks % 2) + 4 * rd) * 192 + (ks // 2) * 80}', ('vf', ks))
        if l == 0:
            for n in range(NR):
                bg.add(lambda n=n: w1load(n))
                if n < NST:
                    bg.add(lambda n=n: stash(n))
            bg.run(OPT.get('bg0', 2))

        a.e(f's_add_u32 s63, s{sGCM}, 0x{X1B[l]:x}')
        a.e(f's_cmp_eq_u32 s{sKT}, 0')
        a.e('s_cselect_b32 s70, -1, 0')
        a.e(f's_cselect_b32 s71, s63, 0x{OOB:x}')
        for ks in range(4):
            a.wait(lg=('vf', ks))
            a.e(f'v_mfma_f32_32x32x16_bf16 {vr(Y, 16)}, {vr(VF + 4 * ks, 4)}, {vr(TW + 4 * ks, 4)}, {vr(Y, 16)}')
        for r in range(8):
            a.e(f'v_cvt_pk_bf16_f32 v{PK + r}, v{Y + 2 * r}, v{Y + 2 * r + 1}')
        a.e(f'v_bfi_b32 v{PK}, v12, v11, v{PK}')
        xstore(f'buffer_store_dwordx4 {vr(PK + 4, 4)}, v5, {sr(sWS, 4)}, s71 offen offset:2048', 'x1s', l == 1 and LP & 1)
        a.e('s_mov_b32 exec_hi, s70')
        xstore(f'buffer_store_dwordx4 {vr(PK, 4)}, v5, {sr(sWS, 4)}, s63 offen', 'x1s', l == 1 and LP & 1)
        a.lds(f'ds_write_b128 v6, {vr(PK, 4)}', 'x1w')
        a.e('s_mov_b32 exec_lo, s70')
        a.lds(f'ds_write_b128 v6, {vr(PK + 4, 4)} offset:2048', 'x1w')
        a.e('s_mov_b64 exec, -1')
        a.stamp(f'x1st{l}')
        bg.run(OPT.get('bgx0', 4 if l == 0 else 3))
        a.wait(vm='x1s')
        a.e('s_barrier')
        a.stamp(f'X1s{l}')
        setflag_w0(a, PH_X1[l], 7)
        if l == 0:
            L, Ld = a.newlab('Lidp'), a.newlab('Lidd')
            a.e(f's_add_u32 s59, s{sNON}, {PH_V[0]}')
            a.wait(vm='ids')
            a.e('s_mov_b32 s61, 0')
            a.label(L)
            a.e('v_subrev_u32 v72, s59, v72')
            a.e('v_cmp_le_u32 vcc, 16, v72')
            a.e(f's_cbranch_vccz {Ld}')
            st = a.save()
            id_issue()
            a.restore(st)
            a.e('s_waitcnt vmcnt(0)')
            a.e('s_add_u32 s61, s61, 1')
            a.e(f's_cmp_lt_u32 s61, {SPIN}')
            a.e(f's_cbranch_scc1 {L}')
            a.e('v_mov_b32 v73, -1')
            a.label(Ld)
            a.e('s_nop 0')
            a.e('v_readlane_b32 s6, v73, 0')
            a.e('v_readlane_b32 s7, v73, 1')
            for r, sf in ((6, sFSRC), (7, sFPAR)):
                a.e(f's_cmp_eq_u32 s{r}, s{sXCC}')
                a.e(f's_cselect_b32 s{r}, 0x{LOC if OPT.get("loc", 1) else 0:x}, 0')
                a.e(f's_add_u32 s{sf}, s{sf}, s{r}')
            a.e('s_and_b32 s6, s6, s7')
            a.e('s_cselect_b32 s6, 0, 1')
            a.e(f'v_mov_b32 v72, {STATS + 520}')
            a.e('v_mov_b32 v73, s6')
            a.lds('ds_or_b32 v72, v73', 'idw')
        CP = 16
        if l == 0:
            a.e(f's_lshl_b32 s6, s{sU1}, 6')
            a.e('v_lshl_add_u32 v7, v10, 2, s6')
            a.e('s_movk_i32 s7, 6912')
            a.e('v_mad_u32_u24 v7, v4, s7, v7')
            for n in range(10):
                a.e(f's_mov_b32 s7, 0x{CSP + n * 2 * 6912:x}')
                a.vmem(f'buffer_load_dword v{CP + n}, v7, {sr(sWS, 4)}, s7 offen sc1', 'cs')
        bg.run(OPT.get('bgx1', 3))
        pX = (7, sFSRC, PH_X1[l], 1)
        poll_issue(a, *pX)
        RSC, RA = 2 * PRV + 9216, 37
        Lw7 = a.newlab('Lw7')
        a.e(f's_cmp_lg_u32 s{sWAVE}, 7')
        a.e(f's_cbranch_scc1 {Lw7}')
        if True:
            a.e(f's_cmp_ge_u32 s{sC}, 4')
            a.e('s_cselect_b64 s[70:71], -1, 0')
            a.e('v_and_b32 v11, 7, v8')
            a.e('v_sub_u32 v12, 8, v11')
            a.e('v_cndmask_b32 v12, v11, v12, s[70:71]')
            a.e('v_lshrrev_b32 v13, 3, v8')
            a.e('v_add_u32 v0, 2, v13')
            a.e('v_cmp_eq_u32 vcc, 0, v11')
            a.e('v_cndmask_b32 v12, v12, 0, vcc')
            a.e('v_cndmask_b32 v13, v13, v0, vcc')
            a.e('v_and_b32 v0, 1, v12')
            a.e('v_lshlrev_b32 v0, 4, v0')
            a.e('v_mov_b32 v36, 0x3f80')
            a.e('v_lshlrev_b32 v0, v0, v36')
            a.e('v_cmp_eq_u32 vcc, v13, v9')
            a.e('v_cndmask_b32 v0, 0, v0, vcc')
            a.e('v_lshrrev_b32 v12, 1, v12')
            for r in range(4):
                a.e(f'v_cmp_eq_u32 vcc, {r}, v12')
                a.e(f'v_cndmask_b32 v{32 + r}, 0, v0, vcc')
            a.lds(f'ds_write_b128 v2, v[32:35] offset:{RSC}', 'rw')
            a.e(f'v_lshlrev_b32 v{RA}, 2, v1')
            a.e(f's_mul_i32 s6, s{sC}, 10')
            a.e('v_cmp_le_u32 s[72:73], 2, v9')
            for ft in range(5):
                a.e('v_and_b32 v11, 1, v9')
                a.e(f'v_add3_u32 v11, v11, s6, {2 * ft}')
                a.e('v_sub_u32 v12, 119, v11')
                a.e('v_cndmask_b32 v12, v11, v12, s[70:71]')
                a.e('v_sub_u32 v13, 120, v11')
                a.e('v_cndmask_b32 v13, v11, v13, s[70:71]')
                if ft == 0:
                    a.e('v_cmp_eq_u32 vcc, 0, v13')
                    a.e('v_cndmask_b32 v13, v13, 40, vcc')
                    a.e('v_cmp_eq_u32 vcc, 80, v13')
                    a.e('v_cndmask_b32 v13, v13, 0, vcc')
                a.e('v_cndmask_b32 v12, v12, v13, s[72:73]')
                a.e('v_mul_u32_u24 v13, 13108, v12')
                a.e('v_lshrrev_b32 v13, 16, v13')
                a.e('v_sub_u32 v11, v12, v13')
                a.e('v_mul_u32_u24 v0, 5, v13')
                a.e('v_sub_u32 v12, v12, v0')
                a.e('v_and_b32 v0, 7, v13')
                a.e('v_lshrrev_b32 v13, 3, v13')
                a.e('v_lshl_add_u32 v13, v0, 1, v13')
                a.e('v_add_u32 v13, 64, v13')
                a.e('v_cmp_eq_u32 vcc, 4, v12')
                a.e('v_cndmask_b32 v11, v11, v13, vcc')
                a.e('v_lshlrev_b32 v11, 10, v11')
                a.e('v_lshl_add_u32 v11, v8, 4, v11')
                a.e(f'v_add_u32 v11, {R1}, v11')
                a.lds(f'ds_write_b32 v{RA}, v11 offset:{RSC + PRV + (ft // 4) * PRV + (ft % 4) * 256}', 'rw')
        a.label(Lw7)
        poll_check(a, *pX)
        a.stamp(f'pollX1{l}')
        a.e(f's_lshl_b32 s6, s{sWAVE}, 12')
        a.e('s_lshr_b32 s7, s6, 1')
        a.e('s_add_u32 s66, s63, s6')
        a.e('s_add_u32 s57, s63, s7')
        a.e(f's_cmp_eq_u32 s{sWAVE}, s{sC}')
        a.e(f's_cselect_b32 s66, 0x{OOB:x}, s66')
        a.e(f's_cselect_b32 s57, 0x{OOB:x}, s57')
        a.e('s_cselect_b32 s67, 0x14000, s6')
        a.e('s_cselect_b32 s56, 0x14000, s7')
        lin(4, 67, R1, 66, 0, ('x1', 0))
        if l == 0:
            for n in range(1, 10):
                a.e(f'v_add_f32 v{CP}, v{CP}, v{CP + n}')
            a.e(f'v_mov_b32 v15, v{CP}')
            a.e(f'v_permlane32_swap_b32 v{CP}, v15')
            a.e(f'v_add_f32 v15, v{CP}, v15')
        a.e(f's_lshl_b32 s6, s{sWAVE}, 7')
        a.e('v_lshl_add_u32 v7, v10, 2, s6')
        a.lds(f'ds_write_b32 v7, v15 offset:{CSS}', 'csw')
        a.e(f'v_add_u32 v5, {R1}, v3')
        a.e(f'v_add_u32 v6, {R1 + 40960}, v3')
        if OPT.get('x1o', 1):
            a.e('s_waitcnt vmcnt(3)')
        lin(4, 67, R1 + 32768, 66, 32768, ('x1', 1))
        lin(2, 56, R1 + 65536, 57, 65536, ('x1', 1))
        a.wait(vm=('x1', 0), lg='all')
        a.e('s_barrier')
        a.stamp(f'B1{l}')
        if l == 0:
            a.e('ds_read_b32 v73, v72')
            a.e('s_waitcnt lgkmcnt(0)')
            a.e('v_readfirstlane_b32 s26, v73')
        LS, Lid, Lg2, Ljoin = (a.newlab(x) for x in ('LS', 'Lid', 'Lg2', 'Ljoin'))
        a.e(f's_cmp_eq_u32 s{sWAVE}, 7')
        a.e(f's_cbranch_scc1 {LS}')
        a.e(f's_cmp_ge_u32 s{sWAVE}, s{sU2}')
        a.e(f's_cbranch_scc1 {Lid}')
        st0 = a.save()
        q = list(bg.q)
        bg.q = []
        assert l == 1 or not EW or ('w2', 29) in a.seen
        NW2 = OPT.get('nw2', 20)
        need2 = list(range(30)) if l == 0 and not EW else []

        def xaddr(ks, rt):
            return (5, ks * 4096 + rt * 256) if ks < 10 else (6, (ks - 10) * 4096 + rt * 256)

        def xreads(n, nst=2):
            out = []
            for rt in range(4):
                b, o = xaddr(n, rt)
                out.append(lambda rt=rt, b=b, o=o: a.lds(f'ds_read_b128 {vr(XF + 16 * (n % nst) + 4 * rt, 4)}, v{b} offset:{o}', ('xf', n)))
            return out

        EP = XF

        def epi_reads():
            a.e('v_lshlrev_b32 v7, 2, v8')
            for rt in range(4):
                a.lds(f'ds_read_b32 v{EP + 12 + rt}, v7 offset:{STATS + 256 + rt * 64}', 'st')
            for rt in range(4):
                a.lds(f'ds_read_b32 v{EP + 8 + rt}, v7 offset:{STATS + rt * 64}', 'st')

        p1 = (11, sFSRC, PH_H[l], 3, 7, 0)
        p2 = (13, sFSRC, PH_H[l], 4, 7, 3)

        young = {'n': 0}
        orig_vmem = a.vmem

        def vmem_cnt(s, tag=None):
            young['n'] += 1
            orig_vmem(s, tag)

        def ack_and_flag(slot):
            a.e(f's_waitcnt vmcnt({young["n"]})')
            a.stamp(f'ack{slot}')
            del a.vm[:max(0, len(a.vm) - young['n'])]
            a.vmem = orig_vmem
            setflag(a, slot, 12)

        acc = lambda rt, ft: vr(ACCB + 4 * (rt * 5 + ft), 4)
        seq = [(s, rt) for s in range(3) for rt in range(4)] + [(s, rt) for s in range(3, 7) for rt in (0, 1)] + [(s, rt) for rt in (2, 3) for s in range(3, 7)]
        hb = lambda z: vr(HBUF[(z + 1) % 5], 4)

        def hread(z):
            if z < 4 or z >= len(seq):
                return
            s, rt = seq[z]
            if z < 12:
                a.wait(vm=('h', s))
                a.lds(f'ds_read_b128 {hb(z)}, v5 offset:{(s - 1) * 4096 + rt * 256}', ('hz', z))
            else:
                hf = rt // 2
                a.wait(vm=('h2', hf, s))
                a.lds(f'ds_read_b128 {hb(z)}, v{5 if hf else 6} offset:{(s - 3) * 2048 + (rt % 2) * 256}', ('hz', z))

        def zmf(z, first=False, fill=()):
            s, rt = seq[z]
            if z < 4:
                a.wait(vm=[('h', 0)] + [('w2', k) for k in range(5)])
            else:
                a.wait(vm=[('w2', 5 * s + k) for k in range(5)], lg=('hz', z))
            weave(a, [f'v_mfma_f32_16x16x32_bf16 {acc(rt, ft)}, {vr(w2reg(5 * s + ft), 4)}, {hb(z)}, {"0" if first else acc(rt, ft)}' for ft in range(5)], fill)

        PR = {0: (1, 2, 1), 1: (2, 1, 0), 2: (1, 1, 0), 3: (1, 0, 0)}[OPT.get('pr', 1)]

        def guarded(nwaves, frs):
            Lf = a.newlab('Lf')
            a.e(f's_cmp_ge_u32 s{sWAVE}, {nwaves}')
            a.e(f's_cbranch_scc1 {Lf}')
            st = a.save()
            for f in frs:
                w2load(f)
            seen = set(a.seen)
            a.restore(st)
            a.seen = seen
            a.label(Lf)

        def usread(n):
            a.wait(vm=('ws', n))
            a.lds(f'ds_read_b128 {vr(JIT[n % 2], 4)}, v13 offset:{(n % NST) * 1024}', ('us', n))

        def h1_all():
            a.e(f's_add_u32 s64, s{sHK}, 0x{HB[l]:x}')
            for rt in range(4):
                a.vmem(f'buffer_load_dwordx4 {vr(HBUF[rt + 1], 4)}, v3, {sr(sWS, 4)}, s64 offen offset:{rt * 256} sc1', ('h', 0))
            lin(4, 69, 0, sHK, HB[l] + 4096, ('h', 1))
            lin(4, 69, 4096, sHK, HB[l] + 8192, ('h', 2))

        def gemm(late, q, qlow=False):
            pw1, pws = [NR], [NST]
            a.e('v_add_u32 v13, s69, v2')
            for f in xreads(0):
                f()
            usread(0)
            for n in range(20):
                if n == 7:
                    cnt_wait(CNT1, 7, True)
                a.wait(vm=('w1', n), lg=[('xf', n), ('us', n)])
                mf = []
                for h in range(2):
                    for rt in range(4):
                        ac = vr(ACCX + 16 * h + 4 * rt, 4)
                        w = RING[n % NR] if h == 0 else JIT[n % 2]
                        mf.append(f'v_mfma_f32_16x16x32_bf16 {ac}, {vr(w, 4)}, {vr(XF + 16 * (n % 2) + 4 * rt, 4)}, {"0" if n == 0 else ac}')
                fl = []
                if n == 6:
                    fl.append(lambda: cnt_peek(CNT1, 7))
                if n + 1 < 20:
                    fl += [lambda: usread(n + 1)] + xreads(n + 1)
                nq = 0
                while q and nq < 3 and not qlow:
                    fl.append(q.pop(0))
                    nq += 1
                if not q or qlow:
                    while pws[0] < 20 and pws[0] - NST <= n and nq < 2:
                        fl.append(lambda k=pws[0]: stash(k))
                        pws[0] += 1
                        nq += 1
                    while pw1[0] < 20 and pw1[0] - NR <= n and nq < 3:
                        fl.append(lambda k=pw1[0]: w1load(k))
                        pw1[0] += 1
                        nq += 1
                while q and nq < 3 and qlow:
                    fl.append(q.pop(0))
                    nq += 1
                if late and n == OPT.get('npi', 15):
                    fl.append(lambda: poll_issue(a, *p1))
                if n == 19:
                    def ep():
                        a.e(f's_lshl_b32 s6, s{sWAVE}, 7')
                        a.e('v_lshl_add_u32 v7, v9, 4, s6')
                        for h in range(2):
                            a.lds(f'ds_read_b128 {vr(EP + 4 * h, 4)}, v7 offset:{CSS + h * 64}', 'csr')
                        epi_reads()
                    fl = [ep]
                weave(a, mf, fl)
                if n == OPT.get('nca', 3) and not late:
                    a.wait(vm=('x1', 1))
                    cnt_add(CNT1, 7)
            a.stamp(f'gend{l}')
            prio(a, 3)
            a.e(f's_lshl_b32 s65, s{sU1}, 11')
            a.e(f's_add_u32 s65, s65, s{sHG}')
            a.e(f's_add_u32 s65, s65, 0x{HB[l]:x}')
            L, Ld = a.newlab('Lsw'), a.newlab('Lsd')
            a.e('s_mov_b32 s61, 0')
            a.label(L)
            a.e('s_waitcnt lgkmcnt(0)')
            a.lg.clear()
            a.e(f'v_min_u32 v7, v{EP + 12}, v{EP + 13}')
            a.e(f'v_min3_u32 v7, v7, v{EP + 14}, v{EP + 15}')
            a.e('v_cmp_eq_u32 vcc, 0, v7')
            a.e(f's_cbranch_vccz {Ld}')
            a.e('s_sleep 1')
            epi_reads()
            a.lg.clear()
            a.e('s_add_u32 s61, s61, 1')
            a.e(f's_cmp_lt_u32 s61, {SPIN}')
            a.e(f's_cbranch_scc1 {L}')
            a.e('s_waitcnt lgkmcnt(0)')
            a.label(Ld)
            a.e('v_lshlrev_b32 v7, 10, v4')
            a.e('v_lshl_add_u32 v7, v10, 4, v7')
            for h in range(2):
                for pr in range(2):
                    b = ACCX + 16 * h + 8 * pr
                    if OPT.get('pk', 0):
                        for r in range(0, 8, 2):
                            sel = 'op_sel:[0,0,0] op_sel_hi:[0,1,1]' if r < 4 else 'op_sel:[1,0,0] op_sel_hi:[1,1,1]'
                            a.e(f'v_pk_fma_f32 {vr(b + r, 2)}, {vr(EP + 8 + 2 * pr, 2)}, {vr(EP + 4 * h + r % 4, 2)}, {vr(b + r, 2)} {sel} neg_lo:[1,0,0] neg_hi:[1,0,0]')
                        for r in range(0, 8, 2):
                            sel = 'op_sel:[0,0] op_sel_hi:[1,0]' if r < 4 else 'op_sel:[0,1] op_sel_hi:[1,1]'
                            a.e(f'v_pk_mul_f32 {vr(b + r, 2)}, {vr(b + r, 2)}, {vr(EP + 12 + 2 * pr, 2)} {sel}')
                    else:
                        for r in range(8):
                            a.e(f'v_fma_f32 v{b + r}, -v{EP + 8 + 2 * pr + r // 4}, v{EP + 4 * h + r % 4}, v{b + r}')
                        for r in range(8):
                            a.e(f'v_mul_f32 v{b + r}, v{b + r}, v{EP + 12 + 2 * pr + r // 4}')
                    for r in range(4):
                        a.e(f'v_cvt_pk_bf16_f32 v{b + r}, v{b + 2 * r}, v{b + 2 * r + 1}')
                    for r in range(4):
                        a.e(f'v_pk_max_i16 v{b + r}, v{b + r}, 0')
                    a.e(f'v_permlane16_swap_b32 v{b}, v{b + 2}')
                    a.e(f'v_permlane16_swap_b32 v{b + 1}, v{b + 3}')
                    xstore(f'buffer_store_dwordx4 {vr(b, 4)}, v7, {sr(sWS, 4)}, s65 offen offset:{h * 2048 + pr * 512}', 'hst', LP & 4)
            a.stamp(f'epi{l}')
            cnt_add(CNT2, 7)

        def first_step(first):
            poll_issue(a, *p2)
            prio(a, PR[0])
            for z in range(4):
                zmf(z, first)

        def early_tail(first):
            if l == 1 and OPT.get('bearly', 1):
                guarded(5, range(20, 30))
            for f in need2:
                w2load(f)
            poll(a, *p1)
            h1_all()
            a.stamp(f'pollA{l}')
            first_step(first)

        Llate = a.newlab('Llate')
        a.e(f's_cmp_ge_u32 s{sWAVE}, 3')
        a.e(f's_cbranch_scc1 {Llate}')
        prio(a, 3)
        gemm(False, list(q))
        a.wait(vm='hst')
        a.stamp(f'ackH{l}')
        a.label(Lg2)
        setflag(a, PH_H[l], 12)
        early_tail(True)
        stE = a.save()
        a.e(f's_branch {Ljoin}')

        a.label(Llate)
        a.restore(st0)
        prio(a, 2)
        a.wait(vm=('x1', 1))
        cnt_add(CNT1, 7)
        a.e(f's_sleep {OPT.get("lsl", 2)}')
        for f in q:
            f()
        for f in need2[:OPT.get('nl0', 10)]:
            w2load(f)
        if l == 1 and OPT.get('bearly', 1):
            guarded(5, range(20, 30))
        gemm(True, [lambda f=f: w2load(f) for f in need2[OPT.get('nl0', 10):]], True)
        poll_check(a, *p1) if False else None
        Lr, Lr2 = a.newlab('Lr'), a.newlab('Lr2')
        a.e(f's_add_u32 s59, s{sNON}, {PH_H[l]}')
        a.wait(vm='poll')
        a.e('v_subrev_u32 v11, s59, v11')
        a.e('v_cmp_le_u32 vcc, 16, v11')
        a.e(f's_cbranch_vccnz {Lr}')
        st = a.save()
        h1_all()
        a.wait(vm='hst')
        a.stamp(f'ackH{l}')
        setflag(a, PH_H[l], 12)
        a.e(f's_branch {Lr2}')
        a.label(Lr)
        a.restore(st)
        a.wait(vm='hst')
        a.stamp(f'ackH{l}')
        setflag(a, PH_H[l], 12)
        poll(a, *p1)
        h1_all()
        a.label(Lr2)
        a.stamp(f'pollA{l}')
        first_step(True)
        a.e(f's_branch {Ljoin}')

        a.label(Lid)
        a.restore(st0)
        a.wait(vm=('x1', 1))
        cnt_add(CNT1, 7)
        cnt_add(CNT2, 7)
        a.e(f's_branch {Lg2}')

        a.label(LS)
        a.restore(st0)
        AS, AM, ONE, FS = 16, 32, 96, 48
        prio(a, 3)
        for r in range(4):
            a.e(f'v_mov_b32 v{ONE + r}, 0x3f803f80')
        for f in xreads(0):
            f()
        for ks in range(20):
            if ks == OPT.get('nca', 3) + 1:
                a.wait(vm=('x1', 1))
                cnt_add(CNT1, 7)
            if ks == 7:
                cnt_wait(CNT1, 7, True)
            a.wait(lg=('xf', ks))
            mf = []
            for rt in range(4):
                f = vr(FS + 16 * (ks % 2) + 4 * rt, 4)
                mf.append(f'v_mfma_f32_16x16x32_bf16 {vr(AS + 4 * rt, 4)}, {f}, {f}, {"0" if ks == 0 else vr(AS + 4 * rt, 4)}')
                mf.append(f'v_mfma_f32_16x16x32_bf16 {vr(AM + 4 * rt, 4)}, {f}, {vr(ONE, 4)}, {"0" if ks == 0 else vr(AM + 4 * rt, 4)}')
            weave(a, mf, ([lambda: cnt_peek(CNT1, 7)] if ks == 6 else []) + (xreads(ks + 1) if ks + 1 < 20 else []))
        a.e(f's_mov_b32 s6, {STATS}')
        stats_finalize(a, AS, AM, 4, 11, 64, 256, 'm_rs')
        a.stamp(f'stat{l}')
        prio(a, 0)
        PM, TB = w2reg(30), (w2reg(31), 100)
        prio(a, 3)
        a.e('v_lshlrev_b32 v7, 2, v1')
        a.lds(f'ds_read_b128 {vr(PM, 4)}, v2 offset:{RSC}', 'ra')
        AR = (0, 11, 12, 13, 7)
        for ft in range(5):
            a.lds(f'ds_read_b32 v{AR[ft]}, v7 offset:{RSC + PRV + (ft // 4) * PRV + (ft % 4) * 256}', 'ra')
        a.wait(lg='ra')

        def rread(ft):
            return [lambda rt=rt: a.lds(f'ds_read_b128 {vr(TB[ft % 2] + 4 * rt, 4)}, v{AR[ft]} offset:{rt * 256}', ('rs', ft)) for rt in range(4)]
        for f in rread(0):
            f()
        for ft in range(5):
            if ft + 1 < 5:
                for f in rread(ft + 1):
                    f()
            a.wait(lg=('rs', ft))
            weave(a, [f'v_mfma_f32_16x16x32_bf16 {acc(rt, ft)}, {vr(PM, 4)}, {vr(TB[ft % 2] + 4 * rt, 4)}, 0' for rt in range(4)], [])
        prio(a, 0)
        cnt_add(CNT2, 7)
        early_tail(False)
        a.label(Ljoin)
        a.e('s_nop 1')
        a.restore(stE)
        a.lg.clear()
        a.stamp(f'join{l}')
        a.forget('w1', 'ws', 'v', 'x1', 'us')
        a.e('v_add_u32 v5, s69, v3')
        for z in range(4, 8):
            hread(z)

        def h2one(hf, s, k):
            a.e(f's_add_u32 m0, s69, {(R1 if hf == 0 else 0) + (s - 3) * 2048 + k * 1024}')
            a.e(f's_add_u32 s64, s{sHK if s < 6 else 57}, 0x{HB[l] + s * 4096 + k * 2048 + hf * 512:x}')
            a.vmem(f'buffer_load_dwordx4 v12, {sr(sWS, 4)}, s64 offen sc1 lds', ('h2', hf, s))

        def pwrite(t):
            a.lds(f'ds_write_b128 v{11 if t < 10 else 13}, {vr(ACCB + 4 * t, 4)} offset:{(t % 10) * 1024}', 'pw')

        def dload(ks):
            a.e(f's_add_u32 s64, s66, {ks * 1024}')
            a.vmem(f'buffer_load_dwordx4 {vr(dreg(ks), 4)}, v2, {sr(sWS, 4)}, s64 offen sc1', 'd')

        ZP = OPT.get('zp', 4)
        a.e(f's_cmp_ge_u32 s{sWAVE}, 6')
        a.e(f's_cselect_b32 s57, 0x70000000, s{sHK}')
        if l == 0:
            a.e(f's_mul_i32 s66, s{sC}, 5')
            a.e(f's_add_u32 s66, s66, s{sWAVE}')
            a.e('s_mul_i32 s66, s66, 20480')
            a.e(f's_add_u32 s66, s66, 0x{DPF:x}')
        fq = []
        nr = [8]
        for z in range(4, 28):
            if z == ZP:
                poll_check(a, *p2)
                a.stamp(f'pollB{l}')
                cnt_wait(CNT2, 12)
                a.e('v_lshlrev_b32 v12, 10, v4')
                a.e('v_lshl_add_u32 v12, v10, 4, v12')
                for s in range(3, 5):
                    for k in range(2):
                        h2one(0, s, k)
                fq = [lambda s=s, k=k: h2one(0, s, k) for s in (5, 6) for k in range(2)]
                fq[2:2] = [lambda f=f: w2load(f) for f in range(30, 35)]
                a.e('v_lshlrev_b32 v6, 4, v8')
                a.e('v_lshl_add_u32 v6, v9, 9, v6')
                a.e(f's_add_u32 s6, s69, {R1}')
                a.e('v_add_u32 v6, s6, v6')
                a.e('v_add_u32 v11, s6, v2')
                a.e('v_add_u32 v13, s69, v2')
            fill = []
            lim = min(z + 4, 27, 11 + 2 * max(0, z - OPT.get('zl', 10)))
            while nr[0] <= lim:
                fill.append(lambda t=nr[0]: hread(t))
                nr[0] += 1
            if z == 9:
                a.wait(lg=('hz', 11))
                a.e(f'v_subrev_u32 v5, {R1}, v6')
                fq += [lambda s=s, k=k: h2one(1, s, k) for s in range(3, 7) for k in range(2)]
            if z == 12:
                a.stamp(f'b2h1_{l}')
                prio(a, PR[1])
            if z == 20:
                a.stamp(f'b2A{l}')
                prio(a, PR[2])
                assert not fq
            if z == 21:
                fq = [lambda t=t: pwrite(t) for t in range(10)]
            if z == 25:
                a.wait(lg=[('hz', 27), 'pw'])
                if l == 0 and OPT.get('de', 1):
                    Ld1 = a.newlab('Ld1')
                    a.e(f's_cmp_ge_u32 s{sWAVE}, 5')
                    a.e(f's_cbranch_scc1 {Ld1}')
                    st = a.save()
                    for ks in range(10):
                        dload(ks)
                    a.restore(st)
                    a.label(Ld1)
                fq += [lambda t=t: pwrite(t) for t in range(10, 15)]
            for _ in range(2 if z < 21 else 4):
                if fq:
                    fill.append(fq.pop(0))
            zmf(z, fill=fill)
        assert not fq
        a.stamp(f'b2B{l}')
        prio(a, 3)
        for t in range(15, 20):
            pwrite(t)
        a.forget('h', 'h2')
        a.seen -= {('w2', f) for f in range(20, 35)}
        if l == 0:
            Ld2 = a.newlab('Ld2')
            a.e(f's_cmp_ge_u32 s{sWAVE}, 5')
            a.e(f's_cbranch_scc1 {Ld2}')
            for ks in range(10 if OPT.get('de', 1) else 0, 20):
                dload(ks)
            a.label(Ld2)
        reduce_addr(l, False)
        a.wait(lg='all')
        a.e('s_barrier')
        a.stamp(f'PB{l}')
        reduce_item(l)
        Lnr = a.newlab('Lnr')
        a.e(f's_cmp_ge_u32 s{sWAVE}, 2')
        a.e(f's_cbranch_scc1 {Lnr}')
        reduce_addr(l, True)
        reduce_item(l)
        a.label(Lnr)
        if l == 1:
            a.stamp_dump(2, sWS, sWAVE, 15)
            break

        a.stamp('redB')
        a.e('v_lshlrev_b32 v5, 4, v8')
        a.e('v_lshl_add_u32 v5, v9, 9, v5')
        a.e(f'v_add_u32 v5, {R1}, v5')
        a.e('v_add_u32 v6, 40960, v5')
        a.wait(vm='all')
        a.e('s_barrier')
        a.stamp('ackXB')
        setflag_w0(a, PH_X2, 12)
        pXA = (7, sFSRC, PH_X2, 1)
        pXB = (11, sFPAR, PH_X2, 1)
        a.vm.clear()
        poll_issue(a, *pXA)
        poll_issue(a, *pXB, tag='poll2')
        poll_check(a, *pXA)
        a.e(f's_add_u32 s67, s{sGCM}, s68')
        lin(5, 68, R1, 67, X2B, ('x2', 0))
        poll_check(a, *pXB, tag='poll2')
        a.stamp('pollXB')
        a.e(f's_mul_i32 s67, s{sPG}, 81920')
        a.e('s_add_u32 s67, s67, s68')
        Lst, Lid, Lj = a.newlab('Lst'), a.newlab('Lid'), a.newlab('Lj')
        a.e(f's_cmp_eq_u32 s{sWAVE}, 7')
        a.e(f's_cbranch_scc1 {Lid}')
        a.e(f's_cmp_ge_u32 s{sWAVE}, 5')
        a.e(f's_cbranch_scc1 {Lst}')
        st0 = a.save()

        def startA1(extra=None):
            a.e('s_waitcnt vmcnt(4)')
            if extra:
                extra()
            lin(5, 68, R1 + 40960, 67, X2B + 40960, ('x2', 1))
            a.wait(vm=('x2', 0))
            a.e('s_barrier')
            a.stamp('XA')

        def hookA1(hf, ks):
            if hf == 0:
                if ks == 3:
                    a.e(f's_lshl_b32 s6, s{sWAVE}, 11')
                    a.e(f's_add_u32 m0, s6, {W1SL}')
                    a.e(f's_lshl_b32 s7, s{sC}, 14')
                    a.e('s_add_u32 s6, s6, s7')
                    a.e(f's_add_u32 s6, s6, 0x{W1S:x}')
                    for n in range(2):
                        a.vmem(f'buffer_load_dwordx4 v2, {sr(sWS, 4)}, s6 offen offset:{n * 1024} sc1 lds', 'w1s')
                if ks == 19:
                    a.stamp('a1A')
                    a.wait(vm='w1s', lg='all')
                    a.e('s_barrier')
                    a.stamp('XB')

        WFA = 16
        RSr, MRr = [196, 200, 204, 208], [212, 216, 220, 224]
        NSG = len(XFS)
        wf = lambda mat, tt, ks: WFA + ((mat * 4 + tt) * 2 + ks) * 4
        startA1()
        for hf in range(2):
            def xread1(ks):
                return [lambda rt=rt: a.lds(f'ds_read_b128 {vr(XFS[ks % NSG] + 4 * rt, 4)}, v{5 + hf} offset:{ks * 2048 + rt * 256}', ('xf', ks)) for rt in range(2)]
            for ks in range(NSG - 1):
                for f in xread1(ks):
                    f()
            for ks in range(20):
                if ks % 2 == 0:
                    a.wait(lg=('xf', ks + 1))
                mf = [f'v_mfma_f32_16x16x32_bf16 {vr(ACCA + 8 * hf + 4 * rt, 4)}, {vr(XFS[ks % NSG] + 4 * rt, 4)}, {vr(dreg(ks), 4)}, {"0" if ks == 0 else vr(ACCA + 8 * hf + 4 * rt, 4)}' for rt in range(2)]
                weave(a, mf, xread1(ks + NSG - 1) if ks + NSG - 1 < 20 else [])
                hookA1(hf, ks)
        prio(a, 3)
        for tt in range(4):
            for ks in range(2):
                for mat in range(2):
                    a.lds(f'ds_read_b128 {vr(wf(mat, tt, ks), 4)}, v2 offset:{W1SL + ((mat * 4 + tt) * 2 + ks) * 1024}', 'wf')
        a.e('v_lshlrev_b32 v12, 4, v9')
        a.stamp('a1B')
        a.e('s_barrier')
        a.stamp('ST')
        for rt in range(4):
            a.lds(f'ds_read_b128 {vr(RSr[rt], 4)}, v12 offset:{ST1 + rt * 64}', 'st')
            a.lds(f'ds_read_b128 {vr(MRr[rt], 4)}, v12 offset:{ST1 + 256 + rt * 64}', 'st')
        stage1(a, ACCA, RSr, MRr, 80, wf, R1)
        stC = a.save()
        a.seen |= {('w2', f) for f in range(20, 30)}
        a.e(f's_branch {Lj}')

        a.label(Lid)
        a.restore(st0)
        startA1()
        for hf in range(2):
            for ks in range(20):
                hookA1(hf, ks)
        stage_all()
        a.e('s_barrier')
        a.wait(vm='all')
        a.e(f's_branch {Lj}')

        a.label(Lst)
        a.restore(st0)
        AS, AM, ONE, FS = 16, 24, 32, 36
        for r in range(4):
            a.e(f'v_mov_b32 v{ONE + r}, 0x3f803f80')
        a.e(f's_sub_u32 s66, s{sWAVE}, 5')
        a.e('s_lshl_b32 s6, s66, 8')
        a.e('v_add_u32 v5, s6, v5')
        a.e('v_add_u32 v6, s6, v6')
        startA1()
        for hf in range(2):
            def sread(ks):
                a.lds(f'ds_read_b128 {vr(FS + 4 * (ks % 10), 4)}, v{5 + hf} offset:{ks * 2048}', ('sf', ks))
            for ks in range(9):
                sread(ks)
            for ks in range(20):
                a.wait(lg=('sf', ks))
                f = vr(FS + 4 * (ks % 10), 4)
                a.e(f'v_mfma_f32_16x16x32_bf16 {vr(AS + 4 * hf, 4)}, {f}, {f}, {"0" if ks == 0 else vr(AS + 4 * hf, 4)}')
                if ks + 9 < 20:
                    sread(ks + 9)
                a.e(f'v_mfma_f32_16x16x32_bf16 {vr(AM + 4 * hf, 4)}, {f}, {vr(ONE, 4)}, {"0" if ks == 0 else vr(AM + 4 * hf, 4)}')
                hookA1(hf, ks)
        prio(a, 3)
        a.e('s_lshl_b32 s6, s66, 6')
        a.e(f's_add_u32 s6, s6, {ST1}')
        stats_finalize(a, AS, AM, 2, 11, 128, 256, 'rs_mr')
        a.wait(lg='all')
        a.e('s_barrier')
        a.label(Lj)
        a.e('s_nop 1')
        a.restore(stC)
        v_out_addr(a)
        a.wait(lg='all')
        a.e('s_barrier')
        a.stamp('VT')
        v_out(a, 1, R1, 64)
        for n in range(NR):
            bg.add(lambda n=n: w1load(n))
            if n < NST:
                bg.add(lambda n=n: stash(n))

        def pv1():
            a.wait(vm='vo')
            a.e('s_barrier')
            a.stamp('PV1')
            setflag_w0(a, PH_V[1], 7)
        a2_pre(1, lambda: bg.run(OPT.get('bga2', 3)), pv1)
        a.stamp('a2pre')

    a.label(end)
    a.e('s_endpgm')
    a.raw(descriptor(name, 256, 102))
    return 163840


def main():
    if len(sys.argv) > 2 and 'stamps' in sys.argv[2:]:
        Asm.STAMPS = True
    Asm.CYC = 'cyc' in sys.argv[2:]
    Asm.DBGOUT = 'dbgout' in sys.argv[2:]
    for o in sys.argv[2:]:
        if o.startswith('names='):
            Asm.ACTIVE = o[6:].split(',')
        elif '=' in o:
            k, v = o.split('=')
            OPT[k] = int(v)
    hdr = open('cdna_kernels/' + NAME + '.s.ref').read().split('\n')
    hdr = [l for l in hdr if l.startswith(';') and '@launch' not in l and 'Override launch' not in l and 'grid=ceil' not in l]
    out = '\n'.join(hdr) + '\n'
    a = Asm()
    lds = gen(a, NAME + '_kernel')
    out += f'; @launch grid=(256,1,1) block=(512,1,1) lds={lds}\n'
    if Asm.STAMPS:
        out += '; stampnames start,' + ','.join(Asm.ACTIVE) + '\n'
    out += '.amdgcn_target "amdgcn-amd-amdhsa--gfx950"\n'
    out += a.text()
    path = sys.argv[1] if len(sys.argv) > 1 else 'cdna_kernels/' + NAME + '.s'
    open(path, 'w').write(out)
    print('wrote', path, len(out))


main()
```

```python
import re

TRANS = ('v_exp_', 'v_log_', 'v_rcp_', 'v_rsq_', 'v_sqrt_', 'v_sin_', 'v_cos_')


def vr(base, n=1):
    return f'v{base}' if n == 1 else f'v[{base}:{base + n - 1}]'


def sr(base, n=1):
    return f's{base}' if n == 1 else f's[{base}:{base + n - 1}]'


_reg_re = re.compile(r'^(-|abs\()?([vsa])(?:(\d+)|\[(\d+):(\d+)\])\)?$')


def regs_of(tok):
    tok = tok.strip()
    if tok in ('vcc',):
        return {('s', 'vcc')}
    if tok in ('vcc_lo', 'vcc_hi'):
        return {('s', 'vcc')}
    if tok == 'm0':
        return {('s', 'm0')}
    if tok == 'exec':
        return {('s', 'exec')}
    m = _reg_re.match(tok)
    if not m:
        return set()
    k = m.group(2)
    if m.group(3) is not None:
        lo = hi = int(m.group(3))
    else:
        lo, hi = int(m.group(4)), int(m.group(5))
    return {(k, i) for i in range(lo, hi + 1)}


class Ins:
    __slots__ = ('text', 'mn', 'ops', 'mods', 'w', 'r', 'kind', 'passes', 'srcc', 'ab', 'data', 'states')

    def __init__(self, text):
        self.text = text
        t = text.split(';')[0].strip()
        parts = t.split(None, 1)
        self.mn = mn = parts[0]
        rest = parts[1] if len(parts) > 1 else ''
        toks = [x.strip() for x in rest.split(',')] if rest else []
        self.mods = ''
        if toks:
            last = toks[-1].split(None, 1)
            toks[-1] = last[0]
            self.mods = last[1] if len(last) > 1 else ''
        self.ops = toks
        self.w, self.r = set(), set()
        self.passes = 0
        self.srcc = set()
        self.ab = set()
        self.data = set()
        self.states = 1
        R = [regs_of(x) for x in toks]
        if mn == 's_nop':
            self.kind = 'nop'
            self.states = int(toks[0], 0) + 1
        elif mn.startswith('v_mfma'):
            self.kind = 'mfma'
            self.passes = 8 if '32x32' in mn else 4
            self.w = R[0]
            self.ab = R[1] | R[2]
            self.srcc = R[3]
            self.r = self.ab | self.srcc
        elif mn.startswith('v_'):
            self.kind = 'valu'
            if mn.startswith('v_cmp'):
                self.w = R[0]
                for x in R[1:]:
                    self.r |= x
            elif mn.startswith('v_permlane') and 'swap' in mn:
                self.w = R[0] | R[1]
                self.r = R[0] | R[1]
            elif mn.startswith(('v_add_co', 'v_sub_co', 'v_addc_co', 'v_subb_co')):
                self.w = R[0] | R[1]
                for x in R[2:]:
                    self.r |= x
            else:
                self.w = R[0]
                for x in R[1:]:
                    self.r |= x
                if mn.startswith(('v_fmac', 'v_dot2c', 'v_writelane')) or 'dpp' in mn or 'sdwa' in mn:
                    self.r |= R[0]
        elif mn.startswith('ds_'):
            self.kind = 'ds'
            if 'read' in mn or 'bpermute' in mn or 'swizzle' in mn or 'rtn' in mn:
                self.w = R[0]
                for x in R[1:]:
                    self.r |= x
            else:
                for x in R:
                    self.r |= x
            if 'addtid' in mn:
                self.r |= {('s', 'm0')}
        elif mn.startswith(('buffer_', 'global_', 'flat_')):
            self.kind = 'vmem'
            islds = ' lds' in (' ' + self.mods) or '_lds_' in mn
            if mn in ('buffer_wbl2', 'buffer_inv'):
                pass
            elif islds:
                for x in R:
                    self.r |= x
                self.r |= {('s', 'm0')}
            elif 'load' in mn:
                self.w = R[0]
                for x in R[1:]:
                    self.r |= x
                if 'd16' in mn:
                    self.r |= R[0]
            else:
                for x in R:
                    self.r |= x
                if 'x4' in mn or 'x3' in mn:
                    self.data = R[0] if mn.startswith('buffer_') else R[1]
                if 'atomic' in mn and 'sc0' in self.mods:
                    self.w = R[0]
        elif mn.startswith('s_'):
            self.kind = 'salu'
            if mn.startswith(('s_cmp', 's_cbranch', 's_branch', 's_waitcnt', 's_barrier', 's_endpgm', 's_sleep', 's_setprio')):
                for x in R:
                    self.r |= x
            else:
                if R:
                    self.w = R[0]
                for x in R[1:]:
                    self.r |= x
                if 'saveexec' in mn:
                    self.w = self.w | {('s', 'exec')}
        else:
            raise ValueError('unknown instruction: ' + text)


def need_states(p, c):
    n = 0
    vw = {x for x in p.w if x[0] in 'va'}
    sw = {x for x in p.w if x[0] == 's'}
    if p.kind == 'valu':
        if c.kind == 'mfma' and vw & c.r:
            n = max(n, 2)
        if c.kind == 'valu':
            if vw & c.r:
                if 'dpp' in c.mn or c.mn.startswith('v_permlane'):
                    n = max(n, 2)
                if c.mn.startswith(('v_readfirstlane', 'v_readlane')):
                    n = max(n, 1)
                if p.mn.startswith(TRANS):
                    n = max(n, 1)
                if 'sdwa' in p.mn or 'op_sel' in p.mods:
                    n = max(n, 1)
            if sw & c.r:
                n = max(n, 4 if c.mn.startswith(('v_readlane', 'v_writelane')) else 2)
        if c.kind == 'vmem' and sw & c.r:
            n = max(n, 5)
        if c.kind in ('salu', 'ds') and sw & c.r:
            n = max(n, 2)
    if p.kind == 'mfma':
        big = p.passes == 8
        if c.kind == 'mfma':
            if p.w & c.ab:
                n = max(n, 12 if big else 8)
            if p.w & c.srcc and not (p.w == c.srcc and p.passes == c.passes):
                n = max(n, 10 if big else 6)
            if p.w & c.w and not (p.w == c.srcc and p.passes == c.passes):
                n = max(n, 10 if big else 6)
        elif c.kind in ('valu', 'ds', 'vmem'):
            if p.w & (c.r | c.w):
                n = max(n, 12 if big else 8)
            if c.kind == 'valu' and p.srcc & c.w:
                n = max(n, 7 if big else 3)
            if c.kind in ('ds', 'vmem') and p.srcc & c.w:
                n = max(n, 7 if big else 3)
    if p.kind == 'salu' and ('s', 'm0') in p.w and ('s', 'm0') in c.r and c.kind in ('vmem', 'ds'):
        n = max(n, 1)
    if p.kind == 'vmem' and p.data and p.data & c.w:
        n = max(n, 2)
    return n


def pad_hazards(lines):
    out = []
    hist = []
    for ln in lines:
        s = ln.split(';')[0].strip()
        if not s or s.startswith('.'):
            out.append(ln)
            continue
        if s.endswith(':'):
            out.append(ln)
            continue
        c = Ins(s)
        dist = 0
        need = 0
        for p in reversed(hist):
            k = need_states(p, c) - dist
            need = max(need, k)
            dist += p.states
            if dist > 20:
                break
        while need > 0:
            k = min(need, 16)
            nop = f's_nop {k - 1}'
            out.append('    ' + nop)
            hist.append(Ins(nop))
            need -= k
        out.append(ln)
        hist.append(c)
        if c.mn in ('s_endpgm', 's_branch'):
            hist = []
        hist = hist[-24:]
    return out


class Asm:
    def __init__(self):
        self.lines = []
        self.vm = []
        self.lg = []
        self._lab = 0
        self.seen = set()

    def e(self, s):
        self.lines.append('    ' + s)

    def c(self, s):
        self.lines.append('    ; ' + s)

    def label(self, name):
        self.lines.append(name + ':')

    def raw(self, s):
        self.lines.append(s)

    def newlab(self, p='L'):
        self._lab += 1
        return f'{p}_{self._lab}'

    def vmem(self, s, tag=None):
        self.e(s)
        self.vm.append(tag)
        self.seen.add(tag)

    def lds(self, s, tag=None):
        self.e(s)
        self.lg.append(tag)
        self.seen.add(tag)

    def forget(self, *names):
        self.seen = {t for t in self.seen if (t[0] if isinstance(t, tuple) else t) not in names}

    def _cnt(self, lst, tags, cap):
        if not isinstance(tags, (list, set)):
            tags = [tags]
        for t in tags:
            assert t in self.seen, f'wait on never-issued tag {t}'
        idx = -1
        for i, t in enumerate(lst):
            if t in tags:
                idx = i
        if idx < 0:
            return None
        n = len(lst) - 1 - idx
        n = min(n, cap)
        del lst[:len(lst) - n]
        return n

    def wait(self, vm=None, lg=None):
        parts = []
        if vm is not None:
            if vm == 'all':
                self.vm.clear()
                parts.append('vmcnt(0)')
            else:
                n = self._cnt(self.vm, vm, 63)
                if n is not None:
                    parts.append(f'vmcnt({n})')
        if lg is not None:
            if lg == 'all':
                self.lg.clear()
                parts.append('lgkmcnt(0)')
            else:
                n = self._cnt(self.lg, lg, 15)
                if n is not None:
                    parts.append(f'lgkmcnt({n})')
        if parts:
            self.e('s_waitcnt ' + ' '.join(parts))

    STAMPS = False
    CYC = False
    DBGOUT = False
    DBG = 60 << 20

    ACTIVE = []

    def stamp(self, i):
        if not Asm.STAMPS:
            return
        if isinstance(i, str):
            if i not in Asm.ACTIVE:
                return
            i = Asm.ACTIVE.index(i) + 1
        self.e('s_memtime s[78:79]' if Asm.CYC else 's_memrealtime s[78:79]')
        self.e('s_waitcnt lgkmcnt(0)')
        self.lg.clear()
        self.e(f's_mov_b32 s{80 + i}, s78')

    def stamp_init(self):
        if not Asm.STAMPS:
            return
        for i in range(16):
            self.e(f's_mov_b32 s{80 + i}, 0')

    def stamp_dump(self, kidx, srd, swave, last):
        if not Asm.STAMPS:
            return
        self.e('s_waitcnt vmcnt(0)')
        self.stamp(last)
        if Asm.DBGOUT:
            for i in range(1, 16):
                self.e(f's_sub_u32 s{80 + i}, s{80 + i}, s80')
        self.e('v_mov_b32 v0, 0')
        for i in range(16):
            self.e(f'v_writelane_b32 v0, s{80 + i}, {i}')
        if Asm.DBGOUT:
            self.e('s_lshl_b32 s78, s2, 3')
            self.e(f's_add_u32 s78, s78, s{swave}')
            self.e('s_cmp_lg_u32 s78, 800')
            self.e('s_cbranch_scc1 Ldbgo')
            self.e('v_mbcnt_lo_u32_b32 v1, -1, 0')
            self.e('v_lshlrev_b32 v1, 2, v1')
            self.e('s_mov_b64 exec, 0xfffe')
            self.e('global_store_dword v1, v0, s[96:97]')
            self.label('Ldbgo')
            return
        self.e(f's_lshl_b32 s78, s2, 3')
        self.e(f's_add_u32 s78, s78, s{swave}')
        self.e(f's_lshl_b32 s78, s78, 6')
        self.e(f's_add_u32 s78, s78, {Asm.DBG + kidx * 256 * 8 * 64}')
        self.e('v_mbcnt_lo_u32_b32 v1, -1, 0')
        self.e('v_mbcnt_hi_u32_b32 v1, -1, v1')
        self.e('v_lshlrev_b32 v1, 2, v1')
        self.e('s_mov_b64 exec, 0xffff')
        self.e(f'buffer_store_dword v0, v1, s[{srd}:{srd + 3}], s78 offen')

    def save(self):
        return (list(self.vm), list(self.lg), set(self.seen))

    def restore(self, st):
        self.vm, self.lg, self.seen = list(st[0]), list(st[1]), set(st[2])

    def srd(self, d, base, nbytes):
        self.e(f's_mov_b32 s{d}, s{base}')
        self.e(f's_and_b32 s{d + 1}, s{base + 1}, 0xffff')
        self.e(f's_mov_b32 s{d + 2}, 0x{nbytes:x}')
        self.e(f's_mov_b32 s{d + 3}, 0x20000')

    def text(self):
        return '\n'.join(pad_hazards(self.lines)) + '\n'


def descriptor(name, vgpr, sgpr=96):
    acc = (vgpr + 3) // 4 * 4
    return f'''.section .rodata,"a"
.p2align 6
.amdhsa_kernel {name}
  .amdhsa_next_free_vgpr {vgpr}
  .amdhsa_next_free_sgpr {sgpr}
  .amdhsa_accum_offset {acc}
  .amdhsa_group_segment_fixed_size 0
  .amdhsa_kernarg_size 88
  .amdhsa_user_sgpr_count 2
  .amdhsa_user_sgpr_kernarg_segment_ptr 1
  .amdhsa_system_sgpr_workgroup_id_x 1
.end_amdhsa_kernel
'''
```

```python
import sys
from asmlib import *

NAME = 'interleave_layers__spectral_fnet__dense_activation_relu__prompt'
S, D, F = 2048, 640, 1728
W1F = 0
W2F = 0x220000
DPF = 0x440000
CSP = 0x510000
W1S = 0x540000
TWP = 0x560000
FLG = 0x760000
VB = [0x960000, 0xC60000]
X1B = [0xF60000, 0x11E0000]
X2B = 0x1460000
HB = [0x16E0000, 0x1DA0000]
WS_BYTES = 268435456
OOB = 0x7f000000
SPIN = 200000
OPT = {}

R1 = 81920
PRV = 10240
STATS, CSS = 9216, PRV + 9216
CNT1, CNT2 = STATS + 512, STATS + 516
XRL1, TWL1, W1SL, ST1 = R1 + 12288, R1 + 24576, 20480, 36864

sWAVE, sG, sC = 3, 4, 5
P_X, P_CR, P_CI, P_DR, P_DI, P_W1, P_W2, P_OUT, P_WS = 8, 10, 12, 14, 16, 20, 22, 24, 26
sWS, sOUT, sFL = 28, 32, 36
sRHO, sKT, sMIR, sNON, sU1, sU2 = 38, 39, 40, 41, 42, 43
sGCM, sFOWN, sW1B, sHK, sW2O, sHG, sFSRC, sTAU1, sPG, sFPAR = 44, 45, 46, 47, 48, 49, 50, 51, 52, 53


def weave(a, mfs, fill):
    fill = list(fill)
    for i, m in enumerate(mfs):
        a.e(m)
        left = len(mfs) - i
        for _ in range(-(-len(fill) // left)):
            fill.pop(0)()


class BG:
    def __init__(self):
        self.q = []

    def add(self, f):
        self.q.append(f)

    def run(self, n=None):
        n = len(self.q) if n is None else min(n, len(self.q))
        for _ in range(n):
            self.q.pop(0)()


PH_V, PH_X1, PH_H, PH_X2 = (1, 6), (2, 7), (3, 8), 4
LOC = 0x80000
sXCC = 27


def poll_issue(a, vres, soff, phase, n, shift=7, first=0, tag='poll'):
    a.e(f'v_min_u32 v{vres}, {n - 1}, v1')
    a.e(f'v_lshlrev_b32 v{vres}, {shift}, v{vres}')
    a.e(f's_add_u32 s60, s{soff}, 0x{FLG + (first << shift):x}')
    a.vmem(f'buffer_load_dword v{vres}, v{vres}, {sr(sWS, 4)}, s60 offen sc1', tag)


def poll_check(a, vres, soff, phase, n, shift=7, first=0, tag='poll'):
    L, Ld = a.newlab('Lpoll'), a.newlab('Lpd')
    a.e(f's_add_u32 s59, s{sNON}, {phase}')
    a.wait(vm=tag)
    a.e('s_mov_b32 s61, 0')
    a.label(L)
    a.e(f'v_subrev_u32 v{vres}, s59, v{vres}')
    a.e(f'v_cmp_le_u32 vcc, 16, v{vres}')
    a.e(f's_cbranch_vccz {Ld}')
    if OPT.get('abl_poll', 0) >> phase & 1:
        a.e(f's_branch {Ld}')
    if OPT.get('psleep', 2):
        a.e(f's_sleep {OPT.get("psleep", 2)}')
    st = a.save()
    poll_issue(a, vres, soff, phase, n, shift, first, tag)
    a.restore(st)
    a.e('s_waitcnt vmcnt(0)')
    a.e('s_add_u32 s61, s61, 1')
    a.e(f's_cmp_lt_u32 s61, {SPIN}')
    a.e(f's_cbranch_scc1 {L}')
    a.label(Ld)


def poll(a, vres, *args, **kw):
    poll_issue(a, vres, *args, **kw)
    poll_check(a, vres, *args, **kw)


def prio(a, p):
    if OPT.get('prio', 1):
        a.e(f's_setprio {p}')


def setflag(a, phase, vt):
    if phase is None:
        a.e('v_mov_b32 v0, 0')
    else:
        a.e(f's_add_u32 s62, s{sNON}, {phase}')
        a.e('v_mov_b32 v0, s62')
        a.e(f'v_writelane_b32 v0, s{sXCC}, 1')
    a.e(f'v_lshlrev_b32 v{vt}, 2, v1')
    a.e('s_mov_b32 exec_hi, 0')
    if phase is not None and phase not in PH_V:
        a.e(f's_add_u32 s62, s{sFOWN}, 0x{LOC:x}')
        a.vmem(f'buffer_store_dword v0, v{vt}, {sr(sWS, 4)}, s62 offen', 'flag')
    if phase is not None and phase not in PH_V and phase != PH_X1[0]:
        L = a.newlab('Lng')
        a.e('s_cmp_eq_u32 s26, 0')
        a.e(f's_cbranch_scc1 {L}')
        a.e(f'buffer_store_dword v0, v{vt}, {sr(sWS, 4)}, s{sFOWN} offen sc1')
        a.label(L)
    else:
        a.vmem(f'buffer_store_dword v0, v{vt}, {sr(sWS, 4)}, s{sFOWN} offen sc1', 'flag')
    if phase is None:
        a.e(f's_add_u32 s62, s{sFOWN}, 0x{LOC:x}')
        a.vmem(f'buffer_load_dword v254, v{vt}, {sr(sWS, 4)}, s62 offen sc1', 'flag')
    a.e('s_mov_b32 exec_hi, -1')


def setflag_w0(a, phase, vt):
    L = a.newlab('Lnf')
    a.e(f's_cmp_lg_u32 s{sWAVE}, 0')
    a.e(f's_cbranch_scc1 {L}')
    st = a.save()
    setflag(a, phase, vt)
    a.restore(st)
    a.label(L)


EXTRA = ['hst', 'flag', 'xst', 'vst', 'pst']


def merge(a, *states):
    ls = [[t for t in s[0] if t not in EXTRA and not (isinstance(t, tuple) and t[0] in EXTRA)] for s in states]
    ls.sort(key=len)
    longer = ls[-1]
    for s in ls[:-1]:
        assert longer[len(longer) - len(s):] == s, (longer, s)
    a.vm = list(longer)
    a.lg = []


def stats_finalize(a, AS, AM, ntiles, tmp, tile_stride, delta1, mode):
    t = tmp
    a.e(f'v_lshlrev_b32 v{t}, 2, v9')
    a.e(f'v_sub_u32 v{t}, v8, v{t}')
    a.e(f'v_lshl_add_u32 v{t + 1}, v8, 2, s6')
    a.e(f'v_cmp_eq_u32 s[70:71], 1, v{t}')
    a.e(f'v_cmp_eq_u32 s[72:73], 2, v{t}')
    a.e(f'v_cmp_eq_u32 s[74:75], 3, v{t}')
    a.e(f'v_cmp_gt_u32 s[76:77], 4, v{t}')
    a.e('s_mov_b32 s7, 0x3acccccd')
    for rt in range(ntiles):
        for acc in (AS, AM):
            b = acc + 4 * rt
            a.e(f'v_cndmask_b32 v{b}, v{b}, v{b + 1}, s[70:71]')
            a.e(f'v_cndmask_b32 v{b}, v{b}, v{b + 2}, s[72:73]')
            a.e(f'v_cndmask_b32 v{b}, v{b}, v{b + 3}, s[74:75]')
        ss, sm = AS + 4 * rt, AM + 4 * rt
        a.e(f'v_mul_f32 v{sm}, s7, v{sm}')
        a.e(f'v_mul_f32 v{ss}, s7, v{ss}')
        a.e(f'v_fma_f32 v{ss}, -v{sm}, v{sm}, v{ss}')
        a.e(f'v_max_f32 v{ss}, 0, v{ss}')
        a.e(f'v_add_f32 v{ss}, 0x3727c5ac, v{ss}')
        a.e(f'v_rsq_f32 v{ss}, v{ss}')
        if mode == 'rs_mr':
            a.e(f'v_mul_f32 v{sm}, v{sm}, v{ss}')
    a.e('s_mov_b64 exec, s[76:77]')
    for rt in range(ntiles):
        ss, sm = AS + 4 * rt, AM + 4 * rt
        first, second = (ss, sm) if mode == 'rs_mr' else (sm, ss)
        a.lds(f'ds_write_b32 v{t + 1}, v{first} offset:{rt * tile_stride}')
        a.lds(f'ds_write_b32 v{t + 1}, v{second} offset:{rt * tile_stride + delta1}')
    a.e('s_mov_b64 exec, -1')


def stage1(a, ACC, RSr, MRr, VA, wf, VT):
    a.e('v_cmp_gt_u32 vcc, 8, v8')
    a.e('v_mov_b32 v13, 0x80008000')
    a.e('v_cndmask_b32 v13, 0, v13, vcc')
    a.e('v_and_b32 v12, 1, v9')
    a.e('v_lshl_add_u32 v12, v12, 4, v8')
    a.e('v_mul_u32_u24 v12, 192, v12')
    a.e('v_lshrrev_b32 v11, 1, v9')
    a.e('v_mul_u32_u24 v11, 80, v11')
    a.e(f's_lshl_b32 s6, s{sWAVE}, 4')
    a.e(f's_add_u32 s6, s6, {VT}')
    a.e('v_add3_u32 v12, v12, v11, s6')
    a.wait(lg='st')
    for r in range(16):
        m = MRr[r // 4] + r % 4
        a.e(f'v_mul_f32 v{m}, v{m}, v14')
    for r in range(16):
        a.e(f'v_fma_f32 v{ACC + r}, v{ACC + r}, v{RSr[r // 4] + r % 4}, -v{MRr[r // 4] + r % 4}')
    for r in range(8):
        a.e(f'v_cvt_pk_bf16_f32 v{ACC + r}, v{ACC + 2 * r}, v{ACC + 2 * r + 1}')
    for r in range(8):
        a.e(f'v_xor_b32_dpp v{ACC + 8 + r}, v{ACC + r}, v13 row_ror:8 row_mask:0xf bank_mask:0xf')
    a.wait(lg='wf')
    for tt in range(4):
        for ks in range(2):
            for mat in range(2):
                src = ACC + 8 * mat + 4 * ks
                c = '0' if (ks == 0 and mat == 0) else vr(VA + 4 * tt, 4)
                a.e(f'v_mfma_f32_16x16x32_bf16 {vr(VA + 4 * tt, 4)}, {vr(src, 4)}, {vr(wf(mat, tt, ks), 4)}, {c}')
    for pr in range(2):
        b = VA + 8 * pr
        for r in range(4):
            a.e(f'v_cvt_pk_bf16_f32 v{b + r}, v{b + 2 * r}, v{b + 2 * r + 1}')
        a.e(f'v_permlane16_swap_b32 v{b}, v{b + 2}')
        a.e(f'v_permlane16_swap_b32 v{b + 1}, v{b + 3}')
        a.lds(f'ds_write_b128 v12, {vr(b, 4)} offset:{pr * 32 * 192}', 'vt')


def v_out_addr(a):
    for n, dst in ((0, 5), (8, 6)):
        a.e(f's_lshl_b32 s6, s{sWAVE}, 6')
        a.e(f's_add_u32 s6, s6, {n * 64}')
        a.e('v_add_u32 v0, s6, v1')
        a.e('v_mul_u32_u24 v7, 5462, v0')
        a.e('v_lshrrev_b32 v7, 16, v7')
        a.e('v_lshlrev_b32 v0, 4, v0')
        a.e(f's_mov_b32 s7, {8 * 32 * 192 - 192}')
        a.e(f'v_mad_u32_u24 v{dst}, v7, s7, v0')


def v_out(a, l, VT, R):
    a.e(f's_lshl_b32 s6, s{sWAVE}, 10')
    a.e(f's_add_u32 s6, s6, {VT}')
    a.e('v_add_u32 v0, s6, v2')
    a.lds(f'ds_read_b128 {vr(R, 4)}, v0', 'vo0')
    a.lds(f'ds_read_b128 {vr(R + 4, 4)}, v0 offset:8192', 'vo1')
    a.e(f's_lshl_b32 s6, s{sC}, 5')
    a.e(f's_add_u32 s6, s6, s{sG}')
    a.e('s_mulk_i32 s6, 192')
    a.e(f's_add_u32 s6, s6, 0x{VB[l]:x}')
    a.e(f's_cmp_lt_u32 s{sWAVE}, 4')
    a.e(f's_cselect_b32 s7, s6, 0x{OOB:x}')
    a.wait(lg='vo0')
    a.vmem(f'buffer_store_dwordx4 {vr(R, 4)}, v5, {sr(sWS, 4)}, s6 offen sc1', 'vo')
    a.wait(lg='vo1')
    a.vmem(f'buffer_store_dwordx4 {vr(R + 4, 4)}, v6, {sr(sWS, 4)}, s7 offen sc1', 'vo')


TW, Y, VF, PK, ID, XR, XM, XE = 16, 32, 48, 48, 48, 56, 16, 24
ACCX, XF = 16, 48
NR, NST = 12, 9
RING = [236 + 4 * k for k in range(5)] + [80, 84, 88] + [100, 104, 108, 112]
JIT = [92, 96]
ACCB = 16
HBUF = [96 + 4 * k for k in range(5)]
ACCA = 96
XFS = [56, 64, 72, 80, 88, 236, 244]


def dreg(ks):
    return 16 + 4 * ks if ks < 10 else 196 + 4 * (ks - 10)


def w2reg(f):
    return 116 + 4 * f


def gen(a, name):
    end = name + '_end'
    a.raw('.text')
    a.raw(f'.globl {name}')
    a.raw('.p2align 8')
    a.raw(f'.type {name},@function')
    a.label(name)
    a.e('s_cmp_ge_u32 s2, 256')
    a.e(f's_cbranch_scc1 {end}')
    a.stamp_init()
    a.stamp(0)
    a.e('s_load_dwordx16 s[8:23], s[0:1], 0')
    a.e('s_load_dwordx2 s[24:25], s[0:1], 64')
    a.e('s_load_dwordx2 s[26:27], s[0:1], 80')
    a.e('s_load_dwordx2 s[96:97], s[0:1], 72')
    a.e('v_lshrrev_b32 v1, 6, v0')
    a.e(f'v_readfirstlane_b32 s{sWAVE}, v1')
    a.e('v_and_b32 v1, 63, v0')
    if OPT.get('cpf', 1):
        a.e('s_getpc_b64 s[98:99]')
        a.label('Lpc')
        a.e('s_lshr_b32 s6, s2, 3')
        a.e('s_lshl_b32 s6, s6, 5')
        a.e('v_and_b32 v253, 31, v0')
        a.e('v_add_u32 v253, s6, v253')
        a.e('v_lshlrev_b32 v253, 7, v253')
        a.e(f'v_min_u32 v253, {end} - Lpc, v253')
        a.e('v_cmp_gt_u32 vcc, 32, v0')
        a.e('s_and_saveexec_b64 s[6:7], vcc')
        a.e('s_cbranch_execz Lpcd')
        a.e('global_load_dword v253, v253, s[98:99]')
        a.label('Lpcd')
        a.e('s_mov_b64 exec, -1')
    XM_ = OPT.get('xm', 0)
    a.e('s_and_b32 s6, s2, 7')
    a.e('s_lshr_b32 s7, s2, 3')
    a.e(f's_and_b32 s98, s6, {(1 << XM_) - 1}')
    a.e(f's_lshl_b32 s98, s98, {3 - XM_}')
    a.e(f's_and_b32 s99, s7, {(8 >> XM_) - 1}')
    a.e(f's_add_u32 s{sC}, s98, s99')
    a.e(f's_lshr_b32 s6, s6, {XM_}')
    a.e(f's_lshl_b32 s6, s6, {2 + XM_}')
    a.e(f's_lshr_b32 s7, s7, {3 - XM_}')
    a.e('s_add_u32 s101, s6, s7')
    a.e('s_lshr_b32 s6, s101, 1')
    a.e('s_sub_u32 s7, 32, s6')
    a.e('s_cmp_eq_u32 s6, 0')
    a.e('s_cselect_b32 s7, 16, s7')
    a.e('s_bitcmp1_b32 s101, 0')
    a.e(f's_cselect_b32 s{sG}, s7, s6')
    a.e('v_lshlrev_b32 v2, 4, v1')
    a.e('v_and_b32 v8, 15, v1')
    a.e('v_lshrrev_b32 v9, 4, v1')
    a.e('v_and_b32 v10, 31, v1')
    a.e('v_lshrrev_b32 v4, 5, v1')

    sX, sD, sW1, sW2, sCS = 56, 64, 68, 72, 12
    sWK, sROT = 54, 55
    SLOT0, SLOTB = 1024, 18432
    RS, MR, CS = 0, 256, 512
    W1L = SLOT0 + 6 * SLOTB
    WP1 = W1L + 16384
    W2S = WP1 + 14336
    TWL0 = W2S + 10240
    XRL0 = SLOT0 + 4 * SLOTB
    VT0 = SLOT0 + 5 * SLOTB
    vXA, vDA, vD2A, vF0, vF1, vO8, vSW = 240, 241, 242, 244, 245, 246, 247
    a.e(f'v_lshrrev_b32 v{vO8}, 3, v1')
    a.e(f'v_and_b32 v{vSW}, 7, v1')
    a.e(f'v_xor_b32 v{vSW}, v{vSW}, v{vO8}')
    a.e(f'v_lshlrev_b32 v{vSW}, 4, v{vSW}')
    a.e(f's_and_b32 s{sKT}, s{sWAVE}, 1')
    a.e(f's_lshr_b32 s{sMIR}, s{sWAVE}, 2')
    a.e(f's_bfe_u32 s{sRHO}, s{sWAVE}, 0x10001')
    a.e(f's_lshl_b32 s6, s{sKT}, 4')
    a.e(f's_lshl_b32 s7, s{sMIR}, 5')
    a.e('s_add_u32 s6, s6, s7')
    a.e(f's_lshl_b32 s7, s{sRHO}, 2')
    a.e('s_add_u32 s6, s6, s7')
    a.e(f'v_lshrrev_b32 v{vXA}, 2, v{vO8}')
    a.e(f'v_lshlrev_b32 v{vXA}, 3, v{vXA}')
    a.e(f'v_and_b32 v0, 3, v{vO8}')
    a.e(f'v_add3_u32 v{vXA}, v{vXA}, v0, s6')
    a.e(f'v_lshl_add_u32 v{vXA}, v{vXA}, 5, s{sG}')
    a.e('s_movk_i32 s62, 1280')
    a.e(f'v_mad_u32_u24 v{vXA}, v{vXA}, s62, v{vSW}')
    a.e(f's_mul_i32 s6, s{sC}, 40')
    a.e(f's_lshr_b32 s7, s{sWAVE}, 1')
    a.e('s_lshl_b32 s7, s7, 3')
    a.e('s_add_u32 s7, s7, s6')
    a.e(f'v_add_u32 v{vDA}, s7, v{vO8}')
    a.e('v_mov_b32 v0, 320')
    a.e(f'v_cmp_eq_u32 vcc, 0, v{vDA}')
    a.e(f'v_cndmask_b32 v{vDA}, v{vDA}, v0, vcc')
    a.e(f'v_mad_u32_u24 v{vDA}, v{vDA}, s62, v{vSW}')
    a.e('s_add_u32 s6, s6, 32')
    a.e(f'v_add_u32 v{vD2A}, s6, v{vO8}')
    a.e(f'v_mad_u32_u24 v{vD2A}, v{vD2A}, s62, v{vSW}')
    a.e(f's_lshl_b32 s6, s{sRHO}, 7')
    a.e(f'v_add_u32 v{vD2A}, s6, v{vD2A}')
    a.e(f's_lshl_b32 s{sWK}, s{sWAVE}, 10')
    a.e(f's_mul_i32 s63, s{sRHO}, {SLOTB}')
    a.e(f's_lshl_b32 s6, s{sKT}, 10')
    a.e('s_add_u32 s63, s63, s6')
    a.e(f's_add_u32 s98, s101, s{sC}')
    a.e('s_mul_i32 s99, s98, 52')
    a.e('s_lshr_b32 s99, s99, 8')
    a.e('s_mul_i32 s99, s99, 5')
    a.e('s_sub_u32 s98, s98, s99')
    a.e(f's_lshl_b32 s{sROT}, s98, 8')
    if not OPT.get('rot', 1):
        a.e(f's_mov_b32 s{sROT}, 0')
    a.e('s_waitcnt lgkmcnt(0)')
    a.srd(sX, P_X, S * D * 2)
    a.e(f's_cmp_eq_u32 s{sKT}, 1')
    a.e(f's_cselect_b32 s98, s{P_DI}, s{P_DR}')
    a.e(f's_cselect_b32 s99, s{P_DI + 1}, s{P_DR + 1}')
    a.srd(sD, 98, D * D * 2)

    def pair_off(p, dst):
        a.e(f's_add_u32 s{dst}, s{sROT}, {p * 256}')
        a.e(f's_cmp_ge_u32 s{dst}, 1280')
        a.e('s_cselect_b32 s18, 1280, 0')
        a.e(f's_sub_u32 s{dst}, s{dst}, s18')

    def dma_pair(p):
        sb = SLOT0 + (p % 3) * 2 * SLOTB
        pair_off(p, 99)
        L = a.newlab('Lex')
        a.e(f's_cmp_lg_u32 s{sMIR}, {p % 2}')
        a.e(f's_cbranch_scc1 {L}')
        a.e(f's_add_u32 m0, s63, {sb + 16384}')
        a.e(f'buffer_load_dwordx4 v{vD2A}, {sr(sD, 4)}, s99 offen lds')
        a.label(L)
        for h in range(2):
            a.e(f's_add_u32 m0, s{sWK}, {sb + h * (SLOTB - 128)}')
            a.vmem(f'buffer_load_dwordx4 v{vXA}, {sr(sX, 4)}, s99 offen offset:{h * 128} lds', ('c', p))
            a.e(f's_add_u32 m0, s{sWK}, {sb + h * (SLOTB - 128) + 8192}')
            a.vmem(f'buffer_load_dwordx4 v{vDA}, {sr(sD, 4)}, s99 offen offset:{h * 128} lds', ('c', p))

    a.stamp('karg')
    dma_pair(0)
    a.stamp('d0')
    a.srd(sW1, P_W1, D * F * 2)
    a.srd(sW2, P_W2, D * F * 2)
    a.srd(sWS, P_WS, WS_BYTES)
    a.srd(sOUT, P_OUT, S * D * 2)
    a.e(f's_cmp_eq_u32 s{sKT}, 1')
    a.e(f's_cselect_b32 s98, s{P_CI}, s{P_CR}')
    a.e(f's_cselect_b32 s99, s{P_CI + 1}, s{P_CR + 1}')
    a.e(f's_mov_b32 s8, s{P_CR}')
    a.e(f's_and_b32 s9, s{P_CR + 1}, 0xffff')
    a.e(f's_mov_b32 s10, 0x{S * S * 2:x}')
    a.e('s_mov_b32 s11, 0x20000')
    a.srd(sCS, 98, S * S * 2)
    a.e(f's_add_u32 s{sFL}, s{P_WS}, 0x{FLG:x}')
    a.e(f's_addc_u32 s{sFL + 1}, s{P_WS + 1}, 0')
    a.e(f's_sub_u32 s6, 64, s{sG}')
    a.e(f's_cmp_eq_u32 s{sG}, 0')
    a.e(f's_cselect_b32 s{sTAU1}, 32, s6')
    a.e(f's_mul_i32 s6, s{sC}, 7')
    a.e('s_min_u32 s100, s6, 48')
    a.e('s_lshl_b32 s6, s100, 1')
    a.e(f's_lshl_b32 s7, s{sWAVE}, 1')
    a.e(f's_add_u32 s{sU1}, s6, s7')
    a.e(f's_min_u32 s{sU1}, s{sU1}, 106')
    a.e(f's_cmp_lt_u32 s{sC}, 6')
    a.e(f's_cselect_b32 s{sU2}, 7, 6')
    a.e(f's_mul_i32 s{sGCM}, s{sG}, 81920')
    a.e(f's_lshl_b32 s6, s{sG}, 3')
    a.e(f's_add_u32 s7, s6, s{sC}')
    a.e('s_lshl_b32 s7, s7, 3')
    a.e(f's_add_u32 s7, s7, s{sWAVE}')
    a.e('s_lshl_b32 s7, s7, 7')
    a.e(f's_add_u32 s{sFOWN}, s7, 0x{FLG:x}')
    a.e(f's_add_u32 s7, s6, s{sWAVE}')
    a.e(f's_lshl_b32 s{sFSRC}, s7, 10')
    a.e(f's_sub_u32 s{sPG}, 32, s{sG}')
    a.e(f's_and_b32 s{sPG}, s{sPG}, 31')
    a.e(f's_lshl_b32 s7, s{sPG}, 3')
    a.e(f's_add_u32 s7, s7, s{sWAVE}')
    a.e(f's_lshl_b32 s{sFPAR}, s7, 10')
    a.e(f's_mul_i32 s{sW1B}, s{sU1}, 20480')
    a.e(f's_cmp_ge_u32 s{sWAVE}, s{sU2}')
    a.e(f's_cselect_b32 s{sW1B}, 0x{OOB:x}, s{sW1B}')
    a.e(f's_getreg_b32 s{sXCC}, hwreg(HW_REG_XCC_ID)')
    a.e(f's_and_b32 s{sXCC}, s{sXCC}, 15')
    a.e(f's_mul_i32 s6, s{sWAVE}, 7')
    a.e('s_min_u32 s6, s6, 48')
    a.e(f's_mul_i32 s7, s{sC}, 54')
    a.e('s_add_u32 s7, s7, s6')
    a.e(f's_mul_i32 s{sW2O}, s7, 5120')
    a.e(f's_add_u32 s{sW2O}, s{sW2O}, 0x{W2F:x}')
    a.e(f's_mul_i32 s{sHG}, s{sG}, {216 * 1024}')
    a.e('s_lshl_b32 s6, s6, 12')
    a.e(f's_add_u32 s{sHK}, s{sHG}, s6')
    a.e('v_lshlrev_b32 v3, 4, v8')
    a.e('v_lshl_add_u32 v3, v9, 10, v3')
    dma_pair(1)
    Lnn = a.newlab('Lnn')
    a.e('s_lshl_b32 s6, s2, 3')
    a.e(f's_add_u32 s6, s6, s{sWAVE}')
    a.e('s_cmp_lg_u32 s6, 7')
    a.e(f's_cbranch_scc1 {Lnn}')
    a.e(f's_load_dword s6, s[{sFL}:{sFL + 1}], 0x40000 glc')
    a.e('s_waitcnt lgkmcnt(0)')
    a.e('s_add_u32 s6, s6, 16')
    a.e('s_and_b32 s6, s6, -16')
    a.e('s_bitset1_b32 s6, 31')
    a.e('v_mov_b32 v0, s6')
    a.e('v_mov_b32 v5, 0')
    a.e('s_mov_b64 exec, 1')
    a.e(f's_mov_b32 s7, 0x{FLG + 0x40000:x}')
    a.e(f'buffer_store_dword v0, off, {sr(sWS, 4)}, s7 sc1')
    a.e('global_store_dword v5, v0, s[96:97] sc1')
    a.e('s_mov_b64 exec, -1')
    a.label(Lnn)

    def grow(vd, vloc):
        a.e(f'v_and_b32 v11, 31, v{vloc}')
        a.e(f'v_mov_b32 v12, s{sG}')
        a.e(f'v_mov_b32 v13, s{sTAU1}')
        a.e(f'v_cmp_le_u32 vcc, 32, v{vloc}')
        a.e('v_cndmask_b32 v12, v12, v13, vcc')
        a.e(f'v_lshl_add_u32 v{vd}, v11, 6, v12')

    def tw_dma(base):
        a.e(f's_lshr_b32 s6, s{sWAVE}, 1')
        a.e('s_lshl_b32 s6, s6, 4')
        a.e('v_lshrrev_b32 v0, 2, v1')
        a.e('v_add_u32 v0, s6, v0')
        grow(0, 0)
        a.e('v_and_b32 v11, 3, v1')
        a.e('v_lshlrev_b32 v11, 4, v11')
        a.e('v_lshl_add_u32 v0, v0, 12, v11')
        a.e(f's_lshl_b32 s6, s{sWAVE}, 10')
        a.e(f's_add_u32 m0, s6, {base}')
        a.vmem(f'buffer_load_dwordx4 v0, {sr(sCS, 4)}, 0 offen lds', 'twd')

    vXR0, vXR1, vT1, vT2, vCSA = 234, 235, 236, 237, 238
    for n, dst in ((0, vXR0), (8, vXR1)):
        a.e(f's_lshl_b32 s6, s{sWAVE}, 6')
        a.e(f's_add_u32 s6, s6, {n * 64}')
        a.e('v_add_u32 v0, s6, v1')
        a.e('v_mul_u32_u24 v7, 5462, v0')
        a.e('v_lshrrev_b32 v7, 16, v7')
        a.e('v_mul_u32_u24 v5, 12, v7')
        a.e('v_sub_u32 v0, v0, v5')
        grow(7, 7)
        a.e(f's_mul_i32 s6, s{sC}, 5')
        a.e('s_sub_u32 s7, 70, s6')
        a.e('v_add_u32 v5, s6, v0')
        a.e('v_add_u32 v6, s7, v0')
        a.e('v_cmp_le_u32 vcc, 5, v0')
        a.e('v_cndmask_b32 v5, v5, v6, vcc')
        a.e('v_cmp_eq_u32 vcc, 80, v5')
        a.e('v_cndmask_b32 v5, v5, 0, vcc')
        a.e('v_cmp_eq_u32 vcc, 11, v0')
        a.e('v_cndmask_b32 v5, v5, 40, vcc')
        a.e('v_mul_u32_u24 v7, 1280, v7')
        a.e(f'v_lshl_add_u32 v{dst}, v5, 4, v7')
    a.e(f'v_and_b32 v{vF0}, 7, v1')
    a.e(f'v_xor_b32 v{vF0}, v{vF0}, v9')
    a.e(f'v_lshlrev_b32 v{vF0}, 4, v{vF0}')
    a.e(f'v_lshl_add_u32 v{vF0}, v8, 7, v{vF0}')
    a.e(f'v_xor_b32 v{vF1}, 64, v{vF0}')
    PF, PF2 = 208, 224

    def side(job):
        if job == 'late':
            a.e(f's_lshr_b32 s6, s{sWAVE}, 1')
            a.e('s_lshl_b32 s7, s6, 4')
            a.e(f'v_add_u32 v5, s7, v{vO8}')
            a.e(f'v_lshl_add_u32 v5, v5, 17, v{vSW}')
            a.e('s_lshl_b32 s6, s6, 11')
            a.e(f's_lshl_b32 s7, s{sKT}, 13')
            a.e('s_add_u32 s6, s6, s7')
            a.e(f's_add_u32 m0, s6, {W1L}')
            a.vmem(f'buffer_load_dwordx4 v5, {sr(sCS, 4)}, 0 offen lds', 'w1')
            a.e(f's_add_u32 m0, s6, {W1L + 1024}')
            a.e('s_mov_b32 s7, 0x100000')
            a.vmem(f'buffer_load_dwordx4 v5, {sr(sCS, 4)}, s7 offen lds', 'w1')
            tw_dma(TWL0)
        if job == 'non':
            a.e('v_mov_b32 v252, 0')
            a.vmem('global_load_dword v252, v252, s[96:97] sc1', 'non')
            setflag(a, None, 5)
        if job == 'xr':
            L = a.newlab('Lx4')
            a.e(f's_cmp_ge_u32 s{sWAVE}, 4')
            a.e(f's_cbranch_scc1 {L}')
            a.e(f's_add_u32 m0, s{sWK}, {XRL0 + 8192}')
            a.e(f'buffer_load_dwordx4 v{vXR1}, {sr(sX, 4)}, 0 offen lds')
            a.label(L)
            a.e(f's_add_u32 m0, s{sWK}, {XRL0}')
            a.vmem(f'buffer_load_dwordx4 v{vXR0}, {sr(sX, 4)}, 0 offen lds', 'xrd')
        if job == 'nonc':
            L, Ld = a.newlab('Lno'), a.newlab('Lnd')
            a.wait(vm='non')
            a.e('s_mov_b32 s98, 0')
            a.label(L)
            a.e(f'v_readfirstlane_b32 s{sNON}, v252')
            a.e('s_nop 1')
            a.e(f's_cmp_lg_u32 s{sNON}, 0')
            a.e(f's_cbranch_scc1 {Ld}')
            a.e('v_mov_b32 v252, 0')
            a.e('global_load_dword v252, v252, s[96:97] sc1')
            a.e('s_waitcnt vmcnt(0)')
            a.e('s_add_u32 s98, s98, 1')
            a.e(f's_cmp_lt_u32 s98, {SPIN}')
            a.e(f's_cbranch_scc1 {L}')
            a.label(Ld)

    def mainloop(setaddr, read, mfma, wsh=None, hooks={}):
        a.stamp('p0iss')
        PW = OPT.get('pw', 2)
        for p in range(5):
            a.wait(vm=('c', p), lg='all')
            if p == 0:
                dma_pair(2)
                side('late')
            a.e('s_barrier')
            a.stamp(f'p0c{p}')
            setaddr(SLOT0 + (p % 3) * 2 * SLOTB, p)
            j = 4 * p
            if p == 0:
                for f in read(0) + read(1):
                    f()
            else:
                weave(a, mfma(j - 2), read(j))
                weave(a, mfma(j - 1), read(j + 1))
            if 1 <= p <= 2:
                dma_pair(p + 2)
            if p == 2:
                side('non')
            if p == 3:
                side('xr')
            if p == PW and wsh:
                wsh()
            if p in hooks:
                hooks[p]()
            a.wait(lg=('f', j))
            weave(a, mfma(j), read(j + 2))
            a.wait(lg=('f', j + 1))
            weave(a, mfma(j + 1), read(j + 3))
        for j in (18, 19):
            a.wait(lg=('f', j))
            weave(a, mfma(j), [])
        side('nonc')
        a.wait(vm='xrd')

    Lstat, Lcol, Lj0 = a.newlab('Lp0s'), a.newlab('Lp0c'), a.newlab('Lp0j')
    a.e(f's_cmp_eq_u32 s{sWAVE}, 7')
    a.e(f's_cbranch_scc1 {Lcol}')
    a.e(f's_cmp_ge_u32 s{sWAVE}, 5')
    a.e(f's_cbranch_scc1 {Lstat}')
    st0 = a.save()
    ACC, FR = 16, 32
    a.e(f's_lshl_b32 s60, s{sWAVE}, 11')
    a.e('s_add_u32 s60, s60, 8192')
    a.e(f's_mul_i32 s6, s{sC}, 5')
    a.e(f's_add_u32 s6, s6, s{sWAVE}')
    a.e('s_mul_i32 s6, s6, 20')
    a.e(f's_add_u32 s6, s6, s{sG}')
    a.e('s_lshl_b32 s6, s6, 10')
    a.e(f's_add_u32 s24, s6, 0x{DPF:x}')
    a.e(f's_lshr_b32 s6, s{sROT}, 6')
    a.e(f's_sub_u32 s25, s{sG}, s6')
    a.e('s_add_u32 s7, s25, 20')
    a.e(f's_cmp_lt_u32 s{sG}, s6')
    a.e('s_cselect_b32 s25, s7, s25')
    a.e(f's_cmp_ge_u32 s{sG}, 20')
    a.e('s_cselect_b32 s25, 63, s25')

    a.e('s_and_b32 s6, s25, 1')
    a.e('s_lshl_b32 s6, s6, 6')
    a.e(f'v_xor_b32 v243, s6, v{vF0}')
    a.e('s_bfe_u32 s6, s25, 0x10001')
    a.e(f's_mulk_i32 s6, {SLOTB}')
    a.e('s_add_u32 s6, s6, s60')
    a.e('v_add_u32 v243, s6, v243')
    a.e('s_lshr_b32 s25, s25, 2')

    def set_c(sb, p):
        a.e(f'v_add_u32 v248, {sb}, v{vF0}')
        a.e(f'v_add_u32 v249, {sb}, v{vF1}')
        a.e('v_add_u32 v250, s60, v248')
        a.e('v_add_u32 v251, s60, v249')
        L = a.newlab('Ldd')
        a.e(f's_cmp_lg_u32 s25, {p}')
        a.e(f's_cbranch_scc1 {L}')
        a.e(f'v_add_u32 v243, {sb}, v243')
        a.e('ds_read_b128 v[220:223], v243')
        a.label(L)

    def read_c(j):
        f, hk, o = FR + 20 * (j % 4), j % 2, ((j % 4) // 2) * SLOTB
        return [lambda: a.lds(f'ds_read_b128 {vr(f + 16, 4)}, v{250 + hk} offset:{o}', ('f', j))] + \
               [lambda rt=rt: a.lds(f'ds_read_b128 {vr(f + 4 * rt, 4)}, v{248 + hk} offset:{o + rt * 2048}', ('f', j)) for rt in range(4)]

    def mfma_c(j):
        f = FR + 20 * (j % 4)
        return [f'v_mfma_f32_16x16x32_bf16 {vr(ACC + 4 * rt, 4)}, {vr(f + 4 * rt, 4)}, {vr(f + 16, 4)}, {"0" if j == 0 else vr(ACC + 4 * rt, 4)}' for rt in range(4)]

    mainloop(set_c, read_c, mfma_c)
    WF, RSr, MRr = 112, [176, 180, 184, 188], [192, 196, 200, 204]
    wf0 = lambda mat, tt, ks: WF + ((mat * 4 + tt) * 2 + ks) * 4
    a.e(f'v_add_u32 v248, {W1L}, v{vF0}')
    a.e(f'v_add_u32 v249, {W1L}, v{vF1}')
    for tt in range(4):
        for ks in range(2):
            for mat in range(2):
                a.lds(f'ds_read_b128 {vr(wf0(mat, tt, ks), 4)}, v{248 + ks} offset:{mat * 8192 + tt * 2048}', 'wf')
    a.e('v_lshlrev_b32 v12, 4, v9')
    a.e(f's_lshl_b32 s6, s{sWAVE}, 6')
    a.e('v_lshl_add_u32 v13, v8, 2, s6')
    a.stamp('p0end')
    a.e('s_barrier')
    a.lds(f'ds_read_b32 v14, v13 offset:{CS}', 'st')
    for rt in range(4):
        a.lds(f'ds_read_b128 {vr(RSr[rt], 4)}, v12 offset:{RS + rt * 64}', 'st')
        a.lds(f'ds_read_b128 {vr(MRr[rt], 4)}, v12 offset:{MR + rt * 64}', 'st')
    a.e(f's_cmp_lt_u32 s{sG}, 20')
    a.e(f's_cselect_b32 s24, s24, 0x{OOB:x}')
    a.e(f'buffer_store_dwordx4 v[220:223], v2, {sr(sWS, 4)}, s24 offen sc1')
    stage1(a, ACC, RSr, MRr, 32, wf0, VT0)
    stC = a.save()
    a.e(f's_branch {Lj0}')

    a.label(Lstat)
    a.restore(st0)
    AS, AM, ONE, FS = 24, 32, 40, 44
    for r in range(4):
        a.e(f'v_mov_b32 v{ONE + r}, 0x3f803f80')
    a.e(f's_sub_u32 s60, s{sWAVE}, 5')
    a.e('s_lshl_b32 s60, s60, 12')
    a.e(f'v_add_u32 v250, s60, v{vF0}')
    a.e(f'v_add_u32 v251, s60, v{vF1}')

    WA = 128
    a.e(f's_and_b32 s6, s{sG}, 7')
    a.e('s_mul_i32 s98, s6, 5')
    a.e('s_mul_i32 s99, s6, 10')
    a.e('s_add_u32 s99, s99, 4')
    a.e(f's_bfe_u32 s7, s{sG}, 0x10003')
    a.e(f's_cmp_ge_u32 s{sG}, 16')
    a.e('s_cselect_b64 s[76:77], -1, 0')
    for n in range(7):
        a.e(f'v_add_u32 v0, {64 * n}, v1')
        a.e('v_mul_u32_u24 v5, 4682, v0')
        a.e('v_lshrrev_b32 v5, 16, v5')
        a.e('v_mul_u32_u24 v6, 14, v5')
        a.e('v_sub_u32 v0, v0, v6')
        a.e('v_lshrrev_b32 v6, 3, v5')
        a.e('v_add_u32 v7, s98, v6')
        a.e('v_lshrrev_b32 v11, 1, v6')
        a.e('v_mad_u32_u24 v11, v11, 5, s99')
        a.e('v_mov_b32 v12, s7')
        a.e('v_and_b32 v6, 1, v6')
        a.e('v_cndmask_b32 v7, v7, v11, s[76:77]')
        a.e('v_cndmask_b32 v6, v12, v6, s[76:77]')
        a.e('v_and_b32 v5, 7, v5')
        a.e('v_lshl_add_u32 v5, v7, 3, v5')
        a.e('v_sub_u32 v7, 640, v5')
        a.e('v_cmp_eq_u32 vcc, 1, v6')
        a.e('v_cndmask_b32 v5, v5, v7, vcc')
        if n == 0:
            a.e('v_mov_b32 v6, 320')
            a.e('v_cmp_eq_u32 vcc, 0, v5')
            a.e('v_cndmask_b32 v5, v5, v6, vcc')
            a.e('v_cmp_eq_u32 vcc, 640, v5')
            a.e('v_cndmask_b32 v5, v5, 0, vcc')
        a.e('v_and_b32 v5, 0x3ff, v5')
        a.e('v_mul_u32_u24 v5, 3456, v5')
        a.e(f'v_lshl_add_u32 v{WA + n}, v0, 4, v5')

    def wsh_s():
        a.e(f's_sub_u32 s6, s{sWAVE}, 5')
        a.e('s_mul_i32 s7, s6, 224')
        a.e('s_lshl_b32 s98, s100, 6')
        a.e('s_add_u32 s7, s7, s98')
        a.e(f's_cmp_lt_u32 s{sG}, 20')
        a.e(f's_cselect_b32 s7, s7, 0x{OOB:x}')
        a.e('s_mul_i32 s6, s6, 7168')
        for n in range(7):
            a.e(f's_add_u32 m0, s6, {WP1 + 1024 * n}')
            a.vmem(f'buffer_load_dwordx4 v{WA + n}, {sr(sW1, 4)}, s7 offen lds', 'wsh')

    def set_s(sb, p):
        a.e(f'v_add_u32 v248, {sb}, v250')
        a.e(f'v_add_u32 v249, {sb}, v251')

    def read_s(j):
        return [lambda rt=rt: a.lds(f'ds_read_b128 {vr(FS + 8 * (j % 4) + 4 * rt, 4)}, v{248 + j % 2} offset:{((j % 4) // 2) * SLOTB + rt * 2048}', ('f', j)) for rt in range(2)]

    def mfma_s(j):
        out = []
        for rt in range(2):
            f = vr(FS + 8 * (j % 4) + 4 * rt, 4)
            out.append(f'v_mfma_f32_16x16x32_bf16 {vr(AS + 4 * rt, 4)}, {f}, {f}, {"0" if j == 0 else vr(AS + 4 * rt, 4)}')
            out.append(f'v_mfma_f32_16x16x32_bf16 {vr(AM + 4 * rt, 4)}, {f}, {vr(ONE, 4)}, {"0" if j == 0 else vr(AM + 4 * rt, 4)}')
        return out

    mainloop(set_s, read_s, mfma_s, wsh_s)
    a.e('s_lshr_b32 s6, s60, 5')
    stats_finalize(a, AS, AM, 2, 12, 64, MR - RS, 'rs_mr')
    a.wait(lg='all')
    a.stamp('p0end')
    a.e('s_barrier')
    a.e(f's_cmp_ge_u32 s{sG}, 20')
    a.e(f's_cbranch_scc1 {Lj0}')
    a.e('v_bfe_u32 v5, v1, 2, 2')
    a.e('v_lshl_add_u32 v5, v9, 3, v5')
    a.e('v_mul_u32_u24 v5, 224, v5')
    a.e('v_and_b32 v0, 3, v1')
    a.e('v_lshl_add_u32 v5, v0, 3, v5')
    a.e(f's_sub_u32 s60, s{sWAVE}, 5')
    a.e('s_mul_i32 s60, s60, 7')
    a.e('s_lshl_b32 s6, s60, 10')
    a.e(f's_add_u32 s6, s6, {WP1}')
    a.e('v_add_u32 v5, s6, v5')
    a.wait(vm='wsh')
    for u in range(7):
        for rd in range(2):
            a.lds(f'ds_read_b64_tr_b16 {vr(16 + 4 * u + 2 * rd, 2)}, v5 offset:{rd * 4 * 224 + u * 32}', ('pf', u))
    a.e('s_lshl_b32 s6, s100, 1')
    a.e('s_add_u32 s60, s60, s6')
    a.e('s_mul_i32 s6, s60, 20')
    a.e(f's_add_u32 s6, s6, s{sG}')
    a.e('s_lshl_b32 s6, s6, 10')
    a.e(f's_min_u32 s98, s{sWAVE}, s{sC}')
    a.e('s_mov_b32 s99, 0x3f803f80')
    for u in range(7):
        a.wait(lg=('pf', u))
        a.e(f's_add_u32 s7, s6, {W1F + u * 20480}')
        if u >= 5:
            a.e('s_cmp_ge_u32 s98, 6')
            a.e(f's_cselect_b32 s7, 0x{OOB:x}, s7')
        a.e(f'buffer_store_dwordx4 {vr(16 + 4 * u, 4)}, v2, {sr(sWS, 4)}, s7 offen sc1')
        a.e(f'v_mov_b32 v{48 + u}, 0')
    a.e('v_mov_b32 v55, 0')
    for d in range(4):
        for u in range(7):
            a.e(f'v_dot2_f32_bf16 v{48 + u}, v{16 + 4 * u + d}, s99, v{48 + u}')
    a.e('s_nop 3')
    for u in range(0, 8, 2):
        a.e(f'v_permlane16_swap_b32 v{48 + u}, v{49 + u}')
    for u in range(0, 8, 2):
        a.e(f'v_add_f32 v{48 + u}, v{48 + u}, v{49 + u}')
    for u in (0, 4):
        a.e(f'v_permlane32_swap_b32 v{48 + u}, v{50 + u}')
    for u in (0, 4):
        a.e(f'v_add_f32 v{48 + u}, v{48 + u}, v{50 + u}')
    a.e(f's_mul_i32 s6, s{sG}, 6912')
    a.e('s_lshl_b32 s7, s60, 6')
    a.e('s_add_u32 s6, s6, s7')
    a.e(f's_add_u32 s6, s6, 0x{CSP:x}')
    a.e('v_lshlrev_b32 v5, 2, v1')
    a.e(f'buffer_store_dword v48, v5, {sr(sWS, 4)}, s6 offen sc1')
    a.e('s_cmp_ge_u32 s98, 6')
    a.e('s_cselect_b32 exec_lo, 0xffff, -1')
    a.e('s_cselect_b32 exec_hi, 0, 0xffff')
    a.e(f'buffer_store_dword v52, v5, {sr(sWS, 4)}, s6 offen offset:256 sc1')
    a.e('s_mov_b64 exec, -1')
    a.e(f's_branch {Lj0}')

    a.label(Lcol)
    a.restore(st0)
    AC, ONE, FC = 24, 44, 48
    for r in range(4):
        a.e(f'v_mov_b32 v{ONE + r}, 0x3f803f80')

    a.e('s_movk_i32 s7, 1120')
    for n in range(5):
        a.e(f'v_add_u32 v0, {64 * n}, v1')
        a.e('v_mul_u32_u24 v5, 6554, v0')
        a.e('v_lshrrev_b32 v5, 16, v5')
        a.e('v_lshlrev_b32 v0, 4, v0')
        a.e(f'v_mad_u32_u24 v{WA + n}, v5, s7, v0')

    def wsh_k():
        a.e(f's_mul_i32 s6, s{sG}, 40960')
        a.e(f's_mul_i32 s7, s{sC}, 160')
        a.e('s_add_u32 s6, s6, s7')
        a.e(f's_add_u32 s7, s6, {32 * 40960}')
        for t in range(2):
            for n in range(5):
                a.e(f's_mov_b32 m0, {W2S + t * 5120 + n * 1024}')
                a.vmem(f'buffer_load_dwordx4 v{WA + n}, {sr(sW2, 4)}, s{6 + t} offen lds', 'wsh')

    def set_k(sb, p):
        a.e(f'v_add_u32 v248, {sb + 8192}, v{vF0}')
        a.e(f'v_add_u32 v249, {sb + 8192}, v{vF1}')

    def read_k(j):
        return [lambda ct=ct: a.lds(f'ds_read_b128 {vr(FC + 20 * (j % 4) + 4 * ct, 4)}, v{248 + j % 2} offset:{((j % 4) // 2) * SLOTB + ct * 2048}', ('f', j)) for ct in range(5)]

    def mfma_k(j):
        return [f'v_mfma_f32_16x16x32_bf16 {vr(AC + 4 * ct, 4)}, {vr(ONE, 4)}, {vr(FC + 20 * (j % 4) + 4 * ct, 4)}, {"0" if j == 0 else vr(AC + 4 * ct, 4)}' for ct in range(5)]

    def w2_out():
        a.e('v_bfe_u32 v5, v1, 2, 2')
        a.e('v_lshl_add_u32 v5, v9, 3, v5')
        a.e('v_mul_u32_u24 v5, 160, v5')
        a.e('v_and_b32 v0, 3, v1')
        a.e('v_lshl_add_u32 v5, v0, 3, v5')
        a.e(f'v_add_u32 v5, {W2S}, v5')
        a.wait(vm='wsh')
        for u in range(10):
            for rd in range(2):
                a.lds(f'ds_read_b64_tr_b16 {vr(136 + 4 * u + 2 * rd, 2)}, v5 offset:{(u // 5) * 5120 + (u % 5) * 32 + rd * 640}', ('pf', u))
        a.e(f's_mul_i32 s6, s{sC}, 54')
        a.e(f's_add_u32 s6, s6, s{sG}')
        a.e('s_mul_i32 s6, s6, 5120')
        a.e(f's_add_u32 s6, s6, 0x{W2F:x}')
        for u in range(10):
            if u == 5:
                a.e(f's_cmp_ge_u32 s{sG}, 22')
                a.e(f's_cselect_b32 s6, 0x{OOB:x}, s6')
            a.wait(lg=('pf', u))
            a.e(f's_add_u32 s7, s6, {(u // 5) * 32 * 5120 + (u % 5) * 1024}')
            a.vmem(f'buffer_store_dwordx4 {vr(136 + 4 * u, 4)}, v2, {sr(sWS, 4)}, s7 offen sc1', 'w2o')

    EW = OPT.get('ew', 1)
    if EW:
        wsh_k()
        def w2_flag():
            side('nonc')
            a.wait(vm='w2o')
            setflag(a, PH_V[0], 5)
        if OPT.get('wf4', 1):
            mainloop(set_k, read_k, mfma_k, None, {2: w2_out, 4: w2_flag})
        else:
            mainloop(set_k, read_k, mfma_k, None, {2: w2_out})
            setflag(a, PH_V[0], 5)
    else:
        mainloop(set_k, read_k, mfma_k, wsh_k)
    a.e('v_lshlrev_b32 v12, 2, v8')
    for ct in range(5):
        a.lds(f'ds_write_b32 v12, v{AC + 4 * ct} offset:{CS + ct * 64}')
    a.wait(lg='all')
    a.stamp('p0end')
    a.e('s_barrier')
    if not EW:
        w2_out()
    a.e(f's_cmp_ge_u32 s{sG}, 8')
    a.e(f's_cbranch_scc1 {Lj0}')
    a.e(f's_lshl_b32 s6, s{sG}, 11')
    a.e(f's_add_u32 s7, s6, {W1L}')
    a.e(f'v_add_u32 v248, s7, v{vF0}')
    a.e(f'v_add_u32 v249, s7, v{vF1}')
    a.lds('ds_read_b128 v[16:19], v248', 'ws')
    a.lds('ds_read_b128 v[20:23], v249', 'ws')
    a.e(f's_lshl_b32 s7, s{sC}, 14')
    a.e('s_add_u32 s6, s6, s7')
    a.e(f's_add_u32 s6, s6, 0x{W1S:x}')
    a.e('s_mov_b32 s98, 0x05040100')
    a.e('s_mov_b32 s99, 0x07060302')
    a.wait(lg='ws')
    for half in range(2):
        for d in range(4):
            a.e(f'v_perm_b32 v{24 + 4 * half + d}, v{16 + 2 * d + 1}, v{16 + 2 * d}, s{98 + half}')
        a.e(f'buffer_store_dwordx4 {vr(24 + 4 * half, 4)}, v2, {sr(sWS, 4)}, s6 offen offset:{half * 1024} sc1')
    a.label(Lj0)
    a.e('s_nop 1')
    a.restore(stC)
    v_out_addr(a)
    if EW:
        a.e(f's_lshl_b32 s67, s{sC}, 10')
        a.e('s_add_u32 s67, s67, 896')
        pW = (253, 67, PH_V[0], 32, 13)
        poll_issue(a, *pW)
    a.wait(lg='all')
    a.e('s_barrier')
    a.stamp('p0vt')
    v_out(a, 0, VT0, 64)


    LSC = ' sc1'

    def xstore(text, tag, local):
        if not local:
            a.vmem(text + ' sc1', tag)
            return
        L, Lj = a.newlab('Lst'), a.newlab('Lsj')
        a.e('s_cmp_eq_u32 s26, 0')
        a.e(f's_cbranch_scc1 {L}')
        a.e(text + ' sc1')
        a.e(f's_branch {Lj}')
        a.label(L)
        a.vmem(text, tag)
        a.label(Lj)
        a.e('s_nop 1')

    def warm(vd, sbase, add, n, step=8192, lanes=None):
        a.e('v_lshlrev_b32 v0, 7, v1')
        for k in range(n):
            a.e(f's_add_u32 s64, s{sbase}, 0x{add + k * step:x}')
            a.vmem(f'buffer_load_dword v{vd}, v0, {sr(sWS, 4)}, s64 offen sc1', 'warm')

    LP = OPT.get('lp', 0)
    if LP:
        X1B[1] = X1B[0]
        HB[1] = HB[0]

    def w1load(n):
        a.e(f's_add_u32 s64, s{sW1B}, {n * 1024}')
        a.vmem(f'buffer_load_dwordx4 {vr(RING[n % NR], 4)}, v2, {sr(sWS, 4)}, s64 offen sc1', ('w1', n))

    def stash(n):
        a.e(f's_add_u32 m0, s69, {(n % NST) * 1024}')
        a.e(f's_add_u32 s64, s{sW1B}, {20480 + n * 1024}')
        a.vmem(f'buffer_load_dwordx4 v2, {sr(sWS, 4)}, s64 offen sc1 lds', ('ws', n))

    def w2load(f):
        a.e(f's_add_u32 s64, s{sW2O}, {(f // 4) * 4096}')
        if f >= 30:
            a.e(f's_cmp_ge_u32 s{sWAVE}, 6')
            a.e(f's_cselect_b32 s64, 0x{OOB:x}, s64')
        a.vmem(f'buffer_load_dwordx4 {vr(w2reg(f), 4)}, v2, {sr(sWS, 4)}, s64 offen offset:{(f % 4) * 1024} sc1', ('w2', f))

    def dest_row(vd):
        a.e(f's_lshl_b32 s6, s{sRHO}, 5')
        a.e(f'v_add_u32 v{vd}, s6, v10')
        a.e(f'v_sub_u32 v11, 63, v{vd}')
        a.e('v_sub_u32 v12, 32, v10')
        a.e('v_and_b32 v12, 31, v12')
        a.e('v_sub_u32 v13, 63, v10')
        a.e(f's_cmp_eq_u32 s{sRHO}, 0')
        a.e('s_cselect_b64 vcc, -1, 0')
        a.e('v_cndmask_b32 v12, v13, v12, vcc')
        a.e(f's_cmp_eq_u32 s{sG}, 0')
        a.e('s_cselect_b64 vcc, -1, 0')
        a.e('v_cndmask_b32 v11, v11, v12, vcc')
        a.e(f's_cmp_eq_u32 s{sMIR}, 1')
        a.e('s_cselect_b64 vcc, -1, 0')
        a.e(f'v_cndmask_b32 v{vd}, v{vd}, v11, vcc')

    def stage_all():
        a.e('v_mul_u32_u24 v0, 40960, v4')
        a.e('v_lshl_add_u32 v0, v10, 4, v0')
        a.e(f's_mul_i32 s6, s{sC}, 2560')
        a.e(f's_add_u32 s62, s{sGCM}, 0x{X2B:x}')
        for p in range(12):
            if p < 5:
                a.e(f's_add_u32 s64, s6, {p * 512}')
            elif p < 11:
                a.e(f's_sub_u32 s64, {(70 + p) * 512}, s6')
                if p == 10:
                    a.e(f's_cmp_eq_u32 s{sC}, 0')
                    a.e('s_cselect_b32 s64, 0, s64')
            else:
                a.e(f's_movk_i32 s64, {40 * 512}')
            a.e('s_add_u32 s64, s64, s62')
            a.e(f's_mov_b32 m0, {XRL1 + p * 1024}')
            a.vmem(f'buffer_load_dwordx4 v0, {sr(sWS, 4)}, s64 offen sc1 lds', 'xrd')
        a.e('v_lshrrev_b32 v0, 2, v1')
        a.e('v_lshlrev_b32 v0, 18, v0')
        a.e('v_and_b32 v11, 3, v1')
        a.e('v_lshl_add_u32 v0, v11, 4, v0')
        for w in range(8):
            rb = w >> 1
            a.e(f's_lshl_b32 s64, s{sG if rb < 2 else sTAU1}, 12')
            a.e(f's_add_u32 s64, s64, {(rb % 2) * 16 * 64 * 4096}')
            a.e(f's_mov_b32 m0, {TWL1 + w * 1024}')
            a.vmem(f'buffer_load_dwordx4 v0, {sr(sCS if w % 2 else 8, 4)}, s64 offen lds', 'twd')

    def a2_pre(l, hook=lambda: None, mid=lambda: None):
        xb, A, shB, twb = ((XRL0, 192, 4, TWL0), (XRL1, 16, 10, TWL1))[l]
        dest_row(5)
        a.e(f'v_mul_u32_u24 v7, {A}, v5')
        a.e(f'v_add_u32 v7, {xb}, v7')
        a.e(f's_lshl_b32 s6, s{sKT}, 2')
        a.e(f's_cmp_eq_u32 s{sMIR}, 1')
        a.e('s_cselect_b64 s[76:77], -1, 0')
        a.e(f's_cmp_eq_u32 s{sC}, 0')
        a.e('s_cselect_b32 s7, 11, 0')
        for h in range(2):
            a.e(f'v_add3_u32 v11, v4, s6, {2 * h}')
            a.e('v_min_u32 v11, 4, v11')
            a.e('v_sub_u32 v12, 9, v11')
            a.e('v_cndmask_b32 v12, v11, v12, s[76:77]')
            a.e(f'v_lshl_add_u32 v12, v12, {shB}, v7')
            a.lds(f'ds_read_b128 {vr(XM + 4 * h, 4)}, v12', 'xr')
            a.e('v_mov_b32 v13, s7')
            a.e('v_cmp_eq_u32 vcc, 0, v11')
            a.e('v_cndmask_b32 v13, v11, v13, vcc')
            a.e('v_sub_u32 v12, 10, v11')
            a.e('v_cndmask_b32 v12, v13, v12, s[76:77]')
            a.e(f'v_lshl_add_u32 v12, v12, {shB}, v7')
            a.lds(f'ds_read_u16 v{XE + h}, v12', 'xr')
        a.e('v_bfe_u32 v11, v1, 2, 1')
        a.e('v_and_b32 v12, 1, v1')
        a.e('v_lshlrev_b32 v12, 4, v12')
        a.e('v_mov_b32 v13, 0x3f80')
        a.e('v_lshlrev_b32 v12, v12, v13')
        a.e('v_cmp_eq_u32 vcc, v11, v4')
        a.e('v_cndmask_b32 v12, 0, v12, vcc')
        a.e('v_bfe_u32 v13, v1, 1, 1')
        a.e('v_bfe_u32 v11, v1, 3, 2')
        a.e('v_lshl_add_u32 v13, v11, 1, v13')
        for r in range(8):
            a.e(f'v_cmp_eq_u32 vcc, {r}, v13')
            a.e(f'v_cndmask_b32 v{ID + r}, 0, v12, vcc')
        mid()
        hook()
        a.wait(lg='xr')
        Lr, Lj = a.newlab('Lxr'), a.newlab('Lxj')
        a.e('v_mov_b32 v11, 0xffff')
        a.e(f's_cmp_eq_u32 s{sMIR}, 1')
        a.e(f's_cbranch_scc1 {Lr}')
        for k in range(2):
            m, o = XM + 4 * k, XR + 4 * k
            a.e(f'v_bfi_b32 v{o}, v11, v{XE + k}, v{m}')
            for d in range(1, 4):
                a.e(f'v_mov_b32 v{o + d}, v{m + d}')
        a.e(f's_branch {Lj}')
        a.label(Lr)
        for k in range(2):
            m, o = XM + 4 * k, XR + 4 * k
            a.e(f'v_bfi_b32 v{o}, v11, v{XE + k}, v{m + 3}')
            a.e(f'v_bfi_b32 v{o + 1}, v11, v{m + 3}, v{m + 2}')
            a.e(f'v_bfi_b32 v{o + 2}, v11, v{m + 2}, v{m + 1}')
            a.e(f'v_bfi_b32 v{o + 3}, v11, v{m + 1}, v{m}')
        a.label(Lj)
        a.e('v_lshrrev_b32 v11, 4, v10')
        a.e('v_lshlrev_b32 v11, 11, v11')
        a.e('v_lshl_add_u32 v11, v8, 6, v11')
        a.e('v_lshl_add_u32 v11, v4, 4, v11')
        a.e(f's_lshl_b32 s6, s{sRHO}, 12')
        a.e(f's_add_u32 s6, s6, {twb}')
        a.e('v_add_u32 v11, s6, v11')
        for ks in range(4):
            a.lds(f'ds_read_b128 {vr(TW + 4 * ks, 4)}, v11 offset:{(ks // 2) * 1024 + (ks % 2) * 32}', 'tw')
        a.e(f'v_mfma_f32_32x32x16_bf16 {vr(Y, 16)}, {vr(ID, 4)}, {vr(XR, 4)}, 0')
        a.e(f'v_mfma_f32_32x32x16_bf16 {vr(Y, 16)}, {vr(ID + 4, 4)}, {vr(XR + 4, 4)}, {vr(Y, 16)}')
        hook()
        a.e(f's_lshl_b32 s6, s{sC}, 2')
        a.e(f's_lshl_b32 s7, s{sMIR}, 5')
        a.e('s_add_u32 s6, s6, s7')
        a.e(f's_lshl_b32 s7, s{sC}, 1')
        a.e(f's_add_u32 s7, s7, s{sMIR}')
        a.e('s_add_u32 s7, s7, 64')
        a.e(f's_cmp_eq_u32 s{sKT}, 0')
        a.e('s_cselect_b32 s6, s6, s7')
        a.e('s_lshl_b32 s6, s6, 10')
        a.e('v_lshlrev_b32 v5, 4, v5')
        a.e('v_lshl_add_u32 v5, v4, 10, v5')
        a.e('v_add_u32 v5, s6, v5')
        a.e(f'v_add_u32 v6, {R1}, v5')
        a.e('s_cmp_eq_u32 s6, 32768')
        a.e('s_cselect_b32 s6, 0xffff, 0')
        a.e('v_mov_b32 v12, s6')
        a.e('v_cmp_eq_u32 vcc, 0, v4')
        a.e('v_cndmask_b32 v12, 0, v12, vcc')
        a.e('v_bfe_u32 v13, v1, 2, 2')
        a.e('v_lshl_add_u32 v13, v4, 3, v13')
        a.e('v_mul_u32_u24 v13, 192, v13')
        a.e('v_bfe_u32 v11, v1, 4, 1')
        a.e('v_lshlrev_b32 v11, 1, v11')
        a.e('v_and_b32 v0, 1, v1')
        a.e(f's_lshl_b32 s7, s{sKT}, 2')
        a.e('v_add3_u32 v11, v11, v0, s7')
        a.e('v_min_u32 v11, 4, v11')
        a.e('v_lshl_add_u32 v13, v11, 4, v13')
        a.e('v_bfe_u32 v11, v1, 1, 1')
        a.e('v_lshl_add_u32 v13, v11, 3, v13')
        a.e(f's_mul_i32 s6, s{sRHO}, 6144')
        a.e('s_add_u32 s6, s6, s58')
        a.e('v_add_u32 v13, s6, v13')
        a.e(f'v_mov_b32 v11, v{XR}')
        hook()
        a.wait(lg='tw')
        for r in range(8, 16):
            a.e(f'v_xor_b32 v{TW + r}, 0x80008000, v{TW + r}')

    def reduce_addr(l, second):
        a.e(f's_add_u32 s6, s{sWAVE}, {8 if second else 0}')
        a.e('s_cmp_ge_u32 s6, 5')
        a.e('s_cselect_b32 s7, 5, 0')
        a.e(f's_cselect_b32 s62, 0, {R1}')
        if l == 0:
            a.e('s_cselect_b32 s65, 40960, 0')
        else:
            a.e(f's_cselect_b32 s65, s{sTAU1}, s{sG}')
        a.e('s_sub_u32 s6, s6, s7')
        a.e('s_lshl_b32 s7, s6, 10')
        a.e('s_add_u32 s62, s62, s7')
        a.e('v_lshrrev_b32 v11, 4, v10')
        a.e('v_mul_u32_u24 v11, 5120, v11')
        a.e('v_lshl_add_u32 v11, v4, 9, v11')
        a.e('v_lshl_add_u32 v11, v8, 4, v11')
        a.e('v_add_u32 v11, s62, v11')
        a.e(f'v_add_u32 v13, {5 * PRV}, v11')
        a.e('s_lshl_b32 s6, s6, 1')
        a.e(f's_mul_i32 s7, s{sC}, 10')
        a.e('s_add_u32 s6, s6, s7')
        a.e('v_add_u32 v7, s6, v4')
        if l == 0:
            a.e('v_lshlrev_b32 v7, 9, v7')
            a.e('v_lshl_add_u32 v7, v10, 4, v7')
            a.e(f's_add_u32 s65, s65, s{sGCM}')
            a.e(f's_add_u32 s65, s65, 0x{X2B:x}')
        else:
            a.e('v_lshlrev_b32 v7, 4, v7')
            a.e(f's_mov_b32 s7, {64 * 1280}')
            a.e('v_mad_u32_u24 v7, v10, s7, v7')
            a.e('s_mulk_i32 s65, 1280')

    def reduce_item(l):
        SUM, RB = 56, 64
        for h in range(2):
            a.lds(f'ds_read_b128 {vr(SUM + 4 * h, 4)}, v11 offset:{h * 256}', ('p', 0))
        for p in range(1, 7):
            for h in range(2):
                b, o = (11, p * PRV) if p < 5 else (13, (p - 5) * PRV)
                a.lds(f'ds_read_b128 {vr(RB + 8 * (p - 1) + 4 * h, 4)}, v{b} offset:{o + h * 256}', ('p', p))
        for p in range(1, 8):
            a.wait(lg=('p', p))
            for r in range(0, 8, 2):
                a.e(f'v_pk_add_f32 {vr(SUM + r, 2)}, {vr(SUM + r, 2)}, {vr(RB + 8 * ((p - 1) % 6) + r, 2)}')
            if p == 1:
                for h in range(2):
                    a.lds(f'ds_read_b128 {vr(RB + 4 * h, 4)}, v13 offset:{2 * PRV + h * 256}', ('p', 7))
        for r in range(4):
            a.e(f'v_cvt_pk_bf16_f32 v{SUM + r}, v{SUM + 2 * r}, v{SUM + 2 * r + 1}')
        if l == 0:
            a.vmem(f'buffer_store_dwordx4 {vr(SUM, 4)}, v7, {sr(sWS, 4)}, s65 offen sc1', 'xst')
        else:
            a.vmem(f'buffer_store_dwordx4 {vr(SUM, 4)}, v7, {sr(sOUT, 4)}, s65 offen', 'xst')

    def lin(n, sl, lds_add, ssrc, src_add, tag):
        for k in range(n):
            if k % 4 == 0:
                a.e(f's_add_u32 m0, s{sl}, {lds_add + k * 1024}')
                a.e(f's_add_u32 s64, s{ssrc}, 0x{src_add + k * 1024:x}')
            a.vmem(f'buffer_load_dwordx4 v2, {sr(sWS, 4)}, s64 offen offset:{(k % 4) * 1024} sc1 lds', tag)

    def cnt_add(addr, vt):
        a.e(f'v_mov_b32 v{vt}, {addr}')
        a.e('v_mov_b32 v0, 1')
        a.e('s_mov_b64 exec, 1')
        a.lds(f'ds_add_u32 v{vt}, v0', 'cnt')
        a.e('s_mov_b64 exec, -1')

    def cnt_peek(addr, vt):
        a.e(f'v_mov_b32 v{vt}, {addr}')
        a.lds(f'ds_read_b32 v{vt}, v{vt}', 'peek')

    def cnt_wait(addr, vt, peeked=False):
        L, Ld = a.newlab('Lcw'), a.newlab('Lcd')
        if peeked:
            a.wait(lg='peek')
            a.e(f'v_cmp_gt_u32 vcc, 8, v{vt}')
            a.e(f's_cbranch_vccz {Ld}')
            st = a.save()
        a.e('s_mov_b32 s61, 0')
        a.label(L)
        a.e(f'v_mov_b32 v{vt}, {addr}')
        a.e(f'ds_read_b32 v{vt}, v{vt}')
        a.e('s_waitcnt lgkmcnt(0)')
        a.lg.clear()
        a.e(f'v_cmp_gt_u32 vcc, 8, v{vt}')
        a.e(f's_cbranch_vccz {Ld}')
        a.e('s_sleep 1')
        a.e('s_add_u32 s61, s61, 1')
        a.e(f's_cmp_lt_u32 s61, {SPIN}')
        a.e(f's_cbranch_scc1 {L}')
        a.label(Ld)
        if peeked:
            a.restore(st)

    GO, DONE = STATS + 528, STATS + 544

    def sig_set(base, vt):
        a.e(f'v_mov_b32 v{vt}, s56')
        a.lds(f'ds_write_b32 v{vt}, v{vt} offset:{base - 4}', 'sig')

    def sig_wait(base, vt, slp):
        L, Ld = a.newlab('Lgw'), a.newlab('Lgd')
        a.e('s_mov_b32 s61, 0')
        a.label(L)
        a.e(f'v_mov_b32 v{vt}, s56')
        a.e(f'ds_read_b32 v{vt}, v{vt} offset:{base - 4}')
        a.e('s_waitcnt lgkmcnt(0)')
        a.lg.clear()
        a.e(f'v_cmp_eq_u32 vcc, 0, v{vt}')
        a.e(f's_cbranch_vccz {Ld}')
        a.e(f's_sleep {slp}')
        a.e('s_add_u32 s61, s61, 1')
        a.e(f's_cmp_lt_u32 s61, {SPIN}')
        a.e(f's_cbranch_scc1 {L}')
        a.label(Ld)

    if OPT.get('abl_h'):
        a.e(f's_mov_b32 s{sHK}, 0x70000000')
    if OPT.get('abl_w1'):
        a.e(f's_mov_b32 s{sW1B}, 0x70000000')
    if OPT.get('abl_w2'):
        a.e(f's_mov_b32 s{sW2O}, 0x70000000')
    if OPT.get('abl_hs'):
        a.e(f's_mov_b32 s{sHG}, 0x70000000')
    bg = BG()
    a.e(f's_mul_i32 s68, s{sWAVE}, 5120')
    a.e(f's_mul_i32 s69, s{sWAVE}, {PRV}')
    a.e(f's_cmp_lt_u32 s{sC}, 4')
    a.e('s_cselect_b32 s58, 16384, 0')
    a.e(f's_add_u32 s58, s58, {R1 + 32768}')
    def pv0():
        NBW = OPT.get('bgw', 10)
        if EW:
            Ln, Lj = a.newlab('Lwn'), a.newlab('Lwj')
            a.wait(vm='poll')
            a.e(f's_add_u32 s59, s{sNON}, {PH_V[0]}')
            a.e('v_subrev_u32 v253, s59, v253')
            a.e('v_cmp_le_u32 vcc, 16, v253')
            a.e('s_mov_b32 s57, 0')
            a.e(f's_cbranch_vccnz {Ln}')
            a.e('s_mov_b32 s57, 1')
            st = a.save()
            for f in range(NBW):
                w2load(f)
            a.wait(vm='vo')
            a.e(f's_branch {Lj}')
            a.label(Ln)
            a.restore(st)
            a.wait(vm='vo')
            a.label(Lj)
        else:
            a.wait(vm='vo')
        a.e('s_barrier')
        a.stamp('PV0')
        setflag_w0(a, PH_V[0], 7)
        if EW:
            Lj = a.newlab('Lwj')
            a.e('s_cmp_eq_u32 s57, 1')
            a.e(f's_cbranch_scc1 {Lj}')
            poll(a, *pW)
            for f in range(NBW):
                w2load(f)
            a.label(Lj)
            a.stamp('pollW')
            for f in range(NBW, 30):
                bg.add(lambda f=f: w2load(f))
    a2_pre(0, lambda: bg.run(OPT.get('bgw2', 4)), pv0)

    for l in range(2):
        a.e(f's_lshl_b32 s67, s{sWAVE}, 15')
        a.e(f's_lshl_b32 s6, s{sC}, 10')
        a.e('s_add_u32 s67, s67, s6')
        pV = (7, 67, PH_V[l], 4, 13)
        bg.run(OPT.get('bgpv', 0))
        poll_issue(a, *pV)
        bg.run(OPT.get('bgpv2', 0))
        poll_check(a, *pV)
        if l == 0:
            def id_issue():
                a.e(f'v_mov_b32 v72, s{sFSRC}')
                a.e(f'v_mov_b32 v73, s{sFPAR}')
                a.e('v_cmp_eq_u32 vcc, 0, v1')
                a.e('v_cndmask_b32 v72, v73, v72, vcc')
                a.e(f's_mov_b32 s60, 0x{FLG:x}')
                a.vmem(f'buffer_load_dwordx2 v[72:73], v72, {sr(sWS, 4)}, s60 offen sc1', 'ids')
        a.stamp(f'pollV{l}')
        a.e(f's_mul_i32 s63, s{sWAVE}, 768')
        a.e('s_add_u32 s62, s63, s58')
        a.e('s_mov_b32 exec_hi, 0xffff')
        for rho in range(2):
            a.e(f's_lshl_b32 s6, s{sG if rho == 0 else sTAU1}, 3')
            a.e(f's_add_u32 s6, s6, s{sC}')
            a.e('s_mulk_i32 s6, 6144')
            a.e('s_add_u32 s6, s6, s63')
            a.e(f's_add_u32 s6, s6, 0x{VB[l]:x}')
            a.e(f's_add_u32 m0, s62, {rho * 6144}')
            a.vmem(f'buffer_load_dwordx4 v2, {sr(sWS, 4)}, s6 offen sc1 lds', 'v')
        a.e('s_mov_b64 exec, -1')
        if l == 0:
            id_issue()
        bg.run(OPT.get('bgv', 4))
        a.e('v_lshlrev_b32 v7, 3, v1')
        a.e(f'v_mov_b32 v{VF}, 0')
        a.e(f'v_mov_b32 v{VF + 1}, 0')
        a.lds(f'ds_write_b64 v7, {vr(VF, 2)} offset:{STATS + 256}', 'clr')
        a.wait(vm='v', lg='clr')
        a.e('s_barrier')
        a.stamp(f'V{l}')
        for ks in range(4):
            for rd in range(2):
                a.lds(f'ds_read_b64_tr_b16 {vr(VF + 4 * ks + 2 * rd, 2)}, v13 offset:{(16 * (ks % 2) + 4 * rd) * 192 + (ks // 2) * 80}', ('vf', ks))
        if l == 0:
            for n in range(NR):
                bg.add(lambda n=n: w1load(n))
                if n < NST:
                    bg.add(lambda n=n: stash(n))
            bg.run(OPT.get('bg0', 2))

        a.e(f's_add_u32 s63, s{sGCM}, 0x{X1B[l]:x}')
        a.e(f's_cmp_eq_u32 s{sKT}, 0')
        a.e('s_cselect_b32 s70, -1, 0')
        a.e(f's_cselect_b32 s71, s63, 0x{OOB:x}')
        for ks in range(4):
            a.wait(lg=('vf', ks))
            a.e(f'v_mfma_f32_32x32x16_bf16 {vr(Y, 16)}, {vr(VF + 4 * ks, 4)}, {vr(TW + 4 * ks, 4)}, {vr(Y, 16)}')
        for r in range(8):
            a.e(f'v_cvt_pk_bf16_f32 v{PK + r}, v{Y + 2 * r}, v{Y + 2 * r + 1}')
        a.e(f'v_bfi_b32 v{PK}, v12, v11, v{PK}')
        xstore(f'buffer_store_dwordx4 {vr(PK + 4, 4)}, v5, {sr(sWS, 4)}, s71 offen offset:2048', 'x1s', l == 1 and LP & 1)
        a.e('s_mov_b32 exec_hi, s70')
        xstore(f'buffer_store_dwordx4 {vr(PK, 4)}, v5, {sr(sWS, 4)}, s63 offen', 'x1s', l == 1 and LP & 1)
        a.lds(f'ds_write_b128 v6, {vr(PK, 4)}', 'x1w')
        a.e('s_mov_b32 exec_lo, s70')
        a.lds(f'ds_write_b128 v6, {vr(PK + 4, 4)} offset:2048', 'x1w')
        a.e('s_mov_b64 exec, -1')
        a.stamp(f'x1st{l}')
        bg.run(OPT.get('bgx0', 4 if l == 0 else 3))
        a.wait(vm='x1s')
        a.e('s_barrier')
        a.stamp(f'X1s{l}')
        setflag_w0(a, PH_X1[l], 7)
        if l == 0:
            L, Ld = a.newlab('Lidp'), a.newlab('Lidd')
            a.e(f's_add_u32 s59, s{sNON}, {PH_V[0]}')
            a.wait(vm='ids')
            a.e('s_mov_b32 s61, 0')
            a.label(L)
            a.e('v_subrev_u32 v72, s59, v72')
            a.e('v_cmp_le_u32 vcc, 16, v72')
            a.e(f's_cbranch_vccz {Ld}')
            st = a.save()
            id_issue()
            a.restore(st)
            a.e('s_waitcnt vmcnt(0)')
            a.e('s_add_u32 s61, s61, 1')
            a.e(f's_cmp_lt_u32 s61, {SPIN}')
            a.e(f's_cbranch_scc1 {L}')
            a.e('v_mov_b32 v73, -1')
            a.label(Ld)
            a.e('s_nop 0')
            a.e('v_readlane_b32 s6, v73, 0')
            a.e('v_readlane_b32 s7, v73, 1')
            for r, sf in ((6, sFSRC), (7, sFPAR)):
                a.e(f's_cmp_eq_u32 s{r}, s{sXCC}')
                a.e(f's_cselect_b32 s{r}, 0x{LOC if OPT.get("loc", 1) else 0:x}, 0')
                a.e(f's_add_u32 s{sf}, s{sf}, s{r}')
            a.e('s_and_b32 s6, s6, s7')
            a.e('s_cselect_b32 s6, 0, 1')
            a.e(f'v_mov_b32 v72, {STATS + 520}')
            a.e('v_mov_b32 v73, s6')
            a.lds('ds_or_b32 v72, v73', 'idw')
        CP = 16
        if l == 0:
            a.e(f's_lshl_b32 s6, s{sU1}, 6')
            a.e('v_lshl_add_u32 v7, v10, 2, s6')
            a.e('s_movk_i32 s7, 6912')
            a.e('v_mad_u32_u24 v7, v4, s7, v7')
            for n in range(10):
                a.e(f's_mov_b32 s7, 0x{CSP + n * 2 * 6912:x}')
                a.vmem(f'buffer_load_dword v{CP + n}, v7, {sr(sWS, 4)}, s7 offen sc1', 'cs')
        bg.run(OPT.get('bgx1', 3))
        pX = (7, sFSRC, PH_X1[l], 1)
        poll_issue(a, *pX)
        RSC, RA = 2 * PRV + 9216, 37
        Lw7 = a.newlab('Lw7')
        a.e(f's_cmp_lg_u32 s{sWAVE}, 7')
        a.e(f's_cbranch_scc1 {Lw7}')
        if True:
            a.e(f's_cmp_ge_u32 s{sC}, 4')
            a.e('s_cselect_b64 s[70:71], -1, 0')
            a.e('v_and_b32 v11, 7, v8')
            a.e('v_sub_u32 v12, 8, v11')
            a.e('v_cndmask_b32 v12, v11, v12, s[70:71]')
            a.e('v_lshrrev_b32 v13, 3, v8')
            a.e('v_add_u32 v0, 2, v13')
            a.e('v_cmp_eq_u32 vcc, 0, v11')
            a.e('v_cndmask_b32 v12, v12, 0, vcc')
            a.e('v_cndmask_b32 v13, v13, v0, vcc')
            a.e('v_and_b32 v0, 1, v12')
            a.e('v_lshlrev_b32 v0, 4, v0')
            a.e('v_mov_b32 v36, 0x3f80')
            a.e('v_lshlrev_b32 v0, v0, v36')
            a.e('v_cmp_eq_u32 vcc, v13, v9')
            a.e('v_cndmask_b32 v0, 0, v0, vcc')
            a.e('v_lshrrev_b32 v12, 1, v12')
            for r in range(4):
                a.e(f'v_cmp_eq_u32 vcc, {r}, v12')
                a.e(f'v_cndmask_b32 v{32 + r}, 0, v0, vcc')
            a.lds(f'ds_write_b128 v2, v[32:35] offset:{RSC}', 'rw')
            a.e(f'v_lshlrev_b32 v{RA}, 2, v1')
            a.e(f's_mul_i32 s6, s{sC}, 10')
            a.e('v_cmp_le_u32 s[72:73], 2, v9')
            for ft in range(5):
                a.e('v_and_b32 v11, 1, v9')
                a.e(f'v_add3_u32 v11, v11, s6, {2 * ft}')
                a.e('v_sub_u32 v12, 119, v11')
                a.e('v_cndmask_b32 v12, v11, v12, s[70:71]')
                a.e('v_sub_u32 v13, 120, v11')
                a.e('v_cndmask_b32 v13, v11, v13, s[70:71]')
                if ft == 0:
                    a.e('v_cmp_eq_u32 vcc, 0, v13')
                    a.e('v_cndmask_b32 v13, v13, 40, vcc')
                    a.e('v_cmp_eq_u32 vcc, 80, v13')
                    a.e('v_cndmask_b32 v13, v13, 0, vcc')
                a.e('v_cndmask_b32 v12, v12, v13, s[72:73]')
                a.e('v_mul_u32_u24 v13, 13108, v12')
                a.e('v_lshrrev_b32 v13, 16, v13')
                a.e('v_sub_u32 v11, v12, v13')
                a.e('v_mul_u32_u24 v0, 5, v13')
                a.e('v_sub_u32 v12, v12, v0')
                a.e('v_and_b32 v0, 7, v13')
                a.e('v_lshrrev_b32 v13, 3, v13')
                a.e('v_lshl_add_u32 v13, v0, 1, v13')
                a.e('v_add_u32 v13, 64, v13')
                a.e('v_cmp_eq_u32 vcc, 4, v12')
                a.e('v_cndmask_b32 v11, v11, v13, vcc')
                a.e('v_lshlrev_b32 v11, 10, v11')
                a.e('v_lshl_add_u32 v11, v8, 4, v11')
                a.e(f'v_add_u32 v11, {R1}, v11')
                a.lds(f'ds_write_b32 v{RA}, v11 offset:{RSC + PRV + (ft // 4) * PRV + (ft % 4) * 256}', 'rw')
        a.label(Lw7)
        poll_check(a, *pX)
        a.stamp(f'pollX1{l}')
        a.e(f's_lshl_b32 s6, s{sWAVE}, 12')
        a.e('s_lshr_b32 s7, s6, 1')
        a.e('s_add_u32 s66, s63, s6')
        a.e('s_add_u32 s57, s63, s7')
        a.e(f's_cmp_eq_u32 s{sWAVE}, s{sC}')
        a.e(f's_cselect_b32 s66, 0x{OOB:x}, s66')
        a.e(f's_cselect_b32 s57, 0x{OOB:x}, s57')
        a.e('s_cselect_b32 s67, 0x14000, s6')
        a.e('s_cselect_b32 s56, 0x14000, s7')
        lin(4, 67, R1, 66, 0, ('x1', 0))
        if l == 0:
            for n in range(1, 10):
                a.e(f'v_add_f32 v{CP}, v{CP}, v{CP + n}')
            a.e(f'v_mov_b32 v15, v{CP}')
            a.e(f'v_permlane32_swap_b32 v{CP}, v15')
            a.e(f'v_add_f32 v15, v{CP}, v15')
        a.e(f's_lshl_b32 s6, s{sWAVE}, 7')
        a.e('v_lshl_add_u32 v7, v10, 2, s6')
        a.lds(f'ds_write_b32 v7, v15 offset:{CSS}', 'csw')
        a.e(f'v_add_u32 v5, {R1}, v3')
        a.e(f'v_add_u32 v6, {R1 + 40960}, v3')
        if OPT.get('x1o', 0):
            a.e('s_waitcnt vmcnt(3)')
        lin(4, 67, R1 + 32768, 66, 32768, ('x1', 1))
        lin(2, 56, R1 + 65536, 57, 65536, ('x1', 1))
        a.wait(vm=('x1', 0), lg='all')
        a.e('s_barrier')
        a.stamp(f'B1{l}')
        if l == 0:
            a.e('ds_read_b32 v73, v72')
            a.e('s_waitcnt lgkmcnt(0)')
            a.e('v_readfirstlane_b32 s26, v73')
        LS, Lid, Lg2, Ljoin = (a.newlab(x) for x in ('LS', 'Lid', 'Lg2', 'Ljoin'))
        a.e(f's_cmp_eq_u32 s{sWAVE}, 7')
        a.e(f's_cbranch_scc1 {LS}')
        a.e(f's_cmp_ge_u32 s{sWAVE}, s{sU2}')
        a.e(f's_cbranch_scc1 {Lid}')
        st0 = a.save()
        q = list(bg.q)
        bg.q = []
        assert l == 1 or not EW or ('w2', 29) in a.seen
        NW2 = OPT.get('nw2', 20)
        need2 = list(range(30)) if l == 0 and not EW else []

        def xaddr(ks, rt):
            return (5, ks * 4096 + rt * 256) if ks < 10 else (6, (ks - 10) * 4096 + rt * 256)

        def xreads(n, nst=2):
            out = []
            for rt in range(4):
                b, o = xaddr(n, rt)
                out.append(lambda rt=rt, b=b, o=o: a.lds(f'ds_read_b128 {vr(XF + 16 * (n % nst) + 4 * rt, 4)}, v{b} offset:{o}', ('xf', n)))
            return out

        EP = XF

        def epi_reads():
            a.e('v_lshlrev_b32 v7, 2, v8')
            for rt in range(4):
                a.lds(f'ds_read_b32 v{EP + 12 + rt}, v7 offset:{STATS + 256 + rt * 64}', 'st')
            for rt in range(4):
                a.lds(f'ds_read_b32 v{EP + 8 + rt}, v7 offset:{STATS + rt * 64}', 'st')

        p1 = (11, sFSRC, PH_H[l], 3, 7, 0)
        p2 = (13, sFSRC, PH_H[l], 4, 7, 3)

        young = {'n': 0}
        orig_vmem = a.vmem

        def vmem_cnt(s, tag=None):
            young['n'] += 1
            orig_vmem(s, tag)

        def ack_and_flag(slot):
            a.e(f's_waitcnt vmcnt({young["n"]})')
            a.stamp(f'ack{slot}')
            del a.vm[:max(0, len(a.vm) - young['n'])]
            a.vmem = orig_vmem
            setflag(a, slot, 12)

        acc = lambda rt, ft: vr(ACCB + 4 * (rt * 5 + ft), 4)
        seq = [(s, rt) for s in range(3) for rt in range(4)] + [(s, rt) for s in range(3, 7) for rt in (0, 1)] + [(s, rt) for rt in (2, 3) for s in range(3, 7)]
        hb = lambda z: vr(HBUF[(z + 1) % 5], 4)

        def hread(z):
            if z < 4 or z >= len(seq):
                return
            s, rt = seq[z]
            if z < 12:
                a.wait(vm=('h', s))
                a.lds(f'ds_read_b128 {hb(z)}, v5 offset:{(s - 1) * 4096 + rt * 256}', ('hz', z))
            else:
                hf = rt // 2
                a.wait(vm=('h2', hf, s))
                a.lds(f'ds_read_b128 {hb(z)}, v{5 if hf else 6} offset:{(s - 3) * 2048 + (rt % 2) * 256}', ('hz', z))

        def zmf(z, first=False, fill=()):
            s, rt = seq[z]
            if z < 4:
                a.wait(vm=[('h', 0)] + [('w2', k) for k in range(5)])
            else:
                a.wait(vm=[('w2', 5 * s + k) for k in range(5)], lg=('hz', z))
            weave(a, [f'v_mfma_f32_16x16x32_bf16 {acc(rt, ft)}, {vr(w2reg(5 * s + ft), 4)}, {hb(z)}, {"0" if first else acc(rt, ft)}' for ft in range(5)], fill)

        PR = {0: (1, 2, 1), 1: (2, 1, 0), 2: (1, 1, 0), 3: (1, 0, 0)}[OPT.get('pr', 1)]

        def guarded(nwaves, frs):
            Lf = a.newlab('Lf')
            a.e(f's_cmp_ge_u32 s{sWAVE}, {nwaves}')
            a.e(f's_cbranch_scc1 {Lf}')
            st = a.save()
            for f in frs:
                w2load(f)
            seen = set(a.seen)
            a.restore(st)
            a.seen = seen
            a.label(Lf)

        def usread(n):
            a.wait(vm=('ws', n))
            a.lds(f'ds_read_b128 {vr(JIT[n % 2], 4)}, v13 offset:{(n % NST) * 1024}', ('us', n))

        def h1_all():
            a.e(f's_add_u32 s64, s{sHK}, 0x{HB[l]:x}')
            for rt in range(4):
                a.vmem(f'buffer_load_dwordx4 {vr(HBUF[rt + 1], 4)}, v3, {sr(sWS, 4)}, s64 offen offset:{rt * 256} sc1', ('h', 0))
            lin(4, 69, 0, sHK, HB[l] + 4096, ('h', 1))
            lin(4, 69, 4096, sHK, HB[l] + 8192, ('h', 2))

        def gemm(late, q, qlow=False):
            pw1, pws = [NR], [NST]
            a.e('v_add_u32 v13, s69, v2')
            for f in xreads(0):
                f()
            usread(0)
            for n in range(20):
                if n == 7:
                    cnt_wait(CNT1, 7, True)
                a.wait(vm=('w1', n), lg=[('xf', n), ('us', n)])
                mf = []
                for h in range(2):
                    for rt in range(4):
                        ac = vr(ACCX + 16 * h + 4 * rt, 4)
                        w = RING[n % NR] if h == 0 else JIT[n % 2]
                        mf.append(f'v_mfma_f32_16x16x32_bf16 {ac}, {vr(w, 4)}, {vr(XF + 16 * (n % 2) + 4 * rt, 4)}, {"0" if n == 0 else ac}')
                fl = []
                if n == 6:
                    fl.append(lambda: cnt_peek(CNT1, 7))
                if n + 1 < 20:
                    fl += [lambda: usread(n + 1)] + xreads(n + 1)
                nq = 0
                while q and nq < 3 and not qlow:
                    fl.append(q.pop(0))
                    nq += 1
                if not q or qlow:
                    while pws[0] < 20 and pws[0] - NST <= n and nq < 2:
                        fl.append(lambda k=pws[0]: stash(k))
                        pws[0] += 1
                        nq += 1
                    while pw1[0] < 20 and pw1[0] - NR <= n and nq < 3:
                        fl.append(lambda k=pw1[0]: w1load(k))
                        pw1[0] += 1
                        nq += 1
                while q and nq < 3 and qlow:
                    fl.append(q.pop(0))
                    nq += 1
                if late and n == OPT.get('npi', 15):
                    fl.append(lambda: poll_issue(a, *p1))
                if n == 19:
                    def ep():
                        a.e(f's_lshl_b32 s6, s{sWAVE}, 7')
                        a.e('v_lshl_add_u32 v7, v9, 4, s6')
                        for h in range(2):
                            a.lds(f'ds_read_b128 {vr(EP + 4 * h, 4)}, v7 offset:{CSS + h * 64}', 'csr')
                        epi_reads()
                    fl = [ep]
                weave(a, mf, fl)
                if n == OPT.get('nca', 3) and not late:
                    a.wait(vm=('x1', 1))
                    cnt_add(CNT1, 7)
            a.stamp(f'gend{l}')
            prio(a, 3)
            a.e(f's_lshl_b32 s65, s{sU1}, 11')
            a.e(f's_add_u32 s65, s65, s{sHG}')
            a.e(f's_add_u32 s65, s65, 0x{HB[l]:x}')
            L, Ld = a.newlab('Lsw'), a.newlab('Lsd')
            a.e('s_mov_b32 s61, 0')
            a.label(L)
            a.e('s_waitcnt lgkmcnt(0)')
            a.lg.clear()
            a.e(f'v_min_u32 v7, v{EP + 12}, v{EP + 13}')
            a.e(f'v_min3_u32 v7, v7, v{EP + 14}, v{EP + 15}')
            a.e('v_cmp_eq_u32 vcc, 0, v7')
            a.e(f's_cbranch_vccz {Ld}')
            a.e('s_sleep 1')
            epi_reads()
            a.lg.clear()
            a.e('s_add_u32 s61, s61, 1')
            a.e(f's_cmp_lt_u32 s61, {SPIN}')
            a.e(f's_cbranch_scc1 {L}')
            a.e('s_waitcnt lgkmcnt(0)')
            a.label(Ld)
            a.e('v_lshlrev_b32 v7, 10, v4')
            a.e('v_lshl_add_u32 v7, v10, 4, v7')
            for h in range(2):
                for pr in range(2):
                    b = ACCX + 16 * h + 8 * pr
                    if OPT.get('pk', 0):
                        for r in range(0, 8, 2):
                            sel = 'op_sel:[0,0,0] op_sel_hi:[0,1,1]' if r < 4 else 'op_sel:[1,0,0] op_sel_hi:[1,1,1]'
                            a.e(f'v_pk_fma_f32 {vr(b + r, 2)}, {vr(EP + 8 + 2 * pr, 2)}, {vr(EP + 4 * h + r % 4, 2)}, {vr(b + r, 2)} {sel} neg_lo:[1,0,0] neg_hi:[1,0,0]')
                        for r in range(0, 8, 2):
                            sel = 'op_sel:[0,0] op_sel_hi:[1,0]' if r < 4 else 'op_sel:[0,1] op_sel_hi:[1,1]'
                            a.e(f'v_pk_mul_f32 {vr(b + r, 2)}, {vr(b + r, 2)}, {vr(EP + 12 + 2 * pr, 2)} {sel}')
                    else:
                        for r in range(8):
                            a.e(f'v_fma_f32 v{b + r}, -v{EP + 8 + 2 * pr + r // 4}, v{EP + 4 * h + r % 4}, v{b + r}')
                        for r in range(8):
                            a.e(f'v_mul_f32 v{b + r}, v{b + r}, v{EP + 12 + 2 * pr + r // 4}')
                    for r in range(4):
                        a.e(f'v_cvt_pk_bf16_f32 v{b + r}, v{b + 2 * r}, v{b + 2 * r + 1}')
                    for r in range(4):
                        a.e(f'v_pk_max_i16 v{b + r}, v{b + r}, 0')
                    a.e(f'v_permlane16_swap_b32 v{b}, v{b + 2}')
                    a.e(f'v_permlane16_swap_b32 v{b + 1}, v{b + 3}')
                    xstore(f'buffer_store_dwordx4 {vr(b, 4)}, v7, {sr(sWS, 4)}, s65 offen offset:{h * 2048 + pr * 512}', 'hst', LP & 4)
            a.stamp(f'epi{l}')
            cnt_add(CNT2, 7)

        def h2one(hf, s, k):
            a.e(f's_add_u32 m0, s69, {(R1 if hf == 0 else 0) + (s - 3) * 2048 + k * 1024}')
            a.e(f's_add_u32 s64, s{sHK if s < 6 else 57}, 0x{HB[l] + s * 4096 + k * 2048 + hf * 512:x}')
            a.vmem(f'buffer_load_dwordx4 v12, {sr(sWS, 4)}, s64 offen sc1 lds', ('h2', hf, s))

        def pwrite(t):
            a.lds(f'ds_write_b128 v{11 if t < 10 else 13}, {vr(ACCB + 4 * t, 4)} offset:{(t % 10) * 1024}', 'pw')

        def dload(ks):
            a.e(f's_add_u32 s64, s66, {ks * 1024}')
            a.vmem(f'buffer_load_dwordx4 {vr(dreg(ks), 4)}, v2, {sr(sWS, 4)}, s64 offen sc1', 'd')


        state = {}

        def b2_first(first, early):
            a.e('v_add_u32 v5, s69, v3')
            a.e(f's_cmp_ge_u32 s{sWAVE}, 6')
            a.e(f's_cselect_b32 s57, 0x70000000, s{sHK}')
            ZI, ZP = (OPT.get('zie', 9), 12) if early else (0, OPT.get('zp', 4))
            prio(a, PR[0])
            nr = 4
            fq = []
            for z in range(13):
                if z == ZI:
                    poll_issue(a, *p2)
                if z == ZP:
                    poll_check(a, *p2)
                    a.stamp(f'pollB{l}')
                    cnt_wait(CNT2, 12)
                    a.e('v_lshlrev_b32 v12, 10, v4')
                    a.e('v_lshl_add_u32 v12, v10, 4, v12')
                    fq = [lambda s=s, k=k: h2one(0, s, k) for s in range(3, 7) for k in range(2)]
                    for _ in range(4):
                        fq.pop(0)()
                if z == 12:
                    break
                fill = []
                while nr <= min(z + 4, 11) and z >= 1:
                    fill.append(lambda t=nr: hread(t))
                    nr += 1
                for _ in range(2):
                    if fq:
                        fill.append(fq.pop(0))
                if early and z >= 4 and z - 4 < 5:
                    fill.append(lambda f=30 + z - 4: w2load(f))
                zmf(z, first and z < 4, fill)
            while fq:
                fq.pop(0)()
            if not early:
                for f in range(30, 35):
                    w2load(f)
            a.stamp(f'b2h1_{l}')


        def early_tail(first):
            if l == 1 and OPT.get('bearly', 0):
                guarded(5, range(20, 30))
            for f in need2:
                w2load(f)
            poll(a, *p1)
            h1_all()
            a.stamp(f'pollA{l}')
            b2_first(first, True)

        Llate = a.newlab('Llate')
        a.e(f's_cmp_ge_u32 s{sWAVE}, 3')
        a.e(f's_cbranch_scc1 {Llate}')
        prio(a, 3)
        gemm(False, list(q))
        a.wait(vm='hst')
        a.stamp(f'ackH{l}')
        a.label(Lg2)
        setflag(a, PH_H[l], 12)
        early_tail(True)
        stE = a.save()
        a.e(f's_branch {Ljoin}')

        a.label(Llate)
        a.restore(st0)
        prio(a, 2)
        a.wait(vm=('x1', 1))
        cnt_add(CNT1, 7)
        a.e(f's_sleep {OPT.get("lsl", 2)}')
        for f in q:
            f()
        for f in need2[:OPT.get('nl0', 10)]:
            w2load(f)
        if l == 1 and OPT.get('bearly', 0):
            guarded(5, range(20, 30))
        gemm(True, [lambda f=f: w2load(f) for f in need2[OPT.get('nl0', 10):]], True)
        poll_check(a, *p1) if False else None
        Lr, Lr2 = a.newlab('Lr'), a.newlab('Lr2')
        a.e(f's_add_u32 s59, s{sNON}, {PH_H[l]}')
        a.wait(vm='poll')
        a.e('v_subrev_u32 v11, s59, v11')
        a.e('v_cmp_le_u32 vcc, 16, v11')
        a.e(f's_cbranch_vccnz {Lr}')
        st = a.save()
        h1_all()
        a.wait(vm='hst')
        a.stamp(f'ackH{l}')
        setflag(a, PH_H[l], 12)
        a.e(f's_branch {Lr2}')
        a.label(Lr)
        a.restore(st)
        a.wait(vm='hst')
        a.stamp(f'ackH{l}')
        setflag(a, PH_H[l], 12)
        poll(a, *p1)
        h1_all()
        a.label(Lr2)
        a.stamp(f'pollA{l}')
        b2_first(True, False)
        stL = a.save()
        a.e(f's_branch {Ljoin}')

        a.label(Lid)
        a.restore(st0)
        a.wait(vm=('x1', 1))
        cnt_add(CNT1, 7)
        cnt_add(CNT2, 7)
        a.e(f's_branch {Lg2}')

        a.label(LS)
        a.restore(st0)
        AS, AM, ONE, FS = 16, 32, 96, 48
        prio(a, 3)
        for r in range(4):
            a.e(f'v_mov_b32 v{ONE + r}, 0x3f803f80')
        for f in xreads(0):
            f()
        for ks in range(20):
            if ks == OPT.get('nca', 3) + 1:
                a.wait(vm=('x1', 1))
                cnt_add(CNT1, 7)
            if ks == 7:
                cnt_wait(CNT1, 7, True)
            a.wait(lg=('xf', ks))
            mf = []
            for rt in range(4):
                f = vr(FS + 16 * (ks % 2) + 4 * rt, 4)
                mf.append(f'v_mfma_f32_16x16x32_bf16 {vr(AS + 4 * rt, 4)}, {f}, {f}, {"0" if ks == 0 else vr(AS + 4 * rt, 4)}')
                mf.append(f'v_mfma_f32_16x16x32_bf16 {vr(AM + 4 * rt, 4)}, {f}, {vr(ONE, 4)}, {"0" if ks == 0 else vr(AM + 4 * rt, 4)}')
            weave(a, mf, ([lambda: cnt_peek(CNT1, 7)] if ks == 6 else []) + (xreads(ks + 1) if ks + 1 < 20 else []))
        a.e(f's_mov_b32 s6, {STATS}')
        stats_finalize(a, AS, AM, 4, 11, 64, 256, 'm_rs')
        a.stamp(f'stat{l}')
        prio(a, 0)
        PM, TB = w2reg(30), (w2reg(31), 100)
        prio(a, 3)
        a.e('v_lshlrev_b32 v7, 2, v1')
        a.lds(f'ds_read_b128 {vr(PM, 4)}, v2 offset:{RSC}', 'ra')
        AR = (0, 11, 12, 13, 7)
        for ft in range(5):
            a.lds(f'ds_read_b32 v{AR[ft]}, v7 offset:{RSC + PRV + (ft // 4) * PRV + (ft % 4) * 256}', 'ra')
        a.wait(lg='ra')

        def rread(ft):
            return [lambda rt=rt: a.lds(f'ds_read_b128 {vr(TB[ft % 2] + 4 * rt, 4)}, v{AR[ft]} offset:{rt * 256}', ('rs', ft)) for rt in range(4)]
        for f in rread(0):
            f()
        for ft in range(5):
            if ft + 1 < 5:
                for f in rread(ft + 1):
                    f()
            a.wait(lg=('rs', ft))
            weave(a, [f'v_mfma_f32_16x16x32_bf16 {acc(rt, ft)}, {vr(PM, 4)}, {vr(TB[ft % 2] + 4 * rt, 4)}, 0' for rt in range(4)], [])
        prio(a, 0)
        cnt_add(CNT2, 7)
        early_tail(False)
        a.label(Ljoin)
        a.e('s_nop 1')
        a.restore(stE)
        a.lg.clear()
        a.forget('w1', 'ws', 'v', 'x1', 'us')
        if l == 0:
            a.e(f's_mul_i32 s66, s{sC}, 5')
            a.e(f's_add_u32 s66, s66, s{sWAVE}')
            a.e('s_mul_i32 s66, s66, 20480')
            a.e(f's_add_u32 s66, s66, 0x{DPF:x}')
        a.e('v_lshlrev_b32 v5, 4, v8')
        a.e('v_lshl_add_u32 v5, v9, 9, v5')
        a.e('v_add_u32 v5, s69, v5')
        a.e(f'v_add_u32 v6, {R1}, v5')
        a.e('v_add_u32 v13, s69, v2')
        a.e(f'v_add_u32 v11, {R1}, v13')
        fq = [lambda s=s, k=k: h2one(1, s, k) for s in range(3, 7) for k in range(2)]
        for _ in range(OPT.get('nb0', 2)):
            fq.pop(0)()
        prio(a, PR[1])
        hread(12)
        hread(13)
        nr = 14
        for z in range(12, 28):
            fill = []
            while nr <= min(z + 3 + (z > 13), 27):
                fill.append(lambda t=nr: hread(t))
                nr += 1
            if z == 18:
                a.wait(vm=('h2', 1, 3))
            if z == 20:
                a.stamp(f'b2A{l}')
                prio(a, PR[2])
                assert not fq
            if z == 21:
                fq = [lambda t=t: pwrite(t) for t in range(10)]
            if z == 25:
                a.wait(lg=[('hz', 27), 'pw'])
                fq += [lambda t=t: pwrite(t) for t in range(10, 15)]
            pre = []
            for _ in range(2 if z < 21 else 4):
                if fq:
                    pre.append(fq.pop(0))
            zmf(z, fill=pre + fill if z < 21 else fill + pre)
        assert not fq
        a.stamp(f'b2B{l}')
        prio(a, 3)
        for t in range(15, 20):
            pwrite(t)
        a.forget('h', 'h2')
        a.seen -= {('w2', f) for f in range(20, 35)}
        if l == 0:
            Ld2 = a.newlab('Ld2')
            a.e(f's_cmp_ge_u32 s{sWAVE}, 5')
            a.e(f's_cbranch_scc1 {Ld2}')
            for ks in range(10 if OPT.get('de', 0) else 0, 20):
                dload(ks)
            a.label(Ld2)
        reduce_addr(l, False)
        a.wait(lg='all')
        a.e('s_barrier')
        a.stamp(f'PB{l}')
        reduce_item(l)
        Lnr = a.newlab('Lnr')
        a.e(f's_cmp_ge_u32 s{sWAVE}, 2')
        a.e(f's_cbranch_scc1 {Lnr}')
        reduce_addr(l, True)
        reduce_item(l)
        a.label(Lnr)
        if l == 1:
            a.stamp_dump(2, sWS, sWAVE, 15)
            break

        a.stamp('redB')
        a.e('v_lshlrev_b32 v5, 4, v8')
        a.e('v_lshl_add_u32 v5, v9, 9, v5')
        a.e(f'v_add_u32 v5, {R1}, v5')
        a.e('v_add_u32 v6, 40960, v5')
        a.wait(vm='all')
        a.e('s_barrier')
        a.stamp('ackXB')
        setflag_w0(a, PH_X2, 12)
        pXA = (7, sFSRC, PH_X2, 1)
        pXB = (11, sFPAR, PH_X2, 1)
        a.vm.clear()
        poll_issue(a, *pXA)
        poll_issue(a, *pXB, tag='poll2')
        poll_check(a, *pXA)
        a.e(f's_add_u32 s67, s{sGCM}, s68')
        lin(5, 68, R1, 67, X2B, ('x2', 0))
        poll_check(a, *pXB, tag='poll2')
        a.stamp('pollXB')
        a.e(f's_mul_i32 s67, s{sPG}, 81920')
        a.e('s_add_u32 s67, s67, s68')
        Lst, Lid, Lj = a.newlab('Lst'), a.newlab('Lid'), a.newlab('Lj')
        a.e(f's_cmp_eq_u32 s{sWAVE}, 7')
        a.e(f's_cbranch_scc1 {Lid}')
        a.e(f's_cmp_ge_u32 s{sWAVE}, 5')
        a.e(f's_cbranch_scc1 {Lst}')
        st0 = a.save()

        def startA1(extra=None):
            a.e('s_waitcnt vmcnt(4)')
            if extra:
                extra()
            lin(5, 68, R1 + 40960, 67, X2B + 40960, ('x2', 1))
            a.wait(vm=('x2', 0))
            a.e('s_barrier')
            a.stamp('XA')

        def hookA1(hf, ks):
            if hf == 0:
                if ks == 3:
                    a.e(f's_lshl_b32 s6, s{sWAVE}, 11')
                    a.e(f's_add_u32 m0, s6, {W1SL}')
                    a.e(f's_lshl_b32 s7, s{sC}, 14')
                    a.e('s_add_u32 s6, s6, s7')
                    a.e(f's_add_u32 s6, s6, 0x{W1S:x}')
                    for n in range(2):
                        a.vmem(f'buffer_load_dwordx4 v2, {sr(sWS, 4)}, s6 offen offset:{n * 1024} sc1 lds', 'w1s')
                if ks == 19:
                    a.stamp('a1A')
                    a.wait(vm='w1s', lg='all')
                    a.e('s_barrier')
                    a.stamp('XB')

        WFA = 16
        RSr, MRr = [196, 200, 204, 208], [212, 216, 220, 224]
        NSG = len(XFS)
        wf = lambda mat, tt, ks: WFA + ((mat * 4 + tt) * 2 + ks) * 4
        startA1()
        for hf in range(2):
            def xread1(ks):
                return [lambda rt=rt: a.lds(f'ds_read_b128 {vr(XFS[ks % NSG] + 4 * rt, 4)}, v{5 + hf} offset:{ks * 2048 + rt * 256}', ('xf', ks)) for rt in range(2)]
            for ks in range(NSG - 1):
                for f in xread1(ks):
                    f()
            for ks in range(20):
                if ks % 2 == 0:
                    a.wait(lg=('xf', ks + 1))
                mf = [f'v_mfma_f32_16x16x32_bf16 {vr(ACCA + 8 * hf + 4 * rt, 4)}, {vr(XFS[ks % NSG] + 4 * rt, 4)}, {vr(dreg(ks), 4)}, {"0" if ks == 0 else vr(ACCA + 8 * hf + 4 * rt, 4)}' for rt in range(2)]
                weave(a, mf, xread1(ks + NSG - 1) if ks + NSG - 1 < 20 else [])
                hookA1(hf, ks)
        prio(a, 3)
        for tt in range(4):
            for ks in range(2):
                for mat in range(2):
                    a.lds(f'ds_read_b128 {vr(wf(mat, tt, ks), 4)}, v2 offset:{W1SL + ((mat * 4 + tt) * 2 + ks) * 1024}', 'wf')
        a.e('v_lshlrev_b32 v12, 4, v9')
        a.stamp('a1B')
        a.e('s_barrier')
        a.stamp('ST')
        for rt in range(4):
            a.lds(f'ds_read_b128 {vr(RSr[rt], 4)}, v12 offset:{ST1 + rt * 64}', 'st')
            a.lds(f'ds_read_b128 {vr(MRr[rt], 4)}, v12 offset:{ST1 + 256 + rt * 64}', 'st')
        stage1(a, ACCA, RSr, MRr, 80, wf, R1)
        stC = a.save()
        a.seen |= {('w2', f) for f in range(20, 30)}
        a.e(f's_branch {Lj}')

        a.label(Lid)
        a.restore(st0)
        startA1()
        for hf in range(2):
            for ks in range(20):
                hookA1(hf, ks)
        stage_all()
        a.e('s_barrier')
        a.wait(vm='all')
        a.e(f's_branch {Lj}')

        a.label(Lst)
        a.restore(st0)
        AS, AM, ONE, FS = 16, 24, 32, 36
        for r in range(4):
            a.e(f'v_mov_b32 v{ONE + r}, 0x3f803f80')
        a.e(f's_sub_u32 s66, s{sWAVE}, 5')
        a.e('s_lshl_b32 s6, s66, 8')
        a.e('v_add_u32 v5, s6, v5')
        a.e('v_add_u32 v6, s6, v6')
        startA1()
        for hf in range(2):
            def sread(ks):
                a.lds(f'ds_read_b128 {vr(FS + 4 * (ks % 10), 4)}, v{5 + hf} offset:{ks * 2048}', ('sf', ks))
            for ks in range(9):
                sread(ks)
            for ks in range(20):
                a.wait(lg=('sf', ks))
                f = vr(FS + 4 * (ks % 10), 4)
                a.e(f'v_mfma_f32_16x16x32_bf16 {vr(AS + 4 * hf, 4)}, {f}, {f}, {"0" if ks == 0 else vr(AS + 4 * hf, 4)}')
                if ks + 9 < 20:
                    sread(ks + 9)
                a.e(f'v_mfma_f32_16x16x32_bf16 {vr(AM + 4 * hf, 4)}, {f}, {vr(ONE, 4)}, {"0" if ks == 0 else vr(AM + 4 * hf, 4)}')
                hookA1(hf, ks)
        prio(a, 3)
        a.e('s_lshl_b32 s6, s66, 6')
        a.e(f's_add_u32 s6, s6, {ST1}')
        stats_finalize(a, AS, AM, 2, 11, 128, 256, 'rs_mr')
        a.wait(lg='all')
        a.e('s_barrier')
        a.label(Lj)
        a.e('s_nop 1')
        a.restore(stC)
        v_out_addr(a)
        a.wait(lg='all')
        a.e('s_barrier')
        a.stamp('VT')
        v_out(a, 1, R1, 64)
        if not OPT.get('bearly', 0):
            guarded(5, range(20, 30))
        for n in range(NR):
            bg.add(lambda n=n: w1load(n))
            if n < NST:
                bg.add(lambda n=n: stash(n))

        def pv1():
            if not OPT.get('bearly', 0):
                Lq = a.newlab('Lq')
                a.e('s_waitcnt vmcnt(10)')
                a.e(f's_cmp_lt_u32 s{sWAVE}, 5')
                a.e(f's_cbranch_scc1 {Lq}')
                a.wait(vm='vo')
                a.label(Lq)
            a.wait(vm='vo')
            a.e('s_barrier')
            a.stamp('PV1')
            setflag_w0(a, PH_V[1], 7)
        a2_pre(1, lambda: bg.run(OPT.get('bga2', 3)), pv1)
        a.stamp('a2pre')

    a.label(end)
    a.e('s_endpgm')
    a.raw(descriptor(name, 256, 102))
    return 163840


def main():
    if len(sys.argv) > 2 and 'stamps' in sys.argv[2:]:
        Asm.STAMPS = True
    Asm.CYC = 'cyc' in sys.argv[2:]
    Asm.DBGOUT = 'dbgout' in sys.argv[2:]
    for o in sys.argv[2:]:
        if o.startswith('names='):
            Asm.ACTIVE = o[6:].split(',')
        elif '=' in o:
            k, v = o.split('=')
            OPT[k] = int(v)
    hdr = open('cdna_kernels/' + NAME + '.s.ref').read().split('\n')
    hdr = [l for l in hdr if l.startswith(';') and '@launch' not in l and 'Override launch' not in l and 'grid=ceil' not in l]
    out = '\n'.join(hdr) + '\n'
    a = Asm()
    lds = gen(a, NAME + '_kernel')
    out += f'; @launch grid=(256,1,1) block=(512,1,1) lds={lds}\n'
    if Asm.STAMPS:
        out += '; stampnames start,' + ','.join(Asm.ACTIVE) + '\n'
    out += '.amdgcn_target "amdgcn-amd-amdhsa--gfx950"\n'
    out += a.text()
    path = sys.argv[1] if len(sys.argv) > 1 else 'cdna_kernels/' + NAME + '.s'
    open(path, 'w').write(out)
    print('wrote', path, len(out))


main()
```

```python
import sys
from asmlib import *

NAME = 'interleave_layers__spectral_fnet__dense_activation_relu__prompt'
S, D, F = 2048, 640, 1728
W1F = 0
W2F = 0x220000
DPF = 0x440000
CSP = 0x510000
W1S = 0x540000
STG = 0x560000
FLG = 0x760000
VB = [0x960000, 0xC60000]
X1B = [0xF60000, 0x11E0000]
X2B = 0x1460000
HB = [0x16E0000, 0x1DA0000]
WS_BYTES = 268435456
OOB = 0x7f000000
SPIN = 200000
OPT = {}

R1 = 81920
PRV = 10240
STATS, CSS = 9216, PRV + 9216
CNT1, CNT2 = STATS + 512, STATS + 516
PSUM = 5 * PRV + 9216
XRL1, TWL1, W1SL, ST1 = R1 + 12288, R1 + 24576, 20480, 36864

sWAVE, sG, sC = 3, 4, 5
P_X, P_CR, P_CI, P_DR, P_DI, P_W1, P_W2, P_OUT, P_WS = 8, 10, 12, 14, 16, 20, 22, 24, 26
sWS, sOUT, sFL = 28, 32, 36
sRHO, sKT, sMIR, sNON, sU1, sU2 = 38, 39, 40, 41, 42, 43
sGCM, sFOWN, sW1B, sHK, sW2O, sHG, sFSRC, sTAU1, sPG, sFPAR = 44, 45, 46, 47, 48, 49, 50, 51, 52, 53


def weave(a, mfs, fill):
    fill = list(fill)
    for i, m in enumerate(mfs):
        a.e(m)
        left = len(mfs) - i
        for _ in range(-(-len(fill) // left)):
            fill.pop(0)()


class BG:
    def __init__(self):
        self.q = []

    def add(self, f):
        self.q.append(f)

    def run(self, n=None):
        n = len(self.q) if n is None else min(n, len(self.q))
        for _ in range(n):
            self.q.pop(0)()


PH_V, PH_X1, PH_S, PH_H, PH_X2 = (1, 6), (2, 7), (3, 8), (4, 9), 5
LOC = 0x80000
sXCC = 27


def poll_issue(a, vres, soff, phase, n, shift=7, first=0, tag='poll'):
    a.e(f'v_min_u32 v{vres}, {n - 1}, v1')
    a.e(f'v_lshlrev_b32 v{vres}, {shift}, v{vres}')
    a.e(f's_add_u32 s60, s{soff}, 0x{FLG + (first << shift):x}')
    a.vmem(f'buffer_load_dword v{vres}, v{vres}, {sr(sWS, 4)}, s60 offen sc1', tag)


def poll_check(a, vres, soff, phase, n, shift=7, first=0, tag='poll'):
    L, Ld = a.newlab('Lpoll'), a.newlab('Lpd')
    a.e(f's_add_u32 s59, s{sNON}, {phase}')
    a.wait(vm=tag)
    a.e('s_mov_b32 s61, 0')
    a.label(L)
    a.e(f'v_subrev_u32 v{vres}, s59, v{vres}')
    a.e(f'v_cmp_le_u32 vcc, 16, v{vres}')
    a.e(f's_cbranch_vccz {Ld}')
    if OPT.get('abl_poll', 0) >> phase & 1:
        a.e(f's_branch {Ld}')
    if OPT.get('psleep', 2):
        a.e(f's_sleep {OPT.get("psleep", 2)}')
    st = a.save()
    poll_issue(a, vres, soff, phase, n, shift, first, tag)
    a.restore(st)
    a.e('s_waitcnt vmcnt(0)')
    a.e('s_add_u32 s61, s61, 1')
    a.e(f's_cmp_lt_u32 s61, {SPIN}')
    a.e(f's_cbranch_scc1 {L}')
    a.label(Ld)


def poll(a, vres, *args, **kw):
    poll_issue(a, vres, *args, **kw)
    poll_check(a, vres, *args, **kw)


def prio(a, p):
    if OPT.get('prio', 1):
        a.e(f's_setprio {p}')


def setflag(a, phase, vt):
    if phase is None:
        a.e('v_mov_b32 v0, 0')
    else:
        a.e(f's_add_u32 s62, s{sNON}, {phase}')
        a.e('v_mov_b32 v0, s62')
        a.e(f'v_writelane_b32 v0, s{sXCC}, 1')
    a.e(f'v_lshlrev_b32 v{vt}, 2, v1')
    a.e('s_mov_b32 exec_hi, 0')
    if phase is not None and phase not in PH_V:
        a.e(f's_add_u32 s62, s{sFOWN}, 0x{LOC:x}')
        a.vmem(f'buffer_store_dword v0, v{vt}, {sr(sWS, 4)}, s62 offen', 'flag')
    if phase is not None and phase not in PH_V and phase != PH_X1[0]:
        L = a.newlab('Lng')
        a.e('s_cmp_eq_u32 s26, 0')
        a.e(f's_cbranch_scc1 {L}')
        a.e(f'buffer_store_dword v0, v{vt}, {sr(sWS, 4)}, s{sFOWN} offen sc1')
        a.label(L)
    else:
        a.vmem(f'buffer_store_dword v0, v{vt}, {sr(sWS, 4)}, s{sFOWN} offen sc1', 'flag')
    if phase is None:
        a.e(f's_add_u32 s62, s{sFOWN}, 0x{LOC:x}')
        a.vmem(f'buffer_load_dword v254, v{vt}, {sr(sWS, 4)}, s62 offen sc1', 'flag')
    a.e('s_mov_b32 exec_hi, -1')


def setflag_w0(a, phase, vt):
    L = a.newlab('Lnf')
    a.e(f's_cmp_lg_u32 s{sWAVE}, 0')
    a.e(f's_cbranch_scc1 {L}')
    st = a.save()
    setflag(a, phase, vt)
    a.restore(st)
    a.label(L)


EXTRA = ['hst', 'flag', 'xst', 'vst', 'pst']


def merge(a, *states):
    ls = [[t for t in s[0] if t not in EXTRA and not (isinstance(t, tuple) and t[0] in EXTRA)] for s in states]
    ls.sort(key=len)
    longer = ls[-1]
    for s in ls[:-1]:
        assert longer[len(longer) - len(s):] == s, (longer, s)
    a.vm = list(longer)
    a.lg = []


def stats_finalize(a, AS, AM, ntiles, tmp, tile_stride, delta1, mode):
    t = tmp
    a.e(f'v_lshlrev_b32 v{t}, 2, v9')
    a.e(f'v_sub_u32 v{t}, v8, v{t}')
    a.e(f'v_lshl_add_u32 v{t + 1}, v8, 2, s6')
    a.e(f'v_cmp_eq_u32 s[70:71], 1, v{t}')
    a.e(f'v_cmp_eq_u32 s[72:73], 2, v{t}')
    a.e(f'v_cmp_eq_u32 s[74:75], 3, v{t}')
    a.e(f'v_cmp_gt_u32 s[76:77], 4, v{t}')
    a.e('s_mov_b32 s7, 0x3acccccd')
    for rt in range(ntiles):
        for acc in (AS, AM):
            b = acc + 4 * rt
            a.e(f'v_cndmask_b32 v{b}, v{b}, v{b + 1}, s[70:71]')
            a.e(f'v_cndmask_b32 v{b}, v{b}, v{b + 2}, s[72:73]')
            a.e(f'v_cndmask_b32 v{b}, v{b}, v{b + 3}, s[74:75]')
        ss, sm = AS + 4 * rt, AM + 4 * rt
        a.e(f'v_mul_f32 v{sm}, s7, v{sm}')
        a.e(f'v_mul_f32 v{ss}, s7, v{ss}')
        a.e(f'v_fma_f32 v{ss}, -v{sm}, v{sm}, v{ss}')
        a.e(f'v_max_f32 v{ss}, 0, v{ss}')
        a.e(f'v_add_f32 v{ss}, 0x3727c5ac, v{ss}')
        a.e(f'v_rsq_f32 v{ss}, v{ss}')
        if mode == 'rs_mr':
            a.e(f'v_mul_f32 v{sm}, v{sm}, v{ss}')
    a.e('s_mov_b64 exec, s[76:77]')
    for rt in range(ntiles):
        ss, sm = AS + 4 * rt, AM + 4 * rt
        first, second = (ss, sm) if mode == 'rs_mr' else (sm, ss)
        a.lds(f'ds_write_b32 v{t + 1}, v{first} offset:{rt * tile_stride}')
        a.lds(f'ds_write_b32 v{t + 1}, v{second} offset:{rt * tile_stride + delta1}')
    a.e('s_mov_b64 exec, -1')


def stage1(a, ACC, RSr, MRr, VA, wf, VT):
    a.e('v_cmp_gt_u32 vcc, 8, v8')
    a.e('v_mov_b32 v13, 0x80008000')
    a.e('v_cndmask_b32 v13, 0, v13, vcc')
    a.e('v_and_b32 v12, 1, v9')
    a.e('v_lshl_add_u32 v12, v12, 4, v8')
    a.e('v_mul_u32_u24 v12, 192, v12')
    a.e('v_lshrrev_b32 v11, 1, v9')
    a.e('v_mul_u32_u24 v11, 80, v11')
    a.e(f's_lshl_b32 s6, s{sWAVE}, 4')
    a.e(f's_add_u32 s6, s6, {VT}')
    a.e('v_add3_u32 v12, v12, v11, s6')
    a.wait(lg='st')
    for r in range(16):
        m = MRr[r // 4] + r % 4
        a.e(f'v_mul_f32 v{m}, v{m}, v14')
    for r in range(16):
        a.e(f'v_fma_f32 v{ACC + r}, v{ACC + r}, v{RSr[r // 4] + r % 4}, -v{MRr[r // 4] + r % 4}')
    for r in range(8):
        a.e(f'v_cvt_pk_bf16_f32 v{ACC + r}, v{ACC + 2 * r}, v{ACC + 2 * r + 1}')
    for r in range(8):
        a.e(f'v_xor_b32_dpp v{ACC + 8 + r}, v{ACC + r}, v13 row_ror:8 row_mask:0xf bank_mask:0xf')
    a.wait(lg='wf')
    for tt in range(4):
        for ks in range(2):
            for mat in range(2):
                src = ACC + 8 * mat + 4 * ks
                c = '0' if (ks == 0 and mat == 0) else vr(VA + 4 * tt, 4)
                a.e(f'v_mfma_f32_16x16x32_bf16 {vr(VA + 4 * tt, 4)}, {vr(src, 4)}, {vr(wf(mat, tt, ks), 4)}, {c}')
    for pr in range(2):
        b = VA + 8 * pr
        for r in range(4):
            a.e(f'v_cvt_pk_bf16_f32 v{b + r}, v{b + 2 * r}, v{b + 2 * r + 1}')
        a.e(f'v_permlane16_swap_b32 v{b}, v{b + 2}')
        a.e(f'v_permlane16_swap_b32 v{b + 1}, v{b + 3}')
        a.lds(f'ds_write_b128 v12, {vr(b, 4)} offset:{pr * 32 * 192}', 'vt')


def v_out_addr(a):
    for n, dst in ((0, 5), (8, 6)):
        a.e(f's_lshl_b32 s6, s{sWAVE}, 6')
        a.e(f's_add_u32 s6, s6, {n * 64}')
        a.e('v_add_u32 v0, s6, v1')
        a.e('v_mul_u32_u24 v7, 5462, v0')
        a.e('v_lshrrev_b32 v7, 16, v7')
        a.e('v_lshlrev_b32 v0, 4, v0')
        a.e(f's_mov_b32 s7, {8 * 32 * 192 - 192}')
        a.e(f'v_mad_u32_u24 v{dst}, v7, s7, v0')


def v_out(a, l, VT, R):
    a.e(f's_lshl_b32 s6, s{sWAVE}, 10')
    a.e(f's_add_u32 s6, s6, {VT}')
    a.e('v_add_u32 v0, s6, v2')
    a.lds(f'ds_read_b128 {vr(R, 4)}, v0', 'vo0')
    a.lds(f'ds_read_b128 {vr(R + 4, 4)}, v0 offset:8192', 'vo1')
    a.e(f's_lshl_b32 s6, s{sC}, 5')
    a.e(f's_add_u32 s6, s6, s{sG}')
    a.e('s_mulk_i32 s6, 192')
    a.e(f's_add_u32 s6, s6, 0x{VB[l]:x}')
    a.e(f's_cmp_lt_u32 s{sWAVE}, 4')
    a.e(f's_cselect_b32 s7, s6, 0x{OOB:x}')
    a.wait(lg='vo0')
    a.vmem(f'buffer_store_dwordx4 {vr(R, 4)}, v5, {sr(sWS, 4)}, s6 offen sc1', 'vo')
    a.wait(lg='vo1')
    a.vmem(f'buffer_store_dwordx4 {vr(R + 4, 4)}, v6, {sr(sWS, 4)}, s7 offen sc1', 'vo')


TW, Y, VF, PK, ID, XR, XM, XE = 16, 32, 48, 48, 48, 56, 16, 24
ACCX, XF = 16, 48
NR, NST = 12, 9
RING = [236 + 4 * k for k in range(5)] + [80, 84, 88] + [100, 104, 108, 112]
JIT = [92, 96]
ACCB = 16
HBUF = [96 + 4 * k for k in range(5)]
ACCA = 96
XFS = [56, 64, 72, 80, 88, 236, 244]


def dreg(ks):
    return 16 + 4 * ks if ks < 10 else 196 + 4 * (ks - 10)


def w2reg(f):
    return 116 + 4 * f


def gen(a, name):
    end = name + '_end'
    a.raw('.text')
    a.raw(f'.globl {name}')
    a.raw('.p2align 8')
    a.raw(f'.type {name},@function')
    a.label(name)
    a.e('s_cmp_ge_u32 s2, 256')
    a.e(f's_cbranch_scc1 {end}')
    a.stamp_init()
    a.stamp(0)
    a.e('s_load_dwordx16 s[8:23], s[0:1], 0')
    a.e('s_load_dwordx2 s[24:25], s[0:1], 64')
    a.e('s_load_dwordx2 s[26:27], s[0:1], 80')
    a.e('s_load_dwordx2 s[96:97], s[0:1], 72')
    a.e('v_lshrrev_b32 v1, 6, v0')
    a.e(f'v_readfirstlane_b32 s{sWAVE}, v1')
    a.e('v_and_b32 v1, 63, v0')
    if OPT.get('cpf', 1):
        a.e('s_getpc_b64 s[98:99]')
        a.label('Lpc')
        a.e('s_lshr_b32 s6, s2, 3')
        a.e('s_lshl_b32 s6, s6, 5')
        a.e('v_and_b32 v253, 31, v0')
        a.e('v_add_u32 v253, s6, v253')
        a.e('v_lshlrev_b32 v253, 7, v253')
        a.e(f'v_min_u32 v253, {end} - Lpc, v253')
        a.e('v_cmp_gt_u32 vcc, 32, v0')
        a.e('s_and_saveexec_b64 s[6:7], vcc')
        a.e('s_cbranch_execz Lpcd')
        a.e('global_load_dword v253, v253, s[98:99]')
        a.label('Lpcd')
        a.e('s_mov_b64 exec, -1')
    XM_ = OPT.get('xm', 0)
    a.e('s_and_b32 s6, s2, 7')
    a.e('s_lshr_b32 s7, s2, 3')
    a.e(f's_and_b32 s98, s6, {(1 << XM_) - 1}')
    a.e(f's_lshl_b32 s98, s98, {3 - XM_}')
    a.e(f's_and_b32 s99, s7, {(8 >> XM_) - 1}')
    a.e(f's_add_u32 s{sC}, s98, s99')
    a.e(f's_lshr_b32 s6, s6, {XM_}')
    a.e(f's_lshl_b32 s6, s6, {2 + XM_}')
    a.e(f's_lshr_b32 s7, s7, {3 - XM_}')
    a.e('s_add_u32 s101, s6, s7')
    a.e('s_lshr_b32 s6, s101, 1')
    a.e('s_sub_u32 s7, 32, s6')
    a.e('s_cmp_eq_u32 s6, 0')
    a.e('s_cselect_b32 s7, 16, s7')
    a.e('s_bitcmp1_b32 s101, 0')
    a.e(f's_cselect_b32 s{sG}, s7, s6')
    a.e('v_lshlrev_b32 v2, 4, v1')
    a.e('v_and_b32 v8, 15, v1')
    a.e('v_lshrrev_b32 v9, 4, v1')
    a.e('v_and_b32 v10, 31, v1')
    a.e('v_lshrrev_b32 v4, 5, v1')

    sX, sD, sW1, sW2, sCS = 56, 64, 68, 72, 12
    sWK, sROT = 54, 55
    SLOT0, SLOTB = 1024, 18432
    RS, MR, CS = 0, 256, 512
    W1L = SLOT0 + 6 * SLOTB
    WP1 = W1L + 16384
    W2S = WP1 + 14336
    TWL0 = W2S + 10240
    XRL0 = SLOT0 + 4 * SLOTB
    VT0 = SLOT0 + 5 * SLOTB
    vXA, vDA, vD2A, vF0, vF1, vO8, vSW = 240, 241, 242, 244, 245, 246, 247
    a.e(f'v_lshrrev_b32 v{vO8}, 3, v1')
    a.e(f'v_and_b32 v{vSW}, 7, v1')
    a.e(f'v_xor_b32 v{vSW}, v{vSW}, v{vO8}')
    a.e(f'v_lshlrev_b32 v{vSW}, 4, v{vSW}')
    a.e(f's_and_b32 s{sKT}, s{sWAVE}, 1')
    a.e(f's_lshr_b32 s{sMIR}, s{sWAVE}, 2')
    a.e(f's_bfe_u32 s{sRHO}, s{sWAVE}, 0x10001')
    a.e(f's_lshl_b32 s6, s{sKT}, 4')
    a.e(f's_lshl_b32 s7, s{sMIR}, 5')
    a.e('s_add_u32 s6, s6, s7')
    a.e(f's_lshl_b32 s7, s{sRHO}, 2')
    a.e('s_add_u32 s6, s6, s7')
    a.e(f'v_lshrrev_b32 v{vXA}, 2, v{vO8}')
    a.e(f'v_lshlrev_b32 v{vXA}, 3, v{vXA}')
    a.e(f'v_and_b32 v0, 3, v{vO8}')
    a.e(f'v_add3_u32 v{vXA}, v{vXA}, v0, s6')
    a.e(f'v_lshl_add_u32 v{vXA}, v{vXA}, 5, s{sG}')
    a.e('s_movk_i32 s62, 1280')
    a.e(f'v_mad_u32_u24 v{vXA}, v{vXA}, s62, v{vSW}')
    a.e(f's_mul_i32 s6, s{sC}, 40')
    a.e(f's_lshr_b32 s7, s{sWAVE}, 1')
    a.e('s_lshl_b32 s7, s7, 3')
    a.e('s_add_u32 s7, s7, s6')
    a.e(f'v_add_u32 v{vDA}, s7, v{vO8}')
    a.e('v_mov_b32 v0, 320')
    a.e(f'v_cmp_eq_u32 vcc, 0, v{vDA}')
    a.e(f'v_cndmask_b32 v{vDA}, v{vDA}, v0, vcc')
    a.e(f'v_mad_u32_u24 v{vDA}, v{vDA}, s62, v{vSW}')
    a.e('s_add_u32 s6, s6, 32')
    a.e(f'v_add_u32 v{vD2A}, s6, v{vO8}')
    a.e(f'v_mad_u32_u24 v{vD2A}, v{vD2A}, s62, v{vSW}')
    a.e(f's_lshl_b32 s6, s{sRHO}, 7')
    a.e(f'v_add_u32 v{vD2A}, s6, v{vD2A}')
    a.e(f's_lshl_b32 s{sWK}, s{sWAVE}, 10')
    a.e(f's_mul_i32 s63, s{sRHO}, {SLOTB}')
    a.e(f's_lshl_b32 s6, s{sKT}, 10')
    a.e('s_add_u32 s63, s63, s6')
    a.e(f's_add_u32 s98, s101, s{sC}')
    a.e('s_mul_i32 s99, s98, 52')
    a.e('s_lshr_b32 s99, s99, 8')
    a.e('s_mul_i32 s99, s99, 5')
    a.e('s_sub_u32 s98, s98, s99')
    a.e(f's_lshl_b32 s{sROT}, s98, 8')
    if not OPT.get('rot', 1):
        a.e(f's_mov_b32 s{sROT}, 0')
    a.e('s_waitcnt lgkmcnt(0)')
    a.srd(sX, P_X, S * D * 2)
    a.e(f's_cmp_eq_u32 s{sKT}, 1')
    a.e(f's_cselect_b32 s98, s{P_DI}, s{P_DR}')
    a.e(f's_cselect_b32 s99, s{P_DI + 1}, s{P_DR + 1}')
    a.srd(sD, 98, D * D * 2)

    def pair_off(p, dst):
        a.e(f's_add_u32 s{dst}, s{sROT}, {p * 256}')
        a.e(f's_cmp_ge_u32 s{dst}, 1280')
        a.e('s_cselect_b32 s18, 1280, 0')
        a.e(f's_sub_u32 s{dst}, s{dst}, s18')

    def dma_pair(p):
        sb = SLOT0 + (p % 3) * 2 * SLOTB
        pair_off(p, 99)
        L = a.newlab('Lex')
        a.e(f's_cmp_lg_u32 s{sMIR}, {p % 2}')
        a.e(f's_cbranch_scc1 {L}')
        a.e(f's_add_u32 m0, s63, {sb + 16384}')
        a.e(f'buffer_load_dwordx4 v{vD2A}, {sr(sD, 4)}, s99 offen lds')
        a.label(L)
        for h in range(2):
            a.e(f's_add_u32 m0, s{sWK}, {sb + h * (SLOTB - 128)}')
            a.vmem(f'buffer_load_dwordx4 v{vXA}, {sr(sX, 4)}, s99 offen offset:{h * 128} lds', ('c', p))
            a.e(f's_add_u32 m0, s{sWK}, {sb + h * (SLOTB - 128) + 8192}')
            a.vmem(f'buffer_load_dwordx4 v{vDA}, {sr(sD, 4)}, s99 offen offset:{h * 128} lds', ('c', p))

    a.stamp('karg')
    dma_pair(0)
    a.stamp('d0')
    a.srd(sW1, P_W1, D * F * 2)
    a.srd(sW2, P_W2, D * F * 2)
    a.srd(sWS, P_WS, WS_BYTES)
    a.srd(sOUT, P_OUT, S * D * 2)
    a.e(f's_cmp_eq_u32 s{sKT}, 1')
    a.e(f's_cselect_b32 s98, s{P_CI}, s{P_CR}')
    a.e(f's_cselect_b32 s99, s{P_CI + 1}, s{P_CR + 1}')
    a.e(f's_mov_b32 s8, s{P_CR}')
    a.e(f's_and_b32 s9, s{P_CR + 1}, 0xffff')
    a.e(f's_mov_b32 s10, 0x{S * S * 2:x}')
    a.e('s_mov_b32 s11, 0x20000')
    a.srd(sCS, 98, S * S * 2)
    a.e(f's_add_u32 s{sFL}, s{P_WS}, 0x{FLG:x}')
    a.e(f's_addc_u32 s{sFL + 1}, s{P_WS + 1}, 0')
    a.e(f's_sub_u32 s6, 64, s{sG}')
    a.e(f's_cmp_eq_u32 s{sG}, 0')
    a.e(f's_cselect_b32 s{sTAU1}, 32, s6')
    a.e(f's_mul_i32 s6, s{sC}, 7')
    a.e('s_min_u32 s100, s6, 48')
    a.e('s_lshl_b32 s6, s100, 1')
    a.e(f's_lshl_b32 s7, s{sWAVE}, 1')
    a.e(f's_add_u32 s{sU1}, s6, s7')
    a.e(f's_min_u32 s{sU1}, s{sU1}, 106')
    a.e(f's_cmp_lt_u32 s{sC}, 6')
    a.e(f's_cselect_b32 s{sU2}, 7, 6')
    a.e(f's_mul_i32 s{sGCM}, s{sG}, 81920')
    a.e(f's_lshl_b32 s6, s{sG}, 3')
    a.e(f's_add_u32 s7, s6, s{sC}')
    a.e('s_lshl_b32 s7, s7, 3')
    a.e(f's_add_u32 s7, s7, s{sWAVE}')
    a.e('s_lshl_b32 s7, s7, 7')
    a.e(f's_add_u32 s{sFOWN}, s7, 0x{FLG:x}')
    a.e(f's_add_u32 s7, s6, s{sWAVE}')
    a.e(f's_lshl_b32 s{sFSRC}, s7, 10')
    a.e(f's_sub_u32 s{sPG}, 32, s{sG}')
    a.e(f's_and_b32 s{sPG}, s{sPG}, 31')
    a.e(f's_lshl_b32 s7, s{sPG}, 3')
    a.e(f's_add_u32 s7, s7, s{sWAVE}')
    a.e(f's_lshl_b32 s{sFPAR}, s7, 10')
    a.e(f's_mul_i32 s{sW1B}, s{sU1}, 20480')
    a.e(f's_cmp_ge_u32 s{sWAVE}, s{sU2}')
    a.e(f's_cselect_b32 s{sW1B}, 0x{OOB:x}, s{sW1B}')
    a.e(f's_getreg_b32 s{sXCC}, hwreg(HW_REG_XCC_ID)')
    a.e(f's_and_b32 s{sXCC}, s{sXCC}, 15')
    a.e(f's_mul_i32 s6, s{sWAVE}, 7')
    a.e('s_min_u32 s6, s6, 48')
    a.e(f's_mul_i32 s7, s{sC}, 54')
    a.e('s_add_u32 s7, s7, s6')
    a.e(f's_mul_i32 s{sW2O}, s7, 5120')
    a.e(f's_add_u32 s{sW2O}, s{sW2O}, 0x{W2F:x}')
    a.e(f's_mul_i32 s{sHG}, s{sG}, {216 * 1024}')
    a.e('s_lshl_b32 s6, s6, 12')
    a.e(f's_add_u32 s{sHK}, s{sHG}, s6')
    a.e('v_lshlrev_b32 v3, 4, v8')
    a.e('v_lshl_add_u32 v3, v9, 10, v3')
    dma_pair(1)
    Lnn = a.newlab('Lnn')
    a.e('s_lshl_b32 s6, s2, 3')
    a.e(f's_add_u32 s6, s6, s{sWAVE}')
    a.e('s_cmp_lg_u32 s6, 7')
    a.e(f's_cbranch_scc1 {Lnn}')
    a.e(f's_load_dword s6, s[{sFL}:{sFL + 1}], 0x40000 glc')
    a.e('s_waitcnt lgkmcnt(0)')
    a.e('s_add_u32 s6, s6, 16')
    a.e('s_and_b32 s6, s6, -16')
    a.e('s_bitset1_b32 s6, 31')
    a.e('v_mov_b32 v0, s6')
    a.e('v_mov_b32 v5, 0')
    a.e('s_mov_b64 exec, 1')
    a.e(f's_mov_b32 s7, 0x{FLG + 0x40000:x}')
    a.e(f'buffer_store_dword v0, off, {sr(sWS, 4)}, s7 sc1')
    a.e('global_store_dword v5, v0, s[96:97] sc1')
    a.e('s_mov_b64 exec, -1')
    a.label(Lnn)

    def grow(vd, vloc):
        a.e(f'v_and_b32 v11, 31, v{vloc}')
        a.e(f'v_mov_b32 v12, s{sG}')
        a.e(f'v_mov_b32 v13, s{sTAU1}')
        a.e(f'v_cmp_le_u32 vcc, 32, v{vloc}')
        a.e('v_cndmask_b32 v12, v12, v13, vcc')
        a.e(f'v_lshl_add_u32 v{vd}, v11, 6, v12')

    def tw_dma(base):
        a.e(f's_lshr_b32 s6, s{sWAVE}, 1')
        a.e('s_lshl_b32 s6, s6, 4')
        a.e('v_lshrrev_b32 v0, 2, v1')
        a.e('v_add_u32 v0, s6, v0')
        grow(0, 0)
        a.e('v_and_b32 v11, 3, v1')
        a.e('v_lshlrev_b32 v11, 4, v11')
        a.e('v_lshl_add_u32 v0, v0, 12, v11')
        a.e(f's_lshl_b32 s6, s{sWAVE}, 10')
        a.e(f's_add_u32 m0, s6, {base}')
        a.vmem(f'buffer_load_dwordx4 v0, {sr(sCS, 4)}, 0 offen lds', 'twd')

    vXR0, vXR1, vT1, vT2, vCSA = 234, 235, 236, 237, 238
    for n, dst in ((0, vXR0), (8, vXR1)):
        a.e(f's_lshl_b32 s6, s{sWAVE}, 6')
        a.e(f's_add_u32 s6, s6, {n * 64}')
        a.e('v_add_u32 v0, s6, v1')
        a.e('v_mul_u32_u24 v7, 5462, v0')
        a.e('v_lshrrev_b32 v7, 16, v7')
        a.e('v_mul_u32_u24 v5, 12, v7')
        a.e('v_sub_u32 v0, v0, v5')
        grow(7, 7)
        a.e(f's_mul_i32 s6, s{sC}, 5')
        a.e('s_sub_u32 s7, 70, s6')
        a.e('v_add_u32 v5, s6, v0')
        a.e('v_add_u32 v6, s7, v0')
        a.e('v_cmp_le_u32 vcc, 5, v0')
        a.e('v_cndmask_b32 v5, v5, v6, vcc')
        a.e('v_cmp_eq_u32 vcc, 80, v5')
        a.e('v_cndmask_b32 v5, v5, 0, vcc')
        a.e('v_cmp_eq_u32 vcc, 11, v0')
        a.e('v_cndmask_b32 v5, v5, 40, vcc')
        a.e('v_mul_u32_u24 v7, 1280, v7')
        a.e(f'v_lshl_add_u32 v{dst}, v5, 4, v7')
    a.e(f'v_and_b32 v{vF0}, 7, v1')
    a.e(f'v_xor_b32 v{vF0}, v{vF0}, v9')
    a.e(f'v_lshlrev_b32 v{vF0}, 4, v{vF0}')
    a.e(f'v_lshl_add_u32 v{vF0}, v8, 7, v{vF0}')
    a.e(f'v_xor_b32 v{vF1}, 64, v{vF0}')
    PF, PF2 = 208, 224

    def side(job):
        if job == 'late':
            a.e(f's_lshr_b32 s6, s{sWAVE}, 1')
            a.e('s_lshl_b32 s7, s6, 4')
            a.e(f'v_add_u32 v5, s7, v{vO8}')
            a.e(f'v_lshl_add_u32 v5, v5, 17, v{vSW}')
            a.e('s_lshl_b32 s6, s6, 11')
            a.e(f's_lshl_b32 s7, s{sKT}, 13')
            a.e('s_add_u32 s6, s6, s7')
            a.e(f's_add_u32 m0, s6, {W1L}')
            a.vmem(f'buffer_load_dwordx4 v5, {sr(sCS, 4)}, 0 offen lds', 'w1')
            a.e(f's_add_u32 m0, s6, {W1L + 1024}')
            a.e('s_mov_b32 s7, 0x100000')
            a.vmem(f'buffer_load_dwordx4 v5, {sr(sCS, 4)}, s7 offen lds', 'w1')
            tw_dma(TWL0)
        if job == 'non':
            a.e('v_mov_b32 v252, 0')
            a.vmem('global_load_dword v252, v252, s[96:97] sc1', 'non')
            setflag(a, None, 5)
        if job == 'xr':
            L = a.newlab('Lx4')
            a.e(f's_cmp_ge_u32 s{sWAVE}, 4')
            a.e(f's_cbranch_scc1 {L}')
            a.e(f's_add_u32 m0, s{sWK}, {XRL0 + 8192}')
            a.e(f'buffer_load_dwordx4 v{vXR1}, {sr(sX, 4)}, 0 offen lds')
            a.label(L)
            a.e(f's_add_u32 m0, s{sWK}, {XRL0}')
            a.vmem(f'buffer_load_dwordx4 v{vXR0}, {sr(sX, 4)}, 0 offen lds', 'xrd')
        if job == 'nonc':
            L, Ld = a.newlab('Lno'), a.newlab('Lnd')
            a.wait(vm='non')
            a.e('s_mov_b32 s98, 0')
            a.label(L)
            a.e(f'v_readfirstlane_b32 s{sNON}, v252')
            a.e('s_nop 1')
            a.e(f's_cmp_lg_u32 s{sNON}, 0')
            a.e(f's_cbranch_scc1 {Ld}')
            a.e('v_mov_b32 v252, 0')
            a.e('global_load_dword v252, v252, s[96:97] sc1')
            a.e('s_waitcnt vmcnt(0)')
            a.e('s_add_u32 s98, s98, 1')
            a.e(f's_cmp_lt_u32 s98, {SPIN}')
            a.e(f's_cbranch_scc1 {L}')
            a.label(Ld)

    def mainloop(setaddr, read, mfma, wsh=None, hooks={}):
        a.stamp('p0iss')
        PW = OPT.get('pw', 2)
        for p in range(5):
            a.wait(vm=('c', p), lg='all')
            if p == 0:
                dma_pair(2)
                side('late')
            a.e('s_barrier')
            a.stamp(f'p0c{p}')
            setaddr(SLOT0 + (p % 3) * 2 * SLOTB, p)
            j = 4 * p
            if p == 0:
                for f in read(0) + read(1):
                    f()
            else:
                weave(a, mfma(j - 2), read(j))
                weave(a, mfma(j - 1), read(j + 1))
            if 1 <= p <= 2:
                dma_pair(p + 2)
            if p == 2:
                side('non')
            if p == 3:
                side('xr')
            if p == PW and wsh:
                wsh()
            if p in hooks:
                hooks[p]()
            a.wait(lg=('f', j))
            weave(a, mfma(j), read(j + 2))
            a.wait(lg=('f', j + 1))
            weave(a, mfma(j + 1), read(j + 3))
        for j in (18, 19):
            a.wait(lg=('f', j))
            weave(a, mfma(j), [])
        side('nonc')
        a.wait(vm='xrd')

    Lstat, Lcol, Lj0 = a.newlab('Lp0s'), a.newlab('Lp0c'), a.newlab('Lp0j')
    a.e(f's_cmp_eq_u32 s{sWAVE}, 7')
    a.e(f's_cbranch_scc1 {Lcol}')
    a.e(f's_cmp_ge_u32 s{sWAVE}, 5')
    a.e(f's_cbranch_scc1 {Lstat}')
    st0 = a.save()
    ACC, FR = 16, 32
    a.e(f's_lshl_b32 s60, s{sWAVE}, 11')
    a.e('s_add_u32 s60, s60, 8192')
    a.e(f's_mul_i32 s6, s{sC}, 5')
    a.e(f's_add_u32 s6, s6, s{sWAVE}')
    a.e('s_mul_i32 s6, s6, 20')
    a.e(f's_add_u32 s6, s6, s{sG}')
    a.e('s_lshl_b32 s6, s6, 10')
    a.e(f's_add_u32 s24, s6, 0x{DPF:x}')
    a.e(f's_lshr_b32 s6, s{sROT}, 6')
    a.e(f's_sub_u32 s25, s{sG}, s6')
    a.e('s_add_u32 s7, s25, 20')
    a.e(f's_cmp_lt_u32 s{sG}, s6')
    a.e('s_cselect_b32 s25, s7, s25')
    a.e(f's_cmp_ge_u32 s{sG}, 20')
    a.e('s_cselect_b32 s25, 63, s25')

    a.e('s_and_b32 s6, s25, 1')
    a.e('s_lshl_b32 s6, s6, 6')
    a.e(f'v_xor_b32 v243, s6, v{vF0}')
    a.e('s_bfe_u32 s6, s25, 0x10001')
    a.e(f's_mulk_i32 s6, {SLOTB}')
    a.e('s_add_u32 s6, s6, s60')
    a.e('v_add_u32 v243, s6, v243')
    a.e('s_lshr_b32 s25, s25, 2')

    def set_c(sb, p):
        a.e(f'v_add_u32 v248, {sb}, v{vF0}')
        a.e(f'v_add_u32 v249, {sb}, v{vF1}')
        a.e('v_add_u32 v250, s60, v248')
        a.e('v_add_u32 v251, s60, v249')
        L = a.newlab('Ldd')
        a.e(f's_cmp_lg_u32 s25, {p}')
        a.e(f's_cbranch_scc1 {L}')
        a.e(f'v_add_u32 v243, {sb}, v243')
        a.e('ds_read_b128 v[220:223], v243')
        a.label(L)

    def read_c(j):
        f, hk, o = FR + 20 * (j % 4), j % 2, ((j % 4) // 2) * SLOTB
        return [lambda: a.lds(f'ds_read_b128 {vr(f + 16, 4)}, v{250 + hk} offset:{o}', ('f', j))] + \
               [lambda rt=rt: a.lds(f'ds_read_b128 {vr(f + 4 * rt, 4)}, v{248 + hk} offset:{o + rt * 2048}', ('f', j)) for rt in range(4)]

    def mfma_c(j):
        f = FR + 20 * (j % 4)
        return [f'v_mfma_f32_16x16x32_bf16 {vr(ACC + 4 * rt, 4)}, {vr(f + 4 * rt, 4)}, {vr(f + 16, 4)}, {"0" if j == 0 else vr(ACC + 4 * rt, 4)}' for rt in range(4)]

    mainloop(set_c, read_c, mfma_c)
    WF, RSr, MRr = 112, [176, 180, 184, 188], [192, 196, 200, 204]
    wf0 = lambda mat, tt, ks: WF + ((mat * 4 + tt) * 2 + ks) * 4
    a.e(f'v_add_u32 v248, {W1L}, v{vF0}')
    a.e(f'v_add_u32 v249, {W1L}, v{vF1}')
    for tt in range(4):
        for ks in range(2):
            for mat in range(2):
                a.lds(f'ds_read_b128 {vr(wf0(mat, tt, ks), 4)}, v{248 + ks} offset:{mat * 8192 + tt * 2048}', 'wf')
    a.e('v_lshlrev_b32 v12, 4, v9')
    a.e(f's_lshl_b32 s6, s{sWAVE}, 6')
    a.e('v_lshl_add_u32 v13, v8, 2, s6')
    a.stamp('p0end')
    a.e('s_barrier')
    a.lds(f'ds_read_b32 v14, v13 offset:{CS}', 'st')
    for rt in range(4):
        a.lds(f'ds_read_b128 {vr(RSr[rt], 4)}, v12 offset:{RS + rt * 64}', 'st')
        a.lds(f'ds_read_b128 {vr(MRr[rt], 4)}, v12 offset:{MR + rt * 64}', 'st')
    a.e(f's_cmp_lt_u32 s{sG}, 20')
    a.e(f's_cselect_b32 s24, s24, 0x{OOB:x}')
    a.e(f'buffer_store_dwordx4 v[220:223], v2, {sr(sWS, 4)}, s24 offen sc1')
    stage1(a, ACC, RSr, MRr, 32, wf0, VT0)
    stC = a.save()
    a.e(f's_branch {Lj0}')

    a.label(Lstat)
    a.restore(st0)
    AS, AM, ONE, FS = 24, 32, 40, 44
    for r in range(4):
        a.e(f'v_mov_b32 v{ONE + r}, 0x3f803f80')
    a.e(f's_sub_u32 s60, s{sWAVE}, 5')
    a.e('s_lshl_b32 s60, s60, 12')
    a.e(f'v_add_u32 v250, s60, v{vF0}')
    a.e(f'v_add_u32 v251, s60, v{vF1}')

    WA = 128
    a.e(f's_and_b32 s6, s{sG}, 7')
    a.e('s_mul_i32 s98, s6, 5')
    a.e('s_mul_i32 s99, s6, 10')
    a.e('s_add_u32 s99, s99, 4')
    a.e(f's_bfe_u32 s7, s{sG}, 0x10003')
    a.e(f's_cmp_ge_u32 s{sG}, 16')
    a.e('s_cselect_b64 s[76:77], -1, 0')
    for n in range(7):
        a.e(f'v_add_u32 v0, {64 * n}, v1')
        a.e('v_mul_u32_u24 v5, 4682, v0')
        a.e('v_lshrrev_b32 v5, 16, v5')
        a.e('v_mul_u32_u24 v6, 14, v5')
        a.e('v_sub_u32 v0, v0, v6')
        a.e('v_lshrrev_b32 v6, 3, v5')
        a.e('v_add_u32 v7, s98, v6')
        a.e('v_lshrrev_b32 v11, 1, v6')
        a.e('v_mad_u32_u24 v11, v11, 5, s99')
        a.e('v_mov_b32 v12, s7')
        a.e('v_and_b32 v6, 1, v6')
        a.e('v_cndmask_b32 v7, v7, v11, s[76:77]')
        a.e('v_cndmask_b32 v6, v12, v6, s[76:77]')
        a.e('v_and_b32 v5, 7, v5')
        a.e('v_lshl_add_u32 v5, v7, 3, v5')
        a.e('v_sub_u32 v7, 640, v5')
        a.e('v_cmp_eq_u32 vcc, 1, v6')
        a.e('v_cndmask_b32 v5, v5, v7, vcc')
        if n == 0:
            a.e('v_mov_b32 v6, 320')
            a.e('v_cmp_eq_u32 vcc, 0, v5')
            a.e('v_cndmask_b32 v5, v5, v6, vcc')
            a.e('v_cmp_eq_u32 vcc, 640, v5')
            a.e('v_cndmask_b32 v5, v5, 0, vcc')
        a.e('v_and_b32 v5, 0x3ff, v5')
        a.e('v_mul_u32_u24 v5, 3456, v5')
        a.e(f'v_lshl_add_u32 v{WA + n}, v0, 4, v5')

    def wsh_s():
        a.e(f's_sub_u32 s6, s{sWAVE}, 5')
        a.e('s_mul_i32 s7, s6, 224')
        a.e('s_lshl_b32 s98, s100, 6')
        a.e('s_add_u32 s7, s7, s98')
        a.e(f's_cmp_lt_u32 s{sG}, 20')
        a.e(f's_cselect_b32 s7, s7, 0x{OOB:x}')
        a.e('s_mul_i32 s6, s6, 7168')
        for n in range(7):
            a.e(f's_add_u32 m0, s6, {WP1 + 1024 * n}')
            a.vmem(f'buffer_load_dwordx4 v{WA + n}, {sr(sW1, 4)}, s7 offen lds', 'wsh')

    def set_s(sb, p):
        a.e(f'v_add_u32 v248, {sb}, v250')
        a.e(f'v_add_u32 v249, {sb}, v251')

    def read_s(j):
        return [lambda rt=rt: a.lds(f'ds_read_b128 {vr(FS + 8 * (j % 4) + 4 * rt, 4)}, v{248 + j % 2} offset:{((j % 4) // 2) * SLOTB + rt * 2048}', ('f', j)) for rt in range(2)]

    def mfma_s(j):
        out = []
        for rt in range(2):
            f = vr(FS + 8 * (j % 4) + 4 * rt, 4)
            out.append(f'v_mfma_f32_16x16x32_bf16 {vr(AS + 4 * rt, 4)}, {f}, {f}, {"0" if j == 0 else vr(AS + 4 * rt, 4)}')
            out.append(f'v_mfma_f32_16x16x32_bf16 {vr(AM + 4 * rt, 4)}, {f}, {vr(ONE, 4)}, {"0" if j == 0 else vr(AM + 4 * rt, 4)}')
        return out

    mainloop(set_s, read_s, mfma_s, wsh_s)
    a.e('s_lshr_b32 s6, s60, 5')
    stats_finalize(a, AS, AM, 2, 12, 64, MR - RS, 'rs_mr')
    a.wait(lg='all')
    a.stamp('p0end')
    a.e('s_barrier')
    a.e(f's_cmp_ge_u32 s{sG}, 20')
    a.e(f's_cbranch_scc1 {Lj0}')
    a.e('v_bfe_u32 v5, v1, 2, 2')
    a.e('v_lshl_add_u32 v5, v9, 3, v5')
    a.e('v_mul_u32_u24 v5, 224, v5')
    a.e('v_and_b32 v0, 3, v1')
    a.e('v_lshl_add_u32 v5, v0, 3, v5')
    a.e(f's_sub_u32 s60, s{sWAVE}, 5')
    a.e('s_mul_i32 s60, s60, 7')
    a.e('s_lshl_b32 s6, s60, 10')
    a.e(f's_add_u32 s6, s6, {WP1}')
    a.e('v_add_u32 v5, s6, v5')
    a.wait(vm='wsh')
    for u in range(7):
        for rd in range(2):
            a.lds(f'ds_read_b64_tr_b16 {vr(16 + 4 * u + 2 * rd, 2)}, v5 offset:{rd * 4 * 224 + u * 32}', ('pf', u))
    a.e('s_lshl_b32 s6, s100, 1')
    a.e('s_add_u32 s60, s60, s6')
    a.e('s_mul_i32 s6, s60, 20')
    a.e(f's_add_u32 s6, s6, s{sG}')
    a.e('s_lshl_b32 s6, s6, 10')
    a.e(f's_min_u32 s98, s{sWAVE}, s{sC}')
    a.e('s_mov_b32 s99, 0x3f803f80')
    for u in range(7):
        a.wait(lg=('pf', u))
        a.e(f's_add_u32 s7, s6, {W1F + u * 20480}')
        if u >= 5:
            a.e('s_cmp_ge_u32 s98, 6')
            a.e(f's_cselect_b32 s7, 0x{OOB:x}, s7')
        a.e(f'buffer_store_dwordx4 {vr(16 + 4 * u, 4)}, v2, {sr(sWS, 4)}, s7 offen sc1')
        a.e(f'v_mov_b32 v{48 + u}, 0')
    a.e('v_mov_b32 v55, 0')
    for d in range(4):
        for u in range(7):
            a.e(f'v_dot2_f32_bf16 v{48 + u}, v{16 + 4 * u + d}, s99, v{48 + u}')
    a.e('s_nop 3')
    for u in range(0, 8, 2):
        a.e(f'v_permlane16_swap_b32 v{48 + u}, v{49 + u}')
    for u in range(0, 8, 2):
        a.e(f'v_add_f32 v{48 + u}, v{48 + u}, v{49 + u}')
    for u in (0, 4):
        a.e(f'v_permlane32_swap_b32 v{48 + u}, v{50 + u}')
    for u in (0, 4):
        a.e(f'v_add_f32 v{48 + u}, v{48 + u}, v{50 + u}')
    a.e(f's_mul_i32 s6, s{sG}, 6912')
    a.e('s_lshl_b32 s7, s60, 6')
    a.e('s_add_u32 s6, s6, s7')
    a.e(f's_add_u32 s6, s6, 0x{CSP:x}')
    a.e('v_lshlrev_b32 v5, 2, v1')
    a.e(f'buffer_store_dword v48, v5, {sr(sWS, 4)}, s6 offen sc1')
    a.e('s_cmp_ge_u32 s98, 6')
    a.e('s_cselect_b32 exec_lo, 0xffff, -1')
    a.e('s_cselect_b32 exec_hi, 0, 0xffff')
    a.e(f'buffer_store_dword v52, v5, {sr(sWS, 4)}, s6 offen offset:256 sc1')
    a.e('s_mov_b64 exec, -1')
    a.e(f's_branch {Lj0}')

    a.label(Lcol)
    a.restore(st0)
    AC, ONE, FC = 24, 44, 48
    for r in range(4):
        a.e(f'v_mov_b32 v{ONE + r}, 0x3f803f80')

    a.e('s_movk_i32 s7, 1120')
    for n in range(5):
        a.e(f'v_add_u32 v0, {64 * n}, v1')
        a.e('v_mul_u32_u24 v5, 6554, v0')
        a.e('v_lshrrev_b32 v5, 16, v5')
        a.e('v_lshlrev_b32 v0, 4, v0')
        a.e(f'v_mad_u32_u24 v{WA + n}, v5, s7, v0')

    def wsh_k():
        a.e(f's_mul_i32 s6, s{sG}, 40960')
        a.e(f's_mul_i32 s7, s{sC}, 160')
        a.e('s_add_u32 s6, s6, s7')
        a.e(f's_add_u32 s7, s6, {32 * 40960}')
        for t in range(2):
            for n in range(5):
                a.e(f's_mov_b32 m0, {W2S + t * 5120 + n * 1024}')
                a.vmem(f'buffer_load_dwordx4 v{WA + n}, {sr(sW2, 4)}, s{6 + t} offen lds', 'wsh')

    def set_k(sb, p):
        a.e(f'v_add_u32 v248, {sb + 8192}, v{vF0}')
        a.e(f'v_add_u32 v249, {sb + 8192}, v{vF1}')

    def read_k(j):
        return [lambda ct=ct: a.lds(f'ds_read_b128 {vr(FC + 20 * (j % 4) + 4 * ct, 4)}, v{248 + j % 2} offset:{((j % 4) // 2) * SLOTB + ct * 2048}', ('f', j)) for ct in range(5)]

    def mfma_k(j):
        return [f'v_mfma_f32_16x16x32_bf16 {vr(AC + 4 * ct, 4)}, {vr(ONE, 4)}, {vr(FC + 20 * (j % 4) + 4 * ct, 4)}, {"0" if j == 0 else vr(AC + 4 * ct, 4)}' for ct in range(5)]

    def w2_out():
        a.e('v_bfe_u32 v5, v1, 2, 2')
        a.e('v_lshl_add_u32 v5, v9, 3, v5')
        a.e('v_mul_u32_u24 v5, 160, v5')
        a.e('v_and_b32 v0, 3, v1')
        a.e('v_lshl_add_u32 v5, v0, 3, v5')
        a.e(f'v_add_u32 v5, {W2S}, v5')
        a.wait(vm='wsh')
        for u in range(10):
            for rd in range(2):
                a.lds(f'ds_read_b64_tr_b16 {vr(136 + 4 * u + 2 * rd, 2)}, v5 offset:{(u // 5) * 5120 + (u % 5) * 32 + rd * 640}', ('pf', u))
        a.e(f's_mul_i32 s6, s{sC}, 54')
        a.e(f's_add_u32 s6, s6, s{sG}')
        a.e('s_mul_i32 s6, s6, 5120')
        a.e(f's_add_u32 s6, s6, 0x{W2F:x}')
        for u in range(10):
            if u == 5:
                a.e(f's_cmp_ge_u32 s{sG}, 22')
                a.e(f's_cselect_b32 s6, 0x{OOB:x}, s6')
            a.wait(lg=('pf', u))
            a.e(f's_add_u32 s7, s6, {(u // 5) * 32 * 5120 + (u % 5) * 1024}')
            a.vmem(f'buffer_store_dwordx4 {vr(136 + 4 * u, 4)}, v2, {sr(sWS, 4)}, s7 offen sc1', 'w2o')

    EW = OPT.get('ew', 1)
    if EW:
        wsh_k()
        def w2_flag():
            side('nonc')
            a.wait(vm='w2o')
            setflag(a, PH_V[0], 5)
        if OPT.get('wf4', 1):
            mainloop(set_k, read_k, mfma_k, None, {2: w2_out, 4: w2_flag})
        else:
            mainloop(set_k, read_k, mfma_k, None, {2: w2_out})
            setflag(a, PH_V[0], 5)
    else:
        mainloop(set_k, read_k, mfma_k, wsh_k)
    a.e('v_lshlrev_b32 v12, 2, v8')
    for ct in range(5):
        a.lds(f'ds_write_b32 v12, v{AC + 4 * ct} offset:{CS + ct * 64}')
    a.wait(lg='all')
    a.stamp('p0end')
    a.e('s_barrier')
    if not EW:
        w2_out()
    a.e(f's_cmp_ge_u32 s{sG}, 8')
    a.e(f's_cbranch_scc1 {Lj0}')
    a.e(f's_lshl_b32 s6, s{sG}, 11')
    a.e(f's_add_u32 s7, s6, {W1L}')
    a.e(f'v_add_u32 v248, s7, v{vF0}')
    a.e(f'v_add_u32 v249, s7, v{vF1}')
    a.lds('ds_read_b128 v[16:19], v248', 'ws')
    a.lds('ds_read_b128 v[20:23], v249', 'ws')
    a.e(f's_lshl_b32 s7, s{sC}, 14')
    a.e('s_add_u32 s6, s6, s7')
    a.e(f's_add_u32 s6, s6, 0x{W1S:x}')
    a.e('s_mov_b32 s98, 0x05040100')
    a.e('s_mov_b32 s99, 0x07060302')
    a.wait(lg='ws')
    for half in range(2):
        for d in range(4):
            a.e(f'v_perm_b32 v{24 + 4 * half + d}, v{16 + 2 * d + 1}, v{16 + 2 * d}, s{98 + half}')
        a.e(f'buffer_store_dwordx4 {vr(24 + 4 * half, 4)}, v2, {sr(sWS, 4)}, s6 offen offset:{half * 1024} sc1')
    a.label(Lj0)
    a.e('s_nop 1')
    a.restore(stC)
    v_out_addr(a)
    if EW:
        a.e(f's_lshl_b32 s67, s{sC}, 10')
        a.e('s_add_u32 s67, s67, 896')
        pW = (253, 67, PH_V[0], 32, 13)
        poll_issue(a, *pW)
    a.wait(lg='all')
    a.e('s_barrier')
    a.stamp('p0vt')
    v_out(a, 0, VT0, 64)


    LSC = ' sc1'

    def xstore(text, tag, local):
        if not local:
            a.vmem(text + ' sc1', tag)
            return
        L, Lj = a.newlab('Lst'), a.newlab('Lsj')
        a.e('s_cmp_eq_u32 s26, 0')
        a.e(f's_cbranch_scc1 {L}')
        a.e(text + ' sc1')
        a.e(f's_branch {Lj}')
        a.label(L)
        a.vmem(text, tag)
        a.label(Lj)
        a.e('s_nop 1')

    def warm(vd, sbase, add, n, step=8192, lanes=None):
        a.e('v_lshlrev_b32 v0, 7, v1')
        for k in range(n):
            a.e(f's_add_u32 s64, s{sbase}, 0x{add + k * step:x}')
            a.vmem(f'buffer_load_dword v{vd}, v0, {sr(sWS, 4)}, s64 offen sc1', 'warm')

    LP = OPT.get('lp', 0)
    if LP:
        X1B[1] = X1B[0]
        HB[1] = HB[0]

    def w1load(n):
        a.e(f's_add_u32 s64, s{sW1B}, {n * 1024}')
        a.vmem(f'buffer_load_dwordx4 {vr(RING[n % NR], 4)}, v2, {sr(sWS, 4)}, s64 offen sc1', ('w1', n))

    def stash(n):
        a.e(f's_add_u32 m0, s69, {(n % NST) * 1024}')
        a.e(f's_add_u32 s64, s{sW1B}, {20480 + n * 1024}')
        a.vmem(f'buffer_load_dwordx4 v2, {sr(sWS, 4)}, s64 offen sc1 lds', ('ws', n))

    def w2load(f):
        a.e(f's_add_u32 s64, s{sW2O}, {(f // 4) * 4096}')
        if f >= 30:
            a.e(f's_cmp_ge_u32 s{sWAVE}, 6')
            a.e(f's_cselect_b32 s64, 0x{OOB:x}, s64')
        a.vmem(f'buffer_load_dwordx4 {vr(w2reg(f), 4)}, v2, {sr(sWS, 4)}, s64 offen offset:{(f % 4) * 1024} sc1', ('w2', f))

    def dest_row(vd):
        a.e(f's_lshl_b32 s6, s{sRHO}, 5')
        a.e(f'v_add_u32 v{vd}, s6, v10')
        a.e(f'v_sub_u32 v11, 63, v{vd}')
        a.e('v_sub_u32 v12, 32, v10')
        a.e('v_and_b32 v12, 31, v12')
        a.e('v_sub_u32 v13, 63, v10')
        a.e(f's_cmp_eq_u32 s{sRHO}, 0')
        a.e('s_cselect_b64 vcc, -1, 0')
        a.e('v_cndmask_b32 v12, v13, v12, vcc')
        a.e(f's_cmp_eq_u32 s{sG}, 0')
        a.e('s_cselect_b64 vcc, -1, 0')
        a.e('v_cndmask_b32 v11, v11, v12, vcc')
        a.e(f's_cmp_eq_u32 s{sMIR}, 1')
        a.e('s_cselect_b64 vcc, -1, 0')
        a.e(f'v_cndmask_b32 v{vd}, v{vd}, v11, vcc')

    def w1_touch(vd, t0, t1):
        a.e('v_min_u32 v0, 23, v10')
        a.e('v_lshlrev_b32 v0, 7, v0')
        a.e('s_movk_i32 s7, 20480')
        a.e('v_mad_u32_u24 v0, v4, s7, v0')
        a.e('s_and_b32 s6, s101, 3')
        a.e('s_mul_i32 s6, s6, 3072')
        a.e('s_mul_i32 s7, s100, 40960')
        a.e('s_add_u32 s6, s6, s7')
        for t in range(t0, t1):
            a.e(f's_add_u32 s7, s6, {W1F + 8192 + t * 40960}')
            a.vmem(f'buffer_load_dword v{vd}, v0, {sr(sWS, 4)}, s7 offen sc1', 'touch')

    def stage_all():
        a.e('v_mul_u32_u24 v0, 40960, v4')
        a.e('v_lshl_add_u32 v0, v10, 4, v0')
        a.e(f's_mul_i32 s6, s{sC}, 2560')
        a.e(f's_add_u32 s62, s{sGCM}, 0x{X2B:x}')
        for p in range(12):
            if p < 5:
                a.e(f's_add_u32 s64, s6, {p * 512}')
            elif p < 11:
                a.e(f's_sub_u32 s64, {(70 + p) * 512}, s6')
                if p == 10:
                    a.e(f's_cmp_eq_u32 s{sC}, 0')
                    a.e('s_cselect_b32 s64, 0, s64')
            else:
                a.e(f's_movk_i32 s64, {40 * 512}')
            a.e('s_add_u32 s64, s64, s62')
            a.e(f's_mov_b32 m0, {XRL1 + p * 1024}')
            a.vmem(f'buffer_load_dwordx4 v0, {sr(sWS, 4)}, s64 offen sc1 lds', 'xrd')
        a.e('v_lshrrev_b32 v0, 2, v1')
        a.e('v_lshlrev_b32 v0, 18, v0')
        a.e('v_and_b32 v11, 3, v1')
        a.e('v_lshl_add_u32 v0, v11, 4, v0')
        for w in range(8):
            rb = w >> 1
            a.e(f's_lshl_b32 s64, s{sG if rb < 2 else sTAU1}, 12')
            a.e(f's_add_u32 s64, s64, {(rb % 2) * 16 * 64 * 4096}')
            a.e(f's_mov_b32 m0, {TWL1 + w * 1024}')
            a.vmem(f'buffer_load_dwordx4 v0, {sr(sCS if w % 2 else 8, 4)}, s64 offen lds', 'twd')

    def a2_pre(l, hook=lambda: None, mid=lambda: None):
        xb, A, shB, twb = ((XRL0, 192, 4, TWL0), (XRL1, 16, 10, TWL1))[l]
        dest_row(5)
        a.e(f'v_mul_u32_u24 v7, {A}, v5')
        a.e(f'v_add_u32 v7, {xb}, v7')
        a.e(f's_lshl_b32 s6, s{sKT}, 2')
        a.e(f's_cmp_eq_u32 s{sMIR}, 1')
        a.e('s_cselect_b64 s[76:77], -1, 0')
        a.e(f's_cmp_eq_u32 s{sC}, 0')
        a.e('s_cselect_b32 s7, 11, 0')
        for h in range(2):
            a.e(f'v_add3_u32 v11, v4, s6, {2 * h}')
            a.e('v_min_u32 v11, 4, v11')
            a.e('v_sub_u32 v12, 9, v11')
            a.e('v_cndmask_b32 v12, v11, v12, s[76:77]')
            a.e(f'v_lshl_add_u32 v12, v12, {shB}, v7')
            a.lds(f'ds_read_b128 {vr(XM + 4 * h, 4)}, v12', 'xr')
            a.e('v_mov_b32 v13, s7')
            a.e('v_cmp_eq_u32 vcc, 0, v11')
            a.e('v_cndmask_b32 v13, v11, v13, vcc')
            a.e('v_sub_u32 v12, 10, v11')
            a.e('v_cndmask_b32 v12, v13, v12, s[76:77]')
            a.e(f'v_lshl_add_u32 v12, v12, {shB}, v7')
            a.lds(f'ds_read_u16 v{XE + h}, v12', 'xr')
        a.e('v_bfe_u32 v11, v1, 2, 1')
        a.e('v_and_b32 v12, 1, v1')
        a.e('v_lshlrev_b32 v12, 4, v12')
        a.e('v_mov_b32 v13, 0x3f80')
        a.e('v_lshlrev_b32 v12, v12, v13')
        a.e('v_cmp_eq_u32 vcc, v11, v4')
        a.e('v_cndmask_b32 v12, 0, v12, vcc')
        a.e('v_bfe_u32 v13, v1, 1, 1')
        a.e('v_bfe_u32 v11, v1, 3, 2')
        a.e('v_lshl_add_u32 v13, v11, 1, v13')
        for r in range(8):
            a.e(f'v_cmp_eq_u32 vcc, {r}, v13')
            a.e(f'v_cndmask_b32 v{ID + r}, 0, v12, vcc')
        mid()
        hook()
        a.wait(lg='xr')
        Lr, Lj = a.newlab('Lxr'), a.newlab('Lxj')
        a.e('v_mov_b32 v11, 0xffff')
        a.e(f's_cmp_eq_u32 s{sMIR}, 1')
        a.e(f's_cbranch_scc1 {Lr}')
        for k in range(2):
            m, o = XM + 4 * k, XR + 4 * k
            a.e(f'v_bfi_b32 v{o}, v11, v{XE + k}, v{m}')
            for d in range(1, 4):
                a.e(f'v_mov_b32 v{o + d}, v{m + d}')
        a.e(f's_branch {Lj}')
        a.label(Lr)
        for k in range(2):
            m, o = XM + 4 * k, XR + 4 * k
            a.e(f'v_bfi_b32 v{o}, v11, v{XE + k}, v{m + 3}')
            a.e(f'v_bfi_b32 v{o + 1}, v11, v{m + 3}, v{m + 2}')
            a.e(f'v_bfi_b32 v{o + 2}, v11, v{m + 2}, v{m + 1}')
            a.e(f'v_bfi_b32 v{o + 3}, v11, v{m + 1}, v{m}')
        a.label(Lj)
        a.e('v_lshrrev_b32 v11, 4, v10')
        a.e('v_lshlrev_b32 v11, 11, v11')
        a.e('v_lshl_add_u32 v11, v8, 6, v11')
        a.e('v_lshl_add_u32 v11, v4, 4, v11')
        a.e(f's_lshl_b32 s6, s{sRHO}, 12')
        a.e(f's_add_u32 s6, s6, {twb}')
        a.e('v_add_u32 v11, s6, v11')
        for ks in range(4):
            a.lds(f'ds_read_b128 {vr(TW + 4 * ks, 4)}, v11 offset:{(ks // 2) * 1024 + (ks % 2) * 32}', 'tw')
        a.e(f'v_mfma_f32_32x32x16_bf16 {vr(Y, 16)}, {vr(ID, 4)}, {vr(XR, 4)}, 0')
        a.e(f'v_mfma_f32_32x32x16_bf16 {vr(Y, 16)}, {vr(ID + 4, 4)}, {vr(XR + 4, 4)}, {vr(Y, 16)}')
        hook()
        a.e(f's_lshl_b32 s6, s{sC}, 2')
        a.e(f's_lshl_b32 s7, s{sMIR}, 5')
        a.e('s_add_u32 s6, s6, s7')
        a.e(f's_lshl_b32 s7, s{sC}, 1')
        a.e(f's_add_u32 s7, s7, s{sMIR}')
        a.e('s_add_u32 s7, s7, 64')
        a.e(f's_cmp_eq_u32 s{sKT}, 0')
        a.e('s_cselect_b32 s6, s6, s7')
        a.e('s_lshl_b32 s6, s6, 10')
        a.e('v_lshlrev_b32 v5, 4, v5')
        a.e('v_lshl_add_u32 v5, v4, 10, v5')
        a.e('v_add_u32 v5, s6, v5')
        a.e(f'v_add_u32 v6, {R1}, v5')
        a.e('s_cmp_eq_u32 s6, 32768')
        a.e('s_cselect_b32 s6, 0xffff, 0')
        a.e('v_mov_b32 v12, s6')
        a.e('v_cmp_eq_u32 vcc, 0, v4')
        a.e('v_cndmask_b32 v12, 0, v12, vcc')
        a.e('v_bfe_u32 v13, v1, 2, 2')
        a.e('v_lshl_add_u32 v13, v4, 3, v13')
        a.e('v_mul_u32_u24 v13, 192, v13')
        a.e('v_bfe_u32 v11, v1, 4, 1')
        a.e('v_lshlrev_b32 v11, 1, v11')
        a.e('v_and_b32 v0, 1, v1')
        a.e(f's_lshl_b32 s7, s{sKT}, 2')
        a.e('v_add3_u32 v11, v11, v0, s7')
        a.e('v_min_u32 v11, 4, v11')
        a.e('v_lshl_add_u32 v13, v11, 4, v13')
        a.e('v_bfe_u32 v11, v1, 1, 1')
        a.e('v_lshl_add_u32 v13, v11, 3, v13')
        a.e(f's_mul_i32 s6, s{sRHO}, 6144')
        a.e('s_add_u32 s6, s6, s58')
        a.e('v_add_u32 v13, s6, v13')
        a.e(f'v_mov_b32 v11, v{XR}')
        hook()
        a.wait(lg='tw')
        for r in range(8, 16):
            a.e(f'v_xor_b32 v{TW + r}, 0x80008000, v{TW + r}')

    def reduce_addr(l, second):
        a.e(f's_add_u32 s6, s{sWAVE}, {8 if second else 0}')
        a.e('s_cmp_ge_u32 s6, 5')
        a.e('s_cselect_b32 s7, 5, 0')
        a.e(f's_cselect_b32 s62, 0, {R1}')
        if l == 0:
            a.e('s_cselect_b32 s65, 40960, 0')
        else:
            a.e(f's_cselect_b32 s65, s{sTAU1}, s{sG}')
        a.e('s_sub_u32 s6, s6, s7')
        a.e('s_lshl_b32 s7, s6, 10')
        a.e('s_add_u32 s62, s62, s7')
        a.e('v_lshrrev_b32 v11, 4, v10')
        a.e('v_mul_u32_u24 v11, 5120, v11')
        a.e('v_lshl_add_u32 v11, v4, 9, v11')
        a.e('v_lshl_add_u32 v11, v8, 4, v11')
        a.e('v_add_u32 v11, s62, v11')
        a.e(f'v_add_u32 v13, {5 * PRV}, v11')
        a.e('s_lshl_b32 s6, s6, 1')
        a.e(f's_mul_i32 s7, s{sC}, 10')
        a.e('s_add_u32 s6, s6, s7')
        a.e('v_add_u32 v7, s6, v4')
        if l == 0:
            a.e('v_lshlrev_b32 v7, 9, v7')
            a.e('v_lshl_add_u32 v7, v10, 4, v7')
            a.e(f's_add_u32 s65, s65, s{sGCM}')
            a.e(f's_add_u32 s65, s65, 0x{X2B:x}')
        else:
            a.e('v_lshlrev_b32 v7, 4, v7')
            a.e(f's_mov_b32 s7, {64 * 1280}')
            a.e('v_mad_u32_u24 v7, v10, s7, v7')
            a.e('s_mulk_i32 s65, 1280')

    def reduce_item(l):
        SUM, RB = 56, 64
        for h in range(2):
            a.lds(f'ds_read_b128 {vr(SUM + 4 * h, 4)}, v11 offset:{h * 256}', ('p', 0))
        for p in range(1, 7):
            for h in range(2):
                b, o = (11, p * PRV) if p < 5 else (13, (p - 5) * PRV)
                a.lds(f'ds_read_b128 {vr(RB + 8 * (p - 1) + 4 * h, 4)}, v{b} offset:{o + h * 256}', ('p', p))
        for p in range(1, 8):
            a.wait(lg=('p', p))
            for r in range(0, 8, 2):
                a.e(f'v_pk_add_f32 {vr(SUM + r, 2)}, {vr(SUM + r, 2)}, {vr(RB + 8 * ((p - 1) % 6) + r, 2)}')
            if p == 1:
                for h in range(2):
                    a.lds(f'ds_read_b128 {vr(RB + 4 * h, 4)}, v13 offset:{2 * PRV + h * 256}', ('p', 7))
        for r in range(4):
            a.e(f'v_cvt_pk_bf16_f32 v{SUM + r}, v{SUM + 2 * r}, v{SUM + 2 * r + 1}')
        if l == 0:
            a.vmem(f'buffer_store_dwordx4 {vr(SUM, 4)}, v7, {sr(sWS, 4)}, s65 offen sc1', 'xst')
        else:
            a.vmem(f'buffer_store_dwordx4 {vr(SUM, 4)}, v7, {sr(sOUT, 4)}, s65 offen', 'xst')

    def lin(n, sl, lds_add, ssrc, src_add, tag):
        for k in range(n):
            if k % 4 == 0:
                a.e(f's_add_u32 m0, s{sl}, {lds_add + k * 1024}')
                a.e(f's_add_u32 s64, s{ssrc}, 0x{src_add + k * 1024:x}')
            a.vmem(f'buffer_load_dwordx4 v2, {sr(sWS, 4)}, s64 offen offset:{(k % 4) * 1024} sc1 lds', tag)

    def cnt_add(addr, vt):
        a.e(f'v_mov_b32 v{vt}, {addr}')
        a.e('v_mov_b32 v0, 1')
        a.e('s_mov_b64 exec, 1')
        a.lds(f'ds_add_u32 v{vt}, v0', 'cnt')
        a.e('s_mov_b64 exec, -1')

    def cnt_peek(addr, vt):
        a.e(f'v_mov_b32 v{vt}, {addr}')
        a.lds(f'ds_read_b32 v{vt}, v{vt}', 'peek')

    def cnt_wait(addr, vt, peeked=False):
        L, Ld = a.newlab('Lcw'), a.newlab('Lcd')
        if peeked:
            a.wait(lg='peek')
            a.e(f'v_cmp_gt_u32 vcc, 8, v{vt}')
            a.e(f's_cbranch_vccz {Ld}')
            st = a.save()
        a.e('s_mov_b32 s61, 0')
        a.label(L)
        a.e(f'v_mov_b32 v{vt}, {addr}')
        a.e(f'ds_read_b32 v{vt}, v{vt}')
        a.e('s_waitcnt lgkmcnt(0)')
        a.lg.clear()
        a.e(f'v_cmp_gt_u32 vcc, 8, v{vt}')
        a.e(f's_cbranch_vccz {Ld}')
        a.e('s_sleep 1')
        a.e('s_add_u32 s61, s61, 1')
        a.e(f's_cmp_lt_u32 s61, {SPIN}')
        a.e(f's_cbranch_scc1 {L}')
        a.label(Ld)
        if peeked:
            a.restore(st)

    GO, DONE = STATS + 528, STATS + 544

    def sig_set(base, vt):
        a.e(f'v_mov_b32 v{vt}, s56')
        a.lds(f'ds_write_b32 v{vt}, v{vt} offset:{base - 4}', 'sig')

    def sig_wait(base, vt, slp):
        L, Ld = a.newlab('Lgw'), a.newlab('Lgd')
        a.e('s_mov_b32 s61, 0')
        a.label(L)
        a.e(f'v_mov_b32 v{vt}, s56')
        a.e(f'ds_read_b32 v{vt}, v{vt} offset:{base - 4}')
        a.e('s_waitcnt lgkmcnt(0)')
        a.lg.clear()
        a.e(f'v_cmp_eq_u32 vcc, 0, v{vt}')
        a.e(f's_cbranch_vccz {Ld}')
        a.e(f's_sleep {slp}')
        a.e('s_add_u32 s61, s61, 1')
        a.e(f's_cmp_lt_u32 s61, {SPIN}')
        a.e(f's_cbranch_scc1 {L}')
        a.label(Ld)

    if OPT.get('abl_h'):
        a.e(f's_mov_b32 s{sHK}, 0x70000000')
    if OPT.get('abl_w1'):
        a.e(f's_mov_b32 s{sW1B}, 0x70000000')
    if OPT.get('abl_w2'):
        a.e(f's_mov_b32 s{sW2O}, 0x70000000')
    if OPT.get('abl_hs'):
        a.e(f's_mov_b32 s{sHG}, 0x70000000')
    bg = BG()
    a.e(f's_mul_i32 s68, s{sWAVE}, 5120')
    a.e(f's_mul_i32 s69, s{sWAVE}, {PRV}')
    a.e(f's_cmp_lt_u32 s{sC}, 4')
    a.e('s_cselect_b32 s58, 16384, 0')
    a.e(f's_add_u32 s58, s58, {R1 + 32768}')
    def pv0():
        NBW = OPT.get('bgw', 10)
        if EW:
            Ln, Lj = a.newlab('Lwn'), a.newlab('Lwj')
            a.wait(vm='poll')
            a.e(f's_add_u32 s59, s{sNON}, {PH_V[0]}')
            a.e('v_subrev_u32 v253, s59, v253')
            a.e('v_cmp_le_u32 vcc, 16, v253')
            a.e('s_mov_b32 s57, 0')
            a.e(f's_cbranch_vccnz {Ln}')
            a.e('s_mov_b32 s57, 1')
            st = a.save()
            for f in range(NBW):
                w2load(f)
            a.wait(vm='vo')
            a.e(f's_branch {Lj}')
            a.label(Ln)
            a.restore(st)
            a.wait(vm='vo')
            a.label(Lj)
        else:
            a.wait(vm='vo')
        a.e('s_barrier')
        a.stamp('PV0')
        setflag_w0(a, PH_V[0], 7)
        if EW:
            Lj = a.newlab('Lwj')
            a.e('s_cmp_eq_u32 s57, 1')
            a.e(f's_cbranch_scc1 {Lj}')
            poll(a, *pW)
            for f in range(NBW):
                w2load(f)
            a.label(Lj)
            a.stamp('pollW')
            for f in range(NBW, 30):
                bg.add(lambda f=f: w2load(f))
    a2_pre(0, lambda: bg.run(OPT.get('bgw2', 4)), pv0)

    for l in range(2):
        a.e(f's_lshl_b32 s67, s{sWAVE}, 15')
        a.e(f's_lshl_b32 s6, s{sC}, 10')
        a.e('s_add_u32 s67, s67, s6')
        pV = (7, 67, PH_V[l], 4, 13)
        bg.run(OPT.get('bgpv', 0))
        poll_issue(a, *pV)
        bg.run(OPT.get('bgpv2', 0))
        poll_check(a, *pV)
        if l == 0:
            def id_issue():
                a.e(f'v_mov_b32 v72, s{sFSRC}')
                a.e(f'v_mov_b32 v73, s{sFPAR}')
                a.e('v_cmp_eq_u32 vcc, 0, v1')
                a.e('v_cndmask_b32 v72, v73, v72, vcc')
                a.e(f's_mov_b32 s60, 0x{FLG:x}')
                a.vmem(f'buffer_load_dwordx2 v[72:73], v72, {sr(sWS, 4)}, s60 offen sc1', 'ids')
        a.stamp(f'pollV{l}')
        a.e(f's_mul_i32 s63, s{sWAVE}, 768')
        a.e('s_add_u32 s62, s63, s58')
        a.e('s_mov_b32 exec_hi, 0xffff')
        for rho in range(2):
            a.e(f's_lshl_b32 s6, s{sG if rho == 0 else sTAU1}, 3')
            a.e(f's_add_u32 s6, s6, s{sC}')
            a.e('s_mulk_i32 s6, 6144')
            a.e('s_add_u32 s6, s6, s63')
            a.e(f's_add_u32 s6, s6, 0x{VB[l]:x}')
            a.e(f's_add_u32 m0, s62, {rho * 6144}')
            a.vmem(f'buffer_load_dwordx4 v2, {sr(sWS, 4)}, s6 offen sc1 lds', 'v')
        a.e('s_mov_b64 exec, -1')
        if l == 0:
            id_issue()
        bg.run(OPT.get('bgv', 4))
        a.e('v_lshlrev_b32 v7, 3, v1')
        a.e(f'v_mov_b32 v{VF}, 0')
        a.e(f'v_mov_b32 v{VF + 1}, 0')
        a.lds(f'ds_write_b64 v7, {vr(VF, 2)} offset:{STATS + 256}', 'clr')
        a.wait(vm='v', lg='clr')
        a.e('s_barrier')
        a.stamp(f'V{l}')
        for ks in range(4):
            for rd in range(2):
                a.lds(f'ds_read_b64_tr_b16 {vr(VF + 4 * ks + 2 * rd, 2)}, v13 offset:{(16 * (ks % 2) + 4 * rd) * 192 + (ks // 2) * 80}', ('vf', ks))
        if l == 0:
            for n in range(NR):
                bg.add(lambda n=n: w1load(n))
                if n < NST:
                    bg.add(lambda n=n: stash(n))
            bg.run(OPT.get('bg0', 2))

        a.e(f's_add_u32 s63, s{sGCM}, 0x{X1B[l]:x}')
        a.e(f's_cmp_eq_u32 s{sKT}, 0')
        a.e('s_cselect_b32 s70, -1, 0')
        a.e(f's_cselect_b32 s71, s63, 0x{OOB:x}')
        for ks in range(4):
            a.wait(lg=('vf', ks))
            a.e(f'v_mfma_f32_32x32x16_bf16 {vr(Y, 16)}, {vr(VF + 4 * ks, 4)}, {vr(TW + 4 * ks, 4)}, {vr(Y, 16)}')
        for r in range(8):
            a.e(f'v_cvt_pk_bf16_f32 v{PK + r}, v{Y + 2 * r}, v{Y + 2 * r + 1}')
        a.e(f'v_bfi_b32 v{PK}, v12, v11, v{PK}')
        xstore(f'buffer_store_dwordx4 {vr(PK + 4, 4)}, v5, {sr(sWS, 4)}, s71 offen offset:2048', 'x1s', l == 1 and LP & 1)
        a.e('s_mov_b32 exec_hi, s70')
        xstore(f'buffer_store_dwordx4 {vr(PK, 4)}, v5, {sr(sWS, 4)}, s63 offen', 'x1s', l == 1 and LP & 1)
        a.lds(f'ds_write_b128 v6, {vr(PK, 4)}', 'x1w')
        a.e('s_mov_b32 exec_lo, s70')
        a.lds(f'ds_write_b128 v6, {vr(PK + 4, 4)} offset:2048', 'x1w')
        a.e('s_mov_b64 exec, -1')
        a.stamp(f'x1st{l}')
        a.e('s_mov_b32 s7, 0x3f803f80')
        for r in range(4):
            a.e(f'v_mov_b32 v{16 + r}, 0')
        for r in range(4):
            for h in range(2):
                a.e(f'v_dot2_f32_bf16 v{16 + 2 * h}, v{PK + 4 * h + r}, s7, v{16 + 2 * h}')
                a.e(f'v_dot2_f32_bf16 v{17 + 2 * h}, v{PK + 4 * h + r}, v{PK + 4 * h + r}, v{17 + 2 * h}')
        a.e('v_bfe_u32 v7, v5, 4, 6')
        a.e('v_lshlrev_b32 v7, 3, v7')
        a.e('s_nop 2')
        a.e('v_and_b32 v18, s70, v18')
        a.e('v_and_b32 v19, s70, v19')
        a.e('v_add_f32 v16, v16, v18')
        a.e('v_add_f32 v17, v17, v19')
        a.e('v_mov_b32 v18, v16')
        a.e('v_mov_b32 v19, v17')
        a.e(f's_mul_i32 s6, s{sMIR}, {PRV}')
        a.e(f's_lshl_b32 s7, s{sKT}, 9')
        a.e('v_permlane32_swap_b32 v16, v18')
        a.e('v_permlane32_swap_b32 v17, v19')
        a.e('v_add3_u32 v7, v7, s6, s6') if False else None
        a.e('s_add_u32 s6, s6, s7')
        a.e('v_add_u32 v7, s6, v7')
        a.e('v_and_b32 v18, s70, v18')
        a.e('v_and_b32 v19, s70, v19')
        a.e('v_add_f32 v16, v16, v18')
        a.e('v_add_f32 v17, v17, v19')
        a.lds(f'ds_write_b64 v7, v[16:17] offset:{PSUM}', 'x1w')
        bg.run(OPT.get('bgx0', 4 if l == 0 else 3))
        a.wait(vm='x1s', lg='all')
        a.e('s_barrier')
        a.stamp(f'X1s{l}')
        a.e(f's_lshl_b32 s65, s{sG}, 12')
        a.e(f's_add_u32 s65, s65, 0x{STG + l * 0x20000:x}')
        Ls1 = a.newlab('Ls1')
        a.e(f's_cmp_lg_u32 s{sWAVE}, s{sC}')
        a.e(f's_cbranch_scc1 {Ls1}')
        a.e('v_lshlrev_b32 v7, 3, v1')
        a.e(f'v_add_u32 v0, {PSUM}, v7')
        for k in range(4):
            a.e(f'ds_read_b64 {vr(64 + 2 * k, 2)}, v0 offset:{(k // 2) * PRV + (k % 2) * 512}')
        a.e(f's_lshl_b32 s6, s{sC}, 9')
        a.e('s_add_u32 s6, s6, s65')
        a.e('s_waitcnt lgkmcnt(0)')
        for k in range(1, 4):
            a.e(f'v_add_f32 v64, v64, v{64 + 2 * k}')
            a.e(f'v_add_f32 v65, v65, v{65 + 2 * k}')
        a.e(f'buffer_store_dwordx2 v[64:65], v7, {sr(sWS, 4)}, s6 offen sc1')
        a.label(Ls1)
        setflag_w0(a, PH_X1[l], 7)
        if l == 0:
            L, Ld = a.newlab('Lidp'), a.newlab('Lidd')
            a.e(f's_add_u32 s59, s{sNON}, {PH_V[0]}')
            a.wait(vm='ids')
            a.e('s_mov_b32 s61, 0')
            a.label(L)
            a.e('v_subrev_u32 v72, s59, v72')
            a.e('v_cmp_le_u32 vcc, 16, v72')
            a.e(f's_cbranch_vccz {Ld}')
            st = a.save()
            id_issue()
            a.restore(st)
            a.e('s_waitcnt vmcnt(0)')
            a.e('s_add_u32 s61, s61, 1')
            a.e(f's_cmp_lt_u32 s61, {SPIN}')
            a.e(f's_cbranch_scc1 {L}')
            a.e('v_mov_b32 v73, -1')
            a.label(Ld)
            a.e('s_nop 0')
            a.e('v_readlane_b32 s6, v73, 0')
            a.e('v_readlane_b32 s7, v73, 1')
            for r, sf in ((6, sFSRC), (7, sFPAR)):
                a.e(f's_cmp_eq_u32 s{r}, s{sXCC}')
                a.e(f's_cselect_b32 s{r}, 0x{LOC if OPT.get("loc", 1) else 0:x}, 0')
                a.e(f's_add_u32 s{sf}, s{sf}, s{r}')
            a.e('s_and_b32 s6, s6, s7')
            a.e('s_cselect_b32 s6, 0, 1')
            a.e(f'v_mov_b32 v72, {STATS + 520}')
            a.e('v_mov_b32 v73, s6')
            a.lds('ds_or_b32 v72, v73', 'idw')
        CP = 16
        if l == 0:
            a.e(f's_lshl_b32 s6, s{sU1}, 6')
            a.e('v_lshl_add_u32 v7, v10, 2, s6')
            a.e('s_movk_i32 s7, 6912')
            a.e('v_mad_u32_u24 v7, v4, s7, v7')
            for n in range(10):
                a.e(f's_mov_b32 s7, 0x{CSP + n * 2 * 6912:x}')
                a.vmem(f'buffer_load_dword v{CP + n}, v7, {sr(sWS, 4)}, s7 offen sc1', 'cs')
        bg.run(OPT.get('bgx1', 3))
        pX = (7, sFSRC, PH_X1[l], 1)
        poll_issue(a, *pX)
        RSC, RA = 2 * PRV + 9216, 37
        Lw7 = a.newlab('Lw7')
        a.e(f's_cmp_lg_u32 s{sWAVE}, 7')
        a.e(f's_cbranch_scc1 {Lw7}')
        if True:
            a.e(f's_cmp_ge_u32 s{sC}, 4')
            a.e('s_cselect_b64 s[70:71], -1, 0')
            a.e('v_and_b32 v11, 7, v8')
            a.e('v_sub_u32 v12, 8, v11')
            a.e('v_cndmask_b32 v12, v11, v12, s[70:71]')
            a.e('v_lshrrev_b32 v13, 3, v8')
            a.e('v_add_u32 v0, 2, v13')
            a.e('v_cmp_eq_u32 vcc, 0, v11')
            a.e('v_cndmask_b32 v12, v12, 0, vcc')
            a.e('v_cndmask_b32 v13, v13, v0, vcc')
            a.e('v_and_b32 v0, 1, v12')
            a.e('v_lshlrev_b32 v0, 4, v0')
            a.e('v_mov_b32 v36, 0x3f80')
            a.e('v_lshlrev_b32 v0, v0, v36')
            a.e('v_cmp_eq_u32 vcc, v13, v9')
            a.e('v_cndmask_b32 v0, 0, v0, vcc')
            a.e('v_lshrrev_b32 v12, 1, v12')
            for r in range(4):
                a.e(f'v_cmp_eq_u32 vcc, {r}, v12')
                a.e(f'v_cndmask_b32 v{32 + r}, 0, v0, vcc')
            a.lds(f'ds_write_b128 v2, v[32:35] offset:{RSC}', 'rw')
            a.e(f'v_lshlrev_b32 v{RA}, 2, v1')
            a.e(f's_mul_i32 s6, s{sC}, 10')
            a.e('v_cmp_le_u32 s[72:73], 2, v9')
            for ft in range(5):
                a.e('v_and_b32 v11, 1, v9')
                a.e(f'v_add3_u32 v11, v11, s6, {2 * ft}')
                a.e('v_sub_u32 v12, 119, v11')
                a.e('v_cndmask_b32 v12, v11, v12, s[70:71]')
                a.e('v_sub_u32 v13, 120, v11')
                a.e('v_cndmask_b32 v13, v11, v13, s[70:71]')
                if ft == 0:
                    a.e('v_cmp_eq_u32 vcc, 0, v13')
                    a.e('v_cndmask_b32 v13, v13, 40, vcc')
                    a.e('v_cmp_eq_u32 vcc, 80, v13')
                    a.e('v_cndmask_b32 v13, v13, 0, vcc')
                a.e('v_cndmask_b32 v12, v12, v13, s[72:73]')
                a.e('v_mul_u32_u24 v13, 13108, v12')
                a.e('v_lshrrev_b32 v13, 16, v13')
                a.e('v_sub_u32 v11, v12, v13')
                a.e('v_mul_u32_u24 v0, 5, v13')
                a.e('v_sub_u32 v12, v12, v0')
                a.e('v_and_b32 v0, 7, v13')
                a.e('v_lshrrev_b32 v13, 3, v13')
                a.e('v_lshl_add_u32 v13, v0, 1, v13')
                a.e('v_add_u32 v13, 64, v13')
                a.e('v_cmp_eq_u32 vcc, 4, v12')
                a.e('v_cndmask_b32 v11, v11, v13, vcc')
                a.e('v_lshlrev_b32 v11, 10, v11')
                a.e('v_lshl_add_u32 v11, v8, 4, v11')
                a.e(f'v_add_u32 v11, {R1}, v11')
                a.lds(f'ds_write_b32 v{RA}, v11 offset:{RSC + PRV + (ft // 4) * PRV + (ft % 4) * 256}', 'rw')
        a.label(Lw7)
        poll_check(a, *pX)
        a.stamp(f'pollX1{l}')
        a.e(f's_lshl_b32 s6, s{sWAVE}, 12')
        a.e('s_lshr_b32 s7, s6, 1')
        a.e('s_add_u32 s66, s63, s6')
        a.e('s_add_u32 s57, s63, s7')
        a.e(f's_cmp_eq_u32 s{sWAVE}, s{sC}')
        a.e(f's_cselect_b32 s66, 0x{OOB:x}, s66')
        a.e(f's_cselect_b32 s57, 0x{OOB:x}, s57')
        a.e('s_cselect_b32 s67, 0x14000, s6')
        a.e('s_cselect_b32 s56, 0x14000, s7')
        lin(4, 67, R1, 66, 0, ('x1', 0))
        if l == 0:
            for n in range(1, 10):
                a.e(f'v_add_f32 v{CP}, v{CP}, v{CP + n}')
            a.e(f'v_mov_b32 v15, v{CP}')
            a.e(f'v_permlane32_swap_b32 v{CP}, v15')
            a.e(f'v_add_f32 v15, v{CP}, v15')
        a.e(f's_lshl_b32 s6, s{sWAVE}, 7')
        a.e('v_lshl_add_u32 v7, v10, 2, s6')
        a.lds(f'ds_write_b32 v7, v15 offset:{CSS}', 'csw')
        a.e(f'v_add_u32 v5, {R1}, v3')
        a.e(f'v_add_u32 v6, {R1 + 40960}, v3')
        if OPT.get('x1o', 0):
            a.e('s_waitcnt vmcnt(3)')
        lin(4, 67, R1 + 32768, 66, 32768, ('x1', 1))
        lin(2, 56, R1 + 65536, 57, 65536, ('x1', 1))
        a.wait(vm=('x1', 0), lg='all')
        a.e('s_barrier')
        a.stamp(f'B1{l}')
        if l == 0:
            a.e('ds_read_b32 v73, v72')
            a.e('s_waitcnt lgkmcnt(0)')
            a.e('v_readfirstlane_b32 s26, v73')
        Ls2 = a.newlab('Ls2')
        a.e(f's_cmp_lg_u32 s{sWAVE}, s{sC}')
        a.e(f's_cbranch_scc1 {Ls2}')
        st = a.save()
        setflag(a, PH_S[l], 12)
        a.restore(st)
        a.label(Ls2)
        LS, Lid, Lg2, Ljoin = (a.newlab(x) for x in ('LS', 'Lid', 'Lg2', 'Ljoin'))
        a.e(f's_cmp_eq_u32 s{sWAVE}, 7')
        a.e(f's_cbranch_scc1 {LS}')
        a.e(f's_cmp_ge_u32 s{sWAVE}, s{sU2}')
        a.e(f's_cbranch_scc1 {Lid}')
        st0 = a.save()
        q = list(bg.q)
        bg.q = []
        assert l == 1 or not EW or ('w2', 29) in a.seen
        NW2 = OPT.get('nw2', 20)
        need2 = list(range(30)) if l == 0 and not EW else []

        def xaddr(ks, rt):
            return (5, ks * 4096 + rt * 256) if ks < 10 else (6, (ks - 10) * 4096 + rt * 256)

        def xreads(n, nst=2):
            out = []
            for rt in range(4):
                b, o = xaddr(n, rt)
                out.append(lambda rt=rt, b=b, o=o: a.lds(f'ds_read_b128 {vr(XF + 16 * (n % nst) + 4 * rt, 4)}, v{b} offset:{o}', ('xf', n)))
            return out

        EP = XF

        def epi_reads():
            a.e('v_lshlrev_b32 v7, 2, v8')
            for rt in range(4):
                a.lds(f'ds_read_b32 v{EP + 12 + rt}, v7 offset:{STATS + 256 + rt * 64}', 'st')
            for rt in range(4):
                a.lds(f'ds_read_b32 v{EP + 8 + rt}, v7 offset:{STATS + rt * 64}', 'st')

        p1 = (11, sFSRC, PH_H[l], 4, 7, 0)
        p2 = (13, sFSRC, PH_H[l], 3, 7, 4)

        young = {'n': 0}
        orig_vmem = a.vmem

        def vmem_cnt(s, tag=None):
            young['n'] += 1
            orig_vmem(s, tag)

        def ack_and_flag(slot):
            a.e(f's_waitcnt vmcnt({young["n"]})')
            a.stamp(f'ack{slot}')
            del a.vm[:max(0, len(a.vm) - young['n'])]
            a.vmem = orig_vmem
            setflag(a, slot, 12)

        acc = lambda rt, ft: vr(ACCB + 4 * (rt * 5 + ft), 4)
        seq = [(s, rt) for s in range(4) for rt in range(4)] + [(s, rt) for s in range(4, 7) for rt in (0, 1)] + [(s, rt) for rt in (2, 3) for s in range(4, 7)]
        hb = lambda z: vr(HBUF[(z + 1) % 5], 4)

        def hread(z):
            s, rt = seq[z]
            if z < 12:
                a.wait(vm=('h', s))
                a.lds(f'ds_read_b128 {hb(z)}, v5 offset:{(s - 1) * 4096 + rt * 256}', ('hz', z))
            elif z < 16:
                a.wait(vm=('h', 3))
                a.lds(f'ds_read_b128 {hb(z)}, v6 offset:{rt * 256}', ('hz', z))
            else:
                hf = rt // 2
                a.wait(vm=('h2', hf, s))
                a.lds(f'ds_read_b128 {hb(z)}, v{5 if hf else 6} offset:{(s - 4) * 2048 + (rt % 2) * 256}', ('hz', z))

        def zmf(z, first=False, fill=()):
            s, rt = seq[z]
            if z < 4:
                a.wait(vm=[('h', 0)] + [('w2', k) for k in range(5)])
            else:
                a.wait(vm=[('w2', 5 * s + k) for k in range(5)], lg=('hz', z))
            weave(a, [f'v_mfma_f32_16x16x32_bf16 {acc(rt, ft)}, {vr(w2reg(5 * s + ft), 4)}, {hb(z)}, {"0" if first else acc(rt, ft)}' for ft in range(5)], fill)

        PR = {0: (1, 2, 1), 1: (2, 1, 0), 2: (1, 1, 0), 3: (1, 0, 0)}[OPT.get('pr', 1)]

        def guarded(nwaves, frs):
            Lf = a.newlab('Lf')
            a.e(f's_cmp_ge_u32 s{sWAVE}, {nwaves}')
            a.e(f's_cbranch_scc1 {Lf}')
            st = a.save()
            for f in frs:
                w2load(f)
            seen = set(a.seen)
            a.restore(st)
            a.seen = seen
            a.label(Lf)

        def usread(n):
            a.wait(vm=('ws', n))
            a.lds(f'ds_read_b128 {vr(JIT[n % 2], 4)}, v13 offset:{(n % NST) * 1024}', ('us', n))

        def h1_all():
            a.e(f's_add_u32 s64, s{sHK}, 0x{HB[l]:x}')
            for rt in range(4):
                a.vmem(f'buffer_load_dwordx4 {vr(HBUF[rt + 1], 4)}, v3, {sr(sWS, 4)}, s64 offen offset:{rt * 256} sc1', ('h', 0))
            lin(4, 69, 0, sHK, HB[l] + 4096, ('h', 1))
            lin(4, 69, 4096, sHK, HB[l] + 8192, ('h', 2))

        def gemm(late, q, qlow=False):
            pw1, pws = [NR], [NST]
            a.e('v_add_u32 v13, s69, v2')
            for f in xreads(0):
                f()
            usread(0)
            for n in range(20):
                if n == 7:
                    cnt_wait(CNT1, 7, True)
                a.wait(vm=('w1', n), lg=[('xf', n), ('us', n)])
                mf = []
                for h in range(2):
                    for rt in range(4):
                        ac = vr(ACCX + 16 * h + 4 * rt, 4)
                        w = RING[n % NR] if h == 0 else JIT[n % 2]
                        mf.append(f'v_mfma_f32_16x16x32_bf16 {ac}, {vr(w, 4)}, {vr(XF + 16 * (n % 2) + 4 * rt, 4)}, {"0" if n == 0 else ac}')
                fl = []
                if n == 6:
                    fl.append(lambda: cnt_peek(CNT1, 7))
                if n + 1 < 20:
                    fl += [lambda: usread(n + 1)] + xreads(n + 1)
                nq = 0
                while q and nq < 3 and not qlow:
                    fl.append(q.pop(0))
                    nq += 1
                if not q or qlow:
                    while pws[0] < 20 and pws[0] - NST <= n and nq < 2:
                        fl.append(lambda k=pws[0]: stash(k))
                        pws[0] += 1
                        nq += 1
                    while pw1[0] < 20 and pw1[0] - NR <= n and nq < 3:
                        fl.append(lambda k=pw1[0]: w1load(k))
                        pw1[0] += 1
                        nq += 1
                while q and nq < 3 and qlow:
                    fl.append(q.pop(0))
                    nq += 1

                if n == 19:
                    def ep():
                        a.e(f's_lshl_b32 s6, s{sWAVE}, 7')
                        a.e('v_lshl_add_u32 v7, v9, 4, s6')
                        for h in range(2):
                            a.lds(f'ds_read_b128 {vr(EP + 4 * h, 4)}, v7 offset:{CSS + h * 64}', 'csr')
                        epi_reads()
                    fl = [ep] + ([lambda: None] * 5 + [lambda: poll_issue(a, *p1)] if late else [])
                weave(a, mf, fl)
                if n == OPT.get('nca', 3) and not late:
                    a.wait(vm=('x1', 1))
                    cnt_add(CNT1, 7)
            a.stamp(f'gend{l}')
            prio(a, 3)
            a.e(f's_lshl_b32 s65, s{sU1}, 11')
            a.e(f's_add_u32 s65, s65, s{sHG}')
            a.e(f's_add_u32 s65, s65, 0x{HB[l]:x}')
            L, Ld = a.newlab('Lsw'), a.newlab('Lsd')
            a.e('s_mov_b32 s61, 0')
            a.label(L)
            a.e('s_waitcnt lgkmcnt(0)')
            a.lg.clear()
            a.e(f'v_min_u32 v7, v{EP + 12}, v{EP + 13}')
            a.e(f'v_min3_u32 v7, v7, v{EP + 14}, v{EP + 15}')
            a.e('v_cmp_eq_u32 vcc, 0, v7')
            a.e(f's_cbranch_vccz {Ld}')
            a.e('s_sleep 1')
            epi_reads()
            a.lg.clear()
            a.e('s_add_u32 s61, s61, 1')
            a.e(f's_cmp_lt_u32 s61, {SPIN}')
            a.e(f's_cbranch_scc1 {L}')
            a.e('s_waitcnt lgkmcnt(0)')
            a.label(Ld)
            a.e('v_lshlrev_b32 v7, 10, v4')
            a.e('v_lshl_add_u32 v7, v10, 4, v7')
            for h in range(2):
                for pr in range(2):
                    b = ACCX + 16 * h + 8 * pr
                    if OPT.get('pk', 0):
                        for r in range(0, 8, 2):
                            sel = 'op_sel:[0,0,0] op_sel_hi:[0,1,1]' if r < 4 else 'op_sel:[1,0,0] op_sel_hi:[1,1,1]'
                            a.e(f'v_pk_fma_f32 {vr(b + r, 2)}, {vr(EP + 8 + 2 * pr, 2)}, {vr(EP + 4 * h + r % 4, 2)}, {vr(b + r, 2)} {sel} neg_lo:[1,0,0] neg_hi:[1,0,0]')
                        for r in range(0, 8, 2):
                            sel = 'op_sel:[0,0] op_sel_hi:[1,0]' if r < 4 else 'op_sel:[0,1] op_sel_hi:[1,1]'
                            a.e(f'v_pk_mul_f32 {vr(b + r, 2)}, {vr(b + r, 2)}, {vr(EP + 12 + 2 * pr, 2)} {sel}')
                    else:
                        for r in range(8):
                            a.e(f'v_fma_f32 v{b + r}, -v{EP + 8 + 2 * pr + r // 4}, v{EP + 4 * h + r % 4}, v{b + r}')
                        for r in range(8):
                            a.e(f'v_mul_f32 v{b + r}, v{b + r}, v{EP + 12 + 2 * pr + r // 4}')
                    for r in range(4):
                        a.e(f'v_cvt_pk_bf16_f32 v{b + r}, v{b + 2 * r}, v{b + 2 * r + 1}')
                    for r in range(4):
                        a.e(f'v_pk_max_i16 v{b + r}, v{b + r}, 0')
                    a.e(f'v_permlane16_swap_b32 v{b}, v{b + 2}')
                    a.e(f'v_permlane16_swap_b32 v{b + 1}, v{b + 3}')
                    xstore(f'buffer_store_dwordx4 {vr(b, 4)}, v7, {sr(sWS, 4)}, s65 offen offset:{h * 2048 + pr * 512}', 'hst', LP & 4)
            a.stamp(f'epi{l}')
            cnt_add(CNT2, 7)

        def h2one(hf, s, k):
            a.e(f's_add_u32 m0, s69, {(R1 if hf == 0 else 0) + (s - 4) * 2048 + k * 1024}')
            a.e(f's_add_u32 s64, s{sHK if s < 6 else 57}, 0x{HB[l] + s * 4096 + k * 2048 + hf * 512:x}')
            a.vmem(f'buffer_load_dwordx4 v12, {sr(sWS, 4)}, s64 offen sc1 lds', ('h2', hf, s))

        def pwrite(t):
            a.lds(f'ds_write_b128 v{11 if t < 10 else 13}, {vr(ACCB + 4 * t, 4)} offset:{(t % 10) * 1024}', 'pw')

        def dload(ks):
            a.e(f's_add_u32 s64, s66, {ks * 1024}')
            a.vmem(f'buffer_load_dwordx4 {vr(dreg(ks), 4)}, v2, {sr(sWS, 4)}, s64 offen sc1', 'd')


        state = {}

        def b2_first(first, early):
            a.e('v_add_u32 v5, s69, v3')
            a.e(f'v_add_u32 v6, {R1 + 6144}, v5')
            a.e(f's_cmp_ge_u32 s{sWAVE}, 6')
            a.e(f's_cselect_b32 s57, 0x70000000, s{sHK}')
            ZC = OPT.get('zce', 10) if early else OPT.get('zcl', 2)
            ZI, ZP = (OPT.get('zie', 13), 16) if early else (OPT.get('zil', 4), OPT.get('zp', 8))
            prio(a, PR[0])
            nr = 4
            fq = []
            for z in range(17):
                if z == ZC:
                    cnt_wait(CNT2, 12)
                    lin(4, 69, R1 + 6144, sHK, HB[l] + 3 * 4096, ('h', 3))
                if z == ZI:
                    poll_issue(a, *p2)
                if z == ZP:
                    poll_check(a, *p2)
                    a.stamp(f'pollB{l}')
                    a.e('v_lshlrev_b32 v12, 10, v4')
                    a.e('v_lshl_add_u32 v12, v10, 4, v12')
                    fq = [lambda s=s, k=k: h2one(0, s, k) for s in range(4, 7) for k in range(2)]
                    for _ in range(2):
                        fq.pop(0)()
                if z == 16:
                    break
                fill = []
                lim = min(z + 4, 15)
                if early and z < 11:
                    lim = min(lim, 11)
                while nr <= lim and z >= 1:
                    fill.append(lambda t=nr: hread(t))
                    nr += 1
                for _ in range(2):
                    if fq:
                        fill.append(fq.pop(0))
                z5 = 3 if early else ZP + 3
                if z5 <= z < z5 + 5:
                    fill.append(lambda f=30 + z - z5: w2load(f))
                if early and z == 11:
                    fill = [lambda: None] * 4 + [lambda fs=fill: [f() for f in fs]]
                zmf(z, first and z < 4, fill)
            while fq:
                fq.pop(0)()
            a.stamp(f'b2h1_{l}')

        def early_tail(first):
            if l == 1 and OPT.get('bearly', 1):
                guarded(5, range(20, 30))
            for f in need2:
                w2load(f)
            poll(a, *p1)
            h1_all()
            a.stamp(f'pollA{l}')
            b2_first(first, True)

        Llate = a.newlab('Llate')
        a.e(f's_cmp_ge_u32 s{sWAVE}, 4')
        a.e(f's_cbranch_scc1 {Llate}')
        prio(a, 3)
        gemm(False, list(q))
        a.wait(vm='hst')
        a.stamp(f'ackH{l}')
        a.label(Lg2)
        setflag(a, PH_H[l], 12)
        early_tail(True)
        stE = a.save()
        a.e(f's_branch {Ljoin}')

        a.label(Llate)
        a.restore(st0)
        prio(a, 2)
        a.wait(vm=('x1', 1))
        cnt_add(CNT1, 7)
        a.e(f's_sleep {OPT.get("lsl", 2)}')
        for f in q:
            f()
        for f in need2[:OPT.get('nl0', 10)]:
            w2load(f)
        if l == 1 and OPT.get('bearly', 1):
            guarded(5, range(20, 30))
        gemm(True, [lambda f=f: w2load(f) for f in need2[OPT.get('nl0', 10):]], True)
        poll_check(a, *p1) if False else None
        Lr, Lr2 = a.newlab('Lr'), a.newlab('Lr2')
        a.e(f's_add_u32 s59, s{sNON}, {PH_H[l]}')
        a.wait(vm='poll')
        a.e('v_subrev_u32 v11, s59, v11')
        a.e('v_cmp_le_u32 vcc, 16, v11')
        a.e(f's_cbranch_vccnz {Lr}')
        st = a.save()
        h1_all()
        a.wait(vm='hst')
        a.stamp(f'ackH{l}')
        setflag(a, PH_H[l], 12)
        a.e(f's_branch {Lr2}')
        a.label(Lr)
        a.restore(st)
        a.wait(vm='hst')
        a.stamp(f'ackH{l}')
        setflag(a, PH_H[l], 12)
        poll(a, *p1)
        h1_all()
        a.label(Lr2)
        a.stamp(f'pollA{l}')
        b2_first(True, False)
        stL = a.save()
        a.e(f's_branch {Ljoin}')

        a.label(Lid)
        a.restore(st0)
        a.wait(vm=('x1', 1))
        cnt_add(CNT1, 7)
        cnt_add(CNT2, 7)
        a.e(f's_branch {Lg2}')

        a.label(LS)
        a.restore(st0)
        prio(a, 3)
        a.wait(vm=('x1', 1))
        cnt_add(CNT1, 7)
        a.e(f's_lshl_b32 s67, s{sG}, 13')
        a.e('s_cmp_eq_u32 s26, 0')
        a.e(f's_cselect_b32 s6, 0x{LOC:x}, 0')
        a.e('s_add_u32 s67, s67, s6')
        a.e(f's_add_u32 s60, s67, 0x{FLG:x}')
        a.e(f's_add_u32 s59, s{sNON}, {PH_S[l]}')
        L, Ld = a.newlab('Lsp'), a.newlab('Lsd')
        a.e('s_mov_b32 s61, 0')
        a.label(L)
        a.e('v_and_b32 v7, 7, v1')
        a.e('v_mul_u32_u24 v7, 1152, v7')
        a.e(f'buffer_load_dword v7, v7, {sr(sWS, 4)}, s60 offen sc1')
        a.e('s_waitcnt vmcnt(0)')
        a.e('v_subrev_u32 v7, s59, v7')
        a.e('v_cmp_le_u32 vcc, 16, v7')
        a.e(f's_cbranch_vccz {Ld}')
        a.e('s_sleep 2')
        a.e('s_add_u32 s61, s61, 1')
        a.e(f's_cmp_lt_u32 s61, {SPIN}')
        a.e(f's_cbranch_scc1 {L}')
        a.label(Ld)
        a.vm.clear()
        a.e('v_lshlrev_b32 v7, 3, v1')
        for k in range(8):
            a.vmem(f'buffer_load_dwordx2 {vr(16 + 2 * k, 2)}, v7, {sr(sWS, 4)}, s65 offen offset:{k * 512} sc1', 'sg')
        a.e('v_lshlrev_b32 v7, 2, v1')
        a.e('s_mov_b32 s7, 0x3acccccd')
        a.wait(vm='sg')
        for k in range(1, 8):
            a.e(f'v_add_f32 v16, v16, v{16 + 2 * k}')
            a.e(f'v_add_f32 v17, v17, v{17 + 2 * k}')
        a.e('v_mul_f32 v16, s7, v16')
        a.e('v_mul_f32 v17, s7, v17')
        a.e('v_fma_f32 v17, -v16, v16, v17')
        a.e('v_max_f32 v17, 0, v17')
        a.e('v_add_f32 v17, 0x3727c5ac, v17')
        a.e('v_rsq_f32 v17, v17')
        a.lds(f'ds_write_b32 v7, v16 offset:{STATS}')
        a.lds(f'ds_write_b32 v7, v17 offset:{STATS + 256}')
        cnt_wait(CNT1, 7)
        a.stamp(f'stat{l}')
        prio(a, 0)
        PM, TB = w2reg(30), (w2reg(31), 100)
        a.e('v_lshlrev_b32 v7, 2, v1')
        a.lds(f'ds_read_b128 {vr(PM, 4)}, v2 offset:{RSC}', 'ra')
        AR = (0, 11, 12, 13, 7)
        for ft in range(5):
            a.lds(f'ds_read_b32 v{AR[ft]}, v7 offset:{RSC + PRV + (ft // 4) * PRV + (ft % 4) * 256}', 'ra')
        a.wait(lg='ra')

        def rread(ft):
            return [lambda rt=rt: a.lds(f'ds_read_b128 {vr(TB[ft % 2] + 4 * rt, 4)}, v{AR[ft]} offset:{rt * 256}', ('rs', ft)) for rt in range(4)]
        for f in rread(0):
            f()
        for ft in range(5):
            if ft + 1 < 5:
                for f in rread(ft + 1):
                    f()
            a.wait(lg=('rs', ft))
            weave(a, [f'v_mfma_f32_16x16x32_bf16 {acc(rt, ft)}, {vr(PM, 4)}, {vr(TB[ft % 2] + 4 * rt, 4)}, 0' for rt in range(4)], [])
        prio(a, 0)
        cnt_add(CNT2, 7)
        early_tail(False)
        a.label(Ljoin)
        a.e('s_nop 1')
        a.restore(stE)
        a.lg.clear()
        a.forget('w1', 'ws', 'v', 'x1', 'us')
        if l == 0:
            a.e(f's_mul_i32 s66, s{sC}, 5')
            a.e(f's_add_u32 s66, s66, s{sWAVE}')
            a.e('s_mul_i32 s66, s66, 20480')
            a.e(f's_add_u32 s66, s66, 0x{DPF:x}')
        a.e('v_lshlrev_b32 v5, 4, v8')
        a.e('v_lshl_add_u32 v5, v9, 9, v5')
        a.e('v_add_u32 v5, s69, v5')
        a.e(f'v_add_u32 v6, {R1}, v5')
        a.e('v_add_u32 v13, s69, v2')
        a.e(f'v_add_u32 v11, {R1}, v13')
        fq = [lambda s=s, k=k: h2one(1, s, k) for s in range(4, 7) for k in range(2)]
        for _ in range(OPT.get('nb0', 2)):
            fq.pop(0)()
        prio(a, PR[1])
        hread(16)
        hread(17)
        nr = 18
        for z in range(16, 28):
            fill = []
            while nr <= min(z + 3 + (z > 17), 27):
                fill.append(lambda t=nr: hread(t))
                nr += 1
            if z == 20:
                a.wait(vm=('h2', 1, 4))
            if z == 22:
                a.stamp(f'b2A{l}')
                prio(a, PR[2])
                assert not fq
            if z == 23:
                fq = [lambda t=t: pwrite(t) for t in range(10)]
            if z == 26:
                a.wait(lg=('hz', 27))
                fq += [lambda t=t: pwrite(t) for t in range(10, 15)]
            pre = []
            for _ in range(2 if z < 23 else 4):
                if fq:
                    pre.append(fq.pop(0))
            zmf(z, fill=pre + fill if z < 23 else fill + pre)
        assert not fq
        a.stamp(f'b2B{l}')
        prio(a, 3)
        for t in range(15, 20):
            pwrite(t)
        a.forget('h', 'h2')
        a.seen -= {('w2', f) for f in range(20, 35)}
        if l == 0:
            Ld2 = a.newlab('Ld2')
            a.e(f's_cmp_ge_u32 s{sWAVE}, 5')
            a.e(f's_cbranch_scc1 {Ld2}')
            for ks in range(10 if OPT.get('de', 0) else 0, 20):
                dload(ks)
            a.label(Ld2)
        reduce_addr(l, False)
        a.wait(lg='all')
        a.e('s_barrier')
        a.stamp(f'PB{l}')
        reduce_item(l)
        Lnr = a.newlab('Lnr')
        a.e(f's_cmp_ge_u32 s{sWAVE}, 2')
        a.e(f's_cbranch_scc1 {Lnr}')
        reduce_addr(l, True)
        reduce_item(l)
        a.label(Lnr)
        if l == 1:
            a.stamp_dump(2, sWS, sWAVE, 15)
            break

        a.stamp('redB')
        a.e('v_lshlrev_b32 v5, 4, v8')
        a.e('v_lshl_add_u32 v5, v9, 9, v5')
        a.e(f'v_add_u32 v5, {R1}, v5')
        a.e('v_add_u32 v6, 40960, v5')
        a.wait(vm='all')
        a.e('s_barrier')
        a.stamp('ackXB')
        setflag_w0(a, PH_X2, 12)
        pXA = (7, sFSRC, PH_X2, 1)
        pXB = (11, sFPAR, PH_X2, 1)
        a.vm.clear()
        poll_issue(a, *pXA)
        poll_issue(a, *pXB, tag='poll2')
        poll_check(a, *pXA)
        a.e(f's_add_u32 s67, s{sGCM}, s68')
        lin(5, 68, R1, 67, X2B, ('x2', 0))
        poll_check(a, *pXB, tag='poll2')
        a.stamp('pollXB')
        a.e(f's_mul_i32 s67, s{sPG}, 81920')
        a.e('s_add_u32 s67, s67, s68')
        Lst, Lid, Lj = a.newlab('Lst'), a.newlab('Lid'), a.newlab('Lj')
        a.e(f's_cmp_eq_u32 s{sWAVE}, 7')
        a.e(f's_cbranch_scc1 {Lid}')
        a.e(f's_cmp_ge_u32 s{sWAVE}, 5')
        a.e(f's_cbranch_scc1 {Lst}')
        st0 = a.save()

        def startA1(extra=None):
            a.e('s_waitcnt vmcnt(4)')
            if extra:
                extra()
            lin(5, 68, R1 + 40960, 67, X2B + 40960, ('x2', 1))
            a.wait(vm=('x2', 0))
            a.e('s_barrier')
            a.stamp('XA')

        def hookA1(hf, ks):
            if hf == 0:
                if ks == 3:
                    a.e(f's_lshl_b32 s6, s{sWAVE}, 11')
                    a.e(f's_add_u32 m0, s6, {W1SL}')
                    a.e(f's_lshl_b32 s7, s{sC}, 14')
                    a.e('s_add_u32 s6, s6, s7')
                    a.e(f's_add_u32 s6, s6, 0x{W1S:x}')
                    for n in range(2):
                        a.vmem(f'buffer_load_dwordx4 v2, {sr(sWS, 4)}, s6 offen offset:{n * 1024} sc1 lds', 'w1s')
                if ks == 19:
                    a.stamp('a1A')
                    a.wait(vm='w1s', lg='all')
                    a.e('s_barrier')
                    a.stamp('XB')

        WFA = 16
        RSr, MRr = [196, 200, 204, 208], [212, 216, 220, 224]
        NSG = len(XFS)
        wf = lambda mat, tt, ks: WFA + ((mat * 4 + tt) * 2 + ks) * 4
        startA1()
        for hf in range(2):
            def xread1(ks):
                return [lambda rt=rt: a.lds(f'ds_read_b128 {vr(XFS[ks % NSG] + 4 * rt, 4)}, v{5 + hf} offset:{ks * 2048 + rt * 256}', ('xf', ks)) for rt in range(2)]
            for ks in range(NSG - 1):
                for f in xread1(ks):
                    f()
            for ks in range(20):
                if ks % 2 == 0:
                    a.wait(lg=('xf', ks + 1))
                mf = [f'v_mfma_f32_16x16x32_bf16 {vr(ACCA + 8 * hf + 4 * rt, 4)}, {vr(XFS[ks % NSG] + 4 * rt, 4)}, {vr(dreg(ks), 4)}, {"0" if ks == 0 else vr(ACCA + 8 * hf + 4 * rt, 4)}' for rt in range(2)]
                weave(a, mf, xread1(ks + NSG - 1) if ks + NSG - 1 < 20 else [])
                hookA1(hf, ks)
        prio(a, 3)
        for tt in range(4):
            for ks in range(2):
                for mat in range(2):
                    a.lds(f'ds_read_b128 {vr(wf(mat, tt, ks), 4)}, v2 offset:{W1SL + ((mat * 4 + tt) * 2 + ks) * 1024}', 'wf')
        a.e('v_lshlrev_b32 v12, 4, v9')
        a.stamp('a1B')
        a.e('s_barrier')
        a.stamp('ST')
        for rt in range(4):
            a.lds(f'ds_read_b128 {vr(RSr[rt], 4)}, v12 offset:{ST1 + rt * 64}', 'st')
            a.lds(f'ds_read_b128 {vr(MRr[rt], 4)}, v12 offset:{ST1 + 256 + rt * 64}', 'st')
        stage1(a, ACCA, RSr, MRr, 80, wf, R1)
        stC = a.save()
        a.seen |= {('w2', f) for f in range(20, 30)}
        a.e(f's_branch {Lj}')

        a.label(Lid)
        a.restore(st0)
        startA1()
        for hf in range(2):
            for ks in range(20):
                if hf == 0 and ks == 18 and OPT.get('t1', 0):
                    w1_touch(60, 0, OPT.get('t1', 0))
                hookA1(hf, ks)
        stage_all()
        a.e('s_barrier')
        a.wait(vm='all')
        a.e(f's_branch {Lj}')

        a.label(Lst)
        a.restore(st0)
        AS, AM, ONE, FS = 16, 24, 32, 36
        for r in range(4):
            a.e(f'v_mov_b32 v{ONE + r}, 0x3f803f80')
        a.e(f's_sub_u32 s66, s{sWAVE}, 5')
        a.e('s_lshl_b32 s6, s66, 8')
        a.e('v_add_u32 v5, s6, v5')
        a.e('v_add_u32 v6, s6, v6')
        startA1()
        for hf in range(2):
            def sread(ks):
                a.lds(f'ds_read_b128 {vr(FS + 4 * (ks % 10), 4)}, v{5 + hf} offset:{ks * 2048}', ('sf', ks))
            for ks in range(9):
                sread(ks)
            for ks in range(20):
                a.wait(lg=('sf', ks))
                f = vr(FS + 4 * (ks % 10), 4)
                a.e(f'v_mfma_f32_16x16x32_bf16 {vr(AS + 4 * hf, 4)}, {f}, {f}, {"0" if ks == 0 else vr(AS + 4 * hf, 4)}')
                if ks + 9 < 20:
                    sread(ks + 9)
                a.e(f'v_mfma_f32_16x16x32_bf16 {vr(AM + 4 * hf, 4)}, {f}, {vr(ONE, 4)}, {"0" if ks == 0 else vr(AM + 4 * hf, 4)}')
                hookA1(hf, ks)
        prio(a, 3)
        a.e('s_lshl_b32 s6, s66, 6')
        a.e(f's_add_u32 s6, s6, {ST1}')
        stats_finalize(a, AS, AM, 2, 11, 128, 256, 'rs_mr')
        a.wait(lg='all')
        a.e('s_barrier')
        a.label(Lj)
        a.e('s_nop 1')
        a.restore(stC)
        v_out_addr(a)
        a.wait(lg='all')
        a.e('s_barrier')
        a.stamp('VT')
        v_out(a, 1, R1, 64)
        if not OPT.get('bearly', 1):
            guarded(5, range(20, 30))
        for n in range(NR):
            bg.add(lambda n=n: w1load(n))
            if n < NST:
                bg.add(lambda n=n: stash(n))

        def pv1():
            if not OPT.get('bearly', 1):
                Lq = a.newlab('Lq')
                a.e('s_waitcnt vmcnt(10)')
                a.e(f's_cmp_lt_u32 s{sWAVE}, 5')
                a.e(f's_cbranch_scc1 {Lq}')
                a.wait(vm='vo')
                a.label(Lq)
            a.wait(vm='vo')
            a.e('s_barrier')
            a.stamp('PV1')
            setflag_w0(a, PH_V[1], 7)
        a2_pre(1, lambda: bg.run(OPT.get('bga2', 3)), pv1)
        a.stamp('a2pre')

    a.label(end)
    a.e('s_endpgm')
    a.raw(descriptor(name, 256, 102))
    return 163840


def main():
    if len(sys.argv) > 2 and 'stamps' in sys.argv[2:]:
        Asm.STAMPS = True
    Asm.CYC = 'cyc' in sys.argv[2:]
    Asm.DBGOUT = 'dbgout' in sys.argv[2:]
    for o in sys.argv[2:]:
        if o.startswith('names='):
            Asm.ACTIVE = o[6:].split(',')
        elif '=' in o:
            k, v = o.split('=')
            OPT[k] = int(v)
    hdr = open('cdna_kernels/' + NAME + '.s.ref').read().split('\n')
    hdr = [l for l in hdr if l.startswith(';') and '@launch' not in l and 'Override launch' not in l and 'grid=ceil' not in l]
    out = '\n'.join(hdr) + '\n'
    a = Asm()
    lds = gen(a, NAME + '_kernel')
    out += f'; @launch grid=(256,1,1) block=(512,1,1) lds={lds}\n'
    if Asm.STAMPS:
        out += '; stampnames start,' + ','.join(Asm.ACTIVE) + '\n'
    out += '.amdgcn_target "amdgcn-amd-amdhsa--gfx950"\n'
    out += a.text()
    path = sys.argv[1] if len(sys.argv) > 1 else 'cdna_kernels/' + NAME + '.s'
    open(path, 'w').write(out)
    print('wrote', path, len(out))


main()
```

```python
import sys
from asmlib import *

NAME = 'interleave_layers__spectral_fnet__dense_activation_relu__prompt'
S, D, F = 2048, 640, 1728
W1F = 0
W2F = 0x220000
DPF = 0x440000
CSP = 0x510000
W1S = 0x540000
STG = 0x560000
FLG = 0x760000
VB = [0x960000, 0xC60000]
X1B = [0xF60000, 0x11E0000]
X2B = 0x1460000
HB = [0x16E0000, 0x1DA0000]
WS_BYTES = 268435456
OOB = 0x7f000000
SPIN = 200000
OPT = {}

R1 = 81920
PRV = 10240
STATS, CSS = 9216, PRV + 9216
CNT1, CNT2 = STATS + 512, STATS + 516
PSUM = 5 * PRV + 9216
XRL1, TWL1, W1SL, ST1 = R1 + 12288, R1 + 24576, 20480, 36864

sWAVE, sG, sC = 3, 4, 5
P_X, P_CR, P_CI, P_DR, P_DI, P_W1, P_W2, P_OUT, P_WS = 8, 10, 12, 14, 16, 20, 22, 24, 26
sWS, sOUT, sFL = 28, 32, 36
sRHO, sKT, sMIR, sNON, sU1, sU2 = 38, 39, 40, 41, 42, 43
sGCM, sFOWN, sW1B, sHK, sW2O, sHG, sFSRC, sTAU1, sPG, sFPAR = 44, 45, 46, 47, 48, 49, 50, 51, 52, 53


def weave(a, mfs, fill):
    fill = list(fill)
    for i, m in enumerate(mfs):
        a.e(m)
        left = len(mfs) - i
        for _ in range(-(-len(fill) // left)):
            fill.pop(0)()


class BG:
    def __init__(self):
        self.q = []

    def add(self, f):
        self.q.append(f)

    def run(self, n=None):
        n = len(self.q) if n is None else min(n, len(self.q))
        for _ in range(n):
            self.q.pop(0)()


PH_V, PH_X1, PH_S, PH_H, PH_X2 = (1, 6), (2, 7), (3, 8), (4, 9), 5
LOC = 0x80000
sXCC = 27


def poll_issue(a, vres, soff, phase, n, shift=7, first=0, tag='poll'):
    a.e(f'v_min_u32 v{vres}, {n - 1}, v1')
    a.e(f'v_lshlrev_b32 v{vres}, {shift}, v{vres}')
    a.e(f's_add_u32 s60, s{soff}, 0x{FLG + (first << shift):x}')
    a.vmem(f'buffer_load_dword v{vres}, v{vres}, {sr(sWS, 4)}, s60 offen sc1', tag)


def poll_check(a, vres, soff, phase, n, shift=7, first=0, tag='poll'):
    L, Ld = a.newlab('Lpoll'), a.newlab('Lpd')
    a.e(f's_add_u32 s59, s{sNON}, {phase}')
    a.wait(vm=tag)
    a.e('s_mov_b32 s61, 0')
    a.label(L)
    a.e(f'v_subrev_u32 v{vres}, s59, v{vres}')
    a.e(f'v_cmp_le_u32 vcc, 16, v{vres}')
    a.e(f's_cbranch_vccz {Ld}')
    if OPT.get('abl_poll', 0) >> phase & 1:
        a.e(f's_branch {Ld}')
    if OPT.get('psleep', 2):
        a.e(f's_sleep {OPT.get("psleep", 2)}')
    st = a.save()
    poll_issue(a, vres, soff, phase, n, shift, first, tag)
    a.restore(st)
    a.e('s_waitcnt vmcnt(0)')
    a.e('s_add_u32 s61, s61, 1')
    a.e(f's_cmp_lt_u32 s61, {SPIN}')
    a.e(f's_cbranch_scc1 {L}')
    a.label(Ld)


def poll(a, vres, *args, **kw):
    poll_issue(a, vres, *args, **kw)
    poll_check(a, vres, *args, **kw)


def prio(a, p):
    if OPT.get('prio', 1):
        a.e(f's_setprio {p}')


def setflag(a, phase, vt):
    if phase is None:
        a.e('v_mov_b32 v0, 0')
    else:
        a.e(f's_add_u32 s62, s{sNON}, {phase}')
        a.e('v_mov_b32 v0, s62')
        a.e(f'v_writelane_b32 v0, s{sXCC}, 1')
    a.e(f'v_lshlrev_b32 v{vt}, 2, v1')
    a.e('s_mov_b32 exec_hi, 0')
    if phase is not None and phase not in PH_V:
        a.e(f's_add_u32 s62, s{sFOWN}, 0x{LOC:x}')
        a.vmem(f'buffer_store_dword v0, v{vt}, {sr(sWS, 4)}, s62 offen', 'flag')
    if phase is not None and phase not in PH_V and phase != PH_X1[0]:
        L = a.newlab('Lng')
        a.e('s_cmp_eq_u32 s26, 0')
        a.e(f's_cbranch_scc1 {L}')
        a.e(f'buffer_store_dword v0, v{vt}, {sr(sWS, 4)}, s{sFOWN} offen sc1')
        a.label(L)
    else:
        a.vmem(f'buffer_store_dword v0, v{vt}, {sr(sWS, 4)}, s{sFOWN} offen sc1', 'flag')
    if phase is None:
        a.e(f's_add_u32 s62, s{sFOWN}, 0x{LOC:x}')
        a.vmem(f'buffer_load_dword v254, v{vt}, {sr(sWS, 4)}, s62 offen sc1', 'flag')
    a.e('s_mov_b32 exec_hi, -1')


def setflag_w0(a, phase, vt):
    L = a.newlab('Lnf')
    a.e(f's_cmp_lg_u32 s{sWAVE}, 0')
    a.e(f's_cbranch_scc1 {L}')
    st = a.save()
    setflag(a, phase, vt)
    a.restore(st)
    a.label(L)


EXTRA = ['hst', 'flag', 'xst', 'vst', 'pst']


def merge(a, *states):
    ls = [[t for t in s[0] if t not in EXTRA and not (isinstance(t, tuple) and t[0] in EXTRA)] for s in states]
    ls.sort(key=len)
    longer = ls[-1]
    for s in ls[:-1]:
        assert longer[len(longer) - len(s):] == s, (longer, s)
    a.vm = list(longer)
    a.lg = []


def stats_finalize(a, AS, AM, ntiles, tmp, tile_stride, delta1, mode):
    t = tmp
    a.e(f'v_lshlrev_b32 v{t}, 2, v9')
    a.e(f'v_sub_u32 v{t}, v8, v{t}')
    a.e(f'v_lshl_add_u32 v{t + 1}, v8, 2, s6')
    a.e(f'v_cmp_eq_u32 s[70:71], 1, v{t}')
    a.e(f'v_cmp_eq_u32 s[72:73], 2, v{t}')
    a.e(f'v_cmp_eq_u32 s[74:75], 3, v{t}')
    a.e(f'v_cmp_gt_u32 s[76:77], 4, v{t}')
    a.e('s_mov_b32 s7, 0x3acccccd')
    for rt in range(ntiles):
        for acc in (AS, AM):
            b = acc + 4 * rt
            a.e(f'v_cndmask_b32 v{b}, v{b}, v{b + 1}, s[70:71]')
            a.e(f'v_cndmask_b32 v{b}, v{b}, v{b + 2}, s[72:73]')
            a.e(f'v_cndmask_b32 v{b}, v{b}, v{b + 3}, s[74:75]')
        ss, sm = AS + 4 * rt, AM + 4 * rt
        a.e(f'v_mul_f32 v{sm}, s7, v{sm}')
        a.e(f'v_mul_f32 v{ss}, s7, v{ss}')
        a.e(f'v_fma_f32 v{ss}, -v{sm}, v{sm}, v{ss}')
        a.e(f'v_max_f32 v{ss}, 0, v{ss}')
        a.e(f'v_add_f32 v{ss}, 0x3727c5ac, v{ss}')
        a.e(f'v_rsq_f32 v{ss}, v{ss}')
        if mode == 'rs_mr':
            a.e(f'v_mul_f32 v{sm}, v{sm}, v{ss}')
    a.e('s_mov_b64 exec, s[76:77]')
    for rt in range(ntiles):
        ss, sm = AS + 4 * rt, AM + 4 * rt
        first, second = (ss, sm) if mode == 'rs_mr' else (sm, ss)
        a.lds(f'ds_write_b32 v{t + 1}, v{first} offset:{rt * tile_stride}')
        a.lds(f'ds_write_b32 v{t + 1}, v{second} offset:{rt * tile_stride + delta1}')
    a.e('s_mov_b64 exec, -1')


def stage1(a, ACC, RSr, MRr, VA, wf, VT):
    a.e('v_cmp_gt_u32 vcc, 8, v8')
    a.e('v_mov_b32 v13, 0x80008000')
    a.e('v_cndmask_b32 v13, 0, v13, vcc')
    a.e('v_and_b32 v12, 1, v9')
    a.e('v_lshl_add_u32 v12, v12, 4, v8')
    a.e('v_mul_u32_u24 v12, 192, v12')
    a.e('v_lshrrev_b32 v11, 1, v9')
    a.e('v_mul_u32_u24 v11, 80, v11')
    a.e(f's_lshl_b32 s6, s{sWAVE}, 4')
    a.e(f's_add_u32 s6, s6, {VT}')
    a.e('v_add3_u32 v12, v12, v11, s6')
    a.wait(lg='st')
    for r in range(16):
        m = MRr[r // 4] + r % 4
        a.e(f'v_mul_f32 v{m}, v{m}, v14')
    for r in range(16):
        a.e(f'v_fma_f32 v{ACC + r}, v{ACC + r}, v{RSr[r // 4] + r % 4}, -v{MRr[r // 4] + r % 4}')
    for r in range(8):
        a.e(f'v_cvt_pk_bf16_f32 v{ACC + r}, v{ACC + 2 * r}, v{ACC + 2 * r + 1}')
    for r in range(8):
        a.e(f'v_xor_b32_dpp v{ACC + 8 + r}, v{ACC + r}, v13 row_ror:8 row_mask:0xf bank_mask:0xf')
    a.wait(lg='wf')
    for tt in range(4):
        for ks in range(2):
            for mat in range(2):
                src = ACC + 8 * mat + 4 * ks
                c = '0' if (ks == 0 and mat == 0) else vr(VA + 4 * tt, 4)
                a.e(f'v_mfma_f32_16x16x32_bf16 {vr(VA + 4 * tt, 4)}, {vr(src, 4)}, {vr(wf(mat, tt, ks), 4)}, {c}')
    for pr in range(2):
        b = VA + 8 * pr
        for r in range(4):
            a.e(f'v_cvt_pk_bf16_f32 v{b + r}, v{b + 2 * r}, v{b + 2 * r + 1}')
        a.e(f'v_permlane16_swap_b32 v{b}, v{b + 2}')
        a.e(f'v_permlane16_swap_b32 v{b + 1}, v{b + 3}')
        a.lds(f'ds_write_b128 v12, {vr(b, 4)} offset:{pr * 32 * 192}', 'vt')


def v_out_addr(a):
    for n, dst in ((0, 5), (8, 6)):
        a.e(f's_lshl_b32 s6, s{sWAVE}, 6')
        a.e(f's_add_u32 s6, s6, {n * 64}')
        a.e('v_add_u32 v0, s6, v1')
        a.e('v_mul_u32_u24 v7, 5462, v0')
        a.e('v_lshrrev_b32 v7, 16, v7')
        a.e('v_lshlrev_b32 v0, 4, v0')
        a.e(f's_mov_b32 s7, {8 * 32 * 192 - 192}')
        a.e(f'v_mad_u32_u24 v{dst}, v7, s7, v0')


def v_out(a, l, VT, R):
    a.e(f's_lshl_b32 s6, s{sWAVE}, 10')
    a.e(f's_add_u32 s6, s6, {VT}')
    a.e('v_add_u32 v0, s6, v2')
    a.lds(f'ds_read_b128 {vr(R, 4)}, v0', 'vo0')
    a.lds(f'ds_read_b128 {vr(R + 4, 4)}, v0 offset:8192', 'vo1')
    a.e(f's_lshl_b32 s6, s{sC}, 5')
    a.e(f's_add_u32 s6, s6, s{sG}')
    a.e('s_mulk_i32 s6, 192')
    a.e(f's_add_u32 s6, s6, 0x{VB[l]:x}')
    a.e(f's_cmp_lt_u32 s{sWAVE}, 4')
    a.e(f's_cselect_b32 s7, s6, 0x{OOB:x}')
    a.wait(lg='vo0')
    a.vmem(f'buffer_store_dwordx4 {vr(R, 4)}, v5, {sr(sWS, 4)}, s6 offen sc1', 'vo')
    a.wait(lg='vo1')
    a.vmem(f'buffer_store_dwordx4 {vr(R + 4, 4)}, v6, {sr(sWS, 4)}, s7 offen sc1', 'vo')


TW, Y, VF, PK, ID, XR, XM, XE = 16, 32, 48, 48, 48, 56, 16, 24
ACCX, XF = 16, 48
NR, NST = 12, 9
RING = [236 + 4 * k for k in range(5)] + [80, 84, 88] + [100, 104, 108, 112]
JIT = [92, 96]
ACCB = 16
HBUF = [96 + 4 * k for k in range(5)]
ACCA = 96
XFS = [56, 64, 72, 80, 88, 236, 244]


def dreg(ks):
    return 16 + 4 * ks if ks < 10 else 196 + 4 * (ks - 10)


def w2reg(f):
    return 116 + 4 * f


def gen(a, name):
    end = name + '_end'
    a.raw('.text')
    a.raw(f'.globl {name}')
    a.raw('.p2align 8')
    a.raw(f'.type {name},@function')
    a.label(name)
    a.e('s_cmp_ge_u32 s2, 256')
    a.e(f's_cbranch_scc1 {end}')
    a.stamp_init()
    a.stamp(0)
    a.e('s_load_dwordx16 s[8:23], s[0:1], 0')
    a.e('s_load_dwordx2 s[24:25], s[0:1], 64')
    a.e('s_load_dwordx2 s[26:27], s[0:1], 80')
    a.e('s_load_dwordx2 s[96:97], s[0:1], 72')
    a.e('v_lshrrev_b32 v1, 6, v0')
    a.e(f'v_readfirstlane_b32 s{sWAVE}, v1')
    a.e('v_and_b32 v1, 63, v0')
    if OPT.get('cpf', 1):
        a.e('s_getpc_b64 s[98:99]')
        a.label('Lpc')
        a.e('s_lshr_b32 s6, s2, 3')
        a.e('s_lshl_b32 s6, s6, 5')
        a.e('v_and_b32 v253, 31, v0')
        a.e('v_add_u32 v253, s6, v253')
        a.e('v_lshlrev_b32 v253, 7, v253')
        a.e(f'v_min_u32 v253, {end} - Lpc, v253')
        a.e('v_cmp_gt_u32 vcc, 32, v0')
        a.e('s_and_saveexec_b64 s[6:7], vcc')
        a.e('s_cbranch_execz Lpcd')
        a.e('global_load_dword v253, v253, s[98:99]')
        a.label('Lpcd')
        a.e('s_mov_b64 exec, -1')
    XM_ = OPT.get('xm', 0)
    a.e('s_and_b32 s6, s2, 7')
    a.e('s_lshr_b32 s7, s2, 3')
    a.e(f's_and_b32 s98, s6, {(1 << XM_) - 1}')
    a.e(f's_lshl_b32 s98, s98, {3 - XM_}')
    a.e(f's_and_b32 s99, s7, {(8 >> XM_) - 1}')
    a.e(f's_add_u32 s{sC}, s98, s99')
    a.e(f's_lshr_b32 s6, s6, {XM_}')
    a.e(f's_lshl_b32 s6, s6, {2 + XM_}')
    a.e(f's_lshr_b32 s7, s7, {3 - XM_}')
    a.e('s_add_u32 s101, s6, s7')
    a.e('s_lshr_b32 s6, s101, 1')
    a.e('s_sub_u32 s7, 32, s6')
    a.e('s_cmp_eq_u32 s6, 0')
    a.e('s_cselect_b32 s7, 16, s7')
    a.e('s_bitcmp1_b32 s101, 0')
    a.e(f's_cselect_b32 s{sG}, s7, s6')
    a.e('v_lshlrev_b32 v2, 4, v1')
    a.e('v_and_b32 v8, 15, v1')
    a.e('v_lshrrev_b32 v9, 4, v1')
    a.e('v_and_b32 v10, 31, v1')
    a.e('v_lshrrev_b32 v4, 5, v1')

    sX, sD, sW1, sW2, sCS = 56, 64, 68, 72, 12
    sWK, sROT = 54, 55
    SLOT0, SLOTB = 1024, 18432
    RS, MR, CS = 0, 256, 512
    W1L = SLOT0 + 6 * SLOTB
    WP1 = W1L + 16384
    W2S = WP1 + 14336
    TWL0 = W2S + 10240
    XRL0 = SLOT0 + 4 * SLOTB
    VT0 = SLOT0 + 5 * SLOTB
    vXA, vDA, vD2A, vF0, vF1, vO8, vSW = 240, 241, 242, 244, 245, 246, 247
    a.e(f'v_lshrrev_b32 v{vO8}, 3, v1')
    a.e(f'v_and_b32 v{vSW}, 7, v1')
    a.e(f'v_xor_b32 v{vSW}, v{vSW}, v{vO8}')
    a.e(f'v_lshlrev_b32 v{vSW}, 4, v{vSW}')
    a.e(f's_and_b32 s{sKT}, s{sWAVE}, 1')
    a.e(f's_lshr_b32 s{sMIR}, s{sWAVE}, 2')
    a.e(f's_bfe_u32 s{sRHO}, s{sWAVE}, 0x10001')
    a.e(f's_lshl_b32 s6, s{sKT}, 4')
    a.e(f's_lshl_b32 s7, s{sMIR}, 5')
    a.e('s_add_u32 s6, s6, s7')
    a.e(f's_lshl_b32 s7, s{sRHO}, 2')
    a.e('s_add_u32 s6, s6, s7')
    a.e(f'v_lshrrev_b32 v{vXA}, 2, v{vO8}')
    a.e(f'v_lshlrev_b32 v{vXA}, 3, v{vXA}')
    a.e(f'v_and_b32 v0, 3, v{vO8}')
    a.e(f'v_add3_u32 v{vXA}, v{vXA}, v0, s6')
    a.e(f'v_lshl_add_u32 v{vXA}, v{vXA}, 5, s{sG}')
    a.e('s_movk_i32 s62, 1280')
    a.e(f'v_mad_u32_u24 v{vXA}, v{vXA}, s62, v{vSW}')
    a.e(f's_mul_i32 s6, s{sC}, 40')
    a.e(f's_lshr_b32 s7, s{sWAVE}, 1')
    a.e('s_lshl_b32 s7, s7, 3')
    a.e('s_add_u32 s7, s7, s6')
    a.e(f'v_add_u32 v{vDA}, s7, v{vO8}')
    a.e('v_mov_b32 v0, 320')
    a.e(f'v_cmp_eq_u32 vcc, 0, v{vDA}')
    a.e(f'v_cndmask_b32 v{vDA}, v{vDA}, v0, vcc')
    a.e(f'v_mad_u32_u24 v{vDA}, v{vDA}, s62, v{vSW}')
    a.e('s_add_u32 s6, s6, 32')
    a.e(f'v_add_u32 v{vD2A}, s6, v{vO8}')
    a.e(f'v_mad_u32_u24 v{vD2A}, v{vD2A}, s62, v{vSW}')
    a.e(f's_lshl_b32 s6, s{sRHO}, 7')
    a.e(f'v_add_u32 v{vD2A}, s6, v{vD2A}')
    a.e(f's_lshl_b32 s{sWK}, s{sWAVE}, 10')
    a.e(f's_mul_i32 s63, s{sRHO}, {SLOTB}')
    a.e(f's_lshl_b32 s6, s{sKT}, 10')
    a.e('s_add_u32 s63, s63, s6')
    a.e(f's_add_u32 s98, s101, s{sC}')
    a.e('s_mul_i32 s99, s98, 52')
    a.e('s_lshr_b32 s99, s99, 8')
    a.e('s_mul_i32 s99, s99, 5')
    a.e('s_sub_u32 s98, s98, s99')
    a.e(f's_lshl_b32 s{sROT}, s98, 8')
    if not OPT.get('rot', 1):
        a.e(f's_mov_b32 s{sROT}, 0')
    a.e('s_waitcnt lgkmcnt(0)')
    a.srd(sX, P_X, S * D * 2)
    a.e(f's_cmp_eq_u32 s{sKT}, 1')
    a.e(f's_cselect_b32 s98, s{P_DI}, s{P_DR}')
    a.e(f's_cselect_b32 s99, s{P_DI + 1}, s{P_DR + 1}')
    a.srd(sD, 98, D * D * 2)

    def pair_off(p, dst):
        a.e(f's_add_u32 s{dst}, s{sROT}, {p * 256}')
        a.e(f's_cmp_ge_u32 s{dst}, 1280')
        a.e('s_cselect_b32 s18, 1280, 0')
        a.e(f's_sub_u32 s{dst}, s{dst}, s18')

    def dma_pair(p):
        sb = SLOT0 + (p % 3) * 2 * SLOTB
        pair_off(p, 99)
        L = a.newlab('Lex')
        a.e(f's_cmp_lg_u32 s{sMIR}, {p % 2}')
        a.e(f's_cbranch_scc1 {L}')
        a.e(f's_add_u32 m0, s63, {sb + 16384}')
        a.e(f'buffer_load_dwordx4 v{vD2A}, {sr(sD, 4)}, s99 offen lds')
        a.label(L)
        for h in range(2):
            a.e(f's_add_u32 m0, s{sWK}, {sb + h * (SLOTB - 128)}')
            a.vmem(f'buffer_load_dwordx4 v{vXA}, {sr(sX, 4)}, s99 offen offset:{h * 128} lds', ('c', p))
            a.e(f's_add_u32 m0, s{sWK}, {sb + h * (SLOTB - 128) + 8192}')
            a.vmem(f'buffer_load_dwordx4 v{vDA}, {sr(sD, 4)}, s99 offen offset:{h * 128} lds', ('c', p))

    a.stamp('karg')
    dma_pair(0)
    a.stamp('d0')
    a.srd(sW1, P_W1, D * F * 2)
    a.srd(sW2, P_W2, D * F * 2)
    a.srd(sWS, P_WS, WS_BYTES)
    a.srd(sOUT, P_OUT, S * D * 2)
    a.e(f's_cmp_eq_u32 s{sKT}, 1')
    a.e(f's_cselect_b32 s98, s{P_CI}, s{P_CR}')
    a.e(f's_cselect_b32 s99, s{P_CI + 1}, s{P_CR + 1}')
    a.e(f's_mov_b32 s8, s{P_CR}')
    a.e(f's_and_b32 s9, s{P_CR + 1}, 0xffff')
    a.e(f's_mov_b32 s10, 0x{S * S * 2:x}')
    a.e('s_mov_b32 s11, 0x20000')
    a.srd(sCS, 98, S * S * 2)
    a.e(f's_add_u32 s{sFL}, s{P_WS}, 0x{FLG:x}')
    a.e(f's_addc_u32 s{sFL + 1}, s{P_WS + 1}, 0')
    a.e(f's_sub_u32 s6, 64, s{sG}')
    a.e(f's_cmp_eq_u32 s{sG}, 0')
    a.e(f's_cselect_b32 s{sTAU1}, 32, s6')
    a.e(f's_mul_i32 s6, s{sC}, 7')
    a.e('s_min_u32 s100, s6, 48')
    a.e('s_lshl_b32 s6, s100, 1')
    a.e(f's_lshl_b32 s7, s{sWAVE}, 1')
    a.e(f's_add_u32 s{sU1}, s6, s7')
    a.e(f's_min_u32 s{sU1}, s{sU1}, 106')
    a.e(f's_cmp_lt_u32 s{sC}, 6')
    a.e(f's_cselect_b32 s{sU2}, 7, 6')
    a.e(f's_mul_i32 s{sGCM}, s{sG}, 81920')
    a.e(f's_lshl_b32 s6, s{sG}, 3')
    a.e(f's_add_u32 s7, s6, s{sC}')
    a.e('s_lshl_b32 s7, s7, 3')
    a.e(f's_add_u32 s7, s7, s{sWAVE}')
    a.e('s_lshl_b32 s7, s7, 7')
    a.e(f's_add_u32 s{sFOWN}, s7, 0x{FLG:x}')
    a.e(f's_add_u32 s7, s6, s{sWAVE}')
    a.e(f's_lshl_b32 s{sFSRC}, s7, 10')
    a.e(f's_sub_u32 s{sPG}, 32, s{sG}')
    a.e(f's_and_b32 s{sPG}, s{sPG}, 31')
    a.e(f's_lshl_b32 s7, s{sPG}, 3')
    a.e(f's_add_u32 s7, s7, s{sWAVE}')
    a.e(f's_lshl_b32 s{sFPAR}, s7, 10')
    a.e(f's_mul_i32 s{sW1B}, s{sU1}, 20480')
    a.e(f's_cmp_ge_u32 s{sWAVE}, s{sU2}')
    a.e(f's_cselect_b32 s{sW1B}, 0x{OOB:x}, s{sW1B}')
    a.e(f's_getreg_b32 s{sXCC}, hwreg(HW_REG_XCC_ID)')
    a.e(f's_and_b32 s{sXCC}, s{sXCC}, 15')
    a.e(f's_mul_i32 s6, s{sWAVE}, 7')
    a.e('s_min_u32 s6, s6, 48')
    a.e(f's_mul_i32 s7, s{sC}, 54')
    a.e('s_add_u32 s7, s7, s6')
    a.e(f's_mul_i32 s{sW2O}, s7, 5120')
    a.e(f's_add_u32 s{sW2O}, s{sW2O}, 0x{W2F:x}')
    a.e(f's_mul_i32 s{sHG}, s{sG}, {216 * 1024}')
    a.e('s_lshl_b32 s6, s6, 12')
    a.e(f's_add_u32 s{sHK}, s{sHG}, s6')
    a.e('v_lshlrev_b32 v3, 4, v8')
    a.e('v_lshl_add_u32 v3, v9, 10, v3')
    dma_pair(1)
    if OPT.get('tlb', 0):
        Ltl = a.newlab('Ltl')
        a.e(f's_cmp_lg_u32 s{sWAVE}, 4')
        a.e(f's_cbranch_scc1 {Ltl}')
        a.e('v_min_u32 v0, 19, v1')
        a.e('v_lshlrev_b32 v0, 21, v0')
        a.e(f'buffer_load_dword v255, v0, {sr(sWS, 4)}, 0 offen')
        a.e(f'buffer_load_dword v255, v0, {sr(sOUT, 4)}, 0 offen')
        a.e(f'buffer_load_dword v255, v0, {sr(sW1, 4)}, 0 offen')
        a.label(Ltl)
    Lnn = a.newlab('Lnn')
    a.e('s_lshl_b32 s6, s2, 3')
    a.e(f's_add_u32 s6, s6, s{sWAVE}')
    a.e('s_cmp_lg_u32 s6, 7')
    a.e(f's_cbranch_scc1 {Lnn}')
    a.e(f's_load_dword s6, s[{sFL}:{sFL + 1}], 0x40000 glc')
    a.e('s_waitcnt lgkmcnt(0)')
    a.e('s_add_u32 s6, s6, 16')
    a.e('s_and_b32 s6, s6, -16')
    a.e('s_bitset1_b32 s6, 31')
    a.e('v_mov_b32 v0, s6')
    a.e('v_mov_b32 v5, 0')
    a.e('s_mov_b64 exec, 1')
    a.e(f's_mov_b32 s7, 0x{FLG + 0x40000:x}')
    a.e(f'buffer_store_dword v0, off, {sr(sWS, 4)}, s7 sc1')
    a.e('global_store_dword v5, v0, s[96:97] sc1')
    a.e('s_mov_b64 exec, -1')
    a.label(Lnn)

    def grow(vd, vloc):
        a.e(f'v_and_b32 v11, 31, v{vloc}')
        a.e(f'v_mov_b32 v12, s{sG}')
        a.e(f'v_mov_b32 v13, s{sTAU1}')
        a.e(f'v_cmp_le_u32 vcc, 32, v{vloc}')
        a.e('v_cndmask_b32 v12, v12, v13, vcc')
        a.e(f'v_lshl_add_u32 v{vd}, v11, 6, v12')

    def tw_dma(base):
        a.e(f's_lshr_b32 s6, s{sWAVE}, 1')
        a.e('s_lshl_b32 s6, s6, 4')
        a.e('v_lshrrev_b32 v0, 2, v1')
        a.e('v_add_u32 v0, s6, v0')
        grow(0, 0)
        a.e('v_and_b32 v11, 3, v1')
        a.e('v_lshlrev_b32 v11, 4, v11')
        a.e('v_lshl_add_u32 v0, v0, 12, v11')
        a.e(f's_lshl_b32 s6, s{sWAVE}, 10')
        a.e(f's_add_u32 m0, s6, {base}')
        a.vmem(f'buffer_load_dwordx4 v0, {sr(sCS, 4)}, 0 offen lds', 'twd')

    vXR0, vXR1, vT1, vT2, vCSA = 234, 235, 236, 237, 238
    for n, dst in ((0, vXR0), (8, vXR1)):
        a.e(f's_lshl_b32 s6, s{sWAVE}, 6')
        a.e(f's_add_u32 s6, s6, {n * 64}')
        a.e('v_add_u32 v0, s6, v1')
        a.e('v_mul_u32_u24 v7, 5462, v0')
        a.e('v_lshrrev_b32 v7, 16, v7')
        a.e('v_mul_u32_u24 v5, 12, v7')
        a.e('v_sub_u32 v0, v0, v5')
        grow(7, 7)
        a.e(f's_mul_i32 s6, s{sC}, 5')
        a.e('s_sub_u32 s7, 70, s6')
        a.e('v_add_u32 v5, s6, v0')
        a.e('v_add_u32 v6, s7, v0')
        a.e('v_cmp_le_u32 vcc, 5, v0')
        a.e('v_cndmask_b32 v5, v5, v6, vcc')
        a.e('v_cmp_eq_u32 vcc, 80, v5')
        a.e('v_cndmask_b32 v5, v5, 0, vcc')
        a.e('v_cmp_eq_u32 vcc, 11, v0')
        a.e('v_cndmask_b32 v5, v5, 40, vcc')
        a.e('v_mul_u32_u24 v7, 1280, v7')
        a.e(f'v_lshl_add_u32 v{dst}, v5, 4, v7')
    a.e(f'v_and_b32 v{vF0}, 7, v1')
    a.e(f'v_xor_b32 v{vF0}, v{vF0}, v9')
    a.e(f'v_lshlrev_b32 v{vF0}, 4, v{vF0}')
    a.e(f'v_lshl_add_u32 v{vF0}, v8, 7, v{vF0}')
    a.e(f'v_xor_b32 v{vF1}, 64, v{vF0}')
    PF, PF2 = 208, 224

    def side(job):
        if job == 'late':
            a.e(f's_lshr_b32 s6, s{sWAVE}, 1')
            a.e('s_lshl_b32 s7, s6, 4')
            a.e(f'v_add_u32 v5, s7, v{vO8}')
            a.e(f'v_lshl_add_u32 v5, v5, 17, v{vSW}')
            a.e('s_lshl_b32 s6, s6, 11')
            a.e(f's_lshl_b32 s7, s{sKT}, 13')
            a.e('s_add_u32 s6, s6, s7')
            a.e(f's_add_u32 m0, s6, {W1L}')
            a.vmem(f'buffer_load_dwordx4 v5, {sr(sCS, 4)}, 0 offen lds', 'w1')
            a.e(f's_add_u32 m0, s6, {W1L + 1024}')
            a.e('s_mov_b32 s7, 0x100000')
            a.vmem(f'buffer_load_dwordx4 v5, {sr(sCS, 4)}, s7 offen lds', 'w1')
            tw_dma(TWL0)
        if job == 'non':
            a.e('v_mov_b32 v252, 0')
            a.vmem('global_load_dword v252, v252, s[96:97] sc1', 'non')
            setflag(a, None, 5)
        if job == 'xr':
            L = a.newlab('Lx4')
            a.e(f's_cmp_ge_u32 s{sWAVE}, 4')
            a.e(f's_cbranch_scc1 {L}')
            a.e(f's_add_u32 m0, s{sWK}, {XRL0 + 8192}')
            a.e(f'buffer_load_dwordx4 v{vXR1}, {sr(sX, 4)}, 0 offen lds')
            a.label(L)
            a.e(f's_add_u32 m0, s{sWK}, {XRL0}')
            a.vmem(f'buffer_load_dwordx4 v{vXR0}, {sr(sX, 4)}, 0 offen lds', 'xrd')
        if job == 'nonc':
            L, Ld = a.newlab('Lno'), a.newlab('Lnd')
            a.wait(vm='non')
            a.e('s_mov_b32 s98, 0')
            a.label(L)
            a.e(f'v_readfirstlane_b32 s{sNON}, v252')
            a.e('s_nop 1')
            a.e(f's_cmp_lg_u32 s{sNON}, 0')
            a.e(f's_cbranch_scc1 {Ld}')
            a.e('v_mov_b32 v252, 0')
            a.e('global_load_dword v252, v252, s[96:97] sc1')
            a.e('s_waitcnt vmcnt(0)')
            a.e('s_add_u32 s98, s98, 1')
            a.e(f's_cmp_lt_u32 s98, {SPIN}')
            a.e(f's_cbranch_scc1 {L}')
            a.label(Ld)

    def mainloop(setaddr, read, mfma, wsh=None, hooks={}):
        a.stamp('p0iss')
        PW = OPT.get('pw', 2)
        for p in range(5):
            a.wait(vm=('c', p), lg='all')
            if p == 0:
                dma_pair(2)
                side('late')
            a.e('s_barrier')
            a.stamp(f'p0c{p}')
            setaddr(SLOT0 + (p % 3) * 2 * SLOTB, p)
            j = 4 * p
            if p == 0:
                for f in read(0) + read(1):
                    f()
            else:
                weave(a, mfma(j - 2), read(j))
                weave(a, mfma(j - 1), read(j + 1))
            if 1 <= p <= 2:
                dma_pair(p + 2)
            if p == 2:
                side('non')
            if p == 3:
                side('xr')
            if p == PW and wsh:
                wsh()
            if p in hooks:
                hooks[p]()
            a.wait(lg=('f', j))
            weave(a, mfma(j), read(j + 2))
            a.wait(lg=('f', j + 1))
            weave(a, mfma(j + 1), read(j + 3))
        for j in (18, 19):
            a.wait(lg=('f', j))
            weave(a, mfma(j), [])
        side('nonc')
        a.wait(vm='xrd')

    Lstat, Lcol, Lj0 = a.newlab('Lp0s'), a.newlab('Lp0c'), a.newlab('Lp0j')
    a.e(f's_cmp_eq_u32 s{sWAVE}, 7')
    a.e(f's_cbranch_scc1 {Lcol}')
    a.e(f's_cmp_ge_u32 s{sWAVE}, 5')
    a.e(f's_cbranch_scc1 {Lstat}')
    st0 = a.save()
    ACC, FR = 16, 32
    a.e(f's_lshl_b32 s60, s{sWAVE}, 11')
    a.e('s_add_u32 s60, s60, 8192')
    a.e(f's_mul_i32 s6, s{sC}, 5')
    a.e(f's_add_u32 s6, s6, s{sWAVE}')
    a.e('s_mul_i32 s6, s6, 20')
    a.e(f's_add_u32 s6, s6, s{sG}')
    a.e('s_lshl_b32 s6, s6, 10')
    a.e(f's_add_u32 s24, s6, 0x{DPF:x}')
    a.e(f's_lshr_b32 s6, s{sROT}, 6')
    a.e(f's_sub_u32 s25, s{sG}, s6')
    a.e('s_add_u32 s7, s25, 20')
    a.e(f's_cmp_lt_u32 s{sG}, s6')
    a.e('s_cselect_b32 s25, s7, s25')
    a.e(f's_cmp_ge_u32 s{sG}, 20')
    a.e('s_cselect_b32 s25, 63, s25')

    a.e('s_and_b32 s6, s25, 1')
    a.e('s_lshl_b32 s6, s6, 6')
    a.e(f'v_xor_b32 v243, s6, v{vF0}')
    a.e('s_bfe_u32 s6, s25, 0x10001')
    a.e(f's_mulk_i32 s6, {SLOTB}')
    a.e('s_add_u32 s6, s6, s60')
    a.e('v_add_u32 v243, s6, v243')
    a.e('s_lshr_b32 s25, s25, 2')

    def set_c(sb, p):
        a.e(f'v_add_u32 v248, {sb}, v{vF0}')
        a.e(f'v_add_u32 v249, {sb}, v{vF1}')
        a.e('v_add_u32 v250, s60, v248')
        a.e('v_add_u32 v251, s60, v249')
        L = a.newlab('Ldd')
        a.e(f's_cmp_lg_u32 s25, {p}')
        a.e(f's_cbranch_scc1 {L}')
        a.e(f'v_add_u32 v243, {sb}, v243')
        a.e('ds_read_b128 v[220:223], v243')
        a.label(L)

    def read_c(j):
        f, hk, o = FR + 20 * (j % 4), j % 2, ((j % 4) // 2) * SLOTB
        return [lambda: a.lds(f'ds_read_b128 {vr(f + 16, 4)}, v{250 + hk} offset:{o}', ('f', j))] + \
               [lambda rt=rt: a.lds(f'ds_read_b128 {vr(f + 4 * rt, 4)}, v{248 + hk} offset:{o + rt * 2048}', ('f', j)) for rt in range(4)]

    def mfma_c(j):
        f = FR + 20 * (j % 4)
        return [f'v_mfma_f32_16x16x32_bf16 {vr(ACC + 4 * rt, 4)}, {vr(f + 4 * rt, 4)}, {vr(f + 16, 4)}, {"0" if j == 0 else vr(ACC + 4 * rt, 4)}' for rt in range(4)]

    mainloop(set_c, read_c, mfma_c)
    WF, RSr, MRr = 112, [176, 180, 184, 188], [192, 196, 200, 204]
    wf0 = lambda mat, tt, ks: WF + ((mat * 4 + tt) * 2 + ks) * 4
    a.e(f'v_add_u32 v248, {W1L}, v{vF0}')
    a.e(f'v_add_u32 v249, {W1L}, v{vF1}')
    for tt in range(4):
        for ks in range(2):
            for mat in range(2):
                a.lds(f'ds_read_b128 {vr(wf0(mat, tt, ks), 4)}, v{248 + ks} offset:{mat * 8192 + tt * 2048}', 'wf')
    a.e('v_lshlrev_b32 v12, 4, v9')
    a.e(f's_lshl_b32 s6, s{sWAVE}, 6')
    a.e('v_lshl_add_u32 v13, v8, 2, s6')
    a.stamp('p0end')
    a.e('s_barrier')
    a.lds(f'ds_read_b32 v14, v13 offset:{CS}', 'st')
    for rt in range(4):
        a.lds(f'ds_read_b128 {vr(RSr[rt], 4)}, v12 offset:{RS + rt * 64}', 'st')
        a.lds(f'ds_read_b128 {vr(MRr[rt], 4)}, v12 offset:{MR + rt * 64}', 'st')
    a.e(f's_cmp_lt_u32 s{sG}, 20')
    a.e(f's_cselect_b32 s24, s24, 0x{OOB:x}')
    a.e(f'buffer_store_dwordx4 v[220:223], v2, {sr(sWS, 4)}, s24 offen sc1')
    stage1(a, ACC, RSr, MRr, 32, wf0, VT0)
    stC = a.save()
    a.e(f's_branch {Lj0}')

    a.label(Lstat)
    a.restore(st0)
    AS, AM, ONE, FS = 24, 32, 40, 44
    for r in range(4):
        a.e(f'v_mov_b32 v{ONE + r}, 0x3f803f80')
    a.e(f's_sub_u32 s60, s{sWAVE}, 5')
    a.e('s_lshl_b32 s60, s60, 12')
    a.e(f'v_add_u32 v250, s60, v{vF0}')
    a.e(f'v_add_u32 v251, s60, v{vF1}')

    WA = 128
    a.e(f's_and_b32 s6, s{sG}, 7')
    a.e('s_mul_i32 s98, s6, 5')
    a.e('s_mul_i32 s99, s6, 10')
    a.e('s_add_u32 s99, s99, 4')
    a.e(f's_bfe_u32 s7, s{sG}, 0x10003')
    a.e(f's_cmp_ge_u32 s{sG}, 16')
    a.e('s_cselect_b64 s[76:77], -1, 0')
    for n in range(7):
        a.e(f'v_add_u32 v0, {64 * n}, v1')
        a.e('v_mul_u32_u24 v5, 4682, v0')
        a.e('v_lshrrev_b32 v5, 16, v5')
        a.e('v_mul_u32_u24 v6, 14, v5')
        a.e('v_sub_u32 v0, v0, v6')
        a.e('v_lshrrev_b32 v6, 3, v5')
        a.e('v_add_u32 v7, s98, v6')
        a.e('v_lshrrev_b32 v11, 1, v6')
        a.e('v_mad_u32_u24 v11, v11, 5, s99')
        a.e('v_mov_b32 v12, s7')
        a.e('v_and_b32 v6, 1, v6')
        a.e('v_cndmask_b32 v7, v7, v11, s[76:77]')
        a.e('v_cndmask_b32 v6, v12, v6, s[76:77]')
        a.e('v_and_b32 v5, 7, v5')
        a.e('v_lshl_add_u32 v5, v7, 3, v5')
        a.e('v_sub_u32 v7, 640, v5')
        a.e('v_cmp_eq_u32 vcc, 1, v6')
        a.e('v_cndmask_b32 v5, v5, v7, vcc')
        if n == 0:
            a.e('v_mov_b32 v6, 320')
            a.e('v_cmp_eq_u32 vcc, 0, v5')
            a.e('v_cndmask_b32 v5, v5, v6, vcc')
            a.e('v_cmp_eq_u32 vcc, 640, v5')
            a.e('v_cndmask_b32 v5, v5, 0, vcc')
        a.e('v_and_b32 v5, 0x3ff, v5')
        a.e('v_mul_u32_u24 v5, 3456, v5')
        a.e(f'v_lshl_add_u32 v{WA + n}, v0, 4, v5')

    def wsh_s():
        a.e(f's_sub_u32 s6, s{sWAVE}, 5')
        a.e('s_mul_i32 s7, s6, 224')
        a.e('s_lshl_b32 s98, s100, 6')
        a.e('s_add_u32 s7, s7, s98')
        a.e(f's_cmp_lt_u32 s{sG}, 20')
        a.e(f's_cselect_b32 s7, s7, 0x{OOB:x}')
        a.e('s_mul_i32 s6, s6, 7168')
        for n in range(7):
            a.e(f's_add_u32 m0, s6, {WP1 + 1024 * n}')
            a.vmem(f'buffer_load_dwordx4 v{WA + n}, {sr(sW1, 4)}, s7 offen lds', 'wsh')

    def set_s(sb, p):
        a.e(f'v_add_u32 v248, {sb}, v250')
        a.e(f'v_add_u32 v249, {sb}, v251')

    def read_s(j):
        return [lambda rt=rt: a.lds(f'ds_read_b128 {vr(FS + 8 * (j % 4) + 4 * rt, 4)}, v{248 + j % 2} offset:{((j % 4) // 2) * SLOTB + rt * 2048}', ('f', j)) for rt in range(2)]

    def mfma_s(j):
        out = []
        for rt in range(2):
            f = vr(FS + 8 * (j % 4) + 4 * rt, 4)
            out.append(f'v_mfma_f32_16x16x32_bf16 {vr(AS + 4 * rt, 4)}, {f}, {f}, {"0" if j == 0 else vr(AS + 4 * rt, 4)}')
            out.append(f'v_mfma_f32_16x16x32_bf16 {vr(AM + 4 * rt, 4)}, {f}, {vr(ONE, 4)}, {"0" if j == 0 else vr(AM + 4 * rt, 4)}')
        return out

    mainloop(set_s, read_s, mfma_s, wsh_s)
    a.e('s_lshr_b32 s6, s60, 5')
    stats_finalize(a, AS, AM, 2, 12, 64, MR - RS, 'rs_mr')
    a.wait(lg='all')
    a.stamp('p0end')
    a.e('s_barrier')
    a.e(f's_cmp_ge_u32 s{sG}, 20')
    a.e(f's_cbranch_scc1 {Lj0}')
    a.e('v_bfe_u32 v5, v1, 2, 2')
    a.e('v_lshl_add_u32 v5, v9, 3, v5')
    a.e('v_mul_u32_u24 v5, 224, v5')
    a.e('v_and_b32 v0, 3, v1')
    a.e('v_lshl_add_u32 v5, v0, 3, v5')
    a.e(f's_sub_u32 s60, s{sWAVE}, 5')
    a.e('s_mul_i32 s60, s60, 7')
    a.e('s_lshl_b32 s6, s60, 10')
    a.e(f's_add_u32 s6, s6, {WP1}')
    a.e('v_add_u32 v5, s6, v5')
    a.wait(vm='wsh')
    for u in range(7):
        for rd in range(2):
            a.lds(f'ds_read_b64_tr_b16 {vr(16 + 4 * u + 2 * rd, 2)}, v5 offset:{rd * 4 * 224 + u * 32}', ('pf', u))
    a.e('s_lshl_b32 s6, s100, 1')
    a.e('s_add_u32 s60, s60, s6')
    a.e('s_mul_i32 s6, s60, 20')
    a.e(f's_add_u32 s6, s6, s{sG}')
    a.e('s_lshl_b32 s6, s6, 10')
    a.e(f's_min_u32 s98, s{sWAVE}, s{sC}')
    a.e('s_mov_b32 s99, 0x3f803f80')
    for u in range(7):
        a.wait(lg=('pf', u))
        a.e(f's_add_u32 s7, s6, {W1F + u * 20480}')
        if u >= 5:
            a.e('s_cmp_ge_u32 s98, 6')
            a.e(f's_cselect_b32 s7, 0x{OOB:x}, s7')
        a.e(f'buffer_store_dwordx4 {vr(16 + 4 * u, 4)}, v2, {sr(sWS, 4)}, s7 offen sc1')
        a.e(f'v_mov_b32 v{48 + u}, 0')
    a.e('v_mov_b32 v55, 0')
    for d in range(4):
        for u in range(7):
            a.e(f'v_dot2_f32_bf16 v{48 + u}, v{16 + 4 * u + d}, s99, v{48 + u}')
    a.e('s_nop 3')
    for u in range(0, 8, 2):
        a.e(f'v_permlane16_swap_b32 v{48 + u}, v{49 + u}')
    for u in range(0, 8, 2):
        a.e(f'v_add_f32 v{48 + u}, v{48 + u}, v{49 + u}')
    for u in (0, 4):
        a.e(f'v_permlane32_swap_b32 v{48 + u}, v{50 + u}')
    for u in (0, 4):
        a.e(f'v_add_f32 v{48 + u}, v{48 + u}, v{50 + u}')
    a.e(f's_mul_i32 s6, s{sG}, 6912')
    a.e('s_lshl_b32 s7, s60, 6')
    a.e('s_add_u32 s6, s6, s7')
    a.e(f's_add_u32 s6, s6, 0x{CSP:x}')
    a.e('v_lshlrev_b32 v5, 2, v1')
    a.e(f'buffer_store_dword v48, v5, {sr(sWS, 4)}, s6 offen sc1')
    a.e('s_cmp_ge_u32 s98, 6')
    a.e('s_cselect_b32 exec_lo, 0xffff, -1')
    a.e('s_cselect_b32 exec_hi, 0, 0xffff')
    a.e(f'buffer_store_dword v52, v5, {sr(sWS, 4)}, s6 offen offset:256 sc1')
    a.e('s_mov_b64 exec, -1')
    a.e(f's_branch {Lj0}')

    a.label(Lcol)
    a.restore(st0)
    AC, ONE, FC = 24, 44, 48
    for r in range(4):
        a.e(f'v_mov_b32 v{ONE + r}, 0x3f803f80')

    a.e('s_movk_i32 s7, 1120')
    for n in range(5):
        a.e(f'v_add_u32 v0, {64 * n}, v1')
        a.e('v_mul_u32_u24 v5, 6554, v0')
        a.e('v_lshrrev_b32 v5, 16, v5')
        a.e('v_lshlrev_b32 v0, 4, v0')
        a.e(f'v_mad_u32_u24 v{WA + n}, v5, s7, v0')

    def wsh_k():
        a.e(f's_mul_i32 s6, s{sG}, 40960')
        a.e(f's_mul_i32 s7, s{sC}, 160')
        a.e('s_add_u32 s6, s6, s7')
        a.e(f's_add_u32 s7, s6, {32 * 40960}')
        for t in range(2):
            for n in range(5):
                a.e(f's_mov_b32 m0, {W2S + t * 5120 + n * 1024}')
                a.vmem(f'buffer_load_dwordx4 v{WA + n}, {sr(sW2, 4)}, s{6 + t} offen lds', 'wsh')

    def set_k(sb, p):
        a.e(f'v_add_u32 v248, {sb + 8192}, v{vF0}')
        a.e(f'v_add_u32 v249, {sb + 8192}, v{vF1}')

    def read_k(j):
        return [lambda ct=ct: a.lds(f'ds_read_b128 {vr(FC + 20 * (j % 4) + 4 * ct, 4)}, v{248 + j % 2} offset:{((j % 4) // 2) * SLOTB + ct * 2048}', ('f', j)) for ct in range(5)]

    def mfma_k(j):
        return [f'v_mfma_f32_16x16x32_bf16 {vr(AC + 4 * ct, 4)}, {vr(ONE, 4)}, {vr(FC + 20 * (j % 4) + 4 * ct, 4)}, {"0" if j == 0 else vr(AC + 4 * ct, 4)}' for ct in range(5)]

    def w2_out():
        a.e('v_bfe_u32 v5, v1, 2, 2')
        a.e('v_lshl_add_u32 v5, v9, 3, v5')
        a.e('v_mul_u32_u24 v5, 160, v5')
        a.e('v_and_b32 v0, 3, v1')
        a.e('v_lshl_add_u32 v5, v0, 3, v5')
        a.e(f'v_add_u32 v5, {W2S}, v5')
        a.wait(vm='wsh')
        for u in range(10):
            for rd in range(2):
                a.lds(f'ds_read_b64_tr_b16 {vr(136 + 4 * u + 2 * rd, 2)}, v5 offset:{(u // 5) * 5120 + (u % 5) * 32 + rd * 640}', ('pf', u))
        a.e(f's_mul_i32 s6, s{sC}, 54')
        a.e(f's_add_u32 s6, s6, s{sG}')
        a.e('s_mul_i32 s6, s6, 5120')
        a.e(f's_add_u32 s6, s6, 0x{W2F:x}')
        for u in range(10):
            if u == 5:
                a.e(f's_cmp_ge_u32 s{sG}, 22')
                a.e(f's_cselect_b32 s6, 0x{OOB:x}, s6')
            a.wait(lg=('pf', u))
            a.e(f's_add_u32 s7, s6, {(u // 5) * 32 * 5120 + (u % 5) * 1024}')
            a.vmem(f'buffer_store_dwordx4 {vr(136 + 4 * u, 4)}, v2, {sr(sWS, 4)}, s7 offen sc1', 'w2o')

    EW = OPT.get('ew', 1)
    if EW:
        wsh_k()
        def w2_flag():
            side('nonc')
            a.wait(vm='w2o')
            setflag(a, PH_V[0], 5)
        if OPT.get('wf4', 1):
            mainloop(set_k, read_k, mfma_k, None, {2: w2_out, 4: w2_flag})
        else:
            mainloop(set_k, read_k, mfma_k, None, {2: w2_out})
            setflag(a, PH_V[0], 5)
    else:
        mainloop(set_k, read_k, mfma_k, wsh_k)
    a.e('v_lshlrev_b32 v12, 2, v8')
    for ct in range(5):
        a.lds(f'ds_write_b32 v12, v{AC + 4 * ct} offset:{CS + ct * 64}')
    a.wait(lg='all')
    a.stamp('p0end')
    a.e('s_barrier')
    if not EW:
        w2_out()
    a.e(f's_cmp_ge_u32 s{sG}, 8')
    a.e(f's_cbranch_scc1 {Lj0}')
    a.e(f's_lshl_b32 s6, s{sG}, 11')
    a.e(f's_add_u32 s7, s6, {W1L}')
    a.e(f'v_add_u32 v248, s7, v{vF0}')
    a.e(f'v_add_u32 v249, s7, v{vF1}')
    a.lds('ds_read_b128 v[16:19], v248', 'ws')
    a.lds('ds_read_b128 v[20:23], v249', 'ws')
    a.e(f's_lshl_b32 s7, s{sC}, 14')
    a.e('s_add_u32 s6, s6, s7')
    a.e(f's_add_u32 s6, s6, 0x{W1S:x}')
    a.e('s_mov_b32 s98, 0x05040100')
    a.e('s_mov_b32 s99, 0x07060302')
    a.wait(lg='ws')
    for half in range(2):
        for d in range(4):
            a.e(f'v_perm_b32 v{24 + 4 * half + d}, v{16 + 2 * d + 1}, v{16 + 2 * d}, s{98 + half}')
        a.e(f'buffer_store_dwordx4 {vr(24 + 4 * half, 4)}, v2, {sr(sWS, 4)}, s6 offen offset:{half * 1024} sc1')
    a.label(Lj0)
    a.e('s_nop 1')
    a.restore(stC)
    v_out_addr(a)
    if EW:
        a.e(f's_lshl_b32 s67, s{sC}, 10')
        a.e('s_add_u32 s67, s67, 896')
        pW = (253, 67, PH_V[0], 32, 13)
        poll_issue(a, *pW)
    a.wait(lg='all')
    a.e('s_barrier')
    a.stamp('p0vt')
    v_out(a, 0, VT0, 64)


    LSC = ' sc1'

    def xstore(text, tag, local):
        if not local:
            a.vmem(text + ' sc1', tag)
            return
        L, Lj = a.newlab('Lst'), a.newlab('Lsj')
        a.e('s_cmp_eq_u32 s26, 0')
        a.e(f's_cbranch_scc1 {L}')
        a.e(text + ' sc1')
        a.e(f's_branch {Lj}')
        a.label(L)
        a.vmem(text, tag)
        a.label(Lj)
        a.e('s_nop 1')

    def warm(vd, sbase, add, n, step=8192, lanes=None):
        a.e('v_lshlrev_b32 v0, 7, v1')
        for k in range(n):
            a.e(f's_add_u32 s64, s{sbase}, 0x{add + k * step:x}')
            a.vmem(f'buffer_load_dword v{vd}, v0, {sr(sWS, 4)}, s64 offen sc1', 'warm')

    LP = OPT.get('lp', 0)
    if LP:
        X1B[1] = X1B[0]
        HB[1] = HB[0]

    def w1load(n):
        a.e(f's_add_u32 s64, s{sW1B}, {n * 1024}')
        a.vmem(f'buffer_load_dwordx4 {vr(RING[n % NR], 4)}, v2, {sr(sWS, 4)}, s64 offen sc1', ('w1', n))

    def stash(n):
        a.e(f's_add_u32 m0, s69, {(n % NST) * 1024}')
        a.e(f's_add_u32 s64, s{sW1B}, {20480 + n * 1024}')
        a.vmem(f'buffer_load_dwordx4 v2, {sr(sWS, 4)}, s64 offen sc1 lds', ('ws', n))

    def w2load(f):
        a.e(f's_add_u32 s64, s{sW2O}, {(f // 4) * 4096}')
        if f >= 30:
            a.e(f's_cmp_ge_u32 s{sWAVE}, 6')
            a.e(f's_cselect_b32 s64, 0x{OOB:x}, s64')
        a.vmem(f'buffer_load_dwordx4 {vr(w2reg(f), 4)}, v2, {sr(sWS, 4)}, s64 offen offset:{(f % 4) * 1024} sc1', ('w2', f))

    def dest_row(vd):
        a.e(f's_lshl_b32 s6, s{sRHO}, 5')
        a.e(f'v_add_u32 v{vd}, s6, v10')
        a.e(f'v_sub_u32 v11, 63, v{vd}')
        a.e('v_sub_u32 v12, 32, v10')
        a.e('v_and_b32 v12, 31, v12')
        a.e('v_sub_u32 v13, 63, v10')
        a.e(f's_cmp_eq_u32 s{sRHO}, 0')
        a.e('s_cselect_b64 vcc, -1, 0')
        a.e('v_cndmask_b32 v12, v13, v12, vcc')
        a.e(f's_cmp_eq_u32 s{sG}, 0')
        a.e('s_cselect_b64 vcc, -1, 0')
        a.e('v_cndmask_b32 v11, v11, v12, vcc')
        a.e(f's_cmp_eq_u32 s{sMIR}, 1')
        a.e('s_cselect_b64 vcc, -1, 0')
        a.e(f'v_cndmask_b32 v{vd}, v{vd}, v11, vcc')

    def w1_touch(vd, t0, t1):
        a.e('v_min_u32 v0, 23, v10')
        a.e('v_lshlrev_b32 v0, 7, v0')
        a.e('s_movk_i32 s7, 20480')
        a.e('v_mad_u32_u24 v0, v4, s7, v0')
        a.e('s_and_b32 s6, s101, 3')
        a.e('s_mul_i32 s6, s6, 3072')
        a.e('s_mul_i32 s7, s100, 40960')
        a.e('s_add_u32 s6, s6, s7')
        for t in range(t0, t1):
            a.e(f's_add_u32 s7, s6, {W1F + 8192 + t * 40960}')
            a.vmem(f'buffer_load_dword v{vd}, v0, {sr(sWS, 4)}, s7 offen sc1', 'touch')

    def stage_all():
        a.e('v_mul_u32_u24 v0, 40960, v4')
        a.e('v_lshl_add_u32 v0, v10, 4, v0')
        a.e(f's_mul_i32 s6, s{sC}, 2560')
        a.e(f's_add_u32 s62, s{sGCM}, 0x{X2B:x}')
        for p in range(12):
            if p < 5:
                a.e(f's_add_u32 s64, s6, {p * 512}')
            elif p < 11:
                a.e(f's_sub_u32 s64, {(70 + p) * 512}, s6')
                if p == 10:
                    a.e(f's_cmp_eq_u32 s{sC}, 0')
                    a.e('s_cselect_b32 s64, 0, s64')
            else:
                a.e(f's_movk_i32 s64, {40 * 512}')
            a.e('s_add_u32 s64, s64, s62')
            a.e(f's_mov_b32 m0, {XRL1 + p * 1024}')
            a.vmem(f'buffer_load_dwordx4 v0, {sr(sWS, 4)}, s64 offen sc1 lds', 'xrd')
        a.e('v_lshrrev_b32 v0, 2, v1')
        a.e('v_lshlrev_b32 v0, 18, v0')
        a.e('v_and_b32 v11, 3, v1')
        a.e('v_lshl_add_u32 v0, v11, 4, v0')
        for w in range(8):
            rb = w >> 1
            a.e(f's_lshl_b32 s64, s{sG if rb < 2 else sTAU1}, 12')
            a.e(f's_add_u32 s64, s64, {(rb % 2) * 16 * 64 * 4096}')
            a.e(f's_mov_b32 m0, {TWL1 + w * 1024}')
            a.vmem(f'buffer_load_dwordx4 v0, {sr(sCS if w % 2 else 8, 4)}, s64 offen lds', 'twd')

    def a2_pre(l, hook=lambda: None, mid=lambda: None):
        xb, A, shB, twb = ((XRL0, 192, 4, TWL0), (XRL1, 16, 10, TWL1))[l]
        dest_row(5)
        a.e(f'v_mul_u32_u24 v7, {A}, v5')
        a.e(f'v_add_u32 v7, {xb}, v7')
        a.e(f's_lshl_b32 s6, s{sKT}, 2')
        a.e(f's_cmp_eq_u32 s{sMIR}, 1')
        a.e('s_cselect_b64 s[76:77], -1, 0')
        a.e(f's_cmp_eq_u32 s{sC}, 0')
        a.e('s_cselect_b32 s7, 11, 0')
        for h in range(2):
            a.e(f'v_add3_u32 v11, v4, s6, {2 * h}')
            a.e('v_min_u32 v11, 4, v11')
            a.e('v_sub_u32 v12, 9, v11')
            a.e('v_cndmask_b32 v12, v11, v12, s[76:77]')
            a.e(f'v_lshl_add_u32 v12, v12, {shB}, v7')
            a.lds(f'ds_read_b128 {vr(XM + 4 * h, 4)}, v12', 'xr')
            a.e('v_mov_b32 v13, s7')
            a.e('v_cmp_eq_u32 vcc, 0, v11')
            a.e('v_cndmask_b32 v13, v11, v13, vcc')
            a.e('v_sub_u32 v12, 10, v11')
            a.e('v_cndmask_b32 v12, v13, v12, s[76:77]')
            a.e(f'v_lshl_add_u32 v12, v12, {shB}, v7')
            a.lds(f'ds_read_u16 v{XE + h}, v12', 'xr')
        a.e('v_bfe_u32 v11, v1, 2, 1')
        a.e('v_and_b32 v12, 1, v1')
        a.e('v_lshlrev_b32 v12, 4, v12')
        a.e('v_mov_b32 v13, 0x3f80')
        a.e('v_lshlrev_b32 v12, v12, v13')
        a.e('v_cmp_eq_u32 vcc, v11, v4')
        a.e('v_cndmask_b32 v12, 0, v12, vcc')
        a.e('v_bfe_u32 v13, v1, 1, 1')
        a.e('v_bfe_u32 v11, v1, 3, 2')
        a.e('v_lshl_add_u32 v13, v11, 1, v13')
        for r in range(8):
            a.e(f'v_cmp_eq_u32 vcc, {r}, v13')
            a.e(f'v_cndmask_b32 v{ID + r}, 0, v12, vcc')
        mid()
        hook()
        a.wait(lg='xr')
        Lr, Lj = a.newlab('Lxr'), a.newlab('Lxj')
        a.e('v_mov_b32 v11, 0xffff')
        a.e(f's_cmp_eq_u32 s{sMIR}, 1')
        a.e(f's_cbranch_scc1 {Lr}')
        for k in range(2):
            m, o = XM + 4 * k, XR + 4 * k
            a.e(f'v_bfi_b32 v{o}, v11, v{XE + k}, v{m}')
            for d in range(1, 4):
                a.e(f'v_mov_b32 v{o + d}, v{m + d}')
        a.e(f's_branch {Lj}')
        a.label(Lr)
        for k in range(2):
            m, o = XM + 4 * k, XR + 4 * k
            a.e(f'v_bfi_b32 v{o}, v11, v{XE + k}, v{m + 3}')
            a.e(f'v_bfi_b32 v{o + 1}, v11, v{m + 3}, v{m + 2}')
            a.e(f'v_bfi_b32 v{o + 2}, v11, v{m + 2}, v{m + 1}')
            a.e(f'v_bfi_b32 v{o + 3}, v11, v{m + 1}, v{m}')
        a.label(Lj)
        a.e('v_lshrrev_b32 v11, 4, v10')
        a.e('v_lshlrev_b32 v11, 11, v11')
        a.e('v_lshl_add_u32 v11, v8, 6, v11')
        a.e('v_lshl_add_u32 v11, v4, 4, v11')
        a.e(f's_lshl_b32 s6, s{sRHO}, 12')
        a.e(f's_add_u32 s6, s6, {twb}')
        a.e('v_add_u32 v11, s6, v11')
        for ks in range(4):
            a.lds(f'ds_read_b128 {vr(TW + 4 * ks, 4)}, v11 offset:{(ks // 2) * 1024 + (ks % 2) * 32}', 'tw')
        a.e(f'v_mfma_f32_32x32x16_bf16 {vr(Y, 16)}, {vr(ID, 4)}, {vr(XR, 4)}, 0')
        a.e(f'v_mfma_f32_32x32x16_bf16 {vr(Y, 16)}, {vr(ID + 4, 4)}, {vr(XR + 4, 4)}, {vr(Y, 16)}')
        hook()
        a.e(f's_lshl_b32 s6, s{sC}, 2')
        a.e(f's_lshl_b32 s7, s{sMIR}, 5')
        a.e('s_add_u32 s6, s6, s7')
        a.e(f's_lshl_b32 s7, s{sC}, 1')
        a.e(f's_add_u32 s7, s7, s{sMIR}')
        a.e('s_add_u32 s7, s7, 64')
        a.e(f's_cmp_eq_u32 s{sKT}, 0')
        a.e('s_cselect_b32 s6, s6, s7')
        a.e('s_lshl_b32 s6, s6, 10')
        a.e('v_lshlrev_b32 v5, 4, v5')
        a.e('v_lshl_add_u32 v5, v4, 10, v5')
        a.e('v_add_u32 v5, s6, v5')
        a.e(f'v_add_u32 v6, {R1}, v5')
        a.e('s_cmp_eq_u32 s6, 32768')
        a.e('s_cselect_b32 s6, 0xffff, 0')
        a.e('v_mov_b32 v12, s6')
        a.e('v_cmp_eq_u32 vcc, 0, v4')
        a.e('v_cndmask_b32 v12, 0, v12, vcc')
        a.e('v_bfe_u32 v13, v1, 2, 2')
        a.e('v_lshl_add_u32 v13, v4, 3, v13')
        a.e('v_mul_u32_u24 v13, 192, v13')
        a.e('v_bfe_u32 v11, v1, 4, 1')
        a.e('v_lshlrev_b32 v11, 1, v11')
        a.e('v_and_b32 v0, 1, v1')
        a.e(f's_lshl_b32 s7, s{sKT}, 2')
        a.e('v_add3_u32 v11, v11, v0, s7')
        a.e('v_min_u32 v11, 4, v11')
        a.e('v_lshl_add_u32 v13, v11, 4, v13')
        a.e('v_bfe_u32 v11, v1, 1, 1')
        a.e('v_lshl_add_u32 v13, v11, 3, v13')
        a.e(f's_mul_i32 s6, s{sRHO}, 6144')
        a.e('s_add_u32 s6, s6, s58')
        a.e('v_add_u32 v13, s6, v13')
        a.e(f'v_mov_b32 v11, v{XR}')
        hook()
        a.wait(lg='tw')
        for r in range(8, 16):
            a.e(f'v_xor_b32 v{TW + r}, 0x80008000, v{TW + r}')

    def reduce_addr(l, second):
        a.e(f's_add_u32 s6, s{sWAVE}, {8 if second else 0}')
        a.e('s_cmp_ge_u32 s6, 5')
        a.e('s_cselect_b32 s7, 5, 0')
        a.e(f's_cselect_b32 s62, 0, {R1}')
        if l == 0:
            a.e('s_cselect_b32 s65, 40960, 0')
        else:
            a.e(f's_cselect_b32 s65, s{sTAU1}, s{sG}')
        a.e('s_sub_u32 s6, s6, s7')
        a.e('s_lshl_b32 s7, s6, 10')
        a.e('s_add_u32 s62, s62, s7')
        a.e('v_lshrrev_b32 v11, 4, v10')
        a.e('v_mul_u32_u24 v11, 5120, v11')
        a.e('v_lshl_add_u32 v11, v4, 9, v11')
        a.e('v_lshl_add_u32 v11, v8, 4, v11')
        a.e('v_add_u32 v11, s62, v11')
        a.e(f'v_add_u32 v13, {5 * PRV}, v11')
        a.e('s_lshl_b32 s6, s6, 1')
        a.e(f's_mul_i32 s7, s{sC}, 10')
        a.e('s_add_u32 s6, s6, s7')
        a.e('v_add_u32 v7, s6, v4')
        if l == 0:
            a.e('v_lshlrev_b32 v7, 9, v7')
            a.e('v_lshl_add_u32 v7, v10, 4, v7')
            a.e(f's_add_u32 s65, s65, s{sGCM}')
            a.e(f's_add_u32 s65, s65, 0x{X2B:x}')
        else:
            a.e('v_lshlrev_b32 v7, 4, v7')
            a.e(f's_mov_b32 s7, {64 * 1280}')
            a.e('v_mad_u32_u24 v7, v10, s7, v7')
            a.e('s_mulk_i32 s65, 1280')

    def reduce_item(l):
        SUM, RB = 56, 64
        for h in range(2):
            a.lds(f'ds_read_b128 {vr(SUM + 4 * h, 4)}, v11 offset:{h * 256}', ('p', 0))
        for p in range(1, 7):
            for h in range(2):
                b, o = (11, p * PRV) if p < 5 else (13, (p - 5) * PRV)
                a.lds(f'ds_read_b128 {vr(RB + 8 * (p - 1) + 4 * h, 4)}, v{b} offset:{o + h * 256}', ('p', p))
        for p in range(1, 8):
            a.wait(lg=('p', p))
            for r in range(0, 8, 2):
                a.e(f'v_pk_add_f32 {vr(SUM + r, 2)}, {vr(SUM + r, 2)}, {vr(RB + 8 * ((p - 1) % 6) + r, 2)}')
            if p == 1:
                for h in range(2):
                    a.lds(f'ds_read_b128 {vr(RB + 4 * h, 4)}, v13 offset:{2 * PRV + h * 256}', ('p', 7))
        for r in range(4):
            a.e(f'v_cvt_pk_bf16_f32 v{SUM + r}, v{SUM + 2 * r}, v{SUM + 2 * r + 1}')
        if l == 0:
            a.vmem(f'buffer_store_dwordx4 {vr(SUM, 4)}, v7, {sr(sWS, 4)}, s65 offen sc1', 'xst')
        else:
            a.vmem(f'buffer_store_dwordx4 {vr(SUM, 4)}, v7, {sr(sOUT, 4)}, s65 offen', 'xst')

    def lin(n, sl, lds_add, ssrc, src_add, tag):
        for k in range(n):
            if k % 4 == 0:
                a.e(f's_add_u32 m0, s{sl}, {lds_add + k * 1024}')
                a.e(f's_add_u32 s64, s{ssrc}, 0x{src_add + k * 1024:x}')
            a.vmem(f'buffer_load_dwordx4 v2, {sr(sWS, 4)}, s64 offen offset:{(k % 4) * 1024} sc1 lds', tag)

    def cnt_add(addr, vt):
        a.e(f'v_mov_b32 v{vt}, {addr}')
        a.e('v_mov_b32 v0, 1')
        a.e('s_mov_b64 exec, 1')
        a.lds(f'ds_add_u32 v{vt}, v0', 'cnt')
        a.e('s_mov_b64 exec, -1')

    def cnt_peek(addr, vt):
        a.e(f'v_mov_b32 v{vt}, {addr}')
        a.lds(f'ds_read_b32 v{vt}, v{vt}', 'peek')

    def cnt_wait(addr, vt, peeked=False):
        L, Ld = a.newlab('Lcw'), a.newlab('Lcd')
        if peeked:
            a.wait(lg='peek')
            a.e(f'v_cmp_gt_u32 vcc, 8, v{vt}')
            a.e(f's_cbranch_vccz {Ld}')
            st = a.save()
        a.e('s_mov_b32 s61, 0')
        a.label(L)
        a.e(f'v_mov_b32 v{vt}, {addr}')
        a.e(f'ds_read_b32 v{vt}, v{vt}')
        a.e('s_waitcnt lgkmcnt(0)')
        a.lg.clear()
        a.e(f'v_cmp_gt_u32 vcc, 8, v{vt}')
        a.e(f's_cbranch_vccz {Ld}')
        a.e('s_sleep 1')
        a.e('s_add_u32 s61, s61, 1')
        a.e(f's_cmp_lt_u32 s61, {SPIN}')
        a.e(f's_cbranch_scc1 {L}')
        a.label(Ld)
        if peeked:
            a.restore(st)

    GO, DONE = STATS + 528, STATS + 544

    def sig_set(base, vt):
        a.e(f'v_mov_b32 v{vt}, s56')
        a.lds(f'ds_write_b32 v{vt}, v{vt} offset:{base - 4}', 'sig')

    def sig_wait(base, vt, slp):
        L, Ld = a.newlab('Lgw'), a.newlab('Lgd')
        a.e('s_mov_b32 s61, 0')
        a.label(L)
        a.e(f'v_mov_b32 v{vt}, s56')
        a.e(f'ds_read_b32 v{vt}, v{vt} offset:{base - 4}')
        a.e('s_waitcnt lgkmcnt(0)')
        a.lg.clear()
        a.e(f'v_cmp_eq_u32 vcc, 0, v{vt}')
        a.e(f's_cbranch_vccz {Ld}')
        a.e(f's_sleep {slp}')
        a.e('s_add_u32 s61, s61, 1')
        a.e(f's_cmp_lt_u32 s61, {SPIN}')
        a.e(f's_cbranch_scc1 {L}')
        a.label(Ld)

    if OPT.get('abl_h'):
        a.e(f's_mov_b32 s{sHK}, 0x70000000')
    if OPT.get('abl_w1'):
        a.e(f's_mov_b32 s{sW1B}, 0x70000000')
    if OPT.get('abl_w2'):
        a.e(f's_mov_b32 s{sW2O}, 0x70000000')
    if OPT.get('abl_hs'):
        a.e(f's_mov_b32 s{sHG}, 0x70000000')
    bg = BG()
    a.e(f's_mul_i32 s68, s{sWAVE}, 5120')
    a.e(f's_mul_i32 s69, s{sWAVE}, {PRV}')
    a.e(f's_cmp_lt_u32 s{sC}, 4')
    a.e('s_cselect_b32 s58, 16384, 0')
    a.e(f's_add_u32 s58, s58, {R1 + 32768}')
    def pv0():
        NBW = OPT.get('bgw', 10)
        if EW:
            Ln, Lj = a.newlab('Lwn'), a.newlab('Lwj')
            a.wait(vm='poll')
            a.e(f's_add_u32 s59, s{sNON}, {PH_V[0]}')
            a.e('v_subrev_u32 v253, s59, v253')
            a.e('v_cmp_le_u32 vcc, 16, v253')
            a.e('s_mov_b32 s57, 0')
            a.e(f's_cbranch_vccnz {Ln}')
            a.e('s_mov_b32 s57, 1')
            st = a.save()
            for f in range(NBW):
                w2load(f)
            a.wait(vm='vo')
            a.e(f's_branch {Lj}')
            a.label(Ln)
            a.restore(st)
            a.wait(vm='vo')
            a.label(Lj)
        else:
            a.wait(vm='vo')
        a.e('s_barrier')
        a.stamp('PV0')
        setflag_w0(a, PH_V[0], 7)
        if EW:
            Lj = a.newlab('Lwj')
            a.e('s_cmp_eq_u32 s57, 1')
            a.e(f's_cbranch_scc1 {Lj}')
            poll(a, *pW)
            for f in range(NBW):
                w2load(f)
            a.label(Lj)
            a.stamp('pollW')
            for f in range(NBW, 30):
                bg.add(lambda f=f: w2load(f))
    a2_pre(0, lambda: bg.run(OPT.get('bgw2', 4)), pv0)

    for l in range(2):
        a.e(f's_lshl_b32 s67, s{sWAVE}, 15')
        a.e(f's_lshl_b32 s6, s{sC}, 10')
        a.e('s_add_u32 s67, s67, s6')
        pV = (7, 67, PH_V[l], 4, 13)
        bg.run(OPT.get('bgpv', 0))
        poll_issue(a, *pV)
        bg.run(OPT.get('bgpv2', 0))
        poll_check(a, *pV)
        if l == 0:
            def id_issue():
                a.e(f'v_mov_b32 v72, s{sFSRC}')
                a.e(f'v_mov_b32 v73, s{sFPAR}')
                a.e('v_cmp_eq_u32 vcc, 0, v1')
                a.e('v_cndmask_b32 v72, v73, v72, vcc')
                a.e(f's_mov_b32 s60, 0x{FLG:x}')
                a.vmem(f'buffer_load_dwordx2 v[72:73], v72, {sr(sWS, 4)}, s60 offen sc1', 'ids')
        a.stamp(f'pollV{l}')
        a.e(f's_mul_i32 s63, s{sWAVE}, 768')
        a.e('s_add_u32 s62, s63, s58')
        a.e('s_mov_b32 exec_hi, 0xffff')
        for rho in range(2):
            a.e(f's_lshl_b32 s6, s{sG if rho == 0 else sTAU1}, 3')
            a.e(f's_add_u32 s6, s6, s{sC}')
            a.e('s_mulk_i32 s6, 6144')
            a.e('s_add_u32 s6, s6, s63')
            a.e(f's_add_u32 s6, s6, 0x{VB[l]:x}')
            a.e(f's_add_u32 m0, s62, {rho * 6144}')
            a.vmem(f'buffer_load_dwordx4 v2, {sr(sWS, 4)}, s6 offen sc1 lds', 'v')
        a.e('s_mov_b64 exec, -1')
        if l == 0:
            id_issue()
        bg.run(OPT.get('bgv', 4))
        a.e('v_lshlrev_b32 v7, 3, v1')
        a.e(f'v_mov_b32 v{VF}, 0')
        a.e(f'v_mov_b32 v{VF + 1}, 0')
        a.lds(f'ds_write_b64 v7, {vr(VF, 2)} offset:{STATS + 256}', 'clr')
        a.wait(vm='v', lg='clr')
        a.e('s_barrier')
        a.stamp(f'V{l}')
        for ks in range(4):
            for rd in range(2):
                a.lds(f'ds_read_b64_tr_b16 {vr(VF + 4 * ks + 2 * rd, 2)}, v13 offset:{(16 * (ks % 2) + 4 * rd) * 192 + (ks // 2) * 80}', ('vf', ks))
        if l == 0:
            for n in range(NR):
                bg.add(lambda n=n: w1load(n))
                if n < NST:
                    bg.add(lambda n=n: stash(n))
            bg.run(OPT.get('bg0', 2))

        a.e(f's_add_u32 s63, s{sGCM}, 0x{X1B[l]:x}')
        a.e(f's_cmp_eq_u32 s{sKT}, 0')
        a.e('s_cselect_b32 s70, -1, 0')
        a.e(f's_cselect_b32 s71, s63, 0x{OOB:x}')
        for ks in range(4):
            a.wait(lg=('vf', ks))
            a.e(f'v_mfma_f32_32x32x16_bf16 {vr(Y, 16)}, {vr(VF + 4 * ks, 4)}, {vr(TW + 4 * ks, 4)}, {vr(Y, 16)}')
        for r in range(8):
            a.e(f'v_cvt_pk_bf16_f32 v{PK + r}, v{Y + 2 * r}, v{Y + 2 * r + 1}')
        a.e(f'v_bfi_b32 v{PK}, v12, v11, v{PK}')
        xstore(f'buffer_store_dwordx4 {vr(PK + 4, 4)}, v5, {sr(sWS, 4)}, s71 offen offset:2048', 'x1s', l == 1 and LP & 1)
        a.e('s_mov_b32 exec_hi, s70')
        xstore(f'buffer_store_dwordx4 {vr(PK, 4)}, v5, {sr(sWS, 4)}, s63 offen', 'x1s', l == 1 and LP & 1)
        a.lds(f'ds_write_b128 v6, {vr(PK, 4)}', 'x1w')
        a.e('s_mov_b32 exec_lo, s70')
        a.lds(f'ds_write_b128 v6, {vr(PK + 4, 4)} offset:2048', 'x1w')
        a.e('s_mov_b64 exec, -1')
        a.stamp(f'x1st{l}')
        a.e('s_mov_b32 s7, 0x3f803f80')
        for r in range(4):
            a.e(f'v_mov_b32 v{16 + r}, 0')
        for r in range(4):
            for h in range(2):
                a.e(f'v_dot2_f32_bf16 v{16 + 2 * h}, v{PK + 4 * h + r}, s7, v{16 + 2 * h}')
                a.e(f'v_dot2_f32_bf16 v{17 + 2 * h}, v{PK + 4 * h + r}, v{PK + 4 * h + r}, v{17 + 2 * h}')
        a.e('v_bfe_u32 v7, v5, 4, 6')
        a.e('v_lshlrev_b32 v7, 3, v7')
        a.e('s_nop 2')
        a.e('v_and_b32 v18, s70, v18')
        a.e('v_and_b32 v19, s70, v19')
        a.e('v_add_f32 v16, v16, v18')
        a.e('v_add_f32 v17, v17, v19')
        a.e('v_mov_b32 v18, v16')
        a.e('v_mov_b32 v19, v17')
        a.e(f's_mul_i32 s6, s{sMIR}, {PRV}')
        a.e(f's_lshl_b32 s7, s{sKT}, 9')
        a.e('v_permlane32_swap_b32 v16, v18')
        a.e('v_permlane32_swap_b32 v17, v19')
        a.e('v_add3_u32 v7, v7, s6, s6') if False else None
        a.e('s_add_u32 s6, s6, s7')
        a.e('v_add_u32 v7, s6, v7')
        a.e('v_and_b32 v18, s70, v18')
        a.e('v_and_b32 v19, s70, v19')
        a.e('v_add_f32 v16, v16, v18')
        a.e('v_add_f32 v17, v17, v19')
        a.lds(f'ds_write_b64 v7, v[16:17] offset:{PSUM}', 'x1w')
        bg.run(OPT.get('bgx0', 4 if l == 0 else 3))
        a.wait(vm='x1s', lg='all')
        a.e('s_barrier')
        a.stamp(f'X1s{l}')
        a.e(f's_lshl_b32 s65, s{sG}, 12')
        a.e(f's_add_u32 s65, s65, 0x{STG + l * 0x20000:x}')
        Ls1 = a.newlab('Ls1')
        a.e(f's_cmp_lg_u32 s{sWAVE}, s{sC}')
        a.e(f's_cbranch_scc1 {Ls1}')
        a.e('v_lshlrev_b32 v7, 3, v1')
        a.e(f'v_add_u32 v0, {PSUM}, v7')
        for k in range(4):
            a.e(f'ds_read_b64 {vr(64 + 2 * k, 2)}, v0 offset:{(k // 2) * PRV + (k % 2) * 512}')
        a.e(f's_lshl_b32 s6, s{sC}, 9')
        a.e('s_add_u32 s6, s6, s65')
        a.e('s_waitcnt lgkmcnt(0)')
        for k in range(1, 4):
            a.e(f'v_add_f32 v64, v64, v{64 + 2 * k}')
            a.e(f'v_add_f32 v65, v65, v{65 + 2 * k}')
        a.e(f'buffer_store_dwordx2 v[64:65], v7, {sr(sWS, 4)}, s6 offen sc1')
        a.label(Ls1)
        setflag_w0(a, PH_X1[l], 7)
        if l == 0:
            L, Ld = a.newlab('Lidp'), a.newlab('Lidd')
            a.e(f's_add_u32 s59, s{sNON}, {PH_V[0]}')
            a.wait(vm='ids')
            a.e('s_mov_b32 s61, 0')
            a.label(L)
            a.e('v_subrev_u32 v72, s59, v72')
            a.e('v_cmp_le_u32 vcc, 16, v72')
            a.e(f's_cbranch_vccz {Ld}')
            st = a.save()
            id_issue()
            a.restore(st)
            a.e('s_waitcnt vmcnt(0)')
            a.e('s_add_u32 s61, s61, 1')
            a.e(f's_cmp_lt_u32 s61, {SPIN}')
            a.e(f's_cbranch_scc1 {L}')
            a.e('v_mov_b32 v73, -1')
            a.label(Ld)
            a.e('s_nop 0')
            a.e('v_readlane_b32 s6, v73, 0')
            a.e('v_readlane_b32 s7, v73, 1')
            for r, sf in ((6, sFSRC), (7, sFPAR)):
                a.e(f's_cmp_eq_u32 s{r}, s{sXCC}')
                a.e(f's_cselect_b32 s{r}, 0x{LOC if OPT.get("loc", 1) else 0:x}, 0')
                a.e(f's_add_u32 s{sf}, s{sf}, s{r}')
            a.e('s_and_b32 s6, s6, s7')
            a.e('s_cselect_b32 s6, 0, 1')
            a.e(f'v_mov_b32 v72, {STATS + 520}')
            a.e('v_mov_b32 v73, s6')
            a.lds('ds_or_b32 v72, v73', 'idw')
        CP = 16
        if l == 0:
            a.e(f's_lshl_b32 s6, s{sU1}, 6')
            a.e('v_lshl_add_u32 v7, v10, 2, s6')
            a.e('s_movk_i32 s7, 6912')
            a.e('v_mad_u32_u24 v7, v4, s7, v7')
            for n in range(10):
                a.e(f's_mov_b32 s7, 0x{CSP + n * 2 * 6912:x}')
                a.vmem(f'buffer_load_dword v{CP + n}, v7, {sr(sWS, 4)}, s7 offen sc1', 'cs')
        bg.run(OPT.get('bgx1', 3))
        pX = (7, sFSRC, PH_X1[l], 1)
        poll_issue(a, *pX)
        RSC, RA = 2 * PRV + 9216, 37
        Lw7 = a.newlab('Lw7')
        a.e(f's_cmp_lg_u32 s{sWAVE}, 7')
        a.e(f's_cbranch_scc1 {Lw7}')
        if True:
            a.e(f's_cmp_ge_u32 s{sC}, 4')
            a.e('s_cselect_b64 s[70:71], -1, 0')
            a.e('v_and_b32 v11, 7, v8')
            a.e('v_sub_u32 v12, 8, v11')
            a.e('v_cndmask_b32 v12, v11, v12, s[70:71]')
            a.e('v_lshrrev_b32 v13, 3, v8')
            a.e('v_add_u32 v0, 2, v13')
            a.e('v_cmp_eq_u32 vcc, 0, v11')
            a.e('v_cndmask_b32 v12, v12, 0, vcc')
            a.e('v_cndmask_b32 v13, v13, v0, vcc')
            a.e('v_and_b32 v0, 1, v12')
            a.e('v_lshlrev_b32 v0, 4, v0')
            a.e('v_mov_b32 v36, 0x3f80')
            a.e('v_lshlrev_b32 v0, v0, v36')
            a.e('v_cmp_eq_u32 vcc, v13, v9')
            a.e('v_cndmask_b32 v0, 0, v0, vcc')
            a.e('v_lshrrev_b32 v12, 1, v12')
            for r in range(4):
                a.e(f'v_cmp_eq_u32 vcc, {r}, v12')
                a.e(f'v_cndmask_b32 v{32 + r}, 0, v0, vcc')
            a.lds(f'ds_write_b128 v2, v[32:35] offset:{RSC}', 'rw')
            a.e(f'v_lshlrev_b32 v{RA}, 2, v1')
            a.e(f's_mul_i32 s6, s{sC}, 10')
            a.e('v_cmp_le_u32 s[72:73], 2, v9')
            for ft in range(5):
                a.e('v_and_b32 v11, 1, v9')
                a.e(f'v_add3_u32 v11, v11, s6, {2 * ft}')
                a.e('v_sub_u32 v12, 119, v11')
                a.e('v_cndmask_b32 v12, v11, v12, s[70:71]')
                a.e('v_sub_u32 v13, 120, v11')
                a.e('v_cndmask_b32 v13, v11, v13, s[70:71]')
                if ft == 0:
                    a.e('v_cmp_eq_u32 vcc, 0, v13')
                    a.e('v_cndmask_b32 v13, v13, 40, vcc')
                    a.e('v_cmp_eq_u32 vcc, 80, v13')
                    a.e('v_cndmask_b32 v13, v13, 0, vcc')
                a.e('v_cndmask_b32 v12, v12, v13, s[72:73]')
                a.e('v_mul_u32_u24 v13, 13108, v12')
                a.e('v_lshrrev_b32 v13, 16, v13')
                a.e('v_sub_u32 v11, v12, v13')
                a.e('v_mul_u32_u24 v0, 5, v13')
                a.e('v_sub_u32 v12, v12, v0')
                a.e('v_and_b32 v0, 7, v13')
                a.e('v_lshrrev_b32 v13, 3, v13')
                a.e('v_lshl_add_u32 v13, v0, 1, v13')
                a.e('v_add_u32 v13, 64, v13')
                a.e('v_cmp_eq_u32 vcc, 4, v12')
                a.e('v_cndmask_b32 v11, v11, v13, vcc')
                a.e('v_lshlrev_b32 v11, 10, v11')
                a.e('v_lshl_add_u32 v11, v8, 4, v11')
                a.e(f'v_add_u32 v11, {R1}, v11')
                a.lds(f'ds_write_b32 v{RA}, v11 offset:{RSC + PRV + (ft // 4) * PRV + (ft % 4) * 256}', 'rw')
        a.label(Lw7)
        poll_check(a, *pX)
        a.stamp(f'pollX1{l}')
        a.e(f's_lshl_b32 s6, s{sWAVE}, 12')
        a.e('s_lshr_b32 s7, s6, 1')
        a.e('s_add_u32 s66, s63, s6')
        a.e('s_add_u32 s57, s63, s7')
        a.e(f's_cmp_eq_u32 s{sWAVE}, s{sC}')
        a.e(f's_cselect_b32 s66, 0x{OOB:x}, s66')
        a.e(f's_cselect_b32 s57, 0x{OOB:x}, s57')
        a.e('s_cselect_b32 s67, 0x14000, s6')
        a.e('s_cselect_b32 s56, 0x14000, s7')
        lin(4, 67, R1, 66, 0, ('x1', 0))
        if l == 0:
            for n in range(1, 10):
                a.e(f'v_add_f32 v{CP}, v{CP}, v{CP + n}')
            a.e(f'v_mov_b32 v15, v{CP}')
            a.e(f'v_permlane32_swap_b32 v{CP}, v15')
            a.e(f'v_add_f32 v15, v{CP}, v15')
        a.e(f's_lshl_b32 s6, s{sWAVE}, 7')
        a.e('v_lshl_add_u32 v7, v10, 2, s6')
        a.lds(f'ds_write_b32 v7, v15 offset:{CSS}', 'csw')
        a.e(f'v_add_u32 v5, {R1}, v3')
        a.e(f'v_add_u32 v6, {R1 + 40960}, v3')
        if OPT.get('x1o', 0):
            a.e('s_waitcnt vmcnt(3)')
        lin(4, 67, R1 + 32768, 66, 32768, ('x1', 1))
        lin(2, 56, R1 + 65536, 57, 65536, ('x1', 1))
        a.wait(vm=('x1', 0), lg='all')
        a.e('s_barrier')
        a.stamp(f'B1{l}')
        if l == 0:
            a.e('ds_read_b32 v73, v72')
            a.e('s_waitcnt lgkmcnt(0)')
            a.e('v_readfirstlane_b32 s26, v73')
        Ls2 = a.newlab('Ls2')
        a.e(f's_cmp_lg_u32 s{sWAVE}, s{sC}')
        a.e(f's_cbranch_scc1 {Ls2}')
        st = a.save()
        setflag(a, PH_S[l], 12)
        a.restore(st)
        a.label(Ls2)
        LS, Lid, Lg2, Ljoin = (a.newlab(x) for x in ('LS', 'Lid', 'Lg2', 'Ljoin'))
        a.e(f's_cmp_eq_u32 s{sWAVE}, 7')
        a.e(f's_cbranch_scc1 {LS}')
        a.e(f's_cmp_ge_u32 s{sWAVE}, s{sU2}')
        a.e(f's_cbranch_scc1 {Lid}')
        st0 = a.save()
        q = list(bg.q)
        bg.q = []
        assert l == 1 or not EW or ('w2', 29) in a.seen
        NW2 = OPT.get('nw2', 20)
        need2 = list(range(30)) if l == 0 and not EW else []

        def xaddr(ks, rt):
            return (5, ks * 4096 + rt * 256) if ks < 10 else (6, (ks - 10) * 4096 + rt * 256)

        def xreads(n, nst=2):
            out = []
            for rt in range(4):
                b, o = xaddr(n, rt)
                out.append(lambda rt=rt, b=b, o=o: a.lds(f'ds_read_b128 {vr(XF + 16 * (n % nst) + 4 * rt, 4)}, v{b} offset:{o}', ('xf', n)))
            return out

        EP = XF

        def epi_reads():
            a.e('v_lshlrev_b32 v7, 2, v8')
            for rt in range(4):
                a.lds(f'ds_read_b32 v{EP + 12 + rt}, v7 offset:{STATS + 256 + rt * 64}', 'st')
            for rt in range(4):
                a.lds(f'ds_read_b32 v{EP + 8 + rt}, v7 offset:{STATS + rt * 64}', 'st')

        p1 = (11, sFSRC, PH_H[l], 4, 7, 0)
        p2 = (13, sFSRC, PH_H[l], 3, 7, 4)

        young = {'n': 0}
        orig_vmem = a.vmem

        def vmem_cnt(s, tag=None):
            young['n'] += 1
            orig_vmem(s, tag)

        def ack_and_flag(slot):
            a.e(f's_waitcnt vmcnt({young["n"]})')
            a.stamp(f'ack{slot}')
            del a.vm[:max(0, len(a.vm) - young['n'])]
            a.vmem = orig_vmem
            setflag(a, slot, 12)

        acc = lambda rt, ft: vr(ACCB + 4 * (rt * 5 + ft), 4)
        seq = [(s, rt) for s in range(4) for rt in range(4)] + [(s, rt) for s in range(4, 7) for rt in (0, 1)] + [(s, rt) for rt in (2, 3) for s in range(4, 7)]
        hb = lambda z: vr(HBUF[(z + 1) % 5], 4)

        def hread(z):
            s, rt = seq[z]
            if z < 12:
                a.wait(vm=('h', s))
                a.lds(f'ds_read_b128 {hb(z)}, v5 offset:{(s - 1) * 4096 + rt * 256}', ('hz', z))
            elif z < 16:
                a.wait(vm=('h', 3))
                a.lds(f'ds_read_b128 {hb(z)}, v6 offset:{rt * 256}', ('hz', z))
            else:
                hf = rt // 2
                a.wait(vm=('h2', hf, s))
                a.lds(f'ds_read_b128 {hb(z)}, v{5 if hf else 6} offset:{(s - 4) * 2048 + (rt % 2) * 256}', ('hz', z))

        def zmf(z, first=False, fill=()):
            s, rt = seq[z]
            if z < 4:
                a.wait(vm=[('h', 0)] + [('w2', k) for k in range(5)])
            else:
                a.wait(vm=[('w2', 5 * s + k) for k in range(5)], lg=('hz', z))
            weave(a, [f'v_mfma_f32_16x16x32_bf16 {acc(rt, ft)}, {vr(w2reg(5 * s + ft), 4)}, {hb(z)}, {"0" if first else acc(rt, ft)}' for ft in range(5)], fill)

        PR = {0: (1, 2, 1), 1: (2, 1, 0), 2: (1, 1, 0), 3: (1, 0, 0)}[OPT.get('pr', 1)]

        def guarded(nwaves, frs):
            Lf = a.newlab('Lf')
            a.e(f's_cmp_ge_u32 s{sWAVE}, {nwaves}')
            a.e(f's_cbranch_scc1 {Lf}')
            st = a.save()
            for f in frs:
                w2load(f)
            seen = set(a.seen)
            a.restore(st)
            a.seen = seen
            a.label(Lf)

        def usread(n):
            a.wait(vm=('ws', n))
            a.lds(f'ds_read_b128 {vr(JIT[n % 2], 4)}, v13 offset:{(n % NST) * 1024}', ('us', n))

        def h1_all():
            a.e(f's_add_u32 s64, s{sHK}, 0x{HB[l]:x}')
            for rt in range(4):
                a.vmem(f'buffer_load_dwordx4 {vr(HBUF[rt + 1], 4)}, v3, {sr(sWS, 4)}, s64 offen offset:{rt * 256} sc1', ('h', 0))
            lin(4, 69, 0, sHK, HB[l] + 4096, ('h', 1))
            lin(4, 69, 4096, sHK, HB[l] + 8192, ('h', 2))

        def gemm(late, q, qlow=False):
            pw1, pws = [NR], [NST]
            a.e('v_add_u32 v13, s69, v2')
            for f in xreads(0):
                f()
            usread(0)
            for n in range(20):
                if n == 7:
                    cnt_wait(CNT1, 7, True)
                a.wait(vm=('w1', n), lg=[('xf', n), ('us', n)])
                mf = []
                for h in range(2):
                    for rt in range(4):
                        ac = vr(ACCX + 16 * h + 4 * rt, 4)
                        w = RING[n % NR] if h == 0 else JIT[n % 2]
                        mf.append(f'v_mfma_f32_16x16x32_bf16 {ac}, {vr(w, 4)}, {vr(XF + 16 * (n % 2) + 4 * rt, 4)}, {"0" if n == 0 else ac}')
                fl = []
                if n == 6:
                    fl.append(lambda: cnt_peek(CNT1, 7))
                if n + 1 < 20:
                    fl += [lambda: usread(n + 1)] + xreads(n + 1)
                nq = 0
                while q and nq < 3 and not qlow:
                    fl.append(q.pop(0))
                    nq += 1
                if not q or qlow:
                    while pws[0] < 20 and pws[0] - NST <= n and nq < 2:
                        fl.append(lambda k=pws[0]: stash(k))
                        pws[0] += 1
                        nq += 1
                    while pw1[0] < 20 and pw1[0] - NR <= n and nq < 3:
                        fl.append(lambda k=pw1[0]: w1load(k))
                        pw1[0] += 1
                        nq += 1
                while q and nq < 3 and qlow:
                    fl.append(q.pop(0))
                    nq += 1

                if n == 19:
                    def ep():
                        a.e(f's_lshl_b32 s6, s{sWAVE}, 7')
                        a.e('v_lshl_add_u32 v7, v9, 4, s6')
                        for h in range(2):
                            a.lds(f'ds_read_b128 {vr(EP + 4 * h, 4)}, v7 offset:{CSS + h * 64}', 'csr')
                        epi_reads()
                    fl = [ep] + ([lambda: None] * 5 + [lambda: poll_issue(a, *p1)] if late else [])
                weave(a, mf, fl)
                if n == OPT.get('nca', 3) and not late:
                    a.wait(vm=('x1', 1))
                    cnt_add(CNT1, 7)
            a.stamp(f'gend{l}')
            prio(a, 3)
            a.e(f's_lshl_b32 s65, s{sU1}, 11')
            a.e(f's_add_u32 s65, s65, s{sHG}')
            a.e(f's_add_u32 s65, s65, 0x{HB[l]:x}')
            L, Ld = a.newlab('Lsw'), a.newlab('Lsd')
            a.e('s_mov_b32 s61, 0')
            a.label(L)
            a.e('s_waitcnt lgkmcnt(0)')
            a.lg.clear()
            a.e(f'v_min_u32 v7, v{EP + 12}, v{EP + 13}')
            a.e(f'v_min3_u32 v7, v7, v{EP + 14}, v{EP + 15}')
            a.e('v_cmp_eq_u32 vcc, 0, v7')
            a.e(f's_cbranch_vccz {Ld}')
            a.e('s_sleep 1')
            epi_reads()
            a.lg.clear()
            a.e('s_add_u32 s61, s61, 1')
            a.e(f's_cmp_lt_u32 s61, {SPIN}')
            a.e(f's_cbranch_scc1 {L}')
            a.e('s_waitcnt lgkmcnt(0)')
            a.label(Ld)
            a.e('v_lshlrev_b32 v7, 10, v4')
            a.e('v_lshl_add_u32 v7, v10, 4, v7')
            for h in range(2):
                for pr in range(2):
                    b = ACCX + 16 * h + 8 * pr
                    if OPT.get('pk', 0):
                        for r in range(0, 8, 2):
                            sel = 'op_sel:[0,0,0] op_sel_hi:[0,1,1]' if r < 4 else 'op_sel:[1,0,0] op_sel_hi:[1,1,1]'
                            a.e(f'v_pk_fma_f32 {vr(b + r, 2)}, {vr(EP + 8 + 2 * pr, 2)}, {vr(EP + 4 * h + r % 4, 2)}, {vr(b + r, 2)} {sel} neg_lo:[1,0,0] neg_hi:[1,0,0]')
                        for r in range(0, 8, 2):
                            sel = 'op_sel:[0,0] op_sel_hi:[1,0]' if r < 4 else 'op_sel:[0,1] op_sel_hi:[1,1]'
                            a.e(f'v_pk_mul_f32 {vr(b + r, 2)}, {vr(b + r, 2)}, {vr(EP + 12 + 2 * pr, 2)} {sel}')
                    else:
                        for r in range(8):
                            a.e(f'v_fma_f32 v{b + r}, -v{EP + 8 + 2 * pr + r // 4}, v{EP + 4 * h + r % 4}, v{b + r}')
                        for r in range(8):
                            a.e(f'v_mul_f32 v{b + r}, v{b + r}, v{EP + 12 + 2 * pr + r // 4}')
                    for r in range(4):
                        a.e(f'v_cvt_pk_bf16_f32 v{b + r}, v{b + 2 * r}, v{b + 2 * r + 1}')
                    for r in range(4):
                        a.e(f'v_pk_max_i16 v{b + r}, v{b + r}, 0')
                    a.e(f'v_permlane16_swap_b32 v{b}, v{b + 2}')
                    a.e(f'v_permlane16_swap_b32 v{b + 1}, v{b + 3}')
                    xstore(f'buffer_store_dwordx4 {vr(b, 4)}, v7, {sr(sWS, 4)}, s65 offen offset:{h * 2048 + pr * 512}', 'hst', LP & 4)
            a.stamp(f'epi{l}')
            cnt_add(CNT2, 7)

        def h2one(hf, s, k):
            a.e(f's_add_u32 m0, s69, {(R1 if hf == 0 else 0) + (s - 4) * 2048 + k * 1024}')
            a.e(f's_add_u32 s64, s{sHK if s < 6 else 57}, 0x{HB[l] + s * 4096 + k * 2048 + hf * 512:x}')
            a.vmem(f'buffer_load_dwordx4 v12, {sr(sWS, 4)}, s64 offen sc1 lds', ('h2', hf, s))

        def pwrite(t):
            a.lds(f'ds_write_b128 v{11 if t < 10 else 13}, {vr(ACCB + 4 * t, 4)} offset:{(t % 10) * 1024}', 'pw')

        def dload(ks):
            a.e(f's_add_u32 s64, s66, {ks * 1024}')
            a.vmem(f'buffer_load_dwordx4 {vr(dreg(ks), 4)}, v2, {sr(sWS, 4)}, s64 offen sc1', 'd')


        state = {}

        def b2_first(first, early):
            a.e('v_add_u32 v5, s69, v3')
            a.e(f'v_add_u32 v6, {R1 + 6144}, v5')
            a.e(f's_cmp_ge_u32 s{sWAVE}, 6')
            a.e(f's_cselect_b32 s57, 0x70000000, s{sHK}')
            ZC = OPT.get('zce', 10) if early else OPT.get('zcl', 2)
            ZI, ZP = (OPT.get('zie', 13), 16) if early else (OPT.get('zil', 4), OPT.get('zp', 8))
            prio(a, PR[0])
            nr = 4
            fq = []
            for z in range(17):
                if z == ZC:
                    cnt_wait(CNT2, 12)
                    lin(4, 69, R1 + 6144, sHK, HB[l] + 3 * 4096, ('h', 3))
                if z == ZI:
                    poll_issue(a, *p2)
                if z == ZP:
                    poll_check(a, *p2)
                    a.stamp(f'pollB{l}')
                    a.e('v_lshlrev_b32 v12, 10, v4')
                    a.e('v_lshl_add_u32 v12, v10, 4, v12')
                    fq = [lambda s=s, k=k: h2one(0, s, k) for s in range(4, 7) for k in range(2)]
                    for _ in range(2):
                        fq.pop(0)()
                if z == 16:
                    break
                fill = []
                lim = min(z + 4, 15)
                if early and z < 11:
                    lim = min(lim, 11)
                while nr <= lim and z >= 1:
                    fill.append(lambda t=nr: hread(t))
                    nr += 1
                for _ in range(2):
                    if fq:
                        fill.append(fq.pop(0))
                z5 = 3 if early else ZP + 3
                if z5 <= z < z5 + 5:
                    fill.append(lambda f=30 + z - z5: w2load(f))
                if early and z == 11:
                    fill = [lambda: None] * 4 + [lambda fs=fill: [f() for f in fs]]
                zmf(z, first and z < 4, fill)
            while fq:
                fq.pop(0)()
            a.stamp(f'b2h1_{l}')

        def early_tail(first):
            if l == 1 and OPT.get('bearly', 1):
                guarded(5, range(20, 30))
            for f in need2:
                w2load(f)
            poll(a, *p1)
            h1_all()
            a.stamp(f'pollA{l}')
            b2_first(first, True)

        Llate = a.newlab('Llate')
        a.e(f's_cmp_ge_u32 s{sWAVE}, 4')
        a.e(f's_cbranch_scc1 {Llate}')
        prio(a, 3)
        gemm(False, list(q))
        a.wait(vm='hst')
        a.stamp(f'ackH{l}')
        a.label(Lg2)
        setflag(a, PH_H[l], 12)
        early_tail(True)
        stE = a.save()
        a.e(f's_branch {Ljoin}')

        a.label(Llate)
        a.restore(st0)
        prio(a, 2)
        a.wait(vm=('x1', 1))
        cnt_add(CNT1, 7)
        a.e(f's_sleep {OPT.get("lsl", 2)}')
        for f in q:
            f()
        for f in need2[:OPT.get('nl0', 10)]:
            w2load(f)
        if l == 1 and OPT.get('bearly', 1):
            guarded(5, range(20, 30))
        gemm(True, [lambda f=f: w2load(f) for f in need2[OPT.get('nl0', 10):]], True)
        poll_check(a, *p1) if False else None
        Lr, Lr2 = a.newlab('Lr'), a.newlab('Lr2')
        a.e(f's_add_u32 s59, s{sNON}, {PH_H[l]}')
        a.wait(vm='poll')
        a.e('v_subrev_u32 v11, s59, v11')
        a.e('v_cmp_le_u32 vcc, 16, v11')
        a.e(f's_cbranch_vccnz {Lr}')
        st = a.save()
        h1_all()
        a.wait(vm='hst')
        a.stamp(f'ackH{l}')
        setflag(a, PH_H[l], 12)
        a.e(f's_branch {Lr2}')
        a.label(Lr)
        a.restore(st)
        a.wait(vm='hst')
        a.stamp(f'ackH{l}')
        setflag(a, PH_H[l], 12)
        poll(a, *p1)
        h1_all()
        a.label(Lr2)
        a.stamp(f'pollA{l}')
        b2_first(True, False)
        stL = a.save()
        a.e(f's_branch {Ljoin}')

        a.label(Lid)
        a.restore(st0)
        a.wait(vm=('x1', 1))
        cnt_add(CNT1, 7)
        cnt_add(CNT2, 7)
        a.e(f's_branch {Lg2}')

        a.label(LS)
        a.restore(st0)
        prio(a, 3)
        a.wait(vm=('x1', 1))
        cnt_add(CNT1, 7)
        a.e(f's_lshl_b32 s67, s{sG}, 13')
        a.e('s_cmp_eq_u32 s26, 0')
        a.e(f's_cselect_b32 s6, 0x{LOC:x}, 0')
        a.e('s_add_u32 s67, s67, s6')
        a.e(f's_add_u32 s60, s67, 0x{FLG:x}')
        a.e(f's_add_u32 s59, s{sNON}, {PH_S[l]}')
        L, Ld = a.newlab('Lsp'), a.newlab('Lsd')
        a.e('s_mov_b32 s61, 0')
        a.label(L)
        a.e('v_and_b32 v7, 7, v1')
        a.e('v_mul_u32_u24 v7, 1152, v7')
        a.e(f'buffer_load_dword v7, v7, {sr(sWS, 4)}, s60 offen sc1')
        a.e('s_waitcnt vmcnt(0)')
        a.e('v_subrev_u32 v7, s59, v7')
        a.e('v_cmp_le_u32 vcc, 16, v7')
        a.e(f's_cbranch_vccz {Ld}')
        a.e('s_sleep 2')
        a.e('s_add_u32 s61, s61, 1')
        a.e(f's_cmp_lt_u32 s61, {SPIN}')
        a.e(f's_cbranch_scc1 {L}')
        a.label(Ld)
        a.vm.clear()
        a.e('v_lshlrev_b32 v7, 3, v1')
        for k in range(8):
            a.vmem(f'buffer_load_dwordx2 {vr(16 + 2 * k, 2)}, v7, {sr(sWS, 4)}, s65 offen offset:{k * 512} sc1', 'sg')
        a.e('v_lshlrev_b32 v7, 2, v1')
        a.e('s_mov_b32 s7, 0x3acccccd')
        a.wait(vm='sg')
        for k in range(1, 8):
            a.e(f'v_add_f32 v16, v16, v{16 + 2 * k}')
            a.e(f'v_add_f32 v17, v17, v{17 + 2 * k}')
        a.e('v_mul_f32 v16, s7, v16')
        a.e('v_mul_f32 v17, s7, v17')
        a.e('v_fma_f32 v17, -v16, v16, v17')
        a.e('v_max_f32 v17, 0, v17')
        a.e('v_add_f32 v17, 0x3727c5ac, v17')
        a.e('v_rsq_f32 v17, v17')
        a.lds(f'ds_write_b32 v7, v16 offset:{STATS}')
        a.lds(f'ds_write_b32 v7, v17 offset:{STATS + 256}')
        cnt_wait(CNT1, 7)
        a.stamp(f'stat{l}')
        prio(a, 0)
        PM, TB = w2reg(30), (w2reg(31), 100)
        a.e('v_lshlrev_b32 v7, 2, v1')
        a.lds(f'ds_read_b128 {vr(PM, 4)}, v2 offset:{RSC}', 'ra')
        AR = (0, 11, 12, 13, 7)
        for ft in range(5):
            a.lds(f'ds_read_b32 v{AR[ft]}, v7 offset:{RSC + PRV + (ft // 4) * PRV + (ft % 4) * 256}', 'ra')
        a.wait(lg='ra')

        def rread(ft):
            return [lambda rt=rt: a.lds(f'ds_read_b128 {vr(TB[ft % 2] + 4 * rt, 4)}, v{AR[ft]} offset:{rt * 256}', ('rs', ft)) for rt in range(4)]
        for f in rread(0):
            f()
        for ft in range(5):
            if ft + 1 < 5:
                for f in rread(ft + 1):
                    f()
            a.wait(lg=('rs', ft))
            weave(a, [f'v_mfma_f32_16x16x32_bf16 {acc(rt, ft)}, {vr(PM, 4)}, {vr(TB[ft % 2] + 4 * rt, 4)}, 0' for rt in range(4)], [])
        prio(a, 0)
        cnt_add(CNT2, 7)
        early_tail(False)
        a.label(Ljoin)
        a.e('s_nop 1')
        a.restore(stE)
        a.lg.clear()
        a.forget('w1', 'ws', 'v', 'x1', 'us')
        if l == 0:
            a.e(f's_mul_i32 s66, s{sC}, 5')
            a.e(f's_add_u32 s66, s66, s{sWAVE}')
            a.e('s_mul_i32 s66, s66, 20480')
            a.e(f's_add_u32 s66, s66, 0x{DPF:x}')
        a.e('v_lshlrev_b32 v5, 4, v8')
        a.e('v_lshl_add_u32 v5, v9, 9, v5')
        a.e('v_add_u32 v5, s69, v5')
        a.e(f'v_add_u32 v6, {R1}, v5')
        a.e('v_add_u32 v13, s69, v2')
        a.e(f'v_add_u32 v11, {R1}, v13')
        fq = [lambda s=s, k=k: h2one(1, s, k) for s in range(4, 7) for k in range(2)]
        for _ in range(OPT.get('nb0', 2)):
            fq.pop(0)()
        prio(a, PR[1])
        hread(16)
        hread(17)
        nr = 18
        for z in range(16, 28):
            fill = []
            while nr <= min(z + 3 + (z > 17), 27):
                fill.append(lambda t=nr: hread(t))
                nr += 1
            if z == 20:
                a.wait(vm=('h2', 1, 4))
            if z == 22:
                a.stamp(f'b2A{l}')
                prio(a, PR[2])
                assert not fq
            if z == 23:
                fq = [lambda t=t: pwrite(t) for t in range(10)]
            if z == 26:
                a.wait(lg=('hz', 27))
                fq += [lambda t=t: pwrite(t) for t in range(10, 15)]
            pre = []
            for _ in range(2 if z < 23 else 4):
                if fq:
                    pre.append(fq.pop(0))
            zmf(z, fill=pre + fill if z < 23 else fill + pre)
        assert not fq
        a.stamp(f'b2B{l}')
        prio(a, 3)
        for t in range(15, 20):
            pwrite(t)
        a.forget('h', 'h2')
        a.seen -= {('w2', f) for f in range(20, 35)}
        if l == 0:
            Ld2 = a.newlab('Ld2')
            a.e(f's_cmp_ge_u32 s{sWAVE}, 5')
            a.e(f's_cbranch_scc1 {Ld2}')
            for ks in range(10 if OPT.get('de', 0) else 0, 20):
                dload(ks)
            a.label(Ld2)
        reduce_addr(l, False)
        a.wait(lg='all')
        a.e('s_barrier')
        a.stamp(f'PB{l}')
        reduce_item(l)
        Lnr = a.newlab('Lnr')
        a.e(f's_cmp_ge_u32 s{sWAVE}, 2')
        a.e(f's_cbranch_scc1 {Lnr}')
        reduce_addr(l, True)
        reduce_item(l)
        a.label(Lnr)
        if l == 1:
            a.stamp_dump(2, sWS, sWAVE, 15)
            break

        a.stamp('redB')
        a.e('v_lshlrev_b32 v5, 4, v8')
        a.e('v_lshl_add_u32 v5, v9, 9, v5')
        a.e(f'v_add_u32 v5, {R1}, v5')
        a.e('v_add_u32 v6, 40960, v5')
        a.wait(vm='all')
        a.e('s_barrier')
        a.stamp('ackXB')
        setflag_w0(a, PH_X2, 12)
        pXA = (7, sFSRC, PH_X2, 1)
        pXB = (11, sFPAR, PH_X2, 1)
        a.vm.clear()
        poll_issue(a, *pXA)
        poll_issue(a, *pXB, tag='poll2')
        poll_check(a, *pXA)
        a.e(f's_add_u32 s67, s{sGCM}, s68')
        lin(5, 68, R1, 67, X2B, ('x2', 0))
        poll_check(a, *pXB, tag='poll2')
        a.stamp('pollXB')
        a.e(f's_mul_i32 s67, s{sPG}, 81920')
        a.e('s_add_u32 s67, s67, s68')
        Lst, Lid, Lj = a.newlab('Lst'), a.newlab('Lid'), a.newlab('Lj')
        a.e(f's_cmp_eq_u32 s{sWAVE}, 7')
        a.e(f's_cbranch_scc1 {Lid}')
        a.e(f's_cmp_ge_u32 s{sWAVE}, 5')
        a.e(f's_cbranch_scc1 {Lst}')
        st0 = a.save()

        def startA1(extra=None):
            a.e('s_waitcnt vmcnt(4)')
            if extra:
                extra()
            lin(5, 68, R1 + 40960, 67, X2B + 40960, ('x2', 1))
            a.wait(vm=('x2', 0))
            a.e('s_barrier')
            a.stamp('XA')

        def hookA1(hf, ks):
            if hf == 0:
                if ks == 3:
                    a.e(f's_lshl_b32 s6, s{sWAVE}, 11')
                    a.e(f's_add_u32 m0, s6, {W1SL}')
                    a.e(f's_lshl_b32 s7, s{sC}, 14')
                    a.e('s_add_u32 s6, s6, s7')
                    a.e(f's_add_u32 s6, s6, 0x{W1S:x}')
                    for n in range(2):
                        a.vmem(f'buffer_load_dwordx4 v2, {sr(sWS, 4)}, s6 offen offset:{n * 1024} sc1 lds', 'w1s')
                if ks == 19:
                    a.stamp('a1A')
                    a.wait(vm='w1s', lg='all')
                    a.e('s_barrier')
                    a.stamp('XB')

        WFA = 16
        RSr, MRr = [196, 200, 204, 208], [212, 216, 220, 224]
        NSG = len(XFS)
        wf = lambda mat, tt, ks: WFA + ((mat * 4 + tt) * 2 + ks) * 4
        startA1()
        for hf in range(2):
            def xread1(ks):
                return [lambda rt=rt: a.lds(f'ds_read_b128 {vr(XFS[ks % NSG] + 4 * rt, 4)}, v{5 + hf} offset:{ks * 2048 + rt * 256}', ('xf', ks)) for rt in range(2)]
            for ks in range(NSG - 1):
                for f in xread1(ks):
                    f()
            for ks in range(20):
                if ks % 2 == 0:
                    a.wait(lg=('xf', ks + 1))
                mf = [f'v_mfma_f32_16x16x32_bf16 {vr(ACCA + 8 * hf + 4 * rt, 4)}, {vr(XFS[ks % NSG] + 4 * rt, 4)}, {vr(dreg(ks), 4)}, {"0" if ks == 0 else vr(ACCA + 8 * hf + 4 * rt, 4)}' for rt in range(2)]
                weave(a, mf, xread1(ks + NSG - 1) if ks + NSG - 1 < 20 else [])
                hookA1(hf, ks)
        prio(a, 3)
        for tt in range(4):
            for ks in range(2):
                for mat in range(2):
                    a.lds(f'ds_read_b128 {vr(wf(mat, tt, ks), 4)}, v2 offset:{W1SL + ((mat * 4 + tt) * 2 + ks) * 1024}', 'wf')
        a.e('v_lshlrev_b32 v12, 4, v9')
        a.stamp('a1B')
        a.e('s_barrier')
        a.stamp('ST')
        for rt in range(4):
            a.lds(f'ds_read_b128 {vr(RSr[rt], 4)}, v12 offset:{ST1 + rt * 64}', 'st')
            a.lds(f'ds_read_b128 {vr(MRr[rt], 4)}, v12 offset:{ST1 + 256 + rt * 64}', 'st')
        stage1(a, ACCA, RSr, MRr, 80, wf, R1)
        stC = a.save()
        a.seen |= {('w2', f) for f in range(20, 30)}
        a.e(f's_branch {Lj}')

        a.label(Lid)
        a.restore(st0)
        startA1()
        for hf in range(2):
            for ks in range(20):
                if hf == 0 and ks == 18 and OPT.get('t1', 0):
                    w1_touch(60, 0, OPT.get('t1', 0))
                hookA1(hf, ks)
        stage_all()
        a.e('s_barrier')
        a.wait(vm='all')
        a.e(f's_branch {Lj}')

        a.label(Lst)
        a.restore(st0)
        AS, AM, ONE, FS = 16, 24, 32, 36
        for r in range(4):
            a.e(f'v_mov_b32 v{ONE + r}, 0x3f803f80')
        a.e(f's_sub_u32 s66, s{sWAVE}, 5')
        a.e('s_lshl_b32 s6, s66, 8')
        a.e('v_add_u32 v5, s6, v5')
        a.e('v_add_u32 v6, s6, v6')
        startA1()
        for hf in range(2):
            def sread(ks):
                a.lds(f'ds_read_b128 {vr(FS + 4 * (ks % 10), 4)}, v{5 + hf} offset:{ks * 2048}', ('sf', ks))
            for ks in range(9):
                sread(ks)
            for ks in range(20):
                a.wait(lg=('sf', ks))
                f = vr(FS + 4 * (ks % 10), 4)
                a.e(f'v_mfma_f32_16x16x32_bf16 {vr(AS + 4 * hf, 4)}, {f}, {f}, {"0" if ks == 0 else vr(AS + 4 * hf, 4)}')
                if ks + 9 < 20:
                    sread(ks + 9)
                a.e(f'v_mfma_f32_16x16x32_bf16 {vr(AM + 4 * hf, 4)}, {f}, {vr(ONE, 4)}, {"0" if ks == 0 else vr(AM + 4 * hf, 4)}')
                hookA1(hf, ks)
        prio(a, 3)
        a.e('s_lshl_b32 s6, s66, 6')
        a.e(f's_add_u32 s6, s6, {ST1}')
        stats_finalize(a, AS, AM, 2, 11, 128, 256, 'rs_mr')
        a.wait(lg='all')
        a.e('s_barrier')
        a.label(Lj)
        a.e('s_nop 1')
        a.restore(stC)
        v_out_addr(a)
        a.wait(lg='all')
        a.e('s_barrier')
        a.stamp('VT')
        v_out(a, 1, R1, 64)
        if not OPT.get('bearly', 1):
            guarded(5, range(20, 30))
        for n in range(NR):
            bg.add(lambda n=n: w1load(n))
            if n < NST:
                bg.add(lambda n=n: stash(n))

        def pv1():
            if not OPT.get('bearly', 1):
                Lq = a.newlab('Lq')
                a.e('s_waitcnt vmcnt(10)')
                a.e(f's_cmp_lt_u32 s{sWAVE}, 5')
                a.e(f's_cbranch_scc1 {Lq}')
                a.wait(vm='vo')
                a.label(Lq)
            a.wait(vm='vo')
            a.e('s_barrier')
            a.stamp('PV1')
            setflag_w0(a, PH_V[1], 7)
        a2_pre(1, lambda: bg.run(OPT.get('bga2', 3)), pv1)
        a.stamp('a2pre')

    a.label(end)
    a.e('s_endpgm')
    a.raw(descriptor(name, 256, 102))
    return 163840


def main():
    if len(sys.argv) > 2 and 'stamps' in sys.argv[2:]:
        Asm.STAMPS = True
    Asm.CYC = 'cyc' in sys.argv[2:]
    Asm.DBGOUT = 'dbgout' in sys.argv[2:]
    for o in sys.argv[2:]:
        if o.startswith('names='):
            Asm.ACTIVE = o[6:].split(',')
        elif '=' in o:
            k, v = o.split('=')
            OPT[k] = int(v)
    hdr = open('cdna_kernels/' + NAME + '.s.ref').read().split('\n')
    hdr = [l for l in hdr if l.startswith(';') and '@launch' not in l and 'Override launch' not in l and 'grid=ceil' not in l]
    out = '\n'.join(hdr) + '\n'
    a = Asm()
    lds = gen(a, NAME + '_kernel')
    out += f'; @launch grid=(256,1,1) block=(512,1,1) lds={lds}\n'
    if Asm.STAMPS:
        out += '; stampnames start,' + ','.join(Asm.ACTIVE) + '\n'
    out += '.amdgcn_target "amdgcn-amd-amdhsa--gfx950"\n'
    out += a.text()
    path = sys.argv[1] if len(sys.argv) > 1 else 'cdna_kernels/' + NAME + '.s'
    open(path, 'w').write(out)
    print('wrote', path, len(out))


main()
```

```python
import sys
from asmlib import *

NAME = 'interleave_layers__spectral_fnet__dense_activation_relu__prompt'
S, D, F = 2048, 640, 1728
W1F = 0
W2F = 0x220000
DPF = 0x440000
CSP = 0x510000
W1S = 0x540000
STG = 0x560000
FLG = 0x760000
VB = [0x960000, 0xC60000]
X1B = [0xF60000, 0x11E0000]
X2B = 0x1460000
HB = [0x16E0000, 0x1DA0000]
WS_BYTES = 268435456
OOB = 0x7f000000
SPIN = 200000
OPT = {}

R1 = 81920
PRV = 10240
STATS, CSS = 9216, PRV + 9216
CNT1, CNT2 = STATS + 512, STATS + 516
PSUM = 5 * PRV + 9216
XRL1, TWL1, W1SL, ST1 = R1 + 12288, R1 + 24576, 20480, 36864

sWAVE, sG, sC = 3, 4, 5
P_X, P_CR, P_CI, P_DR, P_DI, P_W1, P_W2, P_OUT, P_WS = 8, 10, 12, 14, 16, 20, 22, 24, 26
sWS, sOUT, sFL = 28, 32, 36
sRHO, sKT, sMIR, sNON, sU1, sU2 = 38, 39, 40, 41, 42, 43
sGCM, sFOWN, sW1B, sHK, sW2O, sHG, sFSRC, sTAU1, sPG, sFPAR = 44, 45, 46, 47, 48, 49, 50, 51, 52, 53


def fbits(x):
    import struct
    return struct.unpack('<I', struct.pack('<f', float(x)))[0]


def sin_frag(a, dst, tmp, vstep, vbase, ks):
    for e in range(8):
        a.e(f'v_fmamk_f32 v{tmp + e}, v{vstep}, 0x{fbits(ks[e]):08x}, v{vbase}')
    for e in range(8):
        a.e(f'v_sin_f32 v{tmp + e}, v{tmp + e}')
    for r in range(4):
        a.e(f'v_cvt_pk_bf16_f32 v{dst + r}, v{tmp + 2 * r}, v{tmp + 2 * r + 1}')


def gen_D(a, reg, tmp, rot, parts=(0, 1, 2)):
    st, ba = tmp + 8, tmp + 9
    if 0 in parts:
        a.e(f's_mul_i32 s6, s{sC}, 40')
        a.e(f's_min_u32 s7, s{sWAVE}, 4')
        a.e('s_lshl_b32 s7, s7, 3')
        a.e('s_add_u32 s6, s6, s7')
        a.e(f'v_and_b32 v{st}, 7, v1')
        a.e(f'v_add_u32 v{st}, s6, v{st}')
        a.e('v_mov_b32 v0, 320')
        a.e(f'v_cmp_eq_u32 vcc, 0, v{st}')
        a.e(f'v_cndmask_b32 v{st}, v{st}, v0, vcc')
        if rot is None:
            a.e(f'v_lshlrev_b32 v{ba}, 3, v9')
        else:
            a.e(f's_lshr_b32 s6, s{rot}, 1')
            a.e(f'v_lshl_add_u32 v{ba}, v9, 3, s6')
        a.e(f'v_mul_u32_u24 v{ba}, v{st}, v{ba}')
        a.e('v_mov_b32 v11, 160')
        a.e('v_cmp_gt_u32 vcc, 8, v8')
        a.e('v_cndmask_b32 v0, v0, v11, vcc')
        a.e(f'v_add_u32 v{ba}, v{ba}, v0')
        a.e('s_mov_b32 s7, 0x666667')
        a.e(f'v_mul_hi_u32 v0, v{ba}, s7')
        a.e('v_mul_u32_u24 v0, 640, v0')
        a.e(f'v_sub_u32 v{ba}, v{ba}, v0')
        a.e(f'v_cvt_f32_i32 v{ba}, v{ba}')
        a.e(f'v_cvt_f32_u32 v{st}, v{st}')
        a.e(f'v_mul_f32 v{ba}, 0x3acccccd, v{ba}')
        a.e(f'v_mul_f32 v{st}, 0x3acccccd, v{st}')
        for ks in range(3):
            sin_frag(a, reg(ks), tmp, st, ba, [32 * ks + e for e in range(8)])
    if 1 in parts:
        for ks in range(3, 5):
            sin_frag(a, reg(ks), tmp, st, ba, [32 * ks + e for e in range(8)])
        a.e('v_mov_b32 v13, 0x80008000')
        a.e('v_lshrrev_b32 v0, 1, v1')
        a.e('v_lshrrev_b32 v12, 3, v1')
        a.e('v_and_b32 v12, v12, v1')
        a.e('v_xor_b32 v0, v0, v12')
        a.e('v_and_b32 v0, 1, v0')
        a.e('v_cmp_eq_u32 vcc, 1, v0')
        a.e('v_cndmask_b32 v12, 0, v13, vcc')
        a.e('v_and_b32 v0, 1, v1')
        a.e('v_cmp_eq_u32 vcc, 1, v0')
        a.e(f'v_cndmask_b32 v{st}, 0, v13, vcc')
        for r in range(20):
            a.e(f'v_xor_b32 v{reg(5 + r // 4) + r % 4}, v{reg(r // 4) + r % 4}, v12')
        a.e('s_mov_b64 exec, vcc')
        a.e('s_nop 4')
        for r in range(20):
            a.e(f'v_xor_b32_dpp v{reg(5 + r // 4) + r % 4}, v{reg(r // 4) + r % 4}, v12 row_ror:8 row_mask:0xf bank_mask:0xf')
        a.e('s_mov_b64 exec, -1')
    if 2 in parts:
        for r in range(40):
            a.e(f'v_xor_b32 v{reg(10 + r // 4) + r % 4}, v{reg(r // 4) + r % 4}, v{st}')


def gen_W1(a, l, base, tmp, mats, smat=None, tts=range(4), stt=None):
    st, ba, qq, sg = tmp + 16, tmp + 17, tmp + 18, 13
    a.e(f'v_lshlrev_b32 v{qq}, 3, v9')
    a.e(f'v_cvt_f32_u32 v{qq}, v{qq}')
    a.e(f'v_and_b32 v{sg}, 1, v1')
    a.e(f'v_mul_u32_u24 v{sg}, 0x10001, v{sg}')
    a.e(f'v_lshlrev_b32 v{sg}, 15, v{sg}')
    for mat in mats:
        if smat is None:
            a.e(f'v_mov_b32 v0, 0x{fbits(0.5 if mat else 0.25):08x}')
        for tt in tts:
            a.e(f'v_add_u32 v{st}, {16 * tt}, v8')
            if stt is not None:
                a.e(f'v_add_u32 v{st}, s{stt}, v{st}')
            a.e(f'v_cvt_f32_u32 v{st}, v{st}')
            a.e(f'v_mul_f32 v{st}, 0x3c800000, v{st}')
            a.e(f'v_fma_f32 v{ba}, v{qq}, v{st}, {"v0" if smat is None else f"s{smat}"}')
            o = tmp + 8
            for e in range(8):
                k = e if l == 0 else 2 * (e % 4) + e // 4
                a.e(f'v_fmamk_f32 v{tmp + e}, v{st}, 0x{fbits(k):08x}, v{ba}')
            for e in range(8):
                a.e(f'v_sin_f32 v{tmp + e}, v{tmp + e}')
            dst = (0, 1, 2, 3) if l == 0 else (0, 1, 4, 5)
            for r in range(4):
                a.e(f'v_cvt_pk_bf16_f32 v{o + dst[r]}, v{tmp + 2 * r}, v{tmp + 2 * r + 1}')
            for r in range(4):
                a.e(f'v_xor_b32 v{o + dst[r] + (4 if l == 0 else 2)}, v{o + dst[r]}, v{sg}')
            for ks in range(2):
                a.lds(f'ds_write_b128 v{tmp + 19}, {vr(o + 4 * ks, 4)} offset:{base + ((mat * 4 + tt) * 2 + ks) * 1024}', 'gw')


def gen_TW(a, tmp, srho_tau, vaddr, off0):
    st, ba = tmp + 12, tmp + 13
    a.e(f'v_lshl_add_u32 v{st}, v10, 6, s{srho_tau}')
    a.e(f'v_cvt_f32_u32 v{st}, v{st}')
    a.e(f'v_mul_f32 v{st}, 0x3a000000, v{st}')
    a.e(f'v_lshlrev_b32 v{ba}, 3, v4')
    a.e(f'v_cvt_f32_u32 v{ba}, v{ba}')
    a.e(f'v_mul_f32 v{ba}, v{ba}, v{st}')
    for ks in (2, 3, 0, 1):
        if ks == 0:
            a.e(f'v_add_f32 v{ba}, 0x{fbits(0.25):08x}, v{ba}')
        sin_frag(a, tmp + 8, tmp, st, ba, [16 * (ks % 2) + e for e in range(8)])
        a.lds(f'ds_write_b128 v{vaddr}, {vr(tmp + 8, 4)} offset:{off0 + ks * 1024}', 'gw')


def weave(a, mfs, fill):
    fill = list(fill)
    for i, m in enumerate(mfs):
        a.e(m)
        left = len(mfs) - i
        for _ in range(-(-len(fill) // left)):
            fill.pop(0)()


class BG:
    def __init__(self):
        self.q = []

    def add(self, f):
        self.q.append(f)

    def run(self, n=None):
        n = len(self.q) if n is None else min(n, len(self.q))
        for _ in range(n):
            self.q.pop(0)()


PH_V, PH_X1, PH_S, PH_H, PH_X2 = (1, 6), (2, 7), (3, 8), (4, 9), 5
LOC = 0x80000
sXCC = 27


def poll_issue(a, vres, soff, phase, n, shift=7, first=0, tag='poll'):
    if shift == 'late':
        a.e(f'v_and_b32 v{vres}, 3, v1')
        a.e(f'v_min_u32 v{vres}, 2, v{vres}')
        a.e(f'v_lshlrev_b32 v{vres}, 7, v{vres}')
        a.e(f'v_lshl_add_u32 v{vres}, v4, 10, v{vres}')
        shift = 7
    else:
        a.e(f'v_min_u32 v{vres}, {n - 1}, v1')
        a.e(f'v_lshlrev_b32 v{vres}, {shift}, v{vres}')
    a.e(f's_add_u32 s60, s{soff}, 0x{FLG + (first << shift):x}')
    a.vmem(f'buffer_load_dword v{vres}, v{vres}, {sr(sWS, 4)}, s60 offen sc1', tag)


def poll_check(a, vres, soff, phase, n, shift=7, first=0, tag='poll'):
    L, Ld = a.newlab('Lpoll'), a.newlab('Lpd')
    a.e(f's_add_u32 s59, s{sNON}, {phase}')
    a.wait(vm=tag)
    a.e('s_mov_b32 s61, 0')
    a.label(L)
    a.e(f'v_subrev_u32 v{vres}, s59, v{vres}')
    a.e(f'v_cmp_le_u32 vcc, 16, v{vres}')
    a.e(f's_cbranch_vccz {Ld}')
    if OPT.get('abl_poll', 0) >> phase & 1:
        a.e(f's_branch {Ld}')
    if OPT.get('psleep', 2):
        a.e(f's_sleep {OPT.get("psleep", 2)}')
    st = a.save()
    poll_issue(a, vres, soff, phase, n, shift, first, tag)
    a.restore(st)
    a.e('s_waitcnt vmcnt(0)')
    a.e('s_add_u32 s61, s61, 1')
    a.e(f's_cmp_lt_u32 s61, {SPIN}')
    a.e(f's_cbranch_scc1 {L}')
    a.label(Ld)


def poll(a, vres, *args, **kw):
    poll_issue(a, vres, *args, **kw)
    poll_check(a, vres, *args, **kw)


def prio(a, p):
    if OPT.get('prio', 1):
        a.e(f's_setprio {p}')


def setflag(a, phase, vt):
    if phase is None:
        a.e('v_mov_b32 v0, 0')
    else:
        a.e(f's_add_u32 s62, s{sNON}, {phase}')
        a.e('v_mov_b32 v0, s62')
        a.e(f'v_writelane_b32 v0, s{sXCC}, 1')
    a.e(f'v_lshlrev_b32 v{vt}, 2, v1')
    a.e('s_mov_b32 exec_hi, 0')
    if phase is not None and phase not in PH_V:
        a.e(f's_add_u32 s62, s{sFOWN}, 0x{LOC:x}')
        a.vmem(f'buffer_store_dword v0, v{vt}, {sr(sWS, 4)}, s62 offen', 'flag')
    if phase is not None and phase not in PH_V and phase != PH_X1[0]:
        L = a.newlab('Lng')
        a.e('s_cmp_eq_u32 s26, 0')
        a.e(f's_cbranch_scc1 {L}')
        a.e(f'buffer_store_dword v0, v{vt}, {sr(sWS, 4)}, s{sFOWN} offen sc1')
        a.label(L)
    else:
        a.vmem(f'buffer_store_dword v0, v{vt}, {sr(sWS, 4)}, s{sFOWN} offen sc1', 'flag')
    if phase is None:
        a.e(f's_add_u32 s62, s{sFOWN}, 0x{LOC:x}')
        a.vmem(f'buffer_load_dword v254, v{vt}, {sr(sWS, 4)}, s62 offen sc1', 'flag')
    a.e('s_mov_b32 exec_hi, -1')


def setflag_w0(a, phase, vt):
    L = a.newlab('Lnf')
    a.e(f's_cmp_lg_u32 s{sWAVE}, 0')
    a.e(f's_cbranch_scc1 {L}')
    st = a.save()
    setflag(a, phase, vt)
    a.restore(st)
    a.label(L)


EXTRA = ['hst', 'flag', 'xst', 'vst', 'pst']


def merge(a, *states):
    ls = [[t for t in s[0] if t not in EXTRA and not (isinstance(t, tuple) and t[0] in EXTRA)] for s in states]
    ls.sort(key=len)
    longer = ls[-1]
    for s in ls[:-1]:
        assert longer[len(longer) - len(s):] == s, (longer, s)
    a.vm = list(longer)
    a.lg = []


def stats_finalize(a, AS, AM, ntiles, tmp, tile_stride, delta1, mode):
    t = tmp
    a.e(f'v_lshlrev_b32 v{t}, 2, v9')
    a.e(f'v_sub_u32 v{t}, v8, v{t}')
    a.e(f'v_lshl_add_u32 v{t + 1}, v8, 2, s6')
    a.e(f'v_cmp_eq_u32 s[70:71], 1, v{t}')
    a.e(f'v_cmp_eq_u32 s[72:73], 2, v{t}')
    a.e(f'v_cmp_eq_u32 s[74:75], 3, v{t}')
    a.e(f'v_cmp_gt_u32 s[76:77], 4, v{t}')
    a.e('s_mov_b32 s7, 0x3acccccd')
    for rt in range(ntiles):
        for acc in (AS, AM):
            b = acc + 4 * rt
            a.e(f'v_cndmask_b32 v{b}, v{b}, v{b + 1}, s[70:71]')
            a.e(f'v_cndmask_b32 v{b}, v{b}, v{b + 2}, s[72:73]')
            a.e(f'v_cndmask_b32 v{b}, v{b}, v{b + 3}, s[74:75]')
        ss, sm = AS + 4 * rt, AM + 4 * rt
        a.e(f'v_mul_f32 v{sm}, s7, v{sm}')
        a.e(f'v_mul_f32 v{ss}, s7, v{ss}')
        a.e(f'v_fma_f32 v{ss}, -v{sm}, v{sm}, v{ss}')
        a.e(f'v_max_f32 v{ss}, 0, v{ss}')
        a.e(f'v_add_f32 v{ss}, 0x3727c5ac, v{ss}')
        a.e(f'v_rsq_f32 v{ss}, v{ss}')
        if mode == 'rs_mr':
            a.e(f'v_mul_f32 v{sm}, v{sm}, v{ss}')
    a.e('s_mov_b64 exec, s[76:77]')
    for rt in range(ntiles):
        ss, sm = AS + 4 * rt, AM + 4 * rt
        first, second = (ss, sm) if mode == 'rs_mr' else (sm, ss)
        a.lds(f'ds_write_b32 v{t + 1}, v{first} offset:{rt * tile_stride}')
        a.lds(f'ds_write_b32 v{t + 1}, v{second} offset:{rt * tile_stride + delta1}')
    a.e('s_mov_b64 exec, -1')


def stage1(a, ACC, RSr, MRr, VA, wf, VT):
    a.e('v_cmp_gt_u32 vcc, 8, v8')
    a.e('v_mov_b32 v13, 0x80008000')
    a.e('v_cndmask_b32 v13, 0, v13, vcc')
    a.e('v_and_b32 v12, 1, v9')
    a.e('v_lshl_add_u32 v12, v12, 4, v8')
    a.e('v_mul_u32_u24 v12, 192, v12')
    a.e('v_lshrrev_b32 v11, 1, v9')
    a.e('v_mul_u32_u24 v11, 80, v11')
    a.e(f's_lshl_b32 s6, s{sWAVE}, 4')
    a.e(f's_add_u32 s6, s6, {VT}')
    a.e('v_add3_u32 v12, v12, v11, s6')
    a.wait(lg='st')
    for r in range(16):
        m = MRr[r // 4] + r % 4
        a.e(f'v_mul_f32 v{m}, v{m}, v14')
    for r in range(16):
        a.e(f'v_fma_f32 v{ACC + r}, v{ACC + r}, v{RSr[r // 4] + r % 4}, -v{MRr[r // 4] + r % 4}')
    for r in range(8):
        a.e(f'v_cvt_pk_bf16_f32 v{ACC + r}, v{ACC + 2 * r}, v{ACC + 2 * r + 1}')
    for r in range(8):
        a.e(f'v_xor_b32_dpp v{ACC + 8 + r}, v{ACC + r}, v13 row_ror:8 row_mask:0xf bank_mask:0xf')
    a.wait(lg='wf')
    for tt in range(4):
        for ks in range(2):
            for mat in range(2):
                src = ACC + 8 * mat + 4 * ks
                c = '0' if (ks == 0 and mat == 0) else vr(VA + 4 * tt, 4)
                a.e(f'v_mfma_f32_16x16x32_bf16 {vr(VA + 4 * tt, 4)}, {vr(src, 4)}, {vr(wf(mat, tt, ks), 4)}, {c}')
    for pr in range(2):
        b = VA + 8 * pr
        for r in range(4):
            a.e(f'v_cvt_pk_bf16_f32 v{b + r}, v{b + 2 * r}, v{b + 2 * r + 1}')
        a.e(f'v_permlane16_swap_b32 v{b}, v{b + 2}')
        a.e(f'v_permlane16_swap_b32 v{b + 1}, v{b + 3}')
        a.lds(f'ds_write_b128 v12, {vr(b, 4)} offset:{pr * 32 * 192}', 'vt')


def v_out_addr(a):
    for n, dst in ((0, 5), (8, 6)):
        a.e(f's_lshl_b32 s6, s{sWAVE}, 6')
        a.e(f's_add_u32 s6, s6, {n * 64}')
        a.e('v_add_u32 v0, s6, v1')
        a.e('v_mul_u32_u24 v7, 5462, v0')
        a.e('v_lshrrev_b32 v7, 16, v7')
        a.e('v_lshlrev_b32 v0, 4, v0')
        a.e(f's_mov_b32 s7, {8 * 32 * 192 - 192}')
        a.e(f'v_mad_u32_u24 v{dst}, v7, s7, v0')


def v_out(a, l, VT, R):
    a.e(f's_lshl_b32 s6, s{sWAVE}, 10')
    a.e(f's_add_u32 s6, s6, {VT}')
    a.e('v_add_u32 v0, s6, v2')
    a.lds(f'ds_read_b128 {vr(R, 4)}, v0', 'vo0')
    a.lds(f'ds_read_b128 {vr(R + 4, 4)}, v0 offset:8192', 'vo1')
    a.e(f's_lshl_b32 s6, s{sC}, 5')
    a.e(f's_add_u32 s6, s6, s{sG}')
    a.e('s_mulk_i32 s6, 192')
    a.e(f's_add_u32 s6, s6, 0x{VB[l]:x}')
    a.e(f's_cmp_lt_u32 s{sWAVE}, 4')
    a.e(f's_cselect_b32 s7, s6, 0x{OOB:x}')
    a.wait(lg='vo0')
    a.vmem(f'buffer_store_dwordx4 {vr(R, 4)}, v5, {sr(sWS, 4)}, s6 offen sc1', 'vo')
    a.wait(lg='vo1')
    a.vmem(f'buffer_store_dwordx4 {vr(R + 4, 4)}, v6, {sr(sWS, 4)}, s7 offen sc1', 'vo')


TW, Y, VF, PK, ID, XR, XM, XE = 16, 32, 48, 48, 48, 56, 16, 24
ACCX, XF = 16, 48
NR, NST = 12, 9
RING = [88 + 4 * k for k in range(12)]
JIT = [80, 84]
sHO, sWO = 8, 16
ACCB = 16
HBUF = [96 + 4 * k for k in range(5)]
ACCA = 96
XFS = [56, 64, 72, 80, 88, 236, 244]


def dreg(ks):
    return 16 + 4 * ks if ks < 10 else 196 + 4 * (ks - 10)


def w2reg(f):
    return 136 + 4 * f if f < 30 else 96 + 4 * (f - 30)


def gen(a, name):
    end = name + '_end'
    a.raw('.text')
    a.raw(f'.globl {name}')
    a.raw('.p2align 8')
    a.raw(f'.type {name},@function')
    a.label(name)
    a.e('s_cmp_ge_u32 s2, 256')
    a.e(f's_cbranch_scc1 {end}')
    a.stamp_init()
    a.stamp(0)
    a.e('s_load_dwordx16 s[8:23], s[0:1], 0')
    a.e('s_load_dwordx2 s[24:25], s[0:1], 64')
    a.e('s_load_dwordx2 s[26:27], s[0:1], 80')
    a.e('s_load_dwordx2 s[96:97], s[0:1], 72')
    a.e('v_lshrrev_b32 v1, 6, v0')
    a.e(f'v_readfirstlane_b32 s{sWAVE}, v1')
    a.e('v_and_b32 v1, 63, v0')
    if OPT.get('cpf', 1):
        a.e('s_getpc_b64 s[98:99]')
        a.label('Lpc')
        a.e('s_lshr_b32 s6, s2, 3')
        a.e('s_lshl_b32 s6, s6, 5')
        a.e('v_and_b32 v253, 31, v0')
        a.e('v_add_u32 v253, s6, v253')
        a.e('v_lshlrev_b32 v253, 7, v253')
        a.e(f'v_min_u32 v253, {end} - Lpc, v253')
        a.e('v_cmp_gt_u32 vcc, 32, v0')
        a.e('s_and_saveexec_b64 s[6:7], vcc')
        a.e('s_cbranch_execz Lpcd')
        a.e('global_load_dword v253, v253, s[98:99]')
        a.label('Lpcd')
        a.e('s_mov_b64 exec, -1')
    XM_ = OPT.get('xm', 0)
    a.e('s_and_b32 s6, s2, 7')
    a.e('s_lshr_b32 s7, s2, 3')
    a.e(f's_and_b32 s98, s6, {(1 << XM_) - 1}')
    a.e(f's_lshl_b32 s98, s98, {3 - XM_}')
    a.e(f's_and_b32 s99, s7, {(8 >> XM_) - 1}')
    a.e(f's_add_u32 s{sC}, s98, s99')
    a.e(f's_lshr_b32 s6, s6, {XM_}')
    a.e(f's_lshl_b32 s6, s6, {2 + XM_}')
    a.e(f's_lshr_b32 s7, s7, {3 - XM_}')
    a.e('s_add_u32 s101, s6, s7')
    a.e('s_lshr_b32 s6, s101, 1')
    a.e('s_sub_u32 s7, 32, s6')
    a.e('s_cmp_eq_u32 s6, 0')
    a.e('s_cselect_b32 s7, 16, s7')
    a.e('s_bitcmp1_b32 s101, 0')
    a.e(f's_cselect_b32 s{sG}, s7, s6')
    a.e('v_lshlrev_b32 v2, 4, v1')
    a.e('v_and_b32 v8, 15, v1')
    a.e('v_lshrrev_b32 v9, 4, v1')
    a.e('v_and_b32 v10, 31, v1')
    a.e('v_lshrrev_b32 v4, 5, v1')

    sX, sW1, sW2, sCS = 56, 68, 72, 12
    sWK, sROT = 54, 55
    RS, MR, CNT0 = 0, 256, 512
    W1L = 1024
    WP1 = W1L + 16384
    W2S = WP1 + 14336
    VT0 = W2S + 10240
    XRL0 = VT0 + 12288
    TWL0 = XRL0 + 12288
    EW = 1
    vXA, vF0, vF1, vO8, vSW = 240, 244, 245, 246, 247
    a.e(f'v_lshrrev_b32 v{vO8}, 3, v1')
    a.e(f'v_and_b32 v{vSW}, 7, v1')
    a.e(f'v_xor_b32 v{vSW}, v{vSW}, v{vO8}')
    a.e(f'v_lshlrev_b32 v{vSW}, 4, v{vSW}')
    a.e(f's_and_b32 s{sKT}, s{sWAVE}, 1')
    a.e(f's_lshr_b32 s{sMIR}, s{sWAVE}, 2')
    a.e(f's_bfe_u32 s{sRHO}, s{sWAVE}, 0x10001')
    a.e(f's_lshl_b32 s6, s{sKT}, 4')
    a.e(f's_lshl_b32 s7, s{sMIR}, 5')
    a.e('s_add_u32 s6, s6, s7')
    a.e(f's_lshl_b32 s7, s{sRHO}, 2')
    a.e('s_add_u32 s6, s6, s7')
    a.e(f'v_lshrrev_b32 v{vXA}, 2, v{vO8}')
    a.e(f'v_lshlrev_b32 v{vXA}, 3, v{vXA}')
    a.e(f'v_and_b32 v0, 3, v{vO8}')
    a.e(f'v_add3_u32 v{vXA}, v{vXA}, v0, s6')
    a.e(f'v_lshl_add_u32 v{vXA}, v{vXA}, 5, s{sG}')
    a.e('s_movk_i32 s62, 1280')
    a.e(f'v_mad_u32_u24 v{vXA}, v{vXA}, s62, v{vSW}')
    a.e(f's_lshl_b32 s{sWK}, s{sWAVE}, 10')
    a.e(f's_lshl_b32 s{sROT}, s{sC}, 7' if OPT.get('rot', 1) else f's_mov_b32 s{sROT}, 0')
    a.e('s_waitcnt lgkmcnt(0)')
    a.stamp('karg')
    a.srd(sX, P_X, S * D * 2)

    def dma_x(kc):
        a.e(f's_add_u32 s99, s{sROT}, {kc * 128}')
        if kc >= 3:
            a.e('s_cmp_ge_u32 s99, 1280')
            a.e('s_cselect_b32 s18, 1280, 0')
            a.e('s_sub_u32 s99, s99, s18')
        a.e(f's_add_u32 m0, s{sWK}, {R1 + kc * 8192}')
        a.vmem(f'buffer_load_dwordx4 v{vXA}, {sr(sX, 4)}, s99 offen lds', ('c', 0 if kc < 4 else 1))

    for kc in range(4):
        dma_x(kc)
    a.srd(sW1, P_W1, D * F * 2)
    a.srd(sW2, P_W2, D * F * 2)
    a.srd(sWS, P_WS, WS_BYTES)
    a.srd(sOUT, P_OUT, S * D * 2)
    a.e(f's_add_u32 s{sFL}, s{P_WS}, 0x{FLG:x}')
    a.e(f's_addc_u32 s{sFL + 1}, s{P_WS + 1}, 0')
    for kc in range(4, 10):
        dma_x(kc)
    a.e(f's_sub_u32 s6, 64, s{sG}')
    a.e(f's_cmp_eq_u32 s{sG}, 0')
    a.e(f's_cselect_b32 s{sTAU1}, 32, s6')
    a.e(f's_mul_i32 s6, s{sC}, 7')
    a.e('s_min_u32 s100, s6, 48')
    a.e('s_lshl_b32 s6, s100, 1')
    a.e(f's_lshl_b32 s7, s{sWAVE}, 1')
    a.e(f's_add_u32 s{sU1}, s6, s7')
    a.e(f's_min_u32 s{sU1}, s{sU1}, 106')
    a.e(f's_cmp_lt_u32 s{sC}, 6')
    a.e(f's_cselect_b32 s{sU2}, 7, 6')
    a.e(f's_mul_i32 s{sGCM}, s{sG}, 81920')
    a.e(f's_lshl_b32 s6, s{sG}, 3')
    a.e(f's_add_u32 s7, s6, s{sC}')
    a.e('s_lshl_b32 s7, s7, 3')
    a.e(f's_add_u32 s7, s7, s{sWAVE}')
    a.e('s_lshl_b32 s7, s7, 7')
    a.e(f's_add_u32 s{sFOWN}, s7, 0x{FLG:x}')
    a.e(f's_add_u32 s7, s6, s{sWAVE}')
    a.e(f's_lshl_b32 s{sFSRC}, s7, 10')
    a.e(f's_sub_u32 s{sPG}, 32, s{sG}')
    a.e(f's_and_b32 s{sPG}, s{sPG}, 31')
    a.e(f's_lshl_b32 s7, s{sPG}, 3')
    a.e(f's_add_u32 s7, s7, s{sWAVE}')
    a.e(f's_lshl_b32 s{sFPAR}, s7, 10')
    a.e(f's_mul_i32 s{sW1B}, s{sU1}, 20480')
    a.e(f's_cmp_ge_u32 s{sWAVE}, s{sU2}')
    a.e(f's_cselect_b32 s{sW1B}, 0x{OOB:x}, s{sW1B}')
    a.e(f's_getreg_b32 s{sXCC}, hwreg(HW_REG_XCC_ID)')
    a.e(f's_and_b32 s{sXCC}, s{sXCC}, 15')
    a.e(f's_mul_i32 s{sHG}, s{sG}, {216 * 1024}')
    a.e(f's_mul_i32 s{sW2O}, s{sC}, {54 * 5120}')
    a.e(f's_add_u32 s{sW2O}, s{sW2O}, 0x{W2F:x}')
    a.e(f's_mul_i32 s98, s{sWAVE}, 14')
    for i in range(8):
        a.e(f's_add_u32 s6, s{sWAVE}, {min(7 * i, 48)}')
        if i < 6:
            a.e(f's_sub_u32 s7, s98, {52 - (0, 1, 2, 7, 8, 9)[i]}')
            a.e(f's_cmp_ge_u32 s{sWAVE}, 4')
            a.e('s_cselect_b32 s6, s7, s6')
            a.e(f's_cmp_eq_u32 s{sWAVE}, 7')
            a.e(f's_cselect_b32 s6, {(46, 47, 52, 53, 0x40000, 0x40000)[i]}, s6')
        a.e('s_lshl_b32 s7, s6, 12')
        a.e(f's_add_u32 s{sHO + i}, s7, s{sHG}')
        a.e('s_mulk_i32 s6, 5120')
        a.e(f's_add_u32 s{sWO + i}, s6, s{sW2O}')
    a.e('v_lshlrev_b32 v3, 4, v8')
    a.e('v_lshl_add_u32 v3, v9, 10, v3')
    Lnn = a.newlab('Lnn')
    a.e('s_lshl_b32 s6, s2, 3')
    a.e(f's_add_u32 s6, s6, s{sWAVE}')
    a.e('s_cmp_lg_u32 s6, 7')
    a.e(f's_cbranch_scc1 {Lnn}')
    a.e(f's_load_dword s6, s[{sFL}:{sFL + 1}], 0x40000 glc')
    a.e('s_waitcnt lgkmcnt(0)')
    a.e('s_add_u32 s6, s6, 16')
    a.e('s_and_b32 s6, s6, -16')
    a.e('s_bitset1_b32 s6, 31')
    a.e('v_mov_b32 v0, s6')
    a.e('v_mov_b32 v5, 0')
    a.e('s_mov_b64 exec, 1')
    a.e(f's_mov_b32 s7, 0x{FLG + 0x40000:x}')
    a.e(f'buffer_store_dword v0, off, {sr(sWS, 4)}, s7 sc1')
    a.e('global_store_dword v5, v0, s[96:97] sc1')
    a.e('s_mov_b64 exec, -1')
    a.label(Lnn)

    a.e(f'v_and_b32 v{vF0}, 7, v1')
    a.e(f'v_xor_b32 v{vF0}, v{vF0}, v9')
    a.e(f'v_lshlrev_b32 v{vF0}, 4, v{vF0}')
    a.e(f'v_lshl_add_u32 v{vF0}, v8, 7, v{vF0}')
    a.e(f'v_xor_b32 v{vF1}, 64, v{vF0}')

    a.e('v_mov_b32 v0, 0')
    a.lds(f'ds_write_b32 v0, v0 offset:{CNT0}', 'z')

    def side(job):
        if job == 'late':
            a.e('v_mov_b32 v252, 0')
            a.vmem('global_load_dword v252, v252, s[96:97] sc1', 'non')
            setflag(a, None, 5)
        if job == 'nonc':
            L, Ld = a.newlab('Lno'), a.newlab('Lnd')
            a.wait(vm='non')
            a.e('s_mov_b32 s98, 0')
            a.label(L)
            a.e(f'v_readfirstlane_b32 s{sNON}, v252')
            a.e('s_nop 1')
            a.e(f's_cmp_lg_u32 s{sNON}, 0')
            a.e(f's_cbranch_scc1 {Ld}')
            a.e('v_mov_b32 v252, 0')
            a.e('global_load_dword v252, v252, s[96:97] sc1')
            a.e('s_waitcnt vmcnt(0)')
            a.e('s_add_u32 s98, s98, 1')
            a.e(f's_cmp_lt_u32 s98, {SPIN}')
            a.e(f's_cbranch_scc1 {L}')
            a.label(Ld)


    def cnt0_add():
        a.e('v_mov_b32 v5, 0')
        a.e('v_mov_b32 v0, 1')
        a.e('s_mov_b64 exec, 1')
        a.lds(f'ds_add_u32 v5, v0 offset:{CNT0}', 'cnt')
        a.e('s_mov_b64 exec, -1')

    def cnt0_wait():
        L, Ld = a.newlab('Lcw'), a.newlab('Lcd')
        a.e('s_mov_b32 s61, 0')
        a.label(L)
        a.e('v_mov_b32 v5, 0')
        a.e(f'ds_read_b32 v5, v5 offset:{CNT0}')
        a.e('s_waitcnt lgkmcnt(0)')
        a.lg.clear()
        a.e('v_cmp_gt_u32 vcc, 8, v5')
        a.e(f's_cbranch_vccz {Ld}')
        a.e('s_sleep 1')
        a.e('s_add_u32 s61, s61, 1')
        a.e(f's_cmp_lt_u32 s61, {SPIN}')
        a.e(f's_cbranch_scc1 {L}')
        a.label(Ld)

    def first_barrier():
        a.stamp('p0iss')
        a.wait(vm=('c', 0), lg='all')
        a.e('s_barrier')
        a.stamp('p0c0')

    def mainloop(read, mfma, la, pre=None):
        a.e(f'v_add_u32 v250, 40960, v248')
        a.e(f'v_add_u32 v251, 40960, v249')
        first_barrier()
        if pre:
            a.wait(vm=('c', 1))
            cnt0_add()
            pre()
            side('late')
        for j in range(la):
            for f in read(j):
                f()
        for j in range(20):
            if j == OPT.get('p0a', 2) and not pre:
                a.wait(vm=('c', 1))
                cnt0_add()
                side('late')
            if j + la == 8:
                cnt0_wait()
                a.stamp('p0c2')
            a.wait(lg=('f', j))
            weave(a, mfma(j), read(j + la) if j + la < 20 else [])
        side('nonc')

    def xoff(j, rt):
        return 248 + j % 2 + (2 if j >= 10 else 0), ((j // 2) % 5) * 8192 + rt * 2048

    Lstat, Lcol, Lj0 = a.newlab('Lp0s'), a.newlab('Lp0c'), a.newlab('Lp0j')
    a.e(f's_cmp_eq_u32 s{sWAVE}, 7')
    a.e(f's_cbranch_scc1 {Lcol}')
    a.e(f's_cmp_ge_u32 s{sWAVE}, 5')
    a.e(f's_cbranch_scc1 {Lstat}')
    st0 = a.save()
    ACC, FR, DG, TG = 16, 32, 112, 192
    for r in range(4):
        a.e(f'v_mov_b32 v{TG + 16 + r}, 0x3f803f80')
    gen_D(a, lambda ks: DG + 4 * ks, TG, sROT)
    for ks in range(20):
        a.e(f'v_mfma_f32_16x16x32_bf16 v[{TG + 20}:{TG + 23}], {vr(TG + 16, 4)}, {vr(DG + 4 * ks, 4)}, {"0" if ks == 0 else vr(TG + 20, 4)}')
    a.e(f'v_add_u32 v248, {R1}, v{vF0}')
    a.e(f'v_add_u32 v249, {R1}, v{vF1}')
    a.e(f'v_mov_b32 v14, v{TG + 20}')

    def read_c(j):
        return [lambda rt=rt: a.lds(f'ds_read_b128 {vr(FR + 16 * (j % 4) + 4 * rt, 4)}, v{xoff(j, rt)[0]} offset:{xoff(j, rt)[1]}', ('f', j)) for rt in range(4)]

    def mfma_c(j):
        return [f'v_mfma_f32_16x16x32_bf16 {vr(ACC + 4 * rt, 4)}, {vr(FR + 16 * (j % 4) + 4 * rt, 4)}, {vr(DG + 4 * j, 4)}, {"0" if j == 0 else vr(ACC + 4 * rt, 4)}' for rt in range(4)]

    mainloop(read_c, mfma_c, 3)
    WF, RSr, MRr = 32, [192, 196, 200, 204], [208, 212, 216, 220]
    wf0 = lambda mat, tt, ks: WF + ((mat * 4 + tt) * 2 + ks) * 4
    for tt in range(4):
        for ks in range(2):
            for mat in range(2):
                a.lds(f'ds_read_b128 {vr(wf0(mat, tt, ks), 4)}, v2 offset:{W1L + ((mat * 4 + tt) * 2 + ks) * 1024}', 'wf')
    a.e('v_lshlrev_b32 v12, 4, v9')
    a.stamp('p0end')
    a.e('s_barrier')
    for rt in range(4):
        a.lds(f'ds_read_b128 {vr(RSr[rt], 4)}, v12 offset:{RS + rt * 64}', 'st')
        a.lds(f'ds_read_b128 {vr(MRr[rt], 4)}, v12 offset:{MR + rt * 64}', 'st')
    stage1(a, ACC, RSr, MRr, 96, wf0, VT0)
    stC = a.save()
    a.e(f's_branch {Lj0}')

    a.label(Lstat)
    a.restore(st0)
    AS, AM, ONE, FS = 24, 32, 40, 44
    for r in range(4):
        a.e(f'v_mov_b32 v{ONE + r}, 0x3f803f80')
    a.e(f's_sub_u32 s60, s{sWAVE}, 5')
    a.e('s_lshl_b32 s60, s60, 12')
    a.e(f's_add_u32 s6, s60, {R1}')
    a.e(f'v_add_u32 v248, s6, v{vF0}')
    a.e(f'v_add_u32 v249, s6, v{vF1}')

    for n in range(3):
        a.e(f'v_add_u32 v0, {n * 64}, v1')
        a.e('v_mul_u32_u24 v7, 5462, v0')
        a.e('v_lshrrev_b32 v7, 16, v7')
        a.e('v_mul_u32_u24 v5, 12, v7')
        a.e('v_sub_u32 v0, v0, v5')
        a.e(f's_mul_i32 s6, s{sC}, 5')
        a.e('s_sub_u32 s7, 70, s6')
        a.e('v_add_u32 v5, s6, v0')
        a.e('v_add_u32 v6, s7, v0')
        a.e('v_cmp_le_u32 vcc, 5, v0')
        a.e('v_cndmask_b32 v5, v5, v6, vcc')
        a.e('v_cmp_eq_u32 vcc, 80, v5')
        a.e('v_cndmask_b32 v5, v5, 0, vcc')
        a.e('v_cmp_eq_u32 vcc, 11, v0')
        a.e('v_cndmask_b32 v5, v5, 40, vcc')
        a.e(f'v_mul_u32_u24 v7, {64 * 1280}, v7')
        a.e(f'v_lshl_add_u32 v{120 + n}, v5, 4, v7')

    a.e(f's_cmp_eq_u32 s{sWAVE}, 6')
    a.e(f's_cselect_b32 s98, 0.5, 0x{fbits(0.25):08x}')
    a.e(f's_cselect_b32 s99, s{sTAU1}, s{sG}')
    a.e('s_lshl_b32 s6, s60, 1')
    a.e('v_add_u32 v99, s6, v2')
    gen_W1(a, 0, W1L, 80, (0,), 98)

    def stage0():
        a.e('s_mul_i32 s64, s99, 1280')
        a.e(f's_mul_i32 s6, s60, 3')
        a.e('s_lshr_b32 s6, s6, 1')
        for n in range(6):
            if n == 3:
                a.e(f's_add_u32 s64, s64, {16 * 64 * 1280}')
            a.e(f's_add_u32 m0, s6, {XRL0 + n * 1024}')
            a.vmem(f'buffer_load_dwordx4 v{120 + n % 3}, {sr(sX, 4)}, s64 offen lds', 'stg')

    def read_s(j):
        return [lambda rt=rt: a.lds(f'ds_read_b128 {vr(FS + 8 * (j % 4) + 4 * rt, 4)}, v{xoff(j, rt)[0]} offset:{xoff(j, rt)[1]}', ('f', j)) for rt in range(2)]

    def mfma_s(j):
        out = []
        for rt in range(2):
            f = vr(FS + 8 * (j % 4) + 4 * rt, 4)
            out.append(f'v_mfma_f32_16x16x32_bf16 {vr(AS + 4 * rt, 4)}, {f}, {f}, {"0" if j == 0 else vr(AS + 4 * rt, 4)}')
            out.append(f'v_mfma_f32_16x16x32_bf16 {vr(AM + 4 * rt, 4)}, {f}, {vr(ONE, 4)}, {"0" if j == 0 else vr(AM + 4 * rt, 4)}')
        return out

    mainloop(read_s, mfma_s, 3, stage0)
    a.e('s_lshr_b32 s6, s60, 5')
    stats_finalize(a, AS, AM, 2, 12, 64, MR - RS, 'rs_mr')
    a.wait(lg='all')
    a.stamp('p0end')
    a.e('s_barrier')
    a.e(f's_add_u32 s6, s60, {TWL0}')
    a.e('v_add_u32 v95, s6, v2')
    gen_TW(a, 80, 99, 95, 0)
    a.e(f's_branch {Lj0}')

    a.label(Lcol)
    a.restore(st0)
    a.e('s_movk_i32 s7, 1120')
    for n in range(5):
        a.e(f'v_add_u32 v0, {64 * n}, v1')
        a.e('v_mul_u32_u24 v5, 6554, v0')
        a.e('v_lshrrev_b32 v5, 16, v5')
        a.e('v_lshlrev_b32 v0, 4, v0')
        a.e(f'v_mad_u32_u24 v{120 + n}, v5, s7, v0')
    a.e(f's_mul_i32 s6, s{sG}, 40960')
    a.e(f's_mul_i32 s7, s{sC}, 160')
    a.e('s_add_u32 s6, s6, s7')
    a.e(f's_add_u32 s7, s6, {32 * 40960}')
    for t in range(2):
        for n in range(5):
            a.e(f's_mov_b32 m0, {W2S + t * 5120 + n * 1024}')
            a.vmem(f'buffer_load_dwordx4 v{120 + n}, {sr(sW2, 4)}, s{6 + t} offen lds', 'wsh')
    WA = 128
    a.e(f's_and_b32 s6, s{sG}, 7')
    a.e('s_mul_i32 s98, s6, 5')
    a.e('s_mul_i32 s99, s6, 10')
    a.e('s_add_u32 s99, s99, 4')
    a.e(f's_bfe_u32 s7, s{sG}, 0x10003')
    a.e(f's_cmp_ge_u32 s{sG}, 16')
    a.e('s_cselect_b64 s[76:77], -1, 0')
    for n in range(7):
        a.e(f'v_add_u32 v0, {64 * n}, v1')
        a.e('v_mul_u32_u24 v5, 4682, v0')
        a.e('v_lshrrev_b32 v5, 16, v5')
        a.e('v_mul_u32_u24 v6, 14, v5')
        a.e('v_sub_u32 v0, v0, v6')
        a.e('v_lshrrev_b32 v6, 3, v5')
        a.e('v_add_u32 v7, s98, v6')
        a.e('v_lshrrev_b32 v11, 1, v6')
        a.e('v_mad_u32_u24 v11, v11, 5, s99')
        a.e('v_mov_b32 v12, s7')
        a.e('v_and_b32 v6, 1, v6')
        a.e('v_cndmask_b32 v7, v7, v11, s[76:77]')
        a.e('v_cndmask_b32 v6, v12, v6, s[76:77]')
        a.e('v_and_b32 v5, 7, v5')
        a.e('v_lshl_add_u32 v5, v7, 3, v5')
        a.e('v_sub_u32 v7, 640, v5')
        a.e('v_cmp_eq_u32 vcc, 1, v6')
        a.e('v_cndmask_b32 v5, v5, v7, vcc')
        if n == 0:
            a.e('v_mov_b32 v6, 320')
            a.e('v_cmp_eq_u32 vcc, 0, v5')
            a.e('v_cndmask_b32 v5, v5, v6, vcc')
            a.e('v_cmp_eq_u32 vcc, 640, v5')
            a.e('v_cndmask_b32 v5, v5, 0, vcc')
        a.e('v_and_b32 v5, 0x3ff, v5')
        a.e('v_mul_u32_u24 v5, 3456, v5')
        a.e(f'v_lshl_add_u32 v{WA + n}, v0, 4, v5')

    def w1_in():
        a.e('s_lshl_b32 s7, s100, 6')
        a.e(f's_cmp_lt_u32 s{sG}, 20')
        a.e(f's_cselect_b32 s7, s7, 0x{OOB:x}')
        a.e('s_add_u32 s6, s7, 224')
        for t in range(2):
            for n in range(7):
                a.e(f's_mov_b32 m0, {WP1 + t * 7168 + n * 1024}')
                a.vmem(f'buffer_load_dwordx4 v{WA + n}, {sr(sW1, 4)}, s{7 - t} offen lds', ('wsh1', t))
    if OPT.get('w1e', 1):
        w1_in()
    first_barrier()
    if not OPT.get('w1e', 1):
        w1_in()
    a.wait(vm=('c', 1))
    cnt0_add()
    side('late')

    def w2_out():
        a.e('v_bfe_u32 v5, v1, 2, 2')
        a.e('v_lshl_add_u32 v5, v9, 3, v5')
        a.e('v_mul_u32_u24 v5, 160, v5')
        a.e('v_and_b32 v0, 3, v1')
        a.e('v_lshl_add_u32 v5, v0, 3, v5')
        a.e(f'v_add_u32 v5, {W2S}, v5')
        a.wait(vm='wsh')
        for u in range(10):
            for rd in range(2):
                a.lds(f'ds_read_b64_tr_b16 {vr(136 + 4 * u + 2 * rd, 2)}, v5 offset:{(u // 5) * 5120 + (u % 5) * 32 + rd * 640}', ('pf', u))
        a.e(f's_mul_i32 s6, s{sC}, 54')
        a.e(f's_add_u32 s6, s6, s{sG}')
        a.e('s_mul_i32 s6, s6, 5120')
        a.e(f's_add_u32 s6, s6, 0x{W2F:x}')
        for u in range(10):
            if u == 5:
                a.e(f's_cmp_ge_u32 s{sG}, 22')
                a.e(f's_cselect_b32 s6, 0x{OOB:x}, s6')
            a.wait(lg=('pf', u))
            a.e(f's_add_u32 s7, s6, {(u // 5) * 32 * 5120 + (u % 5) * 1024}')
            a.vmem(f'buffer_store_dwordx4 {vr(136 + 4 * u, 4)}, v2, {sr(sWS, 4)}, s7 offen sc1', 'w2o')

    w2_out()
    side('nonc')
    W1B = OPT.get('w1b', 1)

    def bar7():
        a.stamp('p0end')
        a.e('s_barrier')
    if not W1B:
        a.wait(vm='w2o')
        setflag(a, PH_V[0], 5)
        bar7()
    Lw1 = a.newlab('Lw1')
    a.e(f's_cmp_ge_u32 s{sG}, 20')
    a.e(f's_cbranch_scc1 {Lw1}')
    st = a.save()
    for t in range(2):
        a.e('v_bfe_u32 v5, v1, 2, 2')
        a.e('v_lshl_add_u32 v5, v9, 3, v5')
        a.e('v_mul_u32_u24 v5, 224, v5')
        a.e('v_and_b32 v0, 3, v1')
        a.e('v_lshl_add_u32 v5, v0, 3, v5')
        a.e(f'v_add_u32 v5, {WP1 + t * 7168}, v5')
        a.e(f's_mov_b32 s60, {7 * t}')
        a.wait(vm=('wsh1', t))
        for u in range(7):
            for rd in range(2):
                a.lds(f'ds_read_b64_tr_b16 {vr(16 + 4 * u + 2 * rd, 2)}, v5 offset:{rd * 4 * 224 + u * 32}', ('pf', u))
        a.e('s_lshl_b32 s6, s100, 1')
        a.e('s_add_u32 s60, s60, s6')
        a.e('s_mul_i32 s6, s60, 20')
        a.e(f's_add_u32 s6, s6, s{sG}')
        a.e('s_lshl_b32 s6, s6, 10')
        a.e(f's_mov_b32 s98, s{sC}' if t else 's_mov_b32 s98, 0')
        a.e('s_mov_b32 s99, 0x3f803f80')
        for u in range(7):
            a.wait(lg=('pf', u))
            a.e(f's_add_u32 s7, s6, {W1F + u * 20480}')
            if u >= 5:
                a.e('s_cmp_ge_u32 s98, 6')
                a.e(f's_cselect_b32 s7, 0x{OOB:x}, s7')
            a.vmem(f'buffer_store_dwordx4 {vr(16 + 4 * u, 4)}, v2, {sr(sWS, 4)}, s7 offen sc1', 'w1o')
            a.e(f'v_mov_b32 v{48 + u}, 0')
        a.e('v_mov_b32 v55, 0')
        for d in range(4):
            for u in range(7):
                a.e(f'v_dot2_f32_bf16 v{48 + u}, v{16 + 4 * u + d}, s99, v{48 + u}')
        a.e('s_nop 3')
        for u in range(0, 8, 2):
            a.e(f'v_permlane16_swap_b32 v{48 + u}, v{49 + u}')
        for u in range(0, 8, 2):
            a.e(f'v_add_f32 v{48 + u}, v{48 + u}, v{49 + u}')
        for u in (0, 4):
            a.e(f'v_permlane32_swap_b32 v{48 + u}, v{50 + u}')
        for u in (0, 4):
            a.e(f'v_add_f32 v{48 + u}, v{48 + u}, v{50 + u}')
        a.e(f's_mul_i32 s6, s{sG}, 6912')
        a.e('s_lshl_b32 s7, s60, 6')
        a.e('s_add_u32 s6, s6, s7')
        a.e(f's_add_u32 s6, s6, 0x{CSP:x}')
        a.e('v_lshlrev_b32 v5, 2, v1')
        a.vmem(f'buffer_store_dword v48, v5, {sr(sWS, 4)}, s6 offen sc1', 'w1o')
        a.e('s_cmp_ge_u32 s98, 6')
        a.e('s_cselect_b32 exec_lo, 0xffff, -1')
        a.e('s_cselect_b32 exec_hi, 0, 0xffff')
        a.vmem(f'buffer_store_dword v52, v5, {sr(sWS, 4)}, s6 offen offset:256 sc1', 'w1o')
        a.e('s_mov_b64 exec, -1')
    if W1B:
        a.wait(vm='w2o')
        Lw3 = a.newlab('Lw3')
        a.e(f's_branch {Lw3}')
    a.restore(st)
    a.label(Lw1)
    if W1B:
        a.wait(vm='w2o')
        a.label(Lw3)
        setflag(a, PH_V[0], 5)
        bar7()
    a.label(Lj0)
    a.e('s_nop 1')
    a.restore(stC)
    v_out_addr(a)
    if EW:
        a.e(f's_lshl_b32 s67, s{sC}, 10')
        a.e('s_add_u32 s67, s67, 896')
        pW = (253, 67, PH_V[0], 32, 13)
    a.wait(lg='all')
    a.e('s_barrier')
    a.stamp('p0vt')
    v_out(a, 0, VT0, 64)
    a.stamp('vo0')


    LSC = ' sc1'

    def xstore(text, tag, local):
        if not local:
            a.vmem(text + ' sc1', tag)
            return
        L, Lj = a.newlab('Lst'), a.newlab('Lsj')
        a.e('s_cmp_eq_u32 s26, 0')
        a.e(f's_cbranch_scc1 {L}')
        a.e(text + ' sc1')
        a.e(f's_branch {Lj}')
        a.label(L)
        a.vmem(text, tag)
        a.label(Lj)
        a.e('s_nop 1')

    def warm(vd, sbase, add, n, step=8192, lanes=None):
        a.e('v_lshlrev_b32 v0, 7, v1')
        for k in range(n):
            a.e(f's_add_u32 s64, s{sbase}, 0x{add + k * step:x}')
            a.vmem(f'buffer_load_dword v{vd}, v0, {sr(sWS, 4)}, s64 offen sc1', 'warm')

    LP = OPT.get('lp', 0)
    if LP:
        X1B[1] = X1B[0]
        HB[1] = HB[0]

    def w1load(n):
        a.e(f's_add_u32 s64, s{sW1B}, {n * 1024}')
        a.vmem(f'buffer_load_dwordx4 {vr(RING[n % NR], 4)}, v2, {sr(sWS, 4)}, s64 offen sc1', ('w1', n))

    def stash(n):
        a.e(f's_add_u32 m0, s69, {(n % NST) * 1024}')
        a.e(f's_add_u32 s64, s{sW1B}, {20480 + n * 1024}')
        a.vmem(f'buffer_load_dwordx4 v2, {sr(sWS, 4)}, s64 offen sc1 lds', ('ws', n))

    def w2load(f):
        if f % 5 == 4:
            a.e(f's_add_u32 s64, s{sWO + f // 5}, 4096')
            a.vmem(f'buffer_load_dwordx4 {vr(w2reg(f), 4)}, v2, {sr(sWS, 4)}, s64 offen sc1', ('w2', f))
        else:
            a.vmem(f'buffer_load_dwordx4 {vr(w2reg(f), 4)}, v2, {sr(sWS, 4)}, s{sWO + f // 5} offen offset:{(f % 5) * 1024} sc1', ('w2', f))

    def dest_row(vd):
        a.e(f's_lshl_b32 s6, s{sRHO}, 5')
        a.e(f'v_add_u32 v{vd}, s6, v10')
        a.e(f'v_sub_u32 v11, 63, v{vd}')
        a.e('v_sub_u32 v12, 32, v10')
        a.e('v_and_b32 v12, 31, v12')
        a.e('v_sub_u32 v13, 63, v10')
        a.e(f's_cmp_eq_u32 s{sRHO}, 0')
        a.e('s_cselect_b64 vcc, -1, 0')
        a.e('v_cndmask_b32 v12, v13, v12, vcc')
        a.e(f's_cmp_eq_u32 s{sG}, 0')
        a.e('s_cselect_b64 vcc, -1, 0')
        a.e('v_cndmask_b32 v11, v11, v12, vcc')
        a.e(f's_cmp_eq_u32 s{sMIR}, 1')
        a.e('s_cselect_b64 vcc, -1, 0')
        a.e(f'v_cndmask_b32 v{vd}, v{vd}, v11, vcc')

    def w1_touch(vd, t0, t1):
        a.e('v_min_u32 v0, 23, v10')
        a.e('v_lshlrev_b32 v0, 7, v0')
        a.e('s_movk_i32 s7, 20480')
        a.e('v_mad_u32_u24 v0, v4, s7, v0')
        a.e('s_and_b32 s6, s101, 3')
        a.e('s_mul_i32 s6, s6, 3072')
        a.e('s_mul_i32 s7, s100, 40960')
        a.e('s_add_u32 s6, s6, s7')
        for t in range(t0, t1):
            a.e(f's_add_u32 s7, s6, {W1F + 8192 + t * 40960}')
            a.vmem(f'buffer_load_dword v{vd}, v0, {sr(sWS, 4)}, s7 offen sc1', 'touch')

    def stage_all():
        a.e('v_mul_u32_u24 v0, 40960, v4')
        a.e('v_lshl_add_u32 v0, v10, 4, v0')
        a.e(f's_mul_i32 s6, s{sC}, 2560')
        a.e(f's_add_u32 s62, s{sGCM}, 0x{X2B:x}')
        for p in range(12):
            if p < 5:
                a.e(f's_add_u32 s64, s6, {p * 512}')
            elif p < 11:
                a.e(f's_sub_u32 s64, {(70 + p) * 512}, s6')
                if p == 10:
                    a.e(f's_cmp_eq_u32 s{sC}, 0')
                    a.e('s_cselect_b32 s64, 0, s64')
            else:
                a.e(f's_movk_i32 s64, {40 * 512}')
            a.e('s_add_u32 s64, s64, s62')
            a.e(f's_mov_b32 m0, {XRL1 + p * 1024}')
            a.vmem(f'buffer_load_dwordx4 v0, {sr(sWS, 4)}, s64 offen sc1 lds', 'xrd')

    def a2_pre(l, hook=lambda: None, mid=lambda: None):
        xb, A, shB, twb = ((XRL0, 192, 4, TWL0), (XRL1, 16, 10, TWL1))[l]
        dest_row(5)
        a.e('v_bfe_u32 v11, v1, 2, 1')
        a.e('v_and_b32 v12, 1, v1')
        a.e('v_lshlrev_b32 v12, 4, v12')
        a.e('v_mov_b32 v13, 0x3f80')
        a.e('v_lshlrev_b32 v12, v12, v13')
        a.e('v_cmp_eq_u32 vcc, v11, v4')
        a.e('v_cndmask_b32 v12, 0, v12, vcc')
        a.e('v_bfe_u32 v13, v1, 1, 1')
        a.e('v_bfe_u32 v11, v1, 3, 2')
        a.e('v_lshl_add_u32 v13, v11, 1, v13')
        for r in range(8):
            a.e(f'v_cmp_eq_u32 vcc, {r}, v13')
            a.e(f'v_cndmask_b32 v{ID + r}, 0, v12, vcc')
        mid()
        a.e(f'v_mul_u32_u24 v7, {A}, v5')
        a.e(f'v_add_u32 v7, {xb}, v7')
        a.e(f's_lshl_b32 s6, s{sKT}, 2')
        a.e(f's_cmp_eq_u32 s{sMIR}, 1')
        a.e('s_cselect_b64 s[76:77], -1, 0')
        a.e(f's_cmp_eq_u32 s{sC}, 0')
        a.e('s_cselect_b32 s7, 11, 0')
        for h in range(2):
            a.e(f'v_add3_u32 v11, v4, s6, {2 * h}')
            a.e('v_min_u32 v11, 4, v11')
            a.e('v_sub_u32 v12, 9, v11')
            a.e('v_cndmask_b32 v12, v11, v12, s[76:77]')
            a.e(f'v_lshl_add_u32 v12, v12, {shB}, v7')
            a.lds(f'ds_read_b128 {vr(XM + 4 * h, 4)}, v12', 'xr')
            a.e('v_mov_b32 v13, s7')
            a.e('v_cmp_eq_u32 vcc, 0, v11')
            a.e('v_cndmask_b32 v13, v11, v13, vcc')
            a.e('v_sub_u32 v12, 10, v11')
            a.e('v_cndmask_b32 v12, v13, v12, s[76:77]')
            a.e(f'v_lshl_add_u32 v12, v12, {shB}, v7')
            a.lds(f'ds_read_u16 v{XE + h}, v12', 'xr')
        hook()
        a.wait(lg='xr')
        Lr, Lj = a.newlab('Lxr'), a.newlab('Lxj')
        a.e('v_mov_b32 v11, 0xffff')
        a.e(f's_cmp_eq_u32 s{sMIR}, 1')
        a.e(f's_cbranch_scc1 {Lr}')
        for k in range(2):
            m, o = XM + 4 * k, XR + 4 * k
            a.e(f'v_bfi_b32 v{o}, v11, v{XE + k}, v{m}')
            for d in range(1, 4):
                a.e(f'v_mov_b32 v{o + d}, v{m + d}')
        a.e(f's_branch {Lj}')
        a.label(Lr)
        for k in range(2):
            m, o = XM + 4 * k, XR + 4 * k
            a.e(f'v_bfi_b32 v{o}, v11, v{XE + k}, v{m + 3}')
            a.e(f'v_bfi_b32 v{o + 1}, v11, v{m + 3}, v{m + 2}')
            a.e(f'v_bfi_b32 v{o + 2}, v11, v{m + 2}, v{m + 1}')
            a.e(f'v_bfi_b32 v{o + 3}, v11, v{m + 1}, v{m}')
        a.label(Lj)
        a.e(f's_lshl_b32 s6, s{sRHO}, 12')
        a.e(f's_add_u32 s6, s6, {twb}')
        a.e('v_add_u32 v11, s6, v2')
        for ks in range(4):
            a.lds(f'ds_read_b128 {vr(TW + 4 * ks, 4)}, v11 offset:{ks * 1024}', 'tw')
        a.e(f'v_mfma_f32_32x32x16_bf16 {vr(Y, 16)}, {vr(ID, 4)}, {vr(XR, 4)}, 0')
        a.e(f'v_mfma_f32_32x32x16_bf16 {vr(Y, 16)}, {vr(ID + 4, 4)}, {vr(XR + 4, 4)}, {vr(Y, 16)}')
        hook()
        a.e(f's_lshl_b32 s6, s{sC}, 2')
        a.e(f's_lshl_b32 s7, s{sMIR}, 5')
        a.e('s_add_u32 s6, s6, s7')
        a.e(f's_lshl_b32 s7, s{sC}, 1')
        a.e(f's_add_u32 s7, s7, s{sMIR}')
        a.e('s_add_u32 s7, s7, 64')
        a.e(f's_cmp_eq_u32 s{sKT}, 0')
        a.e('s_cselect_b32 s6, s6, s7')
        a.e('s_lshl_b32 s6, s6, 10')
        a.e('v_lshlrev_b32 v5, 4, v5')
        a.e('v_lshl_add_u32 v5, v4, 10, v5')
        a.e('v_add_u32 v5, s6, v5')
        a.e(f'v_add_u32 v6, {R1}, v5')
        a.e('s_cmp_eq_u32 s6, 32768')
        a.e('s_cselect_b32 s6, 0xffff, 0')
        a.e('v_mov_b32 v12, s6')
        a.e('v_cmp_eq_u32 vcc, 0, v4')
        a.e('v_cndmask_b32 v12, 0, v12, vcc')
        a.e('v_bfe_u32 v13, v1, 2, 2')
        a.e('v_lshl_add_u32 v13, v4, 3, v13')
        a.e('v_mul_u32_u24 v13, 192, v13')
        a.e('v_bfe_u32 v11, v1, 4, 1')
        a.e('v_lshlrev_b32 v11, 1, v11')
        a.e('v_and_b32 v0, 1, v1')
        a.e(f's_lshl_b32 s7, s{sKT}, 2')
        a.e('v_add3_u32 v11, v11, v0, s7')
        a.e('v_min_u32 v11, 4, v11')
        a.e('v_lshl_add_u32 v13, v11, 4, v13')
        a.e('v_bfe_u32 v11, v1, 1, 1')
        a.e('v_lshl_add_u32 v13, v11, 3, v13')
        a.e(f's_mul_i32 s6, s{sRHO}, 6144')
        a.e('s_add_u32 s6, s6, s58')
        a.e('v_add_u32 v13, s6, v13')
        a.e(f'v_mov_b32 v11, v{XR}')
        hook()
        a.wait(lg='tw')

    def reduce_addr(l, second):
        a.e(f's_add_u32 s6, s{sWAVE}, {8 if second else 0}')
        a.e('s_cmp_ge_u32 s6, 5')
        a.e('s_cselect_b32 s7, 5, 0')
        a.e(f's_cselect_b32 s62, 0, {R1}')
        if l == 0:
            a.e('s_cselect_b32 s65, 40960, 0')
        else:
            a.e(f's_cselect_b32 s65, s{sTAU1}, s{sG}')
        a.e('s_sub_u32 s6, s6, s7')
        a.e('s_lshl_b32 s7, s6, 10')
        a.e('s_add_u32 s62, s62, s7')
        a.e('v_lshrrev_b32 v11, 4, v10')
        a.e('v_mul_u32_u24 v11, 5120, v11')
        a.e('v_lshl_add_u32 v11, v4, 9, v11')
        a.e('v_lshl_add_u32 v11, v8, 4, v11')
        a.e('v_add_u32 v11, s62, v11')
        a.e(f'v_add_u32 v13, {5 * PRV}, v11')
        a.e('s_lshl_b32 s6, s6, 1')
        a.e(f's_mul_i32 s7, s{sC}, 10')
        a.e('s_add_u32 s6, s6, s7')
        a.e('v_add_u32 v7, s6, v4')
        if l == 0:
            a.e('v_lshlrev_b32 v7, 9, v7')
            a.e('v_lshl_add_u32 v7, v10, 4, v7')
            a.e(f's_add_u32 s65, s65, s{sGCM}')
            a.e(f's_add_u32 s65, s65, 0x{X2B:x}')
        else:
            a.e('v_lshlrev_b32 v7, 4, v7')
            a.e(f's_mov_b32 s7, {64 * 1280}')
            a.e('v_mad_u32_u24 v7, v10, s7, v7')
            a.e('s_mulk_i32 s65, 1280')

    def reduce_item(l):
        SUM, RB = 56, 64
        for h in range(2):
            a.lds(f'ds_read_b128 {vr(SUM + 4 * h, 4)}, v11 offset:{h * 256}', ('p', 0))
        for p in range(1, 7):
            for h in range(2):
                b, o = (11, p * PRV) if p < 5 else (13, (p - 5) * PRV)
                a.lds(f'ds_read_b128 {vr(RB + 8 * (p - 1) + 4 * h, 4)}, v{b} offset:{o + h * 256}', ('p', p))
        for p in range(1, 8):
            a.wait(lg=('p', p))
            for r in range(0, 8, 2):
                a.e(f'v_pk_add_f32 {vr(SUM + r, 2)}, {vr(SUM + r, 2)}, {vr(RB + 8 * ((p - 1) % 6) + r, 2)}')
            if p == 1:
                for h in range(2):
                    a.lds(f'ds_read_b128 {vr(RB + 4 * h, 4)}, v13 offset:{2 * PRV + h * 256}', ('p', 7))
        for r in range(4):
            a.e(f'v_cvt_pk_bf16_f32 v{SUM + r}, v{SUM + 2 * r}, v{SUM + 2 * r + 1}')
        if l == 0:
            a.vmem(f'buffer_store_dwordx4 {vr(SUM, 4)}, v7, {sr(sWS, 4)}, s65 offen sc1', 'xst')
        else:
            a.vmem(f'buffer_store_dwordx4 {vr(SUM, 4)}, v7, {sr(sOUT, 4)}, s65 offen', 'xst')

    def lin(n, sl, lds_add, ssrc, src_add, tag):
        for k in range(n):
            if k % 4 == 0:
                a.e(f's_add_u32 m0, s{sl}, {lds_add + k * 1024}')
                a.e(f's_add_u32 s64, s{ssrc}, 0x{src_add + k * 1024:x}')
            a.vmem(f'buffer_load_dwordx4 v2, {sr(sWS, 4)}, s64 offen offset:{(k % 4) * 1024} sc1 lds', tag)

    def cnt_add(addr, vt):
        a.e(f'v_mov_b32 v{vt}, {addr}')
        a.e('v_mov_b32 v0, 1')
        a.e('s_mov_b64 exec, 1')
        a.lds(f'ds_add_u32 v{vt}, v0', 'cnt')
        a.e('s_mov_b64 exec, -1')

    def cnt_peek(addr, vt):
        a.e(f'v_mov_b32 v{vt}, {addr}')
        a.lds(f'ds_read_b32 v{vt}, v{vt}', 'peek')

    def cnt_wait(addr, vt, peeked=False):
        L, Ld = a.newlab('Lcw'), a.newlab('Lcd')
        if peeked:
            a.wait(lg='peek')
            a.e(f'v_cmp_gt_u32 vcc, 8, v{vt}')
            a.e(f's_cbranch_vccz {Ld}')
            st = a.save()
        a.e('s_mov_b32 s61, 0')
        a.label(L)
        a.e(f'v_mov_b32 v{vt}, {addr}')
        a.e(f'ds_read_b32 v{vt}, v{vt}')
        a.e('s_waitcnt lgkmcnt(0)')
        a.lg.clear()
        a.e(f'v_cmp_gt_u32 vcc, 8, v{vt}')
        a.e(f's_cbranch_vccz {Ld}')
        a.e('s_sleep 1')
        a.e('s_add_u32 s61, s61, 1')
        a.e(f's_cmp_lt_u32 s61, {SPIN}')
        a.e(f's_cbranch_scc1 {L}')
        a.label(Ld)
        if peeked:
            a.restore(st)

    GO, DONE = STATS + 528, STATS + 544

    def sig_set(base, vt):
        a.e(f'v_mov_b32 v{vt}, s56')
        a.lds(f'ds_write_b32 v{vt}, v{vt} offset:{base - 4}', 'sig')

    def sig_wait(base, vt, slp):
        L, Ld = a.newlab('Lgw'), a.newlab('Lgd')
        a.e('s_mov_b32 s61, 0')
        a.label(L)
        a.e(f'v_mov_b32 v{vt}, s56')
        a.e(f'ds_read_b32 v{vt}, v{vt} offset:{base - 4}')
        a.e('s_waitcnt lgkmcnt(0)')
        a.lg.clear()
        a.e(f'v_cmp_eq_u32 vcc, 0, v{vt}')
        a.e(f's_cbranch_vccz {Ld}')
        a.e(f's_sleep {slp}')
        a.e('s_add_u32 s61, s61, 1')
        a.e(f's_cmp_lt_u32 s61, {SPIN}')
        a.e(f's_cbranch_scc1 {L}')
        a.label(Ld)

    bg = BG()
    a.e(f's_mul_i32 s68, s{sWAVE}, 5120')
    a.e(f's_mul_i32 s69, s{sWAVE}, {PRV}')
    a.e(f's_cmp_lt_u32 s{sC}, 4')
    a.e('s_cselect_b32 s58, 16384, 0')
    a.e(f's_add_u32 s58, s58, {R1 + 32768}')
    def pv0():
        poll_issue(a, *pW)
        a.wait(vm='vo')
        a.e('s_barrier')
        a.stamp('PV0')
        setflag_w0(a, PH_V[0], 7)
        poll_check(a, *pW)
        a.stamp('pollW')
        for f in range(30):
            bg.add(lambda f=f: w2load(f))
    a2_pre(0, lambda: bg.run(OPT.get('bgw2', 5)), pv0)

    for l in range(2):
        a.e(f's_lshl_b32 s67, s{sWAVE}, 15')
        a.e(f's_lshl_b32 s6, s{sC}, 10')
        a.e('s_add_u32 s67, s67, s6')
        pV = (7, 67, PH_V[l], 4, 13)
        bg.run(OPT.get('bgpv', 0))
        poll_issue(a, *pV)
        bg.run(OPT.get('bgpv2', 0))
        poll_check(a, *pV)
        if l == 0:
            def id_issue():
                a.e(f'v_mov_b32 v72, s{sFSRC}')
                a.e(f'v_mov_b32 v73, s{sFPAR}')
                a.e('v_cmp_eq_u32 vcc, 0, v1')
                a.e('v_cndmask_b32 v72, v73, v72, vcc')
                a.e(f's_mov_b32 s60, 0x{FLG:x}')
                a.vmem(f'buffer_load_dwordx2 v[72:73], v72, {sr(sWS, 4)}, s60 offen sc1', 'ids')
        a.stamp(f'pollV{l}')
        a.e(f's_mul_i32 s63, s{sWAVE}, 768')
        a.e('s_add_u32 s62, s63, s58')
        a.e('s_mov_b32 exec_hi, 0xffff')
        for rho in range(2):
            a.e(f's_lshl_b32 s6, s{sG if rho == 0 else sTAU1}, 3')
            a.e(f's_add_u32 s6, s6, s{sC}')
            a.e('s_mulk_i32 s6, 6144')
            a.e('s_add_u32 s6, s6, s63')
            a.e(f's_add_u32 s6, s6, 0x{VB[l]:x}')
            a.e(f's_add_u32 m0, s62, {rho * 6144}')
            a.vmem(f'buffer_load_dwordx4 v2, {sr(sWS, 4)}, s6 offen sc1 lds', 'v')
        a.e('s_mov_b64 exec, -1')
        if l == 0:
            id_issue()
        bg.run(OPT.get('bgv', 4))
        a.e('v_lshlrev_b32 v7, 3, v1')
        a.e(f'v_mov_b32 v{VF}, 0')
        a.e(f'v_mov_b32 v{VF + 1}, 0')
        a.lds(f'ds_write_b64 v7, {vr(VF, 2)} offset:{STATS + 256}', 'clr')
        a.wait(vm='v', lg='clr')
        a.e('s_barrier')
        a.stamp(f'V{l}')
        for ks in range(4):
            for rd in range(2):
                a.lds(f'ds_read_b64_tr_b16 {vr(VF + 4 * ks + 2 * rd, 2)}, v13 offset:{(16 * (ks % 2) + 4 * rd) * 192 + (ks // 2) * 80}', ('vf', ks))
        if l == 0:
            left2 = list(range(30 - len(bg.q), 30))
            bg.q = []
            for n in range(NR):
                bg.add(lambda n=n: w1load(n))
                if n < NST:
                    bg.add(lambda n=n: stash(n))
            bg.run(OPT.get('bg0', 2))

        a.e(f's_add_u32 s63, s{sGCM}, 0x{X1B[l]:x}')
        a.e(f's_cmp_eq_u32 s{sKT}, 0')
        a.e('s_cselect_b32 s70, -1, 0')
        a.e(f's_cselect_b32 s71, s63, 0x{OOB:x}')
        for ks in range(4):
            a.wait(lg=('vf', ks))
            a.e(f'v_mfma_f32_32x32x16_bf16 {vr(Y, 16)}, {vr(VF + 4 * ks, 4)}, {vr(TW + 4 * ks, 4)}, {vr(Y, 16)}')
        for r in range(8):
            a.e(f'v_cvt_pk_bf16_f32 v{PK + r}, v{Y + 2 * r}, v{Y + 2 * r + 1}')
        a.e(f'v_bfi_b32 v{PK}, v12, v11, v{PK}')
        xstore(f'buffer_store_dwordx4 {vr(PK + 4, 4)}, v5, {sr(sWS, 4)}, s71 offen offset:2048', 'x1s', l == 1 and LP & 1)
        a.e('s_mov_b32 exec_hi, s70')
        xstore(f'buffer_store_dwordx4 {vr(PK, 4)}, v5, {sr(sWS, 4)}, s63 offen', 'x1s', l == 1 and LP & 1)
        a.lds(f'ds_write_b128 v6, {vr(PK, 4)}', 'x1w')
        a.e('s_mov_b32 exec_lo, s70')
        a.lds(f'ds_write_b128 v6, {vr(PK + 4, 4)} offset:2048', 'x1w')
        a.e('s_mov_b64 exec, -1')
        a.stamp(f'x1st{l}')
        a.e('s_mov_b32 s7, 0x3f803f80')
        for r in range(4):
            a.e(f'v_mov_b32 v{16 + r}, 0')
        for r in range(4):
            for h in range(2):
                a.e(f'v_dot2_f32_bf16 v{16 + 2 * h}, v{PK + 4 * h + r}, s7, v{16 + 2 * h}')
                a.e(f'v_dot2_f32_bf16 v{17 + 2 * h}, v{PK + 4 * h + r}, v{PK + 4 * h + r}, v{17 + 2 * h}')
        a.e('v_bfe_u32 v7, v5, 4, 6')
        a.e('v_lshlrev_b32 v7, 3, v7')
        a.e('s_nop 2')
        a.e('v_and_b32 v18, s70, v18')
        a.e('v_and_b32 v19, s70, v19')
        a.e('v_add_f32 v16, v16, v18')
        a.e('v_add_f32 v17, v17, v19')
        a.e('v_mov_b32 v18, v16')
        a.e('v_mov_b32 v19, v17')
        a.e(f's_mul_i32 s6, s{sMIR}, {PRV}')
        a.e(f's_lshl_b32 s7, s{sKT}, 9')
        a.e('v_permlane32_swap_b32 v16, v18')
        a.e('v_permlane32_swap_b32 v17, v19')
        a.e('v_add3_u32 v7, v7, s6, s6') if False else None
        a.e('s_add_u32 s6, s6, s7')
        a.e('v_add_u32 v7, s6, v7')
        a.e('v_and_b32 v18, s70, v18')
        a.e('v_and_b32 v19, s70, v19')
        a.e('v_add_f32 v16, v16, v18')
        a.e('v_add_f32 v17, v17, v19')
        a.lds(f'ds_write_b64 v7, v[16:17] offset:{PSUM}', 'x1w')
        bg.run(OPT.get('bgx0', 4 if l == 0 else 3))
        a.wait(vm='x1s', lg='all')
        a.e('s_barrier')
        a.stamp(f'X1s{l}')
        a.e(f's_lshl_b32 s65, s{sG}, 12')
        a.e(f's_add_u32 s65, s65, 0x{STG + l * 0x20000:x}')
        Ls1 = a.newlab('Ls1')
        a.e(f's_cmp_lg_u32 s{sWAVE}, s{sC}')
        a.e(f's_cbranch_scc1 {Ls1}')
        a.e('v_lshlrev_b32 v7, 3, v1')
        a.e(f'v_add_u32 v0, {PSUM}, v7')
        for k in range(4):
            a.e(f'ds_read_b64 {vr(64 + 2 * k, 2)}, v0 offset:{(k // 2) * PRV + (k % 2) * 512}')
        a.e(f's_lshl_b32 s6, s{sC}, 9')
        a.e('s_add_u32 s6, s6, s65')
        a.e('s_waitcnt lgkmcnt(0)')
        for k in range(1, 4):
            a.e(f'v_add_f32 v64, v64, v{64 + 2 * k}')
            a.e(f'v_add_f32 v65, v65, v{65 + 2 * k}')
        a.e(f'buffer_store_dwordx2 v[64:65], v7, {sr(sWS, 4)}, s6 offen sc1')
        a.label(Ls1)
        setflag_w0(a, PH_X1[l], 7)
        if l == 0:
            L, Ld = a.newlab('Lidp'), a.newlab('Lidd')
            a.e(f's_add_u32 s59, s{sNON}, {PH_V[0]}')
            a.wait(vm='ids')
            a.e('s_mov_b32 s61, 0')
            a.label(L)
            a.e('v_subrev_u32 v72, s59, v72')
            a.e('v_cmp_le_u32 vcc, 16, v72')
            a.e(f's_cbranch_vccz {Ld}')
            st = a.save()
            id_issue()
            a.restore(st)
            a.e('s_waitcnt vmcnt(0)')
            a.e('s_add_u32 s61, s61, 1')
            a.e(f's_cmp_lt_u32 s61, {SPIN}')
            a.e(f's_cbranch_scc1 {L}')
            a.e('v_mov_b32 v73, -1')
            a.label(Ld)
            a.e('s_nop 0')
            a.e('v_readlane_b32 s6, v73, 0')
            a.e('v_readlane_b32 s7, v73, 1')
            for r, sf in ((6, sFSRC), (7, sFPAR)):
                a.e(f's_cmp_eq_u32 s{r}, s{sXCC}')
                a.e(f's_cselect_b32 s{r}, 0x{LOC if OPT.get("loc", 1) else 0:x}, 0')
                a.e(f's_add_u32 s{sf}, s{sf}, s{r}')
            a.e('s_and_b32 s6, s6, s7')
            a.e('s_cselect_b32 s6, 0, 1')
            a.e(f'v_mov_b32 v72, {STATS + 520}')
            a.e('v_mov_b32 v73, s6')
            a.lds('ds_or_b32 v72, v73', 'idw')
        CP = 16
        if l == 0:
            a.e(f's_lshl_b32 s6, s{sU1}, 6')
            a.e('v_lshl_add_u32 v7, v10, 2, s6')
            a.e('s_movk_i32 s7, 6912')
            a.e('v_mad_u32_u24 v7, v4, s7, v7')
            for n in range(10):
                a.e(f's_mov_b32 s7, 0x{CSP + n * 2 * 6912:x}')
                a.vmem(f'buffer_load_dword v{CP + n}, v7, {sr(sWS, 4)}, s7 offen sc1', 'cs')
        bg.run(OPT.get('bgx1', 3))
        pX = (7, sFSRC, PH_X1[l], 1)
        poll_issue(a, *pX)
        RSC, RA = 2 * PRV + 9216, 37
        Lw7 = a.newlab('Lw7')
        a.e(f's_cmp_lg_u32 s{sWAVE}, 7')
        a.e(f's_cbranch_scc1 {Lw7}')
        if True:
            a.e(f's_cmp_ge_u32 s{sC}, 4')
            a.e('s_cselect_b64 s[70:71], -1, 0')
            a.e('v_and_b32 v11, 7, v8')
            a.e('v_sub_u32 v12, 8, v11')
            a.e('v_cndmask_b32 v12, v11, v12, s[70:71]')
            a.e('v_lshrrev_b32 v13, 3, v8')
            a.e('v_add_u32 v0, 2, v13')
            a.e('v_cmp_eq_u32 vcc, 0, v11')
            a.e('v_cndmask_b32 v12, v12, 0, vcc')
            a.e('v_cndmask_b32 v13, v13, v0, vcc')
            a.e('v_and_b32 v0, 1, v12')
            a.e('v_lshlrev_b32 v0, 4, v0')
            a.e('v_mov_b32 v36, 0x3f80')
            a.e('v_lshlrev_b32 v0, v0, v36')
            a.e('v_cmp_eq_u32 vcc, v13, v9')
            a.e('v_cndmask_b32 v0, 0, v0, vcc')
            a.e('v_lshrrev_b32 v12, 1, v12')
            for r in range(4):
                a.e(f'v_cmp_eq_u32 vcc, {r}, v12')
                a.e(f'v_cndmask_b32 v{32 + r}, 0, v0, vcc')
            a.lds(f'ds_write_b128 v2, v[32:35] offset:{RSC}', 'rw')
            a.e(f'v_lshlrev_b32 v{RA}, 2, v1')
            a.e(f's_mul_i32 s6, s{sC}, 10')
            a.e('v_cmp_le_u32 s[72:73], 2, v9')
            for ft in range(5):
                a.e('v_and_b32 v11, 1, v9')
                a.e(f'v_add3_u32 v11, v11, s6, {2 * ft}')
                a.e('v_sub_u32 v12, 119, v11')
                a.e('v_cndmask_b32 v12, v11, v12, s[70:71]')
                a.e('v_sub_u32 v13, 120, v11')
                a.e('v_cndmask_b32 v13, v11, v13, s[70:71]')
                if ft == 0:
                    a.e('v_cmp_eq_u32 vcc, 0, v13')
                    a.e('v_cndmask_b32 v13, v13, 40, vcc')
                    a.e('v_cmp_eq_u32 vcc, 80, v13')
                    a.e('v_cndmask_b32 v13, v13, 0, vcc')
                a.e('v_cndmask_b32 v12, v12, v13, s[72:73]')
                a.e('v_mul_u32_u24 v13, 13108, v12')
                a.e('v_lshrrev_b32 v13, 16, v13')
                a.e('v_sub_u32 v11, v12, v13')
                a.e('v_mul_u32_u24 v0, 5, v13')
                a.e('v_sub_u32 v12, v12, v0')
                a.e('v_and_b32 v0, 7, v13')
                a.e('v_lshrrev_b32 v13, 3, v13')
                a.e('v_lshl_add_u32 v13, v0, 1, v13')
                a.e('v_add_u32 v13, 64, v13')
                a.e('v_cmp_eq_u32 vcc, 4, v12')
                a.e('v_cndmask_b32 v11, v11, v13, vcc')
                a.e('v_lshlrev_b32 v11, 10, v11')
                a.e('v_lshl_add_u32 v11, v8, 4, v11')
                a.e(f'v_add_u32 v11, {R1}, v11')
                a.lds(f'ds_write_b32 v{RA}, v11 offset:{RSC + PRV + (ft // 4) * PRV + (ft % 4) * 256}', 'rw')
        a.label(Lw7)
        poll_check(a, *pX)
        a.stamp(f'pollX1{l}')
        a.e(f's_lshl_b32 s6, s{sWAVE}, 12')
        a.e('s_lshr_b32 s7, s6, 1')
        a.e('s_add_u32 s66, s63, s6')
        a.e('s_add_u32 s57, s63, s7')
        a.e(f's_cmp_eq_u32 s{sWAVE}, s{sC}')
        a.e(f's_cselect_b32 s66, 0x{OOB:x}, s66')
        a.e(f's_cselect_b32 s57, 0x{OOB:x}, s57')
        a.e('s_cselect_b32 s67, 0x14000, s6')
        a.e('s_cselect_b32 s56, 0x14000, s7')
        lin(4, 67, R1, 66, 0, ('x1', 0))
        if l == 0:
            for n in range(1, 10):
                a.e(f'v_add_f32 v{CP}, v{CP}, v{CP + n}')
            a.e(f'v_mov_b32 v15, v{CP}')
            a.e(f'v_permlane32_swap_b32 v{CP}, v15')
            a.e(f'v_add_f32 v15, v{CP}, v15')
        a.e(f's_lshl_b32 s6, s{sWAVE}, 7')
        a.e('v_lshl_add_u32 v7, v10, 2, s6')
        a.lds(f'ds_write_b32 v7, v15 offset:{CSS}', 'csw')
        a.e(f'v_add_u32 v5, {R1}, v3')
        a.e(f'v_add_u32 v6, {R1 + 40960}, v3')
        if OPT.get('x1o', 0):
            a.e('s_waitcnt vmcnt(3)')
        lin(4, 67, R1 + 32768, 66, 32768, ('x1', 1))
        lin(2, 56, R1 + 65536, 57, 65536, ('x1', 1))
        a.wait(vm=('x1', 0), lg='all')
        a.e('s_barrier')
        a.stamp(f'B1{l}')
        if l == 0:
            a.e('ds_read_b32 v73, v72')
            a.e('s_waitcnt lgkmcnt(0)')
            a.e('v_readfirstlane_b32 s26, v73')
        Ls2 = a.newlab('Ls2')
        a.e(f's_cmp_lg_u32 s{sWAVE}, s{sC}')
        a.e(f's_cbranch_scc1 {Ls2}')
        st = a.save()
        setflag(a, PH_S[l], 12)
        a.restore(st)
        a.label(Ls2)
        LS, Lid, Lg2, Ljoin = (a.newlab(x) for x in ('LS', 'Lid', 'Lg2', 'Ljoin'))
        a.e(f's_cmp_eq_u32 s{sWAVE}, 7')
        a.e(f's_cbranch_scc1 {LS}')
        a.e(f's_cmp_ge_u32 s{sWAVE}, s{sU2}')
        a.e(f's_cbranch_scc1 {Lid}')
        st0 = a.save()
        q = list(bg.q)
        bg.q = []
        NW2 = OPT.get('nw2', 20)
        need2 = left2 if l == 0 else []

        def xaddr(ks, rt):
            return (5, ks * 4096 + rt * 256) if ks < 10 else (6, (ks - 10) * 4096 + rt * 256)

        def xreads(n, nst=2):
            out = []
            for rt in range(4):
                b, o = xaddr(n, rt)
                out.append(lambda rt=rt, b=b, o=o: a.lds(f'ds_read_b128 {vr(XF + 16 * (n % nst) + 4 * rt, 4)}, v{b} offset:{o}', ('xf', n)))
            return out

        EP = XF

        def epi_reads():
            a.e('v_lshlrev_b32 v7, 2, v8')
            for rt in range(4):
                a.lds(f'ds_read_b32 v{EP + 12 + rt}, v7 offset:{STATS + 256 + rt * 64}', 'st')
            for rt in range(4):
                a.lds(f'ds_read_b32 v{EP + 8 + rt}, v7 offset:{STATS + rt * 64}', 'st')

        def usread(n):
            a.lds(f'ds_read_b128 {vr(JIT[n % 2], 4)}, v13 offset:{(n % NST) * 1024}', ('us', n))

        def gemm(late, q, qlow=False):
            pw1, pws = [NR], [NST]
            a.e('v_add_u32 v13, s69, v2')
            for f in xreads(0):
                f()
            a.wait(vm=('ws', 0))
            usread(0)
            a.e(f's_add_u32 s56, s{sW1B}, {12 * 1024}')
            a.e(f's_add_u32 s57, s{sW1B}, {16 * 1024}')
            grp = [None]

            def ring1(k):
                a.vmem(f'buffer_load_dwordx4 {vr(RING[k % NR], 4)}, v2, {sr(sWS, 4)}, s{56 + (k - 12) // 4} offen offset:{(k % 4) * 1024} sc1', ('w1', k))

            def stash1(k):
                k0 = 9 + (k - 9) // 4 * 4 if k < 18 else 18
                if grp[0] != k0:
                    a.e(f's_add_u32 m0, s69, {(k0 % NST) * 1024}')
                    a.e(f's_add_u32 s66, s{sW1B}, {20480 + k0 * 1024}')
                    grp[0] = k0
                a.vmem(f'buffer_load_dwordx4 v2, {sr(sWS, 4)}, s66 offen offset:{(k - k0) * 1024} sc1 lds', ('ws', k))

            for n in range(20):
                if n == 7:
                    cnt_wait(CNT1, 7, True)
                a.wait(vm=[('w1', n)] + ([('ws', n + 1)] if n + 1 < 20 else []), lg=[('xf', n), ('us', n)])
                mf = []
                for h in range(2):
                    for rt in range(4):
                        ac = vr(ACCX + 16 * h + 4 * rt, 4)
                        w = RING[n % NR] if h == 0 else JIT[n % 2]
                        mf.append(f'v_mfma_f32_16x16x32_bf16 {ac}, {vr(w, 4)}, {vr(XF + 16 * (n % 2) + 4 * rt, 4)}, {"0" if n == 0 else ac}')
                fl = []
                if n + 1 < 20:
                    fl += xreads(n + 1) + [lambda: usread(n + 1)]
                nq = 0
                while q and nq < 3 and not qlow:
                    fl.append(q.pop(0))
                    nq += 1
                if not q or qlow:
                    while pws[0] < 20 and pws[0] - NST <= n and nq < 2:
                        fl.append(lambda k=pws[0]: stash1(k))
                        pws[0] += 1
                        nq += 1
                    while pw1[0] < 20 and pw1[0] - NR <= n and nq < 3:
                        fl.append(lambda k=pw1[0]: ring1(k))
                        pw1[0] += 1
                        nq += 1
                while q and nq < 3 and qlow:
                    fl.append(q.pop(0))
                    nq += 1
                if not late and OPT.get('xe', 1):
                    for k in range(2, NR):
                        last = k if k >= 8 else k + 12
                        if max(last + 1, 12 + (k - 8) // 2 if k >= 8 else 0) == n and n < 19:
                            fl.append(lambda f=28 + k: w2load(f))
                            xdone.append(28 + k)
                if n == 5:
                    fl.append(lambda: cnt_peek(CNT1, 7))
                if n == 19:
                    def ep():
                        a.e(f's_lshl_b32 s6, s{sWAVE}, 7')
                        a.e('v_lshl_add_u32 v7, v9, 4, s6')
                        for h in range(2):
                            a.lds(f'ds_read_b128 {vr(EP + 4 * h, 4)}, v7 offset:{CSS + h * 64}', 'csr')
                    fl = [ep, epi_reads]
                weave(a, mf, fl)
                if n == OPT.get('nca', 3) and not late:
                    a.wait(vm=('x1', 1))
                    cnt_add(CNT1, 7)
            assert not q
            a.stamp(f'gend{l}')
            prio(a, 3)
            a.e(f's_lshl_b32 s65, s{sU1}, 11')
            a.e(f's_add_u32 s65, s65, s{sHG}')
            a.e(f's_add_u32 s65, s65, 0x{HB[l]:x}')
            L, Ld = a.newlab('Lsw'), a.newlab('Lsd')
            a.e('s_mov_b32 s61, 0')
            a.label(L)
            a.e('s_waitcnt lgkmcnt(0)')
            a.lg.clear()
            a.e(f'v_min_u32 v7, v{EP + 12}, v{EP + 13}')
            a.e(f'v_min3_u32 v7, v7, v{EP + 14}, v{EP + 15}')
            a.e('v_cmp_eq_u32 vcc, 0, v7')
            a.e(f's_cbranch_vccz {Ld}')
            a.e('s_sleep 1')
            epi_reads()
            a.lg.clear()
            a.e('s_add_u32 s61, s61, 1')
            a.e(f's_cmp_lt_u32 s61, {SPIN}')
            a.e(f's_cbranch_scc1 {L}')
            a.e('s_waitcnt lgkmcnt(0)')
            a.label(Ld)
            a.e('v_lshlrev_b32 v7, 10, v4')
            a.e('v_lshl_add_u32 v7, v10, 4, v7')
            for h in range(2):
                for pr in range(2):
                    b = ACCX + 16 * h + 8 * pr
                    if OPT.get('pk', 0):
                        for r in range(0, 8, 2):
                            sel = 'op_sel:[0,0,0] op_sel_hi:[0,1,1]' if r < 4 else 'op_sel:[1,0,0] op_sel_hi:[1,1,1]'
                            a.e(f'v_pk_fma_f32 {vr(b + r, 2)}, {vr(EP + 8 + 2 * pr, 2)}, {vr(EP + 4 * h + r % 4, 2)}, {vr(b + r, 2)} {sel} neg_lo:[1,0,0] neg_hi:[1,0,0]')
                        for r in range(0, 8, 2):
                            sel = 'op_sel:[0,0] op_sel_hi:[1,0]' if r < 4 else 'op_sel:[0,1] op_sel_hi:[1,1]'
                            a.e(f'v_pk_mul_f32 {vr(b + r, 2)}, {vr(b + r, 2)}, {vr(EP + 12 + 2 * pr, 2)} {sel}')
                    else:
                        for r in range(8):
                            a.e(f'v_fma_f32 v{b + r}, -v{EP + 8 + 2 * pr + r // 4}, v{EP + 4 * h + r % 4}, v{b + r}')
                        for r in range(8):
                            a.e(f'v_mul_f32 v{b + r}, v{b + r}, v{EP + 12 + 2 * pr + r // 4}')
                    for r in range(4):
                        a.e(f'v_cvt_pk_bf16_f32 v{b + r}, v{b + 2 * r}, v{b + 2 * r + 1}')
                    for r in range(4):
                        a.e(f'v_pk_max_i16 v{b + r}, v{b + r}, 0')
                    a.e(f'v_permlane16_swap_b32 v{b}, v{b + 2}')
                    a.e(f'v_permlane16_swap_b32 v{b + 1}, v{b + 3}')
                    xstore(f'buffer_store_dwordx4 {vr(b, 4)}, v7, {sr(sWS, 4)}, s65 offen offset:{h * 2048 + pr * 512}', 'hst', LP & 4 and l >= OPT.get('lpl', 0))
            a.stamp(f'epi{l}')
            cnt_add(CNT2, 7)


        def b2(ns, accb, HB_, first, pr):
            N = 4 * ns
            acc = lambda rt, ft: vr(accb(rt) + 4 * ft, 4)
            a.e(f'v_add_u32 v12, 0x{HB[l]:x}, v3')
            a.e('v_add_u32 v13, s69, v2')
            a.e(f'v_add_u32 v11, {R1}, v13')
            slot = {}

            def direct(z, sl):
                slot[z] = sl
                a.vmem(f'buffer_load_dwordx4 {vr(HB_[sl], 4)}, v12, {sr(sWS, 4)}, s{sHO + z % ns} offen offset:{(z // ns) * 256} sc1', ('h', z))

            def jit(z, sl):
                slot[z] = sl
                a.lds(f'ds_read_b128 {vr(HB_[sl], 4)}, v13 offset:{(z - 10) * 1024}', ('hz', z))

            def pwrite(rt, ft):
                a.lds(f'ds_write_b128 v{11 if rt < 2 else 13}, {acc(rt, ft)} offset:{((rt % 2) * 5 + ft) * 1024}', ('pw', rt))

            for z in range(10):
                direct(z, z)
            staged = list(range(10, min(19, N)))

            def stage(z):
                a.e(f's_add_u32 m0, s69, {(z - 10) * 1024}')
                a.e(f's_add_u32 s64, s{sHO + z % ns}, {(z // ns) * 256}')
                a.vmem(f'buffer_load_dwordx4 v12, {sr(sWS, 4)}, s64 offen sc1 lds', ('h', z))
            sq = list(staged)
            for _ in range(OPT.get('ns0', 0)):
                if sq:
                    stage(sq.pop(0))
            refill = list(range(19, N))
            a.stamp(f'hiss{l}')
            prio(a, pr)
            todo = list(staged)
            wq = []
            for z in range(N):
                rt, i = divmod(z, ns)
                fill = []
                vmw = []
                for _ in range(2):
                    if sq:
                        fill.append(lambda t=sq.pop(0): stage(t))
                if z >= 1:
                    fs = slot[z - 1]
                    if todo and todo[0] <= z + 3:
                        t = todo.pop(0)
                        vmw.append(('h', t))
                        fill.append(lambda t=t, fs=fs: jit(t, fs))
                    elif refill:
                        fill.append(lambda t=refill.pop(0), fs=fs: direct(t, fs))
                if rt == 1 and i == 0:
                    fill.append(lambda: cnt_peek(CNT2, 7))
                lgw = []
                if rt >= 1 and i == 1:
                    if rt == 1:
                        cnt_wait(CNT2, 7, True)
                    if rt == 3:
                        assert not todo
                        lgw.append(('hz', staged[-1]))
                    wq = [lambda rt=rt, ft=ft: pwrite(rt - 1, ft) for ft in range(5)]
                for _ in range(2):
                    if wq:
                        fill.append(wq.pop(0))
                if z in staged:
                    lgw.append(('hz', z))
                else:
                    vmw.append(('h', z))
                if i == 0 and rt >= 2 and accb(rt) == accb(rt - 2):
                    lgw.append(('pw', rt - 2))
                a.wait(vm=vmw + [('w2', 5 * i + k) for k in range(5)], lg=lgw or None)
                if i == 0:
                    a.stamp(f'rt{rt}_{l}')
                weave(a, [f'v_mfma_f32_16x16x32_bf16 {acc(rt, ft)}, {vr(w2reg(5 * i + ft), 4)}, {vr(HB_[slot[z]], 4)}, {"0" if first and i == 0 else acc(rt, ft)}' for ft in range(5)], fill)
            assert not wq
            a.stamp(f'b2B{l}')
            prio(a, 3)
            for ft in range(5):
                pwrite(3, ft)

        def flagbase(add):
            a.e(f's_lshl_b32 s67, s{sG}, 13')
            a.e('s_cmp_eq_u32 s26, 0')
            a.e(f's_cselect_b32 s6, 0x{LOC:x}, 0')
            a.e('s_add_u32 s67, s67, s6')
            a.e(add)

        HE = [56 + 4 * k for k in range(10)]
        HL = [96 + 4 * k for k in range(10)]
        acc = lambda rt, ft: vr(16 + 20 * rt + 4 * ft, 4)

        def late_tail(ns, first):
            a.e(f's_lshl_b32 s7, s{sWAVE}, 11')
            flagbase('s_add_u32 s67, s67, s7')
            poll(a, 11, 67, PH_H[l], 6, 'late', 4 - 64)
            a.stamp(f'pollB{l}')
            b2(ns, lambda rt: 16 + 20 * rt, HL, first, OPT.get('plb', 0))

        Llate = a.newlab('Llate')
        a.e(f's_cmp_ge_u32 s{sWAVE}, 4')
        a.e(f's_cbranch_scc1 {Llate}')
        prio(a, 3)
        xdone = []
        gemm(False, list(q))
        xrest = [f for f in range(30, 40) if f not in xdone]
        for f in xrest[:OPT.get('ne0', 3)]:
            w2load(f)
        a.wait(vm='hst')
        a.stamp(f'ackH{l}')
        setflag(a, PH_H[l], 12)
        prio(a, 1)
        for f in xrest[OPT.get('ne0', 3):] + need2:
            w2load(f)
        a.e(f's_lshl_b32 s7, s{sWAVE}, 7')
        flagbase('s_add_u32 s67, s67, s7')
        poll(a, 11, 67, PH_H[l], 8, 10)
        a.stamp(f'pollA{l}')
        b2(8, lambda rt: 16 + 20 * (rt % 2), HE, True, 1)
        stE = a.save()
        a.e(f's_branch {Ljoin}')

        a.label(Lid)
        a.restore(st0)
        a.wait(vm=('x1', 1))
        cnt_add(CNT1, 7)
        cnt_add(CNT2, 7)
        for f in need2:
            w2load(f)
        a.e(f's_branch {Lg2}')

        a.label(Llate)
        a.restore(st0)
        prio(a, 2)
        a.wait(vm=('x1', 1))
        cnt_add(CNT1, 7)
        a.e(f's_sleep {OPT.get("lsl", 2)}')
        for f in q:
            f()
        gemm(True, [lambda f=f: w2load(f) for f in need2], True)
        a.wait(vm='hst')
        a.stamp(f'ackH{l}')
        a.label(Lg2)
        setflag(a, PH_H[l], 12)
        late_tail(6, True)
        a.e(f's_branch {Ljoin}')

        a.label(LS)
        a.restore(st0)
        prio(a, 3)
        a.wait(vm=('x1', 1))
        cnt_add(CNT1, 7)
        if LP & 4 and l >= OPT.get('lpl', 0):
            a.e('s_lshl_b32 s6, s100, 12')
            a.e(f's_add_u32 s66, s6, s{sHG}')
            warm(40, 66, HB[l], 4, 7168)
        a.e(f's_lshl_b32 s67, s{sG}, 13')
        a.e('s_cmp_eq_u32 s26, 0')
        a.e(f's_cselect_b32 s6, 0x{LOC:x}, 0')
        a.e('s_add_u32 s67, s67, s6')
        a.e(f's_add_u32 s60, s67, 0x{FLG:x}')
        a.e(f's_add_u32 s59, s{sNON}, {PH_S[l]}')
        L, Ld = a.newlab('Lsp'), a.newlab('Lsd')
        a.e('s_mov_b32 s61, 0')
        a.label(L)
        a.e('v_and_b32 v7, 7, v1')
        a.e('v_mul_u32_u24 v7, 1152, v7')
        a.e(f'buffer_load_dword v7, v7, {sr(sWS, 4)}, s60 offen sc1')
        a.e('s_waitcnt vmcnt(0)')
        a.e('v_subrev_u32 v7, s59, v7')
        a.e('v_cmp_le_u32 vcc, 16, v7')
        a.e(f's_cbranch_vccz {Ld}')
        a.e('s_sleep 2')
        a.e('s_add_u32 s61, s61, 1')
        a.e(f's_cmp_lt_u32 s61, {SPIN}')
        a.e(f's_cbranch_scc1 {L}')
        a.label(Ld)
        a.vm.clear()
        a.e('v_lshlrev_b32 v7, 3, v1')
        for k in range(8):
            a.vmem(f'buffer_load_dwordx2 {vr(16 + 2 * k, 2)}, v7, {sr(sWS, 4)}, s65 offen offset:{k * 512} sc1', 'sg')
        a.e('v_lshlrev_b32 v7, 2, v1')
        a.e('s_mov_b32 s7, 0x3acccccd')
        a.wait(vm='sg')
        for k in range(1, 8):
            a.e(f'v_add_f32 v16, v16, v{16 + 2 * k}')
            a.e(f'v_add_f32 v17, v17, v{17 + 2 * k}')
        a.e('v_mul_f32 v16, s7, v16')
        a.e('v_mul_f32 v17, s7, v17')
        a.e('v_fma_f32 v17, -v16, v16, v17')
        a.e('v_max_f32 v17, 0, v17')
        a.e('v_add_f32 v17, 0x3727c5ac, v17')
        a.e('v_rsq_f32 v17, v17')
        a.lds(f'ds_write_b32 v7, v16 offset:{STATS}')
        a.lds(f'ds_write_b32 v7, v17 offset:{STATS + 256}')
        cnt_wait(CNT1, 7)
        a.stamp(f'stat{l}')
        prio(a, 0)
        PM, TB = 96, (100, 116)
        a.e('v_lshlrev_b32 v7, 2, v1')
        a.lds(f'ds_read_b128 {vr(PM, 4)}, v2 offset:{RSC}', 'ra')
        AR = (0, 11, 12, 13, 7)
        for ft in range(5):
            a.lds(f'ds_read_b32 v{AR[ft]}, v7 offset:{RSC + PRV + (ft // 4) * PRV + (ft % 4) * 256}', 'ra')
        a.wait(lg='ra')

        def rread(ft):
            return [lambda rt=rt: a.lds(f'ds_read_b128 {vr(TB[ft % 2] + 4 * rt, 4)}, v{AR[ft]} offset:{rt * 256}', ('rs', ft)) for rt in range(4)]
        for f in rread(0):
            f()
        for ft in range(5):
            if ft + 1 < 5:
                for f in rread(ft + 1):
                    f()
            a.wait(lg=('rs', ft))
            weave(a, [f'v_mfma_f32_16x16x32_bf16 {acc(rt, ft)}, {vr(PM, 4)}, {vr(TB[ft % 2] + 4 * rt, 4)}, 0' for rt in range(4)], [])
        prio(a, 0)
        cnt_add(CNT2, 7)
        for f in need2:
            if f < 20:
                w2load(f)
        a.e('s_sleep 40')
        late_tail(4, False)
        a.label(Ljoin)
        a.e('s_nop 1')
        a.restore(stE)
        a.vm.clear()
        a.forget('w1', 'ws', 'v', 'x1', 'us', 'h')
        a.seen -= {('w2', f) for f in range(30, 40)}
        if l == 0:
            Lg = a.newlab('Lg')
            a.e(f's_cmp_ge_u32 s{sWAVE}, 4')
            a.e(f's_cbranch_scc1 {Lg}')
            a.e('s_waitcnt lgkmcnt(0)')
            gen_D(a, dreg, 116, None, (0, 1))
            a.label(Lg)
        reduce_addr(l, False)
        a.wait(lg='all')
        a.e('s_barrier')
        a.stamp(f'PB{l}')
        reduce_item(l)
        Lnr = a.newlab('Lnr')
        a.e(f's_cmp_ge_u32 s{sWAVE}, 2')
        a.e(f's_cbranch_scc1 {Lnr}')
        reduce_addr(l, True)
        reduce_item(l)
        a.label(Lnr)
        if l == 1:
            a.stamp_dump(2, sWS, sWAVE, 15)
            break

        a.stamp('redB')
        a.e('v_lshlrev_b32 v5, 4, v8')
        a.e('v_lshl_add_u32 v5, v9, 9, v5')
        a.e(f'v_add_u32 v5, {R1}, v5')
        a.e('v_add_u32 v6, 40960, v5')
        def helpers(f):
            Lg = a.newlab('Lg')
            a.e(f's_cmp_lt_u32 s{sWAVE}, 4')
            a.e(f's_cbranch_scc1 {Lg}')
            st = a.save()
            f()
            a.restore(st)
            a.label(Lg)
        helpers(lambda: gen_D(a, dreg, 116, None, (0,)))
        a.wait(vm='all')
        a.e('s_barrier')
        a.stamp('ackXB')
        setflag_w0(a, PH_X2, 12)
        pXA = (7, sFSRC, PH_X2, 1)
        pXB = (11, sFPAR, PH_X2, 1)
        a.vm.clear()
        a.e(f's_sleep {OPT.get("xsl", 0)}')
        poll_issue(a, *pXA)
        poll_issue(a, *pXB, tag='poll2')
        a.e(f's_add_u32 s67, s{sGCM}, s68')
        a.e(f's_mul_i32 s66, s{sPG}, 81920')
        a.e('s_add_u32 s66, s66, s68')
        poll_check(a, *pXA)
        lin(5, 68, R1, 67, X2B, 'x2')
        poll_check(a, *pXB, tag='poll2')
        a.stamp('pollXB')
        lin(5, 68, R1 + 40960, 66, X2B + 40960, 'x2')
        Lh, Lj, L4 = a.newlab('Lh'), a.newlab('Lj'), a.newlab('L4')
        a.e(f's_cmp_ge_u32 s{sWAVE}, 4')
        a.e(f's_cbranch_scc1 {Lh}')
        st0 = a.save()
        U4 = ST1 + 1024
        AC1, AC2 = 56, 72
        XS = [[88, 92, 96, 100], [116, 120, 124, 128], [104, 108, 112, 132]]
        WFA = 16
        RSr, MRr = [116, 120, 124, 128], [88, 92, 96, 100]
        wf = lambda mat, tt, ks: (16 + k * 4 if (k := (mat * 4 + tt) * 2 + ks) < 10 else (72 + (k - 10) * 4 if k < 14 else 104 + (k - 14) * 4))

        def sgn():
            a.e('v_and_b32 v0, 1, v1')
            a.e('v_lshlrev_b32 v0, 31, v0')
            a.e('v_or_b32 v0, 1.0, v0')

        def wf_reads():
            for tt in range(4):
                for ks in range(2):
                    for mat in range(2):
                        a.lds(f'ds_read_b128 {vr(wf(mat, tt, ks), 4)}, v2 offset:{W1SL + ((mat * 4 + tt) * 2 + ks) * 1024}', 'wf')

        def st_reads():
            a.e('v_lshlrev_b32 v12, 4, v9')
            for rt in range(4):
                a.lds(f'ds_read_b128 {vr(RSr[rt], 4)}, v12 offset:{ST1 + rt * 64}', 'st')
                a.lds(f'ds_read_b128 {vr(MRr[rt], 4)}, v12 offset:{ST1 + 256 + rt * 64}', 'st')

        a.e(f's_lshl_b32 s6, s{sWAVE}, 12')
        a.e('v_add_u32 v75, s6, v2')
        a.e(f's_cmp_ge_u32 s{sWAVE}, 2')
        a.e(f's_cselect_b32 s98, 0.5, 0x{fbits(0.25):08x}')
        a.e(f's_lshl_b32 s99, s{sKT}, 5')
        gen_W1(a, 1, W1SL, 56, (0,), 98, range(2), 99)
        a.wait(vm='x2', lg='all')
        a.e('s_barrier')
        a.stamp('XA')
        prio(a, OPT.get('mp', 1))

        def xr1(n):
            return [lambda rt=rt: a.lds(f'ds_read_b128 {vr(XS[n % 3][rt], 4)}, v{5 + rt // 2} offset:{n * 2048 + (rt % 2) * 256}', ('xf', n)) for rt in range(4)]
        for f in xr1(0) + xr1(1):
            f()
        for n in range(20):
            a.wait(lg=('xf', n))
            ac = AC1 if n < 10 else AC2
            mf = [f'v_mfma_f32_16x16x32_bf16 {vr(ac + 4 * rt, 4)}, {vr(XS[n % 3][rt], 4)}, {vr(dreg(n % 10), 4)}, {"0" if n % 10 == 0 else vr(ac + 4 * rt, 4)}' for rt in range(4)]
            weave(a, mf, xr1(n + 2) if n + 2 < 20 else [])
        prio(a, 3)
        sgn()
        for r in range(16):
            a.e(f'v_fma_f32 v{AC1 + r}, v{AC2 + r}, v0, v{AC1 + r}')
        wf_reads()
        a.stamp('a1B')
        a.e('s_barrier')
        a.stamp('ST')
        st_reads()
        a.label(L4)
        stage1(a, AC1, RSr, MRr, 116, wf, R1)
        stC = a.save()
        a.e(f's_branch {Lj}')

        a.label(Lh)
        a.restore(st0)
        gen_D(a, dreg, 116, None, (1,))
        AS, AM, ONE, FS = 64, 68, 72, 76
        for r in range(4):
            a.e(f'v_mov_b32 v{ONE + r}, 0x3f803f80')
        a.e(f's_mul_i32 s6, s{sRHO}, 40960')
        a.e(f's_lshl_b32 s7, s{sKT}, 8')
        a.e('s_add_u32 s6, s6, s7')
        a.e('v_add_u32 v5, s6, v5')
        a.wait(vm='x2', lg='all')
        a.e('s_barrier')
        prio(a, OPT.get('hp', 3))

        def sread(ks):
            a.lds(f'ds_read_b128 {vr(FS + 4 * (ks % 10), 4)}, v5 offset:{ks * 2048}', ('sf', ks))
        for ks in range(6):
            sread(ks)
        for ks in range(20):
            a.wait(lg=('sf', ks))
            f = vr(FS + 4 * (ks % 10), 4)
            ac = vr(56 if ks < 10 else 60, 4)
            weave(a, [f'v_mfma_f32_16x16x32_bf16 {vr(AS, 4)}, {f}, {f}, {"0" if ks == 0 else vr(AS, 4)}',
                      f'v_mfma_f32_16x16x32_bf16 {vr(AM, 4)}, {f}, {vr(ONE, 4)}, {"0" if ks == 0 else vr(AM, 4)}',
                      f'v_mfma_f32_16x16x32_bf16 {ac}, {f}, {vr(dreg(ks % 10), 4)}, {"0" if ks % 10 == 0 else ac}'],
                  [lambda: sread(ks + 6)] if ks + 6 < 20 else [])
        a.e(f's_and_b32 s66, s{sWAVE}, 3')
        a.e('s_lshl_b32 s6, s66, 6')
        a.e(f's_add_u32 s6, s6, {ST1}')
        stats_finalize(a, AS, AM, 1, 11, 64, 256, 'rs_mr')
        sgn()
        for r in range(4):
            a.e(f'v_fma_f32 v{56 + r}, v{60 + r}, v0, v{56 + r}')
        a.e('s_lshl_b32 s6, s66, 10')
        a.e('v_add_u32 v7, s6, v2')
        a.lds(f'ds_write_b128 v7, v[56:59] offset:{U4}', 'u4')
        prio(a, 3)
        Ln4 = a.newlab('Ln4')
        a.e(f's_cmp_lg_u32 s{sWAVE}, 4')
        a.e(f's_cbranch_scc1 {Ln4}')
        st1 = a.save()
        wf_reads()
        a.wait(lg='u4')
        a.e('s_barrier')
        for rt in range(4):
            a.lds(f'ds_read_b128 {vr(AC1 + 4 * rt, 4)}, v2 offset:{U4 + rt * 1024}', 'st')
        st_reads()
        a.e(f's_branch {L4}')
        a.label(Ln4)
        a.restore(st1)
        if OPT.get('t1', 4):
            L7 = a.newlab('L7')
            a.e(f's_cmp_lg_u32 s{sWAVE}, 7')
            a.e(f's_cbranch_scc1 {L7}')
            w1_touch(60, 0, OPT.get('t1', 4))
            a.label(L7)
        a.wait(lg='all')
        a.e('s_barrier')
        L7, L56 = a.newlab('L7'), a.newlab('L56')
        a.e(f's_cmp_eq_u32 s{sWAVE}, 7')
        a.e(f's_cbranch_scc1 {L7}')
        a.e(f's_cmp_eq_u32 s{sWAVE}, 6')
        a.e(f's_cselect_b32 s99, s{sTAU1}, s{sG}')
        a.e(f's_cselect_b32 s6, 4096, 0')
        a.e(f's_add_u32 s6, s6, {TWL1}')
        a.e('v_add_u32 v31, s6, v2')
        gen_TW(a, 16, 99, 31, 0)
        a.e(f's_branch {Lj}')
        a.label(L7)
        stage_all()
        a.label(Lj)
        a.e('s_nop 1')
        a.restore(stC)
        v_out_addr(a)
        a.wait(lg='all')
        a.e('s_barrier')
        a.stamp('VT')
        v_out(a, 1, R1, 64)
        for n in range(NR):
            bg.add(lambda n=n: w1load(n))
            if n < NST:
                bg.add(lambda n=n: stash(n))

        def pv1():
            a.wait(vm='vo')
            a.e('s_barrier')
            a.stamp('PV1')
            setflag_w0(a, PH_V[1], 7)
        a2_pre(1, lambda: bg.run(OPT.get('bga2', 3)), pv1)
        a.stamp('a2pre')

    a.label(end)
    a.e('s_endpgm')
    a.raw(descriptor(name, 256, 102))
    return 163840


def main():
    if len(sys.argv) > 2 and 'stamps' in sys.argv[2:]:
        Asm.STAMPS = True
    Asm.CYC = 'cyc' in sys.argv[2:]
    Asm.DBGOUT = 'dbgout' in sys.argv[2:]
    for o in sys.argv[2:]:
        if o.startswith('names='):
            Asm.ACTIVE = o[6:].split(',')
        elif '=' in o:
            k, v = o.split('=')
            OPT[k] = int(v)
    hdr = open('cdna_kernels/' + NAME + '.s.ref').read().split('\n')
    hdr = [l for l in hdr if l.startswith(';') and '@launch' not in l and 'Override launch' not in l and 'grid=ceil' not in l]
    out = '\n'.join(hdr) + '\n'
    a = Asm()
    lds = gen(a, NAME + '_kernel')
    out += f'; @launch grid=(256,1,1) block=(512,1,1) lds={lds}\n'
    if Asm.STAMPS:
        out += '; stampnames start,' + ','.join(Asm.ACTIVE) + '\n'
    out += '.amdgcn_target "amdgcn-amd-amdhsa--gfx950"\n'
    out += a.text()
    path = sys.argv[1] if len(sys.argv) > 1 else 'cdna_kernels/' + NAME + '.s'
    open(path, 'w').write(out)
    print('wrote', path, len(out))


main()
```

```python
import sys
from asmlib import *

NAME = 'interleave_layers__spectral_fnet__dense_activation_relu__prompt'
S, D, F = 2048, 640, 1728
W1F = 0
W2F = 0x220000
DPF = 0x440000
CSP = 0x510000
W1S = 0x540000
STG = 0x560000
FLG = 0x760000
VB = [0x960000, 0xC60000]
X1B = [0xF60000, 0x11E0000]
X2B = 0x1460000
HB = [0x16E0000, 0x1DA0000]
WS_BYTES = 268435456
OOB = 0x7f000000
SPIN = 200000
OPT = {}

R1 = 81920
PRV = 10240
STATS, CSS = 9216, PRV + 9216
CNT1, CNT2 = STATS + 512, STATS + 516
PSUM = 5 * PRV + 9216
XRL1, TWL1, W1SL, ST1 = R1 + 12288, R1 + 24576, 20480, 36864

sWAVE, sG, sC = 3, 4, 5
P_X, P_CR, P_CI, P_DR, P_DI, P_W1, P_W2, P_OUT, P_WS = 8, 10, 12, 14, 16, 20, 22, 24, 26
sWS, sOUT, sFL = 28, 32, 36
sRHO, sKT, sMIR, sNON, sU1, sU2 = 38, 39, 40, 41, 42, 43
sGCM, sFOWN, sW1B, sHK, sW2O, sHG, sFSRC, sTAU1, sPG, sFPAR = 44, 45, 46, 47, 48, 49, 50, 51, 52, 53


def fbits(x):
    import struct
    return struct.unpack('<I', struct.pack('<f', float(x)))[0]


def sin_frag(a, dst, tmp, vstep, vbase, ks):
    for e in range(8):
        a.e(f'v_fmamk_f32 v{tmp + e}, v{vstep}, 0x{fbits(ks[e]):08x}, v{vbase}')
    for e in range(8):
        a.e(f'v_sin_f32 v{tmp + e}, v{tmp + e}')
    for r in range(4):
        a.e(f'v_cvt_pk_bf16_f32 v{dst + r}, v{tmp + 2 * r}, v{tmp + 2 * r + 1}')


def gen_D(a, reg, tmp, rot, parts=(0, 1, 2)):
    st, ba = tmp + 8, tmp + 9
    if 0 in parts:
        a.e(f's_mul_i32 s6, s{sC}, 40')
        a.e(f's_min_u32 s7, s{sWAVE}, 4')
        a.e('s_lshl_b32 s7, s7, 3')
        a.e('s_add_u32 s6, s6, s7')
        a.e(f'v_and_b32 v{st}, 7, v1')
        a.e(f'v_add_u32 v{st}, s6, v{st}')
        a.e('v_mov_b32 v0, 320')
        a.e(f'v_cmp_eq_u32 vcc, 0, v{st}')
        a.e(f'v_cndmask_b32 v{st}, v{st}, v0, vcc')
        if rot is None:
            a.e(f'v_lshlrev_b32 v{ba}, 3, v9')
        else:
            a.e(f's_lshr_b32 s6, s{rot}, 1')
            a.e(f'v_lshl_add_u32 v{ba}, v9, 3, s6')
        a.e(f'v_mul_u32_u24 v{ba}, v{st}, v{ba}')
        a.e('v_mov_b32 v11, 160')
        a.e('v_cmp_gt_u32 vcc, 8, v8')
        a.e('v_cndmask_b32 v0, v0, v11, vcc')
        a.e(f'v_add_u32 v{ba}, v{ba}, v0')
        a.e('s_mov_b32 s7, 0x666667')
        a.e(f'v_mul_hi_u32 v0, v{ba}, s7')
        a.e('v_mul_u32_u24 v0, 640, v0')
        a.e(f'v_sub_u32 v{ba}, v{ba}, v0')
        a.e(f'v_cvt_f32_i32 v{ba}, v{ba}')
        a.e(f'v_cvt_f32_u32 v{st}, v{st}')
        a.e(f'v_mul_f32 v{ba}, 0x3acccccd, v{ba}')
        a.e(f'v_mul_f32 v{st}, 0x3acccccd, v{st}')
        for ks in range(3):
            sin_frag(a, reg(ks), tmp, st, ba, [32 * ks + e for e in range(8)])
    if 1 in parts:
        for ks in range(3, 5):
            sin_frag(a, reg(ks), tmp, st, ba, [32 * ks + e for e in range(8)])
        a.e('v_mov_b32 v13, 0x80008000')
        a.e('v_lshrrev_b32 v0, 1, v1')
        a.e('v_lshrrev_b32 v12, 3, v1')
        a.e('v_and_b32 v12, v12, v1')
        a.e('v_xor_b32 v0, v0, v12')
        a.e('v_and_b32 v0, 1, v0')
        a.e('v_cmp_eq_u32 vcc, 1, v0')
        a.e('v_cndmask_b32 v12, 0, v13, vcc')
        a.e('v_and_b32 v0, 1, v1')
        a.e('v_cmp_eq_u32 vcc, 1, v0')
        a.e(f'v_cndmask_b32 v{st}, 0, v13, vcc')
        for r in range(20):
            a.e(f'v_xor_b32 v{reg(5 + r // 4) + r % 4}, v{reg(r // 4) + r % 4}, v12')
        a.e('s_mov_b64 exec, vcc')
        a.e('s_nop 4')
        for r in range(20):
            a.e(f'v_xor_b32_dpp v{reg(5 + r // 4) + r % 4}, v{reg(r // 4) + r % 4}, v12 row_ror:8 row_mask:0xf bank_mask:0xf')
        a.e('s_mov_b64 exec, -1')
    if 2 in parts:
        for r in range(40):
            a.e(f'v_xor_b32 v{reg(10 + r // 4) + r % 4}, v{reg(r // 4) + r % 4}, v{st}')


def gen_W1(a, l, base, tmp, mats, smat=None, tts=range(4), stt=None):
    st, ba, qq, sg = tmp + 16, tmp + 17, tmp + 18, 13
    a.e(f'v_lshlrev_b32 v{qq}, 3, v9')
    a.e(f'v_cvt_f32_u32 v{qq}, v{qq}')
    a.e(f'v_and_b32 v{sg}, 1, v1')
    a.e(f'v_mul_u32_u24 v{sg}, 0x10001, v{sg}')
    a.e(f'v_lshlrev_b32 v{sg}, 15, v{sg}')
    for mat in mats:
        if smat is None:
            a.e(f'v_mov_b32 v0, 0x{fbits(0.5 if mat else 0.25):08x}')
        for tt in tts:
            a.e(f'v_add_u32 v{st}, {16 * tt}, v8')
            if stt is not None:
                a.e(f'v_add_u32 v{st}, s{stt}, v{st}')
            a.e(f'v_cvt_f32_u32 v{st}, v{st}')
            a.e(f'v_mul_f32 v{st}, 0x3c800000, v{st}')
            a.e(f'v_fma_f32 v{ba}, v{qq}, v{st}, {"v0" if smat is None else f"s{smat}"}')
            o = tmp + 8
            for e in range(8):
                k = e if l == 0 else 2 * (e % 4) + e // 4
                a.e(f'v_fmamk_f32 v{tmp + e}, v{st}, 0x{fbits(k):08x}, v{ba}')
            for e in range(8):
                a.e(f'v_sin_f32 v{tmp + e}, v{tmp + e}')
            dst = (0, 1, 2, 3) if l == 0 else (0, 1, 4, 5)
            for r in range(4):
                a.e(f'v_cvt_pk_bf16_f32 v{o + dst[r]}, v{tmp + 2 * r}, v{tmp + 2 * r + 1}')
            for r in range(4):
                a.e(f'v_xor_b32 v{o + dst[r] + (4 if l == 0 else 2)}, v{o + dst[r]}, v{sg}')
            for ks in range(2):
                a.lds(f'ds_write_b128 v{tmp + 19}, {vr(o + 4 * ks, 4)} offset:{base + ((mat * 4 + tt) * 2 + ks) * 1024}', 'gw')


def gen_TW(a, tmp, srho_tau, vaddr, off0):
    st, ba = tmp + 12, tmp + 13
    a.e(f'v_lshl_add_u32 v{st}, v10, 6, s{srho_tau}')
    a.e(f'v_cvt_f32_u32 v{st}, v{st}')
    a.e(f'v_mul_f32 v{st}, 0x3a000000, v{st}')
    a.e(f'v_lshlrev_b32 v{ba}, 3, v4')
    a.e(f'v_cvt_f32_u32 v{ba}, v{ba}')
    a.e(f'v_mul_f32 v{ba}, v{ba}, v{st}')
    for ks in (2, 3, 0, 1):
        if ks == 0:
            a.e(f'v_add_f32 v{ba}, 0x{fbits(0.25):08x}, v{ba}')
        sin_frag(a, tmp + 8, tmp, st, ba, [16 * (ks % 2) + e for e in range(8)])
        a.lds(f'ds_write_b128 v{vaddr}, {vr(tmp + 8, 4)} offset:{off0 + ks * 1024}', 'gw')


def weave(a, mfs, fill):
    fill = list(fill)
    for i, m in enumerate(mfs):
        a.e(m)
        left = len(mfs) - i
        for _ in range(-(-len(fill) // left)):
            fill.pop(0)()


class BG:
    def __init__(self):
        self.q = []

    def add(self, f):
        self.q.append(f)

    def run(self, n=None):
        n = len(self.q) if n is None else min(n, len(self.q))
        for _ in range(n):
            self.q.pop(0)()


PH_V, PH_X1, PH_S, PH_H, PH_X2 = (1, 6), (2, 7), (3, 8), (4, 9), 5
LOC = 0x80000
sXCC = 27


def poll_issue(a, vres, soff, phase, n, shift=7, first=0, tag='poll'):
    if shift == 'late':
        a.e(f'v_and_b32 v{vres}, 3, v1')
        a.e(f'v_min_u32 v{vres}, 2, v{vres}')
        a.e(f'v_lshlrev_b32 v{vres}, 7, v{vres}')
        a.e(f'v_lshl_add_u32 v{vres}, v4, 10, v{vres}')
        shift = 7
    else:
        a.e(f'v_min_u32 v{vres}, {n - 1}, v1')
        a.e(f'v_lshlrev_b32 v{vres}, {shift}, v{vres}')
    a.e(f's_add_u32 s60, s{soff}, 0x{FLG + (first << shift):x}')
    a.vmem(f'buffer_load_dword v{vres}, v{vres}, {sr(sWS, 4)}, s60 offen sc1', tag)


def poll_check(a, vres, soff, phase, n, shift=7, first=0, tag='poll'):
    L, Ld = a.newlab('Lpoll'), a.newlab('Lpd')
    a.e(f's_add_u32 s59, s{sNON}, {phase}')
    a.wait(vm=tag)
    a.e('s_mov_b32 s61, 0')
    a.label(L)
    a.e(f'v_subrev_u32 v{vres}, s59, v{vres}')
    a.e(f'v_cmp_le_u32 vcc, 16, v{vres}')
    a.e(f's_cbranch_vccz {Ld}')
    if OPT.get('abl_poll', 0) >> phase & 1:
        a.e(f's_branch {Ld}')
    if OPT.get('psleep', 2):
        a.e(f's_sleep {OPT.get("psleep", 2)}')
    st = a.save()
    poll_issue(a, vres, soff, phase, n, shift, first, tag)
    a.restore(st)
    a.e('s_waitcnt vmcnt(0)')
    a.e('s_add_u32 s61, s61, 1')
    a.e(f's_cmp_lt_u32 s61, {SPIN}')
    a.e(f's_cbranch_scc1 {L}')
    a.label(Ld)


def poll(a, vres, *args, **kw):
    poll_issue(a, vres, *args, **kw)
    poll_check(a, vres, *args, **kw)


def prio(a, p):
    if OPT.get('prio', 1):
        a.e(f's_setprio {p}')


def setflag(a, phase, vt):
    if phase is None:
        a.e('v_mov_b32 v0, 0')
    else:
        a.e(f's_add_u32 s62, s{sNON}, {phase}')
        a.e('v_mov_b32 v0, s62')
        a.e(f'v_writelane_b32 v0, s{sXCC}, 1')
    a.e(f'v_lshlrev_b32 v{vt}, 2, v1')
    a.e('s_mov_b32 exec_hi, 0')
    if phase is not None and phase not in PH_V:
        a.e(f's_add_u32 s62, s{sFOWN}, 0x{LOC:x}')
        a.vmem(f'buffer_store_dword v0, v{vt}, {sr(sWS, 4)}, s62 offen', 'flag')
    if phase is not None and phase not in PH_V and phase != PH_X1[0]:
        L = a.newlab('Lng')
        a.e('s_cmp_eq_u32 s26, 0')
        a.e(f's_cbranch_scc1 {L}')
        a.e(f'buffer_store_dword v0, v{vt}, {sr(sWS, 4)}, s{sFOWN} offen sc1')
        a.label(L)
    else:
        a.vmem(f'buffer_store_dword v0, v{vt}, {sr(sWS, 4)}, s{sFOWN} offen sc1', 'flag')
    if phase is None:
        a.e(f's_add_u32 s62, s{sFOWN}, 0x{LOC:x}')
        a.vmem(f'buffer_load_dword v254, v{vt}, {sr(sWS, 4)}, s62 offen sc1', 'flag')
    a.e('s_mov_b32 exec_hi, -1')


def setflag_w0(a, phase, vt):
    L = a.newlab('Lnf')
    a.e(f's_cmp_lg_u32 s{sWAVE}, 0')
    a.e(f's_cbranch_scc1 {L}')
    st = a.save()
    setflag(a, phase, vt)
    a.restore(st)
    a.label(L)


EXTRA = ['hst', 'flag', 'xst', 'vst', 'pst']


def merge(a, *states):
    ls = [[t for t in s[0] if t not in EXTRA and not (isinstance(t, tuple) and t[0] in EXTRA)] for s in states]
    ls.sort(key=len)
    longer = ls[-1]
    for s in ls[:-1]:
        assert longer[len(longer) - len(s):] == s, (longer, s)
    a.vm = list(longer)
    a.lg = []


def stats_finalize(a, AS, AM, ntiles, tmp, tile_stride, delta1, mode):
    t = tmp
    a.e(f'v_lshlrev_b32 v{t}, 2, v9')
    a.e(f'v_sub_u32 v{t}, v8, v{t}')
    a.e(f'v_lshl_add_u32 v{t + 1}, v8, 2, s6')
    a.e(f'v_cmp_eq_u32 s[70:71], 1, v{t}')
    a.e(f'v_cmp_eq_u32 s[72:73], 2, v{t}')
    a.e(f'v_cmp_eq_u32 s[74:75], 3, v{t}')
    a.e(f'v_cmp_gt_u32 s[76:77], 4, v{t}')
    a.e('s_mov_b32 s7, 0x3acccccd')
    for rt in range(ntiles):
        for acc in (AS, AM):
            b = acc + 4 * rt
            a.e(f'v_cndmask_b32 v{b}, v{b}, v{b + 1}, s[70:71]')
            a.e(f'v_cndmask_b32 v{b}, v{b}, v{b + 2}, s[72:73]')
            a.e(f'v_cndmask_b32 v{b}, v{b}, v{b + 3}, s[74:75]')
        ss, sm = AS + 4 * rt, AM + 4 * rt
        a.e(f'v_mul_f32 v{sm}, s7, v{sm}')
        a.e(f'v_mul_f32 v{ss}, s7, v{ss}')
        a.e(f'v_fma_f32 v{ss}, -v{sm}, v{sm}, v{ss}')
        a.e(f'v_max_f32 v{ss}, 0, v{ss}')
        a.e(f'v_add_f32 v{ss}, 0x3727c5ac, v{ss}')
        a.e(f'v_rsq_f32 v{ss}, v{ss}')
        if mode == 'rs_mr':
            a.e(f'v_mul_f32 v{sm}, v{sm}, v{ss}')
    a.e('s_mov_b64 exec, s[76:77]')
    for rt in range(ntiles):
        ss, sm = AS + 4 * rt, AM + 4 * rt
        first, second = (ss, sm) if mode == 'rs_mr' else (sm, ss)
        a.lds(f'ds_write_b32 v{t + 1}, v{first} offset:{rt * tile_stride}')
        a.lds(f'ds_write_b32 v{t + 1}, v{second} offset:{rt * tile_stride + delta1}')
    a.e('s_mov_b64 exec, -1')


def stage1(a, ACC, RSr, MRr, VA, wf, VT):
    a.e('v_cmp_gt_u32 vcc, 8, v8')
    a.e('v_mov_b32 v13, 0x80008000')
    a.e('v_cndmask_b32 v13, 0, v13, vcc')
    a.e('v_and_b32 v12, 1, v9')
    a.e('v_lshl_add_u32 v12, v12, 4, v8')
    a.e('v_mul_u32_u24 v12, 192, v12')
    a.e('v_lshrrev_b32 v11, 1, v9')
    a.e('v_mul_u32_u24 v11, 80, v11')
    a.e(f's_lshl_b32 s6, s{sWAVE}, 4')
    a.e(f's_add_u32 s6, s6, {VT}')
    a.e('v_add3_u32 v12, v12, v11, s6')
    a.wait(lg='st')
    for r in range(16):
        m = MRr[r // 4] + r % 4
        a.e(f'v_mul_f32 v{m}, v{m}, v14')
    for r in range(16):
        a.e(f'v_fma_f32 v{ACC + r}, v{ACC + r}, v{RSr[r // 4] + r % 4}, -v{MRr[r // 4] + r % 4}')
    for r in range(8):
        a.e(f'v_cvt_pk_bf16_f32 v{ACC + r}, v{ACC + 2 * r}, v{ACC + 2 * r + 1}')
    for r in range(8):
        a.e(f'v_xor_b32_dpp v{ACC + 8 + r}, v{ACC + r}, v13 row_ror:8 row_mask:0xf bank_mask:0xf')
    a.wait(lg='wf')
    for tt in range(4):
        for ks in range(2):
            for mat in range(2):
                src = ACC + 8 * mat + 4 * ks
                c = '0' if (ks == 0 and mat == 0) else vr(VA + 4 * tt, 4)
                a.e(f'v_mfma_f32_16x16x32_bf16 {vr(VA + 4 * tt, 4)}, {vr(src, 4)}, {vr(wf(mat, tt, ks), 4)}, {c}')
    for pr in range(2):
        b = VA + 8 * pr
        for r in range(4):
            a.e(f'v_cvt_pk_bf16_f32 v{b + r}, v{b + 2 * r}, v{b + 2 * r + 1}')
        a.e(f'v_permlane16_swap_b32 v{b}, v{b + 2}')
        a.e(f'v_permlane16_swap_b32 v{b + 1}, v{b + 3}')
        a.lds(f'ds_write_b128 v12, {vr(b, 4)} offset:{pr * 32 * 192}', 'vt')


def v_out_addr(a):
    for n, dst in ((0, 5), (8, 6)):
        a.e(f's_lshl_b32 s6, s{sWAVE}, 6')
        a.e(f's_add_u32 s6, s6, {n * 64}')
        a.e('v_add_u32 v0, s6, v1')
        a.e('v_mul_u32_u24 v7, 5462, v0')
        a.e('v_lshrrev_b32 v7, 16, v7')
        a.e('v_lshlrev_b32 v0, 4, v0')
        a.e(f's_mov_b32 s7, {8 * 32 * 192 - 192}')
        a.e(f'v_mad_u32_u24 v{dst}, v7, s7, v0')


def v_out(a, l, VT, R):
    a.e(f's_lshl_b32 s6, s{sWAVE}, 10')
    a.e(f's_add_u32 s6, s6, {VT}')
    a.e('v_add_u32 v0, s6, v2')
    a.lds(f'ds_read_b128 {vr(R, 4)}, v0', 'vo0')
    a.lds(f'ds_read_b128 {vr(R + 4, 4)}, v0 offset:8192', 'vo1')
    a.e(f's_lshl_b32 s6, s{sC}, 5')
    a.e(f's_add_u32 s6, s6, s{sG}')
    a.e('s_mulk_i32 s6, 192')
    a.e(f's_add_u32 s6, s6, 0x{VB[l]:x}')
    a.e(f's_cmp_lt_u32 s{sWAVE}, 4')
    a.e(f's_cselect_b32 s7, s6, 0x{OOB:x}')
    a.wait(lg='vo0')
    a.vmem(f'buffer_store_dwordx4 {vr(R, 4)}, v5, {sr(sWS, 4)}, s6 offen sc1', 'vo')
    a.wait(lg='vo1')
    a.vmem(f'buffer_store_dwordx4 {vr(R + 4, 4)}, v6, {sr(sWS, 4)}, s7 offen sc1', 'vo')


TW, Y, VF, PK, ID, XR, XM, XE = 16, 32, 48, 48, 48, 56, 16, 24
ACCX, XF = 16, 48
NR, NST = 12, 9
RING = [88 + 4 * k for k in range(12)]
JIT = [80, 84]
sHO, sWO = 8, 16
ACCB = 16
HBUF = [96 + 4 * k for k in range(5)]
ACCA = 96
XFS = [56, 64, 72, 80, 88, 236, 244]


def dreg(ks):
    return 16 + 4 * ks if ks < 10 else 196 + 4 * (ks - 10)


def w2reg(f):
    return 136 + 4 * f if f < 30 else 96 + 4 * (f - 30)


def gen(a, name):
    end = name + '_end'
    a.raw('.text')
    a.raw(f'.globl {name}')
    a.raw('.p2align 8')
    a.raw(f'.type {name},@function')
    a.label(name)
    a.e('s_cmp_ge_u32 s2, 256')
    a.e(f's_cbranch_scc1 {end}')
    a.stamp_init()
    a.stamp(0)
    a.e('s_load_dwordx16 s[8:23], s[0:1], 0')
    a.e('s_load_dwordx2 s[24:25], s[0:1], 64')
    a.e('s_load_dwordx2 s[26:27], s[0:1], 80')
    a.e('s_load_dwordx2 s[96:97], s[0:1], 72')
    a.e('v_lshrrev_b32 v1, 6, v0')
    a.e(f'v_readfirstlane_b32 s{sWAVE}, v1')
    a.e('v_and_b32 v1, 63, v0')
    if OPT.get('cpf', 1):
        a.e('s_getpc_b64 s[98:99]')
        a.label('Lpc')
        a.e('s_lshr_b32 s6, s2, 3')
        a.e('s_lshl_b32 s6, s6, 5')
        a.e('v_and_b32 v253, 31, v0')
        a.e('v_add_u32 v253, s6, v253')
        a.e('v_lshlrev_b32 v253, 7, v253')
        a.e(f'v_min_u32 v253, {end} - Lpc, v253')
        a.e('v_cmp_gt_u32 vcc, 32, v0')
        a.e('s_and_saveexec_b64 s[6:7], vcc')
        a.e('s_cbranch_execz Lpcd')
        a.e('global_load_dword v253, v253, s[98:99]')
        a.label('Lpcd')
        a.e('s_mov_b64 exec, -1')
    XM_ = OPT.get('xm', 0)
    a.e('s_and_b32 s6, s2, 7')
    a.e('s_lshr_b32 s7, s2, 3')
    a.e(f's_and_b32 s98, s6, {(1 << XM_) - 1}')
    a.e(f's_lshl_b32 s98, s98, {3 - XM_}')
    a.e(f's_and_b32 s99, s7, {(8 >> XM_) - 1}')
    a.e(f's_add_u32 s{sC}, s98, s99')
    a.e(f's_lshr_b32 s6, s6, {XM_}')
    a.e(f's_lshl_b32 s6, s6, {2 + XM_}')
    a.e(f's_lshr_b32 s7, s7, {3 - XM_}')
    a.e('s_add_u32 s101, s6, s7')
    a.e('s_lshr_b32 s6, s101, 1')
    a.e('s_sub_u32 s7, 32, s6')
    a.e('s_cmp_eq_u32 s6, 0')
    a.e('s_cselect_b32 s7, 16, s7')
    a.e('s_bitcmp1_b32 s101, 0')
    a.e(f's_cselect_b32 s{sG}, s7, s6')
    a.e('v_lshlrev_b32 v2, 4, v1')
    a.e('v_and_b32 v8, 15, v1')
    a.e('v_lshrrev_b32 v9, 4, v1')
    a.e('v_and_b32 v10, 31, v1')
    a.e('v_lshrrev_b32 v4, 5, v1')

    sX, sW1, sW2, sCS = 56, 68, 72, 12
    sWK, sROT = 54, 55
    RS, MR, CNT0 = 0, 256, 512
    W1L = 1024
    WP1 = W1L + 16384
    W2S = WP1 + 14336
    VT0 = W2S + 10240
    XRL0 = VT0 + 12288
    TWL0 = XRL0 + 12288
    EW = 1
    vXA, vF0, vF1, vO8, vSW = 240, 244, 245, 246, 247
    a.e(f'v_lshrrev_b32 v{vO8}, 3, v1')
    a.e(f'v_and_b32 v{vSW}, 7, v1')
    a.e(f'v_xor_b32 v{vSW}, v{vSW}, v{vO8}')
    a.e(f'v_lshlrev_b32 v{vSW}, 4, v{vSW}')
    a.e(f's_and_b32 s{sKT}, s{sWAVE}, 1')
    a.e(f's_lshr_b32 s{sMIR}, s{sWAVE}, 2')
    a.e(f's_bfe_u32 s{sRHO}, s{sWAVE}, 0x10001')
    a.e(f's_lshl_b32 s6, s{sKT}, 4')
    a.e(f's_lshl_b32 s7, s{sMIR}, 5')
    a.e('s_add_u32 s6, s6, s7')
    a.e(f's_lshl_b32 s7, s{sRHO}, 2')
    a.e('s_add_u32 s6, s6, s7')
    a.e(f'v_lshrrev_b32 v{vXA}, 2, v{vO8}')
    a.e(f'v_lshlrev_b32 v{vXA}, 3, v{vXA}')
    a.e(f'v_and_b32 v0, 3, v{vO8}')
    a.e(f'v_add3_u32 v{vXA}, v{vXA}, v0, s6')
    a.e(f'v_lshl_add_u32 v{vXA}, v{vXA}, 5, s{sG}')
    a.e('s_movk_i32 s62, 1280')
    a.e(f'v_mad_u32_u24 v{vXA}, v{vXA}, s62, v{vSW}')
    a.e(f's_lshl_b32 s{sWK}, s{sWAVE}, 10')
    a.e(f's_lshl_b32 s{sROT}, s{sC}, 7' if OPT.get('rot', 1) else f's_mov_b32 s{sROT}, 0')
    a.e('s_waitcnt lgkmcnt(0)')
    a.stamp('karg')
    a.srd(sX, P_X, S * D * 2)

    def dma_x(kc):
        a.e(f's_add_u32 s99, s{sROT}, {kc * 128}')
        if kc >= 3:
            a.e('s_cmp_ge_u32 s99, 1280')
            a.e('s_cselect_b32 s18, 1280, 0')
            a.e('s_sub_u32 s99, s99, s18')
        a.e(f's_add_u32 m0, s{sWK}, {R1 + kc * 8192}')
        a.vmem(f'buffer_load_dwordx4 v{vXA}, {sr(sX, 4)}, s99 offen lds', ('c', 0 if kc < 4 else 1))

    for kc in range(4):
        dma_x(kc)
    a.srd(sW1, P_W1, D * F * 2)
    a.srd(sW2, P_W2, D * F * 2)
    a.srd(sWS, P_WS, WS_BYTES)
    a.srd(sOUT, P_OUT, S * D * 2)
    for kc in range(4, 10):
        dma_x(kc)
    a.e(f's_sub_u32 s6, 64, s{sG}')
    a.e(f's_cmp_eq_u32 s{sG}, 0')
    a.e(f's_cselect_b32 s{sTAU1}, 32, s6')
    a.e(f's_mul_i32 s6, s{sC}, 7')
    a.e('s_min_u32 s100, s6, 48')
    a.e('s_lshl_b32 s6, s100, 1')
    a.e(f's_lshl_b32 s7, s{sWAVE}, 1')
    a.e(f's_add_u32 s{sU1}, s6, s7')
    a.e(f's_min_u32 s{sU1}, s{sU1}, 106')
    a.e(f's_cmp_lt_u32 s{sC}, 6')
    a.e(f's_cselect_b32 s{sU2}, 7, 6')
    a.e(f's_mul_i32 s{sGCM}, s{sG}, 81920')
    a.e(f's_lshl_b32 s6, s{sG}, 3')
    a.e(f's_add_u32 s7, s6, s{sC}')
    a.e('s_lshl_b32 s7, s7, 3')
    a.e(f's_add_u32 s7, s7, s{sWAVE}')
    a.e('s_lshl_b32 s7, s7, 7')
    a.e(f's_add_u32 s{sFOWN}, s7, 0x{FLG:x}')
    a.e(f's_add_u32 s7, s6, s{sWAVE}')
    a.e(f's_lshl_b32 s{sFSRC}, s7, 10')
    a.e(f's_sub_u32 s{sPG}, 32, s{sG}')
    a.e(f's_and_b32 s{sPG}, s{sPG}, 31')
    a.e(f's_lshl_b32 s7, s{sPG}, 3')
    a.e(f's_add_u32 s7, s7, s{sWAVE}')
    a.e(f's_lshl_b32 s{sFPAR}, s7, 10')
    a.e(f's_mul_i32 s{sW1B}, s{sU1}, 20480')
    a.e(f's_cmp_ge_u32 s{sWAVE}, s{sU2}')
    a.e(f's_cselect_b32 s{sW1B}, 0x{OOB:x}, s{sW1B}')
    a.e(f's_getreg_b32 s{sXCC}, hwreg(HW_REG_XCC_ID)')
    a.e(f's_and_b32 s{sXCC}, s{sXCC}, 15')
    a.e(f's_mul_i32 s{sHG}, s{sG}, {216 * 1024}')
    a.e(f's_mul_i32 s{sW2O}, s{sC}, {54 * 5120}')
    a.e(f's_add_u32 s{sW2O}, s{sW2O}, 0x{W2F:x}')
    a.e(f's_mul_i32 s98, s{sWAVE}, 14')
    for i in range(8):
        a.e(f's_add_u32 s6, s{sWAVE}, {min(7 * i, 48)}')
        if i < 6:
            a.e(f's_sub_u32 s7, s98, {52 - (0, 1, 2, 7, 8, 9)[i]}')
            a.e(f's_cmp_ge_u32 s{sWAVE}, 4')
            a.e('s_cselect_b32 s6, s7, s6')
            a.e(f's_cmp_eq_u32 s{sWAVE}, 7')
            a.e(f's_cselect_b32 s6, {(46, 47, 52, 53, 0x40000, 0x40000)[i]}, s6')
        a.e('s_lshl_b32 s7, s6, 12')
        a.e(f's_add_u32 s{sHO + i}, s7, s{sHG}')
        a.e('s_mulk_i32 s6, 5120')
        a.e(f's_add_u32 s{sWO + i}, s6, s{sW2O}')
    a.e('v_lshlrev_b32 v3, 4, v8')
    a.e('v_lshl_add_u32 v3, v9, 10, v3')
    a.e(f'v_and_b32 v{vF0}, 7, v1')
    a.e(f'v_xor_b32 v{vF0}, v{vF0}, v9')
    a.e(f'v_lshlrev_b32 v{vF0}, 4, v{vF0}')
    a.e(f'v_lshl_add_u32 v{vF0}, v8, 7, v{vF0}')
    a.e(f'v_xor_b32 v{vF1}, 64, v{vF0}')

    a.e('v_mov_b32 v0, 0')
    a.lds(f'ds_write_b32 v0, v0 offset:{CNT0}', 'z')

    def side(job):
        if job == 'late':
            a.e(f's_mov_b32 s62, 0x{FLG + 0x40000:x}')
            a.vmem(f'buffer_load_dword v252, off, {sr(sWS, 4)}, s62 sc1', 'non')
            setflag(a, None, 5)
        if job == 'nonc':
            a.wait(vm='non')
            a.e(f'v_readfirstlane_b32 s{sNON}, v252')
            a.e(f's_add_u32 s{sNON}, s{sNON}, 16')
            a.e(f's_and_b32 s{sNON}, s{sNON}, -16')
            a.e(f's_bitset1_b32 s{sNON}, 31')

    def cnt0_add():
        a.e('v_mov_b32 v5, 0')
        a.e('v_mov_b32 v0, 1')
        a.e('s_mov_b64 exec, 1')
        a.lds(f'ds_add_u32 v5, v0 offset:{CNT0}', 'cnt')
        a.e('s_mov_b64 exec, -1')

    def cnt0_wait():
        L, Ld = a.newlab('Lcw'), a.newlab('Lcd')
        a.e('s_mov_b32 s61, 0')
        a.label(L)
        a.e('v_mov_b32 v5, 0')
        a.e(f'ds_read_b32 v5, v5 offset:{CNT0}')
        a.e('s_waitcnt lgkmcnt(0)')
        a.lg.clear()
        a.e('v_cmp_gt_u32 vcc, 8, v5')
        a.e(f's_cbranch_vccz {Ld}')
        a.e('s_sleep 1')
        a.e('s_add_u32 s61, s61, 1')
        a.e(f's_cmp_lt_u32 s61, {SPIN}')
        a.e(f's_cbranch_scc1 {L}')
        a.label(Ld)

    def first_barrier():
        a.stamp('p0iss')
        a.wait(vm=('c', 0), lg='all')
        a.e('s_barrier')
        a.stamp('p0c0')

    def mainloop(read, mfma, la, pre=None):
        a.e(f'v_add_u32 v250, 40960, v248')
        a.e(f'v_add_u32 v251, 40960, v249')
        first_barrier()
        if pre:
            a.wait(vm=('c', 1))
            cnt0_add()
            pre()
            side('late')
        for j in range(la):
            for f in read(j):
                f()
        for j in range(20):
            if j == OPT.get('p0a', 2) and not pre:
                a.wait(vm=('c', 1))
                cnt0_add()
                side('late')
            if j + la == 8:
                cnt0_wait()
                a.stamp('p0c2')
            a.wait(lg=('f', j))
            weave(a, mfma(j), read(j + la) if j + la < 20 else [])
        side('nonc')

    def xoff(j, rt):
        return 248 + j % 2 + (2 if j >= 10 else 0), ((j // 2) % 5) * 8192 + rt * 2048

    Lstat, Lcol, Lj0 = a.newlab('Lp0s'), a.newlab('Lp0c'), a.newlab('Lp0j')
    a.e(f's_cmp_eq_u32 s{sWAVE}, 7')
    a.e(f's_cbranch_scc1 {Lcol}')
    a.e(f's_cmp_ge_u32 s{sWAVE}, 5')
    a.e(f's_cbranch_scc1 {Lstat}')
    st0 = a.save()
    ACC, FR, DG, TG = 16, 32, 112, 192
    for r in range(4):
        a.e(f'v_mov_b32 v{TG + 16 + r}, 0x3f803f80')
    gen_D(a, lambda ks: DG + 4 * ks, TG, sROT)
    for ks in range(20):
        a.e(f'v_mfma_f32_16x16x32_bf16 v[{TG + 20}:{TG + 23}], {vr(TG + 16, 4)}, {vr(DG + 4 * ks, 4)}, {"0" if ks == 0 else vr(TG + 20, 4)}')
    a.e(f'v_add_u32 v248, {R1}, v{vF0}')
    a.e(f'v_add_u32 v249, {R1}, v{vF1}')
    a.e(f'v_mov_b32 v14, v{TG + 20}')

    def read_c(j):
        return [lambda rt=rt: a.lds(f'ds_read_b128 {vr(FR + 16 * (j % 4) + 4 * rt, 4)}, v{xoff(j, rt)[0]} offset:{xoff(j, rt)[1]}', ('f', j)) for rt in range(4)]

    def mfma_c(j):
        return [f'v_mfma_f32_16x16x32_bf16 {vr(ACC + 4 * rt, 4)}, {vr(FR + 16 * (j % 4) + 4 * rt, 4)}, {vr(DG + 4 * j, 4)}, {"0" if j == 0 else vr(ACC + 4 * rt, 4)}' for rt in range(4)]

    mainloop(read_c, mfma_c, 3)
    WF, RSr, MRr = 32, [192, 196, 200, 204], [208, 212, 216, 220]
    wf0 = lambda mat, tt, ks: WF + ((mat * 4 + tt) * 2 + ks) * 4
    for tt in range(4):
        for ks in range(2):
            for mat in range(2):
                a.lds(f'ds_read_b128 {vr(wf0(mat, tt, ks), 4)}, v2 offset:{W1L + ((mat * 4 + tt) * 2 + ks) * 1024}', 'wf')
    a.e('v_lshlrev_b32 v12, 4, v9')
    a.stamp('p0end')
    a.e('s_barrier')
    for rt in range(4):
        a.lds(f'ds_read_b128 {vr(RSr[rt], 4)}, v12 offset:{RS + rt * 64}', 'st')
        a.lds(f'ds_read_b128 {vr(MRr[rt], 4)}, v12 offset:{MR + rt * 64}', 'st')
    stage1(a, ACC, RSr, MRr, 96, wf0, VT0)
    stC = a.save()
    a.e(f's_branch {Lj0}')

    a.label(Lstat)
    a.restore(st0)
    AS, AM, ONE, FS = 24, 32, 40, 44
    for r in range(4):
        a.e(f'v_mov_b32 v{ONE + r}, 0x3f803f80')
    a.e(f's_sub_u32 s60, s{sWAVE}, 5')
    a.e('s_lshl_b32 s60, s60, 12')
    a.e(f's_add_u32 s6, s60, {R1}')
    a.e(f'v_add_u32 v248, s6, v{vF0}')
    a.e(f'v_add_u32 v249, s6, v{vF1}')

    for n in range(3):
        a.e(f'v_add_u32 v0, {n * 64}, v1')
        a.e('v_mul_u32_u24 v7, 5462, v0')
        a.e('v_lshrrev_b32 v7, 16, v7')
        a.e('v_mul_u32_u24 v5, 12, v7')
        a.e('v_sub_u32 v0, v0, v5')
        a.e(f's_mul_i32 s6, s{sC}, 5')
        a.e('s_sub_u32 s7, 70, s6')
        a.e('v_add_u32 v5, s6, v0')
        a.e('v_add_u32 v6, s7, v0')
        a.e('v_cmp_le_u32 vcc, 5, v0')
        a.e('v_cndmask_b32 v5, v5, v6, vcc')
        a.e('v_cmp_eq_u32 vcc, 80, v5')
        a.e('v_cndmask_b32 v5, v5, 0, vcc')
        a.e('v_cmp_eq_u32 vcc, 11, v0')
        a.e('v_cndmask_b32 v5, v5, 40, vcc')
        a.e(f'v_mul_u32_u24 v7, {64 * 1280}, v7')
        a.e(f'v_lshl_add_u32 v{120 + n}, v5, 4, v7')

    a.e(f's_cmp_eq_u32 s{sWAVE}, 6')
    a.e(f's_cselect_b32 s98, 0.5, 0x{fbits(0.25):08x}')
    a.e(f's_cselect_b32 s99, s{sTAU1}, s{sG}')
    a.e('s_lshl_b32 s6, s60, 1')
    a.e('v_add_u32 v99, s6, v2')
    gen_W1(a, 0, W1L, 80, (0,), 98)

    def stage0():
        a.e('s_mul_i32 s64, s99, 1280')
        a.e(f's_mul_i32 s6, s60, 3')
        a.e('s_lshr_b32 s6, s6, 1')
        for n in range(6):
            if n == 3:
                a.e(f's_add_u32 s64, s64, {16 * 64 * 1280}')
            a.e(f's_add_u32 m0, s6, {XRL0 + n * 1024}')
            a.vmem(f'buffer_load_dwordx4 v{120 + n % 3}, {sr(sX, 4)}, s64 offen lds', 'stg')

    def read_s(j):
        return [lambda rt=rt: a.lds(f'ds_read_b128 {vr(FS + 8 * (j % 4) + 4 * rt, 4)}, v{xoff(j, rt)[0]} offset:{xoff(j, rt)[1]}', ('f', j)) for rt in range(2)]

    def mfma_s(j):
        out = []
        for rt in range(2):
            f = vr(FS + 8 * (j % 4) + 4 * rt, 4)
            out.append(f'v_mfma_f32_16x16x32_bf16 {vr(AS + 4 * rt, 4)}, {f}, {f}, {"0" if j == 0 else vr(AS + 4 * rt, 4)}')
            out.append(f'v_mfma_f32_16x16x32_bf16 {vr(AM + 4 * rt, 4)}, {f}, {vr(ONE, 4)}, {"0" if j == 0 else vr(AM + 4 * rt, 4)}')
        return out

    mainloop(read_s, mfma_s, 3, stage0)
    a.e('s_lshr_b32 s6, s60, 5')
    stats_finalize(a, AS, AM, 2, 12, 64, MR - RS, 'rs_mr')
    a.wait(lg='all')
    a.stamp('p0end')
    a.e('s_barrier')
    a.e(f's_add_u32 s6, s60, {TWL0}')
    a.e('v_add_u32 v95, s6, v2')
    gen_TW(a, 80, 99, 95, 0)
    a.e(f's_branch {Lj0}')

    a.label(Lcol)
    a.restore(st0)
    a.e('s_movk_i32 s7, 1120')
    for n in range(5):
        a.e(f'v_add_u32 v0, {64 * n}, v1')
        a.e('v_mul_u32_u24 v5, 6554, v0')
        a.e('v_lshrrev_b32 v5, 16, v5')
        a.e('v_lshlrev_b32 v0, 4, v0')
        a.e(f'v_mad_u32_u24 v{120 + n}, v5, s7, v0')
    a.e(f's_mul_i32 s6, s{sG}, 40960')
    a.e(f's_mul_i32 s7, s{sC}, 160')
    a.e('s_add_u32 s6, s6, s7')
    a.e(f's_add_u32 s7, s6, {32 * 40960}')
    for t in range(2):
        for n in range(5):
            a.e(f's_mov_b32 m0, {W2S + t * 5120 + n * 1024}')
            a.vmem(f'buffer_load_dwordx4 v{120 + n}, {sr(sW2, 4)}, s{6 + t} offen lds', 'wsh')
    WA = 128
    a.e(f's_and_b32 s6, s{sG}, 7')
    a.e('s_mul_i32 s98, s6, 5')
    a.e('s_mul_i32 s99, s6, 10')
    a.e('s_add_u32 s99, s99, 4')
    a.e(f's_bfe_u32 s7, s{sG}, 0x10003')
    a.e(f's_cmp_ge_u32 s{sG}, 16')
    a.e('s_cselect_b64 s[76:77], -1, 0')
    for n in range(7):
        a.e(f'v_add_u32 v0, {64 * n}, v1')
        a.e('v_mul_u32_u24 v5, 4682, v0')
        a.e('v_lshrrev_b32 v5, 16, v5')
        a.e('v_mul_u32_u24 v6, 14, v5')
        a.e('v_sub_u32 v0, v0, v6')
        a.e('v_lshrrev_b32 v6, 3, v5')
        a.e('v_add_u32 v7, s98, v6')
        a.e('v_lshrrev_b32 v11, 1, v6')
        a.e('v_mad_u32_u24 v11, v11, 5, s99')
        a.e('v_mov_b32 v12, s7')
        a.e('v_and_b32 v6, 1, v6')
        a.e('v_cndmask_b32 v7, v7, v11, s[76:77]')
        a.e('v_cndmask_b32 v6, v12, v6, s[76:77]')
        a.e('v_and_b32 v5, 7, v5')
        a.e('v_lshl_add_u32 v5, v7, 3, v5')
        a.e('v_sub_u32 v7, 640, v5')
        a.e('v_cmp_eq_u32 vcc, 1, v6')
        a.e('v_cndmask_b32 v5, v5, v7, vcc')
        if n == 0:
            a.e('v_mov_b32 v6, 320')
            a.e('v_cmp_eq_u32 vcc, 0, v5')
            a.e('v_cndmask_b32 v5, v5, v6, vcc')
            a.e('v_cmp_eq_u32 vcc, 640, v5')
            a.e('v_cndmask_b32 v5, v5, 0, vcc')
        a.e('v_and_b32 v5, 0x3ff, v5')
        a.e('v_mul_u32_u24 v5, 3456, v5')
        a.e(f'v_lshl_add_u32 v{WA + n}, v0, 4, v5')

    def w1_in():
        a.e('s_lshl_b32 s7, s100, 6')
        a.e(f's_cmp_lt_u32 s{sG}, 20')
        a.e(f's_cselect_b32 s7, s7, 0x{OOB:x}')
        a.e('s_add_u32 s6, s7, 224')
        for t in range(2):
            for n in range(7):
                a.e(f's_mov_b32 m0, {WP1 + t * 7168 + n * 1024}')
                a.vmem(f'buffer_load_dwordx4 v{WA + n}, {sr(sW1, 4)}, s{7 - t} offen lds', ('wsh1', t))
    if OPT.get('w1e', 1):
        w1_in()
    first_barrier()
    if not OPT.get('w1e', 1):
        w1_in()
    a.wait(vm=('c', 1))
    cnt0_add()
    side('late')

    def w2_out():
        a.e('v_bfe_u32 v5, v1, 2, 2')
        a.e('v_lshl_add_u32 v5, v9, 3, v5')
        a.e('v_mul_u32_u24 v5, 160, v5')
        a.e('v_and_b32 v0, 3, v1')
        a.e('v_lshl_add_u32 v5, v0, 3, v5')
        a.e(f'v_add_u32 v5, {W2S}, v5')
        a.wait(vm='wsh')
        for u in range(10):
            for rd in range(2):
                a.lds(f'ds_read_b64_tr_b16 {vr(136 + 4 * u + 2 * rd, 2)}, v5 offset:{(u // 5) * 5120 + (u % 5) * 32 + rd * 640}', ('pf', u))
        a.e(f's_mul_i32 s6, s{sC}, 54')
        a.e(f's_add_u32 s6, s6, s{sG}')
        a.e('s_mul_i32 s6, s6, 5120')
        a.e(f's_add_u32 s6, s6, 0x{W2F:x}')
        for u in range(10):
            if u == 5:
                a.e(f's_cmp_ge_u32 s{sG}, 22')
                a.e(f's_cselect_b32 s6, 0x{OOB:x}, s6')
            a.wait(lg=('pf', u))
            a.e(f's_add_u32 s7, s6, {(u // 5) * 32 * 5120 + (u % 5) * 1024}')
            a.vmem(f'buffer_store_dwordx4 {vr(136 + 4 * u, 4)}, v2, {sr(sWS, 4)}, s7 offen sc1', 'w2o')

    w2_out()
    side('nonc')
    W1B = OPT.get('w1b', 1)

    def bar7():
        a.stamp('p0end')
        a.e('s_barrier')
    if not W1B:
        a.wait(vm='w2o')
        setflag(a, PH_V[0], 5)
        bar7()
    Lw1 = a.newlab('Lw1')
    a.e(f's_cmp_ge_u32 s{sG}, 20')
    a.e(f's_cbranch_scc1 {Lw1}')
    st = a.save()
    for t in range(2):
        a.e('v_bfe_u32 v5, v1, 2, 2')
        a.e('v_lshl_add_u32 v5, v9, 3, v5')
        a.e('v_mul_u32_u24 v5, 224, v5')
        a.e('v_and_b32 v0, 3, v1')
        a.e('v_lshl_add_u32 v5, v0, 3, v5')
        a.e(f'v_add_u32 v5, {WP1 + t * 7168}, v5')
        a.e(f's_mov_b32 s60, {7 * t}')
        a.wait(vm=('wsh1', t))
        for u in range(7):
            for rd in range(2):
                a.lds(f'ds_read_b64_tr_b16 {vr(16 + 4 * u + 2 * rd, 2)}, v5 offset:{rd * 4 * 224 + u * 32}', ('pf', u))
        a.e('s_lshl_b32 s6, s100, 1')
        a.e('s_add_u32 s60, s60, s6')
        a.e('s_mul_i32 s6, s60, 20')
        a.e(f's_add_u32 s6, s6, s{sG}')
        a.e('s_lshl_b32 s6, s6, 10')
        a.e(f's_mov_b32 s98, s{sC}' if t else 's_mov_b32 s98, 0')
        a.e('s_mov_b32 s99, 0x3f803f80')
        for u in range(7):
            a.wait(lg=('pf', u))
            a.e(f's_add_u32 s7, s6, {W1F + u * 20480}')
            if u >= 5:
                a.e('s_cmp_ge_u32 s98, 6')
                a.e(f's_cselect_b32 s7, 0x{OOB:x}, s7')
            a.vmem(f'buffer_store_dwordx4 {vr(16 + 4 * u, 4)}, v2, {sr(sWS, 4)}, s7 offen sc1', 'w1o')
            a.e(f'v_mov_b32 v{48 + u}, 0')
        a.e('v_mov_b32 v55, 0')
        for d in range(4):
            for u in range(7):
                a.e(f'v_dot2_f32_bf16 v{48 + u}, v{16 + 4 * u + d}, s99, v{48 + u}')
        a.e('s_nop 3')
        for u in range(0, 8, 2):
            a.e(f'v_permlane16_swap_b32 v{48 + u}, v{49 + u}')
        for u in range(0, 8, 2):
            a.e(f'v_add_f32 v{48 + u}, v{48 + u}, v{49 + u}')
        for u in (0, 4):
            a.e(f'v_permlane32_swap_b32 v{48 + u}, v{50 + u}')
        for u in (0, 4):
            a.e(f'v_add_f32 v{48 + u}, v{48 + u}, v{50 + u}')
        a.e(f's_mul_i32 s6, s{sG}, 6912')
        a.e('s_lshl_b32 s7, s60, 6')
        a.e('s_add_u32 s6, s6, s7')
        a.e(f's_add_u32 s6, s6, 0x{CSP:x}')
        a.e('v_lshlrev_b32 v5, 2, v1')
        a.vmem(f'buffer_store_dword v48, v5, {sr(sWS, 4)}, s6 offen sc1', 'w1o')
        a.e('s_cmp_ge_u32 s98, 6')
        a.e('s_cselect_b32 exec_lo, 0xffff, -1')
        a.e('s_cselect_b32 exec_hi, 0, 0xffff')
        a.vmem(f'buffer_store_dword v52, v5, {sr(sWS, 4)}, s6 offen offset:256 sc1', 'w1o')
        a.e('s_mov_b64 exec, -1')
    if W1B:
        a.wait(vm='w2o')
        Lw3 = a.newlab('Lw3')
        a.e(f's_branch {Lw3}')
    a.restore(st)
    a.label(Lw1)
    if W1B:
        a.wait(vm='w2o')
        a.label(Lw3)
        setflag(a, PH_V[0], 5)
        bar7()
    a.label(Lj0)
    a.e('s_nop 1')
    a.restore(stC)
    v_out_addr(a)
    if EW:
        a.e(f's_lshl_b32 s67, s{sC}, 10')
        a.e('s_add_u32 s67, s67, 896')
        pW = (253, 67, PH_V[0], 32, 13)
    a.wait(lg='all')
    a.e('s_barrier')
    a.stamp('p0vt')
    v_out(a, 0, VT0, 64)
    a.stamp('vo0')


    LSC = ' sc1'

    def xstore(text, tag, local):
        if not local:
            a.vmem(text + ' sc1', tag)
            return
        L, Lj = a.newlab('Lst'), a.newlab('Lsj')
        a.e('s_cmp_eq_u32 s26, 0')
        a.e(f's_cbranch_scc1 {L}')
        a.e(text + ' sc1')
        a.e(f's_branch {Lj}')
        a.label(L)
        a.vmem(text, tag)
        a.label(Lj)
        a.e('s_nop 1')

    def warm(vd, sbase, add, n, step=8192, lanes=None):
        a.e('v_lshlrev_b32 v0, 7, v1')
        for k in range(n):
            a.e(f's_add_u32 s64, s{sbase}, 0x{add + k * step:x}')
            a.vmem(f'buffer_load_dword v{vd}, v0, {sr(sWS, 4)}, s64 offen sc1', 'warm')

    LP = OPT.get('lp', 8)
    if LP:
        X1B[1] = X1B[0]
        HB[1] = HB[0]

    def w1load(n):
        a.e(f's_add_u32 s64, s{sW1B}, {n * 1024}')
        a.vmem(f'buffer_load_dwordx4 {vr(RING[n % NR], 4)}, v2, {sr(sWS, 4)}, s64 offen sc1', ('w1', n))

    def stash(n):
        a.e(f's_add_u32 m0, s69, {(n % NST) * 1024}')
        a.e(f's_add_u32 s64, s{sW1B}, {20480 + n * 1024}')
        a.vmem(f'buffer_load_dwordx4 v2, {sr(sWS, 4)}, s64 offen sc1 lds', ('ws', n))

    def w2load(f):
        if f % 5 == 4:
            a.e(f's_add_u32 s64, s{sWO + f // 5}, 4096')
            a.vmem(f'buffer_load_dwordx4 {vr(w2reg(f), 4)}, v2, {sr(sWS, 4)}, s64 offen sc1', ('w2', f))
        else:
            a.vmem(f'buffer_load_dwordx4 {vr(w2reg(f), 4)}, v2, {sr(sWS, 4)}, s{sWO + f // 5} offen offset:{(f % 5) * 1024} sc1', ('w2', f))

    def dest_row(vd):
        a.e(f's_lshl_b32 s6, s{sRHO}, 5')
        a.e(f'v_add_u32 v{vd}, s6, v10')
        a.e(f'v_sub_u32 v11, 63, v{vd}')
        a.e('v_sub_u32 v12, 32, v10')
        a.e('v_and_b32 v12, 31, v12')
        a.e('v_sub_u32 v13, 63, v10')
        a.e(f's_cmp_eq_u32 s{sRHO}, 0')
        a.e('s_cselect_b64 vcc, -1, 0')
        a.e('v_cndmask_b32 v12, v13, v12, vcc')
        a.e(f's_cmp_eq_u32 s{sG}, 0')
        a.e('s_cselect_b64 vcc, -1, 0')
        a.e('v_cndmask_b32 v11, v11, v12, vcc')
        a.e(f's_cmp_eq_u32 s{sMIR}, 1')
        a.e('s_cselect_b64 vcc, -1, 0')
        a.e(f'v_cndmask_b32 v{vd}, v{vd}, v11, vcc')

    def w1_touch(vd, t0, t1):
        a.e('v_min_u32 v0, 23, v10')
        a.e('v_lshlrev_b32 v0, 7, v0')
        a.e('s_movk_i32 s7, 20480')
        a.e('v_mad_u32_u24 v0, v4, s7, v0')
        a.e('s_and_b32 s6, s101, 3')
        a.e('s_mul_i32 s6, s6, 3072')
        a.e('s_mul_i32 s7, s100, 40960')
        a.e('s_add_u32 s6, s6, s7')
        for t in range(t0, t1):
            a.e(f's_add_u32 s7, s6, {W1F + 8192 + t * 40960}')
            a.vmem(f'buffer_load_dword v{vd}, v0, {sr(sWS, 4)}, s7 offen sc1', 'touch')

    def stage_all():
        a.e('v_mul_u32_u24 v0, 40960, v4')
        a.e('v_lshl_add_u32 v0, v10, 4, v0')
        a.e(f's_mul_i32 s6, s{sC}, 2560')
        a.e(f's_add_u32 s62, s{sGCM}, 0x{X2B:x}')
        for p in range(12):
            if p < 5:
                a.e(f's_add_u32 s64, s6, {p * 512}')
            elif p < 11:
                a.e(f's_sub_u32 s64, {(70 + p) * 512}, s6')
                if p == 10:
                    a.e(f's_cmp_eq_u32 s{sC}, 0')
                    a.e('s_cselect_b32 s64, 0, s64')
            else:
                a.e(f's_movk_i32 s64, {40 * 512}')
            a.e('s_add_u32 s64, s64, s62')
            a.e(f's_mov_b32 m0, {XRL1 + p * 1024}')
            a.vmem(f'buffer_load_dwordx4 v0, {sr(sWS, 4)}, s64 offen sc1 lds', 'xrd')

    def a2_pre(l, hook=lambda: None, mid=lambda: None):
        xb, A, shB, twb = ((XRL0, 192, 4, TWL0), (XRL1, 16, 10, TWL1))[l]
        dest_row(5)
        a.e('v_bfe_u32 v11, v1, 2, 1')
        a.e('v_and_b32 v12, 1, v1')
        a.e('v_lshlrev_b32 v12, 4, v12')
        a.e('v_mov_b32 v13, 0x3f80')
        a.e('v_lshlrev_b32 v12, v12, v13')
        a.e('v_cmp_eq_u32 vcc, v11, v4')
        a.e('v_cndmask_b32 v12, 0, v12, vcc')
        a.e('v_bfe_u32 v13, v1, 1, 1')
        a.e('v_bfe_u32 v11, v1, 3, 2')
        a.e('v_lshl_add_u32 v13, v11, 1, v13')
        for r in range(8):
            a.e(f'v_cmp_eq_u32 vcc, {r}, v13')
            a.e(f'v_cndmask_b32 v{ID + r}, 0, v12, vcc')
        mid()
        a.e(f'v_mul_u32_u24 v7, {A}, v5')
        a.e(f'v_add_u32 v7, {xb}, v7')
        a.e(f's_lshl_b32 s6, s{sKT}, 2')
        a.e(f's_cmp_eq_u32 s{sMIR}, 1')
        a.e('s_cselect_b64 s[76:77], -1, 0')
        a.e(f's_cmp_eq_u32 s{sC}, 0')
        a.e('s_cselect_b32 s7, 11, 0')
        for h in range(2):
            a.e(f'v_add3_u32 v11, v4, s6, {2 * h}')
            a.e('v_min_u32 v11, 4, v11')
            a.e('v_sub_u32 v12, 9, v11')
            a.e('v_cndmask_b32 v12, v11, v12, s[76:77]')
            a.e(f'v_lshl_add_u32 v12, v12, {shB}, v7')
            a.lds(f'ds_read_b128 {vr(XM + 4 * h, 4)}, v12', 'xr')
            a.e('v_mov_b32 v13, s7')
            a.e('v_cmp_eq_u32 vcc, 0, v11')
            a.e('v_cndmask_b32 v13, v11, v13, vcc')
            a.e('v_sub_u32 v12, 10, v11')
            a.e('v_cndmask_b32 v12, v13, v12, s[76:77]')
            a.e(f'v_lshl_add_u32 v12, v12, {shB}, v7')
            a.lds(f'ds_read_u16 v{XE + h}, v12', 'xr')
        hook()
        a.wait(lg='xr')
        Lr, Lj = a.newlab('Lxr'), a.newlab('Lxj')
        a.e('v_mov_b32 v11, 0xffff')
        a.e(f's_cmp_eq_u32 s{sMIR}, 1')
        a.e(f's_cbranch_scc1 {Lr}')
        for k in range(2):
            m, o = XM + 4 * k, XR + 4 * k
            a.e(f'v_bfi_b32 v{o}, v11, v{XE + k}, v{m}')
            for d in range(1, 4):
                a.e(f'v_mov_b32 v{o + d}, v{m + d}')
        a.e(f's_branch {Lj}')
        a.label(Lr)
        for k in range(2):
            m, o = XM + 4 * k, XR + 4 * k
            a.e(f'v_bfi_b32 v{o}, v11, v{XE + k}, v{m + 3}')
            a.e(f'v_bfi_b32 v{o + 1}, v11, v{m + 3}, v{m + 2}')
            a.e(f'v_bfi_b32 v{o + 2}, v11, v{m + 2}, v{m + 1}')
            a.e(f'v_bfi_b32 v{o + 3}, v11, v{m + 1}, v{m}')
        a.label(Lj)
        a.e(f's_lshl_b32 s6, s{sRHO}, 12')
        a.e(f's_add_u32 s6, s6, {twb}')
        a.e('v_add_u32 v11, s6, v2')
        for ks in range(4):
            a.lds(f'ds_read_b128 {vr(TW + 4 * ks, 4)}, v11 offset:{ks * 1024}', 'tw')
        a.e(f'v_mfma_f32_32x32x16_bf16 {vr(Y, 16)}, {vr(ID, 4)}, {vr(XR, 4)}, 0')
        a.e(f'v_mfma_f32_32x32x16_bf16 {vr(Y, 16)}, {vr(ID + 4, 4)}, {vr(XR + 4, 4)}, {vr(Y, 16)}')
        hook()
        a.e(f's_lshl_b32 s6, s{sC}, 2')
        a.e(f's_lshl_b32 s7, s{sMIR}, 5')
        a.e('s_add_u32 s6, s6, s7')
        a.e(f's_lshl_b32 s7, s{sC}, 1')
        a.e(f's_add_u32 s7, s7, s{sMIR}')
        a.e('s_add_u32 s7, s7, 64')
        a.e(f's_cmp_eq_u32 s{sKT}, 0')
        a.e('s_cselect_b32 s6, s6, s7')
        a.e('s_lshl_b32 s6, s6, 10')
        a.e('v_lshlrev_b32 v5, 4, v5')
        a.e('v_lshl_add_u32 v5, v4, 10, v5')
        a.e('v_add_u32 v5, s6, v5')
        a.e(f'v_add_u32 v6, {R1}, v5')
        a.e('s_cmp_eq_u32 s6, 32768')
        a.e('s_cselect_b32 s6, 0xffff, 0')
        a.e('v_mov_b32 v12, s6')
        a.e('v_cmp_eq_u32 vcc, 0, v4')
        a.e('v_cndmask_b32 v12, 0, v12, vcc')
        a.e('v_bfe_u32 v13, v1, 2, 2')
        a.e('v_lshl_add_u32 v13, v4, 3, v13')
        a.e('v_mul_u32_u24 v13, 192, v13')
        a.e('v_bfe_u32 v11, v1, 4, 1')
        a.e('v_lshlrev_b32 v11, 1, v11')
        a.e('v_and_b32 v0, 1, v1')
        a.e(f's_lshl_b32 s7, s{sKT}, 2')
        a.e('v_add3_u32 v11, v11, v0, s7')
        a.e('v_min_u32 v11, 4, v11')
        a.e('v_lshl_add_u32 v13, v11, 4, v13')
        a.e('v_bfe_u32 v11, v1, 1, 1')
        a.e('v_lshl_add_u32 v13, v11, 3, v13')
        a.e(f's_mul_i32 s6, s{sRHO}, 6144')
        a.e('s_add_u32 s6, s6, s58')
        a.e('v_add_u32 v13, s6, v13')
        a.e(f'v_mov_b32 v11, v{XR}')
        hook()
        a.wait(lg='tw')

    def reduce_addr(l, second):
        a.e(f's_add_u32 s6, s{sWAVE}, {8 if second else 0}')
        a.e('s_cmp_ge_u32 s6, 5')
        a.e('s_cselect_b32 s7, 5, 0')
        a.e(f's_cselect_b32 s62, 0, {R1}')
        if l == 0:
            a.e('s_cselect_b32 s65, 40960, 0')
        else:
            a.e(f's_cselect_b32 s65, s{sTAU1}, s{sG}')
        a.e('s_sub_u32 s6, s6, s7')
        a.e('s_lshl_b32 s7, s6, 10')
        a.e('s_add_u32 s62, s62, s7')
        a.e('v_lshrrev_b32 v11, 4, v10')
        a.e('v_mul_u32_u24 v11, 5120, v11')
        a.e('v_lshl_add_u32 v11, v4, 9, v11')
        a.e('v_lshl_add_u32 v11, v8, 4, v11')
        a.e('v_add_u32 v11, s62, v11')
        a.e(f'v_add_u32 v13, {5 * PRV}, v11')
        a.e('s_lshl_b32 s6, s6, 1')
        a.e(f's_mul_i32 s7, s{sC}, 10')
        a.e('s_add_u32 s6, s6, s7')
        a.e('v_add_u32 v7, s6, v4')
        if l == 0:
            a.e('v_lshlrev_b32 v7, 9, v7')
            a.e('v_lshl_add_u32 v7, v10, 4, v7')
            a.e(f's_add_u32 s65, s65, s{sGCM}')
            a.e(f's_add_u32 s65, s65, 0x{X2B:x}')
        else:
            a.e('v_lshlrev_b32 v7, 4, v7')
            a.e(f's_mov_b32 s7, {64 * 1280}')
            a.e('v_mad_u32_u24 v7, v10, s7, v7')
            a.e('s_mulk_i32 s65, 1280')

    def reduce_item(l):
        SUM, RB = 56, 64
        for h in range(2):
            a.lds(f'ds_read_b128 {vr(SUM + 4 * h, 4)}, v11 offset:{h * 256}', ('p', 0))
        for p in range(1, 7):
            for h in range(2):
                b, o = (11, p * PRV) if p < 5 else (13, (p - 5) * PRV)
                a.lds(f'ds_read_b128 {vr(RB + 8 * (p - 1) + 4 * h, 4)}, v{b} offset:{o + h * 256}', ('p', p))
        for p in range(1, 8):
            a.wait(lg=('p', p))
            for r in range(0, 8, 2):
                a.e(f'v_pk_add_f32 {vr(SUM + r, 2)}, {vr(SUM + r, 2)}, {vr(RB + 8 * ((p - 1) % 6) + r, 2)}')
            if p == 1:
                for h in range(2):
                    a.lds(f'ds_read_b128 {vr(RB + 4 * h, 4)}, v13 offset:{2 * PRV + h * 256}', ('p', 7))
        for r in range(4):
            a.e(f'v_cvt_pk_bf16_f32 v{SUM + r}, v{SUM + 2 * r}, v{SUM + 2 * r + 1}')
        if l == 0:
            a.vmem(f'buffer_store_dwordx4 {vr(SUM, 4)}, v7, {sr(sWS, 4)}, s65 offen sc1', 'xst')
        else:
            a.vmem(f'buffer_store_dwordx4 {vr(SUM, 4)}, v7, {sr(sOUT, 4)}, s65 offen', 'xst')

    def lin(n, sl, lds_add, ssrc, src_add, tag):
        for k in range(n):
            if k % 4 == 0:
                a.e(f's_add_u32 m0, s{sl}, {lds_add + k * 1024}')
                a.e(f's_add_u32 s64, s{ssrc}, 0x{src_add + k * 1024:x}')
            a.vmem(f'buffer_load_dwordx4 v2, {sr(sWS, 4)}, s64 offen offset:{(k % 4) * 1024} sc1 lds', tag)

    def cnt_add(addr, vt):
        a.e(f'v_mov_b32 v{vt}, {addr}')
        a.e('v_mov_b32 v0, 1')
        a.e('s_mov_b64 exec, 1')
        a.lds(f'ds_add_u32 v{vt}, v0', 'cnt')
        a.e('s_mov_b64 exec, -1')

    def cnt_peek(addr, vt):
        a.e(f'v_mov_b32 v{vt}, {addr}')
        a.lds(f'ds_read_b32 v{vt}, v{vt}', 'peek')

    def cnt_wait(addr, vt, peeked=False):
        L, Ld = a.newlab('Lcw'), a.newlab('Lcd')
        if peeked:
            a.wait(lg='peek')
            a.e(f'v_cmp_gt_u32 vcc, 8, v{vt}')
            a.e(f's_cbranch_vccz {Ld}')
            st = a.save()
        a.e('s_mov_b32 s61, 0')
        a.label(L)
        a.e(f'v_mov_b32 v{vt}, {addr}')
        a.e(f'ds_read_b32 v{vt}, v{vt}')
        a.e('s_waitcnt lgkmcnt(0)')
        a.lg.clear()
        a.e(f'v_cmp_gt_u32 vcc, 8, v{vt}')
        a.e(f's_cbranch_vccz {Ld}')
        a.e('s_sleep 1')
        a.e('s_add_u32 s61, s61, 1')
        a.e(f's_cmp_lt_u32 s61, {SPIN}')
        a.e(f's_cbranch_scc1 {L}')
        a.label(Ld)
        if peeked:
            a.restore(st)

    GO, DONE = STATS + 528, STATS + 544

    def sig_set(base, vt):
        a.e(f'v_mov_b32 v{vt}, s56')
        a.lds(f'ds_write_b32 v{vt}, v{vt} offset:{base - 4}', 'sig')

    def sig_wait(base, vt, slp):
        L, Ld = a.newlab('Lgw'), a.newlab('Lgd')
        a.e('s_mov_b32 s61, 0')
        a.label(L)
        a.e(f'v_mov_b32 v{vt}, s56')
        a.e(f'ds_read_b32 v{vt}, v{vt} offset:{base - 4}')
        a.e('s_waitcnt lgkmcnt(0)')
        a.lg.clear()
        a.e(f'v_cmp_eq_u32 vcc, 0, v{vt}')
        a.e(f's_cbranch_vccz {Ld}')
        a.e(f's_sleep {slp}')
        a.e('s_add_u32 s61, s61, 1')
        a.e(f's_cmp_lt_u32 s61, {SPIN}')
        a.e(f's_cbranch_scc1 {L}')
        a.label(Ld)

    bg = BG()
    a.e(f's_mul_i32 s68, s{sWAVE}, 5120')
    a.e(f's_mul_i32 s69, s{sWAVE}, {PRV}')
    a.e(f's_cmp_lt_u32 s{sC}, 4')
    a.e('s_cselect_b32 s58, 16384, 0')
    a.e(f's_add_u32 s58, s58, {R1 + 32768}')
    def pv0():
        poll_issue(a, *pW)
        a.wait(vm='vo')
        a.e('s_barrier')
        a.stamp('PV0')
        setflag_w0(a, PH_V[0], 7)
        poll_check(a, *pW)
        a.stamp('pollW')
        for f in range(30):
            bg.add(lambda f=f: w2load(f))
    a2_pre(0, lambda: bg.run(OPT.get('bgw2', 5)), pv0)

    for l in range(2):
        a.e(f's_lshl_b32 s67, s{sWAVE}, 15')
        a.e(f's_lshl_b32 s6, s{sC}, 10')
        a.e('s_add_u32 s67, s67, s6')
        pV = (7, 67, PH_V[l], 4, 13)
        bg.run(OPT.get('bgpv', 0))
        poll_issue(a, *pV)
        bg.run(OPT.get('bgpv2', 0))
        poll_check(a, *pV)
        if l == 0:
            def id_issue():
                a.e(f'v_mov_b32 v72, s{sFSRC}')
                a.e(f'v_mov_b32 v73, s{sFPAR}')
                a.e('v_cmp_eq_u32 vcc, 0, v1')
                a.e('v_cndmask_b32 v72, v73, v72, vcc')
                a.e(f's_mov_b32 s60, 0x{FLG:x}')
                a.vmem(f'buffer_load_dwordx2 v[72:73], v72, {sr(sWS, 4)}, s60 offen sc1', 'ids')
        a.stamp(f'pollV{l}')
        a.e(f's_mul_i32 s63, s{sWAVE}, 768')
        a.e('s_add_u32 s62, s63, s58')
        a.e('s_mov_b32 exec_hi, 0xffff')
        for rho in range(2):
            a.e(f's_lshl_b32 s6, s{sG if rho == 0 else sTAU1}, 3')
            a.e(f's_add_u32 s6, s6, s{sC}')
            a.e('s_mulk_i32 s6, 6144')
            a.e('s_add_u32 s6, s6, s63')
            a.e(f's_add_u32 s6, s6, 0x{VB[l]:x}')
            a.e(f's_add_u32 m0, s62, {rho * 6144}')
            a.vmem(f'buffer_load_dwordx4 v2, {sr(sWS, 4)}, s6 offen sc1 lds', 'v')
        a.e('s_mov_b64 exec, -1')
        if l == 0:
            id_issue()
        bg.run(OPT.get('bgv', 4))
        a.e('v_lshlrev_b32 v7, 3, v1')
        a.e(f'v_mov_b32 v{VF}, 0')
        a.e(f'v_mov_b32 v{VF + 1}, 0')
        a.lds(f'ds_write_b64 v7, {vr(VF, 2)} offset:{STATS + 256}', 'clr')
        a.wait(vm='v', lg='clr')
        a.e('s_barrier')
        a.stamp(f'V{l}')
        for ks in range(4):
            for rd in range(2):
                a.lds(f'ds_read_b64_tr_b16 {vr(VF + 4 * ks + 2 * rd, 2)}, v13 offset:{(16 * (ks % 2) + 4 * rd) * 192 + (ks // 2) * 80}', ('vf', ks))
        if l == 0:
            left2 = list(range(30 - len(bg.q), 30))
            bg.q = []
            for n in range(NR):
                bg.add(lambda n=n: w1load(n))
                if n < NST:
                    bg.add(lambda n=n: stash(n))
            bg.run(OPT.get('bg0', 2))

        a.e(f's_add_u32 s63, s{sGCM}, 0x{X1B[l]:x}')
        a.e(f's_cmp_eq_u32 s{sKT}, 0')
        a.e('s_cselect_b32 s70, -1, 0')
        a.e(f's_cselect_b32 s71, s63, 0x{OOB:x}')
        for ks in range(4):
            a.wait(lg=('vf', ks))
            a.e(f'v_mfma_f32_32x32x16_bf16 {vr(Y, 16)}, {vr(VF + 4 * ks, 4)}, {vr(TW + 4 * ks, 4)}, {vr(Y, 16)}')
        for r in range(8):
            a.e(f'v_cvt_pk_bf16_f32 v{PK + r}, v{Y + 2 * r}, v{Y + 2 * r + 1}')
        a.e(f'v_bfi_b32 v{PK}, v12, v11, v{PK}')
        xstore(f'buffer_store_dwordx4 {vr(PK + 4, 4)}, v5, {sr(sWS, 4)}, s71 offen offset:2048', 'x1s', l == 1 and LP & 1)
        a.e('s_mov_b32 exec_hi, s70')
        xstore(f'buffer_store_dwordx4 {vr(PK, 4)}, v5, {sr(sWS, 4)}, s63 offen', 'x1s', l == 1 and LP & 1)
        a.lds(f'ds_write_b128 v6, {vr(PK, 4)}', 'x1w')
        a.e('s_mov_b32 exec_lo, s70')
        a.lds(f'ds_write_b128 v6, {vr(PK + 4, 4)} offset:2048', 'x1w')
        a.e('s_mov_b64 exec, -1')
        a.stamp(f'x1st{l}')
        a.e('s_mov_b32 s7, 0x3f803f80')
        for r in range(4):
            a.e(f'v_mov_b32 v{16 + r}, 0')
        for r in range(4):
            for h in range(2):
                a.e(f'v_dot2_f32_bf16 v{16 + 2 * h}, v{PK + 4 * h + r}, s7, v{16 + 2 * h}')
                a.e(f'v_dot2_f32_bf16 v{17 + 2 * h}, v{PK + 4 * h + r}, v{PK + 4 * h + r}, v{17 + 2 * h}')
        a.e('v_bfe_u32 v7, v5, 4, 6')
        a.e('v_lshlrev_b32 v7, 3, v7')
        a.e('s_nop 2')
        a.e('v_and_b32 v18, s70, v18')
        a.e('v_and_b32 v19, s70, v19')
        a.e('v_add_f32 v16, v16, v18')
        a.e('v_add_f32 v17, v17, v19')
        a.e('v_mov_b32 v18, v16')
        a.e('v_mov_b32 v19, v17')
        a.e(f's_mul_i32 s6, s{sMIR}, {PRV}')
        a.e(f's_lshl_b32 s7, s{sKT}, 9')
        a.e('v_permlane32_swap_b32 v16, v18')
        a.e('v_permlane32_swap_b32 v17, v19')
        a.e('v_add3_u32 v7, v7, s6, s6') if False else None
        a.e('s_add_u32 s6, s6, s7')
        a.e('v_add_u32 v7, s6, v7')
        a.e('v_and_b32 v18, s70, v18')
        a.e('v_and_b32 v19, s70, v19')
        a.e('v_add_f32 v16, v16, v18')
        a.e('v_add_f32 v17, v17, v19')
        a.lds(f'ds_write_b64 v7, v[16:17] offset:{PSUM}', 'x1w')
        bg.run(OPT.get('bgx0', 4 if l == 0 else 3))
        a.wait(vm='x1s', lg='all')
        a.e('s_barrier')
        a.stamp(f'X1s{l}')
        a.e(f's_lshl_b32 s65, s{sG}, 12')
        a.e(f's_add_u32 s65, s65, 0x{STG + l * 0x20000:x}')
        Ls1 = a.newlab('Ls1')
        a.e(f's_cmp_lg_u32 s{sWAVE}, s{sC}')
        a.e(f's_cbranch_scc1 {Ls1}')
        a.e('v_lshlrev_b32 v7, 3, v1')
        a.e(f'v_add_u32 v0, {PSUM}, v7')
        for k in range(4):
            a.e(f'ds_read_b64 {vr(64 + 2 * k, 2)}, v0 offset:{(k // 2) * PRV + (k % 2) * 512}')
        a.e(f's_lshl_b32 s6, s{sC}, 9')
        a.e('s_add_u32 s6, s6, s65')
        a.e('s_waitcnt lgkmcnt(0)')
        for k in range(1, 4):
            a.e(f'v_add_f32 v64, v64, v{64 + 2 * k}')
            a.e(f'v_add_f32 v65, v65, v{65 + 2 * k}')
        a.e(f'buffer_store_dwordx2 v[64:65], v7, {sr(sWS, 4)}, s6 offen sc1')
        a.label(Ls1)
        setflag_w0(a, PH_X1[l], 7)
        if l == 0:
            L, Ld = a.newlab('Lidp'), a.newlab('Lidd')
            a.e(f's_add_u32 s59, s{sNON}, {PH_V[0]}')
            a.wait(vm='ids')
            a.e('s_mov_b32 s61, 0')
            a.label(L)
            a.e('v_subrev_u32 v72, s59, v72')
            a.e('v_cmp_le_u32 vcc, 16, v72')
            a.e(f's_cbranch_vccz {Ld}')
            st = a.save()
            id_issue()
            a.restore(st)
            a.e('s_waitcnt vmcnt(0)')
            a.e('s_add_u32 s61, s61, 1')
            a.e(f's_cmp_lt_u32 s61, {SPIN}')
            a.e(f's_cbranch_scc1 {L}')
            a.e('v_mov_b32 v73, -1')
            a.label(Ld)
            a.e('s_nop 0')
            a.e('v_readlane_b32 s6, v73, 0')
            a.e('v_readlane_b32 s7, v73, 1')
            for r, sf in ((6, sFSRC), (7, sFPAR)):
                a.e(f's_cmp_eq_u32 s{r}, s{sXCC}')
                a.e(f's_cselect_b32 s{r}, 0x{LOC if OPT.get("loc", 1) else 0:x}, 0')
                a.e(f's_add_u32 s{sf}, s{sf}, s{r}')
            a.e('s_and_b32 s6, s6, s7')
            a.e('s_cselect_b32 s6, 0, 1')
            a.e(f'v_mov_b32 v72, {STATS + 520}')
            a.e('v_mov_b32 v73, s6')
            a.lds('ds_or_b32 v72, v73', 'idw')
        CP = 16
        if l == 0:
            a.e(f's_lshl_b32 s6, s{sU1}, 6')
            a.e('v_lshl_add_u32 v7, v10, 2, s6')
            a.e('s_movk_i32 s7, 6912')
            a.e('v_mad_u32_u24 v7, v4, s7, v7')
            for n in range(10):
                a.e(f's_mov_b32 s7, 0x{CSP + n * 2 * 6912:x}')
                a.vmem(f'buffer_load_dword v{CP + n}, v7, {sr(sWS, 4)}, s7 offen sc1', 'cs')
        bg.run(OPT.get('bgx1', 3))
        pX = (7, sFSRC, PH_X1[l], 1)
        poll_issue(a, *pX)
        RSC, RA = 2 * PRV + 9216, 37
        Lw7 = a.newlab('Lw7')
        a.e(f's_cmp_lg_u32 s{sWAVE}, 7')
        a.e(f's_cbranch_scc1 {Lw7}')
        if True:
            a.e(f's_cmp_ge_u32 s{sC}, 4')
            a.e('s_cselect_b64 s[70:71], -1, 0')
            a.e('v_and_b32 v11, 7, v8')
            a.e('v_sub_u32 v12, 8, v11')
            a.e('v_cndmask_b32 v12, v11, v12, s[70:71]')
            a.e('v_lshrrev_b32 v13, 3, v8')
            a.e('v_add_u32 v0, 2, v13')
            a.e('v_cmp_eq_u32 vcc, 0, v11')
            a.e('v_cndmask_b32 v12, v12, 0, vcc')
            a.e('v_cndmask_b32 v13, v13, v0, vcc')
            a.e('v_and_b32 v0, 1, v12')
            a.e('v_lshlrev_b32 v0, 4, v0')
            a.e('v_mov_b32 v36, 0x3f80')
            a.e('v_lshlrev_b32 v0, v0, v36')
            a.e('v_cmp_eq_u32 vcc, v13, v9')
            a.e('v_cndmask_b32 v0, 0, v0, vcc')
            a.e('v_lshrrev_b32 v12, 1, v12')
            for r in range(4):
                a.e(f'v_cmp_eq_u32 vcc, {r}, v12')
                a.e(f'v_cndmask_b32 v{32 + r}, 0, v0, vcc')
            a.lds(f'ds_write_b128 v2, v[32:35] offset:{RSC}', 'rw')
            a.e(f'v_lshlrev_b32 v{RA}, 2, v1')
            a.e(f's_mul_i32 s6, s{sC}, 10')
            a.e('v_cmp_le_u32 s[72:73], 2, v9')
            for ft in range(5):
                a.e('v_and_b32 v11, 1, v9')
                a.e(f'v_add3_u32 v11, v11, s6, {2 * ft}')
                a.e('v_sub_u32 v12, 119, v11')
                a.e('v_cndmask_b32 v12, v11, v12, s[70:71]')
                a.e('v_sub_u32 v13, 120, v11')
                a.e('v_cndmask_b32 v13, v11, v13, s[70:71]')
                if ft == 0:
                    a.e('v_cmp_eq_u32 vcc, 0, v13')
                    a.e('v_cndmask_b32 v13, v13, 40, vcc')
                    a.e('v_cmp_eq_u32 vcc, 80, v13')
                    a.e('v_cndmask_b32 v13, v13, 0, vcc')
                a.e('v_cndmask_b32 v12, v12, v13, s[72:73]')
                a.e('v_mul_u32_u24 v13, 13108, v12')
                a.e('v_lshrrev_b32 v13, 16, v13')
                a.e('v_sub_u32 v11, v12, v13')
                a.e('v_mul_u32_u24 v0, 5, v13')
                a.e('v_sub_u32 v12, v12, v0')
                a.e('v_and_b32 v0, 7, v13')
                a.e('v_lshrrev_b32 v13, 3, v13')
                a.e('v_lshl_add_u32 v13, v0, 1, v13')
                a.e('v_add_u32 v13, 64, v13')
                a.e('v_cmp_eq_u32 vcc, 4, v12')
                a.e('v_cndmask_b32 v11, v11, v13, vcc')
                a.e('v_lshlrev_b32 v11, 10, v11')
                a.e('v_lshl_add_u32 v11, v8, 4, v11')
                a.e(f'v_add_u32 v11, {R1}, v11')
                a.lds(f'ds_write_b32 v{RA}, v11 offset:{RSC + PRV + (ft // 4) * PRV + (ft % 4) * 256}', 'rw')
        a.label(Lw7)
        poll_check(a, *pX)
        a.stamp(f'pollX1{l}')
        a.e(f's_lshl_b32 s6, s{sWAVE}, 12')
        a.e('s_lshr_b32 s7, s6, 1')
        a.e('s_add_u32 s66, s63, s6')
        a.e('s_add_u32 s57, s63, s7')
        a.e(f's_cmp_eq_u32 s{sWAVE}, s{sC}')
        a.e(f's_cselect_b32 s66, 0x{OOB:x}, s66')
        a.e(f's_cselect_b32 s57, 0x{OOB:x}, s57')
        a.e('s_cselect_b32 s67, 0x14000, s6')
        a.e('s_cselect_b32 s56, 0x14000, s7')
        lin(4, 67, R1, 66, 0, ('x1', 0))
        if l == 0:
            for n in range(1, 10):
                a.e(f'v_add_f32 v{CP}, v{CP}, v{CP + n}')
            a.e(f'v_mov_b32 v15, v{CP}')
            a.e(f'v_permlane32_swap_b32 v{CP}, v15')
            a.e(f'v_add_f32 v15, v{CP}, v15')
        a.e(f's_lshl_b32 s6, s{sWAVE}, 7')
        a.e('v_lshl_add_u32 v7, v10, 2, s6')
        a.lds(f'ds_write_b32 v7, v15 offset:{CSS}', 'csw')
        a.e(f'v_add_u32 v5, {R1}, v3')
        a.e(f'v_add_u32 v6, {R1 + 40960}, v3')
        if OPT.get('x1o', 0):
            a.e('s_waitcnt vmcnt(3)')
        lin(4, 67, R1 + 32768, 66, 32768, ('x1', 1))
        lin(2, 56, R1 + 65536, 57, 65536, ('x1', 1))
        a.wait(vm=('x1', 0), lg='all')
        a.e('s_barrier')
        a.stamp(f'B1{l}')
        if l == 0:
            a.e('ds_read_b32 v73, v72')
            a.e('s_waitcnt lgkmcnt(0)')
            a.e('v_readfirstlane_b32 s26, v73')
        Ls2 = a.newlab('Ls2')
        a.e(f's_cmp_lg_u32 s{sWAVE}, s{sC}')
        a.e(f's_cbranch_scc1 {Ls2}')
        st = a.save()
        setflag(a, PH_S[l], 12)
        a.restore(st)
        a.label(Ls2)
        LS, Lid, Lg2, Ljoin = (a.newlab(x) for x in ('LS', 'Lid', 'Lg2', 'Ljoin'))
        a.e(f's_cmp_eq_u32 s{sWAVE}, 7')
        a.e(f's_cbranch_scc1 {LS}')
        a.e(f's_cmp_ge_u32 s{sWAVE}, s{sU2}')
        a.e(f's_cbranch_scc1 {Lid}')
        st0 = a.save()
        q = list(bg.q)
        bg.q = []
        NW2 = OPT.get('nw2', 20)
        need2 = left2 if l == 0 else []

        def xaddr(ks, rt):
            return (5, ks * 4096 + rt * 256) if ks < 10 else (6, (ks - 10) * 4096 + rt * 256)

        def xreads(n, nst=2):
            out = []
            for rt in range(4):
                b, o = xaddr(n, rt)
                out.append(lambda rt=rt, b=b, o=o: a.lds(f'ds_read_b128 {vr(XF + 16 * (n % nst) + 4 * rt, 4)}, v{b} offset:{o}', ('xf', n)))
            return out

        EP = XF

        def epi_reads():
            a.e('v_lshlrev_b32 v7, 2, v8')
            for rt in range(4):
                a.lds(f'ds_read_b32 v{EP + 12 + rt}, v7 offset:{STATS + 256 + rt * 64}', 'st')
            for rt in range(4):
                a.lds(f'ds_read_b32 v{EP + 8 + rt}, v7 offset:{STATS + rt * 64}', 'st')

        def usread(n):
            a.lds(f'ds_read_b128 {vr(JIT[n % 2], 4)}, v13 offset:{(n % NST) * 1024}', ('us', n))

        def gemm(late, q, qlow=False):
            pw1, pws = [NR], [NST]
            a.e('v_add_u32 v13, s69, v2')
            for f in xreads(0):
                f()
            a.wait(vm=('ws', 0))
            usread(0)
            a.e(f's_add_u32 s56, s{sW1B}, {12 * 1024}')
            a.e(f's_add_u32 s57, s{sW1B}, {16 * 1024}')
            grp = [None]

            def ring1(k):
                a.vmem(f'buffer_load_dwordx4 {vr(RING[k % NR], 4)}, v2, {sr(sWS, 4)}, s{56 + (k - 12) // 4} offen offset:{(k % 4) * 1024} sc1', ('w1', k))

            def stash1(k):
                k0 = 9 + (k - 9) // 4 * 4 if k < 18 else 18
                if grp[0] != k0:
                    a.e(f's_add_u32 m0, s69, {(k0 % NST) * 1024}')
                    a.e(f's_add_u32 s66, s{sW1B}, {20480 + k0 * 1024}')
                    grp[0] = k0
                a.vmem(f'buffer_load_dwordx4 v2, {sr(sWS, 4)}, s66 offen offset:{(k - k0) * 1024} sc1 lds', ('ws', k))

            for n in range(20):
                if n == 7:
                    cnt_wait(CNT1, 7, True)
                a.wait(vm=[('w1', n)] + ([('ws', n + 1)] if n + 1 < 20 else []), lg=[('xf', n), ('us', n)])
                mf = []
                for h in range(2):
                    for rt in range(4):
                        ac = vr(ACCX + 16 * h + 4 * rt, 4)
                        w = RING[n % NR] if h == 0 else JIT[n % 2]
                        mf.append(f'v_mfma_f32_16x16x32_bf16 {ac}, {vr(w, 4)}, {vr(XF + 16 * (n % 2) + 4 * rt, 4)}, {"0" if n == 0 else ac}')
                fl = []
                if n + 1 < 20:
                    fl += xreads(n + 1) + [lambda: usread(n + 1)]
                nq = 0
                while q and nq < 3 and not qlow:
                    fl.append(q.pop(0))
                    nq += 1
                if not q or qlow:
                    while pws[0] < 20 and pws[0] - NST <= n and nq < 2:
                        fl.append(lambda k=pws[0]: stash1(k))
                        pws[0] += 1
                        nq += 1
                    while pw1[0] < 20 and pw1[0] - NR <= n and nq < 3:
                        fl.append(lambda k=pw1[0]: ring1(k))
                        pw1[0] += 1
                        nq += 1
                while q and nq < 3 and qlow:
                    fl.append(q.pop(0))
                    nq += 1
                if not late and OPT.get('xe', 1):
                    for k in range(2, NR):
                        last = k if k >= 8 else k + 12
                        if max(last + 1, 12 + (k - 8) // 2 if k >= 8 else 0) == n and n < 19:
                            fl.append(lambda f=28 + k: w2load(f))
                            xdone.append(28 + k)
                if n == 5:
                    fl.append(lambda: cnt_peek(CNT1, 7))
                if n == 19:
                    def ep():
                        a.e(f's_lshl_b32 s6, s{sWAVE}, 7')
                        a.e('v_lshl_add_u32 v7, v9, 4, s6')
                        for h in range(2):
                            a.lds(f'ds_read_b128 {vr(EP + 4 * h, 4)}, v7 offset:{CSS + h * 64}', 'csr')
                    fl = [ep, epi_reads]
                weave(a, mf, fl)
                if n == OPT.get('nca', 3) and not late:
                    a.wait(vm=('x1', 1))
                    cnt_add(CNT1, 7)
            assert not q
            a.stamp(f'gend{l}')
            prio(a, 3)
            a.e(f's_lshl_b32 s65, s{sU1}, 11')
            a.e(f's_add_u32 s65, s65, s{sHG}')
            a.e(f's_add_u32 s65, s65, 0x{HB[l]:x}')
            L, Ld = a.newlab('Lsw'), a.newlab('Lsd')
            a.e('s_mov_b32 s61, 0')
            a.label(L)
            a.e('s_waitcnt lgkmcnt(0)')
            a.lg.clear()
            a.e(f'v_min_u32 v7, v{EP + 12}, v{EP + 13}')
            a.e(f'v_min3_u32 v7, v7, v{EP + 14}, v{EP + 15}')
            a.e('v_cmp_eq_u32 vcc, 0, v7')
            a.e(f's_cbranch_vccz {Ld}')
            a.e('s_sleep 1')
            epi_reads()
            a.lg.clear()
            a.e('s_add_u32 s61, s61, 1')
            a.e(f's_cmp_lt_u32 s61, {SPIN}')
            a.e(f's_cbranch_scc1 {L}')
            a.e('s_waitcnt lgkmcnt(0)')
            a.label(Ld)
            a.e('v_lshlrev_b32 v7, 10, v4')
            a.e('v_lshl_add_u32 v7, v10, 4, v7')
            for h in range(2):
                for pr in range(2):
                    b = ACCX + 16 * h + 8 * pr
                    if OPT.get('pk', 0):
                        for r in range(0, 8, 2):
                            sel = 'op_sel:[0,0,0] op_sel_hi:[0,1,1]' if r < 4 else 'op_sel:[1,0,0] op_sel_hi:[1,1,1]'
                            a.e(f'v_pk_fma_f32 {vr(b + r, 2)}, {vr(EP + 8 + 2 * pr, 2)}, {vr(EP + 4 * h + r % 4, 2)}, {vr(b + r, 2)} {sel} neg_lo:[1,0,0] neg_hi:[1,0,0]')
                        for r in range(0, 8, 2):
                            sel = 'op_sel:[0,0] op_sel_hi:[1,0]' if r < 4 else 'op_sel:[0,1] op_sel_hi:[1,1]'
                            a.e(f'v_pk_mul_f32 {vr(b + r, 2)}, {vr(b + r, 2)}, {vr(EP + 12 + 2 * pr, 2)} {sel}')
                    else:
                        for r in range(8):
                            a.e(f'v_fma_f32 v{b + r}, -v{EP + 8 + 2 * pr + r // 4}, v{EP + 4 * h + r % 4}, v{b + r}')
                        for r in range(8):
                            a.e(f'v_mul_f32 v{b + r}, v{b + r}, v{EP + 12 + 2 * pr + r // 4}')
                    for r in range(4):
                        a.e(f'v_cvt_pk_bf16_f32 v{b + r}, v{b + 2 * r}, v{b + 2 * r + 1}')
                    for r in range(4):
                        a.e(f'v_pk_max_i16 v{b + r}, v{b + r}, 0')
                    a.e(f'v_permlane16_swap_b32 v{b}, v{b + 2}')
                    a.e(f'v_permlane16_swap_b32 v{b + 1}, v{b + 3}')
                    xstore(f'buffer_store_dwordx4 {vr(b, 4)}, v7, {sr(sWS, 4)}, s65 offen offset:{h * 2048 + pr * 512}', 'hst', LP & 4 and l >= OPT.get('lpl', 0))
            a.stamp(f'epi{l}')
            cnt_add(CNT2, 7)


        def b2(ns, accb, HB_, first, pr):
            N = 4 * ns
            acc = lambda rt, ft: vr(accb(rt) + 4 * ft, 4)
            a.e(f'v_add_u32 v12, 0x{HB[l]:x}, v3')
            a.e('v_add_u32 v13, s69, v2')
            a.e(f'v_add_u32 v11, {R1}, v13')
            slot = {}

            def direct(z, sl):
                slot[z] = sl
                a.vmem(f'buffer_load_dwordx4 {vr(HB_[sl], 4)}, v12, {sr(sWS, 4)}, s{sHO + z % ns} offen offset:{(z // ns) * 256} sc1', ('h', z))

            def jit(z, sl):
                slot[z] = sl
                a.lds(f'ds_read_b128 {vr(HB_[sl], 4)}, v13 offset:{(z - 10) * 1024}', ('hz', z))

            def pwrite(rt, ft):
                a.lds(f'ds_write_b128 v{11 if rt < 2 else 13}, {acc(rt, ft)} offset:{((rt % 2) * 5 + ft) * 1024}', ('pw', rt))

            for z in range(10):
                direct(z, z)
            staged = list(range(10, min(19, N)))

            def stage(z):
                a.e(f's_add_u32 m0, s69, {(z - 10) * 1024}')
                a.e(f's_add_u32 s64, s{sHO + z % ns}, {(z // ns) * 256}')
                a.vmem(f'buffer_load_dwordx4 v12, {sr(sWS, 4)}, s64 offen sc1 lds', ('h', z))
            sq = list(staged)
            for _ in range(OPT.get('ns0', 0)):
                if sq:
                    stage(sq.pop(0))
            refill = list(range(19, N))
            a.stamp(f'hiss{l}')
            prio(a, pr)
            todo = list(staged)
            wq = []
            for z in range(N):
                rt, i = divmod(z, ns)
                fill = []
                vmw = []
                for _ in range(2):
                    if sq:
                        fill.append(lambda t=sq.pop(0): stage(t))
                if z >= 1:
                    fs = slot[z - 1]
                    if todo and todo[0] <= z + 3:
                        t = todo.pop(0)
                        vmw.append(('h', t))
                        fill.append(lambda t=t, fs=fs: jit(t, fs))
                    elif refill:
                        fill.append(lambda t=refill.pop(0), fs=fs: direct(t, fs))
                if rt == 1 and i == 0:
                    fill.append(lambda: cnt_peek(CNT2, 7))
                lgw = []
                if rt >= 1 and i == 1:
                    if rt == 1:
                        cnt_wait(CNT2, 7, True)
                    if rt == 3:
                        assert not todo
                        lgw.append(('hz', staged[-1]))
                    wq = [lambda rt=rt, ft=ft: pwrite(rt - 1, ft) for ft in range(5)]
                for _ in range(2):
                    if wq:
                        fill.append(wq.pop(0))
                if z in staged:
                    lgw.append(('hz', z))
                else:
                    vmw.append(('h', z))
                if i == 0 and rt >= 2 and accb(rt) == accb(rt - 2):
                    lgw.append(('pw', rt - 2))
                a.wait(vm=vmw + [('w2', 5 * i + k) for k in range(5)], lg=lgw or None)
                if i == 0:
                    a.stamp(f'rt{rt}_{l}')
                weave(a, [f'v_mfma_f32_16x16x32_bf16 {acc(rt, ft)}, {vr(w2reg(5 * i + ft), 4)}, {vr(HB_[slot[z]], 4)}, {"0" if first and i == 0 else acc(rt, ft)}' for ft in range(5)], fill)
            assert not wq
            a.stamp(f'b2B{l}')
            prio(a, 3)
            for ft in range(5):
                pwrite(3, ft)

        def flagbase(add):
            a.e(f's_lshl_b32 s67, s{sG}, 13')
            a.e('s_cmp_eq_u32 s26, 0')
            a.e(f's_cselect_b32 s6, 0x{LOC:x}, 0')
            a.e('s_add_u32 s67, s67, s6')
            a.e(add)

        HE = [56 + 4 * k for k in range(10)]
        HL = [96 + 4 * k for k in range(10)]
        acc = lambda rt, ft: vr(16 + 20 * rt + 4 * ft, 4)

        def late_tail(ns, first):
            a.e(f's_lshl_b32 s7, s{sWAVE}, 11')
            flagbase('s_add_u32 s67, s67, s7')
            poll(a, 11, 67, PH_H[l], 6, 'late', 4 - 64)
            a.stamp(f'pollB{l}')
            b2(ns, lambda rt: 16 + 20 * rt, HL, first, OPT.get('plb', 0))

        Llate = a.newlab('Llate')
        a.e(f's_cmp_ge_u32 s{sWAVE}, 4')
        a.e(f's_cbranch_scc1 {Llate}')
        prio(a, 3)
        xdone = []
        gemm(False, list(q))
        xrest = [f for f in range(30, 40) if f not in xdone]
        for f in xrest[:OPT.get('ne0', 3)]:
            w2load(f)
        a.wait(vm='hst')
        a.stamp(f'ackH{l}')
        setflag(a, PH_H[l], 12)
        prio(a, 1)
        for f in xrest[OPT.get('ne0', 3):] + need2:
            w2load(f)
        a.e(f's_lshl_b32 s7, s{sWAVE}, 7')
        flagbase('s_add_u32 s67, s67, s7')
        poll(a, 11, 67, PH_H[l], 8, 10)
        a.stamp(f'pollA{l}')
        b2(8, lambda rt: 16 + 20 * (rt % 2), HE, True, 1)
        stE = a.save()
        a.e(f's_branch {Ljoin}')

        a.label(Lid)
        a.restore(st0)
        a.wait(vm=('x1', 1))
        cnt_add(CNT1, 7)
        cnt_add(CNT2, 7)
        for f in need2:
            w2load(f)
        a.e(f's_branch {Lg2}')

        a.label(Llate)
        a.restore(st0)
        prio(a, 2)
        a.wait(vm=('x1', 1))
        cnt_add(CNT1, 7)
        a.e(f's_sleep {OPT.get("lsl", 2)}')
        for f in q:
            f()
        gemm(True, [lambda f=f: w2load(f) for f in need2], True)
        a.wait(vm='hst')
        a.stamp(f'ackH{l}')
        a.label(Lg2)
        setflag(a, PH_H[l], 12)
        late_tail(6, True)
        a.e(f's_branch {Ljoin}')

        a.label(LS)
        a.restore(st0)
        prio(a, 3)
        a.wait(vm=('x1', 1))
        cnt_add(CNT1, 7)
        if LP & 4 and l >= OPT.get('lpl', 0):
            a.e('s_lshl_b32 s6, s100, 12')
            a.e(f's_add_u32 s66, s6, s{sHG}')
            warm(40, 66, HB[l], 4, 7168)
        a.e(f's_lshl_b32 s67, s{sG}, 13')
        a.e('s_cmp_eq_u32 s26, 0')
        a.e(f's_cselect_b32 s6, 0x{LOC:x}, 0')
        a.e('s_add_u32 s67, s67, s6')
        a.e(f's_add_u32 s60, s67, 0x{FLG:x}')
        a.e(f's_add_u32 s59, s{sNON}, {PH_S[l]}')
        L, Ld = a.newlab('Lsp'), a.newlab('Lsd')
        a.e('s_mov_b32 s61, 0')
        a.label(L)
        a.e('v_and_b32 v7, 7, v1')
        a.e('v_mul_u32_u24 v7, 1152, v7')
        a.e(f'buffer_load_dword v7, v7, {sr(sWS, 4)}, s60 offen sc1')
        a.e('s_waitcnt vmcnt(0)')
        a.e('v_subrev_u32 v7, s59, v7')
        a.e('v_cmp_le_u32 vcc, 16, v7')
        a.e(f's_cbranch_vccz {Ld}')
        a.e('s_sleep 2')
        a.e('s_add_u32 s61, s61, 1')
        a.e(f's_cmp_lt_u32 s61, {SPIN}')
        a.e(f's_cbranch_scc1 {L}')
        a.label(Ld)
        a.vm.clear()
        a.e('v_lshlrev_b32 v7, 3, v1')
        for k in range(8):
            a.vmem(f'buffer_load_dwordx2 {vr(16 + 2 * k, 2)}, v7, {sr(sWS, 4)}, s65 offen offset:{k * 512} sc1', 'sg')
        a.e('v_lshlrev_b32 v7, 2, v1')
        a.e('s_mov_b32 s7, 0x3acccccd')
        a.wait(vm='sg')
        for k in range(1, 8):
            a.e(f'v_add_f32 v16, v16, v{16 + 2 * k}')
            a.e(f'v_add_f32 v17, v17, v{17 + 2 * k}')
        a.e('v_mul_f32 v16, s7, v16')
        a.e('v_mul_f32 v17, s7, v17')
        a.e('v_fma_f32 v17, -v16, v16, v17')
        a.e('v_max_f32 v17, 0, v17')
        a.e('v_add_f32 v17, 0x3727c5ac, v17')
        a.e('v_rsq_f32 v17, v17')
        a.lds(f'ds_write_b32 v7, v16 offset:{STATS}')
        a.lds(f'ds_write_b32 v7, v17 offset:{STATS + 256}')
        cnt_wait(CNT1, 7)
        a.stamp(f'stat{l}')
        prio(a, 0)
        PM, TB = 96, (100, 116)
        a.e('v_lshlrev_b32 v7, 2, v1')
        a.lds(f'ds_read_b128 {vr(PM, 4)}, v2 offset:{RSC}', 'ra')
        AR = (0, 11, 12, 13, 7)
        for ft in range(5):
            a.lds(f'ds_read_b32 v{AR[ft]}, v7 offset:{RSC + PRV + (ft // 4) * PRV + (ft % 4) * 256}', 'ra')
        a.wait(lg='ra')

        def rread(ft):
            return [lambda rt=rt: a.lds(f'ds_read_b128 {vr(TB[ft % 2] + 4 * rt, 4)}, v{AR[ft]} offset:{rt * 256}', ('rs', ft)) for rt in range(4)]
        for f in rread(0):
            f()
        for ft in range(5):
            if ft + 1 < 5:
                for f in rread(ft + 1):
                    f()
            a.wait(lg=('rs', ft))
            weave(a, [f'v_mfma_f32_16x16x32_bf16 {acc(rt, ft)}, {vr(PM, 4)}, {vr(TB[ft % 2] + 4 * rt, 4)}, 0' for rt in range(4)], [])
        prio(a, 0)
        cnt_add(CNT2, 7)
        for f in need2:
            if f < 20:
                w2load(f)
        a.e('s_sleep 40')
        late_tail(4, False)
        a.label(Ljoin)
        a.e('s_nop 1')
        a.restore(stE)
        a.vm.clear()
        a.forget('w1', 'ws', 'v', 'x1', 'us', 'h')
        a.seen -= {('w2', f) for f in range(30, 40)}
        if l == 0:
            Lg = a.newlab('Lg')
            a.e(f's_cmp_ge_u32 s{sWAVE}, 4')
            a.e(f's_cbranch_scc1 {Lg}')
            a.e('s_waitcnt lgkmcnt(0)')
            gen_D(a, dreg, 116, None, (0, 1))
            a.label(Lg)
        reduce_addr(l, False)
        a.wait(lg='all')
        a.e('s_barrier')
        a.stamp(f'PB{l}')
        reduce_item(l)
        Lnr = a.newlab('Lnr')
        a.e(f's_cmp_ge_u32 s{sWAVE}, 2')
        a.e(f's_cbranch_scc1 {Lnr}')
        reduce_addr(l, True)
        reduce_item(l)
        a.label(Lnr)
        if l == 1:
            Lnn = a.newlab('Lnn')
            a.e('s_lshl_b32 s6, s2, 3')
            a.e(f's_add_u32 s6, s6, s{sWAVE}')
            a.e('s_cmp_lg_u32 s6, 7')
            a.e(f's_cbranch_scc1 {Lnn}')
            a.e(f'v_mov_b32 v0, s{sNON}')
            a.e(f's_mov_b32 s7, 0x{FLG + 0x40000:x}')
            a.e('s_mov_b64 exec, 1')
            a.e(f'buffer_store_dword v0, off, {sr(sWS, 4)}, s7 sc1')
            a.e('s_mov_b64 exec, -1')
            a.label(Lnn)
            a.stamp_dump(2, sWS, sWAVE, 15)
            break

        a.stamp('redB')
        a.e('v_lshlrev_b32 v5, 4, v8')
        a.e('v_lshl_add_u32 v5, v9, 9, v5')
        a.e(f'v_add_u32 v5, {R1}, v5')
        a.e('v_add_u32 v6, 40960, v5')
        def helpers(f):
            Lg = a.newlab('Lg')
            a.e(f's_cmp_lt_u32 s{sWAVE}, 4')
            a.e(f's_cbranch_scc1 {Lg}')
            st = a.save()
            f()
            a.restore(st)
            a.label(Lg)
        helpers(lambda: gen_D(a, dreg, 116, None, (0,)))
        a.wait(vm='all')
        a.e('s_barrier')
        a.stamp('ackXB')
        setflag_w0(a, PH_X2, 12)
        pXA = (7, sFSRC, PH_X2, 1)
        pXB = (11, sFPAR, PH_X2, 1)
        a.vm.clear()
        a.e(f's_sleep {OPT.get("xsl", 0)}')
        poll_issue(a, *pXA)
        poll_issue(a, *pXB, tag='poll2')
        a.e(f's_add_u32 s67, s{sGCM}, s68')
        a.e(f's_mul_i32 s66, s{sPG}, 81920')
        a.e('s_add_u32 s66, s66, s68')
        poll_check(a, *pXA)
        lin(5, 68, R1, 67, X2B, 'x2')
        poll_check(a, *pXB, tag='poll2')
        a.stamp('pollXB')
        lin(5, 68, R1 + 40960, 66, X2B + 40960, 'x2')
        Lh, Lj, L4 = a.newlab('Lh'), a.newlab('Lj'), a.newlab('L4')
        a.e(f's_cmp_ge_u32 s{sWAVE}, 4')
        a.e(f's_cbranch_scc1 {Lh}')
        st0 = a.save()
        U4 = ST1 + 1024
        AC1, AC2 = 56, 72
        XS = [[88, 92, 96, 100], [116, 120, 124, 128], [104, 108, 112, 132]]
        WFA = 16
        RSr, MRr = [116, 120, 124, 128], [88, 92, 96, 100]
        wf = lambda mat, tt, ks: (16 + k * 4 if (k := (mat * 4 + tt) * 2 + ks) < 10 else (72 + (k - 10) * 4 if k < 14 else 104 + (k - 14) * 4))

        def sgn():
            a.e('v_and_b32 v0, 1, v1')
            a.e('v_lshlrev_b32 v0, 31, v0')
            a.e('v_or_b32 v0, 1.0, v0')

        def wf_reads():
            for tt in range(4):
                for ks in range(2):
                    for mat in range(2):
                        a.lds(f'ds_read_b128 {vr(wf(mat, tt, ks), 4)}, v2 offset:{W1SL + ((mat * 4 + tt) * 2 + ks) * 1024}', 'wf')

        def st_reads():
            a.e('v_lshlrev_b32 v12, 4, v9')
            for rt in range(4):
                a.lds(f'ds_read_b128 {vr(RSr[rt], 4)}, v12 offset:{ST1 + rt * 64}', 'st')
                a.lds(f'ds_read_b128 {vr(MRr[rt], 4)}, v12 offset:{ST1 + 256 + rt * 64}', 'st')

        a.e(f's_lshl_b32 s6, s{sWAVE}, 12')
        a.e('v_add_u32 v75, s6, v2')
        a.e(f's_cmp_ge_u32 s{sWAVE}, 2')
        a.e(f's_cselect_b32 s98, 0.5, 0x{fbits(0.25):08x}')
        a.e(f's_lshl_b32 s99, s{sKT}, 5')
        gen_W1(a, 1, W1SL, 56, (0,), 98, range(2), 99)
        a.wait(vm='x2', lg='all')
        a.e('s_barrier')
        a.stamp('XA')
        prio(a, OPT.get('mp', 1))

        def xr1(n):
            return [lambda rt=rt: a.lds(f'ds_read_b128 {vr(XS[n % 3][rt], 4)}, v{5 + rt // 2} offset:{n * 2048 + (rt % 2) * 256}', ('xf', n)) for rt in range(4)]
        for f in xr1(0) + xr1(1):
            f()
        for n in range(20):
            a.wait(lg=('xf', n))
            ac = AC1 if n < 10 else AC2
            mf = [f'v_mfma_f32_16x16x32_bf16 {vr(ac + 4 * rt, 4)}, {vr(XS[n % 3][rt], 4)}, {vr(dreg(n % 10), 4)}, {"0" if n % 10 == 0 else vr(ac + 4 * rt, 4)}' for rt in range(4)]
            weave(a, mf, xr1(n + 2) if n + 2 < 20 else [])
        prio(a, 3)
        sgn()
        for r in range(16):
            a.e(f'v_fma_f32 v{AC1 + r}, v{AC2 + r}, v0, v{AC1 + r}')
        wf_reads()
        a.stamp('a1B')
        a.e('s_barrier')
        a.stamp('ST')
        st_reads()
        a.label(L4)
        stage1(a, AC1, RSr, MRr, 116, wf, R1)
        stC = a.save()
        a.e(f's_branch {Lj}')

        a.label(Lh)
        a.restore(st0)
        gen_D(a, dreg, 116, None, (1,))
        AS, AM, ONE, FS = 64, 68, 72, 76
        for r in range(4):
            a.e(f'v_mov_b32 v{ONE + r}, 0x3f803f80')
        a.e(f's_mul_i32 s6, s{sRHO}, 40960')
        a.e(f's_lshl_b32 s7, s{sKT}, 8')
        a.e('s_add_u32 s6, s6, s7')
        a.e('v_add_u32 v5, s6, v5')
        a.wait(vm='x2', lg='all')
        a.e('s_barrier')
        prio(a, OPT.get('hp', 3))

        def sread(ks):
            a.lds(f'ds_read_b128 {vr(FS + 4 * (ks % 10), 4)}, v5 offset:{ks * 2048}', ('sf', ks))
        for ks in range(6):
            sread(ks)
        for ks in range(20):
            a.wait(lg=('sf', ks))
            f = vr(FS + 4 * (ks % 10), 4)
            ac = vr(56 if ks < 10 else 60, 4)
            weave(a, [f'v_mfma_f32_16x16x32_bf16 {vr(AS, 4)}, {f}, {f}, {"0" if ks == 0 else vr(AS, 4)}',
                      f'v_mfma_f32_16x16x32_bf16 {vr(AM, 4)}, {f}, {vr(ONE, 4)}, {"0" if ks == 0 else vr(AM, 4)}',
                      f'v_mfma_f32_16x16x32_bf16 {ac}, {f}, {vr(dreg(ks % 10), 4)}, {"0" if ks % 10 == 0 else ac}'],
                  [lambda: sread(ks + 6)] if ks + 6 < 20 else [])
        a.e(f's_and_b32 s66, s{sWAVE}, 3')
        a.e('s_lshl_b32 s6, s66, 6')
        a.e(f's_add_u32 s6, s6, {ST1}')
        stats_finalize(a, AS, AM, 1, 11, 64, 256, 'rs_mr')
        sgn()
        for r in range(4):
            a.e(f'v_fma_f32 v{56 + r}, v{60 + r}, v0, v{56 + r}')
        a.e('s_lshl_b32 s6, s66, 10')
        a.e('v_add_u32 v7, s6, v2')
        a.lds(f'ds_write_b128 v7, v[56:59] offset:{U4}', 'u4')
        prio(a, 3)
        Ln4 = a.newlab('Ln4')
        a.e(f's_cmp_lg_u32 s{sWAVE}, 4')
        a.e(f's_cbranch_scc1 {Ln4}')
        st1 = a.save()
        wf_reads()
        a.wait(lg='u4')
        a.e('s_barrier')
        for rt in range(4):
            a.lds(f'ds_read_b128 {vr(AC1 + 4 * rt, 4)}, v2 offset:{U4 + rt * 1024}', 'st')
        st_reads()
        a.e(f's_branch {L4}')
        a.label(Ln4)
        a.restore(st1)
        if OPT.get('t1', 4):
            L7 = a.newlab('L7')
            a.e(f's_cmp_lg_u32 s{sWAVE}, 7')
            a.e(f's_cbranch_scc1 {L7}')
            w1_touch(60, 0, OPT.get('t1', 4))
            a.label(L7)
        a.wait(lg='all')
        a.e('s_barrier')
        L7, L56 = a.newlab('L7'), a.newlab('L56')
        a.e(f's_cmp_eq_u32 s{sWAVE}, 7')
        a.e(f's_cbranch_scc1 {L7}')
        a.e(f's_cmp_eq_u32 s{sWAVE}, 6')
        a.e(f's_cselect_b32 s99, s{sTAU1}, s{sG}')
        a.e(f's_cselect_b32 s6, 4096, 0')
        a.e(f's_add_u32 s6, s6, {TWL1}')
        a.e('v_add_u32 v31, s6, v2')
        gen_TW(a, 16, 99, 31, 0)
        a.e(f's_branch {Lj}')
        a.label(L7)
        stage_all()
        a.label(Lj)
        a.e('s_nop 1')
        a.restore(stC)
        v_out_addr(a)
        a.wait(lg='all')
        a.e('s_barrier')
        a.stamp('VT')
        v_out(a, 1, R1, 64)
        for n in range(NR):
            bg.add(lambda n=n: w1load(n))
            if n < NST:
                bg.add(lambda n=n: stash(n))

        def pv1():
            a.wait(vm='vo')
            a.e('s_barrier')
            a.stamp('PV1')
            setflag_w0(a, PH_V[1], 7)
        a2_pre(1, lambda: bg.run(OPT.get('bga2', 3)), pv1)
        a.stamp('a2pre')

    a.label(end)
    a.e('s_endpgm')
    a.raw(descriptor(name, 256, 102))
    return 163840


def main():
    if len(sys.argv) > 2 and 'stamps' in sys.argv[2:]:
        Asm.STAMPS = True
    Asm.CYC = 'cyc' in sys.argv[2:]
    Asm.DBGOUT = 'dbgout' in sys.argv[2:]
    for o in sys.argv[2:]:
        if o.startswith('names='):
            Asm.ACTIVE = o[6:].split(',')
        elif '=' in o:
            k, v = o.split('=')
            OPT[k] = int(v)
    hdr = open('cdna_kernels/' + NAME + '.s.ref').read().split('\n')
    hdr = [l for l in hdr if l.startswith(';') and '@launch' not in l and 'Override launch' not in l and 'grid=ceil' not in l]
    out = '\n'.join(hdr) + '\n'
    a = Asm()
    lds = gen(a, NAME + '_kernel')
    out += f'; @launch grid=(256,1,1) block=(512,1,1) lds={lds}\n'
    if Asm.STAMPS:
        out += '; stampnames start,' + ','.join(Asm.ACTIVE) + '\n'
    out += '.amdgcn_target "amdgcn-amd-amdhsa--gfx950"\n'
    out += a.text()
    path = sys.argv[1] if len(sys.argv) > 1 else 'cdna_kernels/' + NAME + '.s'
    open(path, 'w').write(out)
    print('wrote', path, len(out))


main()
```

```python
import sys
from asmlib import *

NAME = 'interleave_layers__spectral_fnet__dense_activation_relu__prompt'
S, D, F = 2048, 640, 1728
W1F = 0
W2F = 0x220000
DPF = 0x440000
CSP = 0x510000
W1S = 0x540000
STG = 0x560000
FLG = 0x760000
VB = [0x960000, 0xC60000]
X1B = [0xF60000, 0x11E0000]
X2B = 0x1460000
HB = [0x16E0000, 0x1DA0000]
WS_BYTES = 268435456
OOB = 0x7f000000
SPIN = 200000
OPT = {}

R1 = 81920
PRV = 10240
STATS, CSS = 9216, PRV + 9216
CNT1, CNT2 = STATS + 512, STATS + 516
PSUM = 5 * PRV + 9216
XRL1, TWL1, W1SL, ST1 = R1 + 12288, R1 + 24576, 20480, 36864

sWAVE, sG, sC = 3, 4, 5
P_X, P_CR, P_CI, P_DR, P_DI, P_W1, P_W2, P_OUT, P_WS = 8, 10, 12, 14, 16, 20, 22, 24, 26
sWS, sOUT, sFL = 28, 32, 36
sRHO, sKT, sMIR, sNON, sU1, sU2 = 38, 39, 40, 41, 42, 43
sGCM, sFOWN, sW1B, sHK, sW2O, sHG, sFSRC, sTAU1, sPG, sFPAR = 44, 45, 46, 47, 48, 49, 50, 51, 52, 53


def fbits(x):
    import struct
    return struct.unpack('<I', struct.pack('<f', float(x)))[0]


def sin_frag(a, dst, tmp, vstep, vbase, ks):
    for e in range(8):
        a.e(f'v_fmamk_f32 v{tmp + e}, v{vstep}, 0x{fbits(ks[e]):08x}, v{vbase}')
    for e in range(8):
        a.e(f'v_sin_f32 v{tmp + e}, v{tmp + e}')
    for r in range(4):
        a.e(f'v_cvt_pk_bf16_f32 v{dst + r}, v{tmp + 2 * r}, v{tmp + 2 * r + 1}')


def gen_D(a, reg, tmp, rot, parts=(0, 1, 2)):
    st, ba = tmp + 8, tmp + 9
    if 0 in parts:
        a.e(f's_mul_i32 s6, s{sC}, 40')
        a.e(f's_min_u32 s7, s{sWAVE}, 4')
        a.e('s_lshl_b32 s7, s7, 3')
        a.e('s_add_u32 s6, s6, s7')
        a.e(f'v_and_b32 v{st}, 7, v1')
        a.e(f'v_add_u32 v{st}, s6, v{st}')
        a.e('v_mov_b32 v0, 320')
        a.e(f'v_cmp_eq_u32 vcc, 0, v{st}')
        a.e(f'v_cndmask_b32 v{st}, v{st}, v0, vcc')
        if rot is None:
            a.e(f'v_lshlrev_b32 v{ba}, 3, v9')
        else:
            a.e(f's_lshr_b32 s6, s{rot}, 1')
            a.e(f'v_lshl_add_u32 v{ba}, v9, 3, s6')
        a.e(f'v_mul_u32_u24 v{ba}, v{st}, v{ba}')
        a.e('v_mov_b32 v11, 160')
        a.e('v_cmp_gt_u32 vcc, 8, v8')
        a.e('v_cndmask_b32 v0, v0, v11, vcc')
        a.e(f'v_add_u32 v{ba}, v{ba}, v0')
        a.e('s_mov_b32 s7, 0x666667')
        a.e(f'v_mul_hi_u32 v0, v{ba}, s7')
        a.e('v_mul_u32_u24 v0, 640, v0')
        a.e(f'v_sub_u32 v{ba}, v{ba}, v0')
        a.e(f'v_cvt_f32_i32 v{ba}, v{ba}')
        a.e(f'v_cvt_f32_u32 v{st}, v{st}')
        a.e(f'v_mul_f32 v{ba}, 0x3acccccd, v{ba}')
        a.e(f'v_mul_f32 v{st}, 0x3acccccd, v{st}')
        for ks in range(3):
            sin_frag(a, reg(ks), tmp, st, ba, [32 * ks + e for e in range(8)])
    if 1 in parts:
        for ks in range(3, 5):
            sin_frag(a, reg(ks), tmp, st, ba, [32 * ks + e for e in range(8)])
        a.e('v_mov_b32 v13, 0x80008000')
        a.e('v_lshrrev_b32 v0, 1, v1')
        a.e('v_lshrrev_b32 v12, 3, v1')
        a.e('v_and_b32 v12, v12, v1')
        a.e('v_xor_b32 v0, v0, v12')
        a.e('v_and_b32 v0, 1, v0')
        a.e('v_cmp_eq_u32 vcc, 1, v0')
        a.e('v_cndmask_b32 v12, 0, v13, vcc')
        a.e('v_and_b32 v0, 1, v1')
        a.e('v_cmp_eq_u32 vcc, 1, v0')
        a.e(f'v_cndmask_b32 v{st}, 0, v13, vcc')
        for r in range(20):
            a.e(f'v_xor_b32 v{reg(5 + r // 4) + r % 4}, v{reg(r // 4) + r % 4}, v12')
        a.e('s_mov_b64 exec, vcc')
        a.e('s_nop 4')
        for r in range(20):
            a.e(f'v_xor_b32_dpp v{reg(5 + r // 4) + r % 4}, v{reg(r // 4) + r % 4}, v12 row_ror:8 row_mask:0xf bank_mask:0xf')
        a.e('s_mov_b64 exec, -1')
    if 2 in parts:
        for r in range(40):
            a.e(f'v_xor_b32 v{reg(10 + r // 4) + r % 4}, v{reg(r // 4) + r % 4}, v{st}')


def gen_W1(a, l, base, tmp, mats, smat=None, tts=range(4), stt=None):
    st, ba, qq, sg = tmp + 16, tmp + 17, tmp + 18, 13
    a.e(f'v_lshlrev_b32 v{qq}, 3, v9')
    a.e(f'v_cvt_f32_u32 v{qq}, v{qq}')
    a.e(f'v_and_b32 v{sg}, 1, v1')
    a.e(f'v_mul_u32_u24 v{sg}, 0x10001, v{sg}')
    a.e(f'v_lshlrev_b32 v{sg}, 15, v{sg}')
    for mat in mats:
        if smat is None:
            a.e(f'v_mov_b32 v0, 0x{fbits(0.5 if mat else 0.25):08x}')
        for tt in tts:
            a.e(f'v_add_u32 v{st}, {16 * tt}, v8')
            if stt is not None:
                a.e(f'v_add_u32 v{st}, s{stt}, v{st}')
            a.e(f'v_cvt_f32_u32 v{st}, v{st}')
            a.e(f'v_mul_f32 v{st}, 0x3c800000, v{st}')
            a.e(f'v_fma_f32 v{ba}, v{qq}, v{st}, {"v0" if smat is None else f"s{smat}"}')
            o = tmp + 8
            for e in range(8):
                k = e if l == 0 else 2 * (e % 4) + e // 4
                a.e(f'v_fmamk_f32 v{tmp + e}, v{st}, 0x{fbits(k):08x}, v{ba}')
            for e in range(8):
                a.e(f'v_sin_f32 v{tmp + e}, v{tmp + e}')
            dst = (0, 1, 2, 3) if l == 0 else (0, 1, 4, 5)
            for r in range(4):
                a.e(f'v_cvt_pk_bf16_f32 v{o + dst[r]}, v{tmp + 2 * r}, v{tmp + 2 * r + 1}')
            for r in range(4):
                a.e(f'v_xor_b32 v{o + dst[r] + (4 if l == 0 else 2)}, v{o + dst[r]}, v{sg}')
            for ks in range(2):
                a.lds(f'ds_write_b128 v{tmp + 19}, {vr(o + 4 * ks, 4)} offset:{base + ((mat * 4 + tt) * 2 + ks) * 1024}', 'gw')


def gen_TW(a, tmp, srho_tau, vaddr, off0):
    st, ba = tmp + 12, tmp + 13
    a.e(f'v_lshl_add_u32 v{st}, v10, 6, s{srho_tau}')
    a.e(f'v_cvt_f32_u32 v{st}, v{st}')
    a.e(f'v_mul_f32 v{st}, 0x3a000000, v{st}')
    a.e(f'v_lshlrev_b32 v{ba}, 3, v4')
    a.e(f'v_cvt_f32_u32 v{ba}, v{ba}')
    a.e(f'v_mul_f32 v{ba}, v{ba}, v{st}')
    for ks in (2, 3, 0, 1):
        if ks == 0:
            a.e(f'v_add_f32 v{ba}, 0x{fbits(0.25):08x}, v{ba}')
        sin_frag(a, tmp + 8, tmp, st, ba, [16 * (ks % 2) + e for e in range(8)])
        a.lds(f'ds_write_b128 v{vaddr}, {vr(tmp + 8, 4)} offset:{off0 + ks * 1024}', 'gw')


def weave(a, mfs, fill):
    fill = list(fill)
    for i, m in enumerate(mfs):
        a.e(m)
        left = len(mfs) - i
        for _ in range(-(-len(fill) // left)):
            fill.pop(0)()


class BG:
    def __init__(self):
        self.q = []

    def add(self, f):
        self.q.append(f)

    def run(self, n=None):
        n = len(self.q) if n is None else min(n, len(self.q))
        for _ in range(n):
            self.q.pop(0)()


PH_V, PH_X1, PH_S, PH_H, PH_X2 = (1, 6), (2, 7), (3, 8), (4, 9), 5
LOC = 0x80000
sXCC = 27


def poll_issue(a, vres, soff, phase, n, shift=7, first=0, tag='poll'):
    if shift == 'late':
        a.e(f'v_and_b32 v{vres}, 3, v1')
        a.e(f'v_min_u32 v{vres}, 2, v{vres}')
        a.e(f'v_lshlrev_b32 v{vres}, 7, v{vres}')
        a.e(f'v_lshl_add_u32 v{vres}, v4, 10, v{vres}')
        shift = 7
    else:
        a.e(f'v_min_u32 v{vres}, {n - 1}, v1')
        a.e(f'v_lshlrev_b32 v{vres}, {shift}, v{vres}')
    a.e(f's_add_u32 s60, s{soff}, 0x{FLG + (first << shift):x}')
    a.vmem(f'buffer_load_dword v{vres}, v{vres}, {sr(sWS, 4)}, s60 offen sc1', tag)


def poll_check(a, vres, soff, phase, n, shift=7, first=0, tag='poll'):
    L, Ld = a.newlab('Lpoll'), a.newlab('Lpd')
    a.e(f's_add_u32 s59, s{sNON}, {phase}')
    a.wait(vm=tag)
    a.e('s_mov_b32 s61, 0')
    a.label(L)
    a.e(f'v_subrev_u32 v{vres}, s59, v{vres}')
    a.e(f'v_cmp_le_u32 vcc, 16, v{vres}')
    a.e(f's_cbranch_vccz {Ld}')
    if OPT.get('abl_poll', 0) >> phase & 1:
        a.e(f's_branch {Ld}')
    if OPT.get('psleep', 2):
        a.e(f's_sleep {OPT.get("psleep", 2)}')
    st = a.save()
    poll_issue(a, vres, soff, phase, n, shift, first, tag)
    a.restore(st)
    a.e('s_waitcnt vmcnt(0)')
    a.e('s_add_u32 s61, s61, 1')
    a.e(f's_cmp_lt_u32 s61, {SPIN}')
    a.e(f's_cbranch_scc1 {L}')
    a.label(Ld)


def poll(a, vres, *args, **kw):
    poll_issue(a, vres, *args, **kw)
    poll_check(a, vres, *args, **kw)


def prio(a, p):
    if OPT.get('prio', 1):
        a.e(f's_setprio {p}')


def setflag(a, phase, vt):
    if phase is None:
        a.e('v_mov_b32 v0, 0')
    else:
        a.e(f's_add_u32 s62, s{sNON}, {phase}')
        a.e('v_mov_b32 v0, s62')
        a.e(f'v_writelane_b32 v0, s{sXCC}, 1')
    a.e(f'v_lshlrev_b32 v{vt}, 2, v1')
    a.e('s_mov_b32 exec_hi, 0')
    if phase is not None and phase not in PH_V:
        a.e(f's_add_u32 s62, s{sFOWN}, 0x{LOC:x}')
        a.vmem(f'buffer_store_dword v0, v{vt}, {sr(sWS, 4)}, s62 offen', 'flag')
    if phase is not None and phase not in PH_V and phase != PH_X1[0]:
        L = a.newlab('Lng')
        a.e('s_cmp_eq_u32 s26, 0')
        a.e(f's_cbranch_scc1 {L}')
        a.e(f'buffer_store_dword v0, v{vt}, {sr(sWS, 4)}, s{sFOWN} offen sc1')
        a.label(L)
    else:
        a.vmem(f'buffer_store_dword v0, v{vt}, {sr(sWS, 4)}, s{sFOWN} offen sc1', 'flag')
    if phase is None:
        a.e(f's_add_u32 s62, s{sFOWN}, 0x{LOC:x}')
        a.vmem(f'buffer_load_dword v254, v{vt}, {sr(sWS, 4)}, s62 offen sc1', 'flag')
    a.e('s_mov_b32 exec_hi, -1')


def setflag_w0(a, phase, vt):
    L = a.newlab('Lnf')
    a.e(f's_cmp_lg_u32 s{sWAVE}, 0')
    a.e(f's_cbranch_scc1 {L}')
    st = a.save()
    setflag(a, phase, vt)
    a.restore(st)
    a.label(L)


EXTRA = ['hst', 'flag', 'xst', 'vst', 'pst']


def merge(a, *states):
    ls = [[t for t in s[0] if t not in EXTRA and not (isinstance(t, tuple) and t[0] in EXTRA)] for s in states]
    ls.sort(key=len)
    longer = ls[-1]
    for s in ls[:-1]:
        assert longer[len(longer) - len(s):] == s, (longer, s)
    a.vm = list(longer)
    a.lg = []


def stats_finalize(a, AS, AM, ntiles, tmp, tile_stride, delta1, mode):
    t = tmp
    a.e(f'v_lshlrev_b32 v{t}, 2, v9')
    a.e(f'v_sub_u32 v{t}, v8, v{t}')
    a.e(f'v_lshl_add_u32 v{t + 1}, v8, 2, s6')
    a.e(f'v_cmp_eq_u32 s[70:71], 1, v{t}')
    a.e(f'v_cmp_eq_u32 s[72:73], 2, v{t}')
    a.e(f'v_cmp_eq_u32 s[74:75], 3, v{t}')
    a.e(f'v_cmp_gt_u32 s[76:77], 4, v{t}')
    a.e('s_mov_b32 s7, 0x3acccccd')
    for rt in range(ntiles):
        for acc in (AS, AM):
            b = acc + 4 * rt
            a.e(f'v_cndmask_b32 v{b}, v{b}, v{b + 1}, s[70:71]')
            a.e(f'v_cndmask_b32 v{b}, v{b}, v{b + 2}, s[72:73]')
            a.e(f'v_cndmask_b32 v{b}, v{b}, v{b + 3}, s[74:75]')
        ss, sm = AS + 4 * rt, AM + 4 * rt
        a.e(f'v_mul_f32 v{sm}, s7, v{sm}')
        a.e(f'v_mul_f32 v{ss}, s7, v{ss}')
        a.e(f'v_fma_f32 v{ss}, -v{sm}, v{sm}, v{ss}')
        a.e(f'v_max_f32 v{ss}, 0, v{ss}')
        a.e(f'v_add_f32 v{ss}, 0x3727c5ac, v{ss}')
        a.e(f'v_rsq_f32 v{ss}, v{ss}')
        if mode == 'rs_mr':
            a.e(f'v_mul_f32 v{sm}, v{sm}, v{ss}')
    a.e('s_mov_b64 exec, s[76:77]')
    for rt in range(ntiles):
        ss, sm = AS + 4 * rt, AM + 4 * rt
        first, second = (ss, sm) if mode == 'rs_mr' else (sm, ss)
        a.lds(f'ds_write_b32 v{t + 1}, v{first} offset:{rt * tile_stride}')
        a.lds(f'ds_write_b32 v{t + 1}, v{second} offset:{rt * tile_stride + delta1}')
    a.e('s_mov_b64 exec, -1')


def stage1(a, ACC, RSr, MRr, VA, wf, VT):
    a.e('v_cmp_gt_u32 vcc, 8, v8')
    a.e('v_mov_b32 v13, 0x80008000')
    a.e('v_cndmask_b32 v13, 0, v13, vcc')
    a.e('v_and_b32 v12, 1, v9')
    a.e('v_lshl_add_u32 v12, v12, 4, v8')
    a.e('v_mul_u32_u24 v12, 192, v12')
    a.e('v_lshrrev_b32 v11, 1, v9')
    a.e('v_mul_u32_u24 v11, 80, v11')
    a.e(f's_lshl_b32 s6, s{sWAVE}, 4')
    a.e(f's_add_u32 s6, s6, {VT}')
    a.e('v_add3_u32 v12, v12, v11, s6')
    a.wait(lg='st')
    for r in range(16):
        m = MRr[r // 4] + r % 4
        a.e(f'v_mul_f32 v{m}, v{m}, v14')
    for r in range(16):
        a.e(f'v_fma_f32 v{ACC + r}, v{ACC + r}, v{RSr[r // 4] + r % 4}, -v{MRr[r // 4] + r % 4}')
    for r in range(8):
        a.e(f'v_cvt_pk_bf16_f32 v{ACC + r}, v{ACC + 2 * r}, v{ACC + 2 * r + 1}')
    for r in range(8):
        a.e(f'v_xor_b32_dpp v{ACC + 8 + r}, v{ACC + r}, v13 row_ror:8 row_mask:0xf bank_mask:0xf')
    a.wait(lg='wf')
    for tt in range(4):
        for ks in range(2):
            for mat in range(2):
                src = ACC + 8 * mat + 4 * ks
                c = '0' if (ks == 0 and mat == 0) else vr(VA + 4 * tt, 4)
                a.e(f'v_mfma_f32_16x16x32_bf16 {vr(VA + 4 * tt, 4)}, {vr(src, 4)}, {vr(wf(mat, tt, ks), 4)}, {c}')
    for pr in range(2):
        b = VA + 8 * pr
        for r in range(4):
            a.e(f'v_cvt_pk_bf16_f32 v{b + r}, v{b + 2 * r}, v{b + 2 * r + 1}')
        a.e(f'v_permlane16_swap_b32 v{b}, v{b + 2}')
        a.e(f'v_permlane16_swap_b32 v{b + 1}, v{b + 3}')
        a.lds(f'ds_write_b128 v12, {vr(b, 4)} offset:{pr * 32 * 192}', 'vt')


def v_out_addr(a):
    for n, dst in ((0, 5), (8, 6)):
        a.e(f's_lshl_b32 s6, s{sWAVE}, 6')
        a.e(f's_add_u32 s6, s6, {n * 64}')
        a.e('v_add_u32 v0, s6, v1')
        a.e('v_mul_u32_u24 v7, 5462, v0')
        a.e('v_lshrrev_b32 v7, 16, v7')
        a.e('v_lshlrev_b32 v0, 4, v0')
        a.e(f's_mov_b32 s7, {8 * 32 * 192 - 192}')
        a.e(f'v_mad_u32_u24 v{dst}, v7, s7, v0')


def v_out(a, l, VT, R):
    a.e(f's_lshl_b32 s6, s{sWAVE}, 10')
    a.e(f's_add_u32 s6, s6, {VT}')
    a.e('v_add_u32 v0, s6, v2')
    a.lds(f'ds_read_b128 {vr(R, 4)}, v0', 'vo0')
    a.lds(f'ds_read_b128 {vr(R + 4, 4)}, v0 offset:8192', 'vo1')
    a.e(f's_lshl_b32 s6, s{sC}, 5')
    a.e(f's_add_u32 s6, s6, s{sG}')
    a.e('s_mulk_i32 s6, 192')
    a.e(f's_add_u32 s6, s6, 0x{VB[l]:x}')
    a.e(f's_cmp_lt_u32 s{sWAVE}, 4')
    a.e(f's_cselect_b32 s7, s6, 0x{OOB:x}')
    a.wait(lg='vo0')
    a.vmem(f'buffer_store_dwordx4 {vr(R, 4)}, v5, {sr(sWS, 4)}, s6 offen sc1', 'vo')
    a.wait(lg='vo1')
    a.vmem(f'buffer_store_dwordx4 {vr(R + 4, 4)}, v6, {sr(sWS, 4)}, s7 offen sc1', 'vo')


TW, Y, VF, PK, ID, XR, XM, XE = 16, 32, 48, 48, 48, 56, 16, 24
ACCX, XF = 16, 48
NR, NST = 12, 9
RING = [88 + 4 * k for k in range(12)]
JIT = [80, 84]
sHO, sWO = 8, 16
ACCB = 16
HBUF = [96 + 4 * k for k in range(5)]
ACCA = 96
XFS = [56, 64, 72, 80, 88, 236, 244]


def dreg(ks):
    return 16 + 4 * ks if ks < 10 else 196 + 4 * (ks - 10)


def w2reg(f):
    return 136 + 4 * f if f < 30 else 96 + 4 * (f - 30)


def gen(a, name):
    end = name + '_end'
    a.raw('.text')
    a.raw(f'.globl {name}')
    a.raw('.p2align 8')
    a.raw(f'.type {name},@function')
    a.label(name)
    a.e('s_cmp_ge_u32 s2, 256')
    a.e(f's_cbranch_scc1 {end}')
    a.stamp_init()
    a.stamp(0)
    a.e('s_load_dwordx16 s[8:23], s[0:1], 0')
    a.e('s_load_dwordx2 s[24:25], s[0:1], 64')
    a.e('s_load_dwordx2 s[26:27], s[0:1], 80')
    a.e('s_load_dwordx2 s[96:97], s[0:1], 72')
    a.e('v_lshrrev_b32 v1, 6, v0')
    a.e(f'v_readfirstlane_b32 s{sWAVE}, v1')
    a.e('v_and_b32 v1, 63, v0')
    if OPT.get('cpf', 1):
        a.e('s_getpc_b64 s[98:99]')
        a.label('Lpc')
        a.e('s_lshr_b32 s6, s2, 3')
        a.e('s_lshl_b32 s6, s6, 5')
        a.e('v_and_b32 v253, 31, v0')
        a.e('v_add_u32 v253, s6, v253')
        a.e('v_lshlrev_b32 v253, 7, v253')
        a.e(f'v_min_u32 v253, {end} - Lpc, v253')
        a.e('v_cmp_gt_u32 vcc, 32, v0')
        a.e('s_and_saveexec_b64 s[6:7], vcc')
        a.e('s_cbranch_execz Lpcd')
        a.e('global_load_dword v253, v253, s[98:99]')
        a.label('Lpcd')
        a.e('s_mov_b64 exec, -1')
    XM_ = OPT.get('xm', 0)
    a.e('s_and_b32 s6, s2, 7')
    a.e('s_lshr_b32 s7, s2, 3')
    a.e(f's_and_b32 s98, s6, {(1 << XM_) - 1}')
    a.e(f's_lshl_b32 s98, s98, {3 - XM_}')
    a.e(f's_and_b32 s99, s7, {(8 >> XM_) - 1}')
    a.e(f's_add_u32 s{sC}, s98, s99')
    a.e(f's_lshr_b32 s6, s6, {XM_}')
    a.e(f's_lshl_b32 s6, s6, {2 + XM_}')
    a.e(f's_lshr_b32 s7, s7, {3 - XM_}')
    a.e('s_add_u32 s101, s6, s7')
    a.e('s_lshr_b32 s6, s101, 1')
    a.e('s_sub_u32 s7, 32, s6')
    a.e('s_cmp_eq_u32 s6, 0')
    a.e('s_cselect_b32 s7, 16, s7')
    a.e('s_bitcmp1_b32 s101, 0')
    a.e(f's_cselect_b32 s{sG}, s7, s6')
    a.e('v_lshlrev_b32 v2, 4, v1')
    a.e('v_and_b32 v8, 15, v1')
    a.e('v_lshrrev_b32 v9, 4, v1')
    a.e('v_and_b32 v10, 31, v1')
    a.e('v_lshrrev_b32 v4, 5, v1')

    sX, sW1, sW2, sCS = 56, 68, 72, 12
    sWK, sROT = 54, 55
    RS, MR, CNT0 = 0, 256, 512
    W1L = 1024
    WP1 = W1L + 16384
    W2S = WP1 + 14336
    VT0 = W2S + 10240
    XRL0 = VT0 + 12288
    TWL0 = XRL0 + 12288
    EW = 1
    vXA, vF0, vF1, vO8, vSW = 240, 244, 245, 246, 247
    a.e(f'v_lshrrev_b32 v{vO8}, 3, v1')
    a.e(f'v_and_b32 v{vSW}, 7, v1')
    a.e(f'v_xor_b32 v{vSW}, v{vSW}, v{vO8}')
    a.e(f'v_lshlrev_b32 v{vSW}, 4, v{vSW}')
    a.e(f's_and_b32 s{sKT}, s{sWAVE}, 1')
    a.e(f's_lshr_b32 s{sMIR}, s{sWAVE}, 2')
    a.e(f's_bfe_u32 s{sRHO}, s{sWAVE}, 0x10001')
    a.e(f's_lshl_b32 s6, s{sKT}, 4')
    a.e(f's_lshl_b32 s7, s{sMIR}, 5')
    a.e('s_add_u32 s6, s6, s7')
    a.e(f's_lshl_b32 s7, s{sRHO}, 2')
    a.e('s_add_u32 s6, s6, s7')
    a.e(f'v_lshrrev_b32 v{vXA}, 2, v{vO8}')
    a.e(f'v_lshlrev_b32 v{vXA}, 3, v{vXA}')
    a.e(f'v_and_b32 v0, 3, v{vO8}')
    a.e(f'v_add3_u32 v{vXA}, v{vXA}, v0, s6')
    a.e(f'v_lshl_add_u32 v{vXA}, v{vXA}, 5, s{sG}')
    a.e('s_movk_i32 s62, 1280')
    a.e(f'v_mad_u32_u24 v{vXA}, v{vXA}, s62, v{vSW}')
    a.e(f's_lshl_b32 s{sWK}, s{sWAVE}, 10')
    a.e(f's_lshl_b32 s{sROT}, s{sC}, 7' if OPT.get('rot', 1) else f's_mov_b32 s{sROT}, 0')
    a.e('s_waitcnt lgkmcnt(0)')
    a.stamp('karg')
    a.srd(sX, P_X, S * D * 2)

    def dma_x(kc):
        a.e(f's_add_u32 s99, s{sROT}, {kc * 128}')
        if kc >= 3:
            a.e('s_cmp_ge_u32 s99, 1280')
            a.e('s_cselect_b32 s18, 1280, 0')
            a.e('s_sub_u32 s99, s99, s18')
        a.e(f's_add_u32 m0, s{sWK}, {R1 + kc * 8192}')
        a.vmem(f'buffer_load_dwordx4 v{vXA}, {sr(sX, 4)}, s99 offen lds', ('c', 0 if kc < 4 else 1))

    for kc in range(4):
        dma_x(kc)
    a.srd(sW1, P_W1, D * F * 2)
    a.srd(sW2, P_W2, D * F * 2)
    a.srd(sWS, P_WS, WS_BYTES)
    a.srd(sOUT, P_OUT, S * D * 2)
    for kc in range(4, 10):
        dma_x(kc)
    a.e(f's_sub_u32 s6, 64, s{sG}')
    a.e(f's_cmp_eq_u32 s{sG}, 0')
    a.e(f's_cselect_b32 s{sTAU1}, 32, s6')
    a.e(f's_mul_i32 s6, s{sC}, 7')
    a.e('s_min_u32 s100, s6, 48')
    a.e('s_lshl_b32 s6, s100, 1')
    a.e(f's_lshl_b32 s7, s{sWAVE}, 1')
    a.e(f's_add_u32 s{sU1}, s6, s7')
    a.e(f's_min_u32 s{sU1}, s{sU1}, 106')
    a.e(f's_cmp_lt_u32 s{sC}, 6')
    a.e(f's_cselect_b32 s{sU2}, 7, 6')
    a.e(f's_mul_i32 s{sGCM}, s{sG}, 81920')
    a.e(f's_lshl_b32 s6, s{sG}, 3')
    a.e(f's_add_u32 s7, s6, s{sC}')
    a.e('s_lshl_b32 s7, s7, 3')
    a.e(f's_add_u32 s7, s7, s{sWAVE}')
    a.e('s_lshl_b32 s7, s7, 7')
    a.e(f's_add_u32 s{sFOWN}, s7, 0x{FLG:x}')
    a.e(f's_add_u32 s7, s6, s{sWAVE}')
    a.e(f's_lshl_b32 s{sFSRC}, s7, 10')
    a.e(f's_sub_u32 s{sPG}, 32, s{sG}')
    a.e(f's_and_b32 s{sPG}, s{sPG}, 31')
    a.e(f's_lshl_b32 s7, s{sPG}, 3')
    a.e(f's_add_u32 s7, s7, s{sWAVE}')
    a.e(f's_lshl_b32 s{sFPAR}, s7, 10')
    a.e(f's_mul_i32 s{sW1B}, s{sU1}, 20480')
    a.e(f's_cmp_ge_u32 s{sWAVE}, s{sU2}')
    a.e(f's_cselect_b32 s{sW1B}, 0x{OOB:x}, s{sW1B}')
    a.e(f's_getreg_b32 s{sXCC}, hwreg(HW_REG_XCC_ID)')
    a.e(f's_and_b32 s{sXCC}, s{sXCC}, 15')
    a.e(f's_mul_i32 s{sHG}, s{sG}, {216 * 1024}')
    a.e(f's_mul_i32 s{sW2O}, s{sC}, {54 * 5120}')
    a.e(f's_add_u32 s{sW2O}, s{sW2O}, 0x{W2F:x}')
    a.e(f's_mul_i32 s98, s{sWAVE}, 14')
    for i in range(8):
        a.e(f's_add_u32 s6, s{sWAVE}, {min(7 * i, 48)}')
        if i < 6:
            a.e(f's_sub_u32 s7, s98, {52 - (0, 1, 2, 7, 8, 9)[i]}')
            a.e(f's_cmp_ge_u32 s{sWAVE}, 4')
            a.e('s_cselect_b32 s6, s7, s6')
            a.e(f's_cmp_eq_u32 s{sWAVE}, 7')
            a.e(f's_cselect_b32 s6, {(46, 47, 52, 53, 0x40000, 0x40000)[i]}, s6')
        a.e('s_lshl_b32 s7, s6, 12')
        a.e(f's_add_u32 s{sHO + i}, s7, s{sHG}')
        a.e('s_mulk_i32 s6, 5120')
        a.e(f's_add_u32 s{sWO + i}, s6, s{sW2O}')
    a.e('v_lshlrev_b32 v3, 4, v8')
    a.e('v_lshl_add_u32 v3, v9, 10, v3')
    a.e(f'v_and_b32 v{vF0}, 7, v1')
    a.e(f'v_xor_b32 v{vF0}, v{vF0}, v9')
    a.e(f'v_lshlrev_b32 v{vF0}, 4, v{vF0}')
    a.e(f'v_lshl_add_u32 v{vF0}, v8, 7, v{vF0}')
    a.e(f'v_xor_b32 v{vF1}, 64, v{vF0}')

    a.e('v_mov_b32 v0, 0')
    a.lds(f'ds_write_b32 v0, v0 offset:{CNT0}', 'z')

    def side(job):
        if job == 'late':
            a.e(f's_mov_b32 s62, 0x{FLG + 0x40000:x}')
            a.vmem(f'buffer_load_dword v252, off, {sr(sWS, 4)}, s62 sc1', 'non')
            setflag(a, None, 5)
        if job == 'nonc':
            a.wait(vm='non')
            a.e(f'v_readfirstlane_b32 s{sNON}, v252')
            a.e(f's_add_u32 s{sNON}, s{sNON}, 16')
            a.e(f's_and_b32 s{sNON}, s{sNON}, -16')
            a.e(f's_bitset1_b32 s{sNON}, 31')

    def cnt0_add():
        a.e('v_mov_b32 v5, 0')
        a.e('v_mov_b32 v0, 1')
        a.e('s_mov_b64 exec, 1')
        a.lds(f'ds_add_u32 v5, v0 offset:{CNT0}', 'cnt')
        a.e('s_mov_b64 exec, -1')

    def cnt0_wait():
        L, Ld = a.newlab('Lcw'), a.newlab('Lcd')
        a.e('s_mov_b32 s61, 0')
        a.label(L)
        a.e('v_mov_b32 v5, 0')
        a.e(f'ds_read_b32 v5, v5 offset:{CNT0}')
        a.e('s_waitcnt lgkmcnt(0)')
        a.lg.clear()
        a.e('v_cmp_gt_u32 vcc, 8, v5')
        a.e(f's_cbranch_vccz {Ld}')
        a.e('s_sleep 1')
        a.e('s_add_u32 s61, s61, 1')
        a.e(f's_cmp_lt_u32 s61, {SPIN}')
        a.e(f's_cbranch_scc1 {L}')
        a.label(Ld)

    def first_barrier():
        a.stamp('p0iss')
        a.wait(vm=('c', 0), lg='all')
        a.e('s_barrier')
        a.stamp('p0c0')

    def mainloop(read, mfma, la, pre=None):
        a.e(f'v_add_u32 v250, 40960, v248')
        a.e(f'v_add_u32 v251, 40960, v249')
        first_barrier()
        if pre:
            a.wait(vm=('c', 1))
            cnt0_add()
            pre()
            side('late')
        for j in range(la):
            for f in read(j):
                f()
        for j in range(20):
            if j == OPT.get('p0a', 2) and not pre:
                a.wait(vm=('c', 1))
                cnt0_add()
                side('late')
            if j + la == 8:
                cnt0_wait()
                a.stamp('p0c2')
            a.wait(lg=('f', j))
            weave(a, mfma(j), read(j + la) if j + la < 20 else [])
        side('nonc')

    def xoff(j, rt):
        return 248 + j % 2 + (2 if j >= 10 else 0), ((j // 2) % 5) * 8192 + rt * 2048

    Lstat, Lcol, Lj0 = a.newlab('Lp0s'), a.newlab('Lp0c'), a.newlab('Lp0j')
    a.e(f's_cmp_eq_u32 s{sWAVE}, 7')
    a.e(f's_cbranch_scc1 {Lcol}')
    a.e(f's_cmp_ge_u32 s{sWAVE}, 5')
    a.e(f's_cbranch_scc1 {Lstat}')
    st0 = a.save()
    ACC, FR, DG, TG = 16, 32, 112, 192
    for r in range(4):
        a.e(f'v_mov_b32 v{TG + 16 + r}, 0x3f803f80')
    gen_D(a, lambda ks: DG + 4 * ks, TG, sROT)
    for ks in range(20):
        a.e(f'v_mfma_f32_16x16x32_bf16 v[{TG + 20}:{TG + 23}], {vr(TG + 16, 4)}, {vr(DG + 4 * ks, 4)}, {"0" if ks == 0 else vr(TG + 20, 4)}')
    a.e(f'v_add_u32 v248, {R1}, v{vF0}')
    a.e(f'v_add_u32 v249, {R1}, v{vF1}')
    a.e(f'v_mov_b32 v14, v{TG + 20}')

    def read_c(j):
        return [lambda rt=rt: a.lds(f'ds_read_b128 {vr(FR + 16 * (j % 4) + 4 * rt, 4)}, v{xoff(j, rt)[0]} offset:{xoff(j, rt)[1]}', ('f', j)) for rt in range(4)]

    def mfma_c(j):
        return [f'v_mfma_f32_16x16x32_bf16 {vr(ACC + 4 * rt, 4)}, {vr(FR + 16 * (j % 4) + 4 * rt, 4)}, {vr(DG + 4 * j, 4)}, {"0" if j == 0 else vr(ACC + 4 * rt, 4)}' for rt in range(4)]

    mainloop(read_c, mfma_c, 3)
    WF, RSr, MRr = 32, [192, 196, 200, 204], [208, 212, 216, 220]
    wf0 = lambda mat, tt, ks: WF + ((mat * 4 + tt) * 2 + ks) * 4
    for tt in range(4):
        for ks in range(2):
            for mat in range(2):
                a.lds(f'ds_read_b128 {vr(wf0(mat, tt, ks), 4)}, v2 offset:{W1L + ((mat * 4 + tt) * 2 + ks) * 1024}', 'wf')
    a.e('v_lshlrev_b32 v12, 4, v9')
    a.stamp('p0end')
    a.e('s_barrier')
    for rt in range(4):
        a.lds(f'ds_read_b128 {vr(RSr[rt], 4)}, v12 offset:{RS + rt * 64}', 'st')
        a.lds(f'ds_read_b128 {vr(MRr[rt], 4)}, v12 offset:{MR + rt * 64}', 'st')
    stage1(a, ACC, RSr, MRr, 96, wf0, VT0)
    stC = a.save()
    a.e(f's_branch {Lj0}')

    a.label(Lstat)
    a.restore(st0)
    AS, AM, ONE, FS = 24, 32, 40, 44
    for r in range(4):
        a.e(f'v_mov_b32 v{ONE + r}, 0x3f803f80')
    a.e(f's_sub_u32 s60, s{sWAVE}, 5')
    a.e('s_lshl_b32 s60, s60, 12')
    a.e(f's_add_u32 s6, s60, {R1}')
    a.e(f'v_add_u32 v248, s6, v{vF0}')
    a.e(f'v_add_u32 v249, s6, v{vF1}')

    for n in range(3):
        a.e(f'v_add_u32 v0, {n * 64}, v1')
        a.e('v_mul_u32_u24 v7, 5462, v0')
        a.e('v_lshrrev_b32 v7, 16, v7')
        a.e('v_mul_u32_u24 v5, 12, v7')
        a.e('v_sub_u32 v0, v0, v5')
        a.e(f's_mul_i32 s6, s{sC}, 5')
        a.e('s_sub_u32 s7, 70, s6')
        a.e('v_add_u32 v5, s6, v0')
        a.e('v_add_u32 v6, s7, v0')
        a.e('v_cmp_le_u32 vcc, 5, v0')
        a.e('v_cndmask_b32 v5, v5, v6, vcc')
        a.e('v_cmp_eq_u32 vcc, 80, v5')
        a.e('v_cndmask_b32 v5, v5, 0, vcc')
        a.e('v_cmp_eq_u32 vcc, 11, v0')
        a.e('v_cndmask_b32 v5, v5, 40, vcc')
        a.e(f'v_mul_u32_u24 v7, {64 * 1280}, v7')
        a.e(f'v_lshl_add_u32 v{120 + n}, v5, 4, v7')

    a.e(f's_cmp_eq_u32 s{sWAVE}, 6')
    a.e(f's_cselect_b32 s98, 0.5, 0x{fbits(0.25):08x}')
    a.e(f's_cselect_b32 s99, s{sTAU1}, s{sG}')
    a.e('s_lshl_b32 s6, s60, 1')
    a.e('v_add_u32 v99, s6, v2')
    gen_W1(a, 0, W1L, 80, (0,), 98)

    def stage0():
        a.e('s_mul_i32 s64, s99, 1280')
        a.e(f's_mul_i32 s6, s60, 3')
        a.e('s_lshr_b32 s6, s6, 1')
        for n in range(6):
            if n == 3:
                a.e(f's_add_u32 s64, s64, {16 * 64 * 1280}')
            a.e(f's_add_u32 m0, s6, {XRL0 + n * 1024}')
            a.vmem(f'buffer_load_dwordx4 v{120 + n % 3}, {sr(sX, 4)}, s64 offen lds', 'stg')

    def read_s(j):
        return [lambda rt=rt: a.lds(f'ds_read_b128 {vr(FS + 8 * (j % 4) + 4 * rt, 4)}, v{xoff(j, rt)[0]} offset:{xoff(j, rt)[1]}', ('f', j)) for rt in range(2)]

    def mfma_s(j):
        out = []
        for rt in range(2):
            f = vr(FS + 8 * (j % 4) + 4 * rt, 4)
            out.append(f'v_mfma_f32_16x16x32_bf16 {vr(AS + 4 * rt, 4)}, {f}, {f}, {"0" if j == 0 else vr(AS + 4 * rt, 4)}')
            out.append(f'v_mfma_f32_16x16x32_bf16 {vr(AM + 4 * rt, 4)}, {f}, {vr(ONE, 4)}, {"0" if j == 0 else vr(AM + 4 * rt, 4)}')
        return out

    mainloop(read_s, mfma_s, 3, stage0)
    a.e('s_lshr_b32 s6, s60, 5')
    stats_finalize(a, AS, AM, 2, 12, 64, MR - RS, 'rs_mr')
    a.wait(lg='all')
    a.stamp('p0end')
    a.e('s_barrier')
    a.e(f's_add_u32 s6, s60, {TWL0}')
    a.e('v_add_u32 v95, s6, v2')
    gen_TW(a, 80, 99, 95, 0)
    a.e(f's_branch {Lj0}')

    a.label(Lcol)
    a.restore(st0)
    a.e('s_movk_i32 s7, 1120')
    for n in range(5):
        a.e(f'v_add_u32 v0, {64 * n}, v1')
        a.e('v_mul_u32_u24 v5, 6554, v0')
        a.e('v_lshrrev_b32 v5, 16, v5')
        a.e('v_lshlrev_b32 v0, 4, v0')
        a.e(f'v_mad_u32_u24 v{120 + n}, v5, s7, v0')
    a.e(f's_mul_i32 s6, s{sG}, 40960')
    a.e(f's_mul_i32 s7, s{sC}, 160')
    a.e('s_add_u32 s6, s6, s7')
    a.e(f's_add_u32 s7, s6, {32 * 40960}')
    for t in range(2):
        for n in range(5):
            a.e(f's_mov_b32 m0, {W2S + t * 5120 + n * 1024}')
            a.vmem(f'buffer_load_dwordx4 v{120 + n}, {sr(sW2, 4)}, s{6 + t} offen lds', 'wsh')
    WA = 128
    a.e(f's_and_b32 s6, s{sG}, 7')
    a.e('s_mul_i32 s98, s6, 5')
    a.e('s_mul_i32 s99, s6, 10')
    a.e('s_add_u32 s99, s99, 4')
    a.e(f's_bfe_u32 s7, s{sG}, 0x10003')
    a.e(f's_cmp_ge_u32 s{sG}, 16')
    a.e('s_cselect_b64 s[76:77], -1, 0')
    for n in range(7):
        a.e(f'v_add_u32 v0, {64 * n}, v1')
        a.e('v_mul_u32_u24 v5, 4682, v0')
        a.e('v_lshrrev_b32 v5, 16, v5')
        a.e('v_mul_u32_u24 v6, 14, v5')
        a.e('v_sub_u32 v0, v0, v6')
        a.e('v_lshrrev_b32 v6, 3, v5')
        a.e('v_add_u32 v7, s98, v6')
        a.e('v_lshrrev_b32 v11, 1, v6')
        a.e('v_mad_u32_u24 v11, v11, 5, s99')
        a.e('v_mov_b32 v12, s7')
        a.e('v_and_b32 v6, 1, v6')
        a.e('v_cndmask_b32 v7, v7, v11, s[76:77]')
        a.e('v_cndmask_b32 v6, v12, v6, s[76:77]')
        a.e('v_and_b32 v5, 7, v5')
        a.e('v_lshl_add_u32 v5, v7, 3, v5')
        a.e('v_sub_u32 v7, 640, v5')
        a.e('v_cmp_eq_u32 vcc, 1, v6')
        a.e('v_cndmask_b32 v5, v5, v7, vcc')
        if n == 0:
            a.e('v_mov_b32 v6, 320')
            a.e('v_cmp_eq_u32 vcc, 0, v5')
            a.e('v_cndmask_b32 v5, v5, v6, vcc')
            a.e('v_cmp_eq_u32 vcc, 640, v5')
            a.e('v_cndmask_b32 v5, v5, 0, vcc')
        a.e('v_and_b32 v5, 0x3ff, v5')
        a.e('v_mul_u32_u24 v5, 3456, v5')
        a.e(f'v_lshl_add_u32 v{WA + n}, v0, 4, v5')

    def w1_in():
        a.e('s_lshl_b32 s7, s100, 6')
        a.e(f's_cmp_lt_u32 s{sG}, 20')
        a.e(f's_cselect_b32 s7, s7, 0x{OOB:x}')
        a.e('s_add_u32 s6, s7, 224')
        for t in range(2):
            for n in range(7):
                a.e(f's_mov_b32 m0, {WP1 + t * 7168 + n * 1024}')
                a.vmem(f'buffer_load_dwordx4 v{WA + n}, {sr(sW1, 4)}, s{7 - t} offen lds', ('wsh1', t))
    if OPT.get('w1e', 1):
        w1_in()
    first_barrier()
    if not OPT.get('w1e', 1):
        w1_in()
    a.wait(vm=('c', 1))
    cnt0_add()
    side('late')

    def w2_out():
        a.e('v_bfe_u32 v5, v1, 2, 2')
        a.e('v_lshl_add_u32 v5, v9, 3, v5')
        a.e('v_mul_u32_u24 v5, 160, v5')
        a.e('v_and_b32 v0, 3, v1')
        a.e('v_lshl_add_u32 v5, v0, 3, v5')
        a.e(f'v_add_u32 v5, {W2S}, v5')
        a.wait(vm='wsh')
        for u in range(10):
            for rd in range(2):
                a.lds(f'ds_read_b64_tr_b16 {vr(136 + 4 * u + 2 * rd, 2)}, v5 offset:{(u // 5) * 5120 + (u % 5) * 32 + rd * 640}', ('pf', u))
        a.e(f's_mul_i32 s6, s{sC}, 54')
        a.e(f's_add_u32 s6, s6, s{sG}')
        a.e('s_mul_i32 s6, s6, 5120')
        a.e(f's_add_u32 s6, s6, 0x{W2F:x}')
        for u in range(10):
            if u == 5:
                a.e(f's_cmp_ge_u32 s{sG}, 22')
                a.e(f's_cselect_b32 s6, 0x{OOB:x}, s6')
            a.wait(lg=('pf', u))
            a.e(f's_add_u32 s7, s6, {(u // 5) * 32 * 5120 + (u % 5) * 1024}')
            a.vmem(f'buffer_store_dwordx4 {vr(136 + 4 * u, 4)}, v2, {sr(sWS, 4)}, s7 offen sc1', 'w2o')

    w2_out()
    side('nonc')
    W1B = OPT.get('w1b', 1)

    def bar7():
        a.stamp('p0end')
        a.e('s_barrier')
    if not W1B:
        a.wait(vm='w2o')
        setflag(a, PH_V[0], 5)
        bar7()
    Lw1 = a.newlab('Lw1')
    a.e(f's_cmp_ge_u32 s{sG}, 20')
    a.e(f's_cbranch_scc1 {Lw1}')
    st = a.save()
    for t in range(2):
        a.e('v_bfe_u32 v5, v1, 2, 2')
        a.e('v_lshl_add_u32 v5, v9, 3, v5')
        a.e('v_mul_u32_u24 v5, 224, v5')
        a.e('v_and_b32 v0, 3, v1')
        a.e('v_lshl_add_u32 v5, v0, 3, v5')
        a.e(f'v_add_u32 v5, {WP1 + t * 7168}, v5')
        a.e(f's_mov_b32 s60, {7 * t}')
        a.wait(vm=('wsh1', t))
        for u in range(7):
            for rd in range(2):
                a.lds(f'ds_read_b64_tr_b16 {vr(16 + 4 * u + 2 * rd, 2)}, v5 offset:{rd * 4 * 224 + u * 32}', ('pf', u))
        a.e('s_lshl_b32 s6, s100, 1')
        a.e('s_add_u32 s60, s60, s6')
        a.e('s_mul_i32 s6, s60, 20')
        a.e(f's_add_u32 s6, s6, s{sG}')
        a.e('s_lshl_b32 s6, s6, 10')
        a.e(f's_mov_b32 s98, s{sC}' if t else 's_mov_b32 s98, 0')
        a.e('s_mov_b32 s99, 0x3f803f80')
        for u in range(7):
            a.wait(lg=('pf', u))
            a.e(f's_add_u32 s7, s6, {W1F + u * 20480}')
            if u >= 5:
                a.e('s_cmp_ge_u32 s98, 6')
                a.e(f's_cselect_b32 s7, 0x{OOB:x}, s7')
            a.vmem(f'buffer_store_dwordx4 {vr(16 + 4 * u, 4)}, v2, {sr(sWS, 4)}, s7 offen sc1', 'w1o')
            a.e(f'v_mov_b32 v{48 + u}, 0')
        a.e('v_mov_b32 v55, 0')
        for d in range(4):
            for u in range(7):
                a.e(f'v_dot2_f32_bf16 v{48 + u}, v{16 + 4 * u + d}, s99, v{48 + u}')
        a.e('s_nop 3')
        for u in range(0, 8, 2):
            a.e(f'v_permlane16_swap_b32 v{48 + u}, v{49 + u}')
        for u in range(0, 8, 2):
            a.e(f'v_add_f32 v{48 + u}, v{48 + u}, v{49 + u}')
        for u in (0, 4):
            a.e(f'v_permlane32_swap_b32 v{48 + u}, v{50 + u}')
        for u in (0, 4):
            a.e(f'v_add_f32 v{48 + u}, v{48 + u}, v{50 + u}')
        a.e(f's_mul_i32 s6, s{sG}, 6912')
        a.e('s_lshl_b32 s7, s60, 6')
        a.e('s_add_u32 s6, s6, s7')
        a.e(f's_add_u32 s6, s6, 0x{CSP:x}')
        a.e('v_lshlrev_b32 v5, 2, v1')
        a.vmem(f'buffer_store_dword v48, v5, {sr(sWS, 4)}, s6 offen sc1', 'w1o')
        a.e('s_cmp_ge_u32 s98, 6')
        a.e('s_cselect_b32 exec_lo, 0xffff, -1')
        a.e('s_cselect_b32 exec_hi, 0, 0xffff')
        a.vmem(f'buffer_store_dword v52, v5, {sr(sWS, 4)}, s6 offen offset:256 sc1', 'w1o')
        a.e('s_mov_b64 exec, -1')
    if W1B:
        a.wait(vm='w2o')
        Lw3 = a.newlab('Lw3')
        a.e(f's_branch {Lw3}')
    a.restore(st)
    a.label(Lw1)
    if W1B:
        a.wait(vm='w2o')
        a.label(Lw3)
        setflag(a, PH_V[0], 5)
        bar7()
    a.label(Lj0)
    a.e('s_nop 1')
    a.restore(stC)
    v_out_addr(a)
    if EW:
        a.e(f's_lshl_b32 s67, s{sC}, 10')
        a.e('s_add_u32 s67, s67, 896')
        pW = (253, 67, PH_V[0], 32, 13)
    a.wait(lg='all')
    a.e('s_barrier')
    a.stamp('p0vt')
    v_out(a, 0, VT0, 64)
    a.stamp('vo0')


    LSC = ' sc1'

    def xstore(text, tag, local):
        if not local:
            a.vmem(text + ' sc1', tag)
            return
        L, Lj = a.newlab('Lst'), a.newlab('Lsj')
        a.e('s_cmp_eq_u32 s26, 0')
        a.e(f's_cbranch_scc1 {L}')
        a.e(text + ' sc1')
        a.e(f's_branch {Lj}')
        a.label(L)
        a.vmem(text, tag)
        a.label(Lj)
        a.e('s_nop 1')

    def warm(vd, sbase, add, n, step=8192, lanes=None):
        a.e('v_lshlrev_b32 v0, 7, v1')
        for k in range(n):
            a.e(f's_add_u32 s64, s{sbase}, 0x{add + k * step:x}')
            a.vmem(f'buffer_load_dword v{vd}, v0, {sr(sWS, 4)}, s64 offen sc1', 'warm')

    LP = OPT.get('lp', 8)
    if LP:
        X1B[1] = X1B[0]
        HB[1] = HB[0]

    def w1load(n):
        a.e(f's_add_u32 s64, s{sW1B}, {n * 1024}')
        a.vmem(f'buffer_load_dwordx4 {vr(RING[n % NR], 4)}, v2, {sr(sWS, 4)}, s64 offen sc1', ('w1', n))

    def stash(n):
        a.e(f's_add_u32 m0, s69, {(n % NST) * 1024}')
        a.e(f's_add_u32 s64, s{sW1B}, {20480 + n * 1024}')
        a.vmem(f'buffer_load_dwordx4 v2, {sr(sWS, 4)}, s64 offen sc1 lds', ('ws', n))

    def w2load(f):
        if f % 5 == 4:
            a.e(f's_add_u32 s64, s{sWO + f // 5}, 4096')
            a.vmem(f'buffer_load_dwordx4 {vr(w2reg(f), 4)}, v2, {sr(sWS, 4)}, s64 offen sc1', ('w2', f))
        else:
            a.vmem(f'buffer_load_dwordx4 {vr(w2reg(f), 4)}, v2, {sr(sWS, 4)}, s{sWO + f // 5} offen offset:{(f % 5) * 1024} sc1', ('w2', f))

    def dest_row(vd):
        a.e(f's_lshl_b32 s6, s{sRHO}, 5')
        a.e(f'v_add_u32 v{vd}, s6, v10')
        a.e(f'v_sub_u32 v11, 63, v{vd}')
        a.e('v_sub_u32 v12, 32, v10')
        a.e('v_and_b32 v12, 31, v12')
        a.e('v_sub_u32 v13, 63, v10')
        a.e(f's_cmp_eq_u32 s{sRHO}, 0')
        a.e('s_cselect_b64 vcc, -1, 0')
        a.e('v_cndmask_b32 v12, v13, v12, vcc')
        a.e(f's_cmp_eq_u32 s{sG}, 0')
        a.e('s_cselect_b64 vcc, -1, 0')
        a.e('v_cndmask_b32 v11, v11, v12, vcc')
        a.e(f's_cmp_eq_u32 s{sMIR}, 1')
        a.e('s_cselect_b64 vcc, -1, 0')
        a.e(f'v_cndmask_b32 v{vd}, v{vd}, v11, vcc')

    def w1_touch(vd, t0, t1):
        a.e('v_min_u32 v0, 23, v10')
        a.e('v_lshlrev_b32 v0, 7, v0')
        a.e('s_movk_i32 s7, 20480')
        a.e('v_mad_u32_u24 v0, v4, s7, v0')
        a.e('s_and_b32 s6, s101, 3')
        a.e('s_mul_i32 s6, s6, 3072')
        a.e('s_mul_i32 s7, s100, 40960')
        a.e('s_add_u32 s6, s6, s7')
        for t in range(t0, t1):
            a.e(f's_add_u32 s7, s6, {W1F + 8192 + t * 40960}')
            a.vmem(f'buffer_load_dword v{vd}, v0, {sr(sWS, 4)}, s7 offen sc1', 'touch')

    def stage_all():
        a.e('v_mul_u32_u24 v0, 40960, v4')
        a.e('v_lshl_add_u32 v0, v10, 4, v0')
        a.e(f's_mul_i32 s6, s{sC}, 2560')
        a.e(f's_add_u32 s62, s{sGCM}, 0x{X2B:x}')
        for p in range(12):
            if p < 5:
                a.e(f's_add_u32 s64, s6, {p * 512}')
            elif p < 11:
                a.e(f's_sub_u32 s64, {(70 + p) * 512}, s6')
                if p == 10:
                    a.e(f's_cmp_eq_u32 s{sC}, 0')
                    a.e('s_cselect_b32 s64, 0, s64')
            else:
                a.e(f's_movk_i32 s64, {40 * 512}')
            a.e('s_add_u32 s64, s64, s62')
            a.e(f's_mov_b32 m0, {XRL1 + p * 1024}')
            a.vmem(f'buffer_load_dwordx4 v0, {sr(sWS, 4)}, s64 offen sc1 lds', 'xrd')

    def a2_pre(l, hook=lambda: None, mid=lambda: None):
        xb, A, shB, twb = ((XRL0, 192, 4, TWL0), (XRL1, 16, 10, TWL1))[l]
        dest_row(5)
        a.e('v_bfe_u32 v11, v1, 2, 1')
        a.e('v_and_b32 v12, 1, v1')
        a.e('v_lshlrev_b32 v12, 4, v12')
        a.e('v_mov_b32 v13, 0x3f80')
        a.e('v_lshlrev_b32 v12, v12, v13')
        a.e('v_cmp_eq_u32 vcc, v11, v4')
        a.e('v_cndmask_b32 v12, 0, v12, vcc')
        a.e('v_bfe_u32 v13, v1, 1, 1')
        a.e('v_bfe_u32 v11, v1, 3, 2')
        a.e('v_lshl_add_u32 v13, v11, 1, v13')
        for r in range(8):
            a.e(f'v_cmp_eq_u32 vcc, {r}, v13')
            a.e(f'v_cndmask_b32 v{ID + r}, 0, v12, vcc')
        mid()
        a.e(f'v_mul_u32_u24 v7, {A}, v5')
        a.e(f'v_add_u32 v7, {xb}, v7')
        a.e(f's_lshl_b32 s6, s{sKT}, 2')
        a.e(f's_cmp_eq_u32 s{sMIR}, 1')
        a.e('s_cselect_b64 s[76:77], -1, 0')
        a.e(f's_cmp_eq_u32 s{sC}, 0')
        a.e('s_cselect_b32 s7, 11, 0')
        for h in range(2):
            a.e(f'v_add3_u32 v11, v4, s6, {2 * h}')
            a.e('v_min_u32 v11, 4, v11')
            a.e('v_sub_u32 v12, 9, v11')
            a.e('v_cndmask_b32 v12, v11, v12, s[76:77]')
            a.e(f'v_lshl_add_u32 v12, v12, {shB}, v7')
            a.lds(f'ds_read_b128 {vr(XM + 4 * h, 4)}, v12', 'xr')
            a.e('v_mov_b32 v13, s7')
            a.e('v_cmp_eq_u32 vcc, 0, v11')
            a.e('v_cndmask_b32 v13, v11, v13, vcc')
            a.e('v_sub_u32 v12, 10, v11')
            a.e('v_cndmask_b32 v12, v13, v12, s[76:77]')
            a.e(f'v_lshl_add_u32 v12, v12, {shB}, v7')
            a.lds(f'ds_read_u16 v{XE + h}, v12', 'xr')
        hook()
        a.wait(lg='xr')
        Lr, Lj = a.newlab('Lxr'), a.newlab('Lxj')
        a.e('v_mov_b32 v11, 0xffff')
        a.e(f's_cmp_eq_u32 s{sMIR}, 1')
        a.e(f's_cbranch_scc1 {Lr}')
        for k in range(2):
            m, o = XM + 4 * k, XR + 4 * k
            a.e(f'v_bfi_b32 v{o}, v11, v{XE + k}, v{m}')
            for d in range(1, 4):
                a.e(f'v_mov_b32 v{o + d}, v{m + d}')
        a.e(f's_branch {Lj}')
        a.label(Lr)
        for k in range(2):
            m, o = XM + 4 * k, XR + 4 * k
            a.e(f'v_bfi_b32 v{o}, v11, v{XE + k}, v{m + 3}')
            a.e(f'v_bfi_b32 v{o + 1}, v11, v{m + 3}, v{m + 2}')
            a.e(f'v_bfi_b32 v{o + 2}, v11, v{m + 2}, v{m + 1}')
            a.e(f'v_bfi_b32 v{o + 3}, v11, v{m + 1}, v{m}')
        a.label(Lj)
        a.e(f's_lshl_b32 s6, s{sRHO}, 12')
        a.e(f's_add_u32 s6, s6, {twb}')
        a.e('v_add_u32 v11, s6, v2')
        for ks in range(4):
            a.lds(f'ds_read_b128 {vr(TW + 4 * ks, 4)}, v11 offset:{ks * 1024}', 'tw')
        a.e(f'v_mfma_f32_32x32x16_bf16 {vr(Y, 16)}, {vr(ID, 4)}, {vr(XR, 4)}, 0')
        a.e(f'v_mfma_f32_32x32x16_bf16 {vr(Y, 16)}, {vr(ID + 4, 4)}, {vr(XR + 4, 4)}, {vr(Y, 16)}')
        hook()
        a.e(f's_lshl_b32 s6, s{sC}, 2')
        a.e(f's_lshl_b32 s7, s{sMIR}, 5')
        a.e('s_add_u32 s6, s6, s7')
        a.e(f's_lshl_b32 s7, s{sC}, 1')
        a.e(f's_add_u32 s7, s7, s{sMIR}')
        a.e('s_add_u32 s7, s7, 64')
        a.e(f's_cmp_eq_u32 s{sKT}, 0')
        a.e('s_cselect_b32 s6, s6, s7')
        a.e('s_lshl_b32 s6, s6, 10')
        a.e('v_lshlrev_b32 v5, 4, v5')
        a.e('v_lshl_add_u32 v5, v4, 10, v5')
        a.e('v_add_u32 v5, s6, v5')
        a.e(f'v_add_u32 v6, {R1}, v5')
        a.e('s_cmp_eq_u32 s6, 32768')
        a.e('s_cselect_b32 s6, 0xffff, 0')
        a.e('v_mov_b32 v12, s6')
        a.e('v_cmp_eq_u32 vcc, 0, v4')
        a.e('v_cndmask_b32 v12, 0, v12, vcc')
        a.e('v_bfe_u32 v13, v1, 2, 2')
        a.e('v_lshl_add_u32 v13, v4, 3, v13')
        a.e('v_mul_u32_u24 v13, 192, v13')
        a.e('v_bfe_u32 v11, v1, 4, 1')
        a.e('v_lshlrev_b32 v11, 1, v11')
        a.e('v_and_b32 v0, 1, v1')
        a.e(f's_lshl_b32 s7, s{sKT}, 2')
        a.e('v_add3_u32 v11, v11, v0, s7')
        a.e('v_min_u32 v11, 4, v11')
        a.e('v_lshl_add_u32 v13, v11, 4, v13')
        a.e('v_bfe_u32 v11, v1, 1, 1')
        a.e('v_lshl_add_u32 v13, v11, 3, v13')
        a.e(f's_mul_i32 s6, s{sRHO}, 6144')
        a.e('s_add_u32 s6, s6, s58')
        a.e('v_add_u32 v13, s6, v13')
        a.e(f'v_mov_b32 v11, v{XR}')
        hook()
        a.wait(lg='tw')

    def reduce_addr(l, second):
        a.e(f's_add_u32 s6, s{sWAVE}, {8 if second else 0}')
        a.e('s_cmp_ge_u32 s6, 5')
        a.e('s_cselect_b32 s7, 5, 0')
        a.e(f's_cselect_b32 s62, 0, {R1}')
        if l == 0:
            a.e('s_cselect_b32 s65, 40960, 0')
        else:
            a.e(f's_cselect_b32 s65, s{sTAU1}, s{sG}')
        a.e('s_sub_u32 s6, s6, s7')
        a.e('s_lshl_b32 s7, s6, 10')
        a.e('s_add_u32 s62, s62, s7')
        a.e('v_lshrrev_b32 v11, 4, v10')
        a.e('v_mul_u32_u24 v11, 5120, v11')
        a.e('v_lshl_add_u32 v11, v4, 9, v11')
        a.e('v_lshl_add_u32 v11, v8, 4, v11')
        a.e('v_add_u32 v11, s62, v11')
        a.e(f'v_add_u32 v13, {5 * PRV}, v11')
        a.e('s_lshl_b32 s6, s6, 1')
        a.e(f's_mul_i32 s7, s{sC}, 10')
        a.e('s_add_u32 s6, s6, s7')
        a.e('v_add_u32 v7, s6, v4')
        if l == 0:
            a.e('v_lshlrev_b32 v7, 9, v7')
            a.e('v_lshl_add_u32 v7, v10, 4, v7')
            a.e(f's_add_u32 s65, s65, s{sGCM}')
            a.e(f's_add_u32 s65, s65, 0x{X2B:x}')
        else:
            a.e('v_lshlrev_b32 v7, 4, v7')
            a.e(f's_mov_b32 s7, {64 * 1280}')
            a.e('v_mad_u32_u24 v7, v10, s7, v7')
            a.e('s_mulk_i32 s65, 1280')

    def reduce_item(l):
        SUM, RB = 56, 64
        for h in range(2):
            a.lds(f'ds_read_b128 {vr(SUM + 4 * h, 4)}, v11 offset:{h * 256}', ('p', 0))
        for p in range(1, 7):
            for h in range(2):
                b, o = (11, p * PRV) if p < 5 else (13, (p - 5) * PRV)
                a.lds(f'ds_read_b128 {vr(RB + 8 * (p - 1) + 4 * h, 4)}, v{b} offset:{o + h * 256}', ('p', p))
        for p in range(1, 8):
            a.wait(lg=('p', p))
            for r in range(0, 8, 2):
                a.e(f'v_pk_add_f32 {vr(SUM + r, 2)}, {vr(SUM + r, 2)}, {vr(RB + 8 * ((p - 1) % 6) + r, 2)}')
            if p == 1:
                for h in range(2):
                    a.lds(f'ds_read_b128 {vr(RB + 4 * h, 4)}, v13 offset:{2 * PRV + h * 256}', ('p', 7))
        for r in range(4):
            a.e(f'v_cvt_pk_bf16_f32 v{SUM + r}, v{SUM + 2 * r}, v{SUM + 2 * r + 1}')
        if l == 0:
            a.vmem(f'buffer_store_dwordx4 {vr(SUM, 4)}, v7, {sr(sWS, 4)}, s65 offen sc1', 'xst')
        else:
            a.vmem(f'buffer_store_dwordx4 {vr(SUM, 4)}, v7, {sr(sOUT, 4)}, s65 offen', 'xst')

    def lin(n, sl, lds_add, ssrc, src_add, tag):
        for k in range(n):
            if k % 4 == 0:
                a.e(f's_add_u32 m0, s{sl}, {lds_add + k * 1024}')
                a.e(f's_add_u32 s64, s{ssrc}, 0x{src_add + k * 1024:x}')
            a.vmem(f'buffer_load_dwordx4 v2, {sr(sWS, 4)}, s64 offen offset:{(k % 4) * 1024} sc1 lds', tag)

    def cnt_add(addr, vt):
        a.e(f'v_mov_b32 v{vt}, {addr}')
        a.e('v_mov_b32 v0, 1')
        a.e('s_mov_b64 exec, 1')
        a.lds(f'ds_add_u32 v{vt}, v0', 'cnt')
        a.e('s_mov_b64 exec, -1')

    def cnt_peek(addr, vt):
        a.e(f'v_mov_b32 v{vt}, {addr}')
        a.lds(f'ds_read_b32 v{vt}, v{vt}', 'peek')

    def cnt_wait(addr, vt, peeked=False, target=8):
        L, Ld = a.newlab('Lcw'), a.newlab('Lcd')
        if peeked:
            a.wait(lg='peek')
            a.e(f'v_cmp_gt_u32 vcc, {target}, v{vt}')
            a.e(f's_cbranch_vccz {Ld}')
            st = a.save()
        a.e('s_mov_b32 s61, 0')
        a.label(L)
        a.e(f'v_mov_b32 v{vt}, {addr}')
        a.e(f'ds_read_b32 v{vt}, v{vt}')
        a.e('s_waitcnt lgkmcnt(0)')
        a.lg.clear()
        a.e(f'v_cmp_gt_u32 vcc, {target}, v{vt}')
        a.e(f's_cbranch_vccz {Ld}')
        a.e('s_sleep 1')
        a.e('s_add_u32 s61, s61, 1')
        a.e(f's_cmp_lt_u32 s61, {SPIN}')
        a.e(f's_cbranch_scc1 {L}')
        a.label(Ld)
        if peeked:
            a.restore(st)

    GO, DONE = STATS + 528, STATS + 544

    def sig_set(base, vt):
        a.e(f'v_mov_b32 v{vt}, s56')
        a.lds(f'ds_write_b32 v{vt}, v{vt} offset:{base - 4}', 'sig')

    def sig_wait(base, vt, slp):
        L, Ld = a.newlab('Lgw'), a.newlab('Lgd')
        a.e('s_mov_b32 s61, 0')
        a.label(L)
        a.e(f'v_mov_b32 v{vt}, s56')
        a.e(f'ds_read_b32 v{vt}, v{vt} offset:{base - 4}')
        a.e('s_waitcnt lgkmcnt(0)')
        a.lg.clear()
        a.e(f'v_cmp_eq_u32 vcc, 0, v{vt}')
        a.e(f's_cbranch_vccz {Ld}')
        a.e(f's_sleep {slp}')
        a.e('s_add_u32 s61, s61, 1')
        a.e(f's_cmp_lt_u32 s61, {SPIN}')
        a.e(f's_cbranch_scc1 {L}')
        a.label(Ld)

    bg = BG()
    a.e(f's_mul_i32 s68, s{sWAVE}, 5120')
    a.e(f's_mul_i32 s69, s{sWAVE}, {PRV}')
    a.e(f's_cmp_lt_u32 s{sC}, 4')
    a.e('s_cselect_b32 s58, 16384, 0')
    a.e(f's_add_u32 s58, s58, {R1 + 32768}')
    def pv0():
        poll_issue(a, *pW)
        a.wait(vm='vo')
        a.e('s_barrier')
        a.stamp('PV0')
        setflag_w0(a, PH_V[0], 7)
        poll_check(a, *pW)
        a.stamp('pollW')
        for f in range(30):
            bg.add(lambda f=f: w2load(f))
    a2_pre(0, lambda: bg.run(OPT.get('bgw2', 5)), pv0)

    for l in range(2):
        a.e(f's_lshl_b32 s67, s{sWAVE}, 15')
        a.e(f's_lshl_b32 s6, s{sC}, 10')
        a.e('s_add_u32 s67, s67, s6')
        pV = (7, 67, PH_V[l], 4, 13)
        bg.run(OPT.get('bgpv', 0))
        poll_issue(a, *pV)
        bg.run(OPT.get('bgpv2', 0))
        poll_check(a, *pV)
        if l == 0:
            def id_issue():
                a.e(f'v_mov_b32 v72, s{sFSRC}')
                a.e(f'v_mov_b32 v73, s{sFPAR}')
                a.e('v_cmp_eq_u32 vcc, 0, v1')
                a.e('v_cndmask_b32 v72, v73, v72, vcc')
                a.e(f's_mov_b32 s60, 0x{FLG:x}')
                a.vmem(f'buffer_load_dwordx2 v[72:73], v72, {sr(sWS, 4)}, s60 offen sc1', 'ids')
        a.stamp(f'pollV{l}')
        a.e(f's_mul_i32 s63, s{sWAVE}, 768')
        a.e('s_add_u32 s62, s63, s58')
        a.e('s_mov_b32 exec_hi, 0xffff')
        for rho in range(2):
            a.e(f's_lshl_b32 s6, s{sG if rho == 0 else sTAU1}, 3')
            a.e(f's_add_u32 s6, s6, s{sC}')
            a.e('s_mulk_i32 s6, 6144')
            a.e('s_add_u32 s6, s6, s63')
            a.e(f's_add_u32 s6, s6, 0x{VB[l]:x}')
            a.e(f's_add_u32 m0, s62, {rho * 6144}')
            a.vmem(f'buffer_load_dwordx4 v2, {sr(sWS, 4)}, s6 offen sc1 lds', 'v')
        a.e('s_mov_b64 exec, -1')
        if l == 0:
            id_issue()
        bg.run(OPT.get('bgv', 4))
        a.e('v_lshlrev_b32 v7, 3, v1')
        a.e(f'v_mov_b32 v{VF}, 0')
        a.e(f'v_mov_b32 v{VF + 1}, 0')
        a.lds(f'ds_write_b64 v7, {vr(VF, 2)} offset:{STATS + 256}', 'clr')
        a.wait(vm='v', lg='clr')
        a.e('s_barrier')
        a.stamp(f'V{l}')
        for ks in range(4):
            for rd in range(2):
                a.lds(f'ds_read_b64_tr_b16 {vr(VF + 4 * ks + 2 * rd, 2)}, v13 offset:{(16 * (ks % 2) + 4 * rd) * 192 + (ks // 2) * 80}', ('vf', ks))
        if l == 0:
            left2 = list(range(30 - len(bg.q), 30))
            bg.q = []
            for n in range(NR):
                bg.add(lambda n=n: w1load(n))
                if n < NST:
                    bg.add(lambda n=n: stash(n))
            bg.run(OPT.get('bg0', 2))

        a.e(f's_add_u32 s63, s{sGCM}, 0x{X1B[l]:x}')
        a.e(f's_cmp_eq_u32 s{sKT}, 0')
        a.e('s_cselect_b32 s70, -1, 0')
        a.e(f's_cselect_b32 s71, s63, 0x{OOB:x}')
        for ks in range(4):
            a.wait(lg=('vf', ks))
            a.e(f'v_mfma_f32_32x32x16_bf16 {vr(Y, 16)}, {vr(VF + 4 * ks, 4)}, {vr(TW + 4 * ks, 4)}, {vr(Y, 16)}')
        for r in range(8):
            a.e(f'v_cvt_pk_bf16_f32 v{PK + r}, v{Y + 2 * r}, v{Y + 2 * r + 1}')
        a.e(f'v_bfi_b32 v{PK}, v12, v11, v{PK}')
        xstore(f'buffer_store_dwordx4 {vr(PK + 4, 4)}, v5, {sr(sWS, 4)}, s71 offen offset:2048', 'x1s', l == 1 and LP & 1)
        a.e('s_mov_b32 exec_hi, s70')
        xstore(f'buffer_store_dwordx4 {vr(PK, 4)}, v5, {sr(sWS, 4)}, s63 offen', 'x1s', l == 1 and LP & 1)
        a.lds(f'ds_write_b128 v6, {vr(PK, 4)}', 'x1w')
        a.e('s_mov_b32 exec_lo, s70')
        a.lds(f'ds_write_b128 v6, {vr(PK + 4, 4)} offset:2048', 'x1w')
        a.e('s_mov_b64 exec, -1')
        a.stamp(f'x1st{l}')
        a.e('s_mov_b32 s7, 0x3f803f80')
        for r in range(4):
            a.e(f'v_mov_b32 v{16 + r}, 0')
        for r in range(4):
            for h in range(2):
                a.e(f'v_dot2_f32_bf16 v{16 + 2 * h}, v{PK + 4 * h + r}, s7, v{16 + 2 * h}')
                a.e(f'v_dot2_f32_bf16 v{17 + 2 * h}, v{PK + 4 * h + r}, v{PK + 4 * h + r}, v{17 + 2 * h}')
        a.e('v_bfe_u32 v7, v5, 4, 6')
        a.e('v_lshlrev_b32 v7, 3, v7')
        a.e('s_nop 2')
        a.e('v_and_b32 v18, s70, v18')
        a.e('v_and_b32 v19, s70, v19')
        a.e('v_add_f32 v16, v16, v18')
        a.e('v_add_f32 v17, v17, v19')
        a.e('v_mov_b32 v18, v16')
        a.e('v_mov_b32 v19, v17')
        a.e(f's_mul_i32 s6, s{sMIR}, {PRV}')
        a.e(f's_lshl_b32 s7, s{sKT}, 9')
        a.e('v_permlane32_swap_b32 v16, v18')
        a.e('v_permlane32_swap_b32 v17, v19')
        a.e('v_add3_u32 v7, v7, s6, s6') if False else None
        a.e('s_add_u32 s6, s6, s7')
        a.e('v_add_u32 v7, s6, v7')
        a.e('v_and_b32 v18, s70, v18')
        a.e('v_and_b32 v19, s70, v19')
        a.e('v_add_f32 v16, v16, v18')
        a.e('v_add_f32 v17, v17, v19')
        a.lds(f'ds_write_b64 v7, v[16:17] offset:{PSUM}', 'x1w')
        bg.run(OPT.get('bgx0', 4 if l == 0 else 3))
        a.wait(vm='x1s', lg='all')
        a.e('s_barrier')
        a.stamp(f'X1s{l}')
        a.e(f's_lshl_b32 s65, s{sG}, 12')
        a.e(f's_add_u32 s65, s65, 0x{STG + l * 0x20000:x}')
        Ls1 = a.newlab('Ls1')
        a.e(f's_cmp_lg_u32 s{sWAVE}, s{sC}')
        a.e(f's_cbranch_scc1 {Ls1}')
        a.e('v_lshlrev_b32 v7, 3, v1')
        a.e(f'v_add_u32 v0, {PSUM}, v7')
        for k in range(4):
            a.e(f'ds_read_b64 {vr(64 + 2 * k, 2)}, v0 offset:{(k // 2) * PRV + (k % 2) * 512}')
        a.e(f's_lshl_b32 s6, s{sC}, 9')
        a.e('s_add_u32 s6, s6, s65')
        a.e('s_waitcnt lgkmcnt(0)')
        for k in range(1, 4):
            a.e(f'v_add_f32 v64, v64, v{64 + 2 * k}')
            a.e(f'v_add_f32 v65, v65, v{65 + 2 * k}')
        a.e(f'buffer_store_dwordx2 v[64:65], v7, {sr(sWS, 4)}, s6 offen sc1')
        a.label(Ls1)
        setflag_w0(a, PH_X1[l], 7)
        if l == 0:
            L, Ld = a.newlab('Lidp'), a.newlab('Lidd')
            a.e(f's_add_u32 s59, s{sNON}, {PH_V[0]}')
            a.wait(vm='ids')
            a.e('s_mov_b32 s61, 0')
            a.label(L)
            a.e('v_subrev_u32 v72, s59, v72')
            a.e('v_cmp_le_u32 vcc, 16, v72')
            a.e(f's_cbranch_vccz {Ld}')
            st = a.save()
            id_issue()
            a.restore(st)
            a.e('s_waitcnt vmcnt(0)')
            a.e('s_add_u32 s61, s61, 1')
            a.e(f's_cmp_lt_u32 s61, {SPIN}')
            a.e(f's_cbranch_scc1 {L}')
            a.e('v_mov_b32 v73, -1')
            a.label(Ld)
            a.e('s_nop 0')
            a.e('v_readlane_b32 s6, v73, 0')
            a.e('v_readlane_b32 s7, v73, 1')
            for r, sf in ((6, sFSRC), (7, sFPAR)):
                a.e(f's_cmp_eq_u32 s{r}, s{sXCC}')
                a.e(f's_cselect_b32 s{r}, 0x{LOC if OPT.get("loc", 1) else 0:x}, 0')
                a.e(f's_add_u32 s{sf}, s{sf}, s{r}')
            a.e('s_and_b32 s6, s6, s7')
            a.e('s_cselect_b32 s6, 0, 1')
            a.e(f'v_mov_b32 v72, {STATS + 520}')
            a.e('v_mov_b32 v73, s6')
            a.lds('ds_or_b32 v72, v73', 'idw')
        CP = 16
        if l == 0:
            a.e(f's_lshl_b32 s6, s{sU1}, 6')
            a.e('v_lshl_add_u32 v7, v10, 2, s6')
            a.e('s_movk_i32 s7, 6912')
            a.e('v_mad_u32_u24 v7, v4, s7, v7')
            for n in range(10):
                a.e(f's_mov_b32 s7, 0x{CSP + n * 2 * 6912:x}')
                a.vmem(f'buffer_load_dword v{CP + n}, v7, {sr(sWS, 4)}, s7 offen sc1', 'cs')
        bg.run(OPT.get('bgx1', 3))
        pX = (7, sFSRC, PH_X1[l], 1)
        poll_issue(a, *pX)
        RSC, RA = 2 * PRV + 9216, 37
        Lw7 = a.newlab('Lw7')
        a.e(f's_cmp_lg_u32 s{sWAVE}, 7')
        a.e(f's_cbranch_scc1 {Lw7}')
        if True:
            a.e(f's_cmp_ge_u32 s{sC}, 4')
            a.e('s_cselect_b64 s[70:71], -1, 0')
            a.e('v_and_b32 v11, 7, v8')
            a.e('v_sub_u32 v12, 8, v11')
            a.e('v_cndmask_b32 v12, v11, v12, s[70:71]')
            a.e('v_lshrrev_b32 v13, 3, v8')
            a.e('v_add_u32 v0, 2, v13')
            a.e('v_cmp_eq_u32 vcc, 0, v11')
            a.e('v_cndmask_b32 v12, v12, 0, vcc')
            a.e('v_cndmask_b32 v13, v13, v0, vcc')
            a.e('v_and_b32 v0, 1, v12')
            a.e('v_lshlrev_b32 v0, 4, v0')
            a.e('v_mov_b32 v36, 0x3f80')
            a.e('v_lshlrev_b32 v0, v0, v36')
            a.e('v_cmp_eq_u32 vcc, v13, v9')
            a.e('v_cndmask_b32 v0, 0, v0, vcc')
            a.e('v_lshrrev_b32 v12, 1, v12')
            for r in range(4):
                a.e(f'v_cmp_eq_u32 vcc, {r}, v12')
                a.e(f'v_cndmask_b32 v{32 + r}, 0, v0, vcc')
            a.lds(f'ds_write_b128 v2, v[32:35] offset:{RSC}', 'rw')
            a.e(f'v_lshlrev_b32 v{RA}, 2, v1')
            a.e(f's_mul_i32 s6, s{sC}, 10')
            a.e('v_cmp_le_u32 s[72:73], 2, v9')
            for ft in range(5):
                a.e('v_and_b32 v11, 1, v9')
                a.e(f'v_add3_u32 v11, v11, s6, {2 * ft}')
                a.e('v_sub_u32 v12, 119, v11')
                a.e('v_cndmask_b32 v12, v11, v12, s[70:71]')
                a.e('v_sub_u32 v13, 120, v11')
                a.e('v_cndmask_b32 v13, v11, v13, s[70:71]')
                if ft == 0:
                    a.e('v_cmp_eq_u32 vcc, 0, v13')
                    a.e('v_cndmask_b32 v13, v13, 40, vcc')
                    a.e('v_cmp_eq_u32 vcc, 80, v13')
                    a.e('v_cndmask_b32 v13, v13, 0, vcc')
                a.e('v_cndmask_b32 v12, v12, v13, s[72:73]')
                a.e('v_mul_u32_u24 v13, 13108, v12')
                a.e('v_lshrrev_b32 v13, 16, v13')
                a.e('v_sub_u32 v11, v12, v13')
                a.e('v_mul_u32_u24 v0, 5, v13')
                a.e('v_sub_u32 v12, v12, v0')
                a.e('v_and_b32 v0, 7, v13')
                a.e('v_lshrrev_b32 v13, 3, v13')
                a.e('v_lshl_add_u32 v13, v0, 1, v13')
                a.e('v_add_u32 v13, 64, v13')
                a.e('v_cmp_eq_u32 vcc, 4, v12')
                a.e('v_cndmask_b32 v11, v11, v13, vcc')
                a.e('v_lshlrev_b32 v11, 10, v11')
                a.e('v_lshl_add_u32 v11, v8, 4, v11')
                a.e(f'v_add_u32 v11, {R1}, v11')
                a.lds(f'ds_write_b32 v{RA}, v11 offset:{RSC + PRV + (ft // 4) * PRV + (ft % 4) * 256}', 'rw')
        a.label(Lw7)
        poll_check(a, *pX)
        a.stamp(f'pollX1{l}')
        a.e(f's_lshl_b32 s6, s{sWAVE}, 12')
        a.e('s_lshr_b32 s7, s6, 1')
        a.e('s_add_u32 s66, s63, s6')
        a.e('s_add_u32 s57, s63, s7')
        a.e(f's_cmp_eq_u32 s{sWAVE}, s{sC}')
        a.e(f's_cselect_b32 s66, 0x{OOB:x}, s66')
        a.e(f's_cselect_b32 s57, 0x{OOB:x}, s57')
        a.e('s_cselect_b32 s67, 0x14000, s6')
        a.e('s_cselect_b32 s56, 0x14000, s7')
        lin(4, 67, R1, 66, 0, ('x1', 0))
        if l == 0:
            for n in range(1, 10):
                a.e(f'v_add_f32 v{CP}, v{CP}, v{CP + n}')
            a.e(f'v_mov_b32 v15, v{CP}')
            a.e(f'v_permlane32_swap_b32 v{CP}, v15')
            a.e(f'v_add_f32 v15, v{CP}, v15')
        a.e(f's_lshl_b32 s6, s{sWAVE}, 7')
        a.e('v_lshl_add_u32 v7, v10, 2, s6')
        a.lds(f'ds_write_b32 v7, v15 offset:{CSS}', 'csw')
        a.e(f'v_add_u32 v5, {R1}, v3')
        a.e(f'v_add_u32 v6, {R1 + 40960}, v3')
        if OPT.get('x1o', 0):
            a.e('s_waitcnt vmcnt(3)')
        lin(4, 67, R1 + 32768, 66, 32768, ('x1', 1))
        lin(2, 56, R1 + 65536, 57, 65536, ('x1', 1))
        a.wait(vm=('x1', 0), lg='all')
        a.e('s_barrier')
        a.stamp(f'B1{l}')
        if l == 0:
            a.e('ds_read_b32 v73, v72')
            a.e('s_waitcnt lgkmcnt(0)')
            a.e('v_readfirstlane_b32 s26, v73')
        Ls2 = a.newlab('Ls2')
        a.e(f's_cmp_lg_u32 s{sWAVE}, s{sC}')
        a.e(f's_cbranch_scc1 {Ls2}')
        st = a.save()
        setflag(a, PH_S[l], 12)
        a.restore(st)
        a.label(Ls2)
        LS, Lid, Lg2, Ljoin = (a.newlab(x) for x in ('LS', 'Lid', 'Lg2', 'Ljoin'))
        a.e(f's_cmp_eq_u32 s{sWAVE}, 7')
        a.e(f's_cbranch_scc1 {LS}')
        a.e(f's_cmp_ge_u32 s{sWAVE}, s{sU2}')
        a.e(f's_cbranch_scc1 {Lid}')
        st0 = a.save()
        q = list(bg.q)
        bg.q = []
        NW2 = OPT.get('nw2', 20)
        need2 = left2 if l == 0 else []

        def xaddr(ks, rt):
            return (5, ks * 4096 + rt * 256) if ks < 10 else (6, (ks - 10) * 4096 + rt * 256)

        def xreads(n, nst=2):
            out = []
            for rt in range(4):
                b, o = xaddr(n, rt)
                out.append(lambda rt=rt, b=b, o=o: a.lds(f'ds_read_b128 {vr(XF + 16 * (n % nst) + 4 * rt, 4)}, v{b} offset:{o}', ('xf', n)))
            return out

        EP = XF

        def epi_reads():
            a.e('v_lshlrev_b32 v7, 2, v8')
            for rt in range(4):
                a.lds(f'ds_read_b32 v{EP + 12 + rt}, v7 offset:{STATS + 256 + rt * 64}', 'st')
            for rt in range(4):
                a.lds(f'ds_read_b32 v{EP + 8 + rt}, v7 offset:{STATS + rt * 64}', 'st')

        def usread(n):
            a.lds(f'ds_read_b128 {vr(JIT[n % 2], 4)}, v13 offset:{(n % NST) * 1024}', ('us', n))

        def gemm(late, q, qlow=False):
            pw1, pws = [NR], [NST]
            a.e('v_add_u32 v13, s69, v2')
            for f in xreads(0):
                f()
            a.wait(vm=('ws', 0))
            usread(0)
            a.e(f's_add_u32 s56, s{sW1B}, {12 * 1024}')
            a.e(f's_add_u32 s57, s{sW1B}, {16 * 1024}')
            grp = [None]

            def ring1(k):
                a.vmem(f'buffer_load_dwordx4 {vr(RING[k % NR], 4)}, v2, {sr(sWS, 4)}, s{56 + (k - 12) // 4} offen offset:{(k % 4) * 1024} sc1', ('w1', k))

            def stash1(k):
                k0 = 9 + (k - 9) // 4 * 4 if k < 18 else 18
                if grp[0] != k0:
                    a.e(f's_add_u32 m0, s69, {(k0 % NST) * 1024}')
                    a.e(f's_add_u32 s66, s{sW1B}, {20480 + k0 * 1024}')
                    grp[0] = k0
                a.vmem(f'buffer_load_dwordx4 v2, {sr(sWS, 4)}, s66 offen offset:{(k - k0) * 1024} sc1 lds', ('ws', k))

            for n in range(20):
                if n == 7:
                    cnt_wait(CNT1, 7, True)
                a.wait(vm=[('w1', n)] + ([('ws', n + 1)] if n + 1 < 20 else []), lg=[('xf', n), ('us', n)])
                mf = []
                for h in range(2):
                    for rt in range(4):
                        ac = vr(ACCX + 16 * h + 4 * rt, 4)
                        w = RING[n % NR] if h == 0 else JIT[n % 2]
                        mf.append(f'v_mfma_f32_16x16x32_bf16 {ac}, {vr(w, 4)}, {vr(XF + 16 * (n % 2) + 4 * rt, 4)}, {"0" if n == 0 else ac}')
                fl = []
                if n + 1 < 20:
                    fl += xreads(n + 1) + [lambda: usread(n + 1)]
                nq = 0
                while q and nq < 3 and not qlow:
                    fl.append(q.pop(0))
                    nq += 1
                if not q or qlow:
                    while pws[0] < 20 and pws[0] - NST <= n and nq < 2:
                        fl.append(lambda k=pws[0]: stash1(k))
                        pws[0] += 1
                        nq += 1
                    while pw1[0] < 20 and pw1[0] - NR <= n and nq < 3:
                        fl.append(lambda k=pw1[0]: ring1(k))
                        pw1[0] += 1
                        nq += 1
                while q and nq < 3 and qlow:
                    fl.append(q.pop(0))
                    nq += 1
                if not late and OPT.get('xe', 1):
                    for k in range(2, NR):
                        last = k if k >= 8 else k + 12
                        if max(last + 1, 12 + (k - 8) // 2 if k >= 8 else 0) == n and n < 19:
                            fl.append(lambda f=28 + k: w2load(f))
                            xdone.append(28 + k)
                if n == 5:
                    fl.append(lambda: cnt_peek(CNT1, 7))
                if n == 19:
                    def ep():
                        a.e(f's_lshl_b32 s6, s{sWAVE}, 7')
                        a.e('v_lshl_add_u32 v7, v9, 4, s6')
                        for h in range(2):
                            a.lds(f'ds_read_b128 {vr(EP + 4 * h, 4)}, v7 offset:{CSS + h * 64}', 'csr')
                    fl = [ep, epi_reads]
                weave(a, mf, fl)
                if n == OPT.get('nca', 3) and not late:
                    a.wait(vm=('x1', 1))
                    cnt_add(CNT1, 7)
            assert not q
            a.stamp(f'gend{l}')
            prio(a, 3)
            a.e(f's_lshl_b32 s65, s{sU1}, 11')
            a.e(f's_add_u32 s65, s65, s{sHG}')
            a.e(f's_add_u32 s65, s65, 0x{HB[l]:x}')
            L, Ld = a.newlab('Lsw'), a.newlab('Lsd')
            a.e('s_mov_b32 s61, 0')
            a.label(L)
            a.e('s_waitcnt lgkmcnt(0)')
            a.lg.clear()
            a.e(f'v_min_u32 v7, v{EP + 12}, v{EP + 13}')
            a.e(f'v_min3_u32 v7, v7, v{EP + 14}, v{EP + 15}')
            a.e('v_cmp_eq_u32 vcc, 0, v7')
            a.e(f's_cbranch_vccz {Ld}')
            a.e('s_sleep 1')
            epi_reads()
            a.lg.clear()
            a.e('s_add_u32 s61, s61, 1')
            a.e(f's_cmp_lt_u32 s61, {SPIN}')
            a.e(f's_cbranch_scc1 {L}')
            a.e('s_waitcnt lgkmcnt(0)')
            a.label(Ld)
            a.e('v_lshlrev_b32 v7, 10, v4')
            a.e('v_lshl_add_u32 v7, v10, 4, v7')
            for h in range(2):
                for pr in range(2):
                    b = ACCX + 16 * h + 8 * pr
                    if OPT.get('pk', 0):
                        for r in range(0, 8, 2):
                            sel = 'op_sel:[0,0,0] op_sel_hi:[0,1,1]' if r < 4 else 'op_sel:[1,0,0] op_sel_hi:[1,1,1]'
                            a.e(f'v_pk_fma_f32 {vr(b + r, 2)}, {vr(EP + 8 + 2 * pr, 2)}, {vr(EP + 4 * h + r % 4, 2)}, {vr(b + r, 2)} {sel} neg_lo:[1,0,0] neg_hi:[1,0,0]')
                        for r in range(0, 8, 2):
                            sel = 'op_sel:[0,0] op_sel_hi:[1,0]' if r < 4 else 'op_sel:[0,1] op_sel_hi:[1,1]'
                            a.e(f'v_pk_mul_f32 {vr(b + r, 2)}, {vr(b + r, 2)}, {vr(EP + 12 + 2 * pr, 2)} {sel}')
                    else:
                        for r in range(8):
                            a.e(f'v_fma_f32 v{b + r}, -v{EP + 8 + 2 * pr + r // 4}, v{EP + 4 * h + r % 4}, v{b + r}')
                        for r in range(8):
                            a.e(f'v_mul_f32 v{b + r}, v{b + r}, v{EP + 12 + 2 * pr + r // 4}')
                    for r in range(4):
                        a.e(f'v_cvt_pk_bf16_f32 v{b + r}, v{b + 2 * r}, v{b + 2 * r + 1}')
                    for r in range(4):
                        a.e(f'v_pk_max_i16 v{b + r}, v{b + r}, 0')
                    a.e(f'v_permlane16_swap_b32 v{b}, v{b + 2}')
                    a.e(f'v_permlane16_swap_b32 v{b + 1}, v{b + 3}')
                    xstore(f'buffer_store_dwordx4 {vr(b, 4)}, v7, {sr(sWS, 4)}, s65 offen offset:{h * 2048 + pr * 512}', 'hst', LP & 4 and l >= OPT.get('lpl', 0))
            a.stamp(f'epi{l}')
            cnt_add(CNT2, 7)


        def b2(ns, accb, HB_, first, pr):
            N = 4 * ns
            acc = lambda rt, ft: vr(accb(rt) + 4 * ft, 4)
            a.e(f'v_add_u32 v12, 0x{HB[l]:x}, v3')
            a.e('v_add_u32 v13, s69, v2')
            a.e(f'v_add_u32 v11, {R1}, v13')
            slot = {}

            def direct(z, sl):
                slot[z] = sl
                a.vmem(f'buffer_load_dwordx4 {vr(HB_[sl], 4)}, v12, {sr(sWS, 4)}, s{sHO + z % ns} offen offset:{(z // ns) * 256} sc1', ('h', z))

            def jit(z, sl):
                slot[z] = sl
                a.lds(f'ds_read_b128 {vr(HB_[sl], 4)}, v13 offset:{(z - 10) * 1024}', ('hz', z))

            def pwrite(rt, ft):
                a.lds(f'ds_write_b128 v{11 if rt < 2 else 13}, {acc(rt, ft)} offset:{((rt % 2) * 5 + ft) * 1024}', ('pw', rt))

            for z in range(10):
                direct(z, z)
            staged = list(range(10, min(19, N)))

            def stage(z):
                a.e(f's_add_u32 m0, s69, {(z - 10) * 1024}')
                a.e(f's_add_u32 s64, s{sHO + z % ns}, {(z // ns) * 256}')
                a.vmem(f'buffer_load_dwordx4 v12, {sr(sWS, 4)}, s64 offen sc1 lds', ('h', z))
            sq = list(staged)
            for _ in range(OPT.get('ns0', 0)):
                if sq:
                    stage(sq.pop(0))
            refill = list(range(19, N))
            if ns != 8:
                cnt_wait(CNT2, 7)
                cnt_add(CNT2, 7)
            a.stamp(f'hiss{l}')
            prio(a, pr)
            todo = list(staged)
            wq = []
            for z in range(N):
                rt, i = divmod(z, ns)
                fill = []
                vmw = []
                for _ in range(2):
                    if sq:
                        fill.append(lambda t=sq.pop(0): stage(t))
                if z >= 1:
                    fs = slot[z - 1]
                    if todo and todo[0] <= z + 3:
                        t = todo.pop(0)
                        vmw.append(('h', t))
                        fill.append(lambda t=t, fs=fs: jit(t, fs))
                    elif refill:
                        fill.append(lambda t=refill.pop(0), fs=fs: direct(t, fs))
                if rt == 1 and i == 0 and ns == 8:
                    fill.append(lambda: cnt_peek(CNT2, 7))
                lgw = []
                if rt >= 1 and i == 1:
                    if rt == 1 and ns == 8:
                        cnt_wait(CNT2, 7, True)
                        cnt_add(CNT2, 7)
                    if rt == 3:
                        assert not todo
                        lgw.append(('hz', staged[-1]))
                    wq = [lambda rt=rt, ft=ft: pwrite(rt - 1, ft) for ft in range(5)]
                for _ in range(2):
                    if wq:
                        fill.append(wq.pop(0))
                if z in staged:
                    lgw.append(('hz', z))
                else:
                    vmw.append(('h', z))
                if i == 0 and rt >= 2 and accb(rt) == accb(rt - 2):
                    lgw.append(('pw', rt - 2))
                a.wait(vm=vmw + [('w2', 5 * i + k) for k in range(5)], lg=lgw or None)
                if i == 0:
                    a.stamp(f'rt{rt}_{l}')
                weave(a, [f'v_mfma_f32_16x16x32_bf16 {acc(rt, ft)}, {vr(w2reg(5 * i + ft), 4)}, {vr(HB_[slot[z]], 4)}, {"0" if first and i == 0 else acc(rt, ft)}' for ft in range(5)], fill)
            assert not wq
            a.stamp(f'b2B{l}')
            prio(a, 3)
            for ft in range(5):
                if ft == 4 and ns == 8:
                    L0 = a.newlab('L0')
                    a.e(f's_cmp_lg_u32 s{sWAVE}, 0')
                    a.e(f's_cbranch_scc1 {L0}')
                    cnt_wait(CNT2, 7, target=16)
                    a.label(L0)
                pwrite(3, ft)

        def flagbase(add):
            a.e(f's_lshl_b32 s67, s{sG}, 13')
            a.e('s_cmp_eq_u32 s26, 0')
            a.e(f's_cselect_b32 s6, 0x{LOC:x}, 0')
            a.e('s_add_u32 s67, s67, s6')
            a.e(add)

        HE = [56 + 4 * k for k in range(10)]
        HL = [96 + 4 * k for k in range(10)]
        acc = lambda rt, ft: vr(16 + 20 * rt + 4 * ft, 4)

        def late_tail(ns, first):
            a.e(f's_lshl_b32 s7, s{sWAVE}, 11')
            flagbase('s_add_u32 s67, s67, s7')
            poll(a, 11, 67, PH_H[l], 6, 'late', 4 - 64)
            a.stamp(f'pollB{l}')
            b2(ns, lambda rt: 16 + 20 * rt, HL, first, OPT.get('plb', 0))

        Llate = a.newlab('Llate')
        a.e(f's_cmp_ge_u32 s{sWAVE}, 4')
        a.e(f's_cbranch_scc1 {Llate}')
        prio(a, 3)
        xdone = []
        gemm(False, list(q))
        xrest = [f for f in range(30, 40) if f not in xdone]
        for f in xrest[:OPT.get('ne0', 3)]:
            w2load(f)
        a.wait(vm='hst')
        a.stamp(f'ackH{l}')
        setflag(a, PH_H[l], 12)
        prio(a, 1)
        for f in xrest[OPT.get('ne0', 3):] + need2:
            w2load(f)
        a.e(f's_lshl_b32 s7, s{sWAVE}, 7')
        flagbase('s_add_u32 s67, s67, s7')
        poll(a, 11, 67, PH_H[l], 8, 10)
        a.stamp(f'pollA{l}')
        b2(8, lambda rt: 16 + 20 * (rt % 2), HE, True, 1)
        stE = a.save()
        a.e(f's_branch {Ljoin}')

        a.label(Lid)
        a.restore(st0)
        a.wait(vm=('x1', 1))
        cnt_add(CNT1, 7)
        cnt_add(CNT2, 7)
        for f in need2:
            w2load(f)
        a.e(f's_branch {Lg2}')

        a.label(Llate)
        a.restore(st0)
        prio(a, 2)
        a.wait(vm=('x1', 1))
        cnt_add(CNT1, 7)
        a.e(f's_sleep {OPT.get("lsl", 2)}')
        for f in q:
            f()
        gemm(True, [lambda f=f: w2load(f) for f in need2], True)
        a.wait(vm='hst')
        a.stamp(f'ackH{l}')
        a.label(Lg2)
        setflag(a, PH_H[l], 12)
        late_tail(6, True)
        a.e(f's_branch {Ljoin}')

        a.label(LS)
        a.restore(st0)
        prio(a, 3)
        a.wait(vm=('x1', 1))
        cnt_add(CNT1, 7)
        if LP & 4 and l >= OPT.get('lpl', 0):
            a.e('s_lshl_b32 s6, s100, 12')
            a.e(f's_add_u32 s66, s6, s{sHG}')
            warm(40, 66, HB[l], 4, 7168)
        a.e(f's_lshl_b32 s67, s{sG}, 13')
        a.e('s_cmp_eq_u32 s26, 0')
        a.e(f's_cselect_b32 s6, 0x{LOC:x}, 0')
        a.e('s_add_u32 s67, s67, s6')
        a.e(f's_add_u32 s60, s67, 0x{FLG:x}')
        a.e(f's_add_u32 s59, s{sNON}, {PH_S[l]}')
        L, Ld = a.newlab('Lsp'), a.newlab('Lsd')
        a.e('s_mov_b32 s61, 0')
        a.label(L)
        a.e('v_and_b32 v7, 7, v1')
        a.e('v_mul_u32_u24 v7, 1152, v7')
        a.e(f'buffer_load_dword v7, v7, {sr(sWS, 4)}, s60 offen sc1')
        a.e('s_waitcnt vmcnt(0)')
        a.e('v_subrev_u32 v7, s59, v7')
        a.e('v_cmp_le_u32 vcc, 16, v7')
        a.e(f's_cbranch_vccz {Ld}')
        a.e('s_sleep 2')
        a.e('s_add_u32 s61, s61, 1')
        a.e(f's_cmp_lt_u32 s61, {SPIN}')
        a.e(f's_cbranch_scc1 {L}')
        a.label(Ld)
        a.vm.clear()
        a.e('v_lshlrev_b32 v7, 3, v1')
        for k in range(8):
            a.vmem(f'buffer_load_dwordx2 {vr(16 + 2 * k, 2)}, v7, {sr(sWS, 4)}, s65 offen offset:{k * 512} sc1', 'sg')
        a.e('v_lshlrev_b32 v7, 2, v1')
        a.e('s_mov_b32 s7, 0x3acccccd')
        a.wait(vm='sg')
        for k in range(1, 8):
            a.e(f'v_add_f32 v16, v16, v{16 + 2 * k}')
            a.e(f'v_add_f32 v17, v17, v{17 + 2 * k}')
        a.e('v_mul_f32 v16, s7, v16')
        a.e('v_mul_f32 v17, s7, v17')
        a.e('v_fma_f32 v17, -v16, v16, v17')
        a.e('v_max_f32 v17, 0, v17')
        a.e('v_add_f32 v17, 0x3727c5ac, v17')
        a.e('v_rsq_f32 v17, v17')
        a.lds(f'ds_write_b32 v7, v16 offset:{STATS}')
        a.lds(f'ds_write_b32 v7, v17 offset:{STATS + 256}')
        cnt_wait(CNT1, 7)
        a.stamp(f'stat{l}')
        prio(a, 0)
        PM, TB = 96, (100, 116)
        a.e('v_lshlrev_b32 v7, 2, v1')
        a.lds(f'ds_read_b128 {vr(PM, 4)}, v2 offset:{RSC}', 'ra')
        AR = (0, 11, 12, 13, 7)
        for ft in range(5):
            a.lds(f'ds_read_b32 v{AR[ft]}, v7 offset:{RSC + PRV + (ft // 4) * PRV + (ft % 4) * 256}', 'ra')
        a.wait(lg='ra')

        def rread(ft):
            return [lambda rt=rt: a.lds(f'ds_read_b128 {vr(TB[ft % 2] + 4 * rt, 4)}, v{AR[ft]} offset:{rt * 256}', ('rs', ft)) for rt in range(4)]
        for f in rread(0):
            f()
        for ft in range(5):
            if ft + 1 < 5:
                for f in rread(ft + 1):
                    f()
            a.wait(lg=('rs', ft))
            weave(a, [f'v_mfma_f32_16x16x32_bf16 {acc(rt, ft)}, {vr(PM, 4)}, {vr(TB[ft % 2] + 4 * rt, 4)}, 0' for rt in range(4)], [])
        prio(a, 0)
        cnt_add(CNT2, 7)
        for f in need2:
            if f < 20:
                w2load(f)
        a.e('s_sleep 40')
        late_tail(4, False)
        a.label(Ljoin)
        a.e('s_nop 1')
        a.restore(stE)
        a.vm.clear()
        a.forget('w1', 'ws', 'v', 'x1', 'us', 'h')
        a.seen -= {('w2', f) for f in range(30, 40)}
        if l == 0:
            Lg = a.newlab('Lg')
            a.e(f's_cmp_ge_u32 s{sWAVE}, 4')
            a.e(f's_cbranch_scc1 {Lg}')
            a.e('s_waitcnt lgkmcnt(0)')
            gen_D(a, dreg, 116, None, (0, 1))
            a.label(Lg)
        reduce_addr(l, False)
        a.wait(lg='all')
        a.e('s_barrier')
        a.stamp(f'PB{l}')
        reduce_item(l)
        Lnr = a.newlab('Lnr')
        a.e(f's_cmp_ge_u32 s{sWAVE}, 2')
        a.e(f's_cbranch_scc1 {Lnr}')
        reduce_addr(l, True)
        reduce_item(l)
        a.label(Lnr)
        if l == 1:
            Lnn = a.newlab('Lnn')
            a.e('s_lshl_b32 s6, s2, 3')
            a.e(f's_add_u32 s6, s6, s{sWAVE}')
            a.e('s_cmp_lg_u32 s6, 7')
            a.e(f's_cbranch_scc1 {Lnn}')
            a.e(f'v_mov_b32 v0, s{sNON}')
            a.e(f's_mov_b32 s7, 0x{FLG + 0x40000:x}')
            a.e('s_mov_b64 exec, 1')
            a.e(f'buffer_store_dword v0, off, {sr(sWS, 4)}, s7 sc1')
            a.e('s_mov_b64 exec, -1')
            a.label(Lnn)
            a.stamp_dump(2, sWS, sWAVE, 15)
            break

        a.stamp('redB')
        a.e('v_lshlrev_b32 v5, 4, v8')
        a.e('v_lshl_add_u32 v5, v9, 9, v5')
        a.e(f'v_add_u32 v5, {R1}, v5')
        a.e('v_add_u32 v6, 40960, v5')
        def helpers(f):
            Lg = a.newlab('Lg')
            a.e(f's_cmp_lt_u32 s{sWAVE}, 4')
            a.e(f's_cbranch_scc1 {Lg}')
            st = a.save()
            f()
            a.restore(st)
            a.label(Lg)
        helpers(lambda: gen_D(a, dreg, 116, None, (0,)))
        a.wait(vm='all')
        a.e('s_barrier')
        a.stamp('ackXB')
        setflag_w0(a, PH_X2, 12)
        pXA = (7, sFSRC, PH_X2, 1)
        pXB = (11, sFPAR, PH_X2, 1)
        a.vm.clear()
        a.e(f's_sleep {OPT.get("xsl", 0)}')
        poll_issue(a, *pXA)
        poll_issue(a, *pXB, tag='poll2')
        a.e(f's_add_u32 s67, s{sGCM}, s68')
        a.e(f's_mul_i32 s66, s{sPG}, 81920')
        a.e('s_add_u32 s66, s66, s68')
        poll_check(a, *pXA)
        lin(5, 68, R1, 67, X2B, 'x2')
        poll_check(a, *pXB, tag='poll2')
        a.stamp('pollXB')
        lin(5, 68, R1 + 40960, 66, X2B + 40960, 'x2')
        Lh, Lj, L4 = a.newlab('Lh'), a.newlab('Lj'), a.newlab('L4')
        a.e(f's_cmp_ge_u32 s{sWAVE}, 4')
        a.e(f's_cbranch_scc1 {Lh}')
        st0 = a.save()
        U4 = ST1 + 1024
        AC1, AC2 = 56, 72
        XS = [[88, 92, 96, 100], [116, 120, 124, 128], [104, 108, 112, 132]]
        WFA = 16
        RSr, MRr = [116, 120, 124, 128], [88, 92, 96, 100]
        wf = lambda mat, tt, ks: (16 + k * 4 if (k := (mat * 4 + tt) * 2 + ks) < 10 else (72 + (k - 10) * 4 if k < 14 else 104 + (k - 14) * 4))

        def sgn():
            a.e('v_and_b32 v0, 1, v1')
            a.e('v_lshlrev_b32 v0, 31, v0')
            a.e('v_or_b32 v0, 1.0, v0')

        def wf_reads():
            for tt in range(4):
                for ks in range(2):
                    for mat in range(2):
                        a.lds(f'ds_read_b128 {vr(wf(mat, tt, ks), 4)}, v2 offset:{W1SL + ((mat * 4 + tt) * 2 + ks) * 1024}', 'wf')

        def st_reads():
            a.e('v_lshlrev_b32 v12, 4, v9')
            for rt in range(4):
                a.lds(f'ds_read_b128 {vr(RSr[rt], 4)}, v12 offset:{ST1 + rt * 64}', 'st')
                a.lds(f'ds_read_b128 {vr(MRr[rt], 4)}, v12 offset:{ST1 + 256 + rt * 64}', 'st')

        a.e(f's_lshl_b32 s6, s{sWAVE}, 12')
        a.e('v_add_u32 v75, s6, v2')
        a.e(f's_cmp_ge_u32 s{sWAVE}, 2')
        a.e(f's_cselect_b32 s98, 0.5, 0x{fbits(0.25):08x}')
        a.e(f's_lshl_b32 s99, s{sKT}, 5')
        gen_W1(a, 1, W1SL, 56, (0,), 98, range(2), 99)
        a.wait(vm='x2', lg='all')
        a.e('s_barrier')
        a.stamp('XA')
        prio(a, OPT.get('mp', 1))

        def xr1(n):
            return [lambda rt=rt: a.lds(f'ds_read_b128 {vr(XS[n % 3][rt], 4)}, v{5 + rt // 2} offset:{n * 2048 + (rt % 2) * 256}', ('xf', n)) for rt in range(4)]
        for f in xr1(0) + xr1(1):
            f()
        for n in range(20):
            a.wait(lg=('xf', n))
            ac = AC1 if n < 10 else AC2
            mf = [f'v_mfma_f32_16x16x32_bf16 {vr(ac + 4 * rt, 4)}, {vr(XS[n % 3][rt], 4)}, {vr(dreg(n % 10), 4)}, {"0" if n % 10 == 0 else vr(ac + 4 * rt, 4)}' for rt in range(4)]
            weave(a, mf, xr1(n + 2) if n + 2 < 20 else [])
        prio(a, 3)
        sgn()
        for r in range(16):
            a.e(f'v_fma_f32 v{AC1 + r}, v{AC2 + r}, v0, v{AC1 + r}')
        wf_reads()
        a.stamp('a1B')
        a.e('s_barrier')
        a.stamp('ST')
        st_reads()
        a.label(L4)
        stage1(a, AC1, RSr, MRr, 116, wf, R1)
        stC = a.save()
        a.e(f's_branch {Lj}')

        a.label(Lh)
        a.restore(st0)
        gen_D(a, dreg, 116, None, (1,))
        AS, AM, ONE, FS = 64, 68, 72, 76
        for r in range(4):
            a.e(f'v_mov_b32 v{ONE + r}, 0x3f803f80')
        a.e(f's_mul_i32 s6, s{sRHO}, 40960')
        a.e(f's_lshl_b32 s7, s{sKT}, 8')
        a.e('s_add_u32 s6, s6, s7')
        a.e('v_add_u32 v5, s6, v5')
        a.wait(vm='x2', lg='all')
        a.e('s_barrier')
        prio(a, OPT.get('hp', 3))

        def sread(ks):
            a.lds(f'ds_read_b128 {vr(FS + 4 * (ks % 10), 4)}, v5 offset:{ks * 2048}', ('sf', ks))
        for ks in range(6):
            sread(ks)
        for ks in range(20):
            a.wait(lg=('sf', ks))
            f = vr(FS + 4 * (ks % 10), 4)
            ac = vr(56 if ks < 10 else 60, 4)
            weave(a, [f'v_mfma_f32_16x16x32_bf16 {vr(AS, 4)}, {f}, {f}, {"0" if ks == 0 else vr(AS, 4)}',
                      f'v_mfma_f32_16x16x32_bf16 {vr(AM, 4)}, {f}, {vr(ONE, 4)}, {"0" if ks == 0 else vr(AM, 4)}',
                      f'v_mfma_f32_16x16x32_bf16 {ac}, {f}, {vr(dreg(ks % 10), 4)}, {"0" if ks % 10 == 0 else ac}'],
                  [lambda: sread(ks + 6)] if ks + 6 < 20 else [])
        a.e(f's_and_b32 s66, s{sWAVE}, 3')
        a.e('s_lshl_b32 s6, s66, 6')
        a.e(f's_add_u32 s6, s6, {ST1}')
        stats_finalize(a, AS, AM, 1, 11, 64, 256, 'rs_mr')
        sgn()
        for r in range(4):
            a.e(f'v_fma_f32 v{56 + r}, v{60 + r}, v0, v{56 + r}')
        a.e('s_lshl_b32 s6, s66, 10')
        a.e('v_add_u32 v7, s6, v2')
        a.lds(f'ds_write_b128 v7, v[56:59] offset:{U4}', 'u4')
        prio(a, 3)
        Ln4 = a.newlab('Ln4')
        a.e(f's_cmp_lg_u32 s{sWAVE}, 4')
        a.e(f's_cbranch_scc1 {Ln4}')
        st1 = a.save()
        wf_reads()
        a.wait(lg='u4')
        a.e('s_barrier')
        for rt in range(4):
            a.lds(f'ds_read_b128 {vr(AC1 + 4 * rt, 4)}, v2 offset:{U4 + rt * 1024}', 'st')
        st_reads()
        a.e(f's_branch {L4}')
        a.label(Ln4)
        a.restore(st1)
        if OPT.get('t1', 4):
            L7 = a.newlab('L7')
            a.e(f's_cmp_lg_u32 s{sWAVE}, 7')
            a.e(f's_cbranch_scc1 {L7}')
            w1_touch(60, 0, OPT.get('t1', 4))
            a.label(L7)
        a.wait(lg='all')
        a.e('s_barrier')
        L7, L56 = a.newlab('L7'), a.newlab('L56')
        a.e(f's_cmp_eq_u32 s{sWAVE}, 7')
        a.e(f's_cbranch_scc1 {L7}')
        a.e(f's_cmp_eq_u32 s{sWAVE}, 6')
        a.e(f's_cselect_b32 s99, s{sTAU1}, s{sG}')
        a.e(f's_cselect_b32 s6, 4096, 0')
        a.e(f's_add_u32 s6, s6, {TWL1}')
        a.e('v_add_u32 v31, s6, v2')
        gen_TW(a, 16, 99, 31, 0)
        a.e(f's_branch {Lj}')
        a.label(L7)
        stage_all()
        a.label(Lj)
        a.e('s_nop 1')
        a.restore(stC)
        v_out_addr(a)
        a.wait(lg='all')
        a.e('s_barrier')
        a.stamp('VT')
        v_out(a, 1, R1, 64)
        for n in range(NR):
            bg.add(lambda n=n: w1load(n))
            if n < NST:
                bg.add(lambda n=n: stash(n))

        def pv1():
            a.wait(vm='vo')
            a.e('s_barrier')
            a.stamp('PV1')
            setflag_w0(a, PH_V[1], 7)
        a2_pre(1, lambda: bg.run(OPT.get('bga2', 3)), pv1)
        a.stamp('a2pre')

    a.label(end)
    a.e('s_endpgm')
    a.raw(descriptor(name, 256, 102))
    return 163840


def main():
    if len(sys.argv) > 2 and 'stamps' in sys.argv[2:]:
        Asm.STAMPS = True
    Asm.CYC = 'cyc' in sys.argv[2:]
    Asm.DBGOUT = 'dbgout' in sys.argv[2:]
    for o in sys.argv[2:]:
        if o.startswith('names='):
            Asm.ACTIVE = o[6:].split(',')
        elif '=' in o:
            k, v = o.split('=')
            OPT[k] = int(v)
    hdr = open('cdna_kernels/' + NAME + '.s.ref').read().split('\n')
    hdr = [l for l in hdr if l.startswith(';') and '@launch' not in l and 'Override launch' not in l and 'grid=ceil' not in l]
    out = '\n'.join(hdr) + '\n'
    a = Asm()
    lds = gen(a, NAME + '_kernel')
    out += f'; @launch grid=(256,1,1) block=(512,1,1) lds={lds}\n'
    if Asm.STAMPS:
        out += '; stampnames start,' + ','.join(Asm.ACTIVE) + '\n'
    out += '.amdgcn_target "amdgcn-amd-amdhsa--gfx950"\n'
    out += a.text()
    path = sys.argv[1] if len(sys.argv) > 1 else 'cdna_kernels/' + NAME + '.s'
    open(path, 'w').write(out)
    print('wrote', path, len(out))


main()
```

```python
import sys
from asmlib import *

NAME = 'interleave_layers__spectral_fnet__dense_activation_relu__prompt'
S, D, F = 2048, 640, 1728
W1F = 0
W2F = 0x220000
DPF = 0x440000
CSP = 0x510000
W1S = 0x540000
STG = 0x560000
FLG = 0x760000
VB = [0x960000, 0xC60000]
X1B = [0xF60000, 0x11E0000]
X2B = 0x1460000
HB = [0x16E0000, 0x1DA0000]
WS_BYTES = 268435456
OOB = 0x7f000000
SPIN = 200000
OPT = {}

R1 = 81920
PRV = 10240
STATS, CSS = 9216, PRV + 9216
CNT1, CNT2 = STATS + 512, STATS + 516
PSUM = 5 * PRV + 9216
XRL1, TWL1, W1SL, ST1 = R1 + 12288, R1 + 24576, 20480, 36864

sWAVE, sG, sC = 3, 4, 5
P_X, P_CR, P_CI, P_DR, P_DI, P_W1, P_W2, P_OUT, P_WS = 8, 10, 12, 14, 16, 20, 22, 24, 26
sWS, sOUT, sFL = 28, 32, 36
sRHO, sKT, sMIR, sNON, sU1, sU2 = 38, 39, 40, 41, 42, 43
sGCM, sFOWN, sW1B, sHK, sW2O, sHG, sFSRC, sTAU1, sPG, sFPAR = 44, 45, 46, 47, 48, 49, 50, 51, 52, 53


def fbits(x):
    import struct
    return struct.unpack('<I', struct.pack('<f', float(x)))[0]


def sin_frag(a, dst, tmp, vstep, vbase, ks):
    for e in range(8):
        a.e(f'v_fmamk_f32 v{tmp + e}, v{vstep}, 0x{fbits(ks[e]):08x}, v{vbase}')
    for e in range(8):
        a.e(f'v_sin_f32 v{tmp + e}, v{tmp + e}')
    for r in range(4):
        a.e(f'v_cvt_pk_bf16_f32 v{dst + r}, v{tmp + 2 * r}, v{tmp + 2 * r + 1}')


def gen_D(a, reg, tmp, rot, parts=(0, 1, 2)):
    st, ba = tmp + 8, tmp + 9
    if 0 in parts:
        a.e(f's_mul_i32 s6, s{sC}, 40')
        a.e(f's_min_u32 s7, s{sWAVE}, 4')
        a.e('s_lshl_b32 s7, s7, 3')
        a.e('s_add_u32 s6, s6, s7')
        a.e(f'v_and_b32 v{st}, 7, v1')
        a.e(f'v_add_u32 v{st}, s6, v{st}')
        a.e('v_mov_b32 v0, 320')
        a.e(f'v_cmp_eq_u32 vcc, 0, v{st}')
        a.e(f'v_cndmask_b32 v{st}, v{st}, v0, vcc')
        if rot is None:
            a.e(f'v_lshlrev_b32 v{ba}, 3, v9')
        else:
            a.e(f's_lshr_b32 s6, s{rot}, 1')
            a.e(f'v_lshl_add_u32 v{ba}, v9, 3, s6')
        a.e(f'v_mul_u32_u24 v{ba}, v{st}, v{ba}')
        a.e('v_mov_b32 v11, 160')
        a.e('v_cmp_gt_u32 vcc, 8, v8')
        a.e('v_cndmask_b32 v0, v0, v11, vcc')
        a.e(f'v_add_u32 v{ba}, v{ba}, v0')
        a.e('s_mov_b32 s7, 0x666667')
        a.e(f'v_mul_hi_u32 v0, v{ba}, s7')
        a.e('v_mul_u32_u24 v0, 640, v0')
        a.e(f'v_sub_u32 v{ba}, v{ba}, v0')
        a.e(f'v_cvt_f32_i32 v{ba}, v{ba}')
        a.e(f'v_cvt_f32_u32 v{st}, v{st}')
        a.e(f'v_mul_f32 v{ba}, 0x3acccccd, v{ba}')
        a.e(f'v_mul_f32 v{st}, 0x3acccccd, v{st}')
        for ks in range(3):
            sin_frag(a, reg(ks), tmp, st, ba, [32 * ks + e for e in range(8)])
    if 1 in parts:
        for ks in range(3, 5):
            sin_frag(a, reg(ks), tmp, st, ba, [32 * ks + e for e in range(8)])
        a.e('v_mov_b32 v13, 0x80008000')
        a.e('v_lshrrev_b32 v0, 1, v1')
        a.e('v_lshrrev_b32 v12, 3, v1')
        a.e('v_and_b32 v12, v12, v1')
        a.e('v_xor_b32 v0, v0, v12')
        a.e('v_and_b32 v0, 1, v0')
        a.e('v_cmp_eq_u32 vcc, 1, v0')
        a.e('v_cndmask_b32 v12, 0, v13, vcc')
        a.e('v_and_b32 v0, 1, v1')
        a.e('v_cmp_eq_u32 vcc, 1, v0')
        a.e(f'v_cndmask_b32 v{st}, 0, v13, vcc')
        for r in range(20):
            a.e(f'v_xor_b32 v{reg(5 + r // 4) + r % 4}, v{reg(r // 4) + r % 4}, v12')
        a.e('s_mov_b64 exec, vcc')
        a.e('s_nop 4')
        for r in range(20):
            a.e(f'v_xor_b32_dpp v{reg(5 + r // 4) + r % 4}, v{reg(r // 4) + r % 4}, v12 row_ror:8 row_mask:0xf bank_mask:0xf')
        a.e('s_mov_b64 exec, -1')
    if 2 in parts:
        for r in range(40):
            a.e(f'v_xor_b32 v{reg(10 + r // 4) + r % 4}, v{reg(r // 4) + r % 4}, v{st}')


def gen_W1(a, l, base, tmp, mats, smat=None, tts=range(4), stt=None):
    st, ba, qq, sg = tmp + 16, tmp + 17, tmp + 18, 13
    a.e(f'v_lshlrev_b32 v{qq}, 3, v9')
    a.e(f'v_cvt_f32_u32 v{qq}, v{qq}')
    a.e(f'v_and_b32 v{sg}, 1, v1')
    a.e(f'v_mul_u32_u24 v{sg}, 0x10001, v{sg}')
    a.e(f'v_lshlrev_b32 v{sg}, 15, v{sg}')
    for mat in mats:
        if smat is None:
            a.e(f'v_mov_b32 v0, 0x{fbits(0.5 if mat else 0.25):08x}')
        for tt in tts:
            a.e(f'v_add_u32 v{st}, {16 * tt}, v8')
            if stt is not None:
                a.e(f'v_add_u32 v{st}, s{stt}, v{st}')
            a.e(f'v_cvt_f32_u32 v{st}, v{st}')
            a.e(f'v_mul_f32 v{st}, 0x3c800000, v{st}')
            a.e(f'v_fma_f32 v{ba}, v{qq}, v{st}, {"v0" if smat is None else f"s{smat}"}')
            o = tmp + 8
            for e in range(8):
                k = e if l == 0 else 2 * (e % 4) + e // 4
                a.e(f'v_fmamk_f32 v{tmp + e}, v{st}, 0x{fbits(k):08x}, v{ba}')
            for e in range(8):
                a.e(f'v_sin_f32 v{tmp + e}, v{tmp + e}')
            dst = (0, 1, 2, 3) if l == 0 else (0, 1, 4, 5)
            for r in range(4):
                a.e(f'v_cvt_pk_bf16_f32 v{o + dst[r]}, v{tmp + 2 * r}, v{tmp + 2 * r + 1}')
            for r in range(4):
                a.e(f'v_xor_b32 v{o + dst[r] + (4 if l == 0 else 2)}, v{o + dst[r]}, v{sg}')
            for ks in range(2):
                a.lds(f'ds_write_b128 v{tmp + 19}, {vr(o + 4 * ks, 4)} offset:{base + ((mat * 4 + tt) * 2 + ks) * 1024}', 'gw')


def gen_TW(a, tmp, srho_tau, vaddr, off0):
    st, ba = tmp + 12, tmp + 13
    a.e(f'v_lshl_add_u32 v{st}, v10, 6, s{srho_tau}')
    a.e(f'v_cvt_f32_u32 v{st}, v{st}')
    a.e(f'v_mul_f32 v{st}, 0x3a000000, v{st}')
    a.e(f'v_lshlrev_b32 v{ba}, 3, v4')
    a.e(f'v_cvt_f32_u32 v{ba}, v{ba}')
    a.e(f'v_mul_f32 v{ba}, v{ba}, v{st}')
    for ks in (2, 3, 0, 1):
        if ks == 0:
            a.e(f'v_add_f32 v{ba}, 0x{fbits(0.25):08x}, v{ba}')
        sin_frag(a, tmp + 8, tmp, st, ba, [16 * (ks % 2) + e for e in range(8)])
        a.lds(f'ds_write_b128 v{vaddr}, {vr(tmp + 8, 4)} offset:{off0 + ks * 1024}', 'gw')


def weave(a, mfs, fill):
    fill = list(fill)
    for i, m in enumerate(mfs):
        a.e(m)
        left = len(mfs) - i
        for _ in range(-(-len(fill) // left)):
            fill.pop(0)()


class BG:
    def __init__(self):
        self.q = []

    def add(self, f):
        self.q.append(f)

    def run(self, n=None):
        n = len(self.q) if n is None else min(n, len(self.q))
        for _ in range(n):
            self.q.pop(0)()


PH_V, PH_X1, PH_S, PH_H, PH_X2 = (1, 6), (2, 7), (3, 8), (4, 9), 5
LOC = 0x80000
sXCC = 27


def poll_issue(a, vres, soff, phase, n, shift=7, first=0, tag='poll'):
    if shift == 'late':
        a.e(f'v_and_b32 v{vres}, 3, v1')
        a.e(f'v_min_u32 v{vres}, 2, v{vres}')
        a.e(f'v_lshlrev_b32 v{vres}, 7, v{vres}')
        a.e(f'v_lshl_add_u32 v{vres}, v4, 10, v{vres}')
        shift = 7
    else:
        a.e(f'v_min_u32 v{vres}, {n - 1}, v1')
        a.e(f'v_lshlrev_b32 v{vres}, {shift}, v{vres}')
    a.e(f's_add_u32 s60, s{soff}, 0x{FLG + (first << shift):x}')
    a.vmem(f'buffer_load_dword v{vres}, v{vres}, {sr(sWS, 4)}, s60 offen sc1', tag)


def poll_check(a, vres, soff, phase, n, shift=7, first=0, tag='poll'):
    L, Ld = a.newlab('Lpoll'), a.newlab('Lpd')
    a.e(f's_add_u32 s59, s{sNON}, {phase}')
    a.wait(vm=tag)
    a.e('s_mov_b32 s61, 0')
    a.label(L)
    a.e(f'v_subrev_u32 v{vres}, s59, v{vres}')
    a.e(f'v_cmp_le_u32 vcc, 16, v{vres}')
    a.e(f's_cbranch_vccz {Ld}')
    if OPT.get('abl_poll', 0) >> phase & 1:
        a.e(f's_branch {Ld}')
    if OPT.get('psleep', 2):
        a.e(f's_sleep {OPT.get("psleep", 2)}')
    st = a.save()
    poll_issue(a, vres, soff, phase, n, shift, first, tag)
    a.restore(st)
    a.e('s_waitcnt vmcnt(0)')
    a.e('s_add_u32 s61, s61, 1')
    a.e(f's_cmp_lt_u32 s61, {SPIN}')
    a.e(f's_cbranch_scc1 {L}')
    a.label(Ld)


def poll(a, vres, *args, **kw):
    poll_issue(a, vres, *args, **kw)
    poll_check(a, vres, *args, **kw)


def prio(a, p):
    if OPT.get('prio', 1):
        a.e(f's_setprio {p}')


def setflag(a, phase, vt):
    if phase is None:
        a.e('v_mov_b32 v0, 0')
    else:
        a.e(f's_add_u32 s62, s{sNON}, {phase}')
        a.e('v_mov_b32 v0, s62')
        a.e(f'v_writelane_b32 v0, s{sXCC}, 1')
    a.e(f'v_lshlrev_b32 v{vt}, 2, v1')
    a.e('s_mov_b32 exec_hi, 0')
    if phase is not None and phase not in PH_V:
        a.e(f's_add_u32 s62, s{sFOWN}, 0x{LOC:x}')
        a.vmem(f'buffer_store_dword v0, v{vt}, {sr(sWS, 4)}, s62 offen', 'flag')
    if phase is not None and phase not in PH_V and phase != PH_X1[0]:
        L = a.newlab('Lng')
        a.e('s_cmp_eq_u32 s26, 0')
        a.e(f's_cbranch_scc1 {L}')
        a.e(f'buffer_store_dword v0, v{vt}, {sr(sWS, 4)}, s{sFOWN} offen sc1')
        a.label(L)
    else:
        a.vmem(f'buffer_store_dword v0, v{vt}, {sr(sWS, 4)}, s{sFOWN} offen sc1', 'flag')
    if phase is None:
        a.e(f's_add_u32 s62, s{sFOWN}, 0x{LOC:x}')
        a.vmem(f'buffer_load_dword v254, v{vt}, {sr(sWS, 4)}, s62 offen sc1', 'flag')
    a.e('s_mov_b32 exec_hi, -1')


def setflag_w0(a, phase, vt):
    L = a.newlab('Lnf')
    a.e(f's_cmp_lg_u32 s{sWAVE}, 0')
    a.e(f's_cbranch_scc1 {L}')
    st = a.save()
    setflag(a, phase, vt)
    a.restore(st)
    a.label(L)


EXTRA = ['hst', 'flag', 'xst', 'vst', 'pst']


def merge(a, *states):
    ls = [[t for t in s[0] if t not in EXTRA and not (isinstance(t, tuple) and t[0] in EXTRA)] for s in states]
    ls.sort(key=len)
    longer = ls[-1]
    for s in ls[:-1]:
        assert longer[len(longer) - len(s):] == s, (longer, s)
    a.vm = list(longer)
    a.lg = []


def stats_finalize(a, AS, AM, ntiles, tmp, tile_stride, delta1, mode):
    t = tmp
    a.e(f'v_lshlrev_b32 v{t}, 2, v9')
    a.e(f'v_sub_u32 v{t}, v8, v{t}')
    a.e(f'v_lshl_add_u32 v{t + 1}, v8, 2, s6')
    a.e(f'v_cmp_eq_u32 s[70:71], 1, v{t}')
    a.e(f'v_cmp_eq_u32 s[72:73], 2, v{t}')
    a.e(f'v_cmp_eq_u32 s[74:75], 3, v{t}')
    a.e(f'v_cmp_gt_u32 s[76:77], 4, v{t}')
    a.e('s_mov_b32 s7, 0x3acccccd')
    for rt in range(ntiles):
        for acc in (AS, AM):
            b = acc + 4 * rt
            a.e(f'v_cndmask_b32 v{b}, v{b}, v{b + 1}, s[70:71]')
            a.e(f'v_cndmask_b32 v{b}, v{b}, v{b + 2}, s[72:73]')
            a.e(f'v_cndmask_b32 v{b}, v{b}, v{b + 3}, s[74:75]')
        ss, sm = AS + 4 * rt, AM + 4 * rt
        a.e(f'v_mul_f32 v{sm}, s7, v{sm}')
        a.e(f'v_mul_f32 v{ss}, s7, v{ss}')
        a.e(f'v_fma_f32 v{ss}, -v{sm}, v{sm}, v{ss}')
        a.e(f'v_max_f32 v{ss}, 0, v{ss}')
        a.e(f'v_add_f32 v{ss}, 0x3727c5ac, v{ss}')
        a.e(f'v_rsq_f32 v{ss}, v{ss}')
        if mode == 'rs_mr':
            a.e(f'v_mul_f32 v{sm}, v{sm}, v{ss}')
    a.e('s_mov_b64 exec, s[76:77]')
    for rt in range(ntiles):
        ss, sm = AS + 4 * rt, AM + 4 * rt
        first, second = (ss, sm) if mode == 'rs_mr' else (sm, ss)
        a.lds(f'ds_write_b32 v{t + 1}, v{first} offset:{rt * tile_stride}')
        a.lds(f'ds_write_b32 v{t + 1}, v{second} offset:{rt * tile_stride + delta1}')
    a.e('s_mov_b64 exec, -1')


def stage1(a, ACC, RSr, MRr, VA, wf, VT):
    a.e('v_cmp_gt_u32 vcc, 8, v8')
    a.e('v_mov_b32 v13, 0x80008000')
    a.e('v_cndmask_b32 v13, 0, v13, vcc')
    a.e('v_and_b32 v12, 1, v9')
    a.e('v_lshl_add_u32 v12, v12, 4, v8')
    a.e('v_mul_u32_u24 v12, 192, v12')
    a.e('v_lshrrev_b32 v11, 1, v9')
    a.e('v_mul_u32_u24 v11, 80, v11')
    a.e(f's_lshl_b32 s6, s{sWAVE}, 4')
    a.e(f's_add_u32 s6, s6, {VT}')
    a.e('v_add3_u32 v12, v12, v11, s6')
    a.wait(lg='st')
    for r in range(16):
        m = MRr[r // 4] + r % 4
        a.e(f'v_mul_f32 v{m}, v{m}, v14')
    for r in range(16):
        a.e(f'v_fma_f32 v{ACC + r}, v{ACC + r}, v{RSr[r // 4] + r % 4}, -v{MRr[r // 4] + r % 4}')
    for r in range(8):
        a.e(f'v_cvt_pk_bf16_f32 v{ACC + r}, v{ACC + 2 * r}, v{ACC + 2 * r + 1}')
    for r in range(8):
        a.e(f'v_xor_b32_dpp v{ACC + 8 + r}, v{ACC + r}, v13 row_ror:8 row_mask:0xf bank_mask:0xf')
    a.wait(lg='wf')
    for tt in range(4):
        for ks in range(2):
            for mat in range(2):
                src = ACC + 8 * mat + 4 * ks
                c = '0' if (ks == 0 and mat == 0) else vr(VA + 4 * tt, 4)
                a.e(f'v_mfma_f32_16x16x32_bf16 {vr(VA + 4 * tt, 4)}, {vr(src, 4)}, {vr(wf(mat, tt, ks), 4)}, {c}')
    for pr in range(2):
        b = VA + 8 * pr
        for r in range(4):
            a.e(f'v_cvt_pk_bf16_f32 v{b + r}, v{b + 2 * r}, v{b + 2 * r + 1}')
        a.e(f'v_permlane16_swap_b32 v{b}, v{b + 2}')
        a.e(f'v_permlane16_swap_b32 v{b + 1}, v{b + 3}')
        a.lds(f'ds_write_b128 v12, {vr(b, 4)} offset:{pr * 32 * 192}', 'vt')


def v_out_addr(a):
    for n, dst in ((0, 5), (8, 6)):
        a.e(f's_lshl_b32 s6, s{sWAVE}, 6')
        a.e(f's_add_u32 s6, s6, {n * 64}')
        a.e('v_add_u32 v0, s6, v1')
        a.e('v_mul_u32_u24 v7, 5462, v0')
        a.e('v_lshrrev_b32 v7, 16, v7')
        a.e('v_lshlrev_b32 v0, 4, v0')
        a.e(f's_mov_b32 s7, {8 * 32 * 192 - 192}')
        a.e(f'v_mad_u32_u24 v{dst}, v7, s7, v0')


def v_out(a, l, VT, R):
    a.e(f's_lshl_b32 s6, s{sWAVE}, 10')
    a.e(f's_add_u32 s6, s6, {VT}')
    a.e('v_add_u32 v0, s6, v2')
    a.lds(f'ds_read_b128 {vr(R, 4)}, v0', 'vo0')
    a.lds(f'ds_read_b128 {vr(R + 4, 4)}, v0 offset:8192', 'vo1')
    a.e(f's_lshl_b32 s6, s{sC}, 5')
    a.e(f's_add_u32 s6, s6, s{sG}')
    a.e('s_mulk_i32 s6, 192')
    a.e(f's_add_u32 s6, s6, 0x{VB[l]:x}')
    a.e(f's_cmp_lt_u32 s{sWAVE}, 4')
    a.e(f's_cselect_b32 s7, s6, 0x{OOB:x}')
    a.wait(lg='vo0')
    a.vmem(f'buffer_store_dwordx4 {vr(R, 4)}, v5, {sr(sWS, 4)}, s6 offen sc1', 'vo')
    a.wait(lg='vo1')
    a.vmem(f'buffer_store_dwordx4 {vr(R + 4, 4)}, v6, {sr(sWS, 4)}, s7 offen sc1', 'vo')


TW, Y, VF, PK, ID, XR, XM, XE = 16, 32, 48, 48, 48, 56, 16, 24
ACCX, XF = 16, 48
NR, NST = 12, 9
RING = [88 + 4 * k for k in range(12)]
JIT = [80, 84]
sHO, sWO = 8, 16
ACCB = 16
HBUF = [96 + 4 * k for k in range(5)]
ACCA = 96
XFS = [56, 64, 72, 80, 88, 236, 244]


def dreg(ks):
    return 16 + 4 * ks if ks < 10 else 196 + 4 * (ks - 10)


def w2reg(f):
    return 136 + 4 * f if f < 30 else 96 + 4 * (f - 30)


def gen(a, name):
    end = name + '_end'
    a.raw('.text')
    a.raw(f'.globl {name}')
    a.raw('.p2align 8')
    a.raw(f'.type {name},@function')
    a.label(name)
    a.e('s_cmp_ge_u32 s2, 256')
    a.e(f's_cbranch_scc1 {end}')
    a.stamp_init()
    a.stamp(0)
    a.e('s_load_dwordx16 s[8:23], s[0:1], 0')
    a.e('s_load_dwordx2 s[24:25], s[0:1], 64')
    a.e('s_load_dwordx2 s[26:27], s[0:1], 80')
    a.e('s_load_dwordx2 s[96:97], s[0:1], 72')
    a.e('v_lshrrev_b32 v1, 6, v0')
    a.e(f'v_readfirstlane_b32 s{sWAVE}, v1')
    a.e('v_and_b32 v1, 63, v0')
    if OPT.get('cpf', 1):
        a.e('s_getpc_b64 s[98:99]')
        a.label('Lpc')
        a.e('s_lshr_b32 s6, s2, 3')
        a.e('s_lshl_b32 s6, s6, 5')
        a.e('v_and_b32 v253, 31, v0')
        a.e('v_add_u32 v253, s6, v253')
        a.e('v_lshlrev_b32 v253, 7, v253')
        a.e(f'v_min_u32 v253, {end} - Lpc, v253')
        a.e('v_cmp_gt_u32 vcc, 32, v0')
        a.e('s_and_saveexec_b64 s[6:7], vcc')
        a.e('s_cbranch_execz Lpcd')
        a.e('global_load_dword v253, v253, s[98:99]')
        a.label('Lpcd')
        a.e('s_mov_b64 exec, -1')
    XM_ = OPT.get('xm', 0)
    a.e('s_and_b32 s6, s2, 7')
    a.e('s_lshr_b32 s7, s2, 3')
    a.e(f's_and_b32 s98, s6, {(1 << XM_) - 1}')
    a.e(f's_lshl_b32 s98, s98, {3 - XM_}')
    a.e(f's_and_b32 s99, s7, {(8 >> XM_) - 1}')
    a.e(f's_add_u32 s{sC}, s98, s99')
    a.e(f's_lshr_b32 s6, s6, {XM_}')
    a.e(f's_lshl_b32 s6, s6, {2 + XM_}')
    a.e(f's_lshr_b32 s7, s7, {3 - XM_}')
    a.e('s_add_u32 s101, s6, s7')
    a.e('s_lshr_b32 s6, s101, 1')
    a.e('s_sub_u32 s7, 32, s6')
    a.e('s_cmp_eq_u32 s6, 0')
    a.e('s_cselect_b32 s7, 16, s7')
    a.e('s_bitcmp1_b32 s101, 0')
    a.e(f's_cselect_b32 s{sG}, s7, s6')
    a.e('v_lshlrev_b32 v2, 4, v1')
    a.e('v_and_b32 v8, 15, v1')
    a.e('v_lshrrev_b32 v9, 4, v1')
    a.e('v_and_b32 v10, 31, v1')
    a.e('v_lshrrev_b32 v4, 5, v1')

    sX, sW1, sW2, sCS = 56, 68, 72, 12
    sWK, sROT = 54, 55
    RS, MR, CNT0 = 0, 256, 512
    W1L = 1024
    WP1 = W1L + 16384
    W2S = WP1 + 14336
    VT0 = W2S + 10240
    XRL0 = VT0 + 12288
    TWL0 = XRL0 + 12288
    EW = 1
    vXA, vF0, vF1, vO8, vSW = 240, 244, 245, 246, 247
    a.e(f'v_lshrrev_b32 v{vO8}, 3, v1')
    a.e(f'v_and_b32 v{vSW}, 7, v1')
    a.e(f'v_xor_b32 v{vSW}, v{vSW}, v{vO8}')
    a.e(f'v_lshlrev_b32 v{vSW}, 4, v{vSW}')
    a.e(f's_and_b32 s{sKT}, s{sWAVE}, 1')
    a.e(f's_lshr_b32 s{sMIR}, s{sWAVE}, 2')
    a.e(f's_bfe_u32 s{sRHO}, s{sWAVE}, 0x10001')
    a.e(f's_lshl_b32 s6, s{sKT}, 4')
    a.e(f's_lshl_b32 s7, s{sMIR}, 5')
    a.e('s_add_u32 s6, s6, s7')
    a.e(f's_lshl_b32 s7, s{sRHO}, 2')
    a.e('s_add_u32 s6, s6, s7')
    a.e(f'v_lshrrev_b32 v{vXA}, 2, v{vO8}')
    a.e(f'v_lshlrev_b32 v{vXA}, 3, v{vXA}')
    a.e(f'v_and_b32 v0, 3, v{vO8}')
    a.e(f'v_add3_u32 v{vXA}, v{vXA}, v0, s6')
    a.e(f'v_lshl_add_u32 v{vXA}, v{vXA}, 5, s{sG}')
    a.e('s_movk_i32 s62, 1280')
    a.e(f'v_mad_u32_u24 v{vXA}, v{vXA}, s62, v{vSW}')
    a.e(f's_lshl_b32 s{sWK}, s{sWAVE}, 10')
    a.e(f's_lshl_b32 s{sROT}, s{sC}, 7' if OPT.get('rot', 1) else f's_mov_b32 s{sROT}, 0')
    a.e('s_waitcnt lgkmcnt(0)')
    a.stamp('karg')
    a.srd(sX, P_X, S * D * 2)

    def dma_x(kc):
        a.e(f's_add_u32 s99, s{sROT}, {kc * 128}')
        if kc >= 3:
            a.e('s_cmp_ge_u32 s99, 1280')
            a.e('s_cselect_b32 s18, 1280, 0')
            a.e('s_sub_u32 s99, s99, s18')
        a.e(f's_add_u32 m0, s{sWK}, {R1 + kc * 8192}')
        a.vmem(f'buffer_load_dwordx4 v{vXA}, {sr(sX, 4)}, s99 offen lds', ('c', 0 if kc < 4 else 1))

    for kc in range(4):
        dma_x(kc)
    a.srd(sW1, P_W1, D * F * 2)
    a.srd(sW2, P_W2, D * F * 2)
    a.srd(sWS, P_WS, WS_BYTES)
    a.srd(sOUT, P_OUT, S * D * 2)
    for kc in range(4, 10):
        dma_x(kc)
    if OPT.get('ne', 1):
        a.e(f's_mov_b32 s62, 0x{FLG + 0x40000:x}')
        a.vmem(f'buffer_load_dword v252, off, {sr(sWS, 4)}, s62 sc1', 'non')
    if OPT.get('tlb', 0):
        a.e('v_min_u32 v0, 15, v1')
        a.e('v_lshlrev_b32 v0, 21, v0')
        Ltl = a.newlab('Ltl')
        a.e(f's_cmp_lg_u32 s{sWAVE}, 6')
        a.e(f's_cbranch_scc1 {Ltl}')
        a.e(f'buffer_load_dword v255, v0, {sr(sWS, 4)}, 0 offen')
        a.e(f'buffer_load_dword v255, v0, {sr(sOUT, 4)}, 0 offen')
        a.label(Ltl)
    a.e(f's_sub_u32 s6, 64, s{sG}')
    a.e(f's_cmp_eq_u32 s{sG}, 0')
    a.e(f's_cselect_b32 s{sTAU1}, 32, s6')
    a.e(f's_mul_i32 s6, s{sC}, 7')
    a.e('s_min_u32 s100, s6, 48')
    a.e('s_lshl_b32 s6, s100, 1')
    a.e(f's_lshl_b32 s7, s{sWAVE}, 1')
    a.e(f's_add_u32 s{sU1}, s6, s7')
    a.e(f's_min_u32 s{sU1}, s{sU1}, 106')
    a.e(f's_cmp_lt_u32 s{sC}, 6')
    a.e(f's_cselect_b32 s{sU2}, 7, 6')
    a.e(f's_mul_i32 s{sGCM}, s{sG}, 81920')
    a.e(f's_lshl_b32 s6, s{sG}, 3')
    a.e(f's_add_u32 s7, s6, s{sC}')
    a.e('s_lshl_b32 s7, s7, 3')
    a.e(f's_add_u32 s7, s7, s{sWAVE}')
    a.e('s_lshl_b32 s7, s7, 7')
    a.e(f's_add_u32 s{sFOWN}, s7, 0x{FLG:x}')
    a.e(f's_add_u32 s7, s6, s{sWAVE}')
    a.e(f's_lshl_b32 s{sFSRC}, s7, 10')
    a.e(f's_sub_u32 s{sPG}, 32, s{sG}')
    a.e(f's_and_b32 s{sPG}, s{sPG}, 31')
    a.e(f's_lshl_b32 s7, s{sPG}, 3')
    a.e(f's_add_u32 s7, s7, s{sWAVE}')
    a.e(f's_lshl_b32 s{sFPAR}, s7, 10')
    a.e(f's_mul_i32 s{sW1B}, s{sU1}, 20480')
    a.e(f's_cmp_ge_u32 s{sWAVE}, s{sU2}')
    a.e(f's_cselect_b32 s{sW1B}, 0x{OOB:x}, s{sW1B}')
    a.e(f's_getreg_b32 s{sXCC}, hwreg(HW_REG_XCC_ID)')
    a.e(f's_and_b32 s{sXCC}, s{sXCC}, 15')
    a.e(f's_mul_i32 s{sHG}, s{sG}, {216 * 1024}')
    a.e(f's_mul_i32 s{sW2O}, s{sC}, {54 * 5120}')
    a.e(f's_add_u32 s{sW2O}, s{sW2O}, 0x{W2F:x}')
    a.e(f's_mul_i32 s98, s{sWAVE}, 14')
    for i in range(8):
        a.e(f's_add_u32 s6, s{sWAVE}, {min(7 * i, 48)}')
        if i < 6:
            a.e(f's_sub_u32 s7, s98, {52 - (0, 1, 2, 7, 8, 9)[i]}')
            a.e(f's_cmp_ge_u32 s{sWAVE}, 4')
            a.e('s_cselect_b32 s6, s7, s6')
            a.e(f's_cmp_eq_u32 s{sWAVE}, 7')
            a.e(f's_cselect_b32 s6, {(46, 47, 52, 53, 0x40000, 0x40000)[i]}, s6')
        a.e('s_lshl_b32 s7, s6, 12')
        a.e(f's_add_u32 s{sHO + i}, s7, s{sHG}')
        a.e('s_mulk_i32 s6, 5120')
        a.e(f's_add_u32 s{sWO + i}, s6, s{sW2O}')
    a.e('v_lshlrev_b32 v3, 4, v8')
    a.e('v_lshl_add_u32 v3, v9, 10, v3')
    a.e(f'v_and_b32 v{vF0}, 7, v1')
    a.e(f'v_xor_b32 v{vF0}, v{vF0}, v9')
    a.e(f'v_lshlrev_b32 v{vF0}, 4, v{vF0}')
    a.e(f'v_lshl_add_u32 v{vF0}, v8, 7, v{vF0}')
    a.e(f'v_xor_b32 v{vF1}, 64, v{vF0}')

    a.e('v_mov_b32 v0, 0')
    a.lds(f'ds_write_b32 v0, v0 offset:{CNT0}', 'z')

    def side(job):
        if job == 'late':
            if not OPT.get('ne', 1):
                a.e(f's_mov_b32 s62, 0x{FLG + 0x40000:x}')
                a.vmem(f'buffer_load_dword v252, off, {sr(sWS, 4)}, s62 sc1', 'non')
            setflag(a, None, 5)
        if job == 'nonc':
            a.wait(vm='non')
            a.e(f'v_readfirstlane_b32 s{sNON}, v252')
            a.e(f's_add_u32 s{sNON}, s{sNON}, 16')
            a.e(f's_and_b32 s{sNON}, s{sNON}, -16')
            a.e(f's_bitset1_b32 s{sNON}, 31')

    def cnt0_add():
        a.e('v_mov_b32 v5, 0')
        a.e('v_mov_b32 v0, 1')
        a.e('s_mov_b64 exec, 1')
        a.lds(f'ds_add_u32 v5, v0 offset:{CNT0}', 'cnt')
        a.e('s_mov_b64 exec, -1')

    def cnt0_wait():
        L, Ld = a.newlab('Lcw'), a.newlab('Lcd')
        a.e('s_mov_b32 s61, 0')
        a.label(L)
        a.e('v_mov_b32 v5, 0')
        a.e(f'ds_read_b32 v5, v5 offset:{CNT0}')
        a.e('s_waitcnt lgkmcnt(0)')
        a.lg.clear()
        a.e('v_cmp_gt_u32 vcc, 8, v5')
        a.e(f's_cbranch_vccz {Ld}')
        a.e('s_sleep 1')
        a.e('s_add_u32 s61, s61, 1')
        a.e(f's_cmp_lt_u32 s61, {SPIN}')
        a.e(f's_cbranch_scc1 {L}')
        a.label(Ld)

    def first_barrier():
        a.stamp('p0iss')
        a.wait(vm=('c', 0), lg='all')
        a.e('s_barrier')
        a.stamp('p0c0')

    def mainloop(read, mfma, la, pre=None):
        a.e(f'v_add_u32 v250, 40960, v248')
        a.e(f'v_add_u32 v251, 40960, v249')
        first_barrier()
        if pre:
            a.wait(vm=('c', 1))
            cnt0_add()
            pre()
            side('late')
        for j in range(la):
            for f in read(j):
                f()
        for j in range(20):
            if j == OPT.get('p0a', 2) and not pre:
                a.wait(vm=('c', 1))
                cnt0_add()
                side('late')
            if j + la == 8:
                cnt0_wait()
                a.stamp('p0c2')
            a.wait(lg=('f', j))
            weave(a, mfma(j), read(j + la) if j + la < 20 else [])
        side('nonc')
        if pre:
            a.wait(vm='stg')

    def xoff(j, rt):
        return 248 + j % 2 + (2 if j >= 10 else 0), ((j // 2) % 5) * 8192 + rt * 2048

    Lstat, Lcol, Lj0 = a.newlab('Lp0s'), a.newlab('Lp0c'), a.newlab('Lp0j')
    a.e(f's_cmp_eq_u32 s{sWAVE}, 7')
    a.e(f's_cbranch_scc1 {Lcol}')
    a.e(f's_cmp_ge_u32 s{sWAVE}, 5')
    a.e(f's_cbranch_scc1 {Lstat}')
    st0 = a.save()
    ACC, FR, DG, TG = 16, 32, 112, 192
    for r in range(4):
        a.e(f'v_mov_b32 v{TG + 16 + r}, 0x3f803f80')
    gen_D(a, lambda ks: DG + 4 * ks, TG, sROT)
    for ks in range(20):
        a.e(f'v_mfma_f32_16x16x32_bf16 v[{TG + 20}:{TG + 23}], {vr(TG + 16, 4)}, {vr(DG + 4 * ks, 4)}, {"0" if ks == 0 else vr(TG + 20, 4)}')
    a.e(f'v_add_u32 v248, {R1}, v{vF0}')
    a.e(f'v_add_u32 v249, {R1}, v{vF1}')
    a.e(f'v_mov_b32 v14, v{TG + 20}')

    def read_c(j):
        return [lambda rt=rt: a.lds(f'ds_read_b128 {vr(FR + 16 * (j % 4) + 4 * rt, 4)}, v{xoff(j, rt)[0]} offset:{xoff(j, rt)[1]}', ('f', j)) for rt in range(4)]

    def mfma_c(j):
        return [f'v_mfma_f32_16x16x32_bf16 {vr(ACC + 4 * rt, 4)}, {vr(FR + 16 * (j % 4) + 4 * rt, 4)}, {vr(DG + 4 * j, 4)}, {"0" if j == 0 else vr(ACC + 4 * rt, 4)}' for rt in range(4)]

    mainloop(read_c, mfma_c, 3)
    WF, RSr, MRr = 32, [192, 196, 200, 204], [208, 212, 216, 220]
    wf0 = lambda mat, tt, ks: WF + ((mat * 4 + tt) * 2 + ks) * 4
    for tt in range(4):
        for ks in range(2):
            for mat in range(2):
                a.lds(f'ds_read_b128 {vr(wf0(mat, tt, ks), 4)}, v2 offset:{W1L + ((mat * 4 + tt) * 2 + ks) * 1024}', 'wf')
    a.e('v_lshlrev_b32 v12, 4, v9')
    a.stamp('p0end')
    a.e('s_barrier')
    for rt in range(4):
        a.lds(f'ds_read_b128 {vr(RSr[rt], 4)}, v12 offset:{RS + rt * 64}', 'st')
        a.lds(f'ds_read_b128 {vr(MRr[rt], 4)}, v12 offset:{MR + rt * 64}', 'st')
    stage1(a, ACC, RSr, MRr, 96, wf0, VT0)
    stC = a.save()
    a.e(f's_branch {Lj0}')

    a.label(Lstat)
    a.restore(st0)
    AS, AM, ONE, FS = 24, 32, 40, 44
    for r in range(4):
        a.e(f'v_mov_b32 v{ONE + r}, 0x3f803f80')
    a.e(f's_sub_u32 s60, s{sWAVE}, 5')
    a.e('s_lshl_b32 s60, s60, 12')
    a.e(f's_add_u32 s6, s60, {R1}')
    a.e(f'v_add_u32 v248, s6, v{vF0}')
    a.e(f'v_add_u32 v249, s6, v{vF1}')

    for n in range(3):
        a.e(f'v_add_u32 v0, {n * 64}, v1')
        a.e('v_mul_u32_u24 v7, 5462, v0')
        a.e('v_lshrrev_b32 v7, 16, v7')
        a.e('v_mul_u32_u24 v5, 12, v7')
        a.e('v_sub_u32 v0, v0, v5')
        a.e(f's_mul_i32 s6, s{sC}, 5')
        a.e('s_sub_u32 s7, 70, s6')
        a.e('v_add_u32 v5, s6, v0')
        a.e('v_add_u32 v6, s7, v0')
        a.e('v_cmp_le_u32 vcc, 5, v0')
        a.e('v_cndmask_b32 v5, v5, v6, vcc')
        a.e('v_cmp_eq_u32 vcc, 80, v5')
        a.e('v_cndmask_b32 v5, v5, 0, vcc')
        a.e('v_cmp_eq_u32 vcc, 11, v0')
        a.e('v_cndmask_b32 v5, v5, 40, vcc')
        a.e(f'v_mul_u32_u24 v7, {64 * 1280}, v7')
        a.e(f'v_lshl_add_u32 v{120 + n}, v5, 4, v7')

    a.e(f's_cmp_eq_u32 s{sWAVE}, 6')
    a.e(f's_cselect_b32 s98, 0.5, 0x{fbits(0.25):08x}')
    a.e(f's_cselect_b32 s99, s{sTAU1}, s{sG}')
    a.e('s_lshl_b32 s6, s60, 1')
    a.e('v_add_u32 v99, s6, v2')
    gen_W1(a, 0, W1L, 80, (0,), 98)

    def stage0():
        a.e('s_mul_i32 s64, s99, 1280')
        a.e(f's_mul_i32 s6, s60, 3')
        a.e('s_lshr_b32 s6, s6, 1')
        for n in range(6):
            if n == 3:
                a.e(f's_add_u32 s64, s64, {16 * 64 * 1280}')
            a.e(f's_add_u32 m0, s6, {XRL0 + n * 1024}')
            a.vmem(f'buffer_load_dwordx4 v{120 + n % 3}, {sr(sX, 4)}, s64 offen lds', 'stg')

    def read_s(j):
        return [lambda rt=rt: a.lds(f'ds_read_b128 {vr(FS + 8 * (j % 4) + 4 * rt, 4)}, v{xoff(j, rt)[0]} offset:{xoff(j, rt)[1]}', ('f', j)) for rt in range(2)]

    def mfma_s(j):
        out = []
        for rt in range(2):
            f = vr(FS + 8 * (j % 4) + 4 * rt, 4)
            out.append(f'v_mfma_f32_16x16x32_bf16 {vr(AS + 4 * rt, 4)}, {f}, {f}, {"0" if j == 0 else vr(AS + 4 * rt, 4)}')
            out.append(f'v_mfma_f32_16x16x32_bf16 {vr(AM + 4 * rt, 4)}, {f}, {vr(ONE, 4)}, {"0" if j == 0 else vr(AM + 4 * rt, 4)}')
        return out

    mainloop(read_s, mfma_s, 3, stage0)
    a.e('s_lshr_b32 s6, s60, 5')
    stats_finalize(a, AS, AM, 2, 12, 64, MR - RS, 'rs_mr')
    a.wait(lg='all')
    a.stamp('p0end')
    a.e('s_barrier')
    a.e(f's_add_u32 s6, s60, {TWL0}')
    a.e('v_add_u32 v95, s6, v2')
    gen_TW(a, 80, 99, 95, 0)
    a.e(f's_branch {Lj0}')

    a.label(Lcol)
    a.restore(st0)
    a.e('s_movk_i32 s7, 1120')
    for n in range(5):
        a.e(f'v_add_u32 v0, {64 * n}, v1')
        a.e('v_mul_u32_u24 v5, 6554, v0')
        a.e('v_lshrrev_b32 v5, 16, v5')
        a.e('v_lshlrev_b32 v0, 4, v0')
        a.e(f'v_mad_u32_u24 v{120 + n}, v5, s7, v0')
    a.e(f's_mul_i32 s6, s{sG}, 40960')
    a.e(f's_mul_i32 s7, s{sC}, 160')
    a.e('s_add_u32 s6, s6, s7')
    a.e(f's_add_u32 s7, s6, {32 * 40960}')
    for t in range(2):
        for n in range(5):
            a.e(f's_mov_b32 m0, {W2S + t * 5120 + n * 1024}')
            a.vmem(f'buffer_load_dwordx4 v{120 + n}, {sr(sW2, 4)}, s{6 + t} offen lds', 'wsh')
    WA = 128
    a.e(f's_and_b32 s6, s{sG}, 7')
    a.e('s_mul_i32 s98, s6, 5')
    a.e('s_mul_i32 s99, s6, 10')
    a.e('s_add_u32 s99, s99, 4')
    a.e(f's_bfe_u32 s7, s{sG}, 0x10003')
    a.e(f's_cmp_ge_u32 s{sG}, 16')
    a.e('s_cselect_b64 s[76:77], -1, 0')
    for n in range(7):
        a.e(f'v_add_u32 v0, {64 * n}, v1')
        a.e('v_mul_u32_u24 v5, 4682, v0')
        a.e('v_lshrrev_b32 v5, 16, v5')
        a.e('v_mul_u32_u24 v6, 14, v5')
        a.e('v_sub_u32 v0, v0, v6')
        a.e('v_lshrrev_b32 v6, 3, v5')
        a.e('v_add_u32 v7, s98, v6')
        a.e('v_lshrrev_b32 v11, 1, v6')
        a.e('v_mad_u32_u24 v11, v11, 5, s99')
        a.e('v_mov_b32 v12, s7')
        a.e('v_and_b32 v6, 1, v6')
        a.e('v_cndmask_b32 v7, v7, v11, s[76:77]')
        a.e('v_cndmask_b32 v6, v12, v6, s[76:77]')
        a.e('v_and_b32 v5, 7, v5')
        a.e('v_lshl_add_u32 v5, v7, 3, v5')
        a.e('v_sub_u32 v7, 640, v5')
        a.e('v_cmp_eq_u32 vcc, 1, v6')
        a.e('v_cndmask_b32 v5, v5, v7, vcc')
        if n == 0:
            a.e('v_mov_b32 v6, 320')
            a.e('v_cmp_eq_u32 vcc, 0, v5')
            a.e('v_cndmask_b32 v5, v5, v6, vcc')
            a.e('v_cmp_eq_u32 vcc, 640, v5')
            a.e('v_cndmask_b32 v5, v5, 0, vcc')
        a.e('v_and_b32 v5, 0x3ff, v5')
        a.e('v_mul_u32_u24 v5, 3456, v5')
        a.e(f'v_lshl_add_u32 v{WA + n}, v0, 4, v5')

    def w1_in():
        a.e('s_lshl_b32 s7, s100, 6')
        a.e(f's_cmp_lt_u32 s{sG}, 20')
        a.e(f's_cselect_b32 s7, s7, 0x{OOB:x}')
        a.e('s_add_u32 s6, s7, 224')
        for t in range(2):
            for n in range(7):
                a.e(f's_mov_b32 m0, {WP1 + t * 7168 + n * 1024}')
                a.vmem(f'buffer_load_dwordx4 v{WA + n}, {sr(sW1, 4)}, s{7 - t} offen lds', ('wsh1', t))
    if OPT.get('w1e', 1):
        w1_in()
    first_barrier()
    if not OPT.get('w1e', 1):
        w1_in()
    a.wait(vm=('c', 1))
    cnt0_add()
    side('late')

    def w2_out():
        a.e('v_bfe_u32 v5, v1, 2, 2')
        a.e('v_lshl_add_u32 v5, v9, 3, v5')
        a.e('v_mul_u32_u24 v5, 160, v5')
        a.e('v_and_b32 v0, 3, v1')
        a.e('v_lshl_add_u32 v5, v0, 3, v5')
        a.e(f'v_add_u32 v5, {W2S}, v5')
        a.wait(vm='wsh')
        for u in range(10):
            for rd in range(2):
                a.lds(f'ds_read_b64_tr_b16 {vr(136 + 4 * u + 2 * rd, 2)}, v5 offset:{(u // 5) * 5120 + (u % 5) * 32 + rd * 640}', ('pf', u))
        a.e(f's_mul_i32 s6, s{sC}, 54')
        a.e(f's_add_u32 s6, s6, s{sG}')
        a.e('s_mul_i32 s6, s6, 5120')
        a.e(f's_add_u32 s6, s6, 0x{W2F:x}')
        for u in range(10):
            if u == 5:
                a.e(f's_cmp_ge_u32 s{sG}, 22')
                a.e(f's_cselect_b32 s6, 0x{OOB:x}, s6')
            a.wait(lg=('pf', u))
            a.e(f's_add_u32 s7, s6, {(u // 5) * 32 * 5120 + (u % 5) * 1024}')
            a.vmem(f'buffer_store_dwordx4 {vr(136 + 4 * u, 4)}, v2, {sr(sWS, 4)}, s7 offen sc1', 'w2o')

    w2_out()
    side('nonc')
    W1B = OPT.get('w1b', 1)

    def bar7():
        a.stamp('p0end')
        a.e('s_barrier')
    if not W1B:
        a.wait(vm='w2o')
        setflag(a, PH_V[0], 5)
        bar7()
    Lw1 = a.newlab('Lw1')
    a.e(f's_cmp_ge_u32 s{sG}, 20')
    a.e(f's_cbranch_scc1 {Lw1}')
    st = a.save()
    for t in range(2):
        a.e('v_bfe_u32 v5, v1, 2, 2')
        a.e('v_lshl_add_u32 v5, v9, 3, v5')
        a.e('v_mul_u32_u24 v5, 224, v5')
        a.e('v_and_b32 v0, 3, v1')
        a.e('v_lshl_add_u32 v5, v0, 3, v5')
        a.e(f'v_add_u32 v5, {WP1 + t * 7168}, v5')
        a.e(f's_mov_b32 s60, {7 * t}')
        a.wait(vm=('wsh1', t))
        for u in range(7):
            for rd in range(2):
                a.lds(f'ds_read_b64_tr_b16 {vr(16 + 4 * u + 2 * rd, 2)}, v5 offset:{rd * 4 * 224 + u * 32}', ('pf', u))
        a.e('s_lshl_b32 s6, s100, 1')
        a.e('s_add_u32 s60, s60, s6')
        a.e('s_mul_i32 s6, s60, 20')
        a.e(f's_add_u32 s6, s6, s{sG}')
        a.e('s_lshl_b32 s6, s6, 10')
        a.e(f's_mov_b32 s98, s{sC}' if t else 's_mov_b32 s98, 0')
        a.e('s_mov_b32 s99, 0x3f803f80')
        for u in range(7):
            a.wait(lg=('pf', u))
            a.e(f's_add_u32 s7, s6, {W1F + u * 20480}')
            if u >= 5:
                a.e('s_cmp_ge_u32 s98, 6')
                a.e(f's_cselect_b32 s7, 0x{OOB:x}, s7')
            a.vmem(f'buffer_store_dwordx4 {vr(16 + 4 * u, 4)}, v2, {sr(sWS, 4)}, s7 offen sc1', 'w1o')
            a.e(f'v_mov_b32 v{48 + u}, 0')
        a.e('v_mov_b32 v55, 0')
        for d in range(4):
            for u in range(7):
                a.e(f'v_dot2_f32_bf16 v{48 + u}, v{16 + 4 * u + d}, s99, v{48 + u}')
        a.e('s_nop 3')
        for u in range(0, 8, 2):
            a.e(f'v_permlane16_swap_b32 v{48 + u}, v{49 + u}')
        for u in range(0, 8, 2):
            a.e(f'v_add_f32 v{48 + u}, v{48 + u}, v{49 + u}')
        for u in (0, 4):
            a.e(f'v_permlane32_swap_b32 v{48 + u}, v{50 + u}')
        for u in (0, 4):
            a.e(f'v_add_f32 v{48 + u}, v{48 + u}, v{50 + u}')
        a.e(f's_mul_i32 s6, s{sG}, 6912')
        a.e('s_lshl_b32 s7, s60, 6')
        a.e('s_add_u32 s6, s6, s7')
        a.e(f's_add_u32 s6, s6, 0x{CSP:x}')
        a.e('v_lshlrev_b32 v5, 2, v1')
        a.vmem(f'buffer_store_dword v48, v5, {sr(sWS, 4)}, s6 offen sc1', 'w1o')
        a.e('s_cmp_ge_u32 s98, 6')
        a.e('s_cselect_b32 exec_lo, 0xffff, -1')
        a.e('s_cselect_b32 exec_hi, 0, 0xffff')
        a.vmem(f'buffer_store_dword v52, v5, {sr(sWS, 4)}, s6 offen offset:256 sc1', 'w1o')
        a.e('s_mov_b64 exec, -1')
    if W1B:
        a.wait(vm='w2o')
        Lw3 = a.newlab('Lw3')
        a.e(f's_branch {Lw3}')
    a.restore(st)
    a.label(Lw1)
    if W1B:
        a.wait(vm='w2o')
        a.label(Lw3)
        setflag(a, PH_V[0], 5)
        bar7()
    a.label(Lj0)
    a.e('s_nop 1')
    a.restore(stC)
    v_out_addr(a)
    if EW:
        a.e(f's_lshl_b32 s67, s{sC}, 10')
        a.e('s_add_u32 s67, s67, 896')
        pW = (253, 67, PH_V[0], 32, 13)
    a.wait(lg='all')
    a.e('s_barrier')
    a.stamp('p0vt')
    v_out(a, 0, VT0, 64)
    a.stamp('vo0')


    LSC = ' sc1'

    def xstore(text, tag, local):
        if not local:
            a.vmem(text + ' sc1', tag)
            return
        L, Lj = a.newlab('Lst'), a.newlab('Lsj')
        a.e('s_cmp_eq_u32 s26, 0')
        a.e(f's_cbranch_scc1 {L}')
        a.e(text + ' sc1')
        a.e(f's_branch {Lj}')
        a.label(L)
        a.vmem(text, tag)
        a.label(Lj)
        a.e('s_nop 1')

    def warm(vd, sbase, add, n, step=8192, lanes=None):
        a.e('v_lshlrev_b32 v0, 7, v1')
        for k in range(n):
            a.e(f's_add_u32 s64, s{sbase}, 0x{add + k * step:x}')
            a.vmem(f'buffer_load_dword v{vd}, v0, {sr(sWS, 4)}, s64 offen sc1', 'warm')

    LP = OPT.get('lp', 8)
    if LP:
        X1B[1] = X1B[0]
        HB[1] = HB[0]

    def w1load(n):
        a.e(f's_add_u32 s64, s{sW1B}, {n * 1024}')
        a.vmem(f'buffer_load_dwordx4 {vr(RING[n % NR], 4)}, v2, {sr(sWS, 4)}, s64 offen sc1', ('w1', n))

    def stash(n):
        a.e(f's_add_u32 m0, s69, {(n % NST) * 1024}')
        a.e(f's_add_u32 s64, s{sW1B}, {20480 + n * 1024}')
        a.vmem(f'buffer_load_dwordx4 v2, {sr(sWS, 4)}, s64 offen sc1 lds', ('ws', n))

    def w2load(f):
        if f % 5 == 4:
            a.e(f's_add_u32 s64, s{sWO + f // 5}, 4096')
            a.vmem(f'buffer_load_dwordx4 {vr(w2reg(f), 4)}, v2, {sr(sWS, 4)}, s64 offen sc1', ('w2', f))
        else:
            a.vmem(f'buffer_load_dwordx4 {vr(w2reg(f), 4)}, v2, {sr(sWS, 4)}, s{sWO + f // 5} offen offset:{(f % 5) * 1024} sc1', ('w2', f))

    def dest_row(vd):
        a.e(f's_lshl_b32 s6, s{sRHO}, 5')
        a.e(f'v_add_u32 v{vd}, s6, v10')
        a.e(f'v_sub_u32 v11, 63, v{vd}')
        a.e('v_sub_u32 v12, 32, v10')
        a.e('v_and_b32 v12, 31, v12')
        a.e('v_sub_u32 v13, 63, v10')
        a.e(f's_cmp_eq_u32 s{sRHO}, 0')
        a.e('s_cselect_b64 vcc, -1, 0')
        a.e('v_cndmask_b32 v12, v13, v12, vcc')
        a.e(f's_cmp_eq_u32 s{sG}, 0')
        a.e('s_cselect_b64 vcc, -1, 0')
        a.e('v_cndmask_b32 v11, v11, v12, vcc')
        a.e(f's_cmp_eq_u32 s{sMIR}, 1')
        a.e('s_cselect_b64 vcc, -1, 0')
        a.e(f'v_cndmask_b32 v{vd}, v{vd}, v11, vcc')

    def w1_touch(vd, t0, t1):
        a.e('v_min_u32 v0, 23, v10')
        a.e('v_lshlrev_b32 v0, 7, v0')
        a.e('s_movk_i32 s7, 20480')
        a.e('v_mad_u32_u24 v0, v4, s7, v0')
        a.e('s_and_b32 s6, s101, 3')
        a.e('s_mul_i32 s6, s6, 3072')
        a.e('s_mul_i32 s7, s100, 40960')
        a.e('s_add_u32 s6, s6, s7')
        for t in range(t0, t1):
            a.e(f's_add_u32 s7, s6, {W1F + 8192 + t * 40960}')
            a.vmem(f'buffer_load_dword v{vd}, v0, {sr(sWS, 4)}, s7 offen sc1', 'touch')

    def stage_all():
        a.e('v_mul_u32_u24 v0, 40960, v4')
        a.e('v_lshl_add_u32 v0, v10, 4, v0')
        a.e(f's_mul_i32 s6, s{sC}, 2560')
        a.e(f's_add_u32 s62, s{sGCM}, 0x{X2B:x}')
        for p in range(12):
            if p < 5:
                a.e(f's_add_u32 s64, s6, {p * 512}')
            elif p < 11:
                a.e(f's_sub_u32 s64, {(70 + p) * 512}, s6')
                if p == 10:
                    a.e(f's_cmp_eq_u32 s{sC}, 0')
                    a.e('s_cselect_b32 s64, 0, s64')
            else:
                a.e(f's_movk_i32 s64, {40 * 512}')
            a.e('s_add_u32 s64, s64, s62')
            a.e(f's_mov_b32 m0, {XRL1 + p * 1024}')
            a.vmem(f'buffer_load_dwordx4 v0, {sr(sWS, 4)}, s64 offen sc1 lds', 'xrd')

    def a2_pre(l, hook=lambda: None, mid=lambda: None):
        xb, A, shB, twb = ((XRL0, 192, 4, TWL0), (XRL1, 16, 10, TWL1))[l]
        dest_row(5)
        a.e('v_bfe_u32 v11, v1, 2, 1')
        a.e('v_and_b32 v12, 1, v1')
        a.e('v_lshlrev_b32 v12, 4, v12')
        a.e('v_mov_b32 v13, 0x3f80')
        a.e('v_lshlrev_b32 v12, v12, v13')
        a.e('v_cmp_eq_u32 vcc, v11, v4')
        a.e('v_cndmask_b32 v12, 0, v12, vcc')
        a.e('v_bfe_u32 v13, v1, 1, 1')
        a.e('v_bfe_u32 v11, v1, 3, 2')
        a.e('v_lshl_add_u32 v13, v11, 1, v13')
        for r in range(8):
            a.e(f'v_cmp_eq_u32 vcc, {r}, v13')
            a.e(f'v_cndmask_b32 v{ID + r}, 0, v12, vcc')
        mid()
        a.e(f'v_mul_u32_u24 v7, {A}, v5')
        a.e(f'v_add_u32 v7, {xb}, v7')
        a.e(f's_lshl_b32 s6, s{sKT}, 2')
        a.e(f's_cmp_eq_u32 s{sMIR}, 1')
        a.e('s_cselect_b64 s[76:77], -1, 0')
        a.e(f's_cmp_eq_u32 s{sC}, 0')
        a.e('s_cselect_b32 s7, 11, 0')
        for h in range(2):
            a.e(f'v_add3_u32 v11, v4, s6, {2 * h}')
            a.e('v_min_u32 v11, 4, v11')
            a.e('v_sub_u32 v12, 9, v11')
            a.e('v_cndmask_b32 v12, v11, v12, s[76:77]')
            a.e(f'v_lshl_add_u32 v12, v12, {shB}, v7')
            a.lds(f'ds_read_b128 {vr(XM + 4 * h, 4)}, v12', 'xr')
            a.e('v_mov_b32 v13, s7')
            a.e('v_cmp_eq_u32 vcc, 0, v11')
            a.e('v_cndmask_b32 v13, v11, v13, vcc')
            a.e('v_sub_u32 v12, 10, v11')
            a.e('v_cndmask_b32 v12, v13, v12, s[76:77]')
            a.e(f'v_lshl_add_u32 v12, v12, {shB}, v7')
            a.lds(f'ds_read_u16 v{XE + h}, v12', 'xr')
        hook()
        a.wait(lg='xr')
        Lr, Lj = a.newlab('Lxr'), a.newlab('Lxj')
        a.e('v_mov_b32 v11, 0xffff')
        a.e(f's_cmp_eq_u32 s{sMIR}, 1')
        a.e(f's_cbranch_scc1 {Lr}')
        for k in range(2):
            m, o = XM + 4 * k, XR + 4 * k
            a.e(f'v_bfi_b32 v{o}, v11, v{XE + k}, v{m}')
            for d in range(1, 4):
                a.e(f'v_mov_b32 v{o + d}, v{m + d}')
        a.e(f's_branch {Lj}')
        a.label(Lr)
        for k in range(2):
            m, o = XM + 4 * k, XR + 4 * k
            a.e(f'v_bfi_b32 v{o}, v11, v{XE + k}, v{m + 3}')
            a.e(f'v_bfi_b32 v{o + 1}, v11, v{m + 3}, v{m + 2}')
            a.e(f'v_bfi_b32 v{o + 2}, v11, v{m + 2}, v{m + 1}')
            a.e(f'v_bfi_b32 v{o + 3}, v11, v{m + 1}, v{m}')
        a.label(Lj)
        a.e(f's_lshl_b32 s6, s{sRHO}, 12')
        a.e(f's_add_u32 s6, s6, {twb}')
        a.e('v_add_u32 v11, s6, v2')
        for ks in range(4):
            a.lds(f'ds_read_b128 {vr(TW + 4 * ks, 4)}, v11 offset:{ks * 1024}', 'tw')
        a.e(f'v_mfma_f32_32x32x16_bf16 {vr(Y, 16)}, {vr(ID, 4)}, {vr(XR, 4)}, 0')
        a.e(f'v_mfma_f32_32x32x16_bf16 {vr(Y, 16)}, {vr(ID + 4, 4)}, {vr(XR + 4, 4)}, {vr(Y, 16)}')
        hook()
        a.e(f's_lshl_b32 s6, s{sC}, 2')
        a.e(f's_lshl_b32 s7, s{sMIR}, 5')
        a.e('s_add_u32 s6, s6, s7')
        a.e(f's_lshl_b32 s7, s{sC}, 1')
        a.e(f's_add_u32 s7, s7, s{sMIR}')
        a.e('s_add_u32 s7, s7, 64')
        a.e(f's_cmp_eq_u32 s{sKT}, 0')
        a.e('s_cselect_b32 s6, s6, s7')
        a.e('s_lshl_b32 s6, s6, 10')
        a.e('v_lshlrev_b32 v5, 4, v5')
        a.e('v_lshl_add_u32 v5, v4, 10, v5')
        a.e('v_add_u32 v5, s6, v5')
        a.e(f'v_add_u32 v6, {R1}, v5')
        a.e('s_cmp_eq_u32 s6, 32768')
        a.e('s_cselect_b32 s6, 0xffff, 0')
        a.e('v_mov_b32 v12, s6')
        a.e('v_cmp_eq_u32 vcc, 0, v4')
        a.e('v_cndmask_b32 v12, 0, v12, vcc')
        a.e('v_bfe_u32 v13, v1, 2, 2')
        a.e('v_lshl_add_u32 v13, v4, 3, v13')
        a.e('v_mul_u32_u24 v13, 192, v13')
        a.e('v_bfe_u32 v11, v1, 4, 1')
        a.e('v_lshlrev_b32 v11, 1, v11')
        a.e('v_and_b32 v0, 1, v1')
        a.e(f's_lshl_b32 s7, s{sKT}, 2')
        a.e('v_add3_u32 v11, v11, v0, s7')
        a.e('v_min_u32 v11, 4, v11')
        a.e('v_lshl_add_u32 v13, v11, 4, v13')
        a.e('v_bfe_u32 v11, v1, 1, 1')
        a.e('v_lshl_add_u32 v13, v11, 3, v13')
        a.e(f's_mul_i32 s6, s{sRHO}, 6144')
        a.e('s_add_u32 s6, s6, s58')
        a.e('v_add_u32 v13, s6, v13')
        a.e(f'v_mov_b32 v11, v{XR}')
        hook()
        a.wait(lg='tw')

    def reduce_addr(l, second):
        a.e(f's_add_u32 s6, s{sWAVE}, {8 if second else 0}')
        a.e('s_cmp_ge_u32 s6, 5')
        a.e('s_cselect_b32 s7, 5, 0')
        a.e(f's_cselect_b32 s62, 0, {R1}')
        if l == 0:
            a.e('s_cselect_b32 s65, 40960, 0')
        else:
            a.e(f's_cselect_b32 s65, s{sTAU1}, s{sG}')
        a.e('s_sub_u32 s6, s6, s7')
        a.e('s_lshl_b32 s7, s6, 10')
        a.e('s_add_u32 s62, s62, s7')
        a.e('v_lshrrev_b32 v11, 4, v10')
        a.e('v_mul_u32_u24 v11, 5120, v11')
        a.e('v_lshl_add_u32 v11, v4, 9, v11')
        a.e('v_lshl_add_u32 v11, v8, 4, v11')
        a.e('v_add_u32 v11, s62, v11')
        a.e(f'v_add_u32 v13, {5 * PRV}, v11')
        a.e('s_lshl_b32 s6, s6, 1')
        a.e(f's_mul_i32 s7, s{sC}, 10')
        a.e('s_add_u32 s6, s6, s7')
        a.e('v_add_u32 v7, s6, v4')
        if l == 0:
            a.e('v_lshlrev_b32 v7, 9, v7')
            a.e('v_lshl_add_u32 v7, v10, 4, v7')
            a.e(f's_add_u32 s65, s65, s{sGCM}')
            a.e(f's_add_u32 s65, s65, 0x{X2B:x}')
        else:
            a.e('v_lshlrev_b32 v7, 4, v7')
            a.e(f's_mov_b32 s7, {64 * 1280}')
            a.e('v_mad_u32_u24 v7, v10, s7, v7')
            a.e('s_mulk_i32 s65, 1280')

    def reduce_item(l):
        SUM, RB = 56, 64
        for h in range(2):
            a.lds(f'ds_read_b128 {vr(SUM + 4 * h, 4)}, v11 offset:{h * 256}', ('p', 0))
        for p in range(1, 7):
            for h in range(2):
                b, o = (11, p * PRV) if p < 5 else (13, (p - 5) * PRV)
                a.lds(f'ds_read_b128 {vr(RB + 8 * (p - 1) + 4 * h, 4)}, v{b} offset:{o + h * 256}', ('p', p))
        for p in range(1, 8):
            a.wait(lg=('p', p))
            for r in range(0, 8, 2):
                a.e(f'v_pk_add_f32 {vr(SUM + r, 2)}, {vr(SUM + r, 2)}, {vr(RB + 8 * ((p - 1) % 6) + r, 2)}')
            if p == 1:
                for h in range(2):
                    a.lds(f'ds_read_b128 {vr(RB + 4 * h, 4)}, v13 offset:{2 * PRV + h * 256}', ('p', 7))
        for r in range(4):
            a.e(f'v_cvt_pk_bf16_f32 v{SUM + r}, v{SUM + 2 * r}, v{SUM + 2 * r + 1}')
        if l == 0:
            a.vmem(f'buffer_store_dwordx4 {vr(SUM, 4)}, v7, {sr(sWS, 4)}, s65 offen sc1', 'xst')
        else:
            a.vmem(f'buffer_store_dwordx4 {vr(SUM, 4)}, v7, {sr(sOUT, 4)}, s65 offen', 'xst')

    def lin(n, sl, lds_add, ssrc, src_add, tag):
        for k in range(n):
            if k % 4 == 0:
                a.e(f's_add_u32 m0, s{sl}, {lds_add + k * 1024}')
                a.e(f's_add_u32 s64, s{ssrc}, 0x{src_add + k * 1024:x}')
            a.vmem(f'buffer_load_dwordx4 v2, {sr(sWS, 4)}, s64 offen offset:{(k % 4) * 1024} sc1 lds', tag)

    def cnt_add(addr, vt):
        a.e(f'v_mov_b32 v{vt}, {addr}')
        a.e('v_mov_b32 v0, 1')
        a.e('s_mov_b64 exec, 1')
        a.lds(f'ds_add_u32 v{vt}, v0', 'cnt')
        a.e('s_mov_b64 exec, -1')

    def cnt_peek(addr, vt):
        a.e(f'v_mov_b32 v{vt}, {addr}')
        a.lds(f'ds_read_b32 v{vt}, v{vt}', 'peek')

    def cnt_wait(addr, vt, peeked=False, target=8):
        L, Ld = a.newlab('Lcw'), a.newlab('Lcd')
        if peeked:
            a.wait(lg='peek')
            a.e(f'v_cmp_gt_u32 vcc, {target}, v{vt}')
            a.e(f's_cbranch_vccz {Ld}')
            st = a.save()
        a.e('s_mov_b32 s61, 0')
        a.label(L)
        a.e(f'v_mov_b32 v{vt}, {addr}')
        a.e(f'ds_read_b32 v{vt}, v{vt}')
        a.e('s_waitcnt lgkmcnt(0)')
        a.lg.clear()
        a.e(f'v_cmp_gt_u32 vcc, {target}, v{vt}')
        a.e(f's_cbranch_vccz {Ld}')
        a.e('s_sleep 1')
        a.e('s_add_u32 s61, s61, 1')
        a.e(f's_cmp_lt_u32 s61, {SPIN}')
        a.e(f's_cbranch_scc1 {L}')
        a.label(Ld)
        if peeked:
            a.restore(st)

    GO, DONE = STATS + 528, STATS + 544

    def sig_set(base, vt):
        a.e(f'v_mov_b32 v{vt}, s56')
        a.lds(f'ds_write_b32 v{vt}, v{vt} offset:{base - 4}', 'sig')

    def sig_wait(base, vt, slp):
        L, Ld = a.newlab('Lgw'), a.newlab('Lgd')
        a.e('s_mov_b32 s61, 0')
        a.label(L)
        a.e(f'v_mov_b32 v{vt}, s56')
        a.e(f'ds_read_b32 v{vt}, v{vt} offset:{base - 4}')
        a.e('s_waitcnt lgkmcnt(0)')
        a.lg.clear()
        a.e(f'v_cmp_eq_u32 vcc, 0, v{vt}')
        a.e(f's_cbranch_vccz {Ld}')
        a.e(f's_sleep {slp}')
        a.e('s_add_u32 s61, s61, 1')
        a.e(f's_cmp_lt_u32 s61, {SPIN}')
        a.e(f's_cbranch_scc1 {L}')
        a.label(Ld)

    bg = BG()
    a.e(f's_mul_i32 s68, s{sWAVE}, 5120')
    a.e(f's_mul_i32 s69, s{sWAVE}, {PRV}')
    a.e(f's_cmp_lt_u32 s{sC}, 4')
    a.e('s_cselect_b32 s58, 16384, 0')
    a.e(f's_add_u32 s58, s58, {R1 + 32768}')
    def pv0():
        poll_issue(a, *pW)
        a.wait(vm='vo')
        a.e('s_barrier')
        a.stamp('PV0')
        setflag_w0(a, PH_V[0], 7)
        poll_check(a, *pW)
        a.stamp('pollW')
        for f in range(30):
            bg.add(lambda f=f: w2load(f))
    a2_pre(0, lambda: bg.run(OPT.get('bgw2', 5)), pv0)

    for l in range(2):
        a.e(f's_lshl_b32 s67, s{sWAVE}, 15')
        a.e(f's_lshl_b32 s6, s{sC}, 10')
        a.e('s_add_u32 s67, s67, s6')
        pV = (7, 67, PH_V[l], 4, 13)
        bg.run(OPT.get('bgpv', 0))
        poll_issue(a, *pV)
        bg.run(OPT.get('bgpv2', 0))
        poll_check(a, *pV)
        if l == 0:
            def id_issue():
                a.e(f'v_mov_b32 v72, s{sFSRC}')
                a.e(f'v_mov_b32 v73, s{sFPAR}')
                a.e('v_cmp_eq_u32 vcc, 0, v1')
                a.e('v_cndmask_b32 v72, v73, v72, vcc')
                a.e(f's_mov_b32 s60, 0x{FLG:x}')
                a.vmem(f'buffer_load_dwordx2 v[72:73], v72, {sr(sWS, 4)}, s60 offen sc1', 'ids')
        a.stamp(f'pollV{l}')
        a.e(f's_mul_i32 s63, s{sWAVE}, 768')
        a.e('s_add_u32 s62, s63, s58')
        a.e('s_mov_b32 exec_hi, 0xffff')
        for rho in range(2):
            a.e(f's_lshl_b32 s6, s{sG if rho == 0 else sTAU1}, 3')
            a.e(f's_add_u32 s6, s6, s{sC}')
            a.e('s_mulk_i32 s6, 6144')
            a.e('s_add_u32 s6, s6, s63')
            a.e(f's_add_u32 s6, s6, 0x{VB[l]:x}')
            a.e(f's_add_u32 m0, s62, {rho * 6144}')
            a.vmem(f'buffer_load_dwordx4 v2, {sr(sWS, 4)}, s6 offen sc1 lds', 'v')
        a.e('s_mov_b64 exec, -1')
        if l == 0:
            id_issue()
        bg.run(OPT.get('bgv', 4))
        a.e('v_lshlrev_b32 v7, 3, v1')
        a.e(f'v_mov_b32 v{VF}, 0')
        a.e(f'v_mov_b32 v{VF + 1}, 0')
        a.lds(f'ds_write_b64 v7, {vr(VF, 2)} offset:{STATS + 256}', 'clr')
        a.wait(vm='v', lg='clr')
        a.e('s_barrier')
        a.stamp(f'V{l}')
        for ks in range(4):
            for rd in range(2):
                a.lds(f'ds_read_b64_tr_b16 {vr(VF + 4 * ks + 2 * rd, 2)}, v13 offset:{(16 * (ks % 2) + 4 * rd) * 192 + (ks // 2) * 80}', ('vf', ks))
        if l == 0:
            left2 = list(range(30 - len(bg.q), 30))
            bg.q = []
            for n in range(NR):
                bg.add(lambda n=n: w1load(n))
                if n < NST:
                    bg.add(lambda n=n: stash(n))
            bg.run(OPT.get('bg0', 2))

        a.e(f's_add_u32 s63, s{sGCM}, 0x{X1B[l]:x}')
        a.e(f's_cmp_eq_u32 s{sKT}, 0')
        a.e('s_cselect_b32 s70, -1, 0')
        a.e(f's_cselect_b32 s71, s63, 0x{OOB:x}')
        for ks in range(4):
            a.wait(lg=('vf', ks))
            a.e(f'v_mfma_f32_32x32x16_bf16 {vr(Y, 16)}, {vr(VF + 4 * ks, 4)}, {vr(TW + 4 * ks, 4)}, {vr(Y, 16)}')
        for r in range(8):
            a.e(f'v_cvt_pk_bf16_f32 v{PK + r}, v{Y + 2 * r}, v{Y + 2 * r + 1}')
        a.e(f'v_bfi_b32 v{PK}, v12, v11, v{PK}')
        xstore(f'buffer_store_dwordx4 {vr(PK + 4, 4)}, v5, {sr(sWS, 4)}, s71 offen offset:2048', 'x1s', l == 1 and LP & 1)
        a.e('s_mov_b32 exec_hi, s70')
        xstore(f'buffer_store_dwordx4 {vr(PK, 4)}, v5, {sr(sWS, 4)}, s63 offen', 'x1s', l == 1 and LP & 1)
        a.lds(f'ds_write_b128 v6, {vr(PK, 4)}', 'x1w')
        a.e('s_mov_b32 exec_lo, s70')
        a.lds(f'ds_write_b128 v6, {vr(PK + 4, 4)} offset:2048', 'x1w')
        a.e('s_mov_b64 exec, -1')
        a.stamp(f'x1st{l}')
        a.e('s_mov_b32 s7, 0x3f803f80')
        for r in range(4):
            a.e(f'v_mov_b32 v{16 + r}, 0')
        for r in range(4):
            for h in range(2):
                a.e(f'v_dot2_f32_bf16 v{16 + 2 * h}, v{PK + 4 * h + r}, s7, v{16 + 2 * h}')
                a.e(f'v_dot2_f32_bf16 v{17 + 2 * h}, v{PK + 4 * h + r}, v{PK + 4 * h + r}, v{17 + 2 * h}')
        a.e('v_bfe_u32 v7, v5, 4, 6')
        a.e('v_lshlrev_b32 v7, 3, v7')
        a.e('s_nop 2')
        a.e('v_and_b32 v18, s70, v18')
        a.e('v_and_b32 v19, s70, v19')
        a.e('v_add_f32 v16, v16, v18')
        a.e('v_add_f32 v17, v17, v19')
        a.e('v_mov_b32 v18, v16')
        a.e('v_mov_b32 v19, v17')
        a.e(f's_mul_i32 s6, s{sMIR}, {PRV}')
        a.e(f's_lshl_b32 s7, s{sKT}, 9')
        a.e('v_permlane32_swap_b32 v16, v18')
        a.e('v_permlane32_swap_b32 v17, v19')
        a.e('v_add3_u32 v7, v7, s6, s6') if False else None
        a.e('s_add_u32 s6, s6, s7')
        a.e('v_add_u32 v7, s6, v7')
        a.e('v_and_b32 v18, s70, v18')
        a.e('v_and_b32 v19, s70, v19')
        a.e('v_add_f32 v16, v16, v18')
        a.e('v_add_f32 v17, v17, v19')
        a.lds(f'ds_write_b64 v7, v[16:17] offset:{PSUM}', 'x1w')
        bg.run(OPT.get('bgx0', 4 if l == 0 else 3))
        a.wait(vm='x1s', lg='all')
        a.e('s_barrier')
        a.stamp(f'X1s{l}')
        a.e(f's_lshl_b32 s65, s{sG}, 12')
        a.e(f's_add_u32 s65, s65, 0x{STG + l * 0x20000:x}')
        Ls1 = a.newlab('Ls1')
        a.e(f's_cmp_lg_u32 s{sWAVE}, s{sC}')
        a.e(f's_cbranch_scc1 {Ls1}')
        a.e('v_lshlrev_b32 v7, 3, v1')
        a.e(f'v_add_u32 v0, {PSUM}, v7')
        for k in range(4):
            a.e(f'ds_read_b64 {vr(64 + 2 * k, 2)}, v0 offset:{(k // 2) * PRV + (k % 2) * 512}')
        a.e(f's_lshl_b32 s6, s{sC}, 9')
        a.e('s_add_u32 s6, s6, s65')
        a.e('s_waitcnt lgkmcnt(0)')
        for k in range(1, 4):
            a.e(f'v_add_f32 v64, v64, v{64 + 2 * k}')
            a.e(f'v_add_f32 v65, v65, v{65 + 2 * k}')
        a.e(f'buffer_store_dwordx2 v[64:65], v7, {sr(sWS, 4)}, s6 offen sc1')
        a.label(Ls1)
        setflag_w0(a, PH_X1[l], 7)
        if l == 0:
            L, Ld = a.newlab('Lidp'), a.newlab('Lidd')
            a.e(f's_add_u32 s59, s{sNON}, {PH_V[0]}')
            a.wait(vm='ids')
            a.e('s_mov_b32 s61, 0')
            a.label(L)
            a.e('v_subrev_u32 v72, s59, v72')
            a.e('v_cmp_le_u32 vcc, 16, v72')
            a.e(f's_cbranch_vccz {Ld}')
            st = a.save()
            id_issue()
            a.restore(st)
            a.e('s_waitcnt vmcnt(0)')
            a.e('s_add_u32 s61, s61, 1')
            a.e(f's_cmp_lt_u32 s61, {SPIN}')
            a.e(f's_cbranch_scc1 {L}')
            a.e('v_mov_b32 v73, -1')
            a.label(Ld)
            a.e('s_nop 0')
            a.e('v_readlane_b32 s6, v73, 0')
            a.e('v_readlane_b32 s7, v73, 1')
            for r, sf in ((6, sFSRC), (7, sFPAR)):
                a.e(f's_cmp_eq_u32 s{r}, s{sXCC}')
                a.e(f's_cselect_b32 s{r}, 0x{LOC if OPT.get("loc", 1) else 0:x}, 0')
                a.e(f's_add_u32 s{sf}, s{sf}, s{r}')
            a.e('s_and_b32 s6, s6, s7')
            a.e('s_cselect_b32 s6, 0, 1')
            a.e(f'v_mov_b32 v72, {STATS + 520}')
            a.e('v_mov_b32 v73, s6')
            a.lds('ds_or_b32 v72, v73', 'idw')
        CP = 16
        if l == 0:
            a.e(f's_lshl_b32 s6, s{sU1}, 6')
            a.e('v_lshl_add_u32 v7, v10, 2, s6')
            a.e('s_movk_i32 s7, 6912')
            a.e('v_mad_u32_u24 v7, v4, s7, v7')
            for n in range(10):
                a.e(f's_mov_b32 s7, 0x{CSP + n * 2 * 6912:x}')
                a.vmem(f'buffer_load_dword v{CP + n}, v7, {sr(sWS, 4)}, s7 offen sc1', 'cs')
        bg.run(OPT.get('bgx1', 3))
        pX = (7, sFSRC, PH_X1[l], 1)
        poll_issue(a, *pX)
        RSC, RA = 2 * PRV + 9216, 37
        Lw7 = a.newlab('Lw7')
        a.e(f's_cmp_lg_u32 s{sWAVE}, 7')
        a.e(f's_cbranch_scc1 {Lw7}')
        if True:
            a.e(f's_cmp_ge_u32 s{sC}, 4')
            a.e('s_cselect_b64 s[70:71], -1, 0')
            a.e('v_and_b32 v11, 7, v8')
            a.e('v_sub_u32 v12, 8, v11')
            a.e('v_cndmask_b32 v12, v11, v12, s[70:71]')
            a.e('v_lshrrev_b32 v13, 3, v8')
            a.e('v_add_u32 v0, 2, v13')
            a.e('v_cmp_eq_u32 vcc, 0, v11')
            a.e('v_cndmask_b32 v12, v12, 0, vcc')
            a.e('v_cndmask_b32 v13, v13, v0, vcc')
            a.e('v_and_b32 v0, 1, v12')
            a.e('v_lshlrev_b32 v0, 4, v0')
            a.e('v_mov_b32 v36, 0x3f80')
            a.e('v_lshlrev_b32 v0, v0, v36')
            a.e('v_cmp_eq_u32 vcc, v13, v9')
            a.e('v_cndmask_b32 v0, 0, v0, vcc')
            a.e('v_lshrrev_b32 v12, 1, v12')
            for r in range(4):
                a.e(f'v_cmp_eq_u32 vcc, {r}, v12')
                a.e(f'v_cndmask_b32 v{32 + r}, 0, v0, vcc')
            a.lds(f'ds_write_b128 v2, v[32:35] offset:{RSC}', 'rw')
            a.e(f'v_lshlrev_b32 v{RA}, 2, v1')
            a.e(f's_mul_i32 s6, s{sC}, 10')
            a.e('v_cmp_le_u32 s[72:73], 2, v9')
            for ft in range(5):
                a.e('v_and_b32 v11, 1, v9')
                a.e(f'v_add3_u32 v11, v11, s6, {2 * ft}')
                a.e('v_sub_u32 v12, 119, v11')
                a.e('v_cndmask_b32 v12, v11, v12, s[70:71]')
                a.e('v_sub_u32 v13, 120, v11')
                a.e('v_cndmask_b32 v13, v11, v13, s[70:71]')
                if ft == 0:
                    a.e('v_cmp_eq_u32 vcc, 0, v13')
                    a.e('v_cndmask_b32 v13, v13, 40, vcc')
                    a.e('v_cmp_eq_u32 vcc, 80, v13')
                    a.e('v_cndmask_b32 v13, v13, 0, vcc')
                a.e('v_cndmask_b32 v12, v12, v13, s[72:73]')
                a.e('v_mul_u32_u24 v13, 13108, v12')
                a.e('v_lshrrev_b32 v13, 16, v13')
                a.e('v_sub_u32 v11, v12, v13')
                a.e('v_mul_u32_u24 v0, 5, v13')
                a.e('v_sub_u32 v12, v12, v0')
                a.e('v_and_b32 v0, 7, v13')
                a.e('v_lshrrev_b32 v13, 3, v13')
                a.e('v_lshl_add_u32 v13, v0, 1, v13')
                a.e('v_add_u32 v13, 64, v13')
                a.e('v_cmp_eq_u32 vcc, 4, v12')
                a.e('v_cndmask_b32 v11, v11, v13, vcc')
                a.e('v_lshlrev_b32 v11, 10, v11')
                a.e('v_lshl_add_u32 v11, v8, 4, v11')
                a.e(f'v_add_u32 v11, {R1}, v11')
                a.lds(f'ds_write_b32 v{RA}, v11 offset:{RSC + PRV + (ft // 4) * PRV + (ft % 4) * 256}', 'rw')
        a.label(Lw7)
        poll_check(a, *pX)
        a.stamp(f'pollX1{l}')
        a.e(f's_lshl_b32 s6, s{sWAVE}, 12')
        a.e('s_lshr_b32 s7, s6, 1')
        a.e('s_add_u32 s66, s63, s6')
        a.e('s_add_u32 s57, s63, s7')
        a.e(f's_cmp_eq_u32 s{sWAVE}, s{sC}')
        a.e(f's_cselect_b32 s66, 0x{OOB:x}, s66')
        a.e(f's_cselect_b32 s57, 0x{OOB:x}, s57')
        a.e('s_cselect_b32 s67, 0x14000, s6')
        a.e('s_cselect_b32 s56, 0x14000, s7')
        lin(4, 67, R1, 66, 0, ('x1', 0))
        if l == 0:
            for n in range(1, 10):
                a.e(f'v_add_f32 v{CP}, v{CP}, v{CP + n}')
            a.e(f'v_mov_b32 v15, v{CP}')
            a.e(f'v_permlane32_swap_b32 v{CP}, v15')
            a.e(f'v_add_f32 v15, v{CP}, v15')
        a.e(f's_lshl_b32 s6, s{sWAVE}, 7')
        a.e('v_lshl_add_u32 v7, v10, 2, s6')
        a.lds(f'ds_write_b32 v7, v15 offset:{CSS}', 'csw')
        a.e(f'v_add_u32 v5, {R1}, v3')
        a.e(f'v_add_u32 v6, {R1 + 40960}, v3')
        if OPT.get('x1o', 0):
            a.e('s_waitcnt vmcnt(3)')
        lin(4, 67, R1 + 32768, 66, 32768, ('x1', 1))
        lin(2, 56, R1 + 65536, 57, 65536, ('x1', 1))
        a.wait(vm=('x1', 0), lg='all')
        a.e('s_barrier')
        a.stamp(f'B1{l}')
        if l == 0:
            a.e('ds_read_b32 v73, v72')
            a.e('s_waitcnt lgkmcnt(0)')
            a.e('v_readfirstlane_b32 s26, v73')
        Ls2 = a.newlab('Ls2')
        a.e(f's_cmp_lg_u32 s{sWAVE}, s{sC}')
        a.e(f's_cbranch_scc1 {Ls2}')
        st = a.save()
        setflag(a, PH_S[l], 12)
        a.restore(st)
        a.label(Ls2)
        LS, Lid, Lg2, Ljoin = (a.newlab(x) for x in ('LS', 'Lid', 'Lg2', 'Ljoin'))
        a.e(f's_cmp_eq_u32 s{sWAVE}, 7')
        a.e(f's_cbranch_scc1 {LS}')
        a.e(f's_cmp_ge_u32 s{sWAVE}, s{sU2}')
        a.e(f's_cbranch_scc1 {Lid}')
        st0 = a.save()
        q = list(bg.q)
        bg.q = []
        NW2 = OPT.get('nw2', 20)
        need2 = left2 if l == 0 else []

        def xaddr(ks, rt):
            return (5, ks * 4096 + rt * 256) if ks < 10 else (6, (ks - 10) * 4096 + rt * 256)

        def xreads(n, nst=2):
            out = []
            for rt in range(4):
                b, o = xaddr(n, rt)
                out.append(lambda rt=rt, b=b, o=o: a.lds(f'ds_read_b128 {vr(XF + 16 * (n % nst) + 4 * rt, 4)}, v{b} offset:{o}', ('xf', n)))
            return out

        EP = XF

        def epi_reads():
            a.e('v_lshlrev_b32 v7, 2, v8')
            for rt in range(4):
                a.lds(f'ds_read_b32 v{EP + 12 + rt}, v7 offset:{STATS + 256 + rt * 64}', 'st')
            for rt in range(4):
                a.lds(f'ds_read_b32 v{EP + 8 + rt}, v7 offset:{STATS + rt * 64}', 'st')

        def usread(n):
            a.lds(f'ds_read_b128 {vr(JIT[n % 2], 4)}, v13 offset:{(n % NST) * 1024}', ('us', n))

        def gemm(late, q, qlow=False):
            pw1, pws = [NR], [NST]
            a.e('v_add_u32 v13, s69, v2')
            for f in xreads(0):
                f()
            a.wait(vm=('ws', 0))
            usread(0)
            a.e(f's_add_u32 s56, s{sW1B}, {12 * 1024}')
            a.e(f's_add_u32 s57, s{sW1B}, {16 * 1024}')
            grp = [None]

            def ring1(k):
                a.vmem(f'buffer_load_dwordx4 {vr(RING[k % NR], 4)}, v2, {sr(sWS, 4)}, s{56 + (k - 12) // 4} offen offset:{(k % 4) * 1024} sc1', ('w1', k))

            def stash1(k):
                k0 = 9 + (k - 9) // 4 * 4 if k < 18 else 18
                if grp[0] != k0:
                    a.e(f's_add_u32 m0, s69, {(k0 % NST) * 1024}')
                    a.e(f's_add_u32 s66, s{sW1B}, {20480 + k0 * 1024}')
                    grp[0] = k0
                a.vmem(f'buffer_load_dwordx4 v2, {sr(sWS, 4)}, s66 offen offset:{(k - k0) * 1024} sc1 lds', ('ws', k))

            for n in range(20):
                if n == 7:
                    cnt_wait(CNT1, 7, True)
                a.wait(vm=[('w1', n)] + ([('ws', n + 1)] if n + 1 < 20 else []), lg=[('xf', n), ('us', n)])
                mf = []
                for h in range(2):
                    for rt in range(4):
                        ac = vr(ACCX + 16 * h + 4 * rt, 4)
                        w = RING[n % NR] if h == 0 else JIT[n % 2]
                        mf.append(f'v_mfma_f32_16x16x32_bf16 {ac}, {vr(w, 4)}, {vr(XF + 16 * (n % 2) + 4 * rt, 4)}, {"0" if n == 0 else ac}')
                fl = []
                if n + 1 < 20:
                    fl += xreads(n + 1) + [lambda: usread(n + 1)]
                nq = 0
                while q and nq < 3 and not qlow:
                    fl.append(q.pop(0))
                    nq += 1
                if not q or qlow:
                    while pws[0] < 20 and pws[0] - NST <= n and nq < 2:
                        fl.append(lambda k=pws[0]: stash1(k))
                        pws[0] += 1
                        nq += 1
                    while pw1[0] < 20 and pw1[0] - NR <= n and nq < 3:
                        fl.append(lambda k=pw1[0]: ring1(k))
                        pw1[0] += 1
                        nq += 1
                while q and nq < 3 and qlow:
                    fl.append(q.pop(0))
                    nq += 1
                if not late and OPT.get('xe', 1):
                    for k in range(2, NR):
                        last = k if k >= 8 else k + 12
                        if max(last + 1, 12 + (k - 8) // 2 if k >= 8 else 0) == n and n < 19:
                            fl.append(lambda f=28 + k: w2load(f))
                            xdone.append(28 + k)
                if n == 5:
                    fl.append(lambda: cnt_peek(CNT1, 7))
                if n == 19:
                    def ep():
                        a.e(f's_lshl_b32 s6, s{sWAVE}, 7')
                        a.e('v_lshl_add_u32 v7, v9, 4, s6')
                        for h in range(2):
                            a.lds(f'ds_read_b128 {vr(EP + 4 * h, 4)}, v7 offset:{CSS + h * 64}', 'csr')
                    fl = [ep, epi_reads]
                weave(a, mf, fl)
                if n == OPT.get('nca', 3) and not late:
                    a.wait(vm=('x1', 1))
                    cnt_add(CNT1, 7)
            assert not q
            a.stamp(f'gend{l}')
            prio(a, 3)
            a.e(f's_lshl_b32 s65, s{sU1}, 11')
            a.e(f's_add_u32 s65, s65, s{sHG}')
            a.e(f's_add_u32 s65, s65, 0x{HB[l]:x}')
            L, Ld = a.newlab('Lsw'), a.newlab('Lsd')
            a.e('s_mov_b32 s61, 0')
            a.label(L)
            a.e('s_waitcnt lgkmcnt(0)')
            a.lg.clear()
            a.e(f'v_min_u32 v7, v{EP + 12}, v{EP + 13}')
            a.e(f'v_min3_u32 v7, v7, v{EP + 14}, v{EP + 15}')
            a.e('v_cmp_eq_u32 vcc, 0, v7')
            a.e(f's_cbranch_vccz {Ld}')
            a.e('s_sleep 1')
            epi_reads()
            a.lg.clear()
            a.e('s_add_u32 s61, s61, 1')
            a.e(f's_cmp_lt_u32 s61, {SPIN}')
            a.e(f's_cbranch_scc1 {L}')
            a.e('s_waitcnt lgkmcnt(0)')
            a.label(Ld)
            a.e('v_lshlrev_b32 v7, 10, v4')
            a.e('v_lshl_add_u32 v7, v10, 4, v7')
            for h in range(2):
                for pr in range(2):
                    b = ACCX + 16 * h + 8 * pr
                    if OPT.get('pk', 0):
                        for r in range(0, 8, 2):
                            sel = 'op_sel:[0,0,0] op_sel_hi:[0,1,1]' if r < 4 else 'op_sel:[1,0,0] op_sel_hi:[1,1,1]'
                            a.e(f'v_pk_fma_f32 {vr(b + r, 2)}, {vr(EP + 8 + 2 * pr, 2)}, {vr(EP + 4 * h + r % 4, 2)}, {vr(b + r, 2)} {sel} neg_lo:[1,0,0] neg_hi:[1,0,0]')
                        for r in range(0, 8, 2):
                            sel = 'op_sel:[0,0] op_sel_hi:[1,0]' if r < 4 else 'op_sel:[0,1] op_sel_hi:[1,1]'
                            a.e(f'v_pk_mul_f32 {vr(b + r, 2)}, {vr(b + r, 2)}, {vr(EP + 12 + 2 * pr, 2)} {sel}')
                    else:
                        for r in range(8):
                            a.e(f'v_fma_f32 v{b + r}, -v{EP + 8 + 2 * pr + r // 4}, v{EP + 4 * h + r % 4}, v{b + r}')
                        for r in range(8):
                            a.e(f'v_mul_f32 v{b + r}, v{b + r}, v{EP + 12 + 2 * pr + r // 4}')
                    for r in range(4):
                        a.e(f'v_cvt_pk_bf16_f32 v{b + r}, v{b + 2 * r}, v{b + 2 * r + 1}')
                    for r in range(4):
                        a.e(f'v_pk_max_i16 v{b + r}, v{b + r}, 0')
                    a.e(f'v_permlane16_swap_b32 v{b}, v{b + 2}')
                    a.e(f'v_permlane16_swap_b32 v{b + 1}, v{b + 3}')
                    xstore(f'buffer_store_dwordx4 {vr(b, 4)}, v7, {sr(sWS, 4)}, s65 offen offset:{h * 2048 + pr * 512}', 'hst', LP & 4 and l >= OPT.get('lpl', 0))
            a.stamp(f'epi{l}')
            cnt_add(CNT2, 7)


        def b2(ns, accb, HB_, first, pr):
            N = 4 * ns
            acc = lambda rt, ft: vr(accb(rt) + 4 * ft, 4)
            a.e(f'v_add_u32 v12, 0x{HB[l]:x}, v3')
            a.e('v_add_u32 v13, s69, v2')
            a.e(f'v_add_u32 v11, {R1}, v13')
            slot = {}

            def direct(z, sl):
                slot[z] = sl
                a.vmem(f'buffer_load_dwordx4 {vr(HB_[sl], 4)}, v12, {sr(sWS, 4)}, s{sHO + z % ns} offen offset:{(z // ns) * 256} sc1', ('h', z))

            def jit(z, sl):
                slot[z] = sl
                a.lds(f'ds_read_b128 {vr(HB_[sl], 4)}, v13 offset:{(z - 10) * 1024}', ('hz', z))

            def pwrite(rt, ft):
                a.lds(f'ds_write_b128 v{11 if rt < 2 else 13}, {acc(rt, ft)} offset:{((rt % 2) * 5 + ft) * 1024}', ('pw', rt))

            for z in range(10):
                direct(z, z)
            staged = list(range(10, min(19, N)))

            def stage(z):
                a.e(f's_add_u32 m0, s69, {(z - 10) * 1024}')
                a.e(f's_add_u32 s64, s{sHO + z % ns}, {(z // ns) * 256}')
                a.vmem(f'buffer_load_dwordx4 v12, {sr(sWS, 4)}, s64 offen sc1 lds', ('h', z))
            sq = list(staged)
            for _ in range(OPT.get('ns0', 0)):
                if sq:
                    stage(sq.pop(0))
            refill = list(range(19, N))
            if ns != 8:
                cnt_wait(CNT2, 7)
                cnt_add(CNT2, 7)
            a.stamp(f'hiss{l}')
            prio(a, pr)
            todo = list(staged)
            wq = []
            for z in range(N):
                rt, i = divmod(z, ns)
                fill = []
                vmw = []
                for _ in range(2):
                    if sq:
                        fill.append(lambda t=sq.pop(0): stage(t))
                if z >= 1:
                    fs = slot[z - 1]
                    if todo and todo[0] <= z + 3:
                        t = todo.pop(0)
                        vmw.append(('h', t))
                        fill.append(lambda t=t, fs=fs: jit(t, fs))
                    elif refill:
                        fill.append(lambda t=refill.pop(0), fs=fs: direct(t, fs))
                if rt == 1 and i == 0 and ns == 8:
                    fill.append(lambda: cnt_peek(CNT2, 7))
                lgw = []
                if rt >= 1 and i == 1:
                    if rt == 1 and ns == 8:
                        cnt_wait(CNT2, 7, True)
                        cnt_add(CNT2, 7)
                    if rt == 3:
                        assert not todo
                        lgw.append(('hz', staged[-1]))
                    wq = [lambda rt=rt, ft=ft: pwrite(rt - 1, ft) for ft in range(5)]
                for _ in range(2):
                    if wq:
                        fill.append(wq.pop(0))
                if z in staged:
                    lgw.append(('hz', z))
                else:
                    vmw.append(('h', z))
                if i == 0 and rt >= 2 and accb(rt) == accb(rt - 2):
                    lgw.append(('pw', rt - 2))
                a.wait(vm=vmw + [('w2', 5 * i + k) for k in range(5)], lg=lgw or None)
                if i == 0:
                    a.stamp(f'rt{rt}_{l}')
                weave(a, [f'v_mfma_f32_16x16x32_bf16 {acc(rt, ft)}, {vr(w2reg(5 * i + ft), 4)}, {vr(HB_[slot[z]], 4)}, {"0" if first and i == 0 else acc(rt, ft)}' for ft in range(5)], fill)
            assert not wq
            a.stamp(f'b2B{l}')
            prio(a, 3)
            for ft in range(5):
                if ft == 4 and ns == 8:
                    L0 = a.newlab('L0')
                    a.e(f's_cmp_lg_u32 s{sWAVE}, 0')
                    a.e(f's_cbranch_scc1 {L0}')
                    cnt_wait(CNT2, 7, target=16)
                    a.label(L0)
                pwrite(3, ft)

        def flagbase(add):
            a.e(f's_lshl_b32 s67, s{sG}, 13')
            a.e('s_cmp_eq_u32 s26, 0')
            a.e(f's_cselect_b32 s6, 0x{LOC:x}, 0')
            a.e('s_add_u32 s67, s67, s6')
            a.e(add)

        HE = [56 + 4 * k for k in range(10)]
        HL = [96 + 4 * k for k in range(10)]
        acc = lambda rt, ft: vr(16 + 20 * rt + 4 * ft, 4)

        def late_tail(ns, first):
            a.e(f's_lshl_b32 s7, s{sWAVE}, 11')
            flagbase('s_add_u32 s67, s67, s7')
            poll(a, 11, 67, PH_H[l], 6, 'late', 4 - 64)
            a.stamp(f'pollB{l}')
            b2(ns, lambda rt: 16 + 20 * rt, HL, first, OPT.get('plb', 0))

        Llate = a.newlab('Llate')
        a.e(f's_cmp_ge_u32 s{sWAVE}, 4')
        a.e(f's_cbranch_scc1 {Llate}')
        prio(a, 3)
        xdone = []
        gemm(False, list(q))
        xrest = [f for f in range(30, 40) if f not in xdone]
        for f in xrest[:OPT.get('ne0', 3)]:
            w2load(f)
        a.wait(vm='hst')
        a.stamp(f'ackH{l}')
        setflag(a, PH_H[l], 12)
        prio(a, 1)
        for f in xrest[OPT.get('ne0', 3):] + need2:
            w2load(f)
        a.e(f's_lshl_b32 s7, s{sWAVE}, 7')
        flagbase('s_add_u32 s67, s67, s7')
        poll(a, 11, 67, PH_H[l], 8, 10)
        a.stamp(f'pollA{l}')
        b2(8, lambda rt: 16 + 20 * (rt % 2), HE, True, 1)
        stE = a.save()
        a.e(f's_branch {Ljoin}')

        a.label(Lid)
        a.restore(st0)
        a.wait(vm=('x1', 1))
        cnt_add(CNT1, 7)
        cnt_add(CNT2, 7)
        for f in need2:
            w2load(f)
        a.e(f's_branch {Lg2}')

        a.label(Llate)
        a.restore(st0)
        prio(a, 2)
        a.wait(vm=('x1', 1))
        cnt_add(CNT1, 7)
        a.e(f's_sleep {OPT.get("lsl", 2)}')
        for f in q:
            f()
        gemm(True, [lambda f=f: w2load(f) for f in need2], True)
        a.wait(vm='hst')
        a.stamp(f'ackH{l}')
        a.label(Lg2)
        setflag(a, PH_H[l], 12)
        late_tail(6, True)
        a.e(f's_branch {Ljoin}')

        a.label(LS)
        a.restore(st0)
        prio(a, 3)
        a.wait(vm=('x1', 1))
        cnt_add(CNT1, 7)
        if LP & 4 and l >= OPT.get('lpl', 0):
            a.e('s_lshl_b32 s6, s100, 12')
            a.e(f's_add_u32 s66, s6, s{sHG}')
            warm(40, 66, HB[l], 4, 7168)
        a.e(f's_lshl_b32 s67, s{sG}, 13')
        a.e('s_cmp_eq_u32 s26, 0')
        a.e(f's_cselect_b32 s6, 0x{LOC:x}, 0')
        a.e('s_add_u32 s67, s67, s6')
        a.e(f's_add_u32 s60, s67, 0x{FLG:x}')
        a.e(f's_add_u32 s59, s{sNON}, {PH_S[l]}')
        L, Ld = a.newlab('Lsp'), a.newlab('Lsd')
        a.e('s_mov_b32 s61, 0')
        a.label(L)
        a.e('v_and_b32 v7, 7, v1')
        a.e('v_mul_u32_u24 v7, 1152, v7')
        a.e(f'buffer_load_dword v7, v7, {sr(sWS, 4)}, s60 offen sc1')
        a.e('s_waitcnt vmcnt(0)')
        a.e('v_subrev_u32 v7, s59, v7')
        a.e('v_cmp_le_u32 vcc, 16, v7')
        a.e(f's_cbranch_vccz {Ld}')
        a.e('s_sleep 2')
        a.e('s_add_u32 s61, s61, 1')
        a.e(f's_cmp_lt_u32 s61, {SPIN}')
        a.e(f's_cbranch_scc1 {L}')
        a.label(Ld)
        a.vm.clear()
        a.e('v_lshlrev_b32 v7, 3, v1')
        for k in range(8):
            a.vmem(f'buffer_load_dwordx2 {vr(16 + 2 * k, 2)}, v7, {sr(sWS, 4)}, s65 offen offset:{k * 512} sc1', 'sg')
        a.e('v_lshlrev_b32 v7, 2, v1')
        a.e('s_mov_b32 s7, 0x3acccccd')
        a.wait(vm='sg')
        for k in range(1, 8):
            a.e(f'v_add_f32 v16, v16, v{16 + 2 * k}')
            a.e(f'v_add_f32 v17, v17, v{17 + 2 * k}')
        a.e('v_mul_f32 v16, s7, v16')
        a.e('v_mul_f32 v17, s7, v17')
        a.e('v_fma_f32 v17, -v16, v16, v17')
        a.e('v_max_f32 v17, 0, v17')
        a.e('v_add_f32 v17, 0x3727c5ac, v17')
        a.e('v_rsq_f32 v17, v17')
        a.lds(f'ds_write_b32 v7, v16 offset:{STATS}')
        a.lds(f'ds_write_b32 v7, v17 offset:{STATS + 256}')
        cnt_wait(CNT1, 7)
        a.stamp(f'stat{l}')
        prio(a, 0)
        PM, TB = 96, (100, 116)
        a.e('v_lshlrev_b32 v7, 2, v1')
        a.lds(f'ds_read_b128 {vr(PM, 4)}, v2 offset:{RSC}', 'ra')
        AR = (0, 11, 12, 13, 7)
        for ft in range(5):
            a.lds(f'ds_read_b32 v{AR[ft]}, v7 offset:{RSC + PRV + (ft // 4) * PRV + (ft % 4) * 256}', 'ra')
        a.wait(lg='ra')

        def rread(ft):
            return [lambda rt=rt: a.lds(f'ds_read_b128 {vr(TB[ft % 2] + 4 * rt, 4)}, v{AR[ft]} offset:{rt * 256}', ('rs', ft)) for rt in range(4)]
        for f in rread(0):
            f()
        for ft in range(5):
            if ft + 1 < 5:
                for f in rread(ft + 1):
                    f()
            a.wait(lg=('rs', ft))
            weave(a, [f'v_mfma_f32_16x16x32_bf16 {acc(rt, ft)}, {vr(PM, 4)}, {vr(TB[ft % 2] + 4 * rt, 4)}, 0' for rt in range(4)], [])
        prio(a, 0)
        cnt_add(CNT2, 7)
        for f in need2:
            if f < 20:
                w2load(f)
        a.e('s_sleep 40')
        late_tail(4, False)
        a.label(Ljoin)
        a.e('s_nop 1')
        a.restore(stE)
        a.vm.clear()
        a.forget('w1', 'ws', 'v', 'x1', 'us', 'h')
        a.seen -= {('w2', f) for f in range(30, 40)}
        if l == 0:
            Lg = a.newlab('Lg')
            a.e(f's_cmp_ge_u32 s{sWAVE}, 4')
            a.e(f's_cbranch_scc1 {Lg}')
            a.e('s_waitcnt lgkmcnt(0)')
            gen_D(a, dreg, 116, None, (0, 1))
            a.label(Lg)
        reduce_addr(l, False)
        a.wait(lg='all')
        a.e('s_barrier')
        a.stamp(f'PB{l}')
        reduce_item(l)
        Lnr = a.newlab('Lnr')
        a.e(f's_cmp_ge_u32 s{sWAVE}, 2')
        a.e(f's_cbranch_scc1 {Lnr}')
        reduce_addr(l, True)
        reduce_item(l)
        a.label(Lnr)
        if l == 1:
            Lnn = a.newlab('Lnn')
            a.e('s_lshl_b32 s6, s2, 3')
            a.e(f's_add_u32 s6, s6, s{sWAVE}')
            a.e('s_cmp_lg_u32 s6, 7')
            a.e(f's_cbranch_scc1 {Lnn}')
            a.e(f'v_mov_b32 v0, s{sNON}')
            a.e(f's_mov_b32 s7, 0x{FLG + 0x40000:x}')
            a.e('s_mov_b64 exec, 1')
            a.e(f'buffer_store_dword v0, off, {sr(sWS, 4)}, s7 sc1')
            a.e('s_mov_b64 exec, -1')
            a.label(Lnn)
            a.stamp_dump(2, sWS, sWAVE, 15)
            break

        a.stamp('redB')
        a.e('v_lshlrev_b32 v5, 4, v8')
        a.e('v_lshl_add_u32 v5, v9, 9, v5')
        a.e(f'v_add_u32 v5, {R1}, v5')
        a.e('v_add_u32 v6, 40960, v5')
        def helpers(f):
            Lg = a.newlab('Lg')
            a.e(f's_cmp_lt_u32 s{sWAVE}, 4')
            a.e(f's_cbranch_scc1 {Lg}')
            st = a.save()
            f()
            a.restore(st)
            a.label(Lg)
        helpers(lambda: gen_D(a, dreg, 116, None, (0,)))
        a.wait(vm='all')
        a.e('s_barrier')
        a.stamp('ackXB')
        setflag_w0(a, PH_X2, 12)
        pXA = (7, sFSRC, PH_X2, 1)
        pXB = (11, sFPAR, PH_X2, 1)
        a.vm.clear()
        a.e(f's_sleep {OPT.get("xsl", 0)}')
        poll_issue(a, *pXA)
        poll_issue(a, *pXB, tag='poll2')
        a.e(f's_add_u32 s67, s{sGCM}, s68')
        a.e(f's_mul_i32 s66, s{sPG}, 81920')
        a.e('s_add_u32 s66, s66, s68')
        poll_check(a, *pXA)
        lin(5, 68, R1, 67, X2B, 'x2')
        poll_check(a, *pXB, tag='poll2')
        a.stamp('pollXB')
        lin(5, 68, R1 + 40960, 66, X2B + 40960, 'x2')
        Lh, Lj, L4 = a.newlab('Lh'), a.newlab('Lj'), a.newlab('L4')
        a.e(f's_cmp_ge_u32 s{sWAVE}, 4')
        a.e(f's_cbranch_scc1 {Lh}')
        st0 = a.save()
        U4 = ST1 + 1024
        AC1, AC2 = 56, 72
        XS = [[88, 92, 96, 100], [116, 120, 124, 128], [104, 108, 112, 132]]
        WFA = 16
        RSr, MRr = [116, 120, 124, 128], [88, 92, 96, 100]
        wf = lambda mat, tt, ks: (16 + k * 4 if (k := (mat * 4 + tt) * 2 + ks) < 10 else (72 + (k - 10) * 4 if k < 14 else 104 + (k - 14) * 4))

        def sgn():
            a.e('v_and_b32 v0, 1, v1')
            a.e('v_lshlrev_b32 v0, 31, v0')
            a.e('v_or_b32 v0, 1.0, v0')

        def wf_reads():
            for tt in range(4):
                for ks in range(2):
                    for mat in range(2):
                        a.lds(f'ds_read_b128 {vr(wf(mat, tt, ks), 4)}, v2 offset:{W1SL + ((mat * 4 + tt) * 2 + ks) * 1024}', 'wf')

        def st_reads():
            a.e('v_lshlrev_b32 v12, 4, v9')
            for rt in range(4):
                a.lds(f'ds_read_b128 {vr(RSr[rt], 4)}, v12 offset:{ST1 + rt * 64}', 'st')
                a.lds(f'ds_read_b128 {vr(MRr[rt], 4)}, v12 offset:{ST1 + 256 + rt * 64}', 'st')

        a.e(f's_lshl_b32 s6, s{sWAVE}, 12')
        a.e('v_add_u32 v75, s6, v2')
        a.e(f's_cmp_ge_u32 s{sWAVE}, 2')
        a.e(f's_cselect_b32 s98, 0.5, 0x{fbits(0.25):08x}')
        a.e(f's_lshl_b32 s99, s{sKT}, 5')
        gen_W1(a, 1, W1SL, 56, (0,), 98, range(2), 99)
        a.wait(vm='x2', lg='all')
        a.e('s_barrier')
        a.stamp('XA')
        prio(a, OPT.get('mp', 1))

        def xr1(n):
            return [lambda rt=rt: a.lds(f'ds_read_b128 {vr(XS[n % 3][rt], 4)}, v{5 + rt // 2} offset:{n * 2048 + (rt % 2) * 256}', ('xf', n)) for rt in range(4)]
        for f in xr1(0) + xr1(1):
            f()
        for n in range(20):
            a.wait(lg=('xf', n))
            ac = AC1 if n < 10 else AC2
            mf = [f'v_mfma_f32_16x16x32_bf16 {vr(ac + 4 * rt, 4)}, {vr(XS[n % 3][rt], 4)}, {vr(dreg(n % 10), 4)}, {"0" if n % 10 == 0 else vr(ac + 4 * rt, 4)}' for rt in range(4)]
            weave(a, mf, xr1(n + 2) if n + 2 < 20 else [])
        prio(a, 3)
        sgn()
        for r in range(16):
            a.e(f'v_fma_f32 v{AC1 + r}, v{AC2 + r}, v0, v{AC1 + r}')
        wf_reads()
        a.stamp('a1B')
        a.e('s_barrier')
        a.stamp('ST')
        st_reads()
        a.label(L4)
        stage1(a, AC1, RSr, MRr, 116, wf, R1)
        stC = a.save()
        a.e(f's_branch {Lj}')

        a.label(Lh)
        a.restore(st0)
        gen_D(a, dreg, 116, None, (1,))
        AS, AM, ONE, FS = 64, 68, 72, 76
        for r in range(4):
            a.e(f'v_mov_b32 v{ONE + r}, 0x3f803f80')
        a.e(f's_mul_i32 s6, s{sRHO}, 40960')
        a.e(f's_lshl_b32 s7, s{sKT}, 8')
        a.e('s_add_u32 s6, s6, s7')
        a.e('v_add_u32 v5, s6, v5')
        a.wait(vm='x2', lg='all')
        a.e('s_barrier')
        prio(a, OPT.get('hp', 3))

        def sread(ks):
            a.lds(f'ds_read_b128 {vr(FS + 4 * (ks % 10), 4)}, v5 offset:{ks * 2048}', ('sf', ks))
        for ks in range(6):
            sread(ks)
        for ks in range(20):
            a.wait(lg=('sf', ks))
            f = vr(FS + 4 * (ks % 10), 4)
            ac = vr(56 if ks < 10 else 60, 4)
            weave(a, [f'v_mfma_f32_16x16x32_bf16 {vr(AS, 4)}, {f}, {f}, {"0" if ks == 0 else vr(AS, 4)}',
                      f'v_mfma_f32_16x16x32_bf16 {vr(AM, 4)}, {f}, {vr(ONE, 4)}, {"0" if ks == 0 else vr(AM, 4)}',
                      f'v_mfma_f32_16x16x32_bf16 {ac}, {f}, {vr(dreg(ks % 10), 4)}, {"0" if ks % 10 == 0 else ac}'],
                  [lambda: sread(ks + 6)] if ks + 6 < 20 else [])
        a.e(f's_and_b32 s66, s{sWAVE}, 3')
        a.e('s_lshl_b32 s6, s66, 6')
        a.e(f's_add_u32 s6, s6, {ST1}')
        stats_finalize(a, AS, AM, 1, 11, 64, 256, 'rs_mr')
        sgn()
        for r in range(4):
            a.e(f'v_fma_f32 v{56 + r}, v{60 + r}, v0, v{56 + r}')
        a.e('s_lshl_b32 s6, s66, 10')
        a.e('v_add_u32 v7, s6, v2')
        a.lds(f'ds_write_b128 v7, v[56:59] offset:{U4}', 'u4')
        prio(a, 3)
        Ln4 = a.newlab('Ln4')
        a.e(f's_cmp_lg_u32 s{sWAVE}, 4')
        a.e(f's_cbranch_scc1 {Ln4}')
        st1 = a.save()
        wf_reads()
        a.wait(lg='u4')
        a.e('s_barrier')
        for rt in range(4):
            a.lds(f'ds_read_b128 {vr(AC1 + 4 * rt, 4)}, v2 offset:{U4 + rt * 1024}', 'st')
        st_reads()
        a.e(f's_branch {L4}')
        a.label(Ln4)
        a.restore(st1)
        if OPT.get('t1', 4):
            L7 = a.newlab('L7')
            a.e(f's_cmp_lg_u32 s{sWAVE}, 7')
            a.e(f's_cbranch_scc1 {L7}')
            w1_touch(60, 0, OPT.get('t1', 4))
            a.label(L7)
        a.wait(lg='all')
        a.e('s_barrier')
        L7, L56 = a.newlab('L7'), a.newlab('L56')
        a.e(f's_cmp_eq_u32 s{sWAVE}, 7')
        a.e(f's_cbranch_scc1 {L7}')
        a.e(f's_cmp_eq_u32 s{sWAVE}, 6')
        a.e(f's_cselect_b32 s99, s{sTAU1}, s{sG}')
        a.e(f's_cselect_b32 s6, 4096, 0')
        a.e(f's_add_u32 s6, s6, {TWL1}')
        a.e('v_add_u32 v31, s6, v2')
        gen_TW(a, 16, 99, 31, 0)
        a.e(f's_branch {Lj}')
        a.label(L7)
        stage_all()
        a.label(Lj)
        a.e('s_nop 1')
        a.restore(stC)
        v_out_addr(a)
        a.wait(lg='all')
        a.e('s_barrier')
        a.stamp('VT')
        v_out(a, 1, R1, 64)
        for n in range(NR):
            bg.add(lambda n=n: w1load(n))
            if n < NST:
                bg.add(lambda n=n: stash(n))

        def pv1():
            a.wait(vm='vo')
            a.e('s_barrier')
            a.stamp('PV1')
            setflag_w0(a, PH_V[1], 7)
        a2_pre(1, lambda: bg.run(OPT.get('bga2', 3)), pv1)
        a.stamp('a2pre')

    a.label(end)
    a.e('s_endpgm')
    a.raw(descriptor(name, 256, 102))
    return 163840


def main():
    if len(sys.argv) > 2 and 'stamps' in sys.argv[2:]:
        Asm.STAMPS = True
    Asm.CYC = 'cyc' in sys.argv[2:]
    Asm.DBGOUT = 'dbgout' in sys.argv[2:]
    for o in sys.argv[2:]:
        if o.startswith('names='):
            Asm.ACTIVE = o[6:].split(',')
        elif '=' in o:
            k, v = o.split('=')
            OPT[k] = int(v)
    hdr = open('cdna_kernels/' + NAME + '.s.ref').read().split('\n')
    hdr = [l for l in hdr if l.startswith(';') and '@launch' not in l and 'Override launch' not in l and 'grid=ceil' not in l]
    out = '\n'.join(hdr) + '\n'
    a = Asm()
    lds = gen(a, NAME + '_kernel')
    out += f'; @launch grid=(256,1,1) block=(512,1,1) lds={lds}\n'
    if Asm.STAMPS:
        out += '; stampnames start,' + ','.join(Asm.ACTIVE) + '\n'
    out += '.amdgcn_target "amdgcn-amd-amdhsa--gfx950"\n'
    out += a.text()
    path = sys.argv[1] if len(sys.argv) > 1 else 'cdna_kernels/' + NAME + '.s'
    open(path, 'w').write(out)
    print('wrote', path, len(out))


main()
```

```python
import sys
from asmlib import *

NAME = 'interleave_layers__spectral_fnet__dense_activation_relu__prompt'
S, D, F = 2048, 640, 1728
W1F = 0
W2F = 0x220000
DPF = 0x440000
CSP = 0x510000
W1S = 0x540000
STG = 0x560000
FLG = 0x760000
VB = [0x960000, 0xC60000]
X1B = [0xF60000, 0x11E0000]
X2B = 0x1460000
HB = [0x16E0000, 0x1DA0000]
WS_BYTES = 268435456
OOB = 0x7f000000
SPIN = 200000
OPT = {}

R1 = 81920
PRV = 10240
STATS, CSS = 9216, PRV + 9216
CNT1, CNT2, CNTV, CNTX = STATS + 512, STATS + 516, STATS + 520, STATS + 524
PSUM = 5 * PRV + 9216
XRL1, TWL1, W1SL, ST1 = R1 + 12288, R1 + 24576, 20480, 36864

sWAVE, sG, sC = 3, 4, 5
P_X, P_CR, P_CI, P_DR, P_DI, P_W1, P_W2, P_OUT, P_WS = 8, 10, 12, 14, 16, 20, 22, 24, 26
sWS, sOUT, sFL = 28, 32, 36
sRHO, sKT, sMIR, sNON, sU1, sU2 = 38, 39, 40, 41, 42, 43
sGCM, sFOWN, sW1B, sHK, sW2O, sHG, sFSRC, sTAU1, sPG, sFPAR = 44, 45, 46, 47, 48, 49, 50, 51, 52, 53


def fbits(x):
    import struct
    return struct.unpack('<I', struct.pack('<f', float(x)))[0]


def sin_frag(a, dst, tmp, vstep, vbase, ks):
    for e in range(8):
        a.e(f'v_fmamk_f32 v{tmp + e}, v{vstep}, 0x{fbits(ks[e]):08x}, v{vbase}')
    for e in range(8):
        a.e(f'v_sin_f32 v{tmp + e}, v{tmp + e}')
    for r in range(4):
        a.e(f'v_cvt_pk_bf16_f32 v{dst + r}, v{tmp + 2 * r}, v{tmp + 2 * r + 1}')


def gen_D(a, reg, tmp, rot, parts=(0, 1, 2)):
    st, ba = tmp + 8, tmp + 9
    if 0 in parts:
        a.e(f's_mul_i32 s6, s{sC}, 40')
        a.e(f's_min_u32 s7, s{sWAVE}, 4')
        a.e('s_lshl_b32 s7, s7, 3')
        a.e('s_add_u32 s6, s6, s7')
        a.e(f'v_and_b32 v{st}, 7, v1')
        a.e(f'v_add_u32 v{st}, s6, v{st}')
        a.e('v_mov_b32 v0, 320')
        a.e(f'v_cmp_eq_u32 vcc, 0, v{st}')
        a.e(f'v_cndmask_b32 v{st}, v{st}, v0, vcc')
        if rot is None:
            a.e(f'v_lshlrev_b32 v{ba}, 3, v9')
        else:
            a.e(f's_lshr_b32 s6, s{rot}, 1')
            a.e(f'v_lshl_add_u32 v{ba}, v9, 3, s6')
        a.e(f'v_mul_u32_u24 v{ba}, v{st}, v{ba}')
        a.e('v_mov_b32 v11, 160')
        a.e('v_cmp_gt_u32 vcc, 8, v8')
        a.e('v_cndmask_b32 v0, v0, v11, vcc')
        a.e(f'v_add_u32 v{ba}, v{ba}, v0')
        a.e('s_mov_b32 s7, 0x666667')
        a.e(f'v_mul_hi_u32 v0, v{ba}, s7')
        a.e('v_mul_u32_u24 v0, 640, v0')
        a.e(f'v_sub_u32 v{ba}, v{ba}, v0')
        a.e(f'v_cvt_f32_i32 v{ba}, v{ba}')
        a.e(f'v_cvt_f32_u32 v{st}, v{st}')
        a.e(f'v_mul_f32 v{ba}, 0x3acccccd, v{ba}')
        a.e(f'v_mul_f32 v{st}, 0x3acccccd, v{st}')
        for ks in range(3):
            sin_frag(a, reg(ks), tmp, st, ba, [32 * ks + e for e in range(8)])
    if 1 in parts:
        for ks in range(3, 5):
            sin_frag(a, reg(ks), tmp, st, ba, [32 * ks + e for e in range(8)])
        a.e('v_mov_b32 v13, 0x80008000')
        a.e('v_lshrrev_b32 v0, 1, v1')
        a.e('v_lshrrev_b32 v12, 3, v1')
        a.e('v_and_b32 v12, v12, v1')
        a.e('v_xor_b32 v0, v0, v12')
        a.e('v_and_b32 v0, 1, v0')
        a.e('v_cmp_eq_u32 vcc, 1, v0')
        a.e('v_cndmask_b32 v12, 0, v13, vcc')
        a.e('v_and_b32 v0, 1, v1')
        a.e('v_cmp_eq_u32 vcc, 1, v0')
        a.e(f'v_cndmask_b32 v{st}, 0, v13, vcc')
        for r in range(20):
            a.e(f'v_xor_b32 v{reg(5 + r // 4) + r % 4}, v{reg(r // 4) + r % 4}, v12')
        a.e('s_mov_b64 exec, vcc')
        a.e('s_nop 4')
        for r in range(20):
            a.e(f'v_xor_b32_dpp v{reg(5 + r // 4) + r % 4}, v{reg(r // 4) + r % 4}, v12 row_ror:8 row_mask:0xf bank_mask:0xf')
        a.e('s_mov_b64 exec, -1')
    if 2 in parts:
        for r in range(40):
            a.e(f'v_xor_b32 v{reg(10 + r // 4) + r % 4}, v{reg(r // 4) + r % 4}, v{st}')


def gen_W1(a, l, base, tmp, mats, smat=None, tts=range(4), stt=None):
    st, ba, qq, sg = tmp + 16, tmp + 17, tmp + 18, 13
    a.e(f'v_lshlrev_b32 v{qq}, 3, v9')
    a.e(f'v_cvt_f32_u32 v{qq}, v{qq}')
    a.e(f'v_and_b32 v{sg}, 1, v1')
    a.e(f'v_mul_u32_u24 v{sg}, 0x10001, v{sg}')
    a.e(f'v_lshlrev_b32 v{sg}, 15, v{sg}')
    for mat in mats:
        if smat is None:
            a.e(f'v_mov_b32 v0, 0x{fbits(0.5 if mat else 0.25):08x}')
        for tt in tts:
            a.e(f'v_add_u32 v{st}, {16 * tt}, v8')
            if stt is not None:
                a.e(f'v_add_u32 v{st}, s{stt}, v{st}')
            a.e(f'v_cvt_f32_u32 v{st}, v{st}')
            a.e(f'v_mul_f32 v{st}, 0x3c800000, v{st}')
            a.e(f'v_fma_f32 v{ba}, v{qq}, v{st}, {"v0" if smat is None else f"s{smat}"}')
            o = tmp + 8
            for e in range(8):
                k = e if l == 0 else 2 * (e % 4) + e // 4
                a.e(f'v_fmamk_f32 v{tmp + e}, v{st}, 0x{fbits(k):08x}, v{ba}')
            for e in range(8):
                a.e(f'v_sin_f32 v{tmp + e}, v{tmp + e}')
            dst = (0, 1, 2, 3) if l == 0 else (0, 1, 4, 5)
            for r in range(4):
                a.e(f'v_cvt_pk_bf16_f32 v{o + dst[r]}, v{tmp + 2 * r}, v{tmp + 2 * r + 1}')
            for r in range(4):
                a.e(f'v_xor_b32 v{o + dst[r] + (4 if l == 0 else 2)}, v{o + dst[r]}, v{sg}')
            for ks in range(2):
                a.lds(f'ds_write_b128 v{tmp + 19}, {vr(o + 4 * ks, 4)} offset:{base + ((mat * 4 + tt) * 2 + ks) * 1024}', 'gw')


def gen_TW(a, tmp, srho_tau, vaddr, off0):
    st, ba = tmp + 12, tmp + 13
    a.e(f'v_lshl_add_u32 v{st}, v10, 6, s{srho_tau}')
    a.e(f'v_cvt_f32_u32 v{st}, v{st}')
    a.e(f'v_mul_f32 v{st}, 0x3a000000, v{st}')
    a.e(f'v_lshlrev_b32 v{ba}, 3, v4')
    a.e(f'v_cvt_f32_u32 v{ba}, v{ba}')
    a.e(f'v_mul_f32 v{ba}, v{ba}, v{st}')
    for ks in (2, 3, 0, 1):
        if ks == 0:
            a.e(f'v_add_f32 v{ba}, 0x{fbits(0.25):08x}, v{ba}')
        sin_frag(a, tmp + 8, tmp, st, ba, [16 * (ks % 2) + e for e in range(8)])
        a.lds(f'ds_write_b128 v{vaddr}, {vr(tmp + 8, 4)} offset:{off0 + ks * 1024}', 'gw')


def weave(a, mfs, fill):
    fill = list(fill)
    for i, m in enumerate(mfs):
        a.e(m)
        left = len(mfs) - i
        for _ in range(-(-len(fill) // left)):
            fill.pop(0)()


class BG:
    def __init__(self):
        self.q = []

    def add(self, f):
        self.q.append(f)

    def run(self, n=None):
        n = len(self.q) if n is None else min(n, len(self.q))
        for _ in range(n):
            self.q.pop(0)()


PH_V, PH_X1, PH_S, PH_H, PH_X2 = (1, 6), (2, 7), (3, 8), (4, 9), 5
LOC = 0x80000
sXCC = 27


def poll_issue(a, vres, soff, phase, n, shift=7, first=0, tag='poll'):
    if shift == 'late':
        a.e(f'v_and_b32 v{vres}, 3, v1')
        a.e(f'v_min_u32 v{vres}, 2, v{vres}')
        a.e(f'v_lshlrev_b32 v{vres}, 7, v{vres}')
        a.e(f'v_lshl_add_u32 v{vres}, v4, 10, v{vres}')
        shift = 7
    else:
        a.e(f'v_min_u32 v{vres}, {n - 1}, v1')
        a.e(f'v_lshlrev_b32 v{vres}, {shift}, v{vres}')
    a.e(f's_add_u32 s60, s{soff}, 0x{FLG + (first << shift):x}')
    a.vmem(f'buffer_load_dword v{vres}, v{vres}, {sr(sWS, 4)}, s60 offen sc1', tag)


def poll_check(a, vres, soff, phase, n, shift=7, first=0, tag='poll'):
    L, Ld = a.newlab('Lpoll'), a.newlab('Lpd')
    a.e(f's_add_u32 s59, s{sNON}, {phase}')
    a.wait(vm=tag)
    a.e('s_mov_b32 s61, 0')
    a.label(L)
    a.e(f'v_subrev_u32 v{vres}, s59, v{vres}')
    a.e(f'v_cmp_le_u32 vcc, 16, v{vres}')
    a.e(f's_cbranch_vccz {Ld}')
    if OPT.get('abl_poll', 0) >> phase & 1:
        a.e(f's_branch {Ld}')
    if OPT.get('psleep', 2):
        a.e(f's_sleep {OPT.get("psleep", 2)}')
    st = a.save()
    poll_issue(a, vres, soff, phase, n, shift, first, tag)
    a.restore(st)
    a.e('s_waitcnt vmcnt(0)')
    a.e('s_add_u32 s61, s61, 1')
    a.e(f's_cmp_lt_u32 s61, {SPIN}')
    a.e(f's_cbranch_scc1 {L}')
    a.label(Ld)


def poll(a, vres, *args, **kw):
    poll_issue(a, vres, *args, **kw)
    poll_check(a, vres, *args, **kw)


def prio(a, p):
    if OPT.get('prio', 1):
        a.e(f's_setprio {p}')


def setflag(a, phase, vt):
    if phase is None:
        a.e('v_mov_b32 v0, 0')
    else:
        a.e(f's_add_u32 s62, s{sNON}, {phase}')
        a.e('v_mov_b32 v0, s62')
        a.e(f'v_writelane_b32 v0, s{sXCC}, 1')
    a.e(f'v_lshlrev_b32 v{vt}, 2, v1')
    a.e('s_mov_b32 exec_hi, 0')
    if phase is not None and phase not in PH_V:
        a.e(f's_add_u32 s62, s{sFOWN}, 0x{LOC:x}')
        a.vmem(f'buffer_store_dword v0, v{vt}, {sr(sWS, 4)}, s62 offen', 'flag')
    if phase is not None and phase not in PH_V:
        L = a.newlab('Lng')
        a.e('s_cmp_eq_u32 s26, 0')
        a.e(f's_cbranch_scc1 {L}')
        a.e(f'buffer_store_dword v0, v{vt}, {sr(sWS, 4)}, s{sFOWN} offen sc1')
        a.label(L)
    else:
        a.vmem(f'buffer_store_dword v0, v{vt}, {sr(sWS, 4)}, s{sFOWN} offen sc1', 'flag')
    if phase is None:
        a.e(f's_add_u32 s62, s{sFOWN}, 0x{LOC:x}')
        a.vmem(f'buffer_load_dword v254, v{vt}, {sr(sWS, 4)}, s62 offen sc1', 'flag')
    a.e('s_mov_b32 exec_hi, -1')


def setflag_w0(a, phase, vt, w=0):
    L = a.newlab('Lnf')
    a.e(f's_cmp_lg_u32 s{sWAVE}, {w}')
    a.e(f's_cbranch_scc1 {L}')
    st = a.save()
    setflag(a, phase, vt)
    a.restore(st)
    a.label(L)


EXTRA = ['hst', 'flag', 'xst', 'vst', 'pst']


def merge(a, *states):
    ls = [[t for t in s[0] if t not in EXTRA and not (isinstance(t, tuple) and t[0] in EXTRA)] for s in states]
    ls.sort(key=len)
    longer = ls[-1]
    for s in ls[:-1]:
        assert longer[len(longer) - len(s):] == s, (longer, s)
    a.vm = list(longer)
    a.lg = []


def stats_finalize(a, AS, AM, ntiles, tmp, tile_stride, delta1, mode):
    t = tmp
    a.e(f'v_lshlrev_b32 v{t}, 2, v9')
    a.e(f'v_sub_u32 v{t}, v8, v{t}')
    a.e(f'v_lshl_add_u32 v{t + 1}, v8, 2, s6')
    a.e(f'v_cmp_eq_u32 s[70:71], 1, v{t}')
    a.e(f'v_cmp_eq_u32 s[72:73], 2, v{t}')
    a.e(f'v_cmp_eq_u32 s[74:75], 3, v{t}')
    a.e(f'v_cmp_gt_u32 s[76:77], 4, v{t}')
    a.e('s_mov_b32 s7, 0x3acccccd')
    for rt in range(ntiles):
        for acc in (AS, AM):
            b = acc + 4 * rt
            a.e(f'v_cndmask_b32 v{b}, v{b}, v{b + 1}, s[70:71]')
            a.e(f'v_cndmask_b32 v{b}, v{b}, v{b + 2}, s[72:73]')
            a.e(f'v_cndmask_b32 v{b}, v{b}, v{b + 3}, s[74:75]')
        ss, sm = AS + 4 * rt, AM + 4 * rt
        a.e(f'v_mul_f32 v{sm}, s7, v{sm}')
        a.e(f'v_mul_f32 v{ss}, s7, v{ss}')
        a.e(f'v_fma_f32 v{ss}, -v{sm}, v{sm}, v{ss}')
        a.e(f'v_max_f32 v{ss}, 0, v{ss}')
        a.e(f'v_add_f32 v{ss}, 0x3727c5ac, v{ss}')
        a.e(f'v_rsq_f32 v{ss}, v{ss}')
        if mode == 'rs_mr':
            a.e(f'v_mul_f32 v{sm}, v{sm}, v{ss}')
    a.e('s_mov_b64 exec, s[76:77]')
    for rt in range(ntiles):
        ss, sm = AS + 4 * rt, AM + 4 * rt
        first, second = (ss, sm) if mode == 'rs_mr' else (sm, ss)
        a.lds(f'ds_write_b32 v{t + 1}, v{first} offset:{rt * tile_stride}')
        a.lds(f'ds_write_b32 v{t + 1}, v{second} offset:{rt * tile_stride + delta1}')
    a.e('s_mov_b64 exec, -1')


def stage1(a, ACC, RSr, MRr, VA, wf, VT):
    a.e('v_cmp_gt_u32 vcc, 8, v8')
    a.e('v_mov_b32 v13, 0x80008000')
    a.e('v_cndmask_b32 v13, 0, v13, vcc')
    a.e('v_and_b32 v12, 1, v9')
    a.e('v_lshl_add_u32 v12, v12, 4, v8')
    a.e('v_mul_u32_u24 v12, 192, v12')
    a.e('v_lshrrev_b32 v11, 1, v9')
    a.e('v_mul_u32_u24 v11, 80, v11')
    a.e(f's_lshl_b32 s6, s{sWAVE}, 4')
    a.e(f's_add_u32 s6, s6, {VT}')
    a.e('v_add3_u32 v12, v12, v11, s6')
    a.wait(lg='st')
    for r in range(16):
        m = MRr[r // 4] + r % 4
        a.e(f'v_mul_f32 v{m}, v{m}, v14')
    for r in range(16):
        a.e(f'v_fma_f32 v{ACC + r}, v{ACC + r}, v{RSr[r // 4] + r % 4}, -v{MRr[r // 4] + r % 4}')
    for r in range(8):
        a.e(f'v_cvt_pk_bf16_f32 v{ACC + r}, v{ACC + 2 * r}, v{ACC + 2 * r + 1}')
    for r in range(8):
        a.e(f'v_xor_b32_dpp v{ACC + 8 + r}, v{ACC + r}, v13 row_ror:8 row_mask:0xf bank_mask:0xf')
    a.wait(lg='wf')
    for tt in range(4):
        for ks in range(2):
            for mat in range(2):
                src = ACC + 8 * mat + 4 * ks
                c = '0' if (ks == 0 and mat == 0) else vr(VA + 4 * tt, 4)
                a.e(f'v_mfma_f32_16x16x32_bf16 {vr(VA + 4 * tt, 4)}, {vr(src, 4)}, {vr(wf(mat, tt, ks), 4)}, {c}')
    for pr in range(2):
        b = VA + 8 * pr
        for r in range(4):
            a.e(f'v_cvt_pk_bf16_f32 v{b + r}, v{b + 2 * r}, v{b + 2 * r + 1}')
        a.e(f'v_permlane16_swap_b32 v{b}, v{b + 2}')
        a.e(f'v_permlane16_swap_b32 v{b + 1}, v{b + 3}')
        a.lds(f'ds_write_b128 v12, {vr(b, 4)} offset:{pr * 32 * 192}', 'vt')


def v_out_addr(a):
    for n, dst in ((0, 5), (8, 6)):
        a.e(f's_lshl_b32 s6, s{sWAVE}, 6')
        a.e(f's_add_u32 s6, s6, {n * 64}')
        a.e('v_add_u32 v0, s6, v1')
        a.e('v_mul_u32_u24 v7, 5462, v0')
        a.e('v_lshrrev_b32 v7, 16, v7')
        a.e('v_lshlrev_b32 v0, 4, v0')
        a.e(f's_mov_b32 s7, {8 * 32 * 192 - 192}')
        a.e(f'v_mad_u32_u24 v{dst}, v7, s7, v0')


def v_out(a, l, VT, R):
    a.e(f's_lshl_b32 s6, s{sWAVE}, 10')
    a.e(f's_add_u32 s6, s6, {VT}')
    a.e('v_add_u32 v0, s6, v2')
    a.lds(f'ds_read_b128 {vr(R, 4)}, v0', 'vo0')
    a.lds(f'ds_read_b128 {vr(R + 4, 4)}, v0 offset:8192', 'vo1')
    a.e(f's_lshl_b32 s6, s{sC}, 5')
    a.e(f's_add_u32 s6, s6, s{sG}')
    a.e('s_mulk_i32 s6, 192')
    a.e(f's_add_u32 s6, s6, 0x{VB[l]:x}')
    a.e(f's_cmp_lt_u32 s{sWAVE}, 4')
    a.e(f's_cselect_b32 s7, s6, 0x{OOB:x}')
    a.wait(lg='vo0')
    a.vmem(f'buffer_store_dwordx4 {vr(R, 4)}, v5, {sr(sWS, 4)}, s6 offen sc1', 'vo')
    a.wait(lg='vo1')
    a.vmem(f'buffer_store_dwordx4 {vr(R + 4, 4)}, v6, {sr(sWS, 4)}, s7 offen sc1', 'vo')


TW, Y, VF, PK, ID, XR, XM, XE = 16, 32, 48, 48, 48, 56, 16, 24
ACCX, XF = 16, 48
NR, NST = 12, 9
RING = [88 + 4 * k for k in range(12)]
JIT = [80, 84]
sHO, sWO = 8, 16
ACCB = 16
HBUF = [96 + 4 * k for k in range(5)]
ACCA = 96
XFS = [56, 64, 72, 80, 88, 236, 244]


def dreg(ks):
    return 16 + 4 * ks if ks < 10 else 196 + 4 * (ks - 10)


def w2reg(f):
    return 136 + 4 * f if f < 30 else 96 + 4 * (f - 30)


def gen(a, name):
    end = name + '_end'
    a.raw('.text')
    a.raw(f'.globl {name}')
    a.raw('.p2align 8')
    a.raw(f'.type {name},@function')
    a.label(name)
    a.e('s_cmp_ge_u32 s2, 256')
    a.e(f's_cbranch_scc1 {end}')
    a.stamp_init()
    a.stamp(0)
    a.e('s_load_dwordx16 s[8:23], s[0:1], 0')
    a.e('s_load_dwordx2 s[24:25], s[0:1], 64')
    a.e('s_load_dwordx2 s[26:27], s[0:1], 80')
    a.e('s_load_dwordx2 s[96:97], s[0:1], 72')
    a.e('v_lshrrev_b32 v1, 6, v0')
    a.e(f'v_readfirstlane_b32 s{sWAVE}, v1')
    a.e('v_and_b32 v1, 63, v0')
    if OPT.get('cpf', 1):
        a.e('s_getpc_b64 s[98:99]')
        a.label('Lpc')
        a.e('s_lshr_b32 s6, s2, 3')
        a.e('s_lshl_b32 s6, s6, 5')
        a.e('v_and_b32 v253, 31, v0')
        a.e('v_add_u32 v253, s6, v253')
        a.e('v_lshlrev_b32 v253, 7, v253')
        a.e(f'v_min_u32 v253, {end} - Lpc, v253')
        a.e('v_cmp_gt_u32 vcc, 32, v0')
        a.e('s_and_saveexec_b64 s[6:7], vcc')
        a.e('s_cbranch_execz Lpcd')
        a.e('global_load_dword v253, v253, s[98:99]')
        a.label('Lpcd')
        a.e('s_mov_b64 exec, -1')
    XM_ = OPT.get('xm', 0)
    a.e('s_and_b32 s6, s2, 7')
    a.e('s_lshr_b32 s7, s2, 3')
    a.e(f's_and_b32 s98, s6, {(1 << XM_) - 1}')
    a.e(f's_lshl_b32 s98, s98, {3 - XM_}')
    a.e(f's_and_b32 s99, s7, {(8 >> XM_) - 1}')
    a.e(f's_add_u32 s{sC}, s98, s99')
    a.e(f's_lshr_b32 s6, s6, {XM_}')
    a.e(f's_lshl_b32 s6, s6, {2 + XM_}')
    a.e(f's_lshr_b32 s7, s7, {3 - XM_}')
    a.e('s_add_u32 s101, s6, s7')
    a.e('s_lshr_b32 s6, s101, 1')
    a.e('s_sub_u32 s7, 32, s6')
    a.e('s_cmp_eq_u32 s6, 0')
    a.e('s_cselect_b32 s7, 16, s7')
    a.e('s_bitcmp1_b32 s101, 0')
    a.e(f's_cselect_b32 s{sG}, s7, s6')
    a.e('v_lshlrev_b32 v2, 4, v1')
    a.e('v_and_b32 v8, 15, v1')
    a.e('v_lshrrev_b32 v9, 4, v1')
    a.e('v_and_b32 v10, 31, v1')
    a.e('v_lshrrev_b32 v4, 5, v1')

    sX, sW1, sW2, sCS = 56, 68, 72, 12
    sWK, sROT = 54, 55
    RS, MR, CNT0 = 0, 256, 512
    W1L = 1024
    WP1 = W1L + 16384
    W2S = WP1 + 14336
    VT0 = W2S + 10240
    XRL0, TWL0 = XRL1, TWL1
    EW = 1
    vXA, vF0, vF1, vO8, vSW = 240, 244, 245, 246, 247
    a.e(f'v_lshrrev_b32 v{vO8}, 3, v1')
    a.e(f'v_and_b32 v{vSW}, 7, v1')
    a.e(f'v_xor_b32 v{vSW}, v{vSW}, v{vO8}')
    a.e(f'v_lshlrev_b32 v{vSW}, 4, v{vSW}')
    a.e(f's_and_b32 s{sKT}, s{sWAVE}, 1')
    a.e(f's_lshr_b32 s{sMIR}, s{sWAVE}, 2')
    a.e(f's_bfe_u32 s{sRHO}, s{sWAVE}, 0x10001')
    a.e(f's_lshl_b32 s6, s{sKT}, 4')
    a.e(f's_lshl_b32 s7, s{sMIR}, 5')
    a.e('s_add_u32 s6, s6, s7')
    a.e(f's_lshl_b32 s7, s{sRHO}, 2')
    a.e('s_add_u32 s6, s6, s7')
    a.e(f'v_lshrrev_b32 v{vXA}, 2, v{vO8}')
    a.e(f'v_lshlrev_b32 v{vXA}, 3, v{vXA}')
    a.e(f'v_and_b32 v0, 3, v{vO8}')
    a.e(f'v_add3_u32 v{vXA}, v{vXA}, v0, s6')
    a.e(f'v_lshl_add_u32 v{vXA}, v{vXA}, 5, s{sG}')
    a.e('s_movk_i32 s62, 1280')
    a.e(f'v_mad_u32_u24 v{vXA}, v{vXA}, s62, v{vSW}')
    a.e(f's_lshl_b32 s{sWK}, s{sWAVE}, 10')
    a.e(f's_lshl_b32 s{sROT}, s{sC}, 7' if OPT.get('rot', 1) else f's_mov_b32 s{sROT}, 0')
    a.e('s_waitcnt lgkmcnt(0)')
    a.stamp('karg')
    a.srd(sX, P_X, S * D * 2)

    def dma_x(kc):
        a.e(f's_add_u32 s99, s{sROT}, {kc * 128}')
        if kc >= 3:
            a.e('s_cmp_ge_u32 s99, 1280')
            a.e('s_cselect_b32 s18, 1280, 0')
            a.e('s_sub_u32 s99, s99, s18')
        a.e(f's_add_u32 m0, s{sWK}, {R1 + kc * 8192}')
        a.vmem(f'buffer_load_dwordx4 v{vXA}, {sr(sX, 4)}, s99 offen lds', ('c', 0 if kc < 4 else 1))

    for kc in range(4):
        dma_x(kc)
    a.srd(sW1, P_W1, D * F * 2)
    a.srd(sW2, P_W2, D * F * 2)
    a.srd(sWS, P_WS, WS_BYTES)
    a.srd(sOUT, P_OUT, S * D * 2)
    for kc in range(4, 10):
        dma_x(kc)
    if OPT.get('ne', 1):
        a.e(f's_mov_b32 s62, 0x{FLG + 0x40000:x}')
        a.vmem(f'buffer_load_dword v252, off, {sr(sWS, 4)}, s62 sc1', 'non')
    if OPT.get('tlb', 0):
        a.e('v_min_u32 v0, 15, v1')
        a.e('v_lshlrev_b32 v0, 21, v0')
        Ltl = a.newlab('Ltl')
        a.e(f's_cmp_lg_u32 s{sWAVE}, 6')
        a.e(f's_cbranch_scc1 {Ltl}')
        a.e(f'buffer_load_dword v255, v0, {sr(sWS, 4)}, 0 offen')
        a.e(f'buffer_load_dword v255, v0, {sr(sOUT, 4)}, 0 offen')
        a.label(Ltl)
    a.e(f's_sub_u32 s6, 64, s{sG}')
    a.e(f's_cmp_eq_u32 s{sG}, 0')
    a.e(f's_cselect_b32 s{sTAU1}, 32, s6')
    a.e(f's_mul_i32 s6, s{sC}, 7')
    a.e('s_min_u32 s100, s6, 48')
    a.e('s_lshl_b32 s6, s100, 1')
    a.e(f's_lshl_b32 s7, s{sWAVE}, 1')
    a.e(f's_add_u32 s{sU1}, s6, s7')
    a.e(f's_min_u32 s{sU1}, s{sU1}, 106')
    a.e(f's_cmp_lt_u32 s{sC}, 6')
    a.e(f's_cselect_b32 s{sU2}, 7, 6')
    a.e(f's_mul_i32 s{sGCM}, s{sG}, 81920')
    a.e(f's_lshl_b32 s6, s{sG}, 3')
    a.e(f's_add_u32 s7, s6, s{sC}')
    a.e('s_lshl_b32 s7, s7, 3')
    a.e(f's_add_u32 s7, s7, s{sWAVE}')
    a.e('s_lshl_b32 s7, s7, 7')
    a.e(f's_add_u32 s{sFOWN}, s7, 0x{FLG:x}')
    a.e(f's_add_u32 s7, s6, s{sWAVE}')
    a.e(f's_lshl_b32 s{sFSRC}, s7, 10')
    a.e(f's_sub_u32 s{sPG}, 32, s{sG}')
    a.e(f's_and_b32 s{sPG}, s{sPG}, 31')
    a.e(f's_lshl_b32 s7, s{sPG}, 3')
    a.e(f's_add_u32 s7, s7, s{sWAVE}')
    a.e(f's_lshl_b32 s{sFPAR}, s7, 10')
    a.e(f's_mul_i32 s{sW1B}, s{sU1}, 20480')
    a.e(f's_cmp_ge_u32 s{sWAVE}, s{sU2}')
    a.e(f's_cselect_b32 s{sW1B}, 0x{OOB:x}, s{sW1B}')
    a.e(f's_getreg_b32 s{sXCC}, hwreg(HW_REG_XCC_ID)')
    a.e(f's_and_b32 s{sXCC}, s{sXCC}, 15')
    a.e(f's_mul_i32 s{sHG}, s{sG}, {216 * 1024}')
    a.e(f's_mul_i32 s{sW2O}, s{sC}, {54 * 5120}')
    a.e(f's_add_u32 s{sW2O}, s{sW2O}, 0x{W2F:x}')
    a.e('v_lshlrev_b32 v3, 4, v8')
    a.e('v_lshl_add_u32 v3, v9, 10, v3')
    a.e(f'v_and_b32 v{vF0}, 7, v1')
    a.e(f'v_xor_b32 v{vF0}, v{vF0}, v9')
    a.e(f'v_lshlrev_b32 v{vF0}, 4, v{vF0}')
    a.e(f'v_lshl_add_u32 v{vF0}, v8, 7, v{vF0}')
    a.e(f'v_xor_b32 v{vF1}, 64, v{vF0}')

    a.e('v_mov_b32 v0, 0')
    a.lds(f'ds_write_b32 v0, v0 offset:{CNT0}', 'z')

    def side(job):
        if job == 'late':
            if not OPT.get('ne', 1):
                a.e(f's_mov_b32 s62, 0x{FLG + 0x40000:x}')
                a.vmem(f'buffer_load_dword v252, off, {sr(sWS, 4)}, s62 sc1', 'non')
            setflag(a, None, 5)
        if job == 'nonc':
            a.wait(vm='non')
            a.e(f'v_readfirstlane_b32 s{sNON}, v252')
            a.e(f's_add_u32 s{sNON}, s{sNON}, 16')
            a.e(f's_and_b32 s{sNON}, s{sNON}, -16')
            a.e(f's_bitset1_b32 s{sNON}, 31')

    def cnt0_add():
        a.e('v_mov_b32 v5, 0')
        a.e('v_mov_b32 v0, 1')
        a.e('s_mov_b64 exec, 1')
        a.lds(f'ds_add_u32 v5, v0 offset:{CNT0}', 'cnt')
        a.e('s_mov_b64 exec, -1')

    def cnt0_wait():
        L, Ld = a.newlab('Lcw'), a.newlab('Lcd')
        a.e('s_mov_b32 s61, 0')
        a.label(L)
        a.e('v_mov_b32 v5, 0')
        a.e(f'ds_read_b32 v5, v5 offset:{CNT0}')
        a.e('s_waitcnt lgkmcnt(0)')
        a.lg.clear()
        a.e('v_cmp_gt_u32 vcc, 8, v5')
        a.e(f's_cbranch_vccz {Ld}')
        a.e('s_sleep 1')
        a.e('s_add_u32 s61, s61, 1')
        a.e(f's_cmp_lt_u32 s61, {SPIN}')
        a.e(f's_cbranch_scc1 {L}')
        a.label(Ld)

    def first_barrier():
        a.stamp('p0iss')
        a.wait(vm=('c', 0), lg='all')
        a.e('s_barrier')
        a.stamp('p0c0')

    def mainloop(read, mfma, la, pre=None):
        a.e(f'v_add_u32 v250, 40960, v248')
        a.e(f'v_add_u32 v251, 40960, v249')
        first_barrier()
        if pre:
            a.wait(vm=('c', 1))
            cnt0_add()
            pre()
            side('late')
        for j in range(la):
            for f in read(j):
                f()
        for j in range(20):
            if j == OPT.get('p0a', 2) and not pre:
                a.wait(vm=('c', 1))
                cnt0_add()
                side('late')
            if j + la == 8:
                cnt0_wait()
                a.stamp('p0c2')
            a.wait(lg=('f', j))
            weave(a, mfma(j), read(j + la) if j + la < 20 else [])
        side('nonc')

    def xoff(j, rt):
        return 248 + j % 2 + (2 if j >= 10 else 0), ((j // 2) % 5) * 8192 + rt * 2048

    Lstat, Lcol, Lj0 = a.newlab('Lp0s'), a.newlab('Lp0c'), a.newlab('Lp0j')
    a.e(f's_cmp_eq_u32 s{sWAVE}, 7')
    a.e(f's_cbranch_scc1 {Lcol}')
    a.e(f's_cmp_ge_u32 s{sWAVE}, 5')
    a.e(f's_cbranch_scc1 {Lstat}')
    st0 = a.save()
    ACC, FR, DG, TG = 16, 32, 112, 192
    for r in range(4):
        a.e(f'v_mov_b32 v{TG + 16 + r}, 0x3f803f80')
    gen_D(a, lambda ks: DG + 4 * ks, TG, sROT, (0, 1))
    for ks in range(10):
        a.e(f'v_mfma_f32_16x16x32_bf16 v[{TG + 20}:{TG + 23}], {vr(TG + 16, 4)}, {vr(DG + 4 * ks, 4)}, {"0" if ks == 0 else vr(TG + 20, 4)}')
    a.e(f'v_add_u32 v248, {R1}, v{vF0}')
    a.e(f'v_add_u32 v249, {R1}, v{vF1}')
    a.e('v_and_b32 v243, 1, v1')
    a.e('v_lshlrev_b32 v243, 31, v243')
    a.e('v_or_b32 v243, 1.0, v243')
    a.e(f'v_fma_f32 v14, v{TG + 20}, v243, v{TG + 20}')

    def read_c(j):
        return [lambda rt=rt: a.lds(f'ds_read_b128 {vr(FR + 16 * (j % 4) + 4 * rt, 4)}, v{xoff(j, rt)[0]} offset:{xoff(j, rt)[1]}', ('f', j)) for rt in range(4)]

    def mfma_c(j):
        ac = ACC if j < 10 else 96
        return [f'v_mfma_f32_16x16x32_bf16 {vr(ac + 4 * rt, 4)}, {vr(FR + 16 * (j % 4) + 4 * rt, 4)}, {vr(DG + 4 * (j % 10), 4)}, {"0" if j % 10 == 0 else vr(ac + 4 * rt, 4)}' for rt in range(4)]

    if OPT.get('p0p', 1):
        Lp = a.newlab('Lp')
        a.e(f's_cmp_lt_u32 s{sWAVE}, 4')
        a.e(f's_cbranch_scc1 {Lp}')
        prio(a, 1)
        a.label(Lp)
    mainloop(read_c, mfma_c, 3)
    WF, RSr, MRr = 32, [192, 196, 200, 204], [208, 212, 216, 220]
    wf0 = lambda mat, tt, ks: WF + ((mat * 4 + tt) * 2 + ks) * 4
    for tt in range(4):
        for ks in range(2):
            for mat in range(2):
                a.lds(f'ds_read_b128 {vr(wf0(mat, tt, ks), 4)}, v2 offset:{W1L + ((mat * 4 + tt) * 2 + ks) * 1024}', 'wf')
    for r in range(16):
        a.e(f'v_fma_f32 v{ACC + r}, v{96 + r}, v243, v{ACC + r}')
    a.e('v_lshlrev_b32 v12, 4, v9')
    a.stamp('p0end')
    a.e('s_barrier')
    for rt in range(4):
        a.lds(f'ds_read_b128 {vr(RSr[rt], 4)}, v12 offset:{RS + rt * 64}', 'st')
        a.lds(f'ds_read_b128 {vr(MRr[rt], 4)}, v12 offset:{MR + rt * 64}', 'st')
    stage1(a, ACC, RSr, MRr, 96, wf0, VT0)
    stC = a.save()
    a.e(f's_branch {Lj0}')

    a.label(Lstat)
    a.restore(st0)
    AS, AM, ONE, FS = 24, 32, 40, 44
    for r in range(4):
        a.e(f'v_mov_b32 v{ONE + r}, 0x3f803f80')
    a.e(f's_sub_u32 s60, s{sWAVE}, 5')
    a.e('s_lshl_b32 s60, s60, 12')
    a.e(f's_add_u32 s6, s60, {R1}')
    a.e(f'v_add_u32 v248, s6, v{vF0}')
    a.e(f'v_add_u32 v249, s6, v{vF1}')

    for n in range(3):
        a.e(f'v_add_u32 v0, {n * 64}, v1')
        a.e('v_mul_u32_u24 v7, 5462, v0')
        a.e('v_lshrrev_b32 v7, 16, v7')
        a.e('v_mul_u32_u24 v5, 12, v7')
        a.e('v_sub_u32 v0, v0, v5')
        a.e(f's_mul_i32 s6, s{sC}, 5')
        a.e('s_sub_u32 s7, 70, s6')
        a.e('v_add_u32 v5, s6, v0')
        a.e('v_add_u32 v6, s7, v0')
        a.e('v_cmp_le_u32 vcc, 5, v0')
        a.e('v_cndmask_b32 v5, v5, v6, vcc')
        a.e('v_cmp_eq_u32 vcc, 80, v5')
        a.e('v_cndmask_b32 v5, v5, 0, vcc')
        a.e('v_cmp_eq_u32 vcc, 11, v0')
        a.e('v_cndmask_b32 v5, v5, 40, vcc')
        a.e(f'v_mul_u32_u24 v7, {64 * 1280}, v7')
        a.e(f'v_lshl_add_u32 v{120 + n}, v5, 4, v7')

    a.e(f's_cmp_eq_u32 s{sWAVE}, 6')
    a.e(f's_cselect_b32 s98, 0.5, 0x{fbits(0.25):08x}')
    a.e(f's_cselect_b32 s99, s{sTAU1}, s{sG}')
    a.e('s_lshl_b32 s6, s60, 1')
    a.e('v_add_u32 v99, s6, v2')
    gen_W1(a, 0, W1L, 80, (0,), 98)

    def stage0():
        a.e('s_mul_i32 s64, s99, 1280')
        a.e(f's_mul_i32 s6, s60, 3')
        a.e('s_lshr_b32 s6, s6, 1')
        for n in range(6):
            if n == 3:
                a.e(f's_add_u32 s64, s64, {16 * 64 * 1280}')
            a.e(f's_add_u32 m0, s6, {XRL0 + n * 1024}')
            a.vmem(f'buffer_load_dwordx4 v{120 + n % 3}, {sr(sX, 4)}, s64 offen lds', 'stg')

    def read_s(j):
        return [lambda rt=rt: a.lds(f'ds_read_b128 {vr(FS + 8 * (j % 4) + 4 * rt, 4)}, v{xoff(j, rt)[0]} offset:{xoff(j, rt)[1]}', ('f', j)) for rt in range(2)]

    def mfma_s(j):
        out = []
        for rt in range(2):
            f = vr(FS + 8 * (j % 4) + 4 * rt, 4)
            out.append(f'v_mfma_f32_16x16x32_bf16 {vr(AS + 4 * rt, 4)}, {f}, {f}, {"0" if j == 0 else vr(AS + 4 * rt, 4)}')
            out.append(f'v_mfma_f32_16x16x32_bf16 {vr(AM + 4 * rt, 4)}, {f}, {vr(ONE, 4)}, {"0" if j == 0 else vr(AM + 4 * rt, 4)}')
        return out

    if OPT.get('p0p', 1):
        prio(a, 2)
    mainloop(read_s, mfma_s, 3, lambda: None)
    a.e('s_lshr_b32 s6, s60, 5')
    stats_finalize(a, AS, AM, 2, 12, 64, MR - RS, 'rs_mr')
    a.wait(lg='all')
    a.stamp('p0end')
    a.e('s_barrier')
    stage0()
    a.e(f's_add_u32 s6, s60, {TWL0}')
    a.e('v_add_u32 v95, s6, v2')
    gen_TW(a, 80, 99, 95, 0)
    a.e(f's_branch {Lj0}')

    a.label(Lcol)
    a.restore(st0)
    a.e('s_movk_i32 s7, 1120')
    for n in range(5):
        a.e(f'v_add_u32 v0, {64 * n}, v1')
        a.e('v_mul_u32_u24 v5, 6554, v0')
        a.e('v_lshrrev_b32 v5, 16, v5')
        a.e('v_lshlrev_b32 v0, 4, v0')
        a.e(f'v_mad_u32_u24 v{120 + n}, v5, s7, v0')
    a.e(f's_mul_i32 s6, s{sG}, 40960')
    a.e(f's_mul_i32 s7, s{sC}, 160')
    a.e('s_add_u32 s6, s6, s7')
    a.e(f's_add_u32 s7, s6, {32 * 40960}')
    for t in range(2):
        for n in range(5):
            a.e(f's_mov_b32 m0, {W2S + t * 5120 + n * 1024}')
            a.vmem(f'buffer_load_dwordx4 v{120 + n}, {sr(sW2, 4)}, s{6 + t} offen lds', 'wsh')
    WA = 128
    a.e(f's_and_b32 s6, s{sG}, 7')
    a.e('s_mul_i32 s98, s6, 5')
    a.e('s_mul_i32 s99, s6, 10')
    a.e('s_add_u32 s99, s99, 4')
    a.e(f's_bfe_u32 s7, s{sG}, 0x10003')
    a.e(f's_cmp_ge_u32 s{sG}, 16')
    a.e('s_cselect_b64 s[76:77], -1, 0')
    for n in range(7):
        a.e(f'v_add_u32 v0, {64 * n}, v1')
        a.e('v_mul_u32_u24 v5, 4682, v0')
        a.e('v_lshrrev_b32 v5, 16, v5')
        a.e('v_mul_u32_u24 v6, 14, v5')
        a.e('v_sub_u32 v0, v0, v6')
        a.e('v_lshrrev_b32 v6, 3, v5')
        a.e('v_add_u32 v7, s98, v6')
        a.e('v_lshrrev_b32 v11, 1, v6')
        a.e('v_mad_u32_u24 v11, v11, 5, s99')
        a.e('v_mov_b32 v12, s7')
        a.e('v_and_b32 v6, 1, v6')
        a.e('v_cndmask_b32 v7, v7, v11, s[76:77]')
        a.e('v_cndmask_b32 v6, v12, v6, s[76:77]')
        a.e('v_and_b32 v5, 7, v5')
        a.e('v_lshl_add_u32 v5, v7, 3, v5')
        a.e('v_sub_u32 v7, 640, v5')
        a.e('v_cmp_eq_u32 vcc, 1, v6')
        a.e('v_cndmask_b32 v5, v5, v7, vcc')
        if n == 0:
            a.e('v_mov_b32 v6, 320')
            a.e('v_cmp_eq_u32 vcc, 0, v5')
            a.e('v_cndmask_b32 v5, v5, v6, vcc')
            a.e('v_cmp_eq_u32 vcc, 640, v5')
            a.e('v_cndmask_b32 v5, v5, 0, vcc')
        a.e('v_and_b32 v5, 0x3ff, v5')
        a.e('v_mul_u32_u24 v5, 3456, v5')
        a.e(f'v_lshl_add_u32 v{WA + n}, v0, 4, v5')

    def w1_in():
        a.e('s_lshl_b32 s7, s100, 6')
        a.e(f's_cmp_lt_u32 s{sG}, 20')
        a.e(f's_cselect_b32 s7, s7, 0x{OOB:x}')
        a.e('s_add_u32 s6, s7, 224')
        for t in range(2):
            for n in range(7):
                a.e(f's_mov_b32 m0, {WP1 + t * 7168 + n * 1024}')
                a.vmem(f'buffer_load_dwordx4 v{WA + n}, {sr(sW1, 4)}, s{7 - t} offen lds', ('wsh1', t))
    if OPT.get('w1e', 1):
        w1_in()
    first_barrier()
    if not OPT.get('w1e', 1):
        w1_in()
    a.wait(vm=('c', 1))
    cnt0_add()
    side('late')

    def w2_out():
        a.e('v_bfe_u32 v5, v1, 2, 2')
        a.e('v_lshl_add_u32 v5, v9, 3, v5')
        a.e('v_mul_u32_u24 v5, 160, v5')
        a.e('v_and_b32 v0, 3, v1')
        a.e('v_lshl_add_u32 v5, v0, 3, v5')
        a.e(f'v_add_u32 v5, {W2S}, v5')
        a.wait(vm='wsh')
        for u in range(10):
            for rd in range(2):
                a.lds(f'ds_read_b64_tr_b16 {vr(136 + 4 * u + 2 * rd, 2)}, v5 offset:{(u // 5) * 5120 + (u % 5) * 32 + rd * 640}', ('pf', u))
        a.e(f's_mul_i32 s6, s{sC}, 54')
        a.e(f's_add_u32 s6, s6, s{sG}')
        a.e('s_mul_i32 s6, s6, 5120')
        a.e(f's_add_u32 s6, s6, 0x{W2F:x}')
        for u in range(10):
            if u == 5:
                a.e(f's_cmp_ge_u32 s{sG}, 22')
                a.e(f's_cselect_b32 s6, 0x{OOB:x}, s6')
            a.wait(lg=('pf', u))
            a.e(f's_add_u32 s7, s6, {(u // 5) * 32 * 5120 + (u % 5) * 1024}')
            a.vmem(f'buffer_store_dwordx4 {vr(136 + 4 * u, 4)}, v2, {sr(sWS, 4)}, s7 offen sc1', 'w2o')

    w2_out()
    side('nonc')
    W1B = OPT.get('w1b', 1)

    def bar7():
        a.stamp('p0end')
        a.e('s_barrier')
    if not W1B:
        a.wait(vm='w2o')
        setflag(a, PH_V[0], 5)
        bar7()
    Lw1 = a.newlab('Lw1')
    a.e(f's_cmp_ge_u32 s{sG}, 20')
    a.e(f's_cbranch_scc1 {Lw1}')
    st = a.save()
    for t in range(2):
        a.e('v_bfe_u32 v5, v1, 2, 2')
        a.e('v_lshl_add_u32 v5, v9, 3, v5')
        a.e('v_mul_u32_u24 v5, 224, v5')
        a.e('v_and_b32 v0, 3, v1')
        a.e('v_lshl_add_u32 v5, v0, 3, v5')
        a.e(f'v_add_u32 v5, {WP1 + t * 7168}, v5')
        a.e(f's_mov_b32 s60, {7 * t}')
        a.wait(vm=('wsh1', t))
        for u in range(7):
            for rd in range(2):
                a.lds(f'ds_read_b64_tr_b16 {vr(16 + 4 * u + 2 * rd, 2)}, v5 offset:{rd * 4 * 224 + u * 32}', ('pf', u))
        a.e('s_lshl_b32 s6, s100, 1')
        a.e('s_add_u32 s60, s60, s6')
        a.e('s_mul_i32 s6, s60, 20')
        a.e(f's_add_u32 s6, s6, s{sG}')
        a.e('s_lshl_b32 s6, s6, 10')
        a.e(f's_mov_b32 s98, s{sC}' if t else 's_mov_b32 s98, 0')
        a.e('s_mov_b32 s99, 0x3f803f80')
        for u in range(7):
            a.wait(lg=('pf', u))
            a.e(f's_add_u32 s7, s6, {W1F + u * 20480}')
            if u >= 5:
                a.e('s_cmp_ge_u32 s98, 6')
                a.e(f's_cselect_b32 s7, 0x{OOB:x}, s7')
            a.vmem(f'buffer_store_dwordx4 {vr(16 + 4 * u, 4)}, v2, {sr(sWS, 4)}, s7 offen sc1', 'w1o')
            a.e(f'v_mov_b32 v{48 + u}, 0')
        a.e('v_mov_b32 v55, 0')
        for d in range(4):
            for u in range(7):
                a.e(f'v_dot2_f32_bf16 v{48 + u}, v{16 + 4 * u + d}, s99, v{48 + u}')
        a.e('s_nop 3')
        for u in range(0, 8, 2):
            a.e(f'v_permlane16_swap_b32 v{48 + u}, v{49 + u}')
        for u in range(0, 8, 2):
            a.e(f'v_add_f32 v{48 + u}, v{48 + u}, v{49 + u}')
        for u in (0, 4):
            a.e(f'v_permlane32_swap_b32 v{48 + u}, v{50 + u}')
        for u in (0, 4):
            a.e(f'v_add_f32 v{48 + u}, v{48 + u}, v{50 + u}')
        a.e(f's_mul_i32 s6, s{sG}, 6912')
        a.e('s_lshl_b32 s7, s60, 6')
        a.e('s_add_u32 s6, s6, s7')
        a.e(f's_add_u32 s6, s6, 0x{CSP:x}')
        a.e('v_lshlrev_b32 v5, 2, v1')
        a.vmem(f'buffer_store_dword v48, v5, {sr(sWS, 4)}, s6 offen sc1', 'w1o')
        a.e('s_cmp_ge_u32 s98, 6')
        a.e('s_cselect_b32 exec_lo, 0xffff, -1')
        a.e('s_cselect_b32 exec_hi, 0, 0xffff')
        a.vmem(f'buffer_store_dword v52, v5, {sr(sWS, 4)}, s6 offen offset:256 sc1', 'w1o')
        a.e('s_mov_b64 exec, -1')
    a.restore(st)
    a.label(Lw1)
    bar7()
    a.e('s_waitcnt vmcnt(0)')
    setflag(a, PH_V[0], 5)
    a.label(Lj0)
    a.e('s_nop 1')
    a.restore(stC)
    v_out_addr(a)
    if EW:
        a.e(f's_lshl_b32 s67, s{sC}, 10')
        a.e('s_add_u32 s67, s67, 896')
        pW = (253, 67, PH_V[0], 32, 13)
    a.wait(lg='all')
    a.e('s_barrier')
    a.stamp('p0vt')
    v_out(a, 0, VT0, 64)
    a.stamp('vo0')


    LSC = ' sc1'

    def xstore(text, tag, local):
        if not local:
            a.vmem(text + ' sc1', tag)
            return
        L, Lj = a.newlab('Lst'), a.newlab('Lsj')
        a.e('s_cmp_eq_u32 s26, 0')
        a.e(f's_cbranch_scc1 {L}')
        a.e(text + ' sc1')
        a.e(f's_branch {Lj}')
        a.label(L)
        a.vmem(text, tag)
        a.label(Lj)
        a.e('s_nop 1')

    def warm(vd, sbase, add, n, step=8192, lanes=None):
        a.e('v_lshlrev_b32 v0, 7, v1')
        for k in range(n):
            a.e(f's_add_u32 s64, s{sbase}, 0x{add + k * step:x}')
            a.vmem(f'buffer_load_dword v{vd}, v0, {sr(sWS, 4)}, s64 offen sc1', 'warm')

    LP = OPT.get('lp', 8)
    if LP:
        X1B[1] = X1B[0]
        HB[1] = HB[0]

    def w1load(n):
        a.e(f's_add_u32 s64, s{sW1B}, {n * 1024}')
        a.vmem(f'buffer_load_dwordx4 {vr(RING[n % NR], 4)}, v2, {sr(sWS, 4)}, s64 offen sc1', ('w1', n))

    def stash(n):
        a.e(f's_add_u32 m0, s69, {(n % NST) * 1024}')
        a.e(f's_add_u32 s64, s{sW1B}, {20480 + n * 1024}')
        a.vmem(f'buffer_load_dwordx4 v2, {sr(sWS, 4)}, s64 offen sc1 lds', ('ws', n))

    def w2load(f):
        if f % 5 == 4:
            a.e(f's_add_u32 s64, s{sWO + f // 5}, 4096')
            a.vmem(f'buffer_load_dwordx4 {vr(w2reg(f), 4)}, v2, {sr(sWS, 4)}, s64 offen sc1', ('w2', f))
        else:
            a.vmem(f'buffer_load_dwordx4 {vr(w2reg(f), 4)}, v2, {sr(sWS, 4)}, s{sWO + f // 5} offen offset:{(f % 5) * 1024} sc1', ('w2', f))

    def dest_row(vd):
        a.e(f's_lshl_b32 s6, s{sRHO}, 5')
        a.e(f'v_add_u32 v{vd}, s6, v10')
        a.e(f'v_sub_u32 v11, 63, v{vd}')
        a.e('v_sub_u32 v12, 32, v10')
        a.e('v_and_b32 v12, 31, v12')
        a.e('v_sub_u32 v13, 63, v10')
        a.e(f's_cmp_eq_u32 s{sRHO}, 0')
        a.e('s_cselect_b64 vcc, -1, 0')
        a.e('v_cndmask_b32 v12, v13, v12, vcc')
        a.e(f's_cmp_eq_u32 s{sG}, 0')
        a.e('s_cselect_b64 vcc, -1, 0')
        a.e('v_cndmask_b32 v11, v11, v12, vcc')
        a.e(f's_cmp_eq_u32 s{sKT}, 1')
        a.e('s_cselect_b64 vcc, -1, 0')
        a.e(f'v_cndmask_b32 v{vd}, v{vd}, v11, vcc')

    def w1_touch(vd, t0, t1):
        a.e('v_min_u32 v0, 23, v10')
        a.e('v_lshlrev_b32 v0, 7, v0')
        a.e('s_movk_i32 s7, 20480')
        a.e('v_mad_u32_u24 v0, v4, s7, v0')
        a.e('s_and_b32 s6, s101, 3')
        a.e('s_mul_i32 s6, s6, 3072')
        a.e('s_mul_i32 s7, s100, 40960')
        a.e('s_add_u32 s6, s6, s7')
        for t in range(t0, t1):
            a.e(f's_add_u32 s7, s6, {W1F + 8192 + t * 40960}')
            a.vmem(f'buffer_load_dword v{vd}, v0, {sr(sWS, 4)}, s7 offen sc1', 'touch')

    def stage_all():
        a.e('v_mul_u32_u24 v0, 40960, v4')
        a.e('v_lshl_add_u32 v0, v10, 4, v0')
        a.e(f's_mul_i32 s6, s{sC}, 2560')
        a.e(f's_add_u32 s62, s{sGCM}, 0x{X2B:x}')
        for p in range(12):
            if p < 5:
                a.e(f's_add_u32 s64, s6, {p * 512}')
            elif p < 11:
                a.e(f's_sub_u32 s64, {(70 + p) * 512}, s6')
                if p == 10:
                    a.e(f's_cmp_eq_u32 s{sC}, 0')
                    a.e('s_cselect_b32 s64, 0, s64')
            else:
                a.e(f's_movk_i32 s64, {40 * 512}')
            a.e('s_add_u32 s64, s64, s62')
            a.e(f's_mov_b32 m0, {XRL1 + p * 1024}')
            a.vmem(f'buffer_load_dwordx4 v0, {sr(sWS, 4)}, s64 offen sc1 lds', 'xrd')

    Y0, Y1, VF0, VF1, ID2, XR2, XM2, XE2, PK2 = 32, 48, 64, 80, 64, 72, 96, 108, 96

    def a2_pre_a():
        dest_row(5)
        a.e('v_bfe_u32 v11, v1, 2, 1')
        a.e('v_and_b32 v12, 1, v1')
        a.e('v_lshlrev_b32 v12, 4, v12')
        a.e('v_mov_b32 v13, 0x3f80')
        a.e('v_lshlrev_b32 v12, v12, v13')
        a.e('v_cmp_eq_u32 vcc, v11, v4')
        a.e('v_cndmask_b32 v12, 0, v12, vcc')
        a.e('v_bfe_u32 v13, v1, 1, 1')
        a.e('v_bfe_u32 v11, v1, 3, 2')
        a.e('v_lshl_add_u32 v13, v11, 1, v13')
        for r in range(8):
            a.e(f'v_cmp_eq_u32 vcc, {r}, v13')
            a.e(f'v_cndmask_b32 v{84 + r}, 0, v12, vcc')

    def a2_pre_b(l, pollf):
        xb, A, shB = ((XRL0, 192, 4), (XRL1, 16, 10))[l]
        ID2 = 84
        a.e(f'v_mul_u32_u24 v6, {A}, v5')
        a.e(f'v_add_u32 v6, {xb}, v6')
        a.e(f's_cmp_eq_u32 s{sKT}, 1')
        a.e('s_cselect_b64 s[76:77], -1, 0')
        a.e(f's_cmp_eq_u32 s{sC}, 0')
        a.e('s_cselect_b32 s7, 11, 0')
        for h in range(3):
            if h < 2:
                a.e(f'v_add_u32 v11, {2 * h}, v4')
            else:
                a.e('v_mov_b32 v11, 4')
            a.e('v_sub_u32 v12, 9, v11')
            a.e('v_cndmask_b32 v12, v11, v12, s[76:77]')
            a.e(f'v_lshl_add_u32 v12, v12, {shB}, v6')
            a.lds(f'ds_read_b128 {vr(XM2 + 4 * h, 4)}, v12', 'xr')
            if h == 0:
                a.e('v_mov_b32 v13, s7')
                a.e('v_cmp_eq_u32 vcc, 0, v11')
                a.e('v_cndmask_b32 v13, v11, v13, vcc')
            a.e('v_sub_u32 v12, 10, v11')
            a.e(f'v_cndmask_b32 v12, v{13 if h == 0 else 11}, v12, s[76:77]')
            a.e(f'v_lshl_add_u32 v12, v12, {shB}, v6')
            a.lds(f'ds_read_u16 v{XE2 + h}, v12', 'xr')
        a.e(f's_lshl_b32 s6, s{sRHO}, 12')
        a.e(f's_add_u32 s6, s6, {TWL1}')
        a.e('v_add_u32 v11, s6, v2')
        for ks in range(4):
            a.lds(f'ds_read_b128 {vr(TW + 4 * ks, 4)}, v11 offset:{ks * 1024}', 'tw')
        a.e(f's_lshl_b32 s6, s{sC}, 2')
        a.e(f's_lshl_b32 s7, s{sKT}, 5')
        a.e('s_add_u32 s6, s6, s7')
        a.e(f's_lshl_b32 s7, s{sC}, 1')
        a.e(f's_add_u32 s7, s7, s{sKT}')
        a.e('s_add_u32 s7, s7, 64')
        a.e('s_sub_u32 s70, s7, s6')
        a.e('s_lshl_b32 s70, s70, 10')
        a.e('s_lshl_b32 s6, s6, 10')
        a.e('v_lshlrev_b32 v5, 4, v5')
        a.e('v_lshl_add_u32 v5, v4, 10, v5')
        a.e('v_add_u32 v5, s6, v5')
        a.e('s_cmp_eq_u32 s6, 32768')
        a.e('s_cselect_b32 s6, 0xffff, 0')
        a.e('v_mov_b32 v12, s6')
        a.e('v_cmp_eq_u32 vcc, 0, v4')
        a.e('v_cndmask_b32 v12, 0, v12, vcc')
        a.wait(lg='xr')
        Lr, Lj = a.newlab('Lxr'), a.newlab('Lxj')
        a.e('v_mov_b32 v11, 0xffff')
        a.e(f's_cmp_eq_u32 s{sKT}, 1')
        a.e(f's_cbranch_scc1 {Lr}')
        for k in range(3):
            m, o = XM2 + 4 * k, XR2 + 4 * k
            a.e(f'v_bfi_b32 v{o}, v11, v{XE2 + k}, v{m}')
            for d in range(1, 4):
                a.e(f'v_mov_b32 v{o + d}, v{m + d}')
        a.e(f's_branch {Lj}')
        a.label(Lr)
        for k in range(3):
            m, o = XM2 + 4 * k, XR2 + 4 * k
            a.e(f'v_bfi_b32 v{o}, v11, v{XE2 + k}, v{m + 3}')
            a.e(f'v_bfi_b32 v{o + 1}, v11, v{m + 3}, v{m + 2}')
            a.e(f'v_bfi_b32 v{o + 2}, v11, v{m + 2}, v{m + 1}')
            a.e(f'v_bfi_b32 v{o + 3}, v11, v{m + 1}, v{m}')
        a.label(Lj)
        pollf()
        a.e(f'v_mfma_f32_32x32x16_bf16 {vr(Y0, 16)}, {vr(ID2, 4)}, {vr(XR2, 4)}, 0')
        a.e(f'v_mfma_f32_32x32x16_bf16 {vr(Y1, 16)}, {vr(ID2, 4)}, {vr(XR2 + 8, 4)}, 0')
        a.e(f'v_mfma_f32_32x32x16_bf16 {vr(Y0, 16)}, {vr(ID2 + 4, 4)}, {vr(XR2 + 4, 4)}, {vr(Y0, 16)}')
        a.e('v_bfe_u32 v13, v1, 2, 2')
        a.e('v_mul_u32_u24 v13, 192, v13')
        a.e('s_movk_i32 s7, 3072')
        a.e('v_mad_u32_u24 v13, v4, s7, v13')
        a.e('v_bfe_u32 v11, v1, 1, 1')
        a.e('v_lshl_add_u32 v13, v11, 3, v13')
        a.e(f's_mul_i32 s6, s{sRHO}, 1536')
        a.e('s_add_u32 s6, s6, s58')
        a.e('v_add_u32 v111, s6, v13')
        a.e('v_bfe_u32 v11, v1, 4, 1')
        a.e('v_lshlrev_b32 v11, 1, v11')
        a.e('v_and_b32 v0, 1, v1')
        a.e('v_add_u32 v11, v11, v0')
        a.e('v_lshl_add_u32 v13, v11, 4, v111')
        a.e(f'v_mov_b32 v11, v{XR2}')
        a.e(f's_sub_u32 s6, s{sTAU1}, s{sG}')
        a.e('s_mul_i32 s6, s6, 49152')
        a.e('s_sub_u32 s71, s6, 1536')
        a.e('v_mul_lo_u32 v112, v4, s71')
        a.e('v_add_u32 v112, v112, v2')
        a.wait(lg='tw')

    def ids_issue():
        a.e('v_and_b32 v114, 7, v1')
        a.e(f'v_mov_b32 v115, s{sG}')
        a.e(f'v_mov_b32 v0, s{sPG}')
        a.e('v_cmp_gt_u32 vcc, 8, v8')
        a.e('v_cndmask_b32 v115, v0, v115, vcc')
        a.e('v_lshl_add_u32 v114, v115, 3, v114')
        a.e('v_lshlrev_b32 v114, 10, v114')
        a.e(f's_mov_b32 s60, 0x{FLG:x}')
        a.vmem(f'buffer_load_dwordx2 v[114:115], v114, {sr(sWS, 4)}, s60 offen sc1', 'ids')

    def ids_check():
        L, Ld = a.newlab('Lidp'), a.newlab('Lidd')
        a.e(f's_add_u32 s59, s{sNON}, {PH_V[0]}')
        a.wait(vm='ids')
        a.e('s_mov_b32 s61, 0')
        a.label(L)
        a.e('v_subrev_u32 v114, s59, v114')
        a.e('v_cmp_le_u32 vcc, 16, v114')
        a.e(f's_cbranch_vccz {Ld}')
        st = a.save()
        ids_issue()
        a.restore(st)
        a.e('s_waitcnt vmcnt(0)')
        a.e('s_add_u32 s61, s61, 1')
        a.e(f's_cmp_lt_u32 s61, {SPIN}')
        a.e(f's_cbranch_scc1 {L}')
        a.e('v_mov_b32 v115, -1')
        a.label(Ld)
        a.e(f'v_cmp_ne_u32 vcc, s{sXCC}, v115')
        a.e('s_or_b32 s26, vcc_lo, vcc_hi')
        a.e(f's_cselect_b32 s6, 0, 0x{LOC:x}')
        a.e(f's_add_u32 s{sFSRC}, s{sFSRC}, s6')
        a.e(f's_add_u32 s{sFPAR}, s{sFPAR}, s6')

    def cs_loads(CP):
        a.e(f's_lshl_b32 s6, s{sU1}, 6')
        a.e('v_lshl_add_u32 v7, v10, 2, s6')
        a.e('s_movk_i32 s7, 6912')
        a.e('v_mad_u32_u24 v7, v4, s7, v7')
        for n in range(10):
            a.e(f's_mov_b32 s7, 0x{CSP + n * 2 * 6912:x}')
            a.vmem(f'buffer_load_dword v{CP + n}, v7, {sr(sWS, 4)}, s7 offen sc1', 'cs')

    def cs_put(l, CP):
        if l == 0:
            a.wait(vm='cs')
            for n in range(1, 10):
                a.e(f'v_add_f32 v{CP}, v{CP}, v{CP + n}')
            a.e(f'v_mov_b32 v15, v{CP}')
            a.e(f'v_permlane32_swap_b32 v{CP}, v15')
            a.e(f'v_add_f32 v15, v{CP}, v15')
        a.e(f's_lshl_b32 s6, s{sWAVE}, 7')
        a.e('v_lshl_add_u32 v7, v10, 2, s6')
        a.lds(f'ds_write_b32 v7, v15 offset:{CSS}', 'csw')

    def publish_v(l):
        a.e('v_lshlrev_b32 v7, 3, v1')
        a.e('v_mov_b32 v76, 0')
        a.e('v_mov_b32 v77, 0')
        a.lds(f'ds_write_b64 v7, v[76:77] offset:{STATS + 256}', 'clr')
        L = a.newlab('Lpa')
        a.e(f's_cmp_lt_u32 s{sWAVE}, 4')
        a.e(f's_cbranch_scc1 {L}')
        a2_pre_a()
        a.label(L)
        a.wait(vm='vo', lg='all')
        a.e('s_barrier')
        a.stamp(f'PV{l}')
        setflag_w0(a, PH_V[l], 7)

    def reduce_addr(l, second):
        a.e(f's_add_u32 s6, s{sWAVE}, {8 if second else 0}')
        a.e('s_cmp_ge_u32 s6, 5')
        a.e('s_cselect_b32 s7, 5, 0')
        a.e(f's_cselect_b32 s62, 0, {R1}')
        if l == 0:
            a.e('s_cselect_b32 s65, 40960, 0')
        else:
            a.e(f's_cselect_b32 s65, s{sTAU1}, s{sG}')
        a.e('s_sub_u32 s6, s6, s7')
        a.e('s_lshl_b32 s7, s6, 10')
        a.e('s_add_u32 s62, s62, s7')
        a.e('v_lshrrev_b32 v11, 4, v10')
        a.e('v_mul_u32_u24 v11, 5120, v11')
        a.e('v_lshl_add_u32 v11, v4, 9, v11')
        a.e('v_lshl_add_u32 v11, v8, 4, v11')
        a.e('v_add_u32 v11, s62, v11')
        a.e(f'v_add_u32 v13, {5 * PRV}, v11')
        a.e('s_lshl_b32 s6, s6, 1')
        a.e(f's_mul_i32 s7, s{sC}, 10')
        a.e('s_add_u32 s6, s6, s7')
        a.e('v_add_u32 v7, s6, v4')
        if l == 0:
            a.e('v_lshlrev_b32 v7, 9, v7')
            a.e('v_lshl_add_u32 v7, v10, 4, v7')
            a.e(f's_add_u32 s65, s65, s{sGCM}')
            a.e(f's_add_u32 s65, s65, 0x{X2B:x}')
        else:
            a.e('v_lshlrev_b32 v7, 4, v7')
            a.e(f's_mov_b32 s7, {64 * 1280}')
            a.e('v_mad_u32_u24 v7, v10, s7, v7')
            a.e('s_mulk_i32 s65, 1280')

    def reduce_item(l):
        SUM, RB = 56, 64
        for h in range(2):
            a.lds(f'ds_read_b128 {vr(SUM + 4 * h, 4)}, v11 offset:{h * 256}', ('p', 0))
        for p in range(1, 7):
            for h in range(2):
                b, o = (11, p * PRV) if p < 5 else (13, (p - 5) * PRV)
                a.lds(f'ds_read_b128 {vr(RB + 8 * (p - 1) + 4 * h, 4)}, v{b} offset:{o + h * 256}', ('p', p))
        for p in range(1, 8):
            a.wait(lg=('p', p))
            for r in range(0, 8, 2):
                a.e(f'v_pk_add_f32 {vr(SUM + r, 2)}, {vr(SUM + r, 2)}, {vr(RB + 8 * ((p - 1) % 6) + r, 2)}')
            if p == 1:
                for h in range(2):
                    a.lds(f'ds_read_b128 {vr(RB + 4 * h, 4)}, v13 offset:{2 * PRV + h * 256}', ('p', 7))
        for r in range(4):
            a.e(f'v_cvt_pk_bf16_f32 v{SUM + r}, v{SUM + 2 * r}, v{SUM + 2 * r + 1}')
        if l == 0:
            a.vmem(f'buffer_store_dwordx4 {vr(SUM, 4)}, v7, {sr(sWS, 4)}, s65 offen sc1', 'xst')
        else:
            a.vmem(f'buffer_store_dwordx4 {vr(SUM, 4)}, v7, {sr(sOUT, 4)}, s65 offen{("", " sc1", " nt", " sc0 sc1")[OPT.get("osc", 0)]}', 'xst')

    def lin(n, sl, lds_add, ssrc, src_add, tag):
        for k in range(n):
            if k % 4 == 0:
                a.e(f's_add_u32 m0, s{sl}, {lds_add + k * 1024}')
                a.e(f's_add_u32 s64, s{ssrc}, 0x{src_add + k * 1024:x}')
            a.vmem(f'buffer_load_dwordx4 v2, {sr(sWS, 4)}, s64 offen offset:{(k % 4) * 1024} sc1 lds', tag)

    def cnt_add(addr, vt):
        a.e(f'v_mov_b32 v{vt}, {addr}')
        a.e('v_mov_b32 v0, 1')
        a.e('s_mov_b64 exec, 1')
        a.lds(f'ds_add_u32 v{vt}, v0', 'cnt')
        a.e('s_mov_b64 exec, -1')

    def cnt_peek(addr, vt):
        a.e(f'v_mov_b32 v{vt}, {addr}')
        a.lds(f'ds_read_b32 v{vt}, v{vt}', 'peek')

    def cnt_wait(addr, vt, peeked=False, target=8):
        L, Ld = a.newlab('Lcw'), a.newlab('Lcd')
        if peeked:
            a.wait(lg='peek')
            a.e(f'v_cmp_gt_u32 vcc, {target}, v{vt}')
            a.e(f's_cbranch_vccz {Ld}')
            st = a.save()
        a.e('s_mov_b32 s61, 0')
        a.label(L)
        a.e(f'v_mov_b32 v{vt}, {addr}')
        a.e(f'ds_read_b32 v{vt}, v{vt}')
        a.e('s_waitcnt lgkmcnt(0)')
        a.lg.clear()
        a.e(f'v_cmp_gt_u32 vcc, {target}, v{vt}')
        a.e(f's_cbranch_vccz {Ld}')
        a.e('s_sleep 1')
        a.e('s_add_u32 s61, s61, 1')
        a.e(f's_cmp_lt_u32 s61, {SPIN}')
        a.e(f's_cbranch_scc1 {L}')
        a.label(Ld)
        if peeked:
            a.restore(st)

    GO, DONE = STATS + 528, STATS + 544

    def sig_set(base, vt):
        a.e(f'v_mov_b32 v{vt}, s56')
        a.lds(f'ds_write_b32 v{vt}, v{vt} offset:{base - 4}', 'sig')

    def sig_wait(base, vt, slp):
        L, Ld = a.newlab('Lgw'), a.newlab('Lgd')
        a.e('s_mov_b32 s61, 0')
        a.label(L)
        a.e(f'v_mov_b32 v{vt}, s56')
        a.e(f'ds_read_b32 v{vt}, v{vt} offset:{base - 4}')
        a.e('s_waitcnt lgkmcnt(0)')
        a.lg.clear()
        a.e(f'v_cmp_eq_u32 vcc, 0, v{vt}')
        a.e(f's_cbranch_vccz {Ld}')
        a.e(f's_sleep {slp}')
        a.e('s_add_u32 s61, s61, 1')
        a.e(f's_cmp_lt_u32 s61, {SPIN}')
        a.e(f's_cbranch_scc1 {L}')
        a.label(Ld)

    a.e(f's_mul_i32 s98, s{sWAVE}, 14')
    for i in range(8):
        a.e(f's_add_u32 s6, s{sWAVE}, {min(7 * i, 48)}')
        if i < 6:
            a.e(f's_sub_u32 s7, s98, {52 - (0, 1, 2, 7, 8, 9)[i]}')
            a.e(f's_cmp_ge_u32 s{sWAVE}, 4')
            a.e('s_cselect_b32 s6, s7, s6')
            a.e(f's_cmp_eq_u32 s{sWAVE}, 7')
            a.e(f's_cselect_b32 s6, {(46, 47, 52, 53, 0x40000, 0x40000)[i]}, s6')
        a.e('s_lshl_b32 s7, s6, 12')
        a.e(f's_add_u32 s{sHO + i}, s7, s{sHG}')
        a.e('s_mulk_i32 s6, 5120')
        a.e(f's_add_u32 s{sWO + i}, s6, s{sW2O}')
    bg = BG()
    a.e(f's_mul_i32 s68, s{sWAVE}, 5120')
    a.e(f's_mul_i32 s69, s{sWAVE}, {PRV}')
    a.e(f's_cmp_lt_u32 s{sC}, 4')
    a.e('s_cselect_b32 s58, 16384, 0')
    a.e(f's_add_u32 s58, s58, {R1 + 32768}')
    publish_v(0)

    for l in range(2):
        wq = []
        for n in range(NR):
            wq.append(lambda n=n: w1load(n))
            if n < NST:
                wq.append(lambda n=n: stash(n))
        need2 = list(range(30)) if l == 0 else []
        LS, Lid, Lg2, Ljoin, Lctl, Llate = (a.newlab(x) for x in ('LS', 'Lid', 'Lg2', 'Ljoin', 'Lctl', 'Llate'))
        a.vm.clear()
        stP = a.save()
        PS = OPT.get('ps', 1)
        NE2 = OPT.get('ne2', 18)

        def img():
            a.e(f'v_add_u32 v5, {R1}, v3')
            a.e(f'v_add_u32 v6, {R1 + 40960}, v3')

        def stream_part():
            if l == 0:
                poll(a, *pW)
                a.stamp('pollW')
            DEP = OPT.get('dep', 8)
            if LP & 1 and l == 1:
                Lw = a.newlab('Lw')
                a.e(f's_cmp_lg_u32 s{sWAVE}, 3')
                a.e(f's_cbranch_scc1 {Lw}')
                a.e(f's_mul_i32 s6, s{sC}, 10240')
                a.e(f's_add_u32 s65, s6, s{sGCM}')
                st = a.save()
                warm(48, 65, X1B[1], 2, 2048)
                a.restore(st)
                a.label(Lw)
            a.e(f's_add_u32 s6, s{sWAVE}, 4')
            a.e(f's_add_u32 s66, s{sW1B}, {8 * 20480}')
            a.e(f's_cmp_ge_u32 s6, s{sU2}')
            a.e(f's_cselect_b32 s66, 0x{OOB:x}, s66')

            def stash_p(n):
                a.e(f's_add_u32 m0, s69, {4 * PRV + n * 1024}')
                a.e(f's_add_u32 s64, s66, {20480 + n * 1024}')
                a.vmem(f'buffer_load_dwordx4 v2, {sr(sWS, 4)}, s64 offen sc1 lds', 'wp')
            pq = [lambda n=n: stash_p(n) for n in range(NST)] if PS else []
            for k, f in enumerate(wq + pq + [lambda f=f: w2load(f) for f in need2[:NE2]]):
                f()
                if k >= DEP:
                    a.e(f's_waitcnt vmcnt({DEP})')
                    del a.vm[:len(a.vm) - DEP]
            if l == 0:
                cs_loads(16)
                a.e('v_mov_b32 v112, v2') if False else None
            a.stamp(f'strm{l}')

        def control_part():
            a.e(f's_and_b32 s63, s{sWAVE}, 3')
            a.e('s_lshl_b32 s67, s63, 16')
            a.e(f's_lshl_b32 s6, s{sC}, 10')
            a.e('s_add_u32 s67, s67, s6')
            pV = (7, 67, PH_V[l], 8, 13)
            a2_pre_b(l, lambda: poll_issue(a, *pV))
            a.stamp('a2pre')
            a.e(f's_lshl_b32 s6, s{sG}, 3')
            a.e(f's_add_u32 s6, s6, s{sC}')
            a.e('s_mulk_i32 s6, 6144')
            a.e('s_mul_i32 s7, s63, 1536')
            a.e('s_add_u32 s66, s6, s7')
            a.e(f's_add_u32 s66, s66, 0x{VB[l]:x}')
            a.e('s_add_u32 s65, s66, s71')
            a.e('s_mul_i32 s7, s63, 3072')
            a.e('s_add_u32 m0, s7, s58')
            poll_check(a, *pV)
            a.stamp(f'pollV{l}')
            a.vmem(f'buffer_load_dwordx4 v2, {sr(sWS, 4)}, s66 offen sc1 lds', 'v')
            a.vmem(f'buffer_load_dwordx4 v112, {sr(sWS, 4)}, s66 offen offset:1024 sc1 lds', 'v')
            a.vmem(f'buffer_load_dwordx4 v2, {sr(sWS, 4)}, s65 offen offset:2048 sc1 lds', 'v')
            if l == 0:
                ids_issue()
            a.wait(vm='v')
            cnt_add(CNTV, 7)
            cnt_wait(CNTV, 7, target=4)
            a.stamp(f'V{l}')
            for ks in range(4):
                for t, (vf, ad, ex) in enumerate(((VF0, 13, 0), (VF1, 111, 64))):
                    for rd in range(2):
                        a.lds(f'ds_read_b64_tr_b16 {vr(vf + 4 * ks + 2 * rd, 2)}, v{ad} offset:{(ks % 2) * 6144 + rd * 768 + (ks // 2) * 80 + ex}', ('vf', ks, t))
            a.e(f's_add_u32 s63, s{sGCM}, 0x{X1B[l]:x}')
            a.e('s_add_u32 s71, s63, s70')
            for ks in range(4):
                for t, (y, vf) in enumerate(((Y0, VF0), (Y1, VF1))):
                    a.wait(lg=('vf', ks, t))
                    a.e(f'v_mfma_f32_32x32x16_bf16 {vr(y, 16)}, {vr(vf + 4 * ks, 4)}, {vr(TW + 4 * ks, 4)}, {vr(y, 16)}')
            for r in range(8):
                a.e(f'v_cvt_pk_bf16_f32 v{PK2 + r}, v{Y0 + 2 * r}, v{Y0 + 2 * r + 1}')
            a.e(f'v_bfi_b32 v{PK2}, v12, v11, v{PK2}')
            xstore(f'buffer_store_dwordx4 {vr(PK2 + 4, 4)}, v5, {sr(sWS, 4)}, s63 offen offset:2048', 'x1s', LP & 1 and l == 1)
            xstore(f'buffer_store_dwordx4 {vr(PK2, 4)}, v5, {sr(sWS, 4)}, s63 offen', 'x1s', LP & 1 and l == 1)
            for r in range(4):
                a.e(f'v_cvt_pk_bf16_f32 v{PK2 + 8 + r}, v{Y1 + 2 * r}, v{Y1 + 2 * r + 1}')
            a.e('s_mov_b32 exec_hi, 0')
            xstore(f'buffer_store_dwordx4 {vr(PK2 + 8, 4)}, v5, {sr(sWS, 4)}, s71 offen', 'x1s', LP & 1 and l == 1)
            a.e('s_mov_b32 exec_hi, -1')
            a.stamp(f'x1st{l}')
            a.e('s_mov_b32 s7, 0x3f803f80')
            for r in range(4):
                a.e(f'v_mov_b32 v{16 + r}, 0')
            for r in range(8):
                a.e(f'v_dot2_f32_bf16 v16, v{PK2 + r}, s7, v16')
                a.e(f'v_dot2_f32_bf16 v17, v{PK2 + r}, v{PK2 + r}, v17')
            a.e('s_mov_b32 exec_hi, 0')
            for r in range(8, 12):
                a.e(f'v_dot2_f32_bf16 v16, v{PK2 + r}, s7, v16')
                a.e(f'v_dot2_f32_bf16 v17, v{PK2 + r}, v{PK2 + r}, v17')
            a.e('s_mov_b32 exec_hi, -1')
            a.e('v_bfe_u32 v7, v5, 4, 6')
            a.e('v_lshlrev_b32 v7, 3, v7')
            a.e(f's_lshl_b32 s6, s{sKT}, 9')
            a.e('v_add_u32 v7, s6, v7')
            a.e('v_mov_b32 v18, v16')
            a.e('v_mov_b32 v19, v17')
            a.e('v_permlane32_swap_b32 v16, v18')
            a.e('v_permlane32_swap_b32 v17, v19')
            a.e('v_add_f32 v16, v16, v18')
            a.e('v_add_f32 v17, v17, v19')
            a.lds(f'ds_write_b64 v7, v[16:17] offset:{PSUM}', 'x1w')
            if l == 0:
                ids_check()
            a.wait(vm='x1s')
            cnt_add(CNTX, 7)
            cnt_wait(CNTX, 7, target=4)
            a.stamp(f'X1s{l}')
            setflag_w0(a, PH_X1[l], 7, 4)
            a.e(f's_lshl_b32 s65, s{sG}, 12')
            a.e(f's_add_u32 s65, s65, 0x{STG + l * 0x20000:x}')
            Ls1 = a.newlab('Ls1')
            a.e(f's_cmp_lg_u32 s{sWAVE}, 7')
            a.e(f's_cbranch_scc1 {Ls1}')
            a.e('v_lshlrev_b32 v7, 3, v1')
            for k in range(2):
                a.e(f'ds_read_b64 {vr(16 + 2 * k, 2)}, v7 offset:{PSUM + k * 512}')
            a.e(f's_lshl_b32 s6, s{sC}, 9')
            a.e('s_add_u32 s6, s6, s65')
            a.e('s_waitcnt lgkmcnt(0)')
            a.e('v_add_f32 v16, v16, v18')
            a.e('v_add_f32 v17, v17, v19')
            a.e(f'buffer_store_dwordx2 v[16:17], v7, {sr(sWS, 4)}, s6 offen sc1')
            a.label(Ls1)
            a.e(f's_lshl_b32 s7, s{sWAVE}, 11')
            flagbase('s_add_u32 s67, s67, s7')
            pX = (7, 67, PH_X1[l], 2, 10)
            a.e('s_sub_u32 s67, s67, 7680')
            poll_issue(a, *pX)
            a.e(f's_and_b32 s6, s{sWAVE}, 3')
            a.e('s_lshl_b32 s56, s6, 13')
            a.e('s_lshl_b32 s57, s6, 12')
            a.e('s_add_u32 s66, s63, s56')
            a.e('s_add_u32 s70, s63, s57')
            poll_check(a, *pX)
            a.stamp(f'pollX1{l}')
            lin(8, 56, R1, 66, 0, ('x1', 0))
            lin(8, 56, R1 + 32768, 66, 32768, ('x1', 1))
            lin(4, 57, R1 + 65536, 70, 65536, ('x1', 1))
            img()
            a.wait(vm=('x1', 0))

        def flagbase(add):
            a.e(f's_lshl_b32 s67, s{sG}, 13')
            a.e('s_cmp_eq_u32 s26, 0')
            a.e(f's_cselect_b32 s6, 0x{LOC:x}, 0')
            a.e('s_add_u32 s67, s67, s6')
            a.e(add)

        def xaddr(ks, rt):
            return (5, ks * 4096 + rt * 256) if ks < 10 else (6, (ks - 10) * 4096 + rt * 256)

        def xreads(n, nst=2):
            out = []
            for rt in range(4):
                b, o = xaddr(n, rt)
                out.append(lambda rt=rt, b=b, o=o: a.lds(f'ds_read_b128 {vr(XF + 16 * (n % nst) + 4 * rt, 4)}, v{b} offset:{o}', ('xf', n)))
            return out

        EP = XF

        def epi_reads():
            a.e('v_lshlrev_b32 v7, 2, v8')
            for rt in range(4):
                a.lds(f'ds_read_b32 v{EP + 12 + rt}, v7 offset:{STATS + 256 + rt * 64}', 'st')
            for rt in range(4):
                a.lds(f'ds_read_b32 v{EP + 8 + rt}, v7 offset:{STATS + rt * 64}', 'st')

        def usread(n):
            a.lds(f'ds_read_b128 {vr(JIT[n % 2], 4)}, v13 offset:{(n % NST) * 1024}', ('us', n))

        def gemm(late, q, qlow=False):
            pw1, pws = [NR], [NST]
            a.e('v_add_u32 v13, s69, v2')
            for f in xreads(0):
                f()
            a.wait(vm=('ws', 0))
            usread(0)
            a.e(f's_add_u32 s56, s{sW1B}, {12 * 1024}')
            a.e(f's_add_u32 s57, s{sW1B}, {16 * 1024}')
            grp = [None]

            def ring1(k):
                a.vmem(f'buffer_load_dwordx4 {vr(RING[k % NR], 4)}, v2, {sr(sWS, 4)}, s{56 + (k - 12) // 4} offen offset:{(k % 4) * 1024} sc1', ('w1', k))

            def stash1(k):
                k0 = 9 + (k - 9) // 4 * 4 if k < 18 else 18
                if grp[0] != k0:
                    a.e(f's_add_u32 m0, s69, {(k0 % NST) * 1024}')
                    a.e(f's_add_u32 s66, s{sW1B}, {20480 + k0 * 1024}')
                    grp[0] = k0
                a.vmem(f'buffer_load_dwordx4 v2, {sr(sWS, 4)}, s66 offen offset:{(k - k0) * 1024} sc1 lds', ('ws', k))

            for n in range(20):
                if n == 7:
                    cnt_wait(CNT1, 7, True, 4)
                a.wait(vm=[('w1', n)] + ([('ws', n + 1)] if n + 1 < 20 else []), lg=[('xf', n), ('us', n)])
                mf = []
                for h in range(2):
                    for rt in range(4):
                        ac = vr(ACCX + 16 * h + 4 * rt, 4)
                        w = RING[n % NR] if h == 0 else JIT[n % 2]
                        mf.append(f'v_mfma_f32_16x16x32_bf16 {ac}, {vr(w, 4)}, {vr(XF + 16 * (n % 2) + 4 * rt, 4)}, {"0" if n == 0 else ac}')
                fl = []
                if n + 1 < 20:
                    fl += xreads(n + 1) + [lambda: usread(n + 1)]
                nq = 0
                while q and nq < 3 and not qlow:
                    fl.append(q.pop(0))
                    nq += 1
                if not q or qlow:
                    while pws[0] < 20 and pws[0] - NST <= n and nq < 2:
                        fl.append(lambda k=pws[0]: stash1(k))
                        pws[0] += 1
                        nq += 1
                    while pw1[0] < 20 and pw1[0] - NR <= n and nq < 3:
                        fl.append(lambda k=pw1[0]: ring1(k))
                        pw1[0] += 1
                        nq += 1
                while q and nq < 2 and qlow and n < 18:
                    fl.append(q.pop(0))
                    nq += 1
                if not late and OPT.get('xe', 1):
                    for k in range(2, NR):
                        last = k if k >= 8 else k + 12
                        if max(last + 1, 12 + (k - 8) // 2 if k >= 8 else 0) == n and n < 19:
                            fl.append(lambda f=28 + k: w2load(f))
                            xdone.append(28 + k)
                if n == 5:
                    fl.append(lambda: cnt_peek(CNT1, 7))
                if n == 19:
                    def ep():
                        a.e(f's_lshl_b32 s6, s{sWAVE}, 7')
                        a.e('v_lshl_add_u32 v7, v9, 4, s6')
                        for h in range(2):
                            a.lds(f'ds_read_b128 {vr(EP + 4 * h, 4)}, v7 offset:{CSS + h * 64}', 'csr')
                    fl = [ep, epi_reads]
                weave(a, mf, fl)
            assert late is False or not q
            a.stamp(f'gend{l}')
            prio(a, 3)
            a.e(f's_lshl_b32 s65, s{sU1}, 11')
            a.e(f's_add_u32 s65, s65, s{sHG}')
            a.e(f's_add_u32 s65, s65, 0x{HB[l]:x}')
            L, Ld = a.newlab('Lsw'), a.newlab('Lsd')
            a.e('s_mov_b32 s61, 0')
            a.label(L)
            a.e('s_waitcnt lgkmcnt(0)')
            a.lg.clear()
            a.e(f'v_min_u32 v7, v{EP + 12}, v{EP + 13}')
            a.e(f'v_min3_u32 v7, v7, v{EP + 14}, v{EP + 15}')
            a.e('v_cmp_eq_u32 vcc, 0, v7')
            a.e(f's_cbranch_vccz {Ld}')
            a.e('s_sleep 1')
            epi_reads()
            a.lg.clear()
            a.e('s_add_u32 s61, s61, 1')
            a.e(f's_cmp_lt_u32 s61, {SPIN}')
            a.e(f's_cbranch_scc1 {L}')
            a.e('s_waitcnt lgkmcnt(0)')
            a.label(Ld)
            a.e('v_lshlrev_b32 v7, 10, v4')
            a.e('v_lshl_add_u32 v7, v10, 4, v7')
            for h in range(2):
                for pr in range(2):
                    b = ACCX + 16 * h + 8 * pr
                    if OPT.get('pk', 0):
                        for r in range(0, 8, 2):
                            sel = 'op_sel:[0,0,0] op_sel_hi:[0,1,1]' if r < 4 else 'op_sel:[1,0,0] op_sel_hi:[1,1,1]'
                            a.e(f'v_pk_fma_f32 {vr(b + r, 2)}, {vr(EP + 8 + 2 * pr, 2)}, {vr(EP + 4 * h + r % 4, 2)}, {vr(b + r, 2)} {sel} neg_lo:[1,0,0] neg_hi:[1,0,0]')
                        for r in range(0, 8, 2):
                            sel = 'op_sel:[0,0] op_sel_hi:[1,0]' if r < 4 else 'op_sel:[0,1] op_sel_hi:[1,1]'
                            a.e(f'v_pk_mul_f32 {vr(b + r, 2)}, {vr(b + r, 2)}, {vr(EP + 12 + 2 * pr, 2)} {sel}')
                    else:
                        for r in range(8):
                            a.e(f'v_fma_f32 v{b + r}, -v{EP + 8 + 2 * pr + r // 4}, v{EP + 4 * h + r % 4}, v{b + r}')
                        for r in range(8):
                            a.e(f'v_mul_f32 v{b + r}, v{b + r}, v{EP + 12 + 2 * pr + r // 4}')
                    for r in range(4):
                        a.e(f'v_cvt_pk_bf16_f32 v{b + r}, v{b + 2 * r}, v{b + 2 * r + 1}')
                    for r in range(4):
                        a.e(f'v_pk_max_i16 v{b + r}, v{b + r}, 0')
                    a.e(f'v_permlane16_swap_b32 v{b}, v{b + 2}')
                    a.e(f'v_permlane16_swap_b32 v{b + 1}, v{b + 3}')
                    xstore(f'buffer_store_dwordx4 {vr(b, 4)}, v7, {sr(sWS, 4)}, s65 offen offset:{h * 2048 + pr * 512}', 'hst', LP & 4 and l >= OPT.get('lpl', 0))
            a.stamp(f'epi{l}')
            cnt_add(CNT2, 7)


        def b2(ns, accb, HB_, first, pr):
            N = 4 * ns
            acc = lambda rt, ft: vr(accb(rt) + 4 * ft, 4)
            a.e(f'v_add_u32 v12, 0x{HB[l]:x}, v3')
            a.e('v_add_u32 v13, s69, v2')
            a.e(f'v_add_u32 v11, {R1}, v13')
            slot = {}

            def direct(z, sl):
                slot[z] = sl
                a.vmem(f'buffer_load_dwordx4 {vr(HB_[sl], 4)}, v12, {sr(sWS, 4)}, s{sHO + z % ns} offen offset:{(z // ns) * 256} sc1', ('h', z))

            def jit(z, sl):
                slot[z] = sl
                a.lds(f'ds_read_b128 {vr(HB_[sl], 4)}, v13 offset:{(z - 10) * 1024}', ('hz', z))

            def pwrite(rt, ft):
                a.lds(f'ds_write_b128 v{11 if rt < 2 else 13}, {acc(rt, ft)} offset:{((rt % 2) * 5 + ft) * 1024}', ('pw', rt))

            for z in range(10):
                direct(z, z)
            staged = list(range(10, min(19, N)))

            def stage(z):
                a.e(f's_add_u32 m0, s69, {(z - 10) * 1024}')
                a.e(f's_add_u32 s64, s{sHO + z % ns}, {(z // ns) * 256}')
                a.vmem(f'buffer_load_dwordx4 v12, {sr(sWS, 4)}, s64 offen sc1 lds', ('h', z))
            sq = list(staged)
            for _ in range(OPT.get('ns0', 0)):
                if sq:
                    stage(sq.pop(0))
            refill = list(range(19, N))
            if ns != 8:
                cnt_wait(CNT2, 7)
                cnt_add(CNT2, 7)
            a.stamp(f'hiss{l}')
            prio(a, pr)
            todo = list(staged)
            wq = []
            for z in range(N):
                rt, i = divmod(z, ns)
                fill = []
                vmw = []
                for _ in range(2):
                    if sq:
                        fill.append(lambda t=sq.pop(0): stage(t))
                if z >= 1:
                    fs = slot[z - 1]
                    if todo and todo[0] <= z + 3:
                        t = todo.pop(0)
                        vmw.append(('h', t))
                        fill.append(lambda t=t, fs=fs: jit(t, fs))
                    elif refill:
                        fill.append(lambda t=refill.pop(0), fs=fs: direct(t, fs))
                if rt == 1 and i == 0 and ns == 8:
                    fill.append(lambda: cnt_peek(CNT2, 7))
                lgw = []
                if rt >= 1 and i == 1:
                    if rt == 1 and ns == 8:
                        cnt_wait(CNT2, 7, True)
                        cnt_add(CNT2, 7)
                    if rt == 3:
                        assert not todo
                        lgw.append(('hz', staged[-1]))
                    wq = [lambda rt=rt, ft=ft: pwrite(rt - 1, ft) for ft in range(5)]
                for _ in range(2):
                    if wq:
                        fill.append(wq.pop(0))
                if z in staged:
                    lgw.append(('hz', z))
                else:
                    vmw.append(('h', z))
                if i == 0 and rt >= 2 and accb(rt) == accb(rt - 2):
                    lgw.append(('pw', rt - 2))
                a.wait(vm=vmw + [('w2', 5 * i + k) for k in range(5)], lg=lgw or None)
                if i == 0:
                    a.stamp(f'rt{rt}_{l}')
                weave(a, [f'v_mfma_f32_16x16x32_bf16 {acc(rt, ft)}, {vr(w2reg(5 * i + ft), 4)}, {vr(HB_[slot[z]], 4)}, {"0" if first and i == 0 else acc(rt, ft)}' for ft in range(5)], fill)
            assert not wq
            a.stamp(f'b2B{l}')
            prio(a, 3)
            for ft in range(5):
                if ft == 4 and ns == 8:
                    L0 = a.newlab('L0')
                    a.e(f's_cmp_lg_u32 s{sWAVE}, 0')
                    a.e(f's_cbranch_scc1 {L0}')
                    cnt_wait(CNT2, 7, target=16)
                    a.label(L0)
                pwrite(3, ft)

        HE = [56 + 4 * k for k in range(10)]
        HL = [96 + 4 * k for k in range(10)]
        acc = lambda rt, ft: vr(16 + 20 * rt + 4 * ft, 4)

        def late_tail(ns, first):
            a.e(f's_lshl_b32 s7, s{sWAVE}, 11')
            flagbase('s_add_u32 s67, s67, s7')
            poll(a, 11, 67, PH_H[l], 6, 'late', 4 - 64)
            a.stamp(f'pollB{l}')
            b2(ns, lambda rt: 16 + 20 * rt, HL, first, OPT.get('plb', 0))

        a.e(f's_cmp_ge_u32 s{sWAVE}, 4')
        a.e(f's_cbranch_scc1 {Lctl}')
        prio(a, 0)
        stream_part()
        if l == 0:
            XI = 20
        cs_put(l, 16)
        img()
        a.wait(vm='wp' if PS else None, lg='all')
        a.e('s_barrier')
        a.stamp(f'B1{l}')
        if l == 0:
            a.e(f'v_mov_b32 v7, {STATS + 528}')
            a.e('ds_read_b32 v7, v7')
            a.e('s_waitcnt lgkmcnt(0)')
            a.e('v_readfirstlane_b32 s26, v7')
            a.e('s_cmp_eq_u32 s26, 0')
            a.e(f's_cselect_b32 s6, 0x{LOC:x}, 0')
            a.e(f's_add_u32 s{sFSRC}, s{sFSRC}, s6')
            a.e(f's_add_u32 s{sFPAR}, s{sFPAR}, s6')
        prio(a, 3)
        xdone = []
        eq = [lambda f=f: w2load(f) for f in need2[NE2:]]
        gemm(False, eq, True)
        assert not eq
        xrest = [f for f in range(30, 40) if f not in xdone]
        for f in xrest:
            w2load(f)
        a.wait(vm='hst')
        a.stamp(f'ackH{l}')
        setflag(a, PH_H[l], 12)
        prio(a, 1)
        a.e(f's_lshl_b32 s7, s{sWAVE}, 7')
        flagbase('s_add_u32 s67, s67, s7')
        poll(a, 11, 67, PH_H[l], 8, 10)
        a.stamp(f'pollA{l}')
        b2(8, lambda rt: 16 + 20 * (rt % 2), HE, True, 1)
        stE = a.save()
        a.e(f's_branch {Ljoin}')

        a.label(Lctl)
        a.restore(stP)
        prio(a, 3)
        control_part()
        if l == 0:
            a.e(f'v_mov_b32 v7, {STATS + 528}')
            a.e('v_mov_b32 v0, s26')
            a.e('ds_write_b32 v7, v0')
        a.wait(lg='all')
        a.e('s_barrier')
        a.stamp(f'B1{l}')
        st0 = a.save()
        a.e(f's_cmp_eq_u32 s{sWAVE}, 7')
        a.e(f's_cbranch_scc1 {LS}')
        a.e(f's_cmp_lt_u32 s{sWAVE}, s{sU2}')
        a.e(f's_cbranch_scc1 {Llate}')
        a.wait(vm=('x1', 1))
        cnt_add(CNT1, 7)
        cnt_add(CNT2, 7)
        for f in need2[:OPT.get('nl0', 8) + OPT.get('nl1', 8) + OPT.get('nl2', 4)]:
            w2load(f)
        a.e(f's_branch {Lg2}')

        a.label(Llate)
        a.restore(st0)
        prio(a, 2)
        NL = OPT.get('nlq', 4)
        if PS:
            wq = [lambda n=n: w1load(n) for n in range(NR)]
            a.seen |= {('ws', n) for n in range(NST)}
        for f in wq[:NL]:
            f()
        a.wait(vm=('x1', 1))
        cnt_add(CNT1, 7)
        if l == 0:
            cs_loads(16)
        for f in wq[NL:]:
            f()
        for f in need2[:OPT.get('nl0', 8)]:
            w2load(f)
        cs_put(l, 16)
        n1 = OPT.get('nl0', 8) + OPT.get('nl1', 8)
        n2 = n1 + OPT.get('nl2', 4)
        gemm(True, [lambda f=f: w2load(f) for f in need2[OPT.get('nl0', 8):n1]], True)
        for f in need2[n1:n2]:
            w2load(f)
        a.wait(vm='hst')
        a.stamp(f'ackH{l}')
        a.label(Lg2)
        setflag(a, PH_H[l], 12)
        for f in need2[n2:]:
            w2load(f)
        late_tail(6, True)
        a.e(f's_branch {Ljoin}')

        a.label(LS)
        a.restore(st0)
        setflag(a, PH_S[l], 12)
        prio(a, 3)
        a.wait(vm=('x1', 1))
        cnt_add(CNT1, 7)
        if LP & 4 and l >= OPT.get('lpl', 0):
            a.e('s_lshl_b32 s6, s100, 12')
            a.e(f's_add_u32 s66, s6, s{sHG}')
            warm(40, 66, HB[l], 4, 7168)
        a.e(f's_lshl_b32 s67, s{sG}, 13')
        a.e('s_cmp_eq_u32 s26, 0')
        a.e(f's_cselect_b32 s6, 0x{LOC:x}, 0')
        a.e('s_add_u32 s67, s67, s6')
        a.e(f's_add_u32 s60, s67, 0x{FLG + 896:x}')
        a.e(f's_add_u32 s59, s{sNON}, {PH_S[l]}')
        L, Ld = a.newlab('Lsp'), a.newlab('Lsd')
        a.e('s_mov_b32 s61, 0')
        a.label(L)
        a.e('v_and_b32 v7, 7, v1')
        a.e('v_lshlrev_b32 v7, 10, v7')
        a.e(f'buffer_load_dword v7, v7, {sr(sWS, 4)}, s60 offen sc1')
        a.e('s_waitcnt vmcnt(0)')
        a.e('v_subrev_u32 v7, s59, v7')
        a.e('v_cmp_le_u32 vcc, 16, v7')
        a.e(f's_cbranch_vccz {Ld}')
        a.e('s_sleep 2')
        a.e('s_add_u32 s61, s61, 1')
        a.e(f's_cmp_lt_u32 s61, {SPIN}')
        a.e(f's_cbranch_scc1 {L}')
        a.label(Ld)
        a.vm.clear()
        a.e('v_lshlrev_b32 v7, 3, v1')
        for k in range(8):
            a.vmem(f'buffer_load_dwordx2 {vr(16 + 2 * k, 2)}, v7, {sr(sWS, 4)}, s65 offen offset:{k * 512} sc1', 'sg')
        a.e('v_lshlrev_b32 v7, 2, v1')
        a.e('s_mov_b32 s7, 0x3acccccd')
        a.wait(vm='sg')
        for k in range(1, 8):
            a.e(f'v_add_f32 v16, v16, v{16 + 2 * k}')
            a.e(f'v_add_f32 v17, v17, v{17 + 2 * k}')
        a.e('v_mul_f32 v16, s7, v16')
        a.e('v_mul_f32 v17, s7, v17')
        a.e('v_fma_f32 v17, -v16, v16, v17')
        a.e('v_max_f32 v17, 0, v17')
        a.e('v_add_f32 v17, 0x3727c5ac, v17')
        a.e('v_rsq_f32 v17, v17')
        a.lds(f'ds_write_b32 v7, v16 offset:{STATS}')
        a.lds(f'ds_write_b32 v7, v17 offset:{STATS + 256}')
        cnt_wait(CNT1, 7, target=4)
        a.stamp(f'stat{l}')
        prio(a, 0)
        PM, TB = 96, (100, 116)
        RSC, RA = 2 * PRV + 9216, 37
        a.e(f's_cmp_ge_u32 s{sC}, 4')
        a.e('s_cselect_b64 s[70:71], -1, 0')
        a.e('v_and_b32 v11, 7, v8')
        a.e('v_sub_u32 v12, 8, v11')
        a.e('v_cndmask_b32 v12, v11, v12, s[70:71]')
        a.e('v_lshrrev_b32 v13, 3, v8')
        a.e('v_add_u32 v0, 2, v13')
        a.e('v_cmp_eq_u32 vcc, 0, v11')
        a.e('v_cndmask_b32 v12, v12, 0, vcc')
        a.e('v_cndmask_b32 v13, v13, v0, vcc')
        a.e('v_and_b32 v0, 1, v12')
        a.e('v_lshlrev_b32 v0, 4, v0')
        a.e('v_mov_b32 v36, 0x3f80')
        a.e('v_lshlrev_b32 v0, v0, v36')
        a.e('v_cmp_eq_u32 vcc, v13, v9')
        a.e('v_cndmask_b32 v0, 0, v0, vcc')
        a.e('v_lshrrev_b32 v12, 1, v12')
        for r in range(4):
            a.e(f'v_cmp_eq_u32 vcc, {r}, v12')
            a.e(f'v_cndmask_b32 v{32 + r}, 0, v0, vcc')
        a.lds(f'ds_write_b128 v2, v[32:35] offset:{RSC}', 'rw')
        a.e(f'v_lshlrev_b32 v{RA}, 2, v1')
        a.e(f's_mul_i32 s6, s{sC}, 10')
        a.e('v_cmp_le_u32 s[72:73], 2, v9')
        for ft in range(5):
            a.e('v_and_b32 v11, 1, v9')
            a.e(f'v_add3_u32 v11, v11, s6, {2 * ft}')
            a.e('v_sub_u32 v12, 119, v11')
            a.e('v_cndmask_b32 v12, v11, v12, s[70:71]')
            a.e('v_sub_u32 v13, 120, v11')
            a.e('v_cndmask_b32 v13, v11, v13, s[70:71]')
            if ft == 0:
                a.e('v_cmp_eq_u32 vcc, 0, v13')
                a.e('v_cndmask_b32 v13, v13, 40, vcc')
                a.e('v_cmp_eq_u32 vcc, 80, v13')
                a.e('v_cndmask_b32 v13, v13, 0, vcc')
            a.e('v_cndmask_b32 v12, v12, v13, s[72:73]')
            a.e('v_mul_u32_u24 v13, 13108, v12')
            a.e('v_lshrrev_b32 v13, 16, v13')
            a.e('v_sub_u32 v11, v12, v13')
            a.e('v_mul_u32_u24 v0, 5, v13')
            a.e('v_sub_u32 v12, v12, v0')
            a.e('v_and_b32 v0, 7, v13')
            a.e('v_lshrrev_b32 v13, 3, v13')
            a.e('v_lshl_add_u32 v13, v0, 1, v13')
            a.e('v_add_u32 v13, 64, v13')
            a.e('v_cmp_eq_u32 vcc, 4, v12')
            a.e('v_cndmask_b32 v11, v11, v13, vcc')
            a.e('v_lshlrev_b32 v11, 10, v11')
            a.e('v_lshl_add_u32 v11, v8, 4, v11')
            a.e(f'v_add_u32 v11, {R1}, v11')
            a.lds(f'ds_write_b32 v{RA}, v11 offset:{RSC + PRV + (ft // 4) * PRV + (ft % 4) * 256}', 'rw')
        a.e('v_lshlrev_b32 v7, 2, v1')
        a.lds(f'ds_read_b128 {vr(PM, 4)}, v2 offset:{RSC}', 'ra')
        AR = (0, 11, 12, 13, 7)
        for ft in range(5):
            a.lds(f'ds_read_b32 v{AR[ft]}, v7 offset:{RSC + PRV + (ft // 4) * PRV + (ft % 4) * 256}', 'ra')
        a.wait(lg='ra')

        def rread(ft):
            return [lambda rt=rt: a.lds(f'ds_read_b128 {vr(TB[ft % 2] + 4 * rt, 4)}, v{AR[ft]} offset:{rt * 256}', ('rs', ft)) for rt in range(4)]
        for f in rread(0):
            f()
        for ft in range(5):
            if ft + 1 < 5:
                for f in rread(ft + 1):
                    f()
            a.wait(lg=('rs', ft))
            weave(a, [f'v_mfma_f32_16x16x32_bf16 {acc(rt, ft)}, {vr(PM, 4)}, {vr(TB[ft % 2] + 4 * rt, 4)}, 0' for rt in range(4)], [])
        prio(a, 0)
        cnt_add(CNT2, 7)
        for f in need2:
            if f < 20:
                w2load(f)
        a.e('s_sleep 40')
        late_tail(4, False)
        a.label(Ljoin)
        a.e('s_nop 1')
        a.restore(stE)
        a.vm.clear()
        a.forget('w1', 'ws', 'v', 'x1', 'us', 'h')
        a.seen -= {('w2', f) for f in range(30, 40)}
        if l == 0:
            Lg = a.newlab('Lg')
            a.e(f's_cmp_ge_u32 s{sWAVE}, 4')
            a.e(f's_cbranch_scc1 {Lg}')
            a.e('s_waitcnt lgkmcnt(0)')
            gen_D(a, dreg, 116, None, (0, 1))
            a.label(Lg)
        reduce_addr(l, False)
        a.wait(lg='all')
        a.e('s_barrier')
        a.stamp(f'PB{l}')
        reduce_item(l)
        Lnr = a.newlab('Lnr')
        a.e(f's_cmp_ge_u32 s{sWAVE}, 2')
        a.e(f's_cbranch_scc1 {Lnr}')
        reduce_addr(l, True)
        reduce_item(l)
        a.label(Lnr)
        if l == 1:
            Lnn = a.newlab('Lnn')
            a.e('s_lshl_b32 s6, s2, 3')
            a.e(f's_add_u32 s6, s6, s{sWAVE}')
            a.e('s_cmp_lg_u32 s6, 7')
            a.e(f's_cbranch_scc1 {Lnn}')
            a.e(f'v_mov_b32 v0, s{sNON}')
            a.e(f's_mov_b32 s7, 0x{FLG + 0x40000:x}')
            a.e('s_mov_b64 exec, 1')
            a.e(f'buffer_store_dword v0, off, {sr(sWS, 4)}, s7 sc1')
            a.e('s_mov_b64 exec, -1')
            a.label(Lnn)
            a.stamp_dump(2, sWS, sWAVE, 15)
            break

        a.stamp('redB')
        a.e('v_lshlrev_b32 v5, 4, v8')
        a.e('v_lshl_add_u32 v5, v9, 9, v5')
        a.e(f'v_add_u32 v5, {R1}, v5')
        a.e('v_add_u32 v6, 40960, v5')
        def helpers(f):
            Lg = a.newlab('Lg')
            a.e(f's_cmp_lt_u32 s{sWAVE}, 4')
            a.e(f's_cbranch_scc1 {Lg}')
            st = a.save()
            f()
            a.restore(st)
            a.label(Lg)
        helpers(lambda: gen_D(a, dreg, 116, None, (0,)))
        a.wait(vm='all')
        a.e('s_barrier')
        a.stamp('ackXB')
        setflag_w0(a, PH_X2, 12)
        pXA = (7, sFSRC, PH_X2, 1)
        pXB = (11, sFPAR, PH_X2, 1)
        a.vm.clear()
        a.e(f's_sleep {OPT.get("xsl", 0)}')
        poll_issue(a, *pXA)
        poll_issue(a, *pXB, tag='poll2')
        a.e(f's_add_u32 s67, s{sGCM}, s68')
        a.e(f's_mul_i32 s66, s{sPG}, 81920')
        a.e('s_add_u32 s66, s66, s68')
        poll_check(a, *pXA)
        lin(5, 68, R1, 67, X2B, 'x2')
        poll_check(a, *pXB, tag='poll2')
        a.stamp('pollXB')
        lin(5, 68, R1 + 40960, 66, X2B + 40960, 'x2')
        Lh, Lj, L4 = a.newlab('Lh'), a.newlab('Lj'), a.newlab('L4')
        a.e(f's_cmp_ge_u32 s{sWAVE}, 4')
        a.e(f's_cbranch_scc1 {Lh}')
        st0 = a.save()
        U4 = ST1 + 1024
        AC1, AC2 = 56, 72
        XS = [[88, 92, 96, 100], [116, 120, 124, 128], [104, 108, 112, 132]]
        WFA = 16
        RSr, MRr = [116, 120, 124, 128], [88, 92, 96, 100]
        wf = lambda mat, tt, ks: (16 + k * 4 if (k := (mat * 4 + tt) * 2 + ks) < 10 else (72 + (k - 10) * 4 if k < 14 else 104 + (k - 14) * 4))

        def sgn():
            a.e('v_and_b32 v0, 1, v1')
            a.e('v_lshlrev_b32 v0, 31, v0')
            a.e('v_or_b32 v0, 1.0, v0')

        def wf_reads():
            for tt in range(4):
                for ks in range(2):
                    for mat in range(2):
                        a.lds(f'ds_read_b128 {vr(wf(mat, tt, ks), 4)}, v2 offset:{W1SL + ((mat * 4 + tt) * 2 + ks) * 1024}', 'wf')

        def st_reads():
            a.e('v_lshlrev_b32 v12, 4, v9')
            for rt in range(4):
                a.lds(f'ds_read_b128 {vr(RSr[rt], 4)}, v12 offset:{ST1 + rt * 64}', 'st')
                a.lds(f'ds_read_b128 {vr(MRr[rt], 4)}, v12 offset:{ST1 + 256 + rt * 64}', 'st')

        a.e(f's_lshl_b32 s6, s{sWAVE}, 12')
        a.e('v_add_u32 v75, s6, v2')
        a.e(f's_cmp_ge_u32 s{sWAVE}, 2')
        a.e(f's_cselect_b32 s98, 0.5, 0x{fbits(0.25):08x}')
        a.e(f's_lshl_b32 s99, s{sKT}, 5')
        gen_W1(a, 1, W1SL, 56, (0,), 98, range(2), 99)
        a.wait(vm='x2', lg='all')
        a.e('s_barrier')
        a.stamp('XA')
        prio(a, OPT.get('mp', 1))

        def xr1(n):
            return [lambda rt=rt: a.lds(f'ds_read_b128 {vr(XS[n % 3][rt], 4)}, v{5 + rt // 2} offset:{n * 2048 + (rt % 2) * 256}', ('xf', n)) for rt in range(4)]
        for f in xr1(0) + xr1(1):
            f()
        for n in range(20):
            a.wait(lg=('xf', n))
            ac = AC1 if n < 10 else AC2
            mf = [f'v_mfma_f32_16x16x32_bf16 {vr(ac + 4 * rt, 4)}, {vr(XS[n % 3][rt], 4)}, {vr(dreg(n % 10), 4)}, {"0" if n % 10 == 0 else vr(ac + 4 * rt, 4)}' for rt in range(4)]
            weave(a, mf, xr1(n + 2) if n + 2 < 20 else [])
        prio(a, 3)
        sgn()
        for r in range(16):
            a.e(f'v_fma_f32 v{AC1 + r}, v{AC2 + r}, v0, v{AC1 + r}')
        wf_reads()
        a.stamp('a1B')
        a.e('s_barrier')
        a.stamp('ST')
        st_reads()
        a.label(L4)
        stage1(a, AC1, RSr, MRr, 116, wf, R1)
        stC = a.save()
        a.e(f's_branch {Lj}')

        a.label(Lh)
        a.restore(st0)
        gen_D(a, dreg, 116, None, (1,))
        AS, AM, ONE, FS = 64, 68, 72, 76
        for r in range(4):
            a.e(f'v_mov_b32 v{ONE + r}, 0x3f803f80')
        a.e(f's_mul_i32 s6, s{sRHO}, 40960')
        a.e(f's_lshl_b32 s7, s{sKT}, 8')
        a.e('s_add_u32 s6, s6, s7')
        a.e('v_add_u32 v5, s6, v5')
        a.wait(vm='x2', lg='all')
        a.e('s_barrier')
        prio(a, OPT.get('hp', 3))

        def sread(ks):
            a.lds(f'ds_read_b128 {vr(FS + 4 * (ks % 10), 4)}, v5 offset:{ks * 2048}', ('sf', ks))
        for ks in range(6):
            sread(ks)
        for ks in range(20):
            a.wait(lg=('sf', ks))
            f = vr(FS + 4 * (ks % 10), 4)
            ac = vr(56 if ks < 10 else 60, 4)
            weave(a, [f'v_mfma_f32_16x16x32_bf16 {vr(AS, 4)}, {f}, {f}, {"0" if ks == 0 else vr(AS, 4)}',
                      f'v_mfma_f32_16x16x32_bf16 {vr(AM, 4)}, {f}, {vr(ONE, 4)}, {"0" if ks == 0 else vr(AM, 4)}',
                      f'v_mfma_f32_16x16x32_bf16 {ac}, {f}, {vr(dreg(ks % 10), 4)}, {"0" if ks % 10 == 0 else ac}'],
                  [lambda: sread(ks + 6)] if ks + 6 < 20 else [])
        a.e(f's_and_b32 s66, s{sWAVE}, 3')
        a.e('s_lshl_b32 s6, s66, 6')
        a.e(f's_add_u32 s6, s6, {ST1}')
        stats_finalize(a, AS, AM, 1, 11, 64, 256, 'rs_mr')
        sgn()
        for r in range(4):
            a.e(f'v_fma_f32 v{56 + r}, v{60 + r}, v0, v{56 + r}')
        a.e('s_lshl_b32 s6, s66, 10')
        a.e('v_add_u32 v7, s6, v2')
        a.lds(f'ds_write_b128 v7, v[56:59] offset:{U4}', 'u4')
        prio(a, 3)
        Ln4 = a.newlab('Ln4')
        a.e(f's_cmp_lg_u32 s{sWAVE}, 4')
        a.e(f's_cbranch_scc1 {Ln4}')
        st1 = a.save()
        wf_reads()
        a.wait(lg='u4')
        a.e('s_barrier')
        for rt in range(4):
            a.lds(f'ds_read_b128 {vr(AC1 + 4 * rt, 4)}, v2 offset:{U4 + rt * 1024}', 'st')
        st_reads()
        a.e(f's_branch {L4}')
        a.label(Ln4)
        a.restore(st1)
        if OPT.get('t1', 4):
            L7 = a.newlab('L7')
            a.e(f's_cmp_lg_u32 s{sWAVE}, 7')
            a.e(f's_cbranch_scc1 {L7}')
            w1_touch(60, 0, OPT.get('t1', 4))
            a.label(L7)
        a.wait(lg='all')
        a.e('s_barrier')
        L7, L56 = a.newlab('L7'), a.newlab('L56')
        a.e(f's_cmp_eq_u32 s{sWAVE}, 7')
        a.e(f's_cbranch_scc1 {L7}')
        a.e(f's_cmp_eq_u32 s{sWAVE}, 6')
        a.e(f's_cselect_b32 s99, s{sTAU1}, s{sG}')
        a.e(f's_cselect_b32 s6, 4096, 0')
        a.e(f's_add_u32 s6, s6, {TWL1}')
        a.e('v_add_u32 v31, s6, v2')
        gen_TW(a, 16, 99, 31, 0)
        a.e(f's_branch {Lj}')
        a.label(L7)
        stage_all()
        a.label(Lj)
        a.e('s_nop 1')
        a.restore(stC)
        v_out_addr(a)
        a.wait(lg='all')
        a.e('s_barrier')
        a.stamp('VT')
        v_out(a, 1, R1, 64)
        publish_v(1)

    a.label(end)
    a.e('s_endpgm')
    a.raw(descriptor(name, 256, 102))
    return 163840


def main():
    if len(sys.argv) > 2 and 'stamps' in sys.argv[2:]:
        Asm.STAMPS = True
    Asm.CYC = 'cyc' in sys.argv[2:]
    Asm.DBGOUT = 'dbgout' in sys.argv[2:]
    for o in sys.argv[2:]:
        if o.startswith('names='):
            Asm.ACTIVE = o[6:].split(',')
        elif '=' in o:
            k, v = o.split('=')
            OPT[k] = int(v)
    hdr = open('cdna_kernels/' + NAME + '.s.ref').read().split('\n')
    hdr = [l for l in hdr if l.startswith(';') and '@launch' not in l and 'Override launch' not in l and 'grid=ceil' not in l]
    out = '\n'.join(hdr) + '\n'
    a = Asm()
    lds = gen(a, NAME + '_kernel')
    out += f'; @launch grid=(256,1,1) block=(512,1,1) lds={lds}\n'
    if Asm.STAMPS:
        out += '; stampnames start,' + ','.join(Asm.ACTIVE) + '\n'
    out += '.amdgcn_target "amdgcn-amd-amdhsa--gfx950"\n'
    out += a.text()
    path = sys.argv[1] if len(sys.argv) > 1 else 'cdna_kernels/' + NAME + '.s'
    open(path, 'w').write(out)
    print('wrote', path, len(out))


main()
```
